```python
import torch

def _softmax(x, axis=-1):
    return torch.softmax(x, dim=axis)
def _gelu(x):
    return torch.nn.functional.gelu(x, approximate="tanh")
def _silu(x):
    return torch.nn.functional.silu(x)
def _sigmoid(x):
    return torch.sigmoid(x)
def _layernorm(x, axis=-1, eps=1e-5):
    m = x.mean(dim=axis, keepdim=True)
    v = x.var(dim=axis, keepdim=True, unbiased=False)
    return (x - m) / torch.sqrt(v + eps)
def _scatter_add(tgt, idx, src, axis=0):
    return tgt.clone().index_add_(axis, idx, src)
def _segment_sum(src, seg, n):
    out = torch.zeros((n,) + src.shape[1:], dtype=src.dtype)
    return out.index_add_(0, seg, src)
def _pad(x, pw):
    flat = tuple(v for pair in reversed(pw) for v in pair)
    return torch.nn.functional.pad(x, flat)

kernel_name = 'interleave_layers__linear_kernel_hedgehog__mixer_s_mlp__prompt'

def setup_inputs():

    _w = (lambda a: (lambda t: t.to(torch.bfloat16) if t.is_floating_point() else t)(torch.as_tensor(a)))
    def _A_setup():
        B, S, D, H = 1, 2048, 512, 32
        Dh = D // H
        return {
            "x": _w((lambda *s: torch.randn(*s, dtype=torch.bfloat16) * 0.05)(B, S, D)),
            "wqkv": _w((lambda *s: torch.randn(*s, dtype=torch.bfloat16) * 0.4)(D, 3 * D)),
            "w_phi": _w((lambda *s: torch.randn(*s, dtype=torch.bfloat16) * 0.4)(H, Dh, Dh) * (Dh ** -0.5)),
            "wo": _w((lambda *s: torch.randn(*s, dtype=torch.bfloat16) * 0.05)(D, D)),
        }
    _A_in = _A_setup()

    def _B_setup():
        B, S, D, F = 1, 2048, 512, 1792
        return {
            "x":  _w((lambda *s: torch.randn(*s, dtype=torch.bfloat16) * 0.05)(B, S, D)),
            "w1": _w((lambda *s: torch.randn(*s, dtype=torch.bfloat16) * 3.2)(D, D) * (D ** -0.5)),
            "w2": _w((lambda *s: torch.randn(*s, dtype=torch.bfloat16) * 3.2)(D, D) * (D ** -0.5)),
            "w3": _w((lambda *s: torch.randn(*s, dtype=torch.bfloat16) * 3.2)(D, F) * (D ** -0.5)),
            "w4": _w((lambda *s: torch.randn(*s, dtype=torch.bfloat16) * 3.2)(F, D) * (F ** -0.5)),
        }
    _B_in = _B_setup()

    return {
        "A_x": _A_in["x"],
        "A_wqkv": _A_in["wqkv"],
        "A_w_phi": _A_in["w_phi"],
        "A_wo": _A_in["wo"],
        "B_x": _B_in["x"],
        "B_w1": _B_in["w1"],
        "B_w2": _B_in["w2"],
        "B_w3": _B_in["w3"],
        "B_w4": _B_in["w4"],
    }

def reference(A_x, A_wqkv, A_w_phi, A_wo, B_x, B_w1, B_w2, B_w3, B_w4):
    def _A_ref(x, wqkv, w_phi, wo):
        B, S, D = x.shape
        H = 32; Dh = D // H
        qkv = (lambda x, *d: x.permute(*d))((x @ wqkv).reshape(B, S, 3, H, Dh), 2, 0, 3, 1, 4)
        q, k, v = qkv[0], qkv[1], qkv[2]
        pq = torch.einsum("bhsd,hdf->bhsf", q, w_phi)
        pk = torch.einsum("bhsd,hdf->bhsf", k, w_phi)
        phi_q = torch.concatenate([_softmax(pq, axis=-1), _softmax(-pq, axis=-1)], axis=-1)
        phi_k = torch.concatenate([_softmax(pk, axis=-1), _softmax(-pk, axis=-1)], axis=-1)
        kv = torch.einsum("bhsf,bhsd->bhfd", phi_k, v)
        z  = torch.einsum("bhsf->bhf", phi_k)
        num = torch.einsum("bhqf,bhfd->bhqd", phi_q, kv)
        den = torch.einsum("bhqf,bhf->bhq", phi_q, z)[..., None] + 1e-6
        o = num / den
        return (lambda x, *d: x.permute(*d))(o, 0, 2, 1, 3).reshape(B, S, D) @ wo

    def _B_ref(x, w1, w2, w3, w4):
        B, S, D = x.shape
        h = _gelu(_layernorm(x, axis=-1) @ w1)
        c = D // 4
        g0 = _pad(h[:, :, 0*c:1*c], ((0, 0), (1, 0), (0, 0)))[:, :S, :]
        g1 = _pad(h[:, :, 1*c:2*c], ((0, 0), (0, 1), (0, 0)))[:, 1:, :]
        g2 = _pad(h[:, :, 2*c:3*c], ((0, 0), (2, 0), (0, 0)))[:, :S, :]
        g3 = _pad(h[:, :, 3*c:   ], ((0, 0), (0, 2), (0, 0)))[:, 2:, :]
        hs = torch.concatenate([g0, g1, g2, g3], axis=-1) @ w2
        x1 = x + hs
        h2 = _gelu(_layernorm(x1, axis=-1) @ w3) @ w4
        return x1 + h2

    x = A_x
    x = x + _A_ref(_layernorm(x, axis=-1), A_wqkv, A_w_phi, A_wo)
    x = x + _B_ref(_layernorm(x, axis=-1), B_w1, B_w2, B_w3, B_w4)
    x = x + _A_ref(_layernorm(x, axis=-1), A_wqkv, A_w_phi, A_wo)
    x = x + _B_ref(_layernorm(x, axis=-1), B_w1, B_w2, B_w3, B_w4)
    return x
```

```python
import re

REG_RE = re.compile(r'^(-|abs\()?([vas])(\d+|\[(\d+):(\d+)\])\)?$')

TRANS = ('v_exp_f32', 'v_rcp_f32', 'v_rsq_f32', 'v_sqrt_f32', 'v_log_f32')


def regs_of(tok):
    tok = tok.strip()
    if tok in ('vcc', 'exec', 'm0', 'scc'):
        return {tok}
    if tok in ('vcc_lo', 'vcc_hi'):
        return {'vcc'}
    if tok in ('exec_lo', 'exec_hi'):
        return {'exec'}
    m = REG_RE.match(tok)
    if not m:
        return set()
    k = m.group(2)
    if m.group(4) is not None:
        return {(k, i) for i in range(int(m.group(4)), int(m.group(5)) + 1)}
    return {(k, int(m.group(3)))}


def split_ops(s):
    out, depth, cur = [], 0, ''
    for ch in s:
        if ch in '[(':
            depth += 1
        if ch in '])':
            depth -= 1
        if ch == ',' and depth == 0:
            out.append(cur.strip())
            cur = ''
        else:
            cur += ch
    if cur.strip():
        out.append(cur.strip())
    return out


class Ins:
    __slots__ = ('text', 'kind', 'w', 'r', 'pos', 'mn', 'srcc', 'srcab', 'sdata', 'lds_dma', 'dreg')


def v(i, n=1):
    return f'v{i}' if n == 1 else f'v[{i}:{i + n - 1}]'


def a(i, n=1):
    return f'a{i}' if n == 1 else f'a[{i}:{i + n - 1}]'


def s(i, n=1):
    return f's{i}' if n == 1 else f's[{i}:{i + n - 1}]'


class Asm:
    def __init__(self):
        self.lines = []
        self.hist = []
        self.pos = 0
        self.vm = 0
        self.vm_done = 0
        self.lg = 0
        self.lg_done = 0
        self.maxv = -1
        self.maxa = -1
        self.maxs = -1
        self.nops = 0
        self.nlabel = 0

    def raw(self, t):
        self.lines.append(t)

    def comment(self, t):
        self.lines.append('    ; ' + t)

    def label(self, name):
        self.lines.append(name + ':')

    def newlabel(self, base):
        self.nlabel += 1
        return f'.L{base}_{self.nlabel}'

    def reset_kernel(self):
        self.hist = []
        self.vm = self.vm_done = self.lg = self.lg_done = 0
        self.maxv = self.maxa = self.maxs = -1

    def flush_hazards(self, n=16):
        self.hist = []

    def _parse(self, text):
        t = text.split(';')[0].strip()
        parts = t.split(None, 1)
        mn = parts[0]
        ops = split_ops(parts[1]) if len(parts) > 1 else []
        mods = ''
        if ops:
            lp = ops[-1].split(None, 1)
            ops[-1] = lp[0]
            mods = lp[1] if len(lp) > 1 else ''
        I = Ins()
        I.text, I.mn = text, mn
        I.w, I.r = set(), set()
        I.srcc, I.srcab, I.sdata, I.lds_dma, I.dreg = set(), set(), set(), False, None
        R = [regs_of(o) for o in ops]
        if mn.startswith('v_mfma'):
            I.kind = 'mfma'
            I.w = R[0]
            I.srcab = R[1] | R[2]
            I.srcc = R[3]
            I.r = I.srcab | I.srcc
            I.dreg = (ops[0], ops[3])
        elif mn.startswith('v_'):
            I.kind = 'trans' if mn.replace('_e32', '').replace('_e64', '') in TRANS else 'valu'
            if mn.startswith('v_permlane') and 'swap' in mn:
                I.w = R[0] | R[1]
                I.r = R[0] | R[1]
            elif mn.startswith('v_cmp'):
                I.w = R[0]
                I.r = set().union(*R[1:])
                if mn.startswith('v_cmpx'):
                    I.w |= {'exec'}
            elif mn.startswith(('v_add_co', 'v_sub_co', 'v_addc_co', 'v_subb_co', 'v_mad_u64')):
                I.w = R[0] | R[1]
                I.r = set().union(*R[2:])
            else:
                I.w = R[0]
                I.r = set().union(*R[1:]) if len(R) > 1 else set()
                if mn.startswith(('v_fmac', 'v_dot2c', 'v_writelane')):
                    I.r |= R[0]
            I.r |= {'exec'}
        elif mn.startswith(('buffer_', 'global_')):
            I.kind = 'vmem'
            modl = mods.split()
            if 'lds' in modl or '_lds_' in mn:
                I.lds_dma = True
                I.r = set().union(*R) | {'m0'}
            elif 'load' in mn:
                I.w = R[0]
                I.r = set().union(*R[1:])
                if 'd16' in mn:
                    I.r |= R[0]
            elif 'atomic' in mn:
                I.r = set().union(*R)
                if 'sc0' in modl:
                    I.w = R[0]
            elif mn in ('buffer_wbl2', 'buffer_inv'):
                pass
            else:
                I.r = set().union(*R)
                if mn.startswith('buffer_store'):
                    d = R[0]
                else:
                    d = R[1]
                if 'x4' in mn or 'x3' in mn:
                    I.sdata = d
        elif mn.startswith('ds_'):
            I.kind = 'ds'
            if 'read' in mn or 'permute' in mn or 'swizzle' in mn:
                I.w = R[0]
                I.r = set().union(*R[1:])
            else:
                I.r = set().union(*R)
        elif mn.startswith('s_'):
            I.kind = 'salu'
            if mn.startswith(('s_cmp', 's_cbranch', 's_branch', 's_waitcnt', 's_barrier', 's_nop', 's_endpgm',
                              's_sleep', 's_setprio', 's_bitcmp')):
                I.r = set().union(*R) if R else set()
            elif 'saveexec' in mn:
                I.w = R[0] | {'exec'}
                I.r = set().union(*R[1:]) | {'exec'}
            else:
                I.w = R[0] if R else set()
                I.r = set().union(*R[1:]) if len(R) > 1 else set()
            if mn.startswith('s_load') or mn.startswith('s_buffer_load') or mn.startswith('s_mem'):
                I.kind = 'smem'
        else:
            raise ValueError('unknown instr ' + text)
        for r in I.w | I.r:
            if isinstance(r, tuple):
                if r[0] == 'v':
                    self.maxv = max(self.maxv, r[1])
                elif r[0] == 'a':
                    self.maxa = max(self.maxa, r[1])
                else:
                    self.maxs = max(self.maxs, r[1])
        return I

    def _need(self, P, C):
        n = 0
        isv = lambda x: x.kind in ('valu', 'trans')
        vec = lambda S: {r for r in S if isinstance(r, tuple) and r[0] in 'va'}
        sg = lambda S: {r for r in S if (isinstance(r, tuple) and r[0] == 's') or r == 'vcc'}
        if P.kind == 'mfma':
            big = '32x32' in P.mn
            raw = 12 if big else 8
            if C.kind == 'mfma':
                if P.w & C.srcab:
                    n = max(n, raw)
                if P.w & C.srcc:
                    if not (C.dreg[1] == P.dreg[0] and ('32x32' in C.mn) == big):
                        n = max(n, 10 if big else 6)
                elif P.w & C.w:
                    n = max(n, raw)
            else:
                if P.w & (C.r | C.w):
                    n = max(n, raw)
                if isv(C) and (P.srcc & C.w):
                    n = max(n, 7 if big else 3)
        if isv(P):
            if C.kind == 'mfma' and (vec(P.w) & C.r):
                n = max(n, 2)
            if C.kind == 'mfma' and 'exec' in P.w:
                n = max(n, 4)
            if P.kind == 'trans' and C.kind != 'trans' and (P.w & C.r):
                n = max(n, 1)
            if C.mn.startswith('v_permlane') and (vec(P.w) & C.r):
                n = max(n, 2)
            if C.mn.startswith(('v_readfirstlane', 'v_readlane')) and (vec(P.w) & C.r):
                n = max(n, 1)
            if 'dpp' in C.text or 'row_' in C.text or 'quad_perm' in C.text:
                if vec(P.w) & C.r:
                    n = max(n, 2)
            if sg(P.w):
                if C.kind == 'vmem' and (sg(P.w) & C.r):
                    n = max(n, 5)
                if isv(C) and (sg(P.w) & C.r):
                    n = max(n, 4 if C.mn.startswith(('v_readlane', 'v_writelane')) else 2)
                if C.kind in ('salu', 'smem') and (sg(P.w) & C.r):
                    n = max(n, 1)
            if 'exec' in P.w and C.mn.startswith(('v_readlane', 'v_readfirstlane', 'v_writelane', 'v_permlane')):
                n = max(n, 4)
        if P.kind == 'salu' and 'm0' in P.w and C.lds_dma:
            n = max(n, 1)
        if P.sdata and (P.sdata & C.w):
            n = max(n, 2)
        return n

    def __call__(self, text):
        for line in text.strip().split('\n'):
            line = line.strip()
            if not line or line.startswith(';'):
                continue
            self._emit1(line)

    def _emit1(self, text):
        I = self._parse(text)
        need = 0
        for P in reversed(self.hist):
            d = self.pos - P.pos - 1
            if d >= 20:
                break
            n = self._need(P, I)
            if n - d > need:
                need = n - d
        if need > 0:
            self.lines.append(f'    s_nop {need - 1}')
            self.pos += need
            self.nops += 1
        I.pos = self.pos
        if I.mn == 's_nop':
            self.pos += int(text.split()[1], 0) + 1
        else:
            self.pos += 1
        self.hist.append(I)
        if len(self.hist) > 40:
            self.hist.pop(0)
        self.lines.append('    ' + text)
        if I.kind == 'vmem' and I.mn not in ('buffer_wbl2', 'buffer_inv'):
            self.vm += 1
            assert self.vm - self.vm_done <= 63, 'too many vmem outstanding: ' + text
        if I.kind == 'ds':
            self.lg += 1
            assert self.lg - self.lg_done <= 15, 'too many lds outstanding: ' + text

    def vmark(self):
        return self.vm

    def lmark(self):
        return self.lg

    def wait(self, vm=None, lg=None):
        parts = []
        if vm is not None and vm > self.vm_done:
            parts.append(f'vmcnt({self.vm - vm})')
            self.vm_done = vm
        if lg is not None and lg > self.lg_done:
            parts.append(f'lgkmcnt({self.lg - lg})')
            self.lg_done = lg
        if parts:
            self('s_waitcnt ' + ' '.join(parts))

    def wait_all(self, vm=True, lg=True):
        self.wait(self.vm if vm else None, self.lg if lg else None)

    def text(self):
        return '\n'.join(self.lines) + '\n'
```

```python
import struct
import sys
from asmlib import Asm, v, a, s

KB = 1024
NAME = 'interleave_layers__linear_kernel_hedgehog__mixer_s_mlp__prompt'

_off = 0
def _alloc(n):
    global _off
    r = _off
    _off += (n + 4095) // 4096 * 4096
    return r
WQKV = _alloc(1536 * KB)
WO = _alloc(512 * KB)
W1 = _alloc(512 * KB)
W2 = _alloc(512 * KB)
W3 = _alloc(1792 * KB)
W4 = _alloc(1792 * KB)
CSQ = _alloc(16 * KB)
CS1 = _alloc(8 * KB)
CS3 = _alloc(16 * KB)
DUMMY = _alloc(4 * KB)
KV = _alloc(68 * KB)
Z = KV + 64 * KB
X0 = _alloc(2048 * KB)
ST0 = _alloc(128 * KB)
PHI = _alloc(4096 * KB)
XA = _alloc(2048 * KB)
STA = _alloc(128 * KB)
H = _alloc(2048 * KB)
X1 = _alloc(2048 * KB)
ST1 = _alloc(128 * KB)
G = _alloc(7168 * KB)
WS_USED = _off
LAYOUT = {k: val for k, val in globals().items() if k.isupper() and isinstance(val, int)}

OOB = 0x7FFFFFF0


def f32(x):
    return '0x%08x' % struct.unpack('<I', struct.pack('<f', x))[0]


LOG2E = 1.4426950408889634
GC1 = -2.0 * 0.7978845608028654 * LOG2E
GC2 = GC1 * 0.044715

SRD = 4
SW = 8
SRD2 = 12
VL16 = 1
VLANE = 2


class Gen:
    def __init__(self):
        self.A = Asm()
        self.kernels = []
        self.launches = []

    def begin(self, name, nwg):
        A = self.A
        A.reset_kernel()
        A.raw('.p2align 8')
        A.raw(f'.globl {name}')
        A.raw(f'.type {name},@function')
        A.label(name)
        self.exit = A.newlabel('exit')
        A(f's_cmp_ge_u32 s2, {nwg}')
        A(f's_cbranch_scc1 {self.exit}')
        A(f's_load_dwordx2 {s(SRD, 2)}, s[0:1], 88')
        A(f'v_and_b32 {v(VLANE)}, 63, v0')
        A(f'v_lshrrev_b32 v3, 6, v0')
        A(f'v_lshlrev_b32 {v(VL16)}, 4, {v(VLANE)}')
        A(f'v_readfirstlane_b32 {s(SW)}, v3')
        A(f's_mov_b32 {s(SRD + 2)}, {WS_USED}')
        A(f's_mov_b32 {s(SRD + 3)}, 0x00020000')

    def end(self, name):
        A = self.A
        A.label(self.exit)
        A('s_endpgm')
        nv = A.maxv + 1
        accum = (nv + 3) // 4 * 4
        total = accum + (A.maxa + 1) if A.maxa >= 0 else nv
        self.kernels.append((name, total, accum, A.maxs + 1))

    def tile64(self, srb, scg):
        A = self.A
        A(f's_and_b32 {s(srb)}, s2, 7')
        A(f's_lshl_b32 {s(srb)}, {s(srb)}, 2')
        A(f's_lshr_b32 {s(scg)}, s2, 6')
        A(f's_add_u32 {s(srb)}, {s(srb)}, {s(scg)}')
        A(f's_bfe_u32 {s(scg)}, s2, 0x30003')

    def tile128(self, srb, scg):
        A = self.A
        A(f's_and_b32 {s(srb)}, s2, 7')
        A(f's_lshl_b32 {s(srb)}, {s(srb)}, 1')
        A(f's_lshr_b32 {s(scg)}, s2, 7')
        A(f's_add_u32 {s(srb)}, {s(srb)}, {s(scg)}')
        A(f's_bfe_u32 {s(scg)}, s2, 0x40003')

    def ld(self, dst, soff, ioff=0, voff=VL16, srd=SRD):
        o = f' offset:{ioff}' if ioff else ''
        self.A(f'buffer_load_dwordx4 {dst}, {v(voff)}, {s(srd, 4)}, {s(soff)} offen{o}')
        return self.A.vmark()

    def dma(self, soff, ioff=0, voff=VL16, srd=SRD):
        o = f' offset:{ioff}' if ioff else ''
        self.A(f'buffer_load_dwordx4 {v(voff)}, {s(srd, 4)}, {s(soff)} offen{o} lds')
        return self.A.vmark()

    def st(self, src, soff, ioff=0, voff=VL16, srd=SRD, w=4):
        o = f' offset:{ioff}' if ioff else ''
        wn = {1: 'dword', 2: 'dwordx2', 4: 'dwordx4'}[w]
        self.A(f'buffer_store_{wn} {src}, {v(voff)}, {s(srd, 4)}, {s(soff)} offen{o}')

    def dma_kstep(self, NT, sW, sM, stmp):
        A = self.A
        A(f's_mov_b32 m0, {s(sM)}')
        for t in range(min(NT, 4)):
            self.dma(sW, t * KB)
        if NT > 4:
            A(f's_add_u32 m0, {s(sM)}, 4096')
            A(f's_add_u32 {s(stmp)}, {s(sW)}, 4096')
            for t in range(4, NT):
                self.dma(stmp, (t - 4) * KB)

    def stats_consume(self, st, tmp):
        A = self.A
        S, Q = st, st + 1
        A(f'v_pk_add_f32 {v(st, 2)}, {v(st, 2)}, {v(st + 2, 2)}')
        A(f'v_permlane32_swap_b32 {v(S)}, {v(Q)}')
        A(f'v_add_f32 {v(S)}, {v(S)}, {v(Q)}')
        A(f'v_mov_b32 {v(Q)}, {v(S)}')
        A(f'v_permlane16_swap_b32 {v(S)}, {v(Q)}')
        A(f'v_add_f32 {v(S)}, {v(S)}, {v(Q)}')
        A(f'v_mov_b32 {v(Q)}, {v(S)}')
        A(f'v_permlane32_swap_b32 {v(S)}, {v(Q)}')
        A(f'v_mul_f32 {v(S)}, {f32(1 / 512)}, {v(S)}')
        A(f'v_mul_f32 {v(Q)}, {f32(1 / 512)}, {v(Q)}')
        A(f'v_fma_f32 {v(Q)}, -{v(S)}, {v(S)}, {v(Q)}')
        A(f'v_max_f32 {v(Q)}, 0, {v(Q)}')

    def rstd(self, dst, var):
        A = self.A
        A(f'v_add_f32 {v(dst)}, {f32(1e-5)}, {v(var)}')
        A(f'v_rsq_f32 {v(dst)}, {v(dst)}')

    def stats_produce(self, acc, n, tmp, soff, voff):
        A = self.A
        S, Q = tmp, tmp + 2
        A(f'v_pk_add_f32 {v(S, 2)}, {v(acc, 2)}, {v(acc + 2, 2)}')
        A(f'v_pk_mul_f32 {v(Q, 2)}, {v(acc, 2)}, {v(acc, 2)}')
        for i in range(2, n, 2):
            if i >= 4:
                A(f'v_pk_add_f32 {v(S, 2)}, {v(S, 2)}, {v(acc + i, 2)}')
            A(f'v_pk_fma_f32 {v(Q, 2)}, {v(acc + i, 2)}, {v(acc + i, 2)}, {v(Q, 2)}')
        A(f'v_add_f32 {v(S)}, {v(S)}, {v(S + 1)}')
        A(f'v_add_f32 {v(Q)}, {v(Q)}, {v(Q + 1)}')
        A(f'v_permlane32_swap_b32 {v(S)}, {v(Q)}')
        A(f'v_add_f32 {v(S)}, {v(S)}, {v(Q)}')
        A(f'v_mov_b32 {v(Q)}, {v(S)}')
        A(f'v_permlane16_swap_b32 {v(S)}, {v(Q)}')
        A(f'v_add_f32 {v(S)}, {v(S)}, {v(Q)}')
        self.st(v(S), soff, voff=voff, w=1)

    def stats_voff(self, dst):
        A = self.A
        A(f'v_and_b32 {v(dst)}, 0xf0, {v(VL16)}')
        A(f'v_lshrrev_b32 v3, 5, {v(VLANE)}')
        A(f'v_lshl_or_b32 {v(dst)}, v3, 2, {v(dst)}')

    def unpack(self, dst, src, n):
        A = self.A
        for i in range(n):
            A(f'v_lshlrev_b32 {v(dst + 2 * i)}, 16, {v(src + i)}')
            A(f'v_and_b32 {v(dst + 2 * i + 1)}, 0xffff0000, {v(src + i)}')

    def pack(self, dst, src, n):
        for i in range(n):
            self.A(f'v_cvt_pk_bf16_f32 {v(dst + i)}, {v(src + 2 * i)}, {v(src + 2 * i + 1)}')

    def gelu_consts(self, K, rs):
        A = self.A
        A(f'v_mul_f32 {v(K + 1)}, {v(rs)}, {v(rs)}')
        A(f'v_rcp_f32 {v(K + 2)}, {v(rs)}')
        A(f'v_mul_f32 {v(K)}, {f32(GC1)}, {v(rs)}')
        A(f'v_mul_f32 {v(K + 1)}, {v(K + 1)}, {v(rs)}')
        A(f'v_mul_f32 {v(K + 1)}, {f32(GC2)}, {v(K + 1)}')

    def gelu(self, acc, n, K, tmp, out):
        A = self.A
        P = range(0, n, 2)
        for i in P:
            A(f'v_pk_mul_f32 {v(tmp + i, 2)}, {v(acc + i, 2)}, {v(acc + i, 2)}')
        for i in P:
            A(f'v_pk_fma_f32 {v(tmp + i, 2)}, {v(tmp + i, 2)}, {v(K, 2)}, {v(K, 2)} op_sel:[0,1,0] op_sel_hi:[1,1,0]')
        for i in P:
            A(f'v_pk_mul_f32 {v(tmp + i, 2)}, {v(tmp + i, 2)}, {v(acc + i, 2)}')
        for i in range(n):
            A(f'v_exp_f32 {v(tmp + i)}, {v(tmp + i)}')
        for i in P:
            A(f'v_pk_fma_f32 {v(tmp + i, 2)}, {v(tmp + i, 2)}, {v(K + 2, 2)}, {v(K + 2, 2)} op_sel_hi:[1,0,0]')
        for i in range(n):
            A(f'v_rcp_f32 {v(tmp + i)}, {v(tmp + i)}')
        for i in P:
            A(f'v_pk_mul_f32 {v(tmp + i, 2)}, {v(tmp + i, 2)}, {v(acc + i, 2)}')
        self.pack(out, tmp, n // 2)

    def acc_init_ln(self, acc, NT, MT, means, ldsbase_v, tmp):
        A = self.A
        for t in range(NT):
            A(f'ds_read_b128 {v(tmp + 8 * t, 4)}, {v(ldsbase_v)} offset:{t * 64}')
            A(f'ds_read_b128 {v(tmp + 8 * t + 4, 4)}, {v(ldsbase_v)} offset:{NT * 64 + t * 64}')
        A.wait_all(vm=False)
        for t in range(NT):
            for i in (0, 2):
                A(f'v_pk_add_f32 {v(tmp + 8 * t + i, 2)}, {v(tmp + 8 * t + i, 2)}, {v(tmp + 8 * t + 4 + i, 2)}')
        for mt in range(MT):
            for t in range(NT):
                for i in (0, 2):
                    A(f'v_pk_mul_f32 {v(acc + (mt * NT + t) * 4 + i, 2)}, {v(tmp + 8 * t + i, 2)}, {v(means[mt], 2)} '
                      f'op_sel_hi:[1,0] neg_lo:[0,1] neg_hi:[0,1]')

    def gemm_chunk(self, js, MT, NT, acc, xreg, ldsoff, buf, NB, vbase):
        A = self.A

        def read(j, t, slot):
            off = ldsoff(j) + t * KB
            A(f'ds_read_b128 {v(buf + (slot * NT + t) * 4, 4)}, {v(vbase[off >> 16])} offset:{off & 0xffff}')
            return A.lmark()
        marks = {}
        pre = min(NB, len(js))
        while pre * NT > 15:
            pre -= 1
        for i in range(pre):
            for t in range(NT):
                marks[(i, t)] = read(js[i], t, i % NB)
        nxt = [(i, t) for i in range(pre, len(js)) for t in range(NT)]
        for i, j in enumerate(js):
            for t in range(NT):
                A.wait(lg=marks[(i, t)])
                for mt in range(MT):
                    r = acc + (mt * NT + t) * 4
                    A(f'v_mfma_f32_16x16x32_bf16 {v(r, 4)}, {v(buf + ((i % NB) * NT + t) * 4, 4)}, {xreg(mt, j)}, {v(r, 4)}')
                if nxt:
                    i2, t2 = nxt[0]
                    if (i2 - NB, t2) <= (i, t):
                        marks[(i2, t2)] = read(js[i2], t2, i2 % NB)
                        nxt.pop(0)
        assert not nxt

    def k0(self):
        A = self.A
        name = 'prep_kernel'
        self.begin(name, 272)
        LC = A.newlabel('k0c')
        LB = A.newlabel('k0b')
        LJ = A.newlabel('k0j')
        LS = A.newlabel('k0s')
        sArg, sRS, sSrc, sD, sJS, sCS, sQ, sKB, sT, sU, sIsB = 16, 17, 18, 19, 20, 21, 22, 23, 24, 25, 26
        A(f's_mov_b32 {s(SRD2 + 3)}, 0x00020000')
        A('s_cmp_ge_u32 s2, 208')
        A(f's_cbranch_scc1 {LC}')
        labs = [A.newlabel('k0t') for _ in range(6)]
        A(f's_mov_b32 {s(sIsB)}, 0')
        A(f's_and_b32 {s(sKB)}, s2, 1')
        A('s_cmp_ge_u32 s2, 152')
        A(f's_cbranch_scc1 {labs[4]}')
        A('s_cmp_ge_u32 s2, 96')
        A(f's_cbranch_scc1 {labs[3]}')
        A('s_cmp_ge_u32 s2, 48')
        A(f's_cbranch_scc1 {labs[2]}')
        A(f's_load_dwordx2 {s(SRD2, 2)}, s[0:1], 8')
        A(f's_load_dwordx2 s[28:29], s[0:1], 16')
        A(f's_mov_b32 {s(SRD2 + 2)}, {512 * 1536 * 2}')
        A(f's_mov_b32 {s(sRS)}, 3072')
        A(f's_mov_b32 {s(sJS)}, 6144')
        A(f's_lshr_b32 {s(sQ)}, s2, 1')
        A(f's_and_b32 {s(sT)}, {s(sQ)}, 7')
        A(f's_lshl_b32 {s(sT)}, {s(sT)}, 2')
        A(f's_add_u32 {s(sT)}, {s(sT)}, {s(SW)}')
        A(f's_lshr_b32 {s(sU)}, {s(sT)}, 1')
        A(f's_mul_i32 {s(sD)}, {s(sU)}, {96 * KB}')
        A(f's_add_u32 {s(sD)}, {s(sD)}, {WQKV}')
        A(f's_lshl_b32 {s(sCS)}, {s(sU)}, 10')
        A(f's_add_u32 {s(sCS)}, {s(sCS)}, {CSQ}')
        A(f's_mul_i32 s27, {s(sKB)}, 384')
        A(f's_add_u32 {s(sCS)}, {s(sCS)}, s27')
        A(f's_and_b32 {s(sU)}, {s(sT)}, 1')
        A('s_cmp_ge_u32 s2, 32')
        A(f's_cbranch_scc1 {labs[1]}')
        A(f's_mov_b32 {s(sIsB)}, 1')
        A(f's_lshr_b32 s27, {s(sQ)}, 3')
        A(f's_lshl_b32 s27, s27, 1')
        A(f's_add_u32 {s(sU)}, {s(sU)}, s27')
        A(f's_lshl_b32 s27, {s(sU)}, 6')
        A(f's_add_u32 {s(sD)}, {s(sD)}, s27')
        A(f's_lshl_b32 s27, {s(sU)}, 4')
        A(f's_add_u32 {s(sCS)}, {s(sCS)}, s27')
        A(f's_branch {LJ}')
        A.label(labs[1])
        A(f's_add_u32 {s(sU)}, {s(sU)}, 4')
        A(f's_lshl_b32 s27, {s(sU)}, 10')
        A(f's_add_u32 {s(sD)}, {s(sD)}, s27')
        A(f's_lshl_b32 s27, {s(sU)}, 6')
        A(f's_add_u32 {s(sCS)}, {s(sCS)}, s27')
        A(f's_branch {LJ}')
        A.label(labs[2])
        A(f's_sub_u32 {s(sT)}, s2, 48')
        A(f's_lshr_b32 {s(sU)}, {s(sT)}, 4')
        A(f's_bfe_u32 {s(sQ)}, {s(sT)}, 0x30001')
        A(f's_lshl_b32 {s(sArg)}, {s(sU)}, 3')
        A(f's_add_u32 {s(sArg)}, {s(sArg)}, 32')
        A(f's_cmp_eq_u32 {s(sU)}, 0')
        A(f's_cselect_b32 {s(sArg)}, 24, {s(sArg)}')
        A(f's_load_dwordx2 {s(SRD2, 2)}, s[0:1], {s(sArg)}')
        A(f's_mov_b32 {s(SRD2 + 2)}, {512 * 512 * 2}')
        A(f's_mov_b32 {s(sRS)}, 1024')
        A(f's_mov_b32 {s(sJS)}, 4096')
        assert W1 == WO + 512 * KB and W2 == W1 + 512 * KB
        A(f's_lshl_b32 {s(sD)}, {s(sU)}, 19')
        A(f's_lshl_b32 s27, {s(sQ)}, 16')
        A(f's_add_u32 {s(sD)}, {s(sD)}, s27')
        A(f's_lshl_b32 s27, {s(SW)}, 10')
        A(f's_add_u32 {s(sD)}, {s(sD)}, s27')
        A(f's_add_u32 {s(sD)}, {s(sD)}, {WO}')
        A(f's_lshl_b32 {s(sCS)}, {s(sQ)}, 10')
        A(f's_lshl_b32 s27, {s(sKB)}, 8')
        A(f's_add_u32 {s(sCS)}, {s(sCS)}, s27')
        A(f's_lshl_b32 s27, {s(SW)}, 6')
        A(f's_add_u32 {s(sCS)}, {s(sCS)}, s27')
        A(f's_add_u32 {s(sCS)}, {s(sCS)}, {CS1}')
        A(f's_cmp_eq_u32 {s(sU)}, 1')
        A(f's_cselect_b32 {s(sCS)}, {s(sCS)}, {DUMMY}')
        A(f's_branch {LJ}')
        A.label(labs[3])
        A(f's_load_dwordx2 {s(SRD2, 2)}, s[0:1], 56')
        A(f's_mov_b32 {s(SRD2 + 2)}, {512 * 1792 * 2}')
        A(f's_mov_b32 {s(sRS)}, 3584')
        A(f's_mov_b32 {s(sJS)}, 7168')
        A(f's_sub_u32 {s(sQ)}, s2, 96')
        A(f's_lshr_b32 {s(sQ)}, {s(sQ)}, 1')
        A(f's_lshl_b32 {s(sT)}, {s(sQ)}, 2')
        A(f's_add_u32 {s(sT)}, {s(sT)}, {s(SW)}')
        for nt in range(96):
            assert (nt * 43) >> 8 == nt // 6
        A(f's_mul_i32 {s(sU)}, {s(sT)}, 43')
        A(f's_lshr_b32 {s(sU)}, {s(sU)}, 8')
        A(f's_mul_i32 s27, {s(sU)}, 6')
        A(f's_sub_u32 s27, {s(sT)}, s27')
        A(f's_sub_u32 s28, {s(sT)}, 96')
        A(f's_cmp_ge_u32 {s(sT)}, 96')
        A(f's_cselect_b32 {s(sU)}, s28, {s(sU)}')
        A(f's_cselect_b32 s27, 6, s27')
        A(f's_mul_i32 {s(sD)}, {s(sU)}, {112 * KB}')
        A(f's_lshl_b32 s28, s27, 10')
        A(f's_add_u32 {s(sD)}, {s(sD)}, s28')
        A(f's_add_u32 {s(sD)}, {s(sD)}, {W3}')
        A(f's_lshl_b32 {s(sCS)}, {s(sU)}, 10')
        A(f's_lshl_b32 s28, s27, 6')
        A(f's_add_u32 {s(sCS)}, {s(sCS)}, s28')
        A(f's_mul_i32 s28, {s(sKB)}, 448')
        A(f's_add_u32 {s(sCS)}, {s(sCS)}, s28')
        A(f's_add_u32 {s(sCS)}, {s(sCS)}, {CS3}')
        A(f's_branch {LJ}')
        A.label(labs[4])
        A(f's_load_dwordx2 {s(SRD2, 2)}, s[0:1], 64')
        A(f's_mov_b32 {s(SRD2 + 2)}, {512 * 1792 * 2}')
        A(f's_mov_b32 {s(sRS)}, 1024')
        A(f's_mov_b32 {s(sJS)}, 4096')
        A(f's_sub_u32 {s(sT)}, s2, 152')
        A(f's_and_b32 {s(sQ)}, {s(sT)}, 7')
        A(f's_lshr_b32 {s(sKB)}, {s(sT)}, 3')
        A(f's_mul_i32 {s(sD)}, {s(sQ)}, {224 * KB}')
        A(f's_lshl_b32 s27, {s(SW)}, 10')
        A(f's_add_u32 {s(sD)}, {s(sD)}, s27')
        A(f's_add_u32 {s(sD)}, {s(sD)}, {W4}')
        A(f's_mov_b32 {s(sCS)}, {DUMMY}')
        A.label(LJ)
        A.flush_hazards()
        A(f's_mul_i32 s27, {s(sKB)}, {s(sJS)}')
        A(f's_lshl_b32 s27, s27, 3')
        A(f's_add_u32 {s(sD)}, {s(sD)}, s27')
        A(f's_lshl_b32 s27, {s(sKB)}, 2')
        A(f's_add_u32 s27, s27, {s(SW)}')
        A(f's_lshl_b32 s27, s27, 6')
        A(f's_mul_i32 {s(sSrc)}, s27, {s(sRS)}')
        A(f's_lshl_b32 s27, {s(sQ)}, 7')
        A(f's_add_u32 {s(sSrc)}, {s(sSrc)}, s27')
        A(f'v_lshrrev_b32 v4, 3, {v(VLANE)}')
        A(f'v_mul_u32_u24 v4, {s(sRS)}, v4')
        A(f'v_lshrrev_b32 v5, 1, {v(VLANE)}')
        A(f'v_lshrrev_b32 v6, 4, {v(VLANE)}')
        A(f'v_xor_b32 v5, v5, v6')
        A(f'v_and_b32 v5, 3, v5')
        A(f'v_lshl_add_u32 v4, v5, 5, v4')
        A(f'v_and_b32 v5, 1, {v(VLANE)}')
        A(f'v_lshl_add_u32 v4, v5, 4, v4')
        A(f's_lshl_b32 s27, {s(SW)}, 13')
        A(f's_lshl_b32 s30, {s(sRS)}, 3')
        A('s_waitcnt lgkmcnt(0)')
        for i in range(8):
            A(f's_add_u32 m0, s27, {i * KB}')
            self.dma(sSrc, 0, voff=4, srd=SRD2)
            if i < 7:
                A(f's_add_u32 {s(sSrc)}, {s(sSrc)}, s30')
        F = 16
        ONES = 8
        for i in range(4):
            A(f'v_mov_b32 {v(ONES + i)}, 0x3f803f80')
        A(f's_cmp_eq_u32 {s(sIsB)}, 1')
        A(f's_cbranch_scc1 {LB}')
        A(f'v_lshrrev_b32 v5, 3, {v(VLANE)}')
        A(f'v_xor_b32 v5, {s(SW)}, v5')
        A(f'v_and_b32 v5, 3, v5')
        A(f'v_lshlrev_b32 v5, 5, v5')
        A(f'v_lshrrev_b32 v6, 2, {v(VLANE)}')
        A(f'v_lshl_add_u32 v5, v6, 7, v5')
        A(f'v_and_b32 v6, 3, {v(VLANE)}')
        A(f'v_lshl_add_u32 v5, v6, 3, v5')
        A(f'v_mov_b32 v12, {v(VL16)}')
        A(f'v_lshrrev_b32 v13, 4, {v(VLANE)}')
        A(f'v_lshlrev_b32 v13, 4, v13')
        A('s_waitcnt vmcnt(0)')
        A('s_barrier')
        for jj in range(8):
            for u in range(2):
                A(f'ds_read_b64_tr_b16 {v(F + 4 * jj + 2 * u, 2)}, v5 offset:{jj * 4096 + u * 2048}')
            if jj == 3:
                A.wait_all(vm=False)
        A.wait_all(vm=False)
        A(f's_branch {LS}')
        A.label(LB)
        A.flush_hazards()
        A(f's_mov_b32 s30, {32 * 16 * 16 * 2}')
        A(f's_mov_b32 s31, 0x00020000')
        A(f's_lshl_b32 {s(sT)}, {s(sT)}, 9')
        A(f's_lshl_b32 s27, {s(SW)}, 10')
        A(f's_add_u32 s27, s27, 32768')
        A(f's_mov_b32 m0, s27')
        self.dma(sT, 0, srd=28)
        A(f'v_lshrrev_b32 v5, 1, {v(VLANE)}')
        A(f'v_xor_b32 v5, {s(SW)}, v5')
        A(f'v_and_b32 v5, 3, v5')
        A(f'v_lshlrev_b32 v5, 5, v5')
        A(f'v_and_b32 v6, 15, {v(VLANE)}')
        A(f'v_lshl_add_u32 v5, v6, 7, v5')
        A(f'v_lshrrev_b32 v7, 4, {v(VLANE)}')
        A(f'v_lshl_add_u32 v5, v7, 3, v5')
        A(f'v_lshrrev_b32 v6, 2, v6')
        A(f'v_lshlrev_b32 v12, 10, v6')
        A(f'v_lshl_add_u32 v12, v7, 8, v12')
        A(f'v_and_b32 v6, 3, {v(VLANE)}')
        A(f'v_lshl_add_u32 v12, v6, 4, v12')
        A(f'v_lshlrev_b32 v13, 6, v7')
        A(f'v_lshlrev_b32 v6, 3, {v(VLANE)}')
        A(f'v_add_u32 v6, s27, v6')
        A('s_waitcnt vmcnt(0)')
        A('s_barrier')
        A(f'ds_read_b64_tr_b16 v[14:15], v6')
        R = 48
        for half in range(2):
            for kt in range(8 * half, 8 * half + 8):
                A(f'ds_read_b64 {v(R + 2 * kt, 2)}, v5 offset:{kt * 2048}')
            A.wait_all(vm=False)
        C = 80
        for kt in range(16):
            A(f'v_mfma_f32_16x16x16_bf16 {v(C + 4 * kt, 4)}, {v(R + 2 * kt, 2)}, v[14:15], 0')
        self.pack(F, C, 32)
        A.label(LS)
        A.flush_hazards()
        A('s_nop 1')
        for jj in range(8):
            self.st(v(F + 4 * jj, 4), sD, voff=12)
            src = '0' if jj == 0 else 'v[4:7]'
            A(f'v_mfma_f32_16x16x32_bf16 v[4:7], {v(F + 4 * jj, 4)}, {v(ONES, 4)}, {src}')
            if jj < 7:
                A(f's_add_u32 {s(sD)}, {s(sD)}, {s(sJS)}')
        A('s_mov_b32 exec_lo, 0x00010001')
        A('s_mov_b32 exec_hi, 0x00010001')
        self.st('v[4:7]', sCS, voff=13)
        A('s_endpgm')
        A.label(LC)
        A.flush_hazards()
        A.vm = A.vm_done = A.lg = A.lg_done = 0
        A(f's_load_dwordx2 {s(SRD2, 2)}, s[0:1], 0')
        A(f's_mov_b32 {s(SRD2 + 2)}, {2048 * 512 * 2}')
        A(f's_sub_u32 {s(sU)}, s2, 208')
        A(f's_lshl_b32 {s(sSrc)}, {s(sU)}, 2')
        A(f's_add_u32 {s(sSrc)}, {s(sSrc)}, {s(SW)}')
        A(f's_lshl_b32 {s(sSrc)}, {s(sSrc)}, 13')
        A(f's_mul_i32 s27, {s(SW)}, {8 * 1040}')
        A('s_waitcnt lgkmcnt(0)')
        for i in range(8):
            A(f's_add_u32 m0, s27, {i * 1040}')
            self.dma(sSrc, 0, srd=SRD2)
            if i < 7:
                A(f's_add_u32 {s(sSrc)}, {s(sSrc)}, 1024')
        for i in range(4):
            A(f'v_mov_b32 {v(8 + i)}, 0')
        A(f'v_lshlrev_b32 v4, 4, v0')
        A(f'v_mov_b32 v5, {OOB}')
        A(f'v_cmp_gt_u32 vcc, 68, v0')
        A(f'v_cndmask_b32 v4, v5, v4, vcc')
        A(f's_mul_i32 s28, {s(sU)}, 1088')
        A(f's_add_u32 s28, s28, {KV}')
        self.st('v[8:11]', 28, voff=4)
        A(f's_lshr_b32 {s(sT)}, {s(SW)}, 1')
        A(f's_and_b32 {s(sKB)}, {s(SW)}, 1')
        A(f's_mul_i32 s27, {s(sT)}, {16 * 1040}')
        A(f's_lshl_b32 s28, {s(sKB)}, 9')
        A(f's_add_u32 s27, s27, s28')
        A(f'v_and_b32 v5, 15, {v(VLANE)}')
        A(f'v_mul_u32_u24 v5, 1040, v5')
        A(f'v_lshrrev_b32 v6, 4, {v(VLANE)}')
        A(f'v_lshl_add_u32 v5, v6, 3, v5')
        A(f'v_add_u32 v5, s27, v5')
        A(f's_lshl_b32 {s(sU)}, {s(sU)}, 1')
        A(f's_add_u32 {s(sU)}, {s(sU)}, {s(sT)}')
        A(f's_lshl_b32 {s(sD)}, {s(sU)}, 14')
        A(f's_lshl_b32 s28, {s(sKB)}, 13')
        A(f's_add_u32 {s(sD)}, {s(sD)}, s28')
        A(f's_add_u32 {s(sD)}, {s(sD)}, {X0}')
        A(f's_add_u32 s29, {s(sD)}, 4096')
        A(f's_lshl_b32 {s(sCS)}, {s(sU)}, 10')
        A(f's_lshl_b32 s28, {s(sKB)}, 3')
        A(f's_add_u32 {s(sCS)}, {s(sCS)}, s28')
        A(f's_add_u32 {s(sCS)}, {s(sCS)}, {ST0}')
        A('s_waitcnt vmcnt(1)')
        A('s_barrier')
        for q in range(8):
            A(f'ds_read2_b64 {v(F + 4 * q, 4)}, v5 offset0:{8 * q} offset1:{8 * q + 4}')
        A.wait_all(vm=False)
        for q in range(8):
            self.st(v(F + 4 * q, 4), sD if q < 4 else 29, (q & 3) * KB)
        self.unpack(48, F, 32)
        A(f'v_pk_add_f32 v[8:9], v[48:49], v[50:51]')
        A(f'v_pk_mul_f32 v[10:11], v[48:49], v[48:49]')
        for i in range(2, 64, 2):
            if i >= 4:
                A(f'v_pk_add_f32 v[8:9], v[8:9], {v(48 + i, 2)}')
            A(f'v_pk_fma_f32 v[10:11], {v(48 + i, 2)}, {v(48 + i, 2)}, v[10:11]')
        A('v_add_f32 v8, v8, v9')
        A('v_add_f32 v9, v10, v11')
        self.st('v[8:9]', sCS, w=2)
        self.end(name)
        return (name, 272, 36 * KB)

    def big_gemm_prologue(self, NT, XIN, STIN, WP, CS, acc, buf):
        A = self.A
        sRB, sCG, sX, sX2, sWs, sM, sT = 16, 17, 18, 19, 20, 21, 22
        self.tile128(sRB, sCG)
        A(f's_lshl_b32 {s(sRB)}, {s(sRB)}, 3')
        A(f's_lshl_b32 {s(sT)}, {s(SW)}, 1')
        A(f's_add_u32 {s(sRB)}, {s(sRB)}, {s(sT)}')
        A(f's_lshl_b32 {s(sX)}, {s(sRB)}, 14')
        A(f's_add_u32 {s(sX)}, {s(sX)}, {XIN}')
        A(f's_add_u32 {s(sX2)}, {s(sX)}, {16 * KB}')
        A(f's_mul_i32 {s(sM)}, {s(SW)}, {NT * KB}')
        A(f's_mul_i32 {s(sWs)}, {s(sCG)}, {NT * 16 * KB}')
        A(f's_add_u32 {s(sWs)}, {s(sWs)}, {s(sM)}')
        A(f's_add_u32 {s(sWs)}, {s(sWs)}, {WP}')
        A(f's_lshl_b32 s23, {s(sRB)}, 10')
        A(f's_add_u32 s23, s23, {STIN}')
        A(f's_lshl_b32 s24, {s(sCG)}, 10')
        A(f's_add_u32 s24, s24, {CS}')
        csl = NT * 16 * KB
        A(f's_lshl_b32 s25, {s(SW)}, 10')
        A(f's_add_u32 s25, s25, {csl}')
        A(f'v_add_u32 v4, 0x10000, {v(VL16)}')
        A(f'v_and_b32 v5, 0x30, {v(VLANE)}')
        A(f'v_add_u32 v5, s25, v5')
        A(f's_mov_b32 m0, s25')
        A('s_waitcnt lgkmcnt(0)')
        ST = 8
        self.ld(v(ST, 4), 23)
        self.ld(v(ST + 4, 4), 23, KB)
        m_small = self.dma(24)
        marks = []

        def issue(c):
            self.dma_kstep(NT, sWs, sM, sT)
            for jj in range(4):
                self.ld(a((4 * c + jj) * 4, 4), sX, jj * KB)
                self.ld(a(64 + (4 * c + jj) * 4, 4), sX2, jj * KB)
            marks.append(A.vmark())
            if c < 3:
                A(f's_add_u32 {s(sWs)}, {s(sWs)}, {4 * NT * KB}')
                A(f's_add_u32 {s(sM)}, {s(sM)}, {4 * NT * KB}')
                A(f's_add_u32 {s(sX)}, {s(sX)}, {4 * KB}')
                A(f's_add_u32 {s(sX2)}, {s(sX2)}, {4 * KB}')
        for c in range(4):
            issue(c)
        A.wait(vm=m_small)
        self.stats_consume(ST, 3)
        self.stats_consume(ST + 4, 3)
        self.acc_init_ln(acc, NT, 2, [ST, ST + 4], 5, buf)
        return marks, ST

    def big_gemm_main(self, NT, marks, acc, buf):
        A = self.A
        for c in range(4):
            A.wait(vm=marks[c])
            A('s_barrier')
            self.gemm_chunk(list(range(4 * c, 4 * c + 4)), 2, NT, acc,
                            lambda mt, j: a(mt * 64 + 4 * j, 4), lambda j: j * NT * KB, buf, 2, {0: VL16, 1: 4})

    def k1(self):
        A = self.A
        name = 'qkv_kernel'
        self.begin(name, 256)
        NT = 6
        acc, buf = 32, 80
        marks, ST = self.big_gemm_prologue(NT, X0, ST0, WQKV, CSQ, acc, buf)
        sT0, sCG = 16, 17
        for mt in range(2):
            self.rstd(17 + 2 * mt, ST + 4 * mt + 1)
            A(f'v_mul_f32 {v(16 + 2 * mt)}, {f32(LOG2E)}, {v(17 + 2 * mt)}')
        SCR = 100 * KB
        RSZ = 208
        A(f'v_lshrrev_b32 v6, 4, {v(VLANE)}')
        A(f'v_and_b32 v7, 15, {v(VLANE)}')
        A(f'v_lshlrev_b32 v20, 4, v7')
        A(f'v_lshl_add_u32 v20, v6, 10, v20')
        A(f'v_mov_b32 v3, {OOB}')
        A(f'v_cmp_gt_u32 vcc, 32, {v(VLANE)}')
        A(f'v_cndmask_b32 v20, v3, v20, vcc')
        A(f's_lshl_b32 s26, {s(sT0)}, 15')
        A(f's_lshl_b32 s27, {s(sCG)}, 11')
        A(f's_add_u32 s26, s26, s27')
        A(f's_add_u32 s26, s26, {PHI}')
        A(f's_add_u32 s27, s26, {32 * KB}')
        A(f's_mul_i32 s28, {s(SW)}, {32 * RSZ}')
        A(f's_add_u32 s28, s28, {SCR}')
        A(f'v_mul_u32_u24 v21, {RSZ}, v7')
        A(f'v_add_u32 v21, s28, v21')
        A(f'v_lshl_add_u32 v22, v6, 3, v21')
        A(f'v_and_b32 v3, 1, v6')
        A(f'v_lshl_add_u32 v21, v3, 6, v21')
        A(f'v_bfe_u32 v3, {v(VLANE)}, 2, 2')
        A(f'v_lshl_add_u32 v3, v6, 3, v3')
        A(f'v_mul_u32_u24 v23, {RSZ}, v3')
        A(f'v_and_b32 v3, 3, {v(VLANE)}')
        A(f's_lshr_b32 s29, {s(SW)}, 1')
        A(f's_and_b32 s30, {s(SW)}, 1')
        A(f's_lshl_b32 s31, s29, 6')
        A(f's_lshl_b32 s32, s30, 3')
        A(f's_add_u32 s31, s31, s32')
        A(f's_add_u32 s31, s31, {SCR}')
        A(f'v_lshl_add_u32 v24, v3, 4, v23')
        A(f'v_add_u32 v24, s31, v24')
        A(f's_lshl_b32 s31, s29, 5')
        A(f's_add_u32 s31, s31, {SCR + 128}')
        A(f'v_lshl_add_u32 v25, v3, 3, v23')
        A(f'v_add_u32 v25, s31, v25')
        A(f's_lshl_b32 s31, {s(sCG)}, 2')
        A(f's_add_u32 s31, s31, {s(SW)}')
        A(f's_lshl_b32 s31, s31, 10')
        A(f's_add_u32 s31, s31, {KV}')
        A(f's_lshl_b32 s32, {s(sCG)}, 8')
        A(f's_lshl_b32 s33, s29, 7')
        A(f's_add_u32 s32, s32, s33')
        A(f's_lshl_b32 s33, s30, 4')
        A(f's_add_u32 s32, s32, s33')
        A(f's_add_u32 s32, s32, {Z}')
        A(f'v_lshlrev_b32 v26, 2, {v(VLANE)}')
        A(f'v_lshlrev_b32 v27, 2, v7')
        A(f'v_lshl_add_u32 v27, v6, 5, v27')
        A(f'v_mov_b32 v3, {OOB}')
        A(f'v_cmp_gt_u32 vcc, 4, v7')
        A(f'v_cndmask_b32 v27, v3, v27, vcc')
        A(f'v_cmp_eq_u32 s[34:35], 1, v7')
        A(f'v_cmp_eq_u32 s[36:37], 2, v7')
        A(f'v_cmp_eq_u32 s[38:39], 3, v7')
        for i in range(4):
            A(f'v_mov_b32 {v(28 + i)}, 0x3f803f80')
        self.big_gemm_main(NT, marks, acc, buf)
        EP, EM, PK, M = 128, 144, 160, 176
        for mt in range(2):
            P = acc + mt * 24
            cc = 16 + 2 * mt
            for hh in range(2):
                r = P + 16 + 4 * hh
                for i in (0, 2):
                    A(f'v_pk_mul_f32 {v(r + i, 2)}, {v(r + i, 2)}, {v(cc, 2)} op_sel:[0,1] op_sel_hi:[1,1]')
                self.pack(M + 8 + 2 * hh, r, 2)
                A(f'ds_write_b64 v22, {v(M + 8 + 2 * hh, 2)} offset:{mt * 16 * RSZ + 128 + 32 * hh}')
            for op, d in (('max', M), ('min', M + 1)):
                A(f'v_{op}3_f32 {v(d)}, {v(P)}, {v(P + 1)}, {v(P + 2)}')
                for i in range(3, 15, 2):
                    A(f'v_{op}3_f32 {v(d)}, {v(d)}, {v(P + i)}, {v(P + i + 1)}')
                A(f'v_{op}_f32 {v(d)}, {v(d)}, {v(P + 15)}')
            A(f'v_pk_mul_f32 {v(M, 2)}, {v(M, 2)}, {v(cc, 2)} op_sel_hi:[1,0]')
            for i in range(0, 16, 2):
                A(f'v_pk_fma_f32 {v(EP + i, 2)}, {v(P + i, 2)}, {v(cc, 2)}, {v(M, 2)} op_sel_hi:[1,0,0] neg_lo:[0,0,1] neg_hi:[0,0,1]')
                A(f'v_pk_fma_f32 {v(EM + i, 2)}, {v(P + i, 2)}, {v(cc, 2)}, {v(M, 2)} op_sel:[0,0,1] op_sel_hi:[1,0,1] neg_lo:[0,1,0] neg_hi:[0,1,0]')
            for i in range(32):
                A(f'v_exp_f32 {v(EP + i)}, {v(EP + i)}')
            for E, d in ((EP, M + 2), (EM, M + 4)):
                A(f'v_pk_add_f32 {v(d, 2)}, {v(E, 2)}, {v(E + 2, 2)}')
                for i in range(4, 16, 2):
                    A(f'v_pk_add_f32 {v(d, 2)}, {v(d, 2)}, {v(E + i, 2)}')
            A(f'v_add_f32 {v(M + 2)}, {v(M + 2)}, {v(M + 3)}')
            A(f'v_add_f32 {v(M + 3)}, {v(M + 4)}, {v(M + 5)}')
            A(f'v_rcp_f32 {v(M + 2)}, {v(M + 2)}')
            A(f'v_rcp_f32 {v(M + 3)}, {v(M + 3)}')
            for i in range(0, 16, 2):
                A(f'v_pk_mul_f32 {v(EP + i, 2)}, {v(EP + i, 2)}, {v(M + 2, 2)} op_sel_hi:[1,0]')
                A(f'v_pk_mul_f32 {v(EM + i, 2)}, {v(EM + i, 2)}, {v(M + 2, 2)} op_sel:[0,1] op_sel_hi:[1,1]')
            pk = PK if mt == 0 else acc
            for t in range(4):
                self.pack(pk + 4 * t, EP + 4 * t, 2)
                self.pack(pk + 4 * t + 2, EM + 4 * t, 2)
            A('s_mov_b32 exec_lo, 0')
            for t in range(4):
                A(f'ds_write_b128 v21, {v(pk + 4 * t, 4)} offset:{mt * 16 * RSZ + 16 * t}')
            A('s_mov_b32 exec_lo, -1')
            for t in range(4):
                self.st(v(pk + 4 * t, 4), 26 + mt, 256 * t, voff=20)
        A.wait_all(vm=False)
        A('s_barrier')
        TA, TB = 80, 96
        for ks in range(4):
            for u2 in range(2):
                off = (32 * ks + 4 * u2) * RSZ
                A(f'ds_read_b64_tr_b16 {v(TA + 4 * ks + 2 * u2, 2)}, v24 offset:{off}')
                A(f'ds_read_b64_tr_b16 {v(TB + 4 * ks + 2 * u2, 2)}, v25 offset:{off}')
            if ks == 2:
                A.wait(lg=A.lmark() - 8)
        base = A.lmark() - 16
        KVA, ZA = 112, 116
        for ks in range(4):
            A.wait(lg=base + 4 * ks + 4)
            A(f'v_mfma_f32_16x16x32_bf16 {v(KVA, 4)}, {v(TA + 4 * ks, 4)}, {v(TB + 4 * ks, 4)}, {"0" if ks == 0 else v(KVA, 4)}')
            A(f'v_mfma_f32_16x16x32_bf16 {v(ZA, 4)}, {v(TA + 4 * ks, 4)}, v[28:31], {"0" if ks == 0 else v(ZA, 4)}')
        for r in range(4):
            o = f' offset:{256 * r}' if r else ''
            A(f'buffer_atomic_add_f32 {v(KVA + r)}, v26, {s(SRD, 4)}, s31 offen{o}')
        A(f'v_cndmask_b32 {v(ZA)}, {v(ZA)}, {v(ZA + 1)}, s[34:35]')
        A(f'v_cndmask_b32 {v(ZA)}, {v(ZA)}, {v(ZA + 2)}, s[36:37]')
        A(f'v_cndmask_b32 {v(ZA)}, {v(ZA)}, {v(ZA + 3)}, s[38:39]')
        A(f'buffer_atomic_add_f32 {v(ZA)}, v27, {s(SRD, 4)}, s32 offen')
        self.end(name)
        return (name, 256, SCR + 128 * RSZ)

    def k5(self):
        A = self.A
        name = 'up_kernel'
        self.begin(name, 256)
        NT = 7
        acc, buf = 32, 88
        marks, ST = self.big_gemm_prologue(NT, X1, ST1, W3, CS3, acc, buf)
        sT0, sCG = 16, 17
        for mt in range(2):
            self.rstd(3, ST + 4 * mt + 1)
            self.gelu_consts(16 + 4 * mt, 3)
        A(f's_mul_i32 s26, {s(sT0)}, {56 * KB}')
        A(f's_add_u32 s26, s26, {G}')
        A(f's_lshr_b32 s28, {s(sCG)}, 1')
        A(f's_lshl_b32 s28, s28, 10')
        A(f's_and_b32 s29, {s(sCG)}, 1')
        A(f's_lshl_b32 s29, s29, 3')
        A(f's_add_u32 s28, s28, s29')
        A(f's_add_u32 s28, s28, s26')
        A(f's_add_u32 s28, s28, {48 * KB}')
        A(f's_add_u32 s29, s28, {56 * KB}')
        A(f's_mul_i32 s27, {s(sCG)}, {3 * KB}')
        A(f's_add_u32 s26, s26, s27')
        A(f's_add_u32 s27, s26, {56 * KB}')
        self.big_gemm_main(NT, marks, acc, buf)
        for mt in range(2):
            out = 144 + 16 * mt
            self.gelu(acc + 28 * mt, 28, 16 + 4 * mt, buf, out)
            for q in range(3):
                self.st(v(out + 4 * q, 4), 26 + mt, q * KB)
            self.st(v(out + 12, 2), 28 + mt, w=2)
        self.end(name)
        return (name, 256, 116 * KB)

    def small_setup(self, WP, KS=16):
        A = self.A
        self.tile64(16, 17)
        A(f's_lshl_b32 s16, s16, 2')
        A(f's_add_u32 s16, s16, {s(SW)}')
        A(f's_lshl_b32 s21, {s(SW)}, 12')
        A(f's_mul_i32 s20, s17, {KS * 4 * KB}')
        A(f's_add_u32 s20, s20, s21')
        A(f's_add_u32 s20, s20, {WP}')
        A(f's_lshl_b32 s24, s16, 14')
        A(f's_lshl_b32 s25, s17, 11')
        A(f's_add_u32 s24, s24, s25')
        A(f's_lshl_b32 s25, s16, 10')
        A(f's_lshr_b32 s26, s17, 1')
        A(f's_lshl_b32 s26, s26, 8')
        A(f's_add_u32 s25, s25, s26')
        A(f's_and_b32 s26, s17, 1')
        A(f's_lshl_b32 s26, s26, 3')
        A(f's_add_u32 s25, s25, s26')

    def store_tile(self, acc, tmp, DST, STD, svoff):
        A = self.A
        self.pack(tmp, acc, 8)
        A(f's_add_u32 s26, s24, {DST}')
        self.st(v(tmp, 4), 26)
        self.st(v(tmp + 4, 4), 26, KB)
        if STD is not None:
            A(f's_add_u32 s27, s25, {STD}')
            self.stats_produce(acc, 16, tmp + 8, 27, svoff)

    def k2(self):
        A = self.A
        name = 'attn_kernel'
        self.begin(name, 256)
        self.small_setup(WO)
        acc, buf, O = 16, 32, 96
        KVT = 96
        KL, ZL = 64 * KB, 96 * KB
        A(f's_add_u32 s26, s24, {X0}')
        A(f's_lshl_b32 s27, {s(SW)}, 14')
        A(f's_add_u32 s27, s27, {KV}')
        A(f's_lshl_b32 s28, {s(SW)}, 10')
        A(f's_add_u32 s28, s28, {Z}')
        A(f's_lshl_b32 s18, s16, 15')
        A(f's_add_u32 s18, s18, {PHI}')
        A('s_waitcnt lgkmcnt(0)')
        for i in range(16):
            self.ld(v(KVT + 4 * i, 4), 27, (i & 3) * KB)
            if (i & 3) == 3 and i < 15:
                A(f's_add_u32 s27, s27, 4096')
        m_kv = self.ld(v(160, 4), 28)
        self.ld(v(8, 4), 26)
        m_res = self.ld(v(12, 4), 26, KB)
        m_phi = []
        for h in range(32):
            m_phi.append(self.ld(a(4 * h, 4), 18, (h & 3) * KB))
            if (h & 3) == 3 and h < 31:
                A(f's_add_u32 s18, s18, 4096')
        marks = []

        def issue(c):
            self.dma_kstep(4, 20, 21, 22)
            marks.append(A.vmark())
            if c < 3:
                A(f's_add_u32 s20, s20, {16 * KB}')
                A(f's_add_u32 s21, s21, {16 * KB}')
        for c in range(3):
            issue(c)
        A(f'v_bfe_u32 v3, {v(VLANE)}, 2, 2')
        A(f'v_lshlrev_b32 v4, 7, v3')
        A(f'v_lshrrev_b32 v3, 4, {v(VLANE)}')
        A(f'v_lshl_add_u32 v4, v3, 5, v4')
        A(f'v_and_b32 v5, 3, {v(VLANE)}')
        A(f'v_lshl_add_u32 v4, v5, 3, v4')
        A(f's_lshl_b32 s27, {s(SW)}, 13')
        A(f's_add_u32 s27, s27, {KL}')
        A(f'v_add_u32 v4, s27, v4')
        A(f'v_lshlrev_b32 v5, 3, {v(VLANE)}')
        A(f'v_add_u32 v5, {KL}, v5')
        A(f's_lshl_b32 s27, {s(SW)}, 9')
        A(f'v_add_u32 v6, s27, v5')
        A(f'v_lshlrev_b32 v7, 4, v3')
        A(f'v_add_u32 v7, {ZL}, v7')
        self.stats_voff(164)
        A.wait(vm=m_kv)
        for i in range(16):
            self.pack(buf + 2 * i, KVT + 4 * i, 2)
            A(f'ds_write_b64 v4, {v(buf + 2 * i, 2)} offset:{i * 512}')
            if i == 12:
                A.wait(lg=A.lmark() - 8)
        self.pack(160, 160, 2)
        A(f'ds_write_b64 v6, v[160:161] offset:{32 * KB}')
        issue(3)
        A.wait(vm=m_res)
        self.unpack(acc, 8, 8)
        A.wait_all(vm=False)
        A('s_barrier')
        RB = buf
        ND = buf + 32
        rmark = {}
        for j in range(18):
            if j < 16:
                b = RB + 16 * (j & 1)
                for hh in range(2):
                    h = 2 * j + hh
                    A(f'ds_read_b64_tr_b16 {v(b + 4 * hh, 2)}, v5 offset:{h * 1024}')
                    A(f'ds_read_b64_tr_b16 {v(b + 4 * hh + 2, 2)}, v5 offset:{h * 1024 + 512}')
                    A(f'ds_read_b128 {v(b + 8 + 4 * hh, 4)}, v7 offset:{h * 64}')
                rmark[j] = A.lmark()
            if 1 <= j <= 16:
                jj = j - 1
                b = RB + 16 * (jj & 1)
                d = ND + 16 * (jj & 1)
                A.wait(vm=m_phi[2 * jj + 1], lg=rmark[jj])
                for hh in range(2):
                    h = 2 * jj + hh
                    A(f'v_mfma_f32_16x16x32_bf16 {v(d + 8 * hh + 4, 4)}, {v(b + 8 + 4 * hh, 4)}, {a(4 * h, 4)}, 0')
                    A(f'v_mfma_f32_16x16x32_bf16 {v(d + 8 * hh, 4)}, {v(b + 4 * hh, 4)}, {a(4 * h, 4)}, 0')
            if j >= 2:
                jj = j - 2
                d = ND + 16 * (jj & 1)
                for hh in range(2):
                    A(f'v_add_f32 {v(8 + 2 * hh)}, {f32(1e-6)}, {v(d + 8 * hh + 4)}')
                for hh in range(2):
                    A(f'v_rcp_f32 {v(8 + 2 * hh)}, {v(8 + 2 * hh)}')
                for hh in range(2):
                    for i in (0, 2):
                        A(f'v_pk_mul_f32 {v(12 + i, 2)}, {v(d + 8 * hh + i, 2)}, {v(8 + 2 * hh, 2)} op_sel_hi:[1,0]')
                    self.pack(O + 4 * jj + 2 * hh, 12, 2)
        for c in range(4):
            A.wait(vm=marks[c])
            A('s_barrier')
            self.gemm_chunk(list(range(4 * c, 4 * c + 4)), 1, 4, acc,
                            lambda mt, j: v(O + 4 * j, 4), lambda j: j * 4 * KB, buf, 4, {0: VL16})
        self.store_tile(acc, buf, XA, STA, 164)
        self.end(name)
        return (name, 256, 98 * KB)

    def k3(self):
        A = self.A
        name = 'mix1_kernel'
        self.begin(name, 256)
        self.small_setup(W1)
        acc, buf = 16, 32
        A(f's_lshl_b32 s18, s16, 14')
        A(f's_add_u32 s18, s18, {XA}')
        A(f's_lshl_b32 s26, s16, 10')
        A(f's_add_u32 s26, s26, {STA}')
        A(f's_lshl_b32 s27, s17, 10')
        A(f's_add_u32 s27, s27, {CS1}')
        A(f's_lshl_b32 s28, {s(SW)}, 10')
        A(f's_add_u32 s28, s28, {64 * KB}')
        A(f'v_and_b32 v5, 0x30, {v(VLANE)}')
        A(f'v_add_u32 v5, s28, v5')
        A(f's_mov_b32 m0, s28')
        A('s_waitcnt lgkmcnt(0)')
        self.ld(v(8, 4), 26)
        m_small = self.dma(27)
        marks = self.small_issue(lambda c, jj: (18, jj * KB, VL16), [18])
        for i in range(4):
            A(f'v_mov_b32 {v(12 + i)}, 0')
        A(f'v_lshlrev_b32 v6, 4, v0')
        A(f'v_mov_b32 v7, {OOB}')
        A(f'v_cmp_gt_u32 vcc, 17, v0')
        A(f'v_cndmask_b32 v6, v7, v6, vcc')
        A(f's_mul_i32 s29, s2, 272')
        A(f's_add_u32 s29, s29, {KV}')
        self.st('v[12:15]', 29, voff=6)
        A.wait(vm=m_small)
        self.stats_consume(8, 3)
        self.acc_init_ln(acc, 4, 1, [8], 5, buf)
        self.rstd(10, 9)
        A('v_mul_f32 v11, v10, v10')
        A('v_mul_f32 v11, v11, v9')
        self.rstd(11, 11)
        A('v_mul_f32 v10, v10, v11')
        self.gelu_consts(96, 10)
        self.small_main(marks, acc, buf)
        self.gelu(acc, 16, 96, buf, buf + 16)
        A(f's_add_u32 s26, s24, {H}')
        self.st(v(buf + 16, 4), 26)
        self.st(v(buf + 20, 4), 26, KB)
        self.end(name)
        return (name, 256, 68 * KB)

    def small_issue(self, xsrc, adv):
        A = self.A
        marks = []
        for c in range(4):
            self.dma_kstep(4, 20, 21, 22)
            for jj in range(4):
                so, io, vo = xsrc(c, jj)
                self.ld(a((4 * c + jj) * 4, 4), so, io, voff=vo)
            marks.append(A.vmark())
            if c < 3:
                A(f's_add_u32 s20, s20, {16 * KB}')
                A(f's_add_u32 s21, s21, {16 * KB}')
                for r in adv:
                    A(f's_add_u32 {s(r)}, {s(r)}, {4 * KB}')
        return marks

    def small_main(self, marks, acc, buf):
        A = self.A
        for c in range(4):
            A.wait(vm=marks[c])
            A('s_barrier')
            self.gemm_chunk(list(range(4 * c, 4 * c + 4)), 1, 4, acc,
                            lambda mt, j: a(4 * j, 4), lambda j: j * 4 * KB, buf, 4, {0: VL16})

    def k4(self):
        A = self.A
        name = 'mix2_kernel'
        self.begin(name, 256)
        self.small_setup(W2)
        acc, buf = 16, 32
        A(f's_lshl_b32 s26, s16, 4')
        A(f'v_and_b32 v4, 15, {v(VLANE)}')
        A(f'v_add_u32 v4, s26, v4')
        A(f'v_and_b32 v5, 0x300, {v(VL16)}')
        A(f'v_mov_b32 v7, {OOB}')
        A(f's_movk_i32 s27, 2048')
        for gi, d in enumerate((-1, 1, -2, 2)):
            A(f'v_add_u32 v6, {d}, v4')
            A(f'v_cmp_gt_u32 vcc, s27, v6')
            A(f'v_lshrrev_b32 v3, 4, v6')
            A(f'v_lshl_add_u32 v3, v3, 14, v5')
            A(f'v_and_b32 v6, 15, v6')
            A(f'v_lshl_add_u32 v3, v6, 4, v3')
            A(f'v_cndmask_b32 {v(96 + gi)}, v7, v3, vcc')
        A(f's_mov_b32 s18, {H}')
        A(f's_lshl_b32 s26, s16, 10')
        A(f's_add_u32 s26, s26, {STA}')
        A(f's_add_u32 s27, s24, {XA}')
        A('s_waitcnt lgkmcnt(0)')
        self.ld(v(8, 4), 26)
        self.ld(v(buf, 4), 27)
        m_small = self.ld(v(buf + 4, 4), 27, KB)
        marks = self.small_issue(lambda c, jj: (18, jj * KB, 96 + c), [18])
        self.stats_voff(100)
        A.wait(vm=m_small)
        self.stats_consume(8, 3)
        self.rstd(9, 9)
        A('v_mul_f32 v8, v8, v9')
        self.unpack(acc, buf, 8)
        for i in range(0, 16, 2):
            A(f'v_pk_fma_f32 {v(acc + i, 2)}, {v(acc + i, 2)}, v[8:9], v[8:9] op_sel:[0,1,0] op_sel_hi:[1,1,0] neg_lo:[0,0,1] neg_hi:[0,0,1]')
        self.small_main(marks, acc, buf)
        self.store_tile(acc, buf, X1, ST1, 100)
        self.end(name)
        return (name, 256, 64 * KB)

    def k6(self, final):
        A = self.A
        name = 'down_out_kernel' if final else 'down_kernel'
        self.begin(name, 256)
        if final:
            A(f's_load_dwordx2 {s(SRD2, 2)}, s[0:1], 72')
            A(f's_mov_b32 {s(SRD2 + 2)}, {2048 * 512 * 2}')
            A(f's_mov_b32 {s(SRD2 + 3)}, 0x00020000')
        self.small_setup(W4, KS=56)
        acc, buf = 16, 32
        NS = 8
        A(f's_mul_i32 s18, s16, {56 * KB}')
        A(f's_add_u32 s18, s18, {G}')
        A(f's_add_u32 s26, s24, {XA}')
        A(f's_add_u32 s27, s24, {X1}')
        A(f'v_add_u32 v4, 0x10000, {v(VL16)}')
        A('s_waitcnt lgkmcnt(0)')
        self.ld(v(buf, 4), 26)
        self.ld(v(buf + 4, 4), 26, KB)
        self.ld(v(buf + 8, 4), 27)
        m_small = self.ld(v(buf + 12, 4), 27, KB)
        marks = []

        def issue(c):
            sl = c % NS
            A(f's_add_u32 s23, s21, {sl * 16 * KB}')
            self.dma_kstep(4, 20, 23, 22)
            for jj in range(4):
                self.ld(a((4 * sl + jj) * 4, 4), 18, jj * KB)
            marks.append(A.vmark())
            if c < 13:
                A(f's_add_u32 s20, s20, {16 * KB}')
                A(f's_add_u32 s18, s18, {4 * KB}')
        for c in range(7):
            issue(c)
        if final:
            A(f'v_and_b32 v5, 15, {v(VLANE)}')
            A(f'v_lshlrev_b32 v5, 10, v5')
            A(f'v_bfe_u32 v3, {v(VLANE)}, 4, 1')
            A(f'v_lshl_add_u32 v5, v3, 5, v5')
            A(f'v_lshrrev_b32 v3, 5, {v(VLANE)}')
            A(f'v_lshl_add_u32 v5, v3, 4, v5')
            A(f's_lshl_b32 s28, s16, 14')
            A(f's_lshl_b32 s29, s17, 7')
            A(f's_add_u32 s28, s28, s29')
        else:
            self.stats_voff(5)
        A.wait(vm=m_small)
        self.unpack(acc, buf, 8)
        self.unpack(buf + 16, buf + 8, 8)
        for i in range(0, 16, 2):
            A(f'v_pk_add_f32 {v(acc + i, 2)}, {v(acc + i, 2)}, {v(buf + 16 + i, 2)}')
        for c in range(14):
            A.wait(vm=marks[c])
            A('s_barrier')
            if c + 7 < 14:
                issue(c + 7)
            sl = c % NS
            self.gemm_chunk(list(range(4 * sl, 4 * sl + 4)), 1, 4, acc,
                            lambda mt, j: a(4 * j, 4), lambda j: j * 4 * KB, buf, 4, {0: VL16, 1: 4})
        if final:
            self.pack(buf, acc, 8)
            for q in range(2):
                b = buf + 4 * q
                A(f'v_permlane16_swap_b32 {v(b)}, {v(b + 2)}')
                A(f'v_permlane16_swap_b32 {v(b + 1)}, {v(b + 3)}')
            for q in range(2):
                self.st(v(buf + 4 * q, 4), 28, 64 * q, voff=5, srd=SRD2)
        else:
            self.store_tile(acc, buf, X0, ST0, 5)
        self.end(name)
        return (name, 256, NS * 16 * KB)

    def build(self, header):
        k0 = self.k0()
        k1 = self.k1()
        k2 = self.k2()
        k3 = self.k3()
        k4 = self.k4()
        k5 = self.k5()
        k6a = self.k6(False)
        k6b = self.k6(True)
        seq = [k0, k1, k2, k3, k4, k5, k6a, k1, k2, k3, k4, k5, k6b]
        out = [header]
        for n, g, lds in seq:
            out.append(f'; @launch kernel={n} grid=({g},1,1) block=(256,1,1) lds={lds}')
        out.append('.amdgcn_target "amdgcn-amd-amdhsa--gfx950"')
        out.append('.text')
        out.append(self.A.text())
        out.append('.section .rodata,"a"')
        for n, nv, accum, ns in self.kernels:
            out.append('.p2align 6')
            out.append(f'.amdhsa_kernel {n}')
            out.append(f'  .amdhsa_next_free_vgpr {nv}')
            out.append(f'  .amdhsa_next_free_sgpr {max(ns, 16)}')
            out.append(f'  .amdhsa_accum_offset {accum}')
            out.append('  .amdhsa_group_segment_fixed_size 0')
            out.append('  .amdhsa_kernarg_size 96')
            out.append('  .amdhsa_user_sgpr_count 2')
            out.append('  .amdhsa_user_sgpr_kernarg_segment_ptr 1')
            out.append('  .amdhsa_system_sgpr_workgroup_id_x 1')
            out.append('  .amdhsa_float_denorm_mode_32 3')
            out.append('.end_amdhsa_kernel')
        return '\n'.join(out) + '\n'


def header():
    ref = open(f'cdna_kernels/{NAME}.s.ref').read().split('\n')
    h = []
    for l in ref:
        if not l.startswith(';') or '@launch' in l or 'Override launch' in l or 'grid=ceil' in l:
            break
        h.append(l)
    return '\n'.join(h)


if __name__ == '__main__':
    g = Gen()
    txt = g.build(header())
    out = sys.argv[1] if len(sys.argv) > 1 else f'cdna_kernels/{NAME}.s'
    open(out, 'w').write(txt)
    import json
    json.dump(LAYOUT, open('layout.json', 'w'))
    for k in g.kernels:
        print(k)
    print('nops inserted', g.A.nops, 'ws used', WS_USED)
```

```python
import struct
import sys
from asmlib import Asm, v, a, s

KB = 1024
NAME = 'interleave_layers__linear_kernel_hedgehog__mixer_s_mlp__prompt'

_off = 0
def _alloc(n):
    global _off
    r = _off
    _off += (n + 4095) // 4096 * 4096
    return r
WQKV = _alloc(1536 * KB)
WO = _alloc(512 * KB)
W1 = _alloc(512 * KB)
W2 = _alloc(512 * KB)
W3 = _alloc(1792 * KB)
W4 = _alloc(1792 * KB)
CSQ = _alloc(16 * KB)
CS1 = _alloc(8 * KB)
CS3 = _alloc(16 * KB)
DUMMY = _alloc(4 * KB)
KV = _alloc(68 * KB)
Z = KV + 64 * KB
X0 = _alloc(2048 * KB)
ST0 = _alloc(128 * KB)
PHI = _alloc(4096 * KB)
XA = _alloc(2048 * KB)
STA = _alloc(128 * KB)
H = _alloc(2048 * KB)
X1 = _alloc(2048 * KB)
ST1 = _alloc(128 * KB)
G = _alloc(7168 * KB)
DBG = _alloc(16 * 512 * 128)
WS_USED = _off
LAYOUT = {k: val for k, val in globals().items() if k.isupper() and isinstance(val, int)}

OOB = 0x7FFFFFF0


def f32(x):
    return '0x%08x' % struct.unpack('<I', struct.pack('<f', x))[0]


LOG2E = 1.4426950408889634
GC1 = -2.0 * 0.7978845608028654 * LOG2E
GC2 = GC1 * 0.044715

SRD = 4
SW = 8
SRD2 = 12
VL16 = 1
VLANE = 2


class Gen:
    def __init__(self):
        self.A = Asm()
        self.kernels = []
        self.launches = []
        self.prof = False
        self.kidx = 0

    def stamp(self):
        if not self.prof:
            return
        A = self.A
        assert A.lg == A.lg_done, 'stamp with LDS ops outstanding'
        i = self.nstamp
        self.nstamp += 1
        A(f's_memtime {s(60 + 2 * i, 2)}')
        A('s_waitcnt lgkmcnt(0)')

    def dump_stamps(self):
        if not self.prof:
            return
        A = self.A
        A('s_waitcnt lgkmcnt(0)')
        A.lg_done = A.lg
        self.stamp()
        A('s_waitcnt vmcnt(0)')
        self.stamp()
        A('s_memrealtime s[58:59]')
        A('s_getreg_b32 s55, hwreg(HW_REG_XCC_ID)')
        A('s_waitcnt lgkmcnt(0)')
        A('s_mov_b64 exec, -1')
        A('v_mov_b32 v3, 0')
        A('v_writelane_b32 v3, s56, 0')
        A('v_writelane_b32 v3, s58, 1')
        A('v_writelane_b32 v3, s55, 2')
        for i in range(self.nstamp):
            A(f'v_writelane_b32 v3, {s(60 + 2 * i)}, {4 + i}')
        A(f'v_lshlrev_b32 v4, 2, {v(VLANE)}')
        A(f'v_mov_b32 v5, {OOB}')
        A(f'v_cmp_gt_u32 vcc, 32, v0')
        A(f'v_cndmask_b32 v4, v5, v4, vcc')
        A(f's_lshl_b32 s55, s2, 7')
        A(f's_add_u32 s55, s55, {DBG + self.kidx * 512 * 128}')
        A(f'buffer_store_dword v3, v4, {s(SRD, 4)}, s55 offen')

    def begin(self, name, nwg):
        A = self.A
        A.reset_kernel()
        A.raw('.p2align 8')
        A.raw(f'.globl {name}')
        A.raw(f'.type {name},@function')
        A.label(name)
        self.exit = A.newlabel('exit')
        A(f's_cmp_ge_u32 s2, {nwg}')
        A(f's_cbranch_scc1 {self.exit}')
        self.nstamp = 0
        if self.prof:
            A('s_memrealtime s[56:57]')
        self.stamp()
        A(f's_load_dwordx2 {s(SRD, 2)}, s[0:1], 88')
        A(f'v_and_b32 {v(VLANE)}, 63, v0')
        A(f'v_lshrrev_b32 v3, 6, v0')
        A(f'v_lshlrev_b32 {v(VL16)}, 4, {v(VLANE)}')
        A(f'v_readfirstlane_b32 {s(SW)}, v3')
        A(f's_mov_b32 {s(SRD + 2)}, {WS_USED}')
        A(f's_mov_b32 {s(SRD + 3)}, 0x00020000')

    def end(self, name):
        A = self.A
        self.dump_stamps()
        self.kidx += 1
        A.label(self.exit)
        A('s_endpgm')
        nv = A.maxv + 1
        accum = (nv + 3) // 4 * 4
        total = accum + (A.maxa + 1) if A.maxa >= 0 else nv
        self.kernels.append((name, total, accum, A.maxs + 1))

    def tile64(self, srb, scg):
        A = self.A
        A(f's_and_b32 {s(srb)}, s2, 7')
        A(f's_lshl_b32 {s(srb)}, {s(srb)}, 2')
        A(f's_lshr_b32 {s(scg)}, s2, 6')
        A(f's_add_u32 {s(srb)}, {s(srb)}, {s(scg)}')
        A(f's_bfe_u32 {s(scg)}, s2, 0x30003')

    def tile128(self, srb, scg):
        A = self.A
        A(f's_and_b32 {s(srb)}, s2, 7')
        A(f's_lshl_b32 {s(srb)}, {s(srb)}, 1')
        A(f's_lshr_b32 {s(scg)}, s2, 7')
        A(f's_add_u32 {s(srb)}, {s(srb)}, {s(scg)}')
        A(f's_bfe_u32 {s(scg)}, s2, 0x40003')

    def ld(self, dst, soff, ioff=0, voff=VL16, srd=SRD):
        o = f' offset:{ioff}' if ioff else ''
        self.A(f'buffer_load_dwordx4 {dst}, {v(voff)}, {s(srd, 4)}, {s(soff)} offen{o}')
        return self.A.vmark()

    def dma(self, soff, ioff=0, voff=VL16, srd=SRD):
        o = f' offset:{ioff}' if ioff else ''
        self.A(f'buffer_load_dwordx4 {v(voff)}, {s(srd, 4)}, {s(soff)} offen{o} lds')
        return self.A.vmark()

    def st(self, src, soff, ioff=0, voff=VL16, srd=SRD, w=4):
        o = f' offset:{ioff}' if ioff else ''
        wn = {1: 'dword', 2: 'dwordx2', 4: 'dwordx4'}[w]
        self.A(f'buffer_store_{wn} {src}, {v(voff)}, {s(srd, 4)}, {s(soff)} offen{o}')

    def dma_kstep(self, NT, sW, sM, stmp):
        A = self.A
        A(f's_mov_b32 m0, {s(sM)}')
        for t in range(min(NT, 4)):
            self.dma(sW, t * KB)
        if NT > 4:
            A(f's_add_u32 m0, {s(sM)}, 4096')
            A(f's_add_u32 {s(stmp)}, {s(sW)}, 4096')
            for t in range(4, NT):
                self.dma(stmp, (t - 4) * KB)

    def stats_consume(self, st, tmp):
        A = self.A
        S, Q = st, st + 1
        A(f'v_pk_add_f32 {v(st, 2)}, {v(st, 2)}, {v(st + 2, 2)}')
        A(f'v_permlane32_swap_b32 {v(S)}, {v(Q)}')
        A(f'v_add_f32 {v(S)}, {v(S)}, {v(Q)}')
        A(f'v_mov_b32 {v(Q)}, {v(S)}')
        A(f'v_permlane16_swap_b32 {v(S)}, {v(Q)}')
        A(f'v_add_f32 {v(S)}, {v(S)}, {v(Q)}')
        A(f'v_mov_b32 {v(Q)}, {v(S)}')
        A(f'v_permlane32_swap_b32 {v(S)}, {v(Q)}')
        A(f'v_mul_f32 {v(S)}, {f32(1 / 512)}, {v(S)}')
        A(f'v_mul_f32 {v(Q)}, {f32(1 / 512)}, {v(Q)}')
        A(f'v_fma_f32 {v(Q)}, -{v(S)}, {v(S)}, {v(Q)}')
        A(f'v_max_f32 {v(Q)}, 0, {v(Q)}')

    def rstd(self, dst, var):
        A = self.A
        A(f'v_add_f32 {v(dst)}, {f32(1e-5)}, {v(var)}')
        A(f'v_rsq_f32 {v(dst)}, {v(dst)}')

    def stats_produce(self, acc, n, tmp, soff, voff):
        A = self.A
        S, Q = tmp, tmp + 2
        A(f'v_pk_add_f32 {v(S, 2)}, {v(acc, 2)}, {v(acc + 2, 2)}')
        A(f'v_pk_mul_f32 {v(Q, 2)}, {v(acc, 2)}, {v(acc, 2)}')
        for i in range(2, n, 2):
            if i >= 4:
                A(f'v_pk_add_f32 {v(S, 2)}, {v(S, 2)}, {v(acc + i, 2)}')
            A(f'v_pk_fma_f32 {v(Q, 2)}, {v(acc + i, 2)}, {v(acc + i, 2)}, {v(Q, 2)}')
        A(f'v_add_f32 {v(S)}, {v(S)}, {v(S + 1)}')
        A(f'v_add_f32 {v(Q)}, {v(Q)}, {v(Q + 1)}')
        A(f'v_permlane32_swap_b32 {v(S)}, {v(Q)}')
        A(f'v_add_f32 {v(S)}, {v(S)}, {v(Q)}')
        A(f'v_mov_b32 {v(Q)}, {v(S)}')
        A(f'v_permlane16_swap_b32 {v(S)}, {v(Q)}')
        A(f'v_add_f32 {v(S)}, {v(S)}, {v(Q)}')
        self.st(v(S), soff, voff=voff, w=1)

    def stats_voff(self, dst):
        A = self.A
        A(f'v_and_b32 {v(dst)}, 0xf0, {v(VL16)}')
        A(f'v_lshrrev_b32 v3, 5, {v(VLANE)}')
        A(f'v_lshl_or_b32 {v(dst)}, v3, 2, {v(dst)}')

    def unpack(self, dst, src, n):
        A = self.A
        for i in range(n):
            A(f'v_lshlrev_b32 {v(dst + 2 * i)}, 16, {v(src + i)}')
            A(f'v_and_b32 {v(dst + 2 * i + 1)}, 0xffff0000, {v(src + i)}')

    def pack(self, dst, src, n):
        for i in range(n):
            self.A(f'v_cvt_pk_bf16_f32 {v(dst + i)}, {v(src + 2 * i)}, {v(src + 2 * i + 1)}')

    def gelu_consts(self, K, rs):
        A = self.A
        A(f'v_mul_f32 {v(K + 1)}, {v(rs)}, {v(rs)}')
        A(f'v_rcp_f32 {v(K + 2)}, {v(rs)}')
        A(f'v_mul_f32 {v(K)}, {f32(GC1)}, {v(rs)}')
        A(f'v_mul_f32 {v(K + 1)}, {v(K + 1)}, {v(rs)}')
        A(f'v_mul_f32 {v(K + 1)}, {f32(GC2)}, {v(K + 1)}')

    def gelu(self, acc, n, K, tmp, out):
        A = self.A
        P = range(0, n, 2)
        for i in P:
            A(f'v_pk_mul_f32 {v(tmp + i, 2)}, {v(acc + i, 2)}, {v(acc + i, 2)}')
        for i in P:
            A(f'v_pk_fma_f32 {v(tmp + i, 2)}, {v(tmp + i, 2)}, {v(K, 2)}, {v(K, 2)} op_sel:[0,1,0] op_sel_hi:[1,1,0]')
        for i in P:
            A(f'v_pk_mul_f32 {v(tmp + i, 2)}, {v(tmp + i, 2)}, {v(acc + i, 2)}')
        for i in range(n):
            A(f'v_exp_f32 {v(tmp + i)}, {v(tmp + i)}')
        for i in P:
            A(f'v_pk_fma_f32 {v(tmp + i, 2)}, {v(tmp + i, 2)}, {v(K + 2, 2)}, {v(K + 2, 2)} op_sel_hi:[1,0,0]')
        for i in range(n):
            A(f'v_rcp_f32 {v(tmp + i)}, {v(tmp + i)}')
        for i in P:
            A(f'v_pk_mul_f32 {v(tmp + i, 2)}, {v(tmp + i, 2)}, {v(acc + i, 2)}')
        if out is not None:
            self.pack(out, tmp, n // 2)

    def acc_init_ln(self, acc, NT, MT, means, ldsbase_v, tmp):
        A = self.A
        for t in range(NT):
            A(f'ds_read_b128 {v(tmp + 8 * t, 4)}, {v(ldsbase_v)} offset:{t * 64}')
            A(f'ds_read_b128 {v(tmp + 8 * t + 4, 4)}, {v(ldsbase_v)} offset:{NT * 64 + t * 64}')
        A.wait_all(vm=False)
        for t in range(NT):
            for i in (0, 2):
                A(f'v_pk_add_f32 {v(tmp + 8 * t + i, 2)}, {v(tmp + 8 * t + i, 2)}, {v(tmp + 8 * t + 4 + i, 2)}')
        for mt in range(MT):
            for t in range(NT):
                for i in (0, 2):
                    A(f'v_pk_mul_f32 {v(acc + (mt * NT + t) * 4 + i, 2)}, {v(tmp + 8 * t + i, 2)}, {v(means[mt], 2)} '
                      f'op_sel_hi:[1,0] neg_lo:[0,1] neg_hi:[0,1]')

    def gemm_chunk(self, js, MT, NT, acc, xreg, ldsoff, buf, NB, vbase):
        A = self.A

        def read(j, t, slot):
            off = ldsoff(j) + t * KB
            A(f'ds_read_b128 {v(buf + (slot * NT + t) * 4, 4)}, {v(vbase[off >> 16])} offset:{off & 0xffff}')
            return A.lmark()
        marks = {}
        pre = min(NB, len(js))
        while pre * NT > 15:
            pre -= 1
        for i in range(pre):
            for t in range(NT):
                marks[(i, t)] = read(js[i], t, i % NB)
        nxt = [(i, t) for i in range(pre, len(js)) for t in range(NT)]
        for i, j in enumerate(js):
            for t in range(NT):
                A.wait(lg=marks[(i, t)])
                for mt in range(MT):
                    r = acc + (mt * NT + t) * 4
                    A(f'v_mfma_f32_16x16x32_bf16 {v(r, 4)}, {v(buf + ((i % NB) * NT + t) * 4, 4)}, {xreg(mt, j)}, {v(r, 4)}')
                if nxt:
                    i2, t2 = nxt[0]
                    if (i2 - NB, t2) <= (i, t):
                        marks[(i2, t2)] = read(js[i2], t2, i2 % NB)
                        nxt.pop(0)
        assert not nxt

    def k0(self):
        A = self.A
        name = 'prep_kernel'
        self.begin(name, 272)
        LC = A.newlabel('k0c')
        LB = A.newlabel('k0b')
        LJ = A.newlabel('k0j')
        LS = A.newlabel('k0s')
        sArg, sRS, sSrc, sD, sJS, sCS, sQ, sKB, sT, sU, sIsB = 16, 17, 18, 19, 20, 21, 22, 23, 24, 25, 26
        A(f's_mov_b32 {s(SRD2 + 3)}, 0x00020000')
        A('s_cmp_ge_u32 s2, 208')
        A(f's_cbranch_scc1 {LC}')
        labs = [A.newlabel('k0t') for _ in range(6)]
        A(f's_mov_b32 {s(sIsB)}, 0')
        A(f's_and_b32 {s(sKB)}, s2, 1')
        A('s_cmp_ge_u32 s2, 152')
        A(f's_cbranch_scc1 {labs[4]}')
        A('s_cmp_ge_u32 s2, 96')
        A(f's_cbranch_scc1 {labs[3]}')
        A('s_cmp_ge_u32 s2, 48')
        A(f's_cbranch_scc1 {labs[2]}')
        A(f's_load_dwordx2 {s(SRD2, 2)}, s[0:1], 8')
        A(f's_load_dwordx2 s[28:29], s[0:1], 16')
        A(f's_mov_b32 {s(SRD2 + 2)}, {512 * 1536 * 2}')
        A(f's_mov_b32 {s(sRS)}, 3072')
        A(f's_mov_b32 {s(sJS)}, 6144')
        A(f's_lshr_b32 {s(sQ)}, s2, 1')
        A(f's_and_b32 {s(sT)}, {s(sQ)}, 7')
        A(f's_lshl_b32 {s(sT)}, {s(sT)}, 2')
        A(f's_add_u32 {s(sT)}, {s(sT)}, {s(SW)}')
        A(f's_lshr_b32 {s(sU)}, {s(sT)}, 1')
        A(f's_mul_i32 {s(sD)}, {s(sU)}, {96 * KB}')
        A(f's_add_u32 {s(sD)}, {s(sD)}, {WQKV}')
        A(f's_lshl_b32 {s(sCS)}, {s(sU)}, 10')
        A(f's_add_u32 {s(sCS)}, {s(sCS)}, {CSQ}')
        A(f's_mul_i32 s27, {s(sKB)}, 384')
        A(f's_add_u32 {s(sCS)}, {s(sCS)}, s27')
        A(f's_and_b32 {s(sU)}, {s(sT)}, 1')
        A('s_cmp_ge_u32 s2, 32')
        A(f's_cbranch_scc1 {labs[1]}')
        A(f's_mov_b32 {s(sIsB)}, 1')
        A(f's_lshr_b32 s27, {s(sQ)}, 3')
        A(f's_lshl_b32 s27, s27, 1')
        A(f's_add_u32 {s(sU)}, {s(sU)}, s27')
        A(f's_lshl_b32 s27, {s(sU)}, 6')
        A(f's_add_u32 {s(sD)}, {s(sD)}, s27')
        A(f's_lshl_b32 s27, {s(sU)}, 4')
        A(f's_add_u32 {s(sCS)}, {s(sCS)}, s27')
        A(f's_branch {LJ}')
        A.label(labs[1])
        A(f's_add_u32 {s(sU)}, {s(sU)}, 4')
        A(f's_lshl_b32 s27, {s(sU)}, 10')
        A(f's_add_u32 {s(sD)}, {s(sD)}, s27')
        A(f's_lshl_b32 s27, {s(sU)}, 6')
        A(f's_add_u32 {s(sCS)}, {s(sCS)}, s27')
        A(f's_branch {LJ}')
        A.label(labs[2])
        A(f's_sub_u32 {s(sT)}, s2, 48')
        A(f's_lshr_b32 {s(sU)}, {s(sT)}, 4')
        A(f's_bfe_u32 {s(sQ)}, {s(sT)}, 0x30001')
        A(f's_lshl_b32 {s(sArg)}, {s(sU)}, 3')
        A(f's_add_u32 {s(sArg)}, {s(sArg)}, 32')
        A(f's_cmp_eq_u32 {s(sU)}, 0')
        A(f's_cselect_b32 {s(sArg)}, 24, {s(sArg)}')
        A(f's_load_dwordx2 {s(SRD2, 2)}, s[0:1], {s(sArg)}')
        A(f's_mov_b32 {s(SRD2 + 2)}, {512 * 512 * 2}')
        A(f's_mov_b32 {s(sRS)}, 1024')
        A(f's_mov_b32 {s(sJS)}, 4096')
        assert W1 == WO + 512 * KB and W2 == W1 + 512 * KB
        A(f's_lshl_b32 {s(sD)}, {s(sU)}, 19')
        A(f's_lshl_b32 s27, {s(sQ)}, 16')
        A(f's_add_u32 {s(sD)}, {s(sD)}, s27')
        A(f's_lshl_b32 s27, {s(SW)}, 10')
        A(f's_add_u32 {s(sD)}, {s(sD)}, s27')
        A(f's_add_u32 {s(sD)}, {s(sD)}, {WO}')
        A(f's_lshl_b32 {s(sCS)}, {s(sQ)}, 10')
        A(f's_lshl_b32 s27, {s(sKB)}, 8')
        A(f's_add_u32 {s(sCS)}, {s(sCS)}, s27')
        A(f's_lshl_b32 s27, {s(SW)}, 6')
        A(f's_add_u32 {s(sCS)}, {s(sCS)}, s27')
        A(f's_add_u32 {s(sCS)}, {s(sCS)}, {CS1}')
        A(f's_cmp_eq_u32 {s(sU)}, 1')
        A(f's_cselect_b32 {s(sCS)}, {s(sCS)}, {DUMMY}')
        A(f's_branch {LJ}')
        A.label(labs[3])
        A(f's_load_dwordx2 {s(SRD2, 2)}, s[0:1], 56')
        A(f's_mov_b32 {s(SRD2 + 2)}, {512 * 1792 * 2}')
        A(f's_mov_b32 {s(sRS)}, 3584')
        A(f's_mov_b32 {s(sJS)}, 7168')
        A(f's_sub_u32 {s(sQ)}, s2, 96')
        A(f's_lshr_b32 {s(sQ)}, {s(sQ)}, 1')
        A(f's_lshl_b32 {s(sT)}, {s(sQ)}, 2')
        A(f's_add_u32 {s(sT)}, {s(sT)}, {s(SW)}')
        for nt in range(96):
            assert (nt * 43) >> 8 == nt // 6
        A(f's_mul_i32 {s(sU)}, {s(sT)}, 43')
        A(f's_lshr_b32 {s(sU)}, {s(sU)}, 8')
        A(f's_mul_i32 s27, {s(sU)}, 6')
        A(f's_sub_u32 s27, {s(sT)}, s27')
        A(f's_sub_u32 s28, {s(sT)}, 96')
        A(f's_cmp_ge_u32 {s(sT)}, 96')
        A(f's_cselect_b32 {s(sU)}, s28, {s(sU)}')
        A(f's_cselect_b32 s27, 6, s27')
        A(f's_mul_i32 {s(sD)}, {s(sU)}, {112 * KB}')
        A(f's_lshl_b32 s28, s27, 10')
        A(f's_add_u32 {s(sD)}, {s(sD)}, s28')
        A(f's_add_u32 {s(sD)}, {s(sD)}, {W3}')
        A(f's_lshl_b32 {s(sCS)}, {s(sU)}, 10')
        A(f's_lshl_b32 s28, s27, 6')
        A(f's_add_u32 {s(sCS)}, {s(sCS)}, s28')
        A(f's_mul_i32 s28, {s(sKB)}, 448')
        A(f's_add_u32 {s(sCS)}, {s(sCS)}, s28')
        A(f's_add_u32 {s(sCS)}, {s(sCS)}, {CS3}')
        A(f's_branch {LJ}')
        A.label(labs[4])
        A(f's_load_dwordx2 {s(SRD2, 2)}, s[0:1], 64')
        A(f's_mov_b32 {s(SRD2 + 2)}, {512 * 1792 * 2}')
        A(f's_mov_b32 {s(sRS)}, 1024')
        A(f's_mov_b32 {s(sJS)}, 4096')
        A(f's_sub_u32 {s(sT)}, s2, 152')
        A(f's_and_b32 {s(sQ)}, {s(sT)}, 7')
        A(f's_lshr_b32 {s(sKB)}, {s(sT)}, 3')
        A(f's_mul_i32 {s(sD)}, {s(sQ)}, {224 * KB}')
        A(f's_lshl_b32 s27, {s(SW)}, 10')
        A(f's_add_u32 {s(sD)}, {s(sD)}, s27')
        A(f's_add_u32 {s(sD)}, {s(sD)}, {W4}')
        A(f's_mov_b32 {s(sCS)}, {DUMMY}')
        A.label(LJ)
        A.flush_hazards()
        A(f's_mul_i32 s27, {s(sKB)}, {s(sJS)}')
        A(f's_lshl_b32 s27, s27, 3')
        A(f's_add_u32 {s(sD)}, {s(sD)}, s27')
        A(f's_lshl_b32 s27, {s(sKB)}, 2')
        A(f's_add_u32 s27, s27, {s(SW)}')
        A(f's_lshl_b32 s27, s27, 6')
        A(f's_mul_i32 {s(sSrc)}, s27, {s(sRS)}')
        A(f's_lshl_b32 s27, {s(sQ)}, 7')
        A(f's_add_u32 {s(sSrc)}, {s(sSrc)}, s27')
        A(f'v_lshrrev_b32 v4, 3, {v(VLANE)}')
        A(f'v_mul_u32_u24 v4, {s(sRS)}, v4')
        A(f'v_lshrrev_b32 v5, 1, {v(VLANE)}')
        A(f'v_lshrrev_b32 v6, 4, {v(VLANE)}')
        A(f'v_xor_b32 v5, v5, v6')
        A(f'v_and_b32 v5, 3, v5')
        A(f'v_lshl_add_u32 v4, v5, 5, v4')
        A(f'v_and_b32 v5, 1, {v(VLANE)}')
        A(f'v_lshl_add_u32 v4, v5, 4, v4')
        A(f's_lshl_b32 s27, {s(SW)}, 13')
        A(f's_lshl_b32 s30, {s(sRS)}, 3')
        A('s_waitcnt lgkmcnt(0)')
        for i in range(8):
            A(f's_add_u32 m0, s27, {i * KB}')
            self.dma(sSrc, 0, voff=4, srd=SRD2)
            if i < 7:
                A(f's_add_u32 {s(sSrc)}, {s(sSrc)}, s30')
        F = 16
        ONES = 8
        for i in range(4):
            A(f'v_mov_b32 {v(ONES + i)}, 0x3f803f80')
        A(f's_cmp_eq_u32 {s(sIsB)}, 1')
        A(f's_cbranch_scc1 {LB}')
        natb = 200 if getattr(self, 'zero_all', False) else 1000
        A(f's_cmp_ge_u32 s2, {natb}')
        A(f's_cselect_b32 s27, 8, 4')
        A(f's_cselect_b32 s30, 4, 16')
        A(f'v_lshrrev_b32 v6, 4, {v(VLANE)}')
        A(f'v_mul_u32_u24 v6, s27, v6')
        A(f'v_bfe_u32 v7, {v(VLANE)}, 2, 2')
        A(f'v_add_u32 v6, v6, v7')
        A(f'v_and_b32 v7, 3, {v(VLANE)}')
        A(f'v_lshlrev_b32 v7, 3, v7')
        for u, d in ((0, 5), (1, 14)):
            if u:
                A(f'v_add_u32 v6, s30, v6')
            A(f'v_lshrrev_b32 {v(d)}, 1, v6')
            A(f'v_xor_b32 {v(d)}, {s(SW)}, {v(d)}')
            A(f'v_and_b32 {v(d)}, 3, {v(d)}')
            A(f'v_lshl_add_u32 {v(d)}, {v(d)}, 5, v7')
            A(f'v_lshl_add_u32 {v(d)}, v6, 7, {v(d)}')
        A(f'v_mov_b32 v12, {v(VL16)}')
        A(f'v_lshrrev_b32 v13, 4, {v(VLANE)}')
        A(f'v_lshlrev_b32 v13, 4, v13')
        A('s_waitcnt vmcnt(0)')
        A('s_barrier')
        for jj in range(8):
            for u in range(2):
                A(f'ds_read_b64_tr_b16 {v(F + 4 * jj + 2 * u, 2)}, {v(14 if u else 5)} offset:{jj * 4096}')
            if jj == 3:
                A.wait_all(vm=False)
        A.wait_all(vm=False)
        A(f's_branch {LS}')
        A.label(LB)
        A.flush_hazards()
        A(f's_mov_b32 s30, {32 * 16 * 16 * 2}')
        A(f's_mov_b32 s31, 0x00020000')
        A(f's_lshl_b32 {s(sT)}, {s(sT)}, 9')
        A(f's_lshl_b32 s27, {s(SW)}, 10')
        A(f's_add_u32 s27, s27, 32768')
        A(f's_mov_b32 m0, s27')
        self.dma(sT, 0, srd=28)
        A(f'v_lshrrev_b32 v5, 1, {v(VLANE)}')
        A(f'v_xor_b32 v5, {s(SW)}, v5')
        A(f'v_and_b32 v5, 3, v5')
        A(f'v_lshlrev_b32 v5, 5, v5')
        A(f'v_and_b32 v6, 15, {v(VLANE)}')
        A(f'v_lshl_add_u32 v5, v6, 7, v5')
        A(f'v_lshrrev_b32 v7, 4, {v(VLANE)}')
        A(f'v_lshl_add_u32 v5, v7, 3, v5')
        A(f'v_lshrrev_b32 v6, 2, v6')
        A(f'v_lshlrev_b32 v12, 10, v6')
        A(f'v_lshl_add_u32 v12, v7, 8, v12')
        A(f'v_and_b32 v6, 3, {v(VLANE)}')
        A(f'v_lshl_add_u32 v12, v6, 4, v12')
        A(f'v_lshlrev_b32 v13, 6, v7')
        A(f'v_lshlrev_b32 v6, 3, {v(VLANE)}')
        A(f'v_add_u32 v6, s27, v6')
        A('s_waitcnt vmcnt(0)')
        A('s_barrier')
        A(f'ds_read_b64_tr_b16 v[14:15], v6')
        R = 48
        for half in range(2):
            for kt in range(8 * half, 8 * half + 8):
                A(f'ds_read_b64 {v(R + 2 * kt, 2)}, v5 offset:{kt * 2048}')
            A.wait_all(vm=False)
        C = 80
        for kt in range(16):
            A(f'v_mfma_f32_16x16x16_bf16 {v(C + 4 * kt, 4)}, {v(R + 2 * kt, 2)}, v[14:15], 0')
        self.pack(F, C, 32)
        A.label(LS)
        A.flush_hazards()
        A('s_nop 1')
        for jj in range(8):
            self.st(v(F + 4 * jj, 4), sD, voff=12)
            src = '0' if jj == 0 else 'v[4:7]'
            A(f'v_mfma_f32_16x16x32_bf16 v[4:7], {v(F + 4 * jj, 4)}, {v(ONES, 4)}, {src}')
            if jj < 7:
                A(f's_add_u32 {s(sD)}, {s(sD)}, {s(sJS)}')
        A('s_mov_b32 exec_lo, 0x00010001')
        A('s_mov_b32 exec_hi, 0x00010001')
        self.st('v[4:7]', sCS, voff=13)
        A('s_endpgm')
        A.label(LC)
        A.flush_hazards()
        A.vm = A.vm_done = A.lg = A.lg_done = 0
        A(f's_load_dwordx2 {s(SRD2, 2)}, s[0:1], 0')
        A(f's_mov_b32 {s(SRD2 + 2)}, {2048 * 512 * 2}')
        A(f's_sub_u32 {s(sU)}, s2, 208')
        A(f's_lshl_b32 {s(sSrc)}, {s(sU)}, 2')
        A(f's_add_u32 {s(sSrc)}, {s(sSrc)}, {s(SW)}')
        A(f's_lshl_b32 {s(sSrc)}, {s(sSrc)}, 13')
        A(f's_mul_i32 s27, {s(SW)}, {8 * 1040}')
        A('s_waitcnt lgkmcnt(0)')
        for i in range(8):
            A(f's_add_u32 m0, s27, {i * 1040}')
            self.dma(sSrc, 0, srd=SRD2)
            if i < 7:
                A(f's_add_u32 {s(sSrc)}, {s(sSrc)}, 1024')
        for i in range(4):
            A(f'v_mov_b32 {v(8 + i)}, 0')
        A(f'v_lshlrev_b32 v4, 4, v0')
        if getattr(self, 'zero_all', False):
            A(f's_lshl_b32 s28, {s(sU)}, 12')
        else:
            A(f'v_mov_b32 v5, {OOB}')
            A(f'v_cmp_gt_u32 vcc, 68, v0')
            A(f'v_cndmask_b32 v4, v5, v4, vcc')
            A(f's_mul_i32 s28, {s(sU)}, 1088')
        A(f's_add_u32 s28, s28, {KV}')
        self.st('v[8:11]', 28, voff=4)
        if getattr(self, 'zero_all', False):
            A(f's_add_u32 s28, s28, {256 * KB}')
            self.st('v[8:11]', 28, voff=4)
        A(f's_lshr_b32 {s(sT)}, {s(SW)}, 1')
        A(f's_and_b32 {s(sKB)}, {s(SW)}, 1')
        A(f's_mul_i32 s27, {s(sT)}, {16 * 1040}')
        A(f's_lshl_b32 s28, {s(sKB)}, 9')
        A(f's_add_u32 s27, s27, s28')
        A(f'v_and_b32 v5, 15, {v(VLANE)}')
        A(f'v_mul_u32_u24 v5, 1040, v5')
        A(f'v_lshrrev_b32 v6, 4, {v(VLANE)}')
        A(f'v_lshl_add_u32 v5, v6, 3, v5')
        A(f'v_add_u32 v5, s27, v5')
        A(f's_lshl_b32 {s(sU)}, {s(sU)}, 1')
        A(f's_add_u32 {s(sU)}, {s(sU)}, {s(sT)}')
        A(f's_lshl_b32 {s(sD)}, {s(sU)}, 14')
        A(f's_lshl_b32 s28, {s(sKB)}, 13')
        A(f's_add_u32 {s(sD)}, {s(sD)}, s28')
        A(f's_add_u32 {s(sD)}, {s(sD)}, {X0}')
        A(f's_add_u32 s29, {s(sD)}, 4096')
        A(f's_lshl_b32 {s(sCS)}, {s(sU)}, 10')
        A(f's_lshl_b32 s28, {s(sKB)}, {7 if getattr(self, "zero_all", False) else 3}')
        A(f's_add_u32 {s(sCS)}, {s(sCS)}, s28')
        A(f's_add_u32 {s(sCS)}, {s(sCS)}, {ST0}')
        if getattr(self, 'zero_all', False):
            A(f'v_and_b32 v7, 15, {v(VLANE)}')
            A(f'v_lshlrev_b32 v7, 3, v7')
            A(f'v_lshl_add_u32 v7, v6, 8, v7')
        else:
            A(f'v_mov_b32 v7, {v(VL16)}')
        A('s_waitcnt vmcnt(2)' if getattr(self, 'zero_all', False) else 's_waitcnt vmcnt(1)')
        A('s_barrier')
        for q in range(8):
            A(f'ds_read2_b64 {v(F + 4 * q, 4)}, v5 offset0:{8 * q} offset1:{8 * q + 4}')
        A.wait_all(vm=False)
        for q in range(8):
            self.st(v(F + 4 * q, 4), sD if q < 4 else 29, (q & 3) * KB)
        self.unpack(48, F, 32)
        A(f'v_pk_add_f32 v[8:9], v[48:49], v[50:51]')
        A(f'v_pk_mul_f32 v[10:11], v[48:49], v[48:49]')
        for i in range(2, 64, 2):
            if i >= 4:
                A(f'v_pk_add_f32 v[8:9], v[8:9], {v(48 + i, 2)}')
            A(f'v_pk_fma_f32 v[10:11], {v(48 + i, 2)}, {v(48 + i, 2)}, v[10:11]')
        A('v_add_f32 v8, v8, v9')
        A('v_add_f32 v9, v10, v11')
        self.st('v[8:9]', sCS, w=2, voff=7)
        self.end(name)
        return (name, 272, 36 * KB)

    def big_gemm_prologue(self, NT, XIN, STIN, WP, CS, acc, buf):
        A = self.A
        sRB, sCG, sX, sX2, sWs, sM, sT = 16, 17, 18, 19, 20, 21, 22
        self.tile128(sRB, sCG)
        A(f's_lshl_b32 {s(sRB)}, {s(sRB)}, 3')
        A(f's_lshl_b32 {s(sT)}, {s(SW)}, 1')
        A(f's_add_u32 {s(sRB)}, {s(sRB)}, {s(sT)}')
        A(f's_lshl_b32 {s(sX)}, {s(sRB)}, 14')
        A(f's_add_u32 {s(sX)}, {s(sX)}, {XIN}')
        A(f's_add_u32 {s(sX2)}, {s(sX)}, {16 * KB}')
        A(f's_mul_i32 {s(sM)}, {s(SW)}, {NT * KB}')
        A(f's_mul_i32 {s(sWs)}, {s(sCG)}, {NT * 16 * KB}')
        A(f's_add_u32 {s(sWs)}, {s(sWs)}, {s(sM)}')
        A(f's_add_u32 {s(sWs)}, {s(sWs)}, {WP}')
        A(f's_lshl_b32 s23, {s(sRB)}, 10')
        A(f's_add_u32 s23, s23, {STIN}')
        A(f's_lshl_b32 s24, {s(sCG)}, 10')
        A(f's_add_u32 s24, s24, {CS}')
        csl = NT * 16 * KB
        A(f's_lshl_b32 s25, {s(SW)}, 10')
        A(f's_add_u32 s25, s25, {csl}')
        A(f'v_add_u32 v4, 0x10000, {v(VL16)}')
        A(f'v_and_b32 v5, 0x30, {v(VLANE)}')
        A(f'v_add_u32 v5, s25, v5')
        A(f's_mov_b32 m0, s25')
        A('s_waitcnt lgkmcnt(0)')
        self.stamp()
        ST = 8
        self.ld(v(ST, 4), 23)
        self.ld(v(ST + 4, 4), 23, KB)
        m_small = self.dma(24)
        marks = []

        def issue(c):
            self.dma_kstep(NT, sWs, sM, sT)
            for jj in range(4):
                self.ld(a((4 * c + jj) * 4, 4), sX, jj * KB)
                self.ld(a(64 + (4 * c + jj) * 4, 4), sX2, jj * KB)
            marks.append(A.vmark())
            if c < 3:
                A(f's_add_u32 {s(sWs)}, {s(sWs)}, {4 * NT * KB}')
                A(f's_add_u32 {s(sM)}, {s(sM)}, {4 * NT * KB}')
                A(f's_add_u32 {s(sX)}, {s(sX)}, {4 * KB}')
                A(f's_add_u32 {s(sX2)}, {s(sX2)}, {4 * KB}')
        for c in range(4):
            issue(c)
        self.stamp()
        A.wait(vm=m_small)
        self.stamp()
        self.stats_consume(ST, 3)
        self.stats_consume(ST + 4, 3)
        self.acc_init_ln(acc, NT, 2, [ST, ST + 4], 5, buf)
        return marks, ST

    def big_gemm_main(self, NT, marks, acc, buf):
        A = self.A
        for c in range(4):
            if c in (0, 3, 13):
                self.stamp()
            A.wait(vm=marks[c])
            A('s_barrier')
            if c in (0, 1, 2, 3, 7, 13):
                self.stamp()
            self.gemm_chunk(list(range(4 * c, 4 * c + 4)), 2, NT, acc,
                            lambda mt, j: a(mt * 64 + 4 * j, 4), lambda j: j * NT * KB, buf, 2, {0: VL16, 1: 4})

    def k1(self):
        A = self.A
        name = 'qkv_kernel'
        self.begin(name, 256)
        NT = 6
        acc, buf = 32, 80
        marks, ST = self.big_gemm_prologue(NT, X0, ST0, WQKV, CSQ, acc, buf)
        sT0, sCG = 16, 17
        for mt in range(2):
            self.rstd(17 + 2 * mt, ST + 4 * mt + 1)
            A(f'v_mul_f32 {v(16 + 2 * mt)}, {f32(LOG2E)}, {v(17 + 2 * mt)}')
        SCR = 100 * KB
        RSZ = 208
        A(f'v_lshrrev_b32 v6, 4, {v(VLANE)}')
        A(f'v_and_b32 v7, 15, {v(VLANE)}')
        A(f'v_lshlrev_b32 v20, 4, v7')
        A(f'v_lshl_add_u32 v20, v6, 10, v20')
        A(f'v_mov_b32 v3, {OOB}')
        A(f'v_cmp_gt_u32 vcc, 32, {v(VLANE)}')
        A(f'v_cndmask_b32 v20, v3, v20, vcc')
        A(f's_lshl_b32 s26, {s(sT0)}, 15')
        A(f's_lshl_b32 s27, {s(sCG)}, 11')
        A(f's_add_u32 s26, s26, s27')
        A(f's_add_u32 s26, s26, {PHI}')
        A(f's_add_u32 s27, s26, {32 * KB}')
        A(f's_mul_i32 s28, {s(SW)}, {32 * RSZ}')
        A(f's_add_u32 s28, s28, {SCR}')
        A(f'v_mul_u32_u24 v21, {RSZ}, v7')
        A(f'v_add_u32 v21, s28, v21')
        A(f'v_lshl_add_u32 v22, v6, 3, v21')
        A(f'v_and_b32 v3, 1, v6')
        A(f'v_lshl_add_u32 v21, v3, 6, v21')
        A(f'v_bfe_u32 v3, {v(VLANE)}, 2, 2')
        A(f'v_lshl_add_u32 v3, v6, 3, v3')
        A(f'v_mul_u32_u24 v23, {RSZ}, v3')
        A(f'v_and_b32 v3, 3, {v(VLANE)}')
        A(f's_lshr_b32 s29, {s(SW)}, 1')
        A(f's_and_b32 s30, {s(SW)}, 1')
        A(f's_lshl_b32 s31, s29, 6')
        A(f's_lshl_b32 s32, s30, 3')
        A(f's_add_u32 s31, s31, s32')
        A(f's_add_u32 s31, s31, {SCR}')
        A(f'v_lshl_add_u32 v24, v3, 4, v23')
        A(f'v_add_u32 v24, s31, v24')
        A(f's_lshl_b32 s31, s29, 5')
        A(f's_add_u32 s31, s31, {SCR + 128}')
        A(f'v_lshl_add_u32 v25, v3, 3, v23')
        A(f'v_add_u32 v25, s31, v25')
        A(f's_lshl_b32 s31, {s(sCG)}, 2')
        A(f's_add_u32 s31, s31, {s(SW)}')
        A(f's_lshl_b32 s31, s31, 10')
        A(f's_add_u32 s31, s31, {KV}')
        A(f's_lshl_b32 s32, {s(sCG)}, 8')
        A(f's_lshl_b32 s33, s29, 7')
        A(f's_add_u32 s32, s32, s33')
        A(f's_lshl_b32 s33, s30, 4')
        A(f's_add_u32 s32, s32, s33')
        A(f's_add_u32 s32, s32, {Z}')
        A(f'v_lshlrev_b32 v26, 2, {v(VLANE)}')
        A(f'v_lshlrev_b32 v27, 2, v7')
        A(f'v_lshl_add_u32 v27, v6, 5, v27')
        A(f'v_mov_b32 v3, {OOB}')
        A(f'v_cmp_gt_u32 vcc, 4, v7')
        A(f'v_cndmask_b32 v27, v3, v27, vcc')
        A(f'v_cmp_eq_u32 s[34:35], 1, v7')
        A(f'v_cmp_eq_u32 s[36:37], 2, v7')
        A(f'v_cmp_eq_u32 s[38:39], 3, v7')
        for i in range(4):
            A(f'v_mov_b32 {v(28 + i)}, 0x3f803f80')
        self.big_gemm_main(NT, marks, acc, buf)
        self.stamp()
        EP, EM, PK, M = 128, 144, 160, 176
        for mt in range(2):
            P = acc + mt * 24
            cc = 16 + 2 * mt
            for hh in range(2):
                r = P + 16 + 4 * hh
                for i in (0, 2):
                    A(f'v_pk_mul_f32 {v(r + i, 2)}, {v(r + i, 2)}, {v(cc, 2)} op_sel:[0,1] op_sel_hi:[1,1]')
                self.pack(M + 8 + 2 * hh, r, 2)
                A(f'ds_write_b64 v22, {v(M + 8 + 2 * hh, 2)} offset:{mt * 16 * RSZ + 128 + 32 * hh}')
            for op, d in (('max', M), ('min', M + 1)):
                A(f'v_{op}3_f32 {v(d)}, {v(P)}, {v(P + 1)}, {v(P + 2)}')
                for i in range(3, 15, 2):
                    A(f'v_{op}3_f32 {v(d)}, {v(d)}, {v(P + i)}, {v(P + i + 1)}')
                A(f'v_{op}_f32 {v(d)}, {v(d)}, {v(P + 15)}')
            A(f'v_pk_mul_f32 {v(M, 2)}, {v(M, 2)}, {v(cc, 2)} op_sel_hi:[1,0]')
            for i in range(0, 16, 2):
                A(f'v_pk_fma_f32 {v(EP + i, 2)}, {v(P + i, 2)}, {v(cc, 2)}, {v(M, 2)} op_sel_hi:[1,0,0] neg_lo:[0,0,1] neg_hi:[0,0,1]')
                A(f'v_pk_fma_f32 {v(EM + i, 2)}, {v(P + i, 2)}, {v(cc, 2)}, {v(M, 2)} op_sel:[0,0,1] op_sel_hi:[1,0,1] neg_lo:[0,1,0] neg_hi:[0,1,0]')
            for i in range(32):
                A(f'v_exp_f32 {v(EP + i)}, {v(EP + i)}')
            for E, d in ((EP, M + 2), (EM, M + 4)):
                A(f'v_pk_add_f32 {v(d, 2)}, {v(E, 2)}, {v(E + 2, 2)}')
                for i in range(4, 16, 2):
                    A(f'v_pk_add_f32 {v(d, 2)}, {v(d, 2)}, {v(E + i, 2)}')
            A(f'v_add_f32 {v(M + 2)}, {v(M + 2)}, {v(M + 3)}')
            A(f'v_add_f32 {v(M + 3)}, {v(M + 4)}, {v(M + 5)}')
            A(f'v_rcp_f32 {v(M + 2)}, {v(M + 2)}')
            A(f'v_rcp_f32 {v(M + 3)}, {v(M + 3)}')
            for i in range(0, 16, 2):
                A(f'v_pk_mul_f32 {v(EP + i, 2)}, {v(EP + i, 2)}, {v(M + 2, 2)} op_sel_hi:[1,0]')
                A(f'v_pk_mul_f32 {v(EM + i, 2)}, {v(EM + i, 2)}, {v(M + 2, 2)} op_sel:[0,1] op_sel_hi:[1,1]')
            pk = PK if mt == 0 else acc
            for t in range(4):
                self.pack(pk + 4 * t, EP + 4 * t, 2)
                self.pack(pk + 4 * t + 2, EM + 4 * t, 2)
            A('s_mov_b32 exec_lo, 0')
            for t in range(4):
                A(f'ds_write_b128 v21, {v(pk + 4 * t, 4)} offset:{mt * 16 * RSZ + 16 * t}')
            A('s_mov_b32 exec_lo, -1')
            for t in range(4):
                self.st(v(pk + 4 * t, 4), 26 + mt, 256 * t, voff=20)
        A.wait_all(vm=False)
        self.stamp()
        A('s_barrier')
        TA, TB = 80, 96
        for ks in range(4):
            for u2 in range(2):
                off = (32 * ks + 4 * u2) * RSZ
                A(f'ds_read_b64_tr_b16 {v(TA + 4 * ks + 2 * u2, 2)}, v24 offset:{off}')
                A(f'ds_read_b64_tr_b16 {v(TB + 4 * ks + 2 * u2, 2)}, v25 offset:{off}')
            if ks == 2:
                A.wait(lg=A.lmark() - 8)
        base = A.lmark() - 16
        KVA, ZA = 112, 116
        for ks in range(4):
            A.wait(lg=base + 4 * ks + 4)
            A(f'v_mfma_f32_16x16x32_bf16 {v(KVA, 4)}, {v(TA + 4 * ks, 4)}, {v(TB + 4 * ks, 4)}, {"0" if ks == 0 else v(KVA, 4)}')
            A(f'v_mfma_f32_16x16x32_bf16 {v(ZA, 4)}, {v(TA + 4 * ks, 4)}, v[28:31], {"0" if ks == 0 else v(ZA, 4)}')
        for r in range(4):
            o = f' offset:{256 * r}' if r else ''
            A(f'buffer_atomic_add_f32 {v(KVA + r)}, v26, {s(SRD, 4)}, s31 offen{o}')
        A(f'v_cndmask_b32 {v(ZA)}, {v(ZA)}, {v(ZA + 1)}, s[34:35]')
        A(f'v_cndmask_b32 {v(ZA)}, {v(ZA)}, {v(ZA + 2)}, s[36:37]')
        A(f'v_cndmask_b32 {v(ZA)}, {v(ZA)}, {v(ZA + 3)}, s[38:39]')
        A(f'buffer_atomic_add_f32 {v(ZA)}, v27, {s(SRD, 4)}, s32 offen')
        self.end(name)
        return (name, 256, SCR + 128 * RSZ)

    def k5(self):
        A = self.A
        name = 'up_kernel'
        self.begin(name, 256)
        NT = 7
        acc, buf = 32, 88
        marks, ST = self.big_gemm_prologue(NT, X1, ST1, W3, CS3, acc, buf)
        sT0, sCG = 16, 17
        for mt in range(2):
            self.rstd(3, ST + 4 * mt + 1)
            self.gelu_consts(16 + 4 * mt, 3)
        A(f's_mul_i32 s26, {s(sT0)}, {56 * KB}')
        A(f's_add_u32 s26, s26, {G}')
        A(f's_lshr_b32 s28, {s(sCG)}, 1')
        A(f's_lshl_b32 s28, s28, 10')
        A(f's_and_b32 s29, {s(sCG)}, 1')
        A(f's_lshl_b32 s29, s29, 3')
        A(f's_add_u32 s28, s28, s29')
        A(f's_add_u32 s28, s28, s26')
        A(f's_add_u32 s28, s28, {48 * KB}')
        A(f's_add_u32 s29, s28, {56 * KB}')
        A(f's_mul_i32 s27, {s(sCG)}, {3 * KB}')
        A(f's_add_u32 s26, s26, s27')
        A(f's_add_u32 s27, s26, {56 * KB}')
        self.big_gemm_main(NT, marks, acc, buf)
        self.stamp()
        for mt in range(2):
            out = 144 + 16 * mt
            self.gelu(acc + 28 * mt, 28, 16 + 4 * mt, buf, out)
            for q in range(3):
                self.st(v(out + 4 * q, 4), 26 + mt, q * KB)
            self.st(v(out + 12, 2), 28 + mt, w=2)
        self.end(name)
        return (name, 256, 116 * KB)

    def small_setup(self, WP, KS=16):
        A = self.A
        self.tile64(16, 17)
        A(f's_lshl_b32 s16, s16, 2')
        A(f's_add_u32 s16, s16, {s(SW)}')
        A(f's_lshl_b32 s21, {s(SW)}, 12')
        A(f's_mul_i32 s20, s17, {KS * 4 * KB}')
        A(f's_add_u32 s20, s20, s21')
        A(f's_add_u32 s20, s20, {WP}')
        A(f's_lshl_b32 s24, s16, 14')
        A(f's_lshl_b32 s25, s17, 11')
        A(f's_add_u32 s24, s24, s25')
        A(f's_lshl_b32 s25, s16, 10')
        A(f's_lshr_b32 s26, s17, 1')
        A(f's_lshl_b32 s26, s26, 8')
        A(f's_add_u32 s25, s25, s26')
        A(f's_and_b32 s26, s17, 1')
        A(f's_lshl_b32 s26, s26, 3')
        A(f's_add_u32 s25, s25, s26')

    def store_tile(self, acc, tmp, DST, STD, svoff):
        A = self.A
        self.stamp()
        self.pack(tmp, acc, 8)
        A(f's_add_u32 s26, s24, {DST}')
        self.st(v(tmp, 4), 26)
        self.st(v(tmp + 4, 4), 26, KB)
        if STD is not None:
            A(f's_add_u32 s27, s25, {STD}')
            self.stats_produce(acc, 16, tmp + 8, 27, svoff)

    def k2(self):
        A = self.A
        name = 'attn_kernel'
        self.begin(name, 256)
        self.small_setup(WO)
        acc, buf, O = 16, 32, 96
        KVT = 96
        KL, ZL = 64 * KB, 96 * KB
        A(f's_add_u32 s26, s24, {X0}')
        A(f's_lshl_b32 s27, {s(SW)}, 14')
        A(f's_add_u32 s27, s27, {KV}')
        A(f's_lshl_b32 s28, {s(SW)}, 10')
        A(f's_add_u32 s28, s28, {Z}')
        A(f's_lshl_b32 s18, s16, 15')
        A(f's_add_u32 s18, s18, {PHI}')
        A('s_waitcnt lgkmcnt(0)')
        self.stamp()
        for i in range(16):
            self.ld(v(KVT + 4 * i, 4), 27, (i & 3) * KB)
            if (i & 3) == 3 and i < 15:
                A(f's_add_u32 s27, s27, 4096')
        m_kv = self.ld(v(160, 4), 28)
        self.ld(v(8, 4), 26)
        m_res = self.ld(v(12, 4), 26, KB)
        m_phi = []
        for h in range(32):
            m_phi.append(self.ld(a(4 * h, 4), 18, (h & 3) * KB))
            if (h & 3) == 3 and h < 31:
                A(f's_add_u32 s18, s18, 4096')
        marks = []

        def issue(c):
            self.dma_kstep(4, 20, 21, 22)
            marks.append(A.vmark())
            if c < 3:
                A(f's_add_u32 s20, s20, {16 * KB}')
                A(f's_add_u32 s21, s21, {16 * KB}')
        for c in range(3):
            issue(c)
        A(f'v_bfe_u32 v3, {v(VLANE)}, 2, 2')
        A(f'v_lshlrev_b32 v4, 7, v3')
        A(f'v_lshrrev_b32 v3, 4, {v(VLANE)}')
        A(f'v_lshl_add_u32 v4, v3, 5, v4')
        A(f'v_and_b32 v5, 3, {v(VLANE)}')
        A(f'v_lshl_add_u32 v4, v5, 3, v4')
        A(f's_lshl_b32 s27, {s(SW)}, 13')
        A(f's_add_u32 s27, s27, {KL}')
        A(f'v_add_u32 v4, s27, v4')
        A(f'v_lshlrev_b32 v5, 3, {v(VLANE)}')
        A(f'v_add_u32 v5, {KL}, v5')
        A(f's_lshl_b32 s27, {s(SW)}, 9')
        A(f'v_add_u32 v6, s27, v5')
        A(f'v_lshlrev_b32 v7, 4, v3')
        A(f'v_add_u32 v7, {ZL}, v7')
        self.stats_voff(164)
        self.stamp()
        A.wait(vm=m_kv)
        self.stamp()
        for i in range(16):
            self.pack(buf + 2 * i, KVT + 4 * i, 2)
            A(f'ds_write_b64 v4, {v(buf + 2 * i, 2)} offset:{i * 512}')
            if i == 12:
                A.wait(lg=A.lmark() - 8)
        self.pack(160, 160, 2)
        A(f'ds_write_b64 v6, v[160:161] offset:{32 * KB}')
        issue(3)
        A.wait(vm=m_res)
        self.unpack(acc, 8, 8)
        A.wait_all(vm=False)
        A('s_barrier')
        self.stamp()
        RB = buf
        ND = buf + 32
        rmark = {}
        for j in range(18):
            if j < 16:
                b = RB + 16 * (j & 1)
                for hh in range(2):
                    h = 2 * j + hh
                    A(f'ds_read_b64_tr_b16 {v(b + 4 * hh, 2)}, v5 offset:{h * 1024}')
                    A(f'ds_read_b64_tr_b16 {v(b + 4 * hh + 2, 2)}, v5 offset:{h * 1024 + 512}')
                    A(f'ds_read_b128 {v(b + 8 + 4 * hh, 4)}, v7 offset:{h * 64}')
                rmark[j] = A.lmark()
            if 1 <= j <= 16:
                jj = j - 1
                b = RB + 16 * (jj & 1)
                d = ND + 16 * (jj & 1)
                A.wait(vm=m_phi[2 * jj + 1], lg=rmark[jj])
                for hh in range(2):
                    h = 2 * jj + hh
                    A(f'v_mfma_f32_16x16x32_bf16 {v(d + 8 * hh + 4, 4)}, {v(b + 8 + 4 * hh, 4)}, {a(4 * h, 4)}, 0')
                    A(f'v_mfma_f32_16x16x32_bf16 {v(d + 8 * hh, 4)}, {v(b + 4 * hh, 4)}, {a(4 * h, 4)}, 0')
            if j >= 2:
                jj = j - 2
                d = ND + 16 * (jj & 1)
                for hh in range(2):
                    A(f'v_add_f32 {v(8 + 2 * hh)}, {f32(1e-6)}, {v(d + 8 * hh + 4)}')
                for hh in range(2):
                    A(f'v_rcp_f32 {v(8 + 2 * hh)}, {v(8 + 2 * hh)}')
                for hh in range(2):
                    for i in (0, 2):
                        A(f'v_pk_mul_f32 {v(12 + i, 2)}, {v(d + 8 * hh + i, 2)}, {v(8 + 2 * hh, 2)} op_sel_hi:[1,0]')
                    self.pack(O + 4 * jj + 2 * hh, 12, 2)
        for c in range(4):
            if c in (0, 3, 13):
                self.stamp()
            A.wait(vm=marks[c])
            A('s_barrier')
            if c in (0, 1, 2, 3, 7, 13):
                self.stamp()
            self.gemm_chunk(list(range(4 * c, 4 * c + 4)), 1, 4, acc,
                            lambda mt, j: v(O + 4 * j, 4), lambda j: j * 4 * KB, buf, 4, {0: VL16})
        self.store_tile(acc, buf, XA, STA, 164)
        self.end(name)
        return (name, 256, 98 * KB)

    def k3(self):
        A = self.A
        name = 'mix1_kernel'
        self.begin(name, 256)
        self.small_setup(W1)
        acc, buf = 16, 32
        A(f's_lshl_b32 s18, s16, 14')
        A(f's_add_u32 s18, s18, {XA}')
        A(f's_lshl_b32 s26, s16, 10')
        A(f's_add_u32 s26, s26, {STA}')
        A(f's_lshl_b32 s27, s17, 10')
        A(f's_add_u32 s27, s27, {CS1}')
        A(f's_lshl_b32 s28, {s(SW)}, 10')
        A(f's_add_u32 s28, s28, {64 * KB}')
        A(f'v_and_b32 v5, 0x30, {v(VLANE)}')
        A(f'v_add_u32 v5, s28, v5')
        A(f's_mov_b32 m0, s28')
        A('s_waitcnt lgkmcnt(0)')
        self.stamp()
        self.ld(v(8, 4), 26)
        m_small = self.dma(27)
        marks = self.small_issue(lambda c, jj: (18, jj * KB, VL16), [18])
        for i in range(4):
            A(f'v_mov_b32 {v(12 + i)}, 0')
        A(f'v_lshlrev_b32 v6, 4, v0')
        A(f'v_mov_b32 v7, {OOB}')
        A(f'v_cmp_gt_u32 vcc, 17, v0')
        A(f'v_cndmask_b32 v6, v7, v6, vcc')
        A(f's_mul_i32 s29, s2, 272')
        A(f's_add_u32 s29, s29, {KV}')
        self.st('v[12:15]', 29, voff=6)
        self.stamp()
        A.wait(vm=m_small)
        self.stamp()
        self.stats_consume(8, 3)
        self.acc_init_ln(acc, 4, 1, [8], 5, buf)
        self.rstd(10, 9)
        A('v_mul_f32 v11, v10, v10')
        A('v_mul_f32 v11, v11, v9')
        self.rstd(11, 11)
        A('v_mul_f32 v10, v10, v11')
        self.gelu_consts(96, 10)
        self.small_main(marks, acc, buf)
        self.stamp()
        self.gelu(acc, 16, 96, buf, buf + 16)
        A(f's_add_u32 s26, s24, {H}')
        self.st(v(buf + 16, 4), 26)
        self.st(v(buf + 20, 4), 26, KB)
        self.end(name)
        return (name, 256, 68 * KB)

    def small_issue(self, xsrc, adv):
        A = self.A
        marks = []
        for c in range(4):
            self.dma_kstep(4, 20, 21, 22)
            for jj in range(4):
                so, io, vo = xsrc(c, jj)
                self.ld(a((4 * c + jj) * 4, 4), so, io, voff=vo)
            marks.append(A.vmark())
            if c < 3:
                A(f's_add_u32 s20, s20, {16 * KB}')
                A(f's_add_u32 s21, s21, {16 * KB}')
                for r in adv:
                    A(f's_add_u32 {s(r)}, {s(r)}, {4 * KB}')
        return marks

    def small_main(self, marks, acc, buf):
        A = self.A
        for c in range(4):
            if c in (0, 3, 13):
                self.stamp()
            A.wait(vm=marks[c])
            A('s_barrier')
            if c in (0, 1, 2, 3, 7, 13):
                self.stamp()
            self.gemm_chunk(list(range(4 * c, 4 * c + 4)), 1, 4, acc,
                            lambda mt, j: a(4 * j, 4), lambda j: j * 4 * KB, buf, 4, {0: VL16})

    def k4(self):
        A = self.A
        name = 'mix2_kernel'
        self.begin(name, 256)
        self.small_setup(W2)
        acc, buf = 16, 32
        A(f's_lshl_b32 s26, s16, 4')
        A(f'v_and_b32 v4, 15, {v(VLANE)}')
        A(f'v_add_u32 v4, s26, v4')
        A(f'v_and_b32 v5, 0x300, {v(VL16)}')
        A(f'v_mov_b32 v7, {OOB}')
        A(f's_movk_i32 s27, 2048')
        for gi, d in enumerate((-1, 1, -2, 2)):
            A(f'v_add_u32 v6, {d}, v4')
            A(f'v_cmp_gt_u32 vcc, s27, v6')
            A(f'v_lshrrev_b32 v3, 4, v6')
            A(f'v_lshl_add_u32 v3, v3, 14, v5')
            A(f'v_and_b32 v6, 15, v6')
            A(f'v_lshl_add_u32 v3, v6, 4, v3')
            A(f'v_cndmask_b32 {v(96 + gi)}, v7, v3, vcc')
        A(f's_mov_b32 s18, {H}')
        A(f's_lshl_b32 s26, s16, 10')
        A(f's_add_u32 s26, s26, {STA}')
        A(f's_add_u32 s27, s24, {XA}')
        A('s_waitcnt lgkmcnt(0)')
        self.stamp()
        self.ld(v(8, 4), 26)
        self.ld(v(buf, 4), 27)
        m_small = self.ld(v(buf + 4, 4), 27, KB)
        marks = self.small_issue(lambda c, jj: (18, jj * KB, 96 + c), [18])
        self.stats_voff(100)
        self.stamp()
        A.wait(vm=m_small)
        self.stamp()
        self.stats_consume(8, 3)
        self.rstd(9, 9)
        A('v_mul_f32 v8, v8, v9')
        self.unpack(acc, buf, 8)
        for i in range(0, 16, 2):
            A(f'v_pk_fma_f32 {v(acc + i, 2)}, {v(acc + i, 2)}, v[8:9], v[8:9] op_sel:[0,1,0] op_sel_hi:[1,1,0] neg_lo:[0,0,1] neg_hi:[0,0,1]')
        self.small_main(marks, acc, buf)
        self.store_tile(acc, buf, X1, ST1, 100)
        self.end(name)
        return (name, 256, 64 * KB)

    def k6(self, final):
        A = self.A
        name = 'down_out_kernel' if final else 'down_kernel'
        self.begin(name, 256)
        if final:
            A(f's_load_dwordx2 {s(SRD2, 2)}, s[0:1], 72')
            A(f's_mov_b32 {s(SRD2 + 2)}, {2048 * 512 * 2}')
            A(f's_mov_b32 {s(SRD2 + 3)}, 0x00020000')
        self.small_setup(W4, KS=56)
        acc, buf = 16, 32
        NS = 8
        A(f's_mul_i32 s18, s16, {56 * KB}')
        A(f's_add_u32 s18, s18, {G}')
        A(f's_add_u32 s26, s24, {XA}')
        A(f's_add_u32 s27, s24, {X1}')
        A(f'v_add_u32 v4, 0x10000, {v(VL16)}')
        A('s_waitcnt lgkmcnt(0)')
        self.stamp()
        self.ld(v(buf, 4), 26)
        self.ld(v(buf + 4, 4), 26, KB)
        self.ld(v(buf + 8, 4), 27)
        m_small = self.ld(v(buf + 12, 4), 27, KB)
        marks = []

        def issue(c):
            sl = c % NS
            A(f's_add_u32 s23, s21, {sl * 16 * KB}')
            self.dma_kstep(4, 20, 23, 22)
            for jj in range(4):
                self.ld(a((4 * sl + jj) * 4, 4), 18, jj * KB)
            marks.append(A.vmark())
            if c < 13:
                A(f's_add_u32 s20, s20, {16 * KB}')
                A(f's_add_u32 s18, s18, {4 * KB}')
        for c in range(7):
            issue(c)
        if final:
            A(f'v_and_b32 v5, 15, {v(VLANE)}')
            A(f'v_lshlrev_b32 v5, 10, v5')
            A(f'v_bfe_u32 v3, {v(VLANE)}, 4, 1')
            A(f'v_lshl_add_u32 v5, v3, 5, v5')
            A(f'v_lshrrev_b32 v3, 5, {v(VLANE)}')
            A(f'v_lshl_add_u32 v5, v3, 4, v5')
            A(f's_lshl_b32 s28, s16, 14')
            A(f's_lshl_b32 s29, s17, 7')
            A(f's_add_u32 s28, s28, s29')
        else:
            self.stats_voff(5)
        self.stamp()
        A.wait(vm=m_small)
        self.stamp()
        self.unpack(acc, buf, 8)
        self.unpack(buf + 16, buf + 8, 8)
        for i in range(0, 16, 2):
            A(f'v_pk_add_f32 {v(acc + i, 2)}, {v(acc + i, 2)}, {v(buf + 16 + i, 2)}')
        for c in range(14):
            if c in (0, 3, 13):
                self.stamp()
            A.wait(vm=marks[c])
            A('s_barrier')
            if c in (0, 1, 2, 3, 7, 13):
                self.stamp()
            if c + 7 < 14:
                issue(c + 7)
            sl = c % NS
            self.gemm_chunk(list(range(4 * sl, 4 * sl + 4)), 1, 4, acc,
                            lambda mt, j: a(4 * j, 4), lambda j: j * 4 * KB, buf, 4, {0: VL16, 1: 4})
        if final:
            self.pack(buf, acc, 8)
            for q in range(2):
                b = buf + 4 * q
                A(f'v_permlane16_swap_b32 {v(b)}, {v(b + 2)}')
                A(f'v_permlane16_swap_b32 {v(b + 1)}, {v(b + 3)}')
            for q in range(2):
                self.st(v(buf + 4 * q, 4), 28, 64 * q, voff=5, srd=SRD2)
        else:
            self.store_tile(acc, buf, X0, ST0, 5)
        self.end(name)
        return (name, 256, NS * 16 * KB)

    def build(self, header):
        k0 = self.k0()
        k1 = self.k1()
        k2 = self.k2()
        k3 = self.k3()
        k4 = self.k4()
        k5 = self.k5()
        k6a = self.k6(False)
        k6b = self.k6(True)
        seq = [k0, k1, k2, k3, k4, k5, k6a, k1, k2, k3, k4, k5, k6b]
        out = [header]
        for n, g, lds in seq:
            out.append(f'; @launch kernel={n} grid=({g},1,1) block=(256,1,1) lds={lds}')
        out.append('.amdgcn_target "amdgcn-amd-amdhsa--gfx950"')
        out.append('.text')
        out.append(self.A.text())
        out.append('.section .rodata,"a"')
        for n, nv, accum, ns in self.kernels:
            out.append('.p2align 6')
            out.append(f'.amdhsa_kernel {n}')
            out.append(f'  .amdhsa_next_free_vgpr {nv}')
            out.append(f'  .amdhsa_next_free_sgpr {max(ns, 16)}')
            out.append(f'  .amdhsa_accum_offset {accum}')
            out.append('  .amdhsa_group_segment_fixed_size 0')
            out.append('  .amdhsa_kernarg_size 96')
            out.append('  .amdhsa_user_sgpr_count 2')
            out.append('  .amdhsa_user_sgpr_kernarg_segment_ptr 1')
            out.append('  .amdhsa_system_sgpr_workgroup_id_x 1')
            out.append('  .amdhsa_float_denorm_mode_32 3')
            out.append('.end_amdhsa_kernel')
        return '\n'.join(out) + '\n'


def header():
    ref = open(f'cdna_kernels/{NAME}.s.ref').read().split('\n')
    h = []
    for l in ref:
        if not l.startswith(';') or '@launch' in l or 'Override launch' in l or 'grid=ceil' in l:
            break
        h.append(l)
    return '\n'.join(h)


if __name__ == '__main__':
    g = Gen()
    g.prof = 'prof' in sys.argv
    txt = g.build(header())
    out = sys.argv[1] if len(sys.argv) > 1 else f'cdna_kernels/{NAME}.s'
    open(out, 'w').write(txt)
    import json
    json.dump(LAYOUT, open('layout.json', 'w'))
    for k in g.kernels:
        print(k)
    print('nops inserted', g.A.nops, 'ws used', WS_USED)
```

```python
import sys, json
import gen as G1
from gen import Gen, KB, NAME, f32, LOG2E, OOB, SRD, SW, SRD2, VL16, VLANE, header
from asmlib import v, a, s

OPT = set(sys.argv[2:])

_off = 0
def _alloc(n):
    global _off
    r = _off
    _off += (n + 4095) // 4096 * 4096
    return r
WQKV = _alloc(1536 * KB); WO = _alloc(512 * KB); W1 = _alloc(512 * KB); W2 = _alloc(512 * KB)
W3 = _alloc(1792 * KB); W4 = _alloc(1792 * KB)
CSQ = _alloc(16 * KB); CS1 = _alloc(8 * KB); CS3 = _alloc(16 * KB); DUMMY = _alloc(4 * KB)
ZR = _alloc(512 * KB)
ZSTRIDE = 128 * KB
KV = ZR
Z = KV + 64 * KB
XT = ZR + 96 * KB
CSH = 11
CB = ZR + 256 * KB
C_X, C_O, C_XA, C_H, C_X1, C_G, C_KV = [CB + 128 * i for i in range(7)]
CSTRIDE = 1024
P0 = _off
X0 = _alloc(2048 * KB); ST0 = _alloc(128 * KB); OB = _alloc(2048 * KB)
XA = _alloc(2048 * KB); STA = _alloc(128 * KB); H = _alloc(2048 * KB)
X1 = _alloc(2048 * KB); ST1 = _alloc(128 * KB); G = _alloc(7168 * KB)
PSTRIDE = _off - P0
_alloc(PSTRIDE)
DBG = _alloc(16 * 512 * 128 * 2)
WS_USED = _off
LAYOUT = {k: val for k, val in globals().items() if k.isupper() and isinstance(val, int)}
for k_, v_ in LAYOUT.items():
    setattr(G1, k_, v_)

sT, sCG8, sT0, sCG16, sP, sPAIR, sZ, sTO = 16, 17, 18, 19, 20, 21, 22, 23
sTILE, sSTP, sC, sFAST, sFH = 24, 25, 44, 45, 46
sF8, sF16 = 47, 48
VB64, VB128, VSTL, VL4, VONE, VP2 = 4, 5, 6, 7, 8, 9
VMR = 10
RES = 16
FREE = 32
MODE_LDS = 159 * KB


class Rec:
    def __init__(self):
        self.l = []

    def __call__(self, t):
        self.l.append(t)


class Gen3(Gen):
    persist = False
    DS = 8
    D4 = 10
    DB = 6

    def rec(self, fn):
        keep = self.A
        self.A = Rec()
        fn()
        l = self.A.l
        self.A = keep
        return l

    def ldx(self, dst, soff, ioff=0, voff=VL16, w=4, sc=None):
        o = f' offset:{ioff}' if ioff else ''
        wn = {1: 'dword', 2: 'dwordx2', 4: 'dwordx4'}[w]
        if sc is None:
            sc = '' if 'ldplain' in OPT else ' nt' if 'ldnt' in OPT else ' sc0' if 'ldsc0' in OPT else ' sc1'
        self.A(f'buffer_load_{wn} {dst}, {v(voff)}, {s(SRD, 4)}, {s(soff)} offen{o}{sc}')
        return self.A.vmark()

    def stores(self, lst, fast=sFAST):
        A = self.A
        Ls, Ld = A.newlabel('sts'), A.newlabel('std')

        def emit(sc):
            for src, soff, ioff, voff, w, ex in lst:
                o = f' offset:{ioff}' if ioff else ''
                wn = {1: 'dword', 2: 'dwordx2', 4: 'dwordx4'}[w]
                if ex:
                    A(f's_mov_b64 exec, {ex}')
                A(f'buffer_store_{wn} {src}, {v(voff)}, {s(SRD, 4)}, {s(soff)} offen{o}{sc}')
                if ex:
                    A('s_mov_b64 exec, -1')
        A(f's_cmp_eq_u32 {s(fast)}, 0')
        A(f's_cbranch_scc1 {Ls}')
        vm0 = A.vm
        emit(' nt' if 'stnt' in OPT else ' sc0' if 'stsc0' in OPT else ' sc1' if ('datasc1' in OPT and lst[0][4] != 1) else '')
        A(f's_branch {Ld}')
        A.label(Ls)
        A.vm = vm0
        emit(' sc1')
        A.label(Ld)

    def pstamp(self):
        if not self.prof:
            return
        A = self.A
        assert A.lg == A.lg_done
        i = self.nstamp
        self.nstamp += 1
        A('s_memtime s[60:61]')
        A('s_waitcnt lgkmcnt(0)')
        A(f'v_writelane_b32 v12, s60, {i}')

    def poll(self, sbase, voff, n, target=1, mode='auto', ioff=0):
        A = self.A
        assert A.lg == A.lg_done
        L, LS, LC, D = A.newlabel('poll'), A.newlabel('polls'), A.newlabel('pollc'), A.newlabel('polld')
        o = f' offset:{ioff}' if ioff else ''
        A(f's_mov_b64 exec, {(1 << n) - 1:#x}' if n < 32 else 's_mov_b32 exec_hi, 0')
        A.label(L)
        if mode == 'auto':
            A(f's_cmp_eq_u32 {s(sFAST)}, 0')
            A(f's_cbranch_scc1 {LS}')
            A(f'buffer_load_dword v3, {v(voff)}, {s(SRD, 4)}, {s(sbase)} offen{o} sc1')
            A(f's_branch {LC}')
            A.label(LS)
        A('v_mov_b32 v3, 0')
        A(f'buffer_atomic_add v3, {v(voff)}, {s(SRD, 4)}, {s(sbase)} offen{o} sc0')
        A.label(LC)
        A('s_waitcnt vmcnt(0)')
        A.vm_done = A.vm
        A(f'v_cmp_le_u32 vcc, {target}, v3')
        A('s_cmp_eq_u64 vcc, exec')
        A(f's_cbranch_scc1 {D}')
        A(f's_sub_u32 {s(sTO)}, {s(sTO)}, 1')
        A(f's_cbranch_scc1 {self.exit}')
        A(f's_branch {L}')
        A.label(D)
        A('s_mov_b64 exec, -1')

    def flag(self, sbase, ioff, two=False, fast=sFAST):
        self.pstamp()
        self.A.wait_all(lg=False)
        self.stores([(v(VONE), sbase, ioff, VP2, 1, '0x101' if two else '1')], fast)
        self.pstamp()

    def gemm(self, KS, MT, NT, acc, xreg, ldsoff, buf, NB, xwait, hook=None, preread=None, fill=(), czero=False, fill0=1):
        A = self.A
        vbase = {0: VL16, 1: VB64, 2: VB128}
        fill = list(fill)

        def read(j, t):
            if t == 0 and preread:
                preread(j)
            off = ldsoff(j) + t * KB
            A(f'ds_read_b128 {v(buf + ((j % NB) * NT + t) * 4, 4)}, {v(vbase[off >> 16])} offset:{off & 0xffff}')
            return A.lmark()
        marks = {}
        pre = NB
        while pre * NT > 14:
            pre -= 1
        for j in range(pre):
            for t in range(NT):
                marks[(j, t)] = read(j, t)
        nxt = [(j, t) for j in range(pre, KS) for t in range(NT)]
        for j in range(KS):
            for t in range(NT):
                A.wait(vm=xwait(j) if t == 0 else None, lg=marks[(j, t)])
                for mt in range(MT):
                    r = acc + (mt * NT + t) * 4
                    c = '0' if (czero and j == 0) else v(r, 4)
                    A(f'v_mfma_f32_16x16x32_bf16 {v(r, 4)}, {v(buf + ((j % NB) * NT + t) * 4, 4)}, {xreg(mt, j)}, {c}')
                    if fill and j >= fill0:
                        A(fill.pop(0))
                if nxt:
                    j2, t2 = nxt[0]
                    if (j2 - NB, t2) <= (j, t):
                        marks[(j2, t2)] = read(j2, t2)
                        nxt.pop(0)
                if hook:
                    hook(j, t)
        assert not nxt and not fill, (len(fill))

    def cs_dma(self, CS, scg, NT):
        A = self.A
        A(f's_lshl_b32 s40, {s(scg)}, 10')
        A(f's_add_u32 s40, s40, {CS}')
        A(f's_lshl_b32 s41, {s(SW)}, 10')
        A(f's_add_u32 m0, s41, {NT * 16 * KB}')
        self.dma(40)

    def cs_read(self, NT, cs, tmp):
        A = self.A
        A(f's_lshl_b32 s41, {s(SW)}, 10')
        A(f's_add_u32 s41, s41, {NT * 16 * KB}')
        A(f'v_and_b32 v3, 0x30, {v(VLANE)}')
        A(f'v_add_u32 v3, s41, v3')
        for t in range(NT):
            A(f'ds_read_b128 {v(cs + 4 * t, 4)}, v3 offset:{t * 64}')
            A(f'ds_read_b128 {v(tmp + 4 * t, 4)}, v3 offset:{NT * 64 + t * 64}')
        A.wait_all(vm=False)
        for i in range(0, 4 * NT, 2):
            A(f'v_pk_add_f32 {v(cs + i, 2)}, {v(cs + i, 2)}, {v(tmp + i, 2)}')

    def ln_fix(self, acc, n, cs, mean):
        for i in range(0, n, 2):
            self.A(f'v_pk_fma_f32 {v(acc + i, 2)}, {v(cs + i, 2)}, {v(mean, 2)}, {v(acc + i, 2)} op_sel_hi:[1,0,1] neg_lo:[0,1,0] neg_hi:[0,1,0]')

    def ld_stats(self, dst, soff, ioff=0):
        self.ldx(v(dst, 2), soff, ioff, voff=VSTL, w=2)
        return self.ldx(v(dst + 2, 2), soff, ioff + 128, voff=VSTL, w=2)

    def stats_calc(self, acc, n, tmp):
        A = self.A
        S, Q = tmp, tmp + 2
        A(f'v_pk_add_f32 {v(S, 2)}, {v(acc, 2)}, {v(acc + 2, 2)}')
        A(f'v_pk_mul_f32 {v(Q, 2)}, {v(acc, 2)}, {v(acc, 2)}')
        for i in range(2, n, 2):
            if i >= 4:
                A(f'v_pk_add_f32 {v(S, 2)}, {v(S, 2)}, {v(acc + i, 2)}')
            A(f'v_pk_fma_f32 {v(Q, 2)}, {v(acc + i, 2)}, {v(acc + i, 2)}, {v(Q, 2)}')
        A(f'v_add_f32 {v(S)}, {v(S)}, {v(S + 1)}')
        A(f'v_add_f32 {v(S + 1)}, {v(Q)}, {v(Q + 1)}')
        Q = S + 1
        A(f'v_permlane32_swap_b32 {v(S)}, {v(Q)}')
        A(f'v_add_f32 {v(S)}, {v(S)}, {v(Q)}')
        A(f'v_mov_b32 {v(Q)}, {v(S)}')
        A(f'v_permlane16_swap_b32 {v(S)}, {v(Q)}')
        A(f'v_add_f32 {v(S)}, {v(S)}, {v(Q)}')
        A(f'v_mov_b32 {v(Q)}, {v(S)}')
        A(f'v_permlane32_swap_b32 {v(S)}, {v(Q)}')

    def store_tile(self, acc, tmp, DST, STD, nextpair=False):
        A = self.A
        self.pack(tmp, acc, 8)
        add = PSTRIDE if nextpair else 0
        A(f's_add_u32 s26, {s(sTILE)}, {DST + add}')
        A(f's_add_u32 s27, {s(sSTP)}, {STD + add}')
        self.stores([(v(tmp, 4), 26, 0, VL16, 4, None), (v(tmp + 4, 4), 26, KB, VL16, 4, None)])
        self.stats_calc(acc, 16, tmp + 8)
        self.stores([(v(tmp + 8, 2), 27, 0, VSTL, 2, '0xffff')])

    def big_pre(self, XIN, STIN):
        A = self.A
        A(f's_lshl_b32 s26, {s(sT0)}, 14')
        A(f's_add_u32 s26, s26, {s(sP)}')
        A(f's_add_u32 s26, s26, {XIN}')
        A(f's_add_u32 s27, s26, {16 * KB}')
        A(f's_lshl_b32 s28, {s(sT0)}, 10')
        A(f's_add_u32 s28, s28, {s(sP)}')
        A(f's_add_u32 s28, s28, {STIN}')
        A(f's_lshl_b32 s29, {s(sT0)}, {CSH}')
        A(f's_add_u32 s29, s29, {s(sC)}')

    def big_main(self, NT, acc, buf, XR, ST, fill):
        A = self.A
        D, RING = self.DB, 8
        sX, sX2 = 26, 27
        xm = {}

        def xload(j, mt):
            xm[j] = self.ldx(v(XR + ((j % RING) * 2 + mt) * 4, 4), sX2 if mt else sX, (j & 3) * KB)
            if (j & 3) == 3 and j < 15:
                r = sX2 if mt else sX
                A(f's_add_u32 {s(r)}, {s(r)}, {4 * KB}')
        for j in range(D):
            xload(j, 0)
            xload(j, 1)
            if j == 1:
                self.ld_stats(ST, 28)
                self.ld_stats(ST + 4, 28, KB)
        self.pstamp()
        A('s_barrier')
        self.pstamp()

        def hook(j, t):
            if j + D < 16:
                if t == 1:
                    xload(j + D, 0)
                if t == 4:
                    xload(j + D, 1)
        self.gemm(16, 2, NT, acc, lambda mt, j: v(XR + ((j % RING) * 2 + mt) * 4, 4), lambda j: j * NT * KB,
                  buf, 2, lambda j: xm[j], hook, fill=fill, czero=True, fill0=2)
        A('s_barrier')
        self.pstamp()

    def small_main(self, KS, acc, buf, XR, RING, D, src, fill=(), czero=False, extra=None, ldso=None, hook2=None, preread=None):
        A = self.A
        xm = {}

        def xload(j):
            so, io, vo = src(j)
            xm[j] = self.ldx(v(XR + (j % RING) * 4, 4), so, io, voff=vo)
            if (j & 3) == 3 and j < KS - 1:
                A(f's_add_u32 {s(so)}, {s(so)}, {4 * KB}')
        for j in range(D):
            xload(j)
            if j == 1 and extra:
                extra()
        A('s_barrier')
        self.pstamp()

        def hook(j, t):
            if t == 1 and j + D < KS:
                xload(j + D)
            if hook2:
                hook2(j, t)
        self.gemm(KS, 1, 4, acc, lambda mt, j: v(XR + 4 * (j % RING), 4), ldso or (lambda j: j * 4 * KB), buf, 4,
                  lambda j: xm[j], hook, preread, fill=fill, czero=czero, fill0=2)
        A('s_barrier')
        self.pstamp()

    def stage_qkv(self):
        A = self.A
        NT = 6
        ST, CC, acc, buf, XR, CS = 32, 40, 64, 112, 160, 224
        SCR, RSZ = 100 * KB, 336
        self.cs_read(NT, CS, buf)
        self.big_pre(X0, ST0)
        A(f'v_lshrrev_b32 v14, 4, {v(VLANE)}')
        A(f'v_and_b32 v15, 15, {v(VLANE)}')
        A(f's_mul_i32 s30, {s(SW)}, {32 * RSZ}')
        A(f's_add_u32 s30, s30, {SCR}')
        A(f'v_mul_u32_u24 v45, {RSZ}, v15')
        A(f'v_add_u32 v45, s30, v45')
        A(f'v_lshl_add_u32 v46, v14, 3, v45')
        A(f'v_lshl_add_u32 v44, v14, 4, v45')
        A(f'v_lshl_add_u32 v45, v14, 6, v45')
        A(f'v_bfe_u32 v3, {v(VLANE)}, 2, 2')
        A(f'v_lshl_add_u32 v3, v14, 3, v3')
        A(f'v_mul_u32_u24 v47, {RSZ}, v3')
        A(f'v_and_b32 v3, 3, {v(VLANE)}')
        A(f's_lshr_b32 s30, {s(SW)}, 1')
        A(f's_and_b32 s31, {s(SW)}, 1')
        A(f's_lshl_b32 s32, s30, 6')
        A(f's_lshl_b32 s33, s31, 3')
        A(f's_add_u32 s32, s32, s33')
        A(f's_add_u32 s32, s32, {SCR + 128}')
        A(f'v_lshl_add_u32 v48, v3, 4, v47')
        A(f'v_add_u32 v48, s32, v48')
        A(f's_lshl_b32 s32, s30, 5')
        A(f's_add_u32 s32, s32, {SCR + 256}')
        A(f'v_lshl_add_u32 v49, v3, 3, v47')
        A(f'v_add_u32 v49, s32, v49')
        A(f's_lshl_b32 s42, {s(sCG16)}, 12')
        A(f's_add_u32 s42, s42, {s(sZ)}')
        A(f's_add_u32 s42, s42, {KV}')
        A(f's_lshl_b32 s32, {s(SW)}, 10')
        A(f's_add_u32 s32, s32, s42')
        A(f's_lshl_b32 s43, {s(sCG16)}, 8')
        A(f's_add_u32 s43, s43, {s(sZ)}')
        A(f's_add_u32 s43, s43, {Z}')
        A(f's_lshl_b32 s33, s30, 7')
        A(f's_add_u32 s33, s33, s43')
        A(f's_lshl_b32 s31, s31, 4')
        A(f's_add_u32 s33, s33, s31')
        A(f'v_lshlrev_b32 v50, 5, v14')
        A(f'v_lshl_add_u32 v51, v15, 2, v50')
        A(f'v_mov_b32 v3, {OOB}')
        A(f'v_cmp_gt_u32 vcc, 4, v15')
        A(f'v_cndmask_b32 v51, v3, v51, vcc')
        A(f'v_cmp_eq_u32 s[34:35], 1, v15')
        A(f'v_cmp_eq_u32 s[36:37], 2, v15')
        A(f'v_cmp_eq_u32 s[38:39], 3, v15')
        for i in range(4):
            A(f'v_mov_b32 {v(52 + i)}, 0x3f803f80')
            A(f'v_mov_b32 {v(56 + i)}, {f32(1e-6)}')
        Lskip = A.newlabel('nopoll')
        A(f's_cmp_eq_u32 {s(sPAIR)}, 0')
        A(f's_cbranch_scc1 {Lskip}')
        A(f's_add_u32 s29, s29, {C_X}')
        self.poll(29, VP2, 16)
        A.label(Lskip)
        self.pstamp()

        def f():
            for mt in range(2):
                self.stats_consume(ST + 4 * mt, 3)
                self.rstd(CC + 1 + 2 * mt, ST + 4 * mt + 1)
                self.A(f'v_mul_f32 {v(CC + 2 * mt)}, {f32(LOG2E)}, {v(CC + 1 + 2 * mt)}')
        self.big_main(NT, acc, buf, XR, ST, self.rec(f))
        Lm = A.newlabel('mode')
        A(f's_cmp_eq_u32 {s(sPAIR)}, 0')
        A(f's_cbranch_scc0 {Lm}')
        A(f'v_mov_b32 v3, {MODE_LDS}')
        A('ds_read_b32 v3, v3')
        A.wait_all(vm=False)
        A(f'v_readfirstlane_b32 {s(sFAST)}, v3')
        A(f's_add_u32 s30, {s(sT)}, 1')
        A(f's_and_b32 s30, s30, 15')
        A(f's_cmp_le_u32 s30, 1')
        A(f's_cselect_b32 {s(sFH)}, 0, {s(sFAST)}')
        A.label(Lm)
        EP, EM, PK, M = 160, 176, 192, 208
        for mt in range(2):
            P = acc + mt * 24
            cc = CC + 2 * mt
            self.ln_fix(P, 24, CS, ST + 4 * mt)
            for hh in range(2):
                r = P + 16 + 4 * hh
                for i in (0, 2):
                    A(f'v_pk_mul_f32 {v(r + i, 2)}, {v(r + i, 2)}, {v(cc, 2)} op_sel:[0,1] op_sel_hi:[1,1]')
                self.pack(M + 8 + 2 * hh, r, 2)
                A(f'ds_write_b64 v46, {v(M + 8 + 2 * hh, 2)} offset:{mt * 16 * RSZ + 256 + 32 * hh}')
            for op, d in (('max', M), ('min', M + 1)):
                A(f'v_{op}3_f32 {v(d)}, {v(P)}, {v(P + 1)}, {v(P + 2)}')
                for i in range(3, 15, 2):
                    A(f'v_{op}3_f32 {v(d)}, {v(d)}, {v(P + i)}, {v(P + i + 1)}')
                A(f'v_{op}_f32 {v(d)}, {v(d)}, {v(P + 15)}')
            A(f'v_pk_mul_f32 {v(M, 2)}, {v(M, 2)}, {v(cc, 2)} op_sel_hi:[1,0]')
            for i in range(0, 16, 2):
                A(f'v_pk_fma_f32 {v(EP + i, 2)}, {v(P + i, 2)}, {v(cc, 2)}, {v(M, 2)} op_sel_hi:[1,0,0] neg_lo:[0,0,1] neg_hi:[0,0,1]')
                A(f'v_pk_fma_f32 {v(EM + i, 2)}, {v(P + i, 2)}, {v(cc, 2)}, {v(M, 2)} op_sel:[0,0,1] op_sel_hi:[1,0,1] neg_lo:[0,1,0] neg_hi:[0,1,0]')
            for i in range(32):
                A(f'v_exp_f32 {v(EP + i)}, {v(EP + i)}')
            for E, d in ((EP, M + 2), (EM, M + 4)):
                A(f'v_pk_add_f32 {v(d, 2)}, {v(E, 2)}, {v(E + 2, 2)}')
                for i in range(4, 16, 2):
                    A(f'v_pk_add_f32 {v(d, 2)}, {v(d, 2)}, {v(E + i, 2)}')
            A(f'v_add_f32 {v(M + 2)}, {v(M + 2)}, {v(M + 3)}')
            A(f'v_add_f32 {v(M + 3)}, {v(M + 4)}, {v(M + 5)}')
            A(f'v_rcp_f32 {v(M + 2)}, {v(M + 2)}')
            A(f'v_rcp_f32 {v(M + 3)}, {v(M + 3)}')
            for i in range(0, 16, 2):
                A(f'v_pk_mul_f32 {v(EP + i, 2)}, {v(EP + i, 2)}, {v(M + 2, 2)} op_sel_hi:[1,0]')
                A(f'v_pk_mul_f32 {v(EM + i, 2)}, {v(EM + i, 2)}, {v(M + 2, 2)} op_sel:[0,1] op_sel_hi:[1,1]')
            pk = PK if mt == 0 else acc
            for t in range(4):
                self.pack(pk + 4 * t, EP + 4 * t, 2)
                self.pack(pk + 4 * t + 2, EM + 4 * t, 2)
                A(f'ds_write_b128 v45, {v(pk + 4 * t, 4)} offset:{mt * 16 * RSZ + 16 * t}')
        A.wait_all(vm=False)
        self.pstamp()
        A('s_barrier')
        TA, TB = 112, 128
        for ks in range(4):
            for u2 in range(2):
                off = (32 * ks + 4 * u2) * RSZ
                A(f'ds_read_b64_tr_b16 {v(TA + 4 * ks + 2 * u2, 2)}, v48 offset:{off}')
                A(f'ds_read_b64_tr_b16 {v(TB + 4 * ks + 2 * u2, 2)}, v49 offset:{off}')
            if ks == 2:
                A.wait(lg=A.lmark() - 8)
        base = A.lmark() - 16
        KVA, ZA = 144, 148
        for ks in range(4):
            A.wait(lg=base + 4 * ks + 4)
            A(f'v_mfma_f32_16x16x32_bf16 {v(KVA, 4)}, {v(TA + 4 * ks, 4)}, {v(TB + 4 * ks, 4)}, {"0" if ks == 0 else v(KVA, 4)}')
            A(f'v_mfma_f32_16x16x32_bf16 {v(ZA, 4)}, {v(TA + 4 * ks, 4)}, v[52:55], {"0" if ks == 0 else v(ZA, 4)}')
        for r in range(4):
            o = f' offset:{256 * r}' if r else ''
            A(f'buffer_atomic_add_f32 {v(KVA + r)}, {v(VL4)}, {s(SRD, 4)}, s32 offen{o}')
        A(f'v_cndmask_b32 {v(ZA)}, {v(ZA)}, {v(ZA + 1)}, s[34:35]')
        A(f'v_cndmask_b32 {v(ZA)}, {v(ZA)}, {v(ZA + 2)}, s[36:37]')
        A(f'v_cndmask_b32 {v(ZA)}, {v(ZA)}, {v(ZA + 3)}, s[38:39]')
        A(f'buffer_atomic_add_f32 {v(ZA)}, v51, {s(SRD, 4)}, s33 offen')
        PQ = 160
        for mt in range(2):
            for hh in range(2):
                A(f'ds_read_b128 {v(PQ + 8 * mt + 4 * hh, 4)}, v44 offset:{mt * 16 * RSZ + 64 * hh}')
        A(f's_lshl_b32 s30, {s(sCG16)}, {CSH + 2}')
        A(f's_add_u32 s30, s30, {s(sC)}')
        A(f's_add_u32 s30, s30, {C_KV}')
        A(f's_lshl_b32 s31, {s(SW)}, {CSH}')
        A(f's_add_u32 s31, s31, s30')
        A(f'v_lshlrev_b32 v13, {CSH}, {v(VLANE)}')
        A(f's_lshl_b32 s26, {s(sT0)}, 14')
        A(f's_lshl_b32 s27, {s(sCG16)}, 10')
        A(f's_add_u32 s26, s26, s27')
        A(f's_add_u32 s26, s26, {s(sP)}')
        A(f's_add_u32 s26, s26, {OB}')
        A(f's_add_u32 s27, s26, {16 * KB}')
        A.wait_all(vm=False)
        self.pstamp()
        A.wait_all()
        A('s_mov_b64 exec, 1')
        A(f'buffer_atomic_add {v(VONE)}, {v(VL4)}, {s(SRD, 4)}, s31 offen')
        A('s_mov_b64 exec, -1')
        self.pstamp()
        self.poll(30, 13, 4, target=16, mode='atomic')
        self.pstamp()
        KF, ZF = 64, 80
        for i in range(16):
            self.ldx(v(KF + i), 42, 256 * i, voff=VL4, w=1, sc=' sc1')
        for hh in range(2):
            for u in range(2):
                self.ldx(v(ZF + 8 * hh + 4 * u, 4), 43, 128 * hh + 16 * u, voff=50, sc=' sc1')
        A.wait(vm=A.vmark() - 4)
        self.pack(96, KF, 8)
        A.wait_all()
        self.pack(104, ZF, 8)
        ND = 112
        for mt in range(2):
            for hh in range(2):
                d = ND + 16 * mt + 8 * hh
                A(f'v_mfma_f32_16x16x32_bf16 {v(d + 4, 4)}, {v(104 + 4 * hh, 4)}, {v(PQ + 8 * mt + 4 * hh, 4)}, v[56:59]')
                A(f'v_mfma_f32_16x16x32_bf16 {v(d, 4)}, {v(96 + 4 * hh, 4)}, {v(PQ + 8 * mt + 4 * hh, 4)}, 0')
        for q in range(4):
            A(f'v_rcp_f32 {v(ND + 8 * q + 4)}, {v(ND + 8 * q + 4)}')
        for q in range(4):
            d = ND + 8 * q
            for i in (0, 2):
                A(f'v_pk_mul_f32 {v(d + i, 2)}, {v(d + i, 2)}, {v(d + 4, 2)} op_sel_hi:[1,0]')
            self.pack(144 + 2 * q, d, 2)
        self.stores([(v(144, 4), 26, 0, VL16, 4, None), (v(148, 4), 27, 0, VL16, 4, None)])
        self.flag(sF16, C_O - CB, two=True)

    def small_pre(self, XIN, mul=16):
        A = self.A
        A(f's_mul_i32 s26, {s(sT)}, {mul * KB}')
        A(f's_add_u32 s26, s26, {s(sP)}')
        A(f's_add_u32 s26, s26, {XIN}')
        A(f's_lshl_b32 s29, {s(sT)}, {CSH}')
        A(f's_add_u32 s29, s29, {s(sC)}')
        A(f's_add_u32 s29, s29, {CB}')

    def stage_wo(self):
        A = self.A
        buf, XR = 64, 128
        self.small_pre(OB)
        self.poll(29, VL4, 16, ioff=C_O - CB)
        self.pstamp()
        self.small_main(16, RES, buf, XR, 16, self.DS, lambda j: (26, (j & 3) * KB, VL16))
        self.cs_dma(CS1, sCG8, 4)
        self.store_tile(RES, buf, XA, STA)
        self.flag(sF8, C_XA - CB)

    def stage_w1(self):
        A = self.A
        ST, K, acc, buf, XR, CS = 32, 40, 48, 64, 128, 192
        self.cs_read(4, CS, buf)
        self.small_pre(XA)
        A(f's_lshl_b32 s27, {s(sT)}, 10')
        A(f's_add_u32 s27, s27, {s(sP)}')
        A(f's_add_u32 s27, s27, {STA}')
        self.poll(29, VL4, 8, ioff=C_XA - CB)
        self.pstamp()

        def f():
            A = self.A
            self.stats_consume(ST, 3)
            self.rstd(VMR + 1, ST + 1)
            A(f'v_mul_f32 {v(VMR)}, {v(ST)}, {v(VMR + 1)}')
            A(f'v_mul_f32 v14, {v(VMR + 1)}, {v(VMR + 1)}')
            A(f'v_mul_f32 v14, v14, {v(ST + 1)}')
            self.rstd(14, 14)
            A(f'v_mul_f32 v14, v14, {v(VMR + 1)}')
            self.gelu_consts(K, 14)
        self.small_main(16, acc, buf, XR, 16, self.DS, lambda j: (26, (j & 3) * KB, VL16), fill=self.rec(f), czero=True,
                        extra=lambda: self.ld_stats(ST, 27))
        self.ln_fix(acc, 16, CS, ST)
        self.gelu(acc, 16, K, buf, buf + 16)
        A(f's_add_u32 s26, {s(sTILE)}, {H}')
        self.stores([(v(buf + 16, 4), 26, 0, VL16, 4, None), (v(buf + 20, 4), 26, KB, VL16, 4, None)], sFH)
        self.flag(sF8, C_H - CB, fast=sFH)

    def stage_w2(self):
        A = self.A
        acc, buf, XR = 48, 64, 128
        A(f's_lshl_b32 s26, {s(sT)}, 4')
        A(f'v_and_b32 v13, 15, {v(VLANE)}')
        A(f'v_add_u32 v13, s26, v13')
        A(f'v_and_b32 v14, 0x300, {v(VL16)}')
        A(f'v_mov_b32 v15, {OOB}')
        A(f's_movk_i32 s27, 2048')
        for gi, d in enumerate((-1, 1, -2, 2)):
            A(f'v_add_u32 v36, {d}, v13')
            A(f'v_cmp_gt_u32 vcc, s27, v36')
            A(f'v_lshrrev_b32 v3, 4, v36')
            A(f'v_lshl_add_u32 v3, v3, 14, v14')
            A(f'v_and_b32 v36, 15, v36')
            A(f'v_lshl_add_u32 v3, v36, 4, v3')
            A(f'v_cndmask_b32 {v(FREE + gi)}, v15, v3, vcc')
        A(f's_add_u32 s26, {s(sP)}, {H}')
        A(f'v_and_b32 v13, 2, {v(VLANE)}')
        A(f'v_add_u32 v13, -1, v13')
        A(f'v_bfe_u32 v14, {v(VLANE)}, 3, 1')
        A(f'v_mul_i32_i24 v13, v13, v14')
        A(f'v_add_u32 v13, {s(sT)}, v13')
        A(f'v_max_i32 v13, 0, v13')
        A(f'v_min_i32 v13, 0x7f, v13')
        A(f'v_and_b32 v14, 0x1c, {v(VL4)}')
        A(f'v_lshl_add_u32 v13, v13, {CSH}, v14')
        A(f's_add_u32 s29, {s(sC)}, {C_H}')
        for i in range(0, 16, 2):
            A(f'v_pk_fma_f32 {v(acc + i, 2)}, {v(RES + i, 2)}, {v(VMR, 2)}, {v(VMR, 2)} op_sel:[0,1,0] op_sel_hi:[1,1,0] neg_lo:[0,0,1] neg_hi:[0,0,1]')
        self.poll(29, 13, 16)
        self.pstamp()
        self.small_main(16, acc, buf, XR, 16, self.DS, lambda j: (26, (j & 3) * KB, FREE + (j >> 2)))
        self.cs_dma(CS3, sCG16, 7)
        self.store_tile(acc, buf, X1, ST1)
        for i in range(0, 16, 2):
            A(f'v_pk_add_f32 {v(RES + i, 2)}, {v(RES + i, 2)}, {v(acc + i, 2)}')
        self.flag(sF8, C_X1 - CB)

    def stage_w3(self):
        A = self.A
        NT = 7
        ST, K, acc, buf, XR, CS = 32, 40, 48, 104, 160, 224
        self.cs_read(NT, CS, buf)
        self.big_pre(X1, ST1)
        A(f's_add_u32 s29, s29, {C_X1}')
        A(f's_mul_i32 s30, {s(sT0)}, {56 * KB}')
        A(f's_add_u32 s30, s30, {s(sP)}')
        A(f's_add_u32 s30, s30, {G}')
        A(f's_lshl_b32 s32, {s(sCG16)}, 9')
        A(f's_add_u32 s32, s32, s30')
        A(f's_add_u32 s32, s32, {48 * KB}')
        A(f's_mul_i32 s31, {s(sCG16)}, {3 * KB}')
        A(f's_add_u32 s30, s30, s31')
        A(f's_add_u32 s31, s30, {56 * KB}')
        A(f'v_bfe_u32 v3, {v(VLANE)}, 4, 1')
        A(f'v_mul_u32_u24 v13, {56 * KB}, v3')
        A(f'v_lshrrev_b32 v3, 5, {v(VLANE)}')
        A(f'v_lshl_add_u32 v13, v3, 8, v13')
        A(f'v_and_b32 v3, 0xf0, {v(VL16)}')
        A(f'v_add_u32 v13, v13, v3')
        self.poll(29, VP2, 16)
        self.pstamp()

        def f():
            for mt in range(2):
                self.stats_consume(ST + 4 * mt, 3)
                self.rstd(14, ST + 4 * mt + 1)
                self.gelu_consts(K + 4 * mt, 14)
        self.big_main(NT, acc, buf, XR, ST, self.rec(f))
        for mt in range(2):
            P = acc + 28 * mt
            self.ln_fix(P, 28, CS, ST + 4 * mt)
            out = 160 + 12 * mt
            self.gelu(P, 28, K + 4 * mt, buf, None)
            self.pack(out, buf, 12)
            self.pack(184 + 2 * mt, buf + 24, 2)
            lst = [(v(out + 4 * q, 4), 30 + mt, q * KB, VL16, 4, None) for q in range(3)]
            if mt == 1:
                A('v_permlane16_swap_b32 v184, v186')
                A('v_permlane16_swap_b32 v185, v187')
                lst.append((v(184, 4), 32, 0, 13, 4, None))
            self.stores(lst)
        self.flag(sF16, C_G - CB, two=True)

    def stage_w4(self, Lfinal):
        A = self.A
        buf, XR = 64, 128
        self.small_pre(G, 56)
        self.poll(29, VL4, 16, ioff=C_G - CB)
        self.pstamp()

        def hook2(j, t):
            if j == 15 and t == 3:
                A('s_barrier')

        def preread(j):
            if j == 40:
                A('s_barrier')
        self.small_main(56, RES, buf, XR, 24, self.D4, lambda j: (26, (j & 3) * KB, VL16),
                        ldso=lambda j: (j % 40) * 4 * KB, hook2=hook2, preread=preread)
        A(f's_cmp_eq_u32 {s(sPAIR)}, 1')
        A(f's_cbranch_scc1 {Lfinal}')
        self.cs_dma(CSQ, sCG16, 6)
        self.store_tile(RES, buf, X0, ST0, nextpair=True)
        self.flag(sF8, C_X - CB + CSTRIDE)

    def dump2(self):
        if not self.prof:
            return
        A = self.A
        A(f's_lshl_b32 s55, s2, 2')
        A(f's_add_u32 s55, s55, {s(SW)}')
        A(f's_lshl_b32 s55, s55, 1')
        A(f's_add_u32 s55, s55, {s(sPAIR)}')
        A(f's_lshl_b32 s55, s55, 8')
        A(f's_add_u32 s55, s55, {DBG + 512 * 128}')
        A(f'v_writelane_b32 v12, {s(sFAST)}, 61')
        A(f'buffer_store_dword v12, {v(VL4)}, {s(SRD, 4)}, s55 offen')

    def loader(self):
        A = self.A
        sLW, sWs, sM = 26, 27, 28
        A(f's_sub_u32 {s(sLW)}, {s(SW)}, 4')
        A('s_getreg_b32 s30, hwreg(HW_REG_XCC_ID)')
        A('s_add_u32 s30, s30, 1')
        A('s_and_b32 s31, s2, 7')
        A('s_lshl_b32 s31, s31, 7')
        A(f's_add_u32 s31, s31, {XT}')
        A('s_lshr_b32 s32, s2, 3')
        A('s_lshl_b32 s32, s32, 2')
        A('s_add_u32 s32, s32, s31')
        A('v_mov_b32 v10, s30')
        A('s_mov_b64 exec, 1')
        A(f'buffer_store_dword v10, {v(VL4)}, {s(SRD, 4)}, s32 offen sc1')
        A('s_mov_b64 exec, -1')
        L = A.newlabel('lloop')
        A.label(L)

        def load(WP, NT, KS_tot, scg, c0, c1):
            A(f's_mul_i32 {s(sM)}, {s(sLW)}, {NT * KB}')
            A(f's_mul_i32 {s(sWs)}, {s(scg)}, {NT * KS_tot * KB}')
            A(f's_add_u32 {s(sWs)}, {s(sWs)}, {s(sM)}')
            A(f's_add_u32 {s(sWs)}, {s(sWs)}, {WP + c0 * 4 * NT * KB}')
            if 'hotw' in OPT:
                A(f's_add_u32 {s(sWs)}, {s(sM)}, {WO}')
            for c in range(c0, c1):
                if 'now' in OPT:
                    break
                self.dma_kstep(NT, sWs, sM, 29)
                if c < c1 - 1:
                    A(f's_add_u32 {s(sWs)}, {s(sWs)}, {4 * NT * KB}')
                    A(f's_add_u32 {s(sM)}, {s(sM)}, {4 * NT * KB}')

        def ready():
            A.wait_all()
            A('s_barrier')
        load(WQKV, 6, 16, sCG16, 0, 4)
        ready()
        Ln = A.newlabel('nochk')
        A(f's_or_b32 s33, {s(sPAIR)}, {s(sLW)}')
        A(f's_cmp_lg_u32 s33, 0')
        A(f's_cbranch_scc1 {Ln}')
        self.poll(31, VL4, 32, mode='atomic')
        A('s_mov_b32 exec_hi, 0')
        A('v_cmp_eq_u32 vcc, s30, v3')
        A('s_cmp_eq_u64 vcc, exec')
        A(f's_cselect_b32 s33, {0 if "slow" in OPT else 1}, 0')
        A('s_mov_b64 exec, -1')
        A('v_mov_b32 v10, s33')
        A(f'v_mov_b32 v11, {MODE_LDS}')
        A('ds_write_b32 v11, v10')
        A.wait_all()
        A.label(Ln)
        A('s_barrier')
        load(WO, 4, 16, sCG8, 0, 4)
        A('s_barrier')
        ready()
        A('s_barrier')
        load(W1, 4, 16, sCG8, 0, 4)
        ready()
        A('s_barrier')
        load(W2, 4, 16, sCG8, 0, 4)
        ready()
        A('s_barrier')
        load(W3, 7, 16, sCG16, 0, 4)
        ready()
        A('s_barrier')
        load(W4, 4, 56, sCG8, 0, 10)
        ready()
        A('s_barrier')
        load(W4, 4, 56, sCG8, 10, 14)
        ready()
        A('s_barrier')
        A(f's_add_u32 {s(sPAIR)}, {s(sPAIR)}, 1')
        A(f's_cmp_lt_u32 {s(sPAIR)}, 2')
        A(f's_cbranch_scc1 {L}')
        A('s_endpgm')

    def main(self):
        A = self.A
        name = 'main_kernel'
        prof = self.prof
        self.prof = False
        self.begin(name, 256)
        self.prof = prof
        A(f's_load_dwordx2 {s(SRD2, 2)}, s[0:1], 72')
        A(f's_mov_b32 {s(SRD2 + 2)}, {2048 * 512 * 2}')
        A(f's_mov_b32 {s(SRD2 + 3)}, 0x00020000')
        self.tile64(sT, sCG8)
        self.tile128(sT0, sCG16)
        A(f's_mov_b32 {s(sPAIR)}, 0')
        A(f's_mov_b32 {s(sTO)}, 0x40000')
        A(f'v_lshlrev_b32 {v(VL4)}, 2, {v(VLANE)}')
        LC = A.newlabel('compute')
        A(f's_cmp_lt_u32 {s(SW)}, 4')
        A('s_waitcnt lgkmcnt(0)')
        A(f's_cbranch_scc1 {LC}')
        self.loader()
        A.label(LC)
        A.flush_hazards()
        A.vm = A.vm_done = A.lg = A.lg_done = 0
        if 'noprio' not in OPT:
            A('s_setprio 3')
        self.cs_dma(CSQ, sCG16, 6)
        A(f's_mov_b32 {s(sP)}, 0')
        A(f's_mov_b32 {s(sZ)}, 0')
        A(f's_mov_b32 {s(sC)}, 0')
        A(f's_mov_b32 {s(sFAST)}, 0')
        A(f's_mov_b32 {s(sFH)}, 0')
        A(f's_lshl_b32 {s(sT)}, {s(sT)}, 2')
        A(f's_add_u32 {s(sT)}, {s(sT)}, {s(SW)}')
        A(f's_lshl_b32 {s(sT0)}, {s(sT0)}, 3')
        A(f's_lshl_b32 s26, {s(SW)}, 1')
        A(f's_add_u32 {s(sT0)}, {s(sT0)}, s26')
        A(f's_lshl_b32 {s(sTILE)}, {s(sT)}, 14')
        A(f's_lshl_b32 s26, {s(sCG8)}, 11')
        A(f's_add_u32 {s(sTILE)}, {s(sTILE)}, s26')
        A(f's_lshl_b32 {s(sSTP)}, {s(sT)}, 10')
        A(f's_lshl_b32 s26, {s(sCG8)}, 7')
        A(f's_add_u32 {s(sSTP)}, {s(sSTP)}, s26')
        for f, t, c in ((sF8, sT, sCG8), (sF16, sT0, sCG16)):
            A(f's_lshl_b32 {s(f)}, {s(t)}, {CSH}')
            A(f's_lshl_b32 s26, {s(c)}, 2')
            A(f's_add_u32 {s(f)}, {s(f)}, s26')
            A(f's_add_u32 {s(f)}, {s(f)}, {CB}')
        A(f's_add_u32 s26, {s(sTILE)}, {X0}')
        self.ldx(v(56, 4), 26)
        self.ldx(v(60, 4), 26, KB)
        A(f'v_add_u32 {v(VB64)}, 0x10000, {v(VL16)}')
        A(f'v_add_u32 {v(VB128)}, 0x20000, {v(VL16)}')
        A(f'v_and_b32 {v(VSTL)}, 0x300, {v(VL16)}')
        A(f'v_and_b32 v3, 15, {v(VLANE)}')
        A(f'v_lshl_add_u32 {v(VSTL)}, v3, 3, {v(VSTL)}')
        A(f'v_mov_b32 {v(VONE)}, 1')
        A(f'v_lshrrev_b32 {v(VP2)}, 3, {v(VLANE)}')
        A(f'v_and_b32 v3, 0x1c, {v(VL4)}')
        A(f'v_lshl_add_u32 {v(VP2)}, {v(VP2)}, {CSH}, v3')
        A('v_mov_b32 v12, 0')
        A.wait_all()
        self.unpack(RES, 56, 8)
        Lp = A.newlabel('pair')
        Lfinal = A.newlabel('final')
        A.label(Lp)
        self.nstamp = 0
        if self.prof:
            A('s_memrealtime s[60:61]')
            A('s_waitcnt lgkmcnt(0)')
            A('v_writelane_b32 v12, s60, 63')
        self.pstamp()
        self.stage_qkv()
        self.stage_wo()
        self.stage_w1()
        self.stage_w2()
        self.stage_w3()
        self.stage_w4(Lfinal)
        self.dump2()
        A(f's_mov_b32 {s(sPAIR)}, 1')
        A(f's_mov_b32 {s(sP)}, {PSTRIDE}')
        A(f's_mov_b32 {s(sZ)}, {ZSTRIDE}')
        A(f's_mov_b32 {s(sC)}, {CSTRIDE}')
        A(f's_add_u32 {s(sTILE)}, {s(sTILE)}, {PSTRIDE}')
        A(f's_add_u32 {s(sSTP)}, {s(sSTP)}, {PSTRIDE}')
        A(f's_add_u32 {s(sF8)}, {s(sF8)}, {CSTRIDE}')
        A(f's_add_u32 {s(sF16)}, {s(sF16)}, {CSTRIDE}')
        A(f's_branch {Lp}')
        A.label(Lfinal)
        buf = 64
        A(f'v_and_b32 v13, 15, {v(VLANE)}')
        A(f'v_lshlrev_b32 v13, 10, v13')
        A(f'v_bfe_u32 v3, {v(VLANE)}, 4, 1')
        A(f'v_lshl_add_u32 v13, v3, 5, v13')
        A(f'v_lshrrev_b32 v3, 5, {v(VLANE)}')
        A(f'v_lshl_add_u32 v13, v3, 4, v13')
        A(f's_lshl_b32 s28, {s(sT)}, 14')
        A(f's_lshl_b32 s29, {s(sCG8)}, 7')
        A(f's_add_u32 s28, s28, s29')
        self.pack(buf, RES, 8)
        for q in range(2):
            b = buf + 4 * q
            A(f'v_permlane16_swap_b32 {v(b)}, {v(b + 2)}')
            A(f'v_permlane16_swap_b32 {v(b + 1)}, {v(b + 3)}')
        for q in range(2):
            self.st(v(buf + 4 * q, 4), 28, 64 * q, voff=13, srd=SRD2)
        if self.prof:
            A('s_memrealtime s[60:61]')
            A('s_waitcnt lgkmcnt(0)')
            A('v_writelane_b32 v12, s60, 62')
        self.dump2()
        prof = self.prof
        self.prof = False
        self.end(name)
        self.prof = prof
        return (name, 256, 160 * KB, 512)

    def build(self, hdr):
        self.zero_all = True
        k0 = self.k0() + (256,)
        km = self.main()
        out = [hdr]
        for n, g, lds, blk in (k0, km):
            out.append(f'; @launch kernel={n} grid=({g},1,1) block=({blk},1,1) lds={lds}')
        out.append('.amdgcn_target "amdgcn-amd-amdhsa--gfx950"')
        out.append('.text')
        out.append(self.A.text())
        out.append('.section .rodata,"a"')
        for n, nv, accum, ns in self.kernels:
            assert nv <= 256
            out.append('.p2align 6')
            out.append(f'.amdhsa_kernel {n}')
            out.append(f'  .amdhsa_next_free_vgpr {nv}')
            out.append(f'  .amdhsa_next_free_sgpr {max(ns, 16)}')
            out.append(f'  .amdhsa_accum_offset {accum}')
            out.append('  .amdhsa_group_segment_fixed_size 0')
            out.append('  .amdhsa_kernarg_size 96')
            out.append('  .amdhsa_user_sgpr_count 2')
            out.append('  .amdhsa_user_sgpr_kernarg_segment_ptr 1')
            out.append('  .amdhsa_system_sgpr_workgroup_id_x 1')
            out.append('  .amdhsa_float_denorm_mode_32 3')
            out.append('.end_amdhsa_kernel')
        return '\n'.join(out) + '\n'


if __name__ == '__main__':
    g = Gen3()
    g.prof = 'prof' in OPT
    txt = g.build(header())
    out = sys.argv[1]
    if out == '-':
        out = f'cdna_kernels/{NAME}.s'
    open(out, 'w').write(txt)
    json.dump(LAYOUT, open('layout.json', 'w'))
    for k in g.kernels:
        print(k)
    print('nops inserted', g.A.nops, 'ws used', WS_USED, 'stamps', g.nstamp)
```

```python
import struct
import sys
from asmlib import Asm, v, a, s

KB = 1024
NAME = 'interleave_layers__linear_kernel_hedgehog__mixer_s_mlp__prompt'

_off = 0
def _alloc(n):
    global _off
    r = _off
    _off += (n + 4095) // 4096 * 4096
    return r
WQKV = _alloc(1536 * KB)
WO = _alloc(512 * KB)
W1 = _alloc(512 * KB)
W2 = _alloc(512 * KB)
W3 = _alloc(1792 * KB)
W4 = _alloc(1792 * KB)
CSQ = _alloc(16 * KB)
CS1 = _alloc(8 * KB)
CS3 = _alloc(16 * KB)
DUMMY = _alloc(4 * KB)
KV = _alloc(68 * KB)
Z = KV + 64 * KB
X0 = _alloc(2048 * KB)
ST0 = _alloc(128 * KB)
PHI = _alloc(4096 * KB)
XA = _alloc(2048 * KB)
STA = _alloc(128 * KB)
H = _alloc(2048 * KB)
X1 = _alloc(2048 * KB)
ST1 = _alloc(128 * KB)
G = _alloc(7168 * KB)
DBG = _alloc(16 * 512 * 128)
WS_USED = _off
LAYOUT = {k: val for k, val in globals().items() if k.isupper() and isinstance(val, int)}

OOB = 0x7FFFFFF0


def f32(x):
    return '0x%08x' % struct.unpack('<I', struct.pack('<f', x))[0]


LOG2E = 1.4426950408889634
GC1 = -2.0 * 0.7978845608028654 * LOG2E
GC2 = GC1 * 0.044715

SRD = 4
SW = 8
SRD2 = 12
VL16 = 1
VLANE = 2


class Gen:
    def __init__(self):
        self.A = Asm()
        self.kernels = []
        self.launches = []
        self.prof = False
        self.kidx = 0

    def stamp(self):
        if not self.prof:
            return
        A = self.A
        assert A.lg == A.lg_done, 'stamp with LDS ops outstanding'
        i = self.nstamp
        self.nstamp += 1
        A(f's_memtime {s(60 + 2 * i, 2)}')
        A('s_waitcnt lgkmcnt(0)')

    def dump_stamps(self):
        if not self.prof:
            return
        A = self.A
        A('s_waitcnt lgkmcnt(0)')
        A.lg_done = A.lg
        self.stamp()
        A('s_waitcnt vmcnt(0)')
        self.stamp()
        A('s_memrealtime s[58:59]')
        A('s_getreg_b32 s55, hwreg(HW_REG_XCC_ID)')
        A('s_waitcnt lgkmcnt(0)')
        A('s_mov_b64 exec, -1')
        A('v_mov_b32 v3, 0')
        A('v_writelane_b32 v3, s56, 0')
        A('v_writelane_b32 v3, s58, 1')
        A('v_writelane_b32 v3, s55, 2')
        for i in range(self.nstamp):
            A(f'v_writelane_b32 v3, {s(60 + 2 * i)}, {4 + i}')
        A(f'v_lshlrev_b32 v4, 2, {v(VLANE)}')
        A(f'v_mov_b32 v5, {OOB}')
        A(f'v_cmp_gt_u32 vcc, 32, v0')
        A(f'v_cndmask_b32 v4, v5, v4, vcc')
        A(f's_lshl_b32 s55, s2, 7')
        A(f's_add_u32 s55, s55, {DBG + self.kidx * 512 * 128}')
        A(f'buffer_store_dword v3, v4, {s(SRD, 4)}, s55 offen')

    def begin(self, name, nwg):
        A = self.A
        A.reset_kernel()
        A.raw('.p2align 8')
        A.raw(f'.globl {name}')
        A.raw(f'.type {name},@function')
        A.label(name)
        self.exit = A.newlabel('exit')
        A(f's_cmp_ge_u32 s2, {nwg}')
        A(f's_cbranch_scc1 {self.exit}')
        self.nstamp = 0
        if self.prof:
            A('s_memrealtime s[56:57]')
        self.stamp()
        A(f's_load_dwordx2 {s(SRD, 2)}, s[0:1], 88')
        A(f'v_and_b32 {v(VLANE)}, 63, v0')
        A(f'v_lshrrev_b32 v3, 6, v0')
        A(f'v_lshlrev_b32 {v(VL16)}, 4, {v(VLANE)}')
        A(f'v_readfirstlane_b32 {s(SW)}, v3')
        A(f's_mov_b32 {s(SRD + 2)}, {WS_USED}')
        A(f's_mov_b32 {s(SRD + 3)}, 0x00020000')

    def end(self, name):
        A = self.A
        self.dump_stamps()
        self.kidx += 1
        A.label(self.exit)
        A('s_endpgm')
        nv = A.maxv + 1
        accum = (nv + 3) // 4 * 4
        total = accum + (A.maxa + 1) if A.maxa >= 0 else nv
        self.kernels.append((name, total, accum, A.maxs + 1))

    def tile64(self, srb, scg):
        A = self.A
        A(f's_and_b32 {s(srb)}, s2, 7')
        A(f's_lshl_b32 {s(srb)}, {s(srb)}, 2')
        A(f's_lshr_b32 {s(scg)}, s2, 6')
        A(f's_add_u32 {s(srb)}, {s(srb)}, {s(scg)}')
        A(f's_bfe_u32 {s(scg)}, s2, 0x30003')

    def tile128(self, srb, scg):
        A = self.A
        A(f's_and_b32 {s(srb)}, s2, 7')
        A(f's_lshl_b32 {s(srb)}, {s(srb)}, 1')
        A(f's_lshr_b32 {s(scg)}, s2, 7')
        A(f's_add_u32 {s(srb)}, {s(srb)}, {s(scg)}')
        A(f's_bfe_u32 {s(scg)}, s2, 0x40003')

    def ld(self, dst, soff, ioff=0, voff=VL16, srd=SRD):
        o = f' offset:{ioff}' if ioff else ''
        self.A(f'buffer_load_dwordx4 {dst}, {v(voff)}, {s(srd, 4)}, {s(soff)} offen{o}')
        return self.A.vmark()

    def dma(self, soff, ioff=0, voff=VL16, srd=SRD):
        o = f' offset:{ioff}' if ioff else ''
        self.A(f'buffer_load_dwordx4 {v(voff)}, {s(srd, 4)}, {s(soff)} offen{o} lds')
        return self.A.vmark()

    def st(self, src, soff, ioff=0, voff=VL16, srd=SRD, w=4):
        o = f' offset:{ioff}' if ioff else ''
        wn = {1: 'dword', 2: 'dwordx2', 4: 'dwordx4'}[w]
        self.A(f'buffer_store_{wn} {src}, {v(voff)}, {s(srd, 4)}, {s(soff)} offen{o}{getattr(self, "stsfx", "")}')

    def dma_kstep(self, NT, sW, sM, stmp):
        A = self.A
        A(f's_mov_b32 m0, {s(sM)}')
        for t in range(min(NT, 4)):
            self.dma(sW, t * KB)
        if NT > 4:
            A(f's_add_u32 m0, {s(sM)}, 4096')
            A(f's_add_u32 {s(stmp)}, {s(sW)}, 4096')
            for t in range(4, NT):
                self.dma(stmp, (t - 4) * KB)

    def stats_consume(self, st, tmp):
        A = self.A
        S, Q = st, st + 1
        A(f'v_pk_add_f32 {v(st, 2)}, {v(st, 2)}, {v(st + 2, 2)}')
        A(f'v_permlane32_swap_b32 {v(S)}, {v(Q)}')
        A(f'v_add_f32 {v(S)}, {v(S)}, {v(Q)}')
        A(f'v_mov_b32 {v(Q)}, {v(S)}')
        A(f'v_permlane16_swap_b32 {v(S)}, {v(Q)}')
        A(f'v_add_f32 {v(S)}, {v(S)}, {v(Q)}')
        A(f'v_mov_b32 {v(Q)}, {v(S)}')
        A(f'v_permlane32_swap_b32 {v(S)}, {v(Q)}')
        A(f'v_mul_f32 {v(S)}, {f32(1 / 512)}, {v(S)}')
        A(f'v_mul_f32 {v(Q)}, {f32(1 / 512)}, {v(Q)}')
        A(f'v_fma_f32 {v(Q)}, -{v(S)}, {v(S)}, {v(Q)}')
        A(f'v_max_f32 {v(Q)}, 0, {v(Q)}')

    def rstd(self, dst, var):
        A = self.A
        A(f'v_add_f32 {v(dst)}, {f32(1e-5)}, {v(var)}')
        A(f'v_rsq_f32 {v(dst)}, {v(dst)}')

    def stats_produce(self, acc, n, tmp, soff, voff):
        A = self.A
        S, Q = tmp, tmp + 2
        A(f'v_pk_add_f32 {v(S, 2)}, {v(acc, 2)}, {v(acc + 2, 2)}')
        A(f'v_pk_mul_f32 {v(Q, 2)}, {v(acc, 2)}, {v(acc, 2)}')
        for i in range(2, n, 2):
            if i >= 4:
                A(f'v_pk_add_f32 {v(S, 2)}, {v(S, 2)}, {v(acc + i, 2)}')
            A(f'v_pk_fma_f32 {v(Q, 2)}, {v(acc + i, 2)}, {v(acc + i, 2)}, {v(Q, 2)}')
        A(f'v_add_f32 {v(S)}, {v(S)}, {v(S + 1)}')
        A(f'v_add_f32 {v(Q)}, {v(Q)}, {v(Q + 1)}')
        A(f'v_permlane32_swap_b32 {v(S)}, {v(Q)}')
        A(f'v_add_f32 {v(S)}, {v(S)}, {v(Q)}')
        A(f'v_mov_b32 {v(Q)}, {v(S)}')
        A(f'v_permlane16_swap_b32 {v(S)}, {v(Q)}')
        A(f'v_add_f32 {v(S)}, {v(S)}, {v(Q)}')
        self.st(v(S), soff, voff=voff, w=1)

    def stats_voff(self, dst):
        A = self.A
        A(f'v_and_b32 {v(dst)}, 0xf0, {v(VL16)}')
        A(f'v_lshrrev_b32 v3, 5, {v(VLANE)}')
        A(f'v_lshl_or_b32 {v(dst)}, v3, 2, {v(dst)}')

    def unpack(self, dst, src, n):
        A = self.A
        for i in range(n):
            A(f'v_lshlrev_b32 {v(dst + 2 * i)}, 16, {v(src + i)}')
            A(f'v_and_b32 {v(dst + 2 * i + 1)}, 0xffff0000, {v(src + i)}')

    def pack(self, dst, src, n):
        for i in range(n):
            self.A(f'v_cvt_pk_bf16_f32 {v(dst + i)}, {v(src + 2 * i)}, {v(src + 2 * i + 1)}')

    def gelu_consts(self, K, rs):
        A = self.A
        A(f'v_mul_f32 {v(K + 1)}, {v(rs)}, {v(rs)}')
        A(f'v_rcp_f32 {v(K + 2)}, {v(rs)}')
        A(f'v_mul_f32 {v(K)}, {f32(GC1)}, {v(rs)}')
        A(f'v_mul_f32 {v(K + 1)}, {v(K + 1)}, {v(rs)}')
        A(f'v_mul_f32 {v(K + 1)}, {f32(GC2)}, {v(K + 1)}')

    def gelu(self, acc, n, K, tmp, out):
        A = self.A
        P = range(0, n, 2)
        for i in P:
            A(f'v_pk_mul_f32 {v(tmp + i, 2)}, {v(acc + i, 2)}, {v(acc + i, 2)}')
        for i in P:
            A(f'v_pk_fma_f32 {v(tmp + i, 2)}, {v(tmp + i, 2)}, {v(K, 2)}, {v(K, 2)} op_sel:[0,1,0] op_sel_hi:[1,1,0]')
        for i in P:
            A(f'v_pk_mul_f32 {v(tmp + i, 2)}, {v(tmp + i, 2)}, {v(acc + i, 2)}')
        for i in range(n):
            A(f'v_exp_f32 {v(tmp + i)}, {v(tmp + i)}')
        for i in P:
            A(f'v_pk_fma_f32 {v(tmp + i, 2)}, {v(tmp + i, 2)}, {v(K + 2, 2)}, {v(K + 2, 2)} op_sel_hi:[1,0,0]')
        for i in range(n):
            A(f'v_rcp_f32 {v(tmp + i)}, {v(tmp + i)}')
        for i in P:
            A(f'v_pk_mul_f32 {v(tmp + i, 2)}, {v(tmp + i, 2)}, {v(acc + i, 2)}')
        if out is not None:
            self.pack(out, tmp, n // 2)

    def acc_init_ln(self, acc, NT, MT, means, ldsbase_v, tmp):
        A = self.A
        for t in range(NT):
            A(f'ds_read_b128 {v(tmp + 8 * t, 4)}, {v(ldsbase_v)} offset:{t * 64}')
            A(f'ds_read_b128 {v(tmp + 8 * t + 4, 4)}, {v(ldsbase_v)} offset:{NT * 64 + t * 64}')
        A.wait_all(vm=False)
        for t in range(NT):
            for i in (0, 2):
                A(f'v_pk_add_f32 {v(tmp + 8 * t + i, 2)}, {v(tmp + 8 * t + i, 2)}, {v(tmp + 8 * t + 4 + i, 2)}')
        for mt in range(MT):
            for t in range(NT):
                for i in (0, 2):
                    A(f'v_pk_mul_f32 {v(acc + (mt * NT + t) * 4 + i, 2)}, {v(tmp + 8 * t + i, 2)}, {v(means[mt], 2)} '
                      f'op_sel_hi:[1,0] neg_lo:[0,1] neg_hi:[0,1]')

    def gemm_chunk(self, js, MT, NT, acc, xreg, ldsoff, buf, NB, vbase):
        A = self.A

        def read(j, t, slot):
            off = ldsoff(j) + t * KB
            A(f'ds_read_b128 {v(buf + (slot * NT + t) * 4, 4)}, {v(vbase[off >> 16])} offset:{off & 0xffff}')
            return A.lmark()
        marks = {}
        pre = min(NB, len(js))
        while pre * NT > 15:
            pre -= 1
        for i in range(pre):
            for t in range(NT):
                marks[(i, t)] = read(js[i], t, i % NB)
        nxt = [(i, t) for i in range(pre, len(js)) for t in range(NT)]
        for i, j in enumerate(js):
            for t in range(NT):
                A.wait(lg=marks[(i, t)])
                for mt in range(MT):
                    r = acc + (mt * NT + t) * 4
                    A(f'v_mfma_f32_16x16x32_bf16 {v(r, 4)}, {v(buf + ((i % NB) * NT + t) * 4, 4)}, {xreg(mt, j)}, {v(r, 4)}')
                if nxt:
                    i2, t2 = nxt[0]
                    if (i2 - NB, t2) <= (i, t):
                        marks[(i2, t2)] = read(js[i2], t2, i2 % NB)
                        nxt.pop(0)
        assert not nxt

    def k0(self):
        A = self.A
        name = 'prep_kernel'
        self.begin(name, 272)
        LC = A.newlabel('k0c')
        LB = A.newlabel('k0b')
        LJ = A.newlabel('k0j')
        LS = A.newlabel('k0s')
        sArg, sRS, sSrc, sD, sJS, sCS, sQ, sKB, sT, sU, sIsB = 16, 17, 18, 19, 20, 21, 22, 23, 24, 25, 26
        if getattr(self, 'codepf', False):
            Lpc = A.newlabel('pc')
            A('s_getpc_b64 s[40:41]')
            A.label(Lpc)
            A(f'v_lshlrev_b32 v40, 7, {v(VLANE)}')
            A('global_load_dword v41, v40, s[40:41]')
            A('s_lshr_b32 s42, s2, 3')
            A('s_lshl_b32 s42, s42, 11')
            A(f's_min_u32 s42, s42, code_end-main_kernel-2048')
            A(f's_add_u32 s42, s42, main_kernel-{Lpc}')
            A('s_add_u32 s40, s40, s42')
            A('s_addc_u32 s41, s41, 0')
            A('v_and_b32 v40, 0x780, v40')
            A('global_load_dword v42, v40, s[40:41]')
        A(f's_mov_b32 {s(SRD2 + 3)}, 0x00020000')
        A('s_cmp_ge_u32 s2, 208')
        A(f's_cbranch_scc1 {LC}')
        labs = [A.newlabel('k0t') for _ in range(6)]
        A(f's_mov_b32 {s(sIsB)}, 0')
        A(f's_and_b32 {s(sKB)}, s2, 1')
        A('s_cmp_ge_u32 s2, 152')
        A(f's_cbranch_scc1 {labs[4]}')
        A('s_cmp_ge_u32 s2, 96')
        A(f's_cbranch_scc1 {labs[3]}')
        A('s_cmp_ge_u32 s2, 48')
        A(f's_cbranch_scc1 {labs[2]}')
        A(f's_load_dwordx2 {s(SRD2, 2)}, s[0:1], 8')
        A(f's_load_dwordx2 s[28:29], s[0:1], 16')
        A(f's_mov_b32 {s(SRD2 + 2)}, {512 * 1536 * 2}')
        A(f's_mov_b32 {s(sRS)}, 3072')
        A(f's_mov_b32 {s(sJS)}, 6144')
        A(f's_lshr_b32 {s(sQ)}, s2, 1')
        A(f's_and_b32 {s(sT)}, {s(sQ)}, 7')
        A(f's_lshl_b32 {s(sT)}, {s(sT)}, 2')
        A(f's_add_u32 {s(sT)}, {s(sT)}, {s(SW)}')
        A(f's_lshr_b32 {s(sU)}, {s(sT)}, 1')
        A(f's_mul_i32 {s(sD)}, {s(sU)}, {96 * KB}')
        A(f's_add_u32 {s(sD)}, {s(sD)}, {WQKV}')
        A(f's_lshl_b32 {s(sCS)}, {s(sU)}, 10')
        A(f's_add_u32 {s(sCS)}, {s(sCS)}, {CSQ}')
        A(f's_mul_i32 s27, {s(sKB)}, 384')
        A(f's_add_u32 {s(sCS)}, {s(sCS)}, s27')
        A(f's_and_b32 {s(sU)}, {s(sT)}, 1')
        A('s_cmp_ge_u32 s2, 32')
        A(f's_cbranch_scc1 {labs[1]}')
        A(f's_mov_b32 {s(sIsB)}, 1')
        A(f's_lshr_b32 s27, {s(sQ)}, 3')
        A(f's_lshl_b32 s27, s27, 1')
        A(f's_add_u32 {s(sU)}, {s(sU)}, s27')
        A(f's_lshl_b32 s27, {s(sU)}, 6')
        A(f's_add_u32 {s(sD)}, {s(sD)}, s27')
        A(f's_lshl_b32 s27, {s(sU)}, 4')
        A(f's_add_u32 {s(sCS)}, {s(sCS)}, s27')
        A(f's_branch {LJ}')
        A.label(labs[1])
        A(f's_add_u32 {s(sU)}, {s(sU)}, 4')
        A(f's_lshl_b32 s27, {s(sU)}, 10')
        A(f's_add_u32 {s(sD)}, {s(sD)}, s27')
        A(f's_lshl_b32 s27, {s(sU)}, 6')
        A(f's_add_u32 {s(sCS)}, {s(sCS)}, s27')
        A(f's_branch {LJ}')
        A.label(labs[2])
        A(f's_sub_u32 {s(sT)}, s2, 48')
        A(f's_lshr_b32 {s(sU)}, {s(sT)}, 4')
        A(f's_bfe_u32 {s(sQ)}, {s(sT)}, 0x30001')
        A(f's_lshl_b32 {s(sArg)}, {s(sU)}, 3')
        A(f's_add_u32 {s(sArg)}, {s(sArg)}, 32')
        A(f's_cmp_eq_u32 {s(sU)}, 0')
        A(f's_cselect_b32 {s(sArg)}, 24, {s(sArg)}')
        A(f's_load_dwordx2 {s(SRD2, 2)}, s[0:1], {s(sArg)}')
        A(f's_mov_b32 {s(SRD2 + 2)}, {512 * 512 * 2}')
        A(f's_mov_b32 {s(sRS)}, 1024')
        A(f's_mov_b32 {s(sJS)}, 4096')
        assert W1 == WO + 512 * KB and W2 == W1 + 512 * KB
        A(f's_lshl_b32 {s(sD)}, {s(sU)}, 19')
        A(f's_lshl_b32 s27, {s(sQ)}, 16')
        A(f's_add_u32 {s(sD)}, {s(sD)}, s27')
        A(f's_lshl_b32 s27, {s(SW)}, 10')
        A(f's_add_u32 {s(sD)}, {s(sD)}, s27')
        A(f's_add_u32 {s(sD)}, {s(sD)}, {WO}')
        A(f's_lshl_b32 {s(sCS)}, {s(sQ)}, 10')
        A(f's_lshl_b32 s27, {s(sKB)}, 8')
        A(f's_add_u32 {s(sCS)}, {s(sCS)}, s27')
        A(f's_lshl_b32 s27, {s(SW)}, 6')
        A(f's_add_u32 {s(sCS)}, {s(sCS)}, s27')
        A(f's_add_u32 {s(sCS)}, {s(sCS)}, {CS1}')
        A(f's_cmp_eq_u32 {s(sU)}, 1')
        A(f's_cselect_b32 {s(sCS)}, {s(sCS)}, {DUMMY}')
        A(f's_branch {LJ}')
        A.label(labs[3])
        A(f's_load_dwordx2 {s(SRD2, 2)}, s[0:1], 56')
        A(f's_mov_b32 {s(SRD2 + 2)}, {512 * 1792 * 2}')
        A(f's_mov_b32 {s(sRS)}, 3584')
        A(f's_mov_b32 {s(sJS)}, 7168')
        A(f's_sub_u32 {s(sQ)}, s2, 96')
        A(f's_lshr_b32 {s(sQ)}, {s(sQ)}, 1')
        A(f's_lshl_b32 {s(sT)}, {s(sQ)}, 2')
        A(f's_add_u32 {s(sT)}, {s(sT)}, {s(SW)}')
        for nt in range(96):
            assert (nt * 43) >> 8 == nt // 6
        A(f's_mul_i32 {s(sU)}, {s(sT)}, 43')
        A(f's_lshr_b32 {s(sU)}, {s(sU)}, 8')
        A(f's_mul_i32 s27, {s(sU)}, 6')
        A(f's_sub_u32 s27, {s(sT)}, s27')
        A(f's_sub_u32 s28, {s(sT)}, 96')
        A(f's_cmp_ge_u32 {s(sT)}, 96')
        A(f's_cselect_b32 {s(sU)}, s28, {s(sU)}')
        A(f's_cselect_b32 s27, 6, s27')
        A(f's_mul_i32 {s(sD)}, {s(sU)}, {112 * KB}')
        A(f's_lshl_b32 s28, s27, 10')
        A(f's_add_u32 {s(sD)}, {s(sD)}, s28')
        A(f's_add_u32 {s(sD)}, {s(sD)}, {W3}')
        A(f's_lshl_b32 {s(sCS)}, {s(sU)}, 10')
        A(f's_lshl_b32 s28, s27, 6')
        A(f's_add_u32 {s(sCS)}, {s(sCS)}, s28')
        A(f's_mul_i32 s28, {s(sKB)}, 448')
        A(f's_add_u32 {s(sCS)}, {s(sCS)}, s28')
        A(f's_add_u32 {s(sCS)}, {s(sCS)}, {CS3}')
        A(f's_branch {LJ}')
        A.label(labs[4])
        A(f's_load_dwordx2 {s(SRD2, 2)}, s[0:1], 64')
        A(f's_mov_b32 {s(SRD2 + 2)}, {512 * 1792 * 2}')
        A(f's_mov_b32 {s(sRS)}, 1024')
        A(f's_mov_b32 {s(sJS)}, 4096')
        A(f's_sub_u32 {s(sT)}, s2, 152')
        A(f's_and_b32 {s(sQ)}, {s(sT)}, 7')
        A(f's_lshr_b32 {s(sKB)}, {s(sT)}, 3')
        A(f's_mul_i32 {s(sD)}, {s(sQ)}, {224 * KB}')
        A(f's_lshl_b32 s27, {s(SW)}, 10')
        A(f's_add_u32 {s(sD)}, {s(sD)}, s27')
        A(f's_add_u32 {s(sD)}, {s(sD)}, {W4}')
        A(f's_mov_b32 {s(sCS)}, {DUMMY}')
        A.label(LJ)
        A.flush_hazards()
        A(f's_mul_i32 s27, {s(sKB)}, {s(sJS)}')
        A(f's_lshl_b32 s27, s27, 3')
        A(f's_add_u32 {s(sD)}, {s(sD)}, s27')
        A(f's_lshl_b32 s27, {s(sKB)}, 2')
        A(f's_add_u32 s27, s27, {s(SW)}')
        A(f's_lshl_b32 s27, s27, 6')
        A(f's_mul_i32 {s(sSrc)}, s27, {s(sRS)}')
        A(f's_lshl_b32 s27, {s(sQ)}, 7')
        A(f's_add_u32 {s(sSrc)}, {s(sSrc)}, s27')
        A(f'v_lshrrev_b32 v4, 3, {v(VLANE)}')
        A(f'v_mul_u32_u24 v4, {s(sRS)}, v4')
        A(f'v_lshrrev_b32 v5, 1, {v(VLANE)}')
        A(f'v_lshrrev_b32 v6, 4, {v(VLANE)}')
        A(f'v_xor_b32 v5, v5, v6')
        A(f'v_and_b32 v5, 3, v5')
        A(f'v_lshl_add_u32 v4, v5, 5, v4')
        A(f'v_and_b32 v5, 1, {v(VLANE)}')
        A(f'v_lshl_add_u32 v4, v5, 4, v4')
        A(f's_lshl_b32 s27, {s(SW)}, 13')
        A(f's_lshl_b32 s30, {s(sRS)}, 3')
        A('s_waitcnt lgkmcnt(0)')
        self.nstamp = 1
        self.stamp()
        for i in range(8):
            A(f's_add_u32 m0, s27, {i * KB}')
            self.dma(sSrc, 0, voff=4, srd=SRD2)
            if i < 7:
                A(f's_add_u32 {s(sSrc)}, {s(sSrc)}, s30')
        F = 16
        ONES = 8
        for i in range(4):
            A(f'v_mov_b32 {v(ONES + i)}, 0x3f803f80')
        A(f's_cmp_eq_u32 {s(sIsB)}, 1')
        A(f's_cbranch_scc1 {LB}')
        natb = 200 if getattr(self, 'zero_all', False) else 1000
        A(f's_cmp_ge_u32 s2, {natb}')
        A(f's_cselect_b32 s27, 8, 4')
        A(f's_cselect_b32 s30, 4, 16')
        A(f'v_lshrrev_b32 v6, 4, {v(VLANE)}')
        A(f'v_mul_u32_u24 v6, s27, v6')
        A(f'v_bfe_u32 v7, {v(VLANE)}, 2, 2')
        A(f'v_add_u32 v6, v6, v7')
        A(f'v_and_b32 v7, 3, {v(VLANE)}')
        A(f'v_lshlrev_b32 v7, 3, v7')
        for u, d in ((0, 5), (1, 14)):
            if u:
                A(f'v_add_u32 v6, s30, v6')
            A(f'v_lshrrev_b32 {v(d)}, 1, v6')
            A(f'v_xor_b32 {v(d)}, {s(SW)}, {v(d)}')
            A(f'v_and_b32 {v(d)}, 3, {v(d)}')
            A(f'v_lshl_add_u32 {v(d)}, {v(d)}, 5, v7')
            A(f'v_lshl_add_u32 {v(d)}, v6, 7, {v(d)}')
        A(f'v_mov_b32 v12, {v(VL16)}')
        A(f'v_lshrrev_b32 v13, 4, {v(VLANE)}')
        A(f'v_lshlrev_b32 v13, 4, v13')
        self.nstamp = 2
        self.stamp()
        A('s_waitcnt vmcnt(0)')
        A('s_barrier')
        self.stamp()
        for jj in range(8):
            for u in range(2):
                A(f'ds_read_b64_tr_b16 {v(F + 4 * jj + 2 * u, 2)}, {v(14 if u else 5)} offset:{jj * 4096}')
            if jj == 3:
                A.wait_all(vm=False)
        A.wait_all(vm=False)
        A(f's_branch {LS}')
        A.label(LB)
        A.flush_hazards()
        A(f's_mov_b32 s30, {32 * 16 * 16 * 2}')
        A(f's_mov_b32 s31, 0x00020000')
        A(f's_lshl_b32 {s(sT)}, {s(sT)}, 9')
        A(f's_lshl_b32 s27, {s(SW)}, 10')
        A(f's_add_u32 s27, s27, 32768')
        A(f's_mov_b32 m0, s27')
        self.dma(sT, 0, srd=28)
        A(f'v_lshrrev_b32 v5, 1, {v(VLANE)}')
        A(f'v_xor_b32 v5, {s(SW)}, v5')
        A(f'v_and_b32 v5, 3, v5')
        A(f'v_lshlrev_b32 v5, 5, v5')
        A(f'v_and_b32 v6, 15, {v(VLANE)}')
        A(f'v_lshl_add_u32 v5, v6, 7, v5')
        A(f'v_lshrrev_b32 v7, 4, {v(VLANE)}')
        A(f'v_lshl_add_u32 v5, v7, 3, v5')
        A(f'v_lshrrev_b32 v6, 2, v6')
        A(f'v_lshlrev_b32 v12, 10, v6')
        A(f'v_lshl_add_u32 v12, v7, 8, v12')
        A(f'v_and_b32 v6, 3, {v(VLANE)}')
        A(f'v_lshl_add_u32 v12, v6, 4, v12')
        A(f'v_lshlrev_b32 v13, 6, v7')
        A(f'v_lshlrev_b32 v6, 3, {v(VLANE)}')
        A(f'v_add_u32 v6, s27, v6')
        self.nstamp = 2
        self.stamp()
        A('s_waitcnt vmcnt(0)')
        A('s_barrier')
        self.stamp()
        A(f'ds_read_b64_tr_b16 v[14:15], v6')
        R = 48
        for half in range(2):
            for kt in range(8 * half, 8 * half + 8):
                A(f'ds_read_b64 {v(R + 2 * kt, 2)}, v5 offset:{kt * 2048}')
            A.wait_all(vm=False)
        C = 80
        for kt in range(16):
            A(f'v_mfma_f32_16x16x16_bf16 {v(C + 4 * kt, 4)}, {v(R + 2 * kt, 2)}, v[14:15], 0')
        self.pack(F, C, 32)
        A.label(LS)
        self.nstamp = 4
        self.stamp()
        A.flush_hazards()
        A('s_nop 1')
        for jj in range(8):
            self.st(v(F + 4 * jj, 4), sD, voff=12)
            src = '0' if jj == 0 else 'v[4:7]'
            A(f'v_mfma_f32_16x16x32_bf16 v[4:7], {v(F + 4 * jj, 4)}, {v(ONES, 4)}, {src}')
            if jj < 7:
                A(f's_add_u32 {s(sD)}, {s(sD)}, {s(sJS)}')
        A('s_mov_b32 exec_lo, 0x00010001')
        A('s_mov_b32 exec_hi, 0x00010001')
        self.st('v[4:7]', sCS, voff=13)
        self.dump_stamps()
        A('s_endpgm')
        A.label(LC)
        A.flush_hazards()
        A.vm = A.vm_done = A.lg = A.lg_done = 0
        A(f's_load_dwordx2 {s(SRD2, 2)}, s[0:1], 0')
        A(f's_mov_b32 {s(SRD2 + 2)}, {2048 * 512 * 2}')
        A(f's_sub_u32 {s(sU)}, s2, 208')
        if getattr(self, 'zero_all', False):
            A(f's_lshr_b32 s27, {s(sU)}, 3')
            A(f's_and_b32 {s(sU)}, {s(sU)}, 7')
            A(f's_lshl_b32 {s(sU)}, {s(sU)}, 3')
            A(f's_add_u32 {s(sU)}, {s(sU)}, s27')
        A(f's_lshl_b32 {s(sSrc)}, {s(sU)}, 2')
        A(f's_add_u32 {s(sSrc)}, {s(sSrc)}, {s(SW)}')
        A(f's_lshl_b32 {s(sSrc)}, {s(sSrc)}, 13')
        A(f's_mul_i32 s27, {s(SW)}, {8 * 1040}')
        A('s_waitcnt lgkmcnt(0)')
        self.nstamp = 1
        self.stamp()
        for i in range(8):
            A(f's_add_u32 m0, s27, {i * 1040}')
            self.dma(sSrc, 0, srd=SRD2)
            if i < 7:
                A(f's_add_u32 {s(sSrc)}, {s(sSrc)}, 1024')
        for i in range(4):
            A(f'v_mov_b32 {v(8 + i)}, 0')
        A(f'v_lshlrev_b32 v4, 4, v0')
        if getattr(self, 'zero_all', False):
            A(f's_lshl_b32 s28, {s(sU)}, 12')
        else:
            A(f'v_mov_b32 v5, {OOB}')
            A(f'v_cmp_gt_u32 vcc, 68, v0')
            A(f'v_cndmask_b32 v4, v5, v4, vcc')
            A(f's_mul_i32 s28, {s(sU)}, 1088')
        A(f's_add_u32 s28, s28, {KV}')
        self.st('v[8:11]', 28, voff=4)
        if getattr(self, 'zero_all', False):
            A(f's_add_u32 s28, s28, {256 * KB}')
            self.st('v[8:11]', 28, voff=4)
        A(f's_lshr_b32 {s(sT)}, {s(SW)}, 1')
        A(f's_and_b32 {s(sKB)}, {s(SW)}, 1')
        A(f's_mul_i32 s27, {s(sT)}, {16 * 1040}')
        A(f's_lshl_b32 s28, {s(sKB)}, 9')
        A(f's_add_u32 s27, s27, s28')
        A(f'v_and_b32 v5, 15, {v(VLANE)}')
        A(f'v_mul_u32_u24 v5, 1040, v5')
        A(f'v_lshrrev_b32 v6, 4, {v(VLANE)}')
        A(f'v_lshl_add_u32 v5, v6, 3, v5')
        A(f'v_add_u32 v5, s27, v5')
        A(f's_lshl_b32 {s(sU)}, {s(sU)}, 1')
        A(f's_add_u32 {s(sU)}, {s(sU)}, {s(sT)}')
        A(f's_lshl_b32 {s(sD)}, {s(sU)}, 14')
        A(f's_lshl_b32 s28, {s(sKB)}, 13')
        A(f's_add_u32 {s(sD)}, {s(sD)}, s28')
        A(f's_add_u32 {s(sD)}, {s(sD)}, {X0}')
        A(f's_add_u32 s29, {s(sD)}, 4096')
        A(f's_lshl_b32 {s(sCS)}, {s(sU)}, 10')
        A(f's_lshl_b32 s28, {s(sKB)}, {7 if getattr(self, "zero_all", False) else 3}')
        A(f's_add_u32 {s(sCS)}, {s(sCS)}, s28')
        A(f's_add_u32 {s(sCS)}, {s(sCS)}, {ST0}')
        if getattr(self, 'zero_all', False):
            A(f'v_and_b32 v7, 15, {v(VLANE)}')
            A(f'v_lshlrev_b32 v7, 3, v7')
            A(f'v_lshl_add_u32 v7, v6, 8, v7')
        else:
            A(f'v_mov_b32 v7, {v(VL16)}')
        self.stamp()
        A('s_waitcnt vmcnt(2)' if getattr(self, 'zero_all', False) else 's_waitcnt vmcnt(1)')
        A('s_barrier')
        self.stamp()
        self.stamp()
        for q in range(8):
            A(f'ds_read2_b64 {v(F + 4 * q, 4)}, v5 offset0:{8 * q} offset1:{8 * q + 4}')
        A.wait_all(vm=False)
        for q in range(8):
            self.st(v(F + 4 * q, 4), sD if q < 4 else 29, (q & 3) * KB)
        self.unpack(48, F, 32)
        A(f'v_pk_add_f32 v[8:9], v[48:49], v[50:51]')
        A(f'v_pk_mul_f32 v[10:11], v[48:49], v[48:49]')
        for i in range(2, 64, 2):
            if i >= 4:
                A(f'v_pk_add_f32 v[8:9], v[8:9], {v(48 + i, 2)}')
            A(f'v_pk_fma_f32 v[10:11], {v(48 + i, 2)}, {v(48 + i, 2)}, v[10:11]')
        A('v_add_f32 v8, v8, v9')
        A('v_add_f32 v9, v10, v11')
        self.st('v[8:9]', sCS, w=2, voff=7)
        self.end(name)
        return (name, 272, 36 * KB)

    def big_gemm_prologue(self, NT, XIN, STIN, WP, CS, acc, buf):
        A = self.A
        sRB, sCG, sX, sX2, sWs, sM, sT = 16, 17, 18, 19, 20, 21, 22
        self.tile128(sRB, sCG)
        A(f's_lshl_b32 {s(sRB)}, {s(sRB)}, 3')
        A(f's_lshl_b32 {s(sT)}, {s(SW)}, 1')
        A(f's_add_u32 {s(sRB)}, {s(sRB)}, {s(sT)}')
        A(f's_lshl_b32 {s(sX)}, {s(sRB)}, 14')
        A(f's_add_u32 {s(sX)}, {s(sX)}, {XIN}')
        A(f's_add_u32 {s(sX2)}, {s(sX)}, {16 * KB}')
        A(f's_mul_i32 {s(sM)}, {s(SW)}, {NT * KB}')
        A(f's_mul_i32 {s(sWs)}, {s(sCG)}, {NT * 16 * KB}')
        A(f's_add_u32 {s(sWs)}, {s(sWs)}, {s(sM)}')
        A(f's_add_u32 {s(sWs)}, {s(sWs)}, {WP}')
        A(f's_lshl_b32 s23, {s(sRB)}, 10')
        A(f's_add_u32 s23, s23, {STIN}')
        A(f's_lshl_b32 s24, {s(sCG)}, 10')
        A(f's_add_u32 s24, s24, {CS}')
        csl = NT * 16 * KB
        A(f's_lshl_b32 s25, {s(SW)}, 10')
        A(f's_add_u32 s25, s25, {csl}')
        A(f'v_add_u32 v4, 0x10000, {v(VL16)}')
        A(f'v_and_b32 v5, 0x30, {v(VLANE)}')
        A(f'v_add_u32 v5, s25, v5')
        A(f's_mov_b32 m0, s25')
        A('s_waitcnt lgkmcnt(0)')
        self.stamp()
        ST = 8
        self.ld(v(ST, 4), 23)
        self.ld(v(ST + 4, 4), 23, KB)
        m_small = self.dma(24)
        marks = []

        def issue(c):
            self.dma_kstep(NT, sWs, sM, sT)
            for jj in range(4):
                self.ld(a((4 * c + jj) * 4, 4), sX, jj * KB)
                self.ld(a(64 + (4 * c + jj) * 4, 4), sX2, jj * KB)
            marks.append(A.vmark())
            if c < 3:
                A(f's_add_u32 {s(sWs)}, {s(sWs)}, {4 * NT * KB}')
                A(f's_add_u32 {s(sM)}, {s(sM)}, {4 * NT * KB}')
                A(f's_add_u32 {s(sX)}, {s(sX)}, {4 * KB}')
                A(f's_add_u32 {s(sX2)}, {s(sX2)}, {4 * KB}')
        for c in range(4):
            issue(c)
        self.stamp()
        A.wait(vm=m_small)
        self.stamp()
        self.stats_consume(ST, 3)
        self.stats_consume(ST + 4, 3)
        self.acc_init_ln(acc, NT, 2, [ST, ST + 4], 5, buf)
        return marks, ST

    def big_gemm_main(self, NT, marks, acc, buf):
        A = self.A
        for c in range(4):
            if c in (0, 3, 13):
                self.stamp()
            A.wait(vm=marks[c])
            A('s_barrier')
            if c in (0, 1, 2, 3, 7, 13):
                self.stamp()
            self.gemm_chunk(list(range(4 * c, 4 * c + 4)), 2, NT, acc,
                            lambda mt, j: a(mt * 64 + 4 * j, 4), lambda j: j * NT * KB, buf, 2, {0: VL16, 1: 4})

    def k1(self):
        A = self.A
        name = 'qkv_kernel'
        self.begin(name, 256)
        NT = 6
        acc, buf = 32, 80
        marks, ST = self.big_gemm_prologue(NT, X0, ST0, WQKV, CSQ, acc, buf)
        sT0, sCG = 16, 17
        for mt in range(2):
            self.rstd(17 + 2 * mt, ST + 4 * mt + 1)
            A(f'v_mul_f32 {v(16 + 2 * mt)}, {f32(LOG2E)}, {v(17 + 2 * mt)}')
        SCR = 100 * KB
        RSZ = 208
        A(f'v_lshrrev_b32 v6, 4, {v(VLANE)}')
        A(f'v_and_b32 v7, 15, {v(VLANE)}')
        A(f'v_lshlrev_b32 v20, 4, v7')
        A(f'v_lshl_add_u32 v20, v6, 10, v20')
        A(f'v_mov_b32 v3, {OOB}')
        A(f'v_cmp_gt_u32 vcc, 32, {v(VLANE)}')
        A(f'v_cndmask_b32 v20, v3, v20, vcc')
        A(f's_lshl_b32 s26, {s(sT0)}, 15')
        A(f's_lshl_b32 s27, {s(sCG)}, 11')
        A(f's_add_u32 s26, s26, s27')
        A(f's_add_u32 s26, s26, {PHI}')
        A(f's_add_u32 s27, s26, {32 * KB}')
        A(f's_mul_i32 s28, {s(SW)}, {32 * RSZ}')
        A(f's_add_u32 s28, s28, {SCR}')
        A(f'v_mul_u32_u24 v21, {RSZ}, v7')
        A(f'v_add_u32 v21, s28, v21')
        A(f'v_lshl_add_u32 v22, v6, 3, v21')
        A(f'v_and_b32 v3, 1, v6')
        A(f'v_lshl_add_u32 v21, v3, 6, v21')
        A(f'v_bfe_u32 v3, {v(VLANE)}, 2, 2')
        A(f'v_lshl_add_u32 v3, v6, 3, v3')
        A(f'v_mul_u32_u24 v23, {RSZ}, v3')
        A(f'v_and_b32 v3, 3, {v(VLANE)}')
        A(f's_lshr_b32 s29, {s(SW)}, 1')
        A(f's_and_b32 s30, {s(SW)}, 1')
        A(f's_lshl_b32 s31, s29, 6')
        A(f's_lshl_b32 s32, s30, 3')
        A(f's_add_u32 s31, s31, s32')
        A(f's_add_u32 s31, s31, {SCR}')
        A(f'v_lshl_add_u32 v24, v3, 4, v23')
        A(f'v_add_u32 v24, s31, v24')
        A(f's_lshl_b32 s31, s29, 5')
        A(f's_add_u32 s31, s31, {SCR + 128}')
        A(f'v_lshl_add_u32 v25, v3, 3, v23')
        A(f'v_add_u32 v25, s31, v25')
        A(f's_lshl_b32 s31, {s(sCG)}, 2')
        A(f's_add_u32 s31, s31, {s(SW)}')
        A(f's_lshl_b32 s31, s31, 10')
        A(f's_add_u32 s31, s31, {KV}')
        A(f's_lshl_b32 s32, {s(sCG)}, 8')
        A(f's_lshl_b32 s33, s29, 7')
        A(f's_add_u32 s32, s32, s33')
        A(f's_lshl_b32 s33, s30, 4')
        A(f's_add_u32 s32, s32, s33')
        A(f's_add_u32 s32, s32, {Z}')
        A(f'v_lshlrev_b32 v26, 2, {v(VLANE)}')
        A(f'v_lshlrev_b32 v27, 2, v7')
        A(f'v_lshl_add_u32 v27, v6, 5, v27')
        A(f'v_mov_b32 v3, {OOB}')
        A(f'v_cmp_gt_u32 vcc, 4, v7')
        A(f'v_cndmask_b32 v27, v3, v27, vcc')
        A(f'v_cmp_eq_u32 s[34:35], 1, v7')
        A(f'v_cmp_eq_u32 s[36:37], 2, v7')
        A(f'v_cmp_eq_u32 s[38:39], 3, v7')
        for i in range(4):
            A(f'v_mov_b32 {v(28 + i)}, 0x3f803f80')
        self.big_gemm_main(NT, marks, acc, buf)
        self.stamp()
        EP, EM, PK, M = 128, 144, 160, 176
        for mt in range(2):
            P = acc + mt * 24
            cc = 16 + 2 * mt
            for hh in range(2):
                r = P + 16 + 4 * hh
                for i in (0, 2):
                    A(f'v_pk_mul_f32 {v(r + i, 2)}, {v(r + i, 2)}, {v(cc, 2)} op_sel:[0,1] op_sel_hi:[1,1]')
                self.pack(M + 8 + 2 * hh, r, 2)
                A(f'ds_write_b64 v22, {v(M + 8 + 2 * hh, 2)} offset:{mt * 16 * RSZ + 128 + 32 * hh}')
            for op, d in (('max', M), ('min', M + 1)):
                A(f'v_{op}3_f32 {v(d)}, {v(P)}, {v(P + 1)}, {v(P + 2)}')
                for i in range(3, 15, 2):
                    A(f'v_{op}3_f32 {v(d)}, {v(d)}, {v(P + i)}, {v(P + i + 1)}')
                A(f'v_{op}_f32 {v(d)}, {v(d)}, {v(P + 15)}')
            A(f'v_pk_mul_f32 {v(M, 2)}, {v(M, 2)}, {v(cc, 2)} op_sel_hi:[1,0]')
            for i in range(0, 16, 2):
                A(f'v_pk_fma_f32 {v(EP + i, 2)}, {v(P + i, 2)}, {v(cc, 2)}, {v(M, 2)} op_sel_hi:[1,0,0] neg_lo:[0,0,1] neg_hi:[0,0,1]')
                A(f'v_pk_fma_f32 {v(EM + i, 2)}, {v(P + i, 2)}, {v(cc, 2)}, {v(M, 2)} op_sel:[0,0,1] op_sel_hi:[1,0,1] neg_lo:[0,1,0] neg_hi:[0,1,0]')
            for i in range(32):
                A(f'v_exp_f32 {v(EP + i)}, {v(EP + i)}')
            for E, d in ((EP, M + 2), (EM, M + 4)):
                A(f'v_pk_add_f32 {v(d, 2)}, {v(E, 2)}, {v(E + 2, 2)}')
                for i in range(4, 16, 2):
                    A(f'v_pk_add_f32 {v(d, 2)}, {v(d, 2)}, {v(E + i, 2)}')
            A(f'v_add_f32 {v(M + 2)}, {v(M + 2)}, {v(M + 3)}')
            A(f'v_add_f32 {v(M + 3)}, {v(M + 4)}, {v(M + 5)}')
            A(f'v_rcp_f32 {v(M + 2)}, {v(M + 2)}')
            A(f'v_rcp_f32 {v(M + 3)}, {v(M + 3)}')
            for i in range(0, 16, 2):
                A(f'v_pk_mul_f32 {v(EP + i, 2)}, {v(EP + i, 2)}, {v(M + 2, 2)} op_sel_hi:[1,0]')
                A(f'v_pk_mul_f32 {v(EM + i, 2)}, {v(EM + i, 2)}, {v(M + 2, 2)} op_sel:[0,1] op_sel_hi:[1,1]')
            pk = PK if mt == 0 else acc
            for t in range(4):
                self.pack(pk + 4 * t, EP + 4 * t, 2)
                self.pack(pk + 4 * t + 2, EM + 4 * t, 2)
            A('s_mov_b32 exec_lo, 0')
            for t in range(4):
                A(f'ds_write_b128 v21, {v(pk + 4 * t, 4)} offset:{mt * 16 * RSZ + 16 * t}')
            A('s_mov_b32 exec_lo, -1')
            for t in range(4):
                self.st(v(pk + 4 * t, 4), 26 + mt, 256 * t, voff=20)
        A.wait_all(vm=False)
        self.stamp()
        A('s_barrier')
        TA, TB = 80, 96
        for ks in range(4):
            for u2 in range(2):
                off = (32 * ks + 4 * u2) * RSZ
                A(f'ds_read_b64_tr_b16 {v(TA + 4 * ks + 2 * u2, 2)}, v24 offset:{off}')
                A(f'ds_read_b64_tr_b16 {v(TB + 4 * ks + 2 * u2, 2)}, v25 offset:{off}')
            if ks == 2:
                A.wait(lg=A.lmark() - 8)
        base = A.lmark() - 16
        KVA, ZA = 112, 116
        for ks in range(4):
            A.wait(lg=base + 4 * ks + 4)
            A(f'v_mfma_f32_16x16x32_bf16 {v(KVA, 4)}, {v(TA + 4 * ks, 4)}, {v(TB + 4 * ks, 4)}, {"0" if ks == 0 else v(KVA, 4)}')
            A(f'v_mfma_f32_16x16x32_bf16 {v(ZA, 4)}, {v(TA + 4 * ks, 4)}, v[28:31], {"0" if ks == 0 else v(ZA, 4)}')
        for r in range(4):
            o = f' offset:{256 * r}' if r else ''
            A(f'buffer_atomic_add_f32 {v(KVA + r)}, v26, {s(SRD, 4)}, s31 offen{o}')
        A(f'v_cndmask_b32 {v(ZA)}, {v(ZA)}, {v(ZA + 1)}, s[34:35]')
        A(f'v_cndmask_b32 {v(ZA)}, {v(ZA)}, {v(ZA + 2)}, s[36:37]')
        A(f'v_cndmask_b32 {v(ZA)}, {v(ZA)}, {v(ZA + 3)}, s[38:39]')
        A(f'buffer_atomic_add_f32 {v(ZA)}, v27, {s(SRD, 4)}, s32 offen')
        self.end(name)
        return (name, 256, SCR + 128 * RSZ)

    def k5(self):
        A = self.A
        name = 'up_kernel'
        self.begin(name, 256)
        NT = 7
        acc, buf = 32, 88
        marks, ST = self.big_gemm_prologue(NT, X1, ST1, W3, CS3, acc, buf)
        sT0, sCG = 16, 17
        for mt in range(2):
            self.rstd(3, ST + 4 * mt + 1)
            self.gelu_consts(16 + 4 * mt, 3)
        A(f's_mul_i32 s26, {s(sT0)}, {56 * KB}')
        A(f's_add_u32 s26, s26, {G}')
        A(f's_lshr_b32 s28, {s(sCG)}, 1')
        A(f's_lshl_b32 s28, s28, 10')
        A(f's_and_b32 s29, {s(sCG)}, 1')
        A(f's_lshl_b32 s29, s29, 3')
        A(f's_add_u32 s28, s28, s29')
        A(f's_add_u32 s28, s28, s26')
        A(f's_add_u32 s28, s28, {48 * KB}')
        A(f's_add_u32 s29, s28, {56 * KB}')
        A(f's_mul_i32 s27, {s(sCG)}, {3 * KB}')
        A(f's_add_u32 s26, s26, s27')
        A(f's_add_u32 s27, s26, {56 * KB}')
        self.big_gemm_main(NT, marks, acc, buf)
        self.stamp()
        for mt in range(2):
            out = 144 + 16 * mt
            self.gelu(acc + 28 * mt, 28, 16 + 4 * mt, buf, out)
            for q in range(3):
                self.st(v(out + 4 * q, 4), 26 + mt, q * KB)
            self.st(v(out + 12, 2), 28 + mt, w=2)
        self.end(name)
        return (name, 256, 116 * KB)

    def small_setup(self, WP, KS=16):
        A = self.A
        self.tile64(16, 17)
        A(f's_lshl_b32 s16, s16, 2')
        A(f's_add_u32 s16, s16, {s(SW)}')
        A(f's_lshl_b32 s21, {s(SW)}, 12')
        A(f's_mul_i32 s20, s17, {KS * 4 * KB}')
        A(f's_add_u32 s20, s20, s21')
        A(f's_add_u32 s20, s20, {WP}')
        A(f's_lshl_b32 s24, s16, 14')
        A(f's_lshl_b32 s25, s17, 11')
        A(f's_add_u32 s24, s24, s25')
        A(f's_lshl_b32 s25, s16, 10')
        A(f's_lshr_b32 s26, s17, 1')
        A(f's_lshl_b32 s26, s26, 8')
        A(f's_add_u32 s25, s25, s26')
        A(f's_and_b32 s26, s17, 1')
        A(f's_lshl_b32 s26, s26, 3')
        A(f's_add_u32 s25, s25, s26')

    def store_tile(self, acc, tmp, DST, STD, svoff):
        A = self.A
        self.stamp()
        self.pack(tmp, acc, 8)
        A(f's_add_u32 s26, s24, {DST}')
        self.st(v(tmp, 4), 26)
        self.st(v(tmp + 4, 4), 26, KB)
        if STD is not None:
            A(f's_add_u32 s27, s25, {STD}')
            self.stats_produce(acc, 16, tmp + 8, 27, svoff)

    def k2(self):
        A = self.A
        name = 'attn_kernel'
        self.begin(name, 256)
        self.small_setup(WO)
        acc, buf, O = 16, 32, 96
        KVT = 96
        KL, ZL = 64 * KB, 96 * KB
        A(f's_add_u32 s26, s24, {X0}')
        A(f's_lshl_b32 s27, {s(SW)}, 14')
        A(f's_add_u32 s27, s27, {KV}')
        A(f's_lshl_b32 s28, {s(SW)}, 10')
        A(f's_add_u32 s28, s28, {Z}')
        A(f's_lshl_b32 s18, s16, 15')
        A(f's_add_u32 s18, s18, {PHI}')
        A('s_waitcnt lgkmcnt(0)')
        self.stamp()
        for i in range(16):
            self.ld(v(KVT + 4 * i, 4), 27, (i & 3) * KB)
            if (i & 3) == 3 and i < 15:
                A(f's_add_u32 s27, s27, 4096')
        m_kv = self.ld(v(160, 4), 28)
        self.ld(v(8, 4), 26)
        m_res = self.ld(v(12, 4), 26, KB)
        m_phi = []
        for h in range(32):
            m_phi.append(self.ld(a(4 * h, 4), 18, (h & 3) * KB))
            if (h & 3) == 3 and h < 31:
                A(f's_add_u32 s18, s18, 4096')
        marks = []

        def issue(c):
            self.dma_kstep(4, 20, 21, 22)
            marks.append(A.vmark())
            if c < 3:
                A(f's_add_u32 s20, s20, {16 * KB}')
                A(f's_add_u32 s21, s21, {16 * KB}')
        for c in range(3):
            issue(c)
        A(f'v_bfe_u32 v3, {v(VLANE)}, 2, 2')
        A(f'v_lshlrev_b32 v4, 7, v3')
        A(f'v_lshrrev_b32 v3, 4, {v(VLANE)}')
        A(f'v_lshl_add_u32 v4, v3, 5, v4')
        A(f'v_and_b32 v5, 3, {v(VLANE)}')
        A(f'v_lshl_add_u32 v4, v5, 3, v4')
        A(f's_lshl_b32 s27, {s(SW)}, 13')
        A(f's_add_u32 s27, s27, {KL}')
        A(f'v_add_u32 v4, s27, v4')
        A(f'v_lshlrev_b32 v5, 3, {v(VLANE)}')
        A(f'v_add_u32 v5, {KL}, v5')
        A(f's_lshl_b32 s27, {s(SW)}, 9')
        A(f'v_add_u32 v6, s27, v5')
        A(f'v_lshlrev_b32 v7, 4, v3')
        A(f'v_add_u32 v7, {ZL}, v7')
        self.stats_voff(164)
        self.stamp()
        A.wait(vm=m_kv)
        self.stamp()
        for i in range(16):
            self.pack(buf + 2 * i, KVT + 4 * i, 2)
            A(f'ds_write_b64 v4, {v(buf + 2 * i, 2)} offset:{i * 512}')
            if i == 12:
                A.wait(lg=A.lmark() - 8)
        self.pack(160, 160, 2)
        A(f'ds_write_b64 v6, v[160:161] offset:{32 * KB}')
        issue(3)
        A.wait(vm=m_res)
        self.unpack(acc, 8, 8)
        A.wait_all(vm=False)
        A('s_barrier')
        self.stamp()
        RB = buf
        ND = buf + 32
        rmark = {}
        for j in range(18):
            if j < 16:
                b = RB + 16 * (j & 1)
                for hh in range(2):
                    h = 2 * j + hh
                    A(f'ds_read_b64_tr_b16 {v(b + 4 * hh, 2)}, v5 offset:{h * 1024}')
                    A(f'ds_read_b64_tr_b16 {v(b + 4 * hh + 2, 2)}, v5 offset:{h * 1024 + 512}')
                    A(f'ds_read_b128 {v(b + 8 + 4 * hh, 4)}, v7 offset:{h * 64}')
                rmark[j] = A.lmark()
            if 1 <= j <= 16:
                jj = j - 1
                b = RB + 16 * (jj & 1)
                d = ND + 16 * (jj & 1)
                A.wait(vm=m_phi[2 * jj + 1], lg=rmark[jj])
                for hh in range(2):
                    h = 2 * jj + hh
                    A(f'v_mfma_f32_16x16x32_bf16 {v(d + 8 * hh + 4, 4)}, {v(b + 8 + 4 * hh, 4)}, {a(4 * h, 4)}, 0')
                    A(f'v_mfma_f32_16x16x32_bf16 {v(d + 8 * hh, 4)}, {v(b + 4 * hh, 4)}, {a(4 * h, 4)}, 0')
            if j >= 2:
                jj = j - 2
                d = ND + 16 * (jj & 1)
                for hh in range(2):
                    A(f'v_add_f32 {v(8 + 2 * hh)}, {f32(1e-6)}, {v(d + 8 * hh + 4)}')
                for hh in range(2):
                    A(f'v_rcp_f32 {v(8 + 2 * hh)}, {v(8 + 2 * hh)}')
                for hh in range(2):
                    for i in (0, 2):
                        A(f'v_pk_mul_f32 {v(12 + i, 2)}, {v(d + 8 * hh + i, 2)}, {v(8 + 2 * hh, 2)} op_sel_hi:[1,0]')
                    self.pack(O + 4 * jj + 2 * hh, 12, 2)
        for c in range(4):
            if c in (0, 3, 13):
                self.stamp()
            A.wait(vm=marks[c])
            A('s_barrier')
            if c in (0, 1, 2, 3, 7, 13):
                self.stamp()
            self.gemm_chunk(list(range(4 * c, 4 * c + 4)), 1, 4, acc,
                            lambda mt, j: v(O + 4 * j, 4), lambda j: j * 4 * KB, buf, 4, {0: VL16})
        self.store_tile(acc, buf, XA, STA, 164)
        self.end(name)
        return (name, 256, 98 * KB)

    def k3(self):
        A = self.A
        name = 'mix1_kernel'
        self.begin(name, 256)
        self.small_setup(W1)
        acc, buf = 16, 32
        A(f's_lshl_b32 s18, s16, 14')
        A(f's_add_u32 s18, s18, {XA}')
        A(f's_lshl_b32 s26, s16, 10')
        A(f's_add_u32 s26, s26, {STA}')
        A(f's_lshl_b32 s27, s17, 10')
        A(f's_add_u32 s27, s27, {CS1}')
        A(f's_lshl_b32 s28, {s(SW)}, 10')
        A(f's_add_u32 s28, s28, {64 * KB}')
        A(f'v_and_b32 v5, 0x30, {v(VLANE)}')
        A(f'v_add_u32 v5, s28, v5')
        A(f's_mov_b32 m0, s28')
        A('s_waitcnt lgkmcnt(0)')
        self.stamp()
        self.ld(v(8, 4), 26)
        m_small = self.dma(27)
        marks = self.small_issue(lambda c, jj: (18, jj * KB, VL16), [18])
        for i in range(4):
            A(f'v_mov_b32 {v(12 + i)}, 0')
        A(f'v_lshlrev_b32 v6, 4, v0')
        A(f'v_mov_b32 v7, {OOB}')
        A(f'v_cmp_gt_u32 vcc, 17, v0')
        A(f'v_cndmask_b32 v6, v7, v6, vcc')
        A(f's_mul_i32 s29, s2, 272')
        A(f's_add_u32 s29, s29, {KV}')
        self.st('v[12:15]', 29, voff=6)
        self.stamp()
        A.wait(vm=m_small)
        self.stamp()
        self.stats_consume(8, 3)
        self.acc_init_ln(acc, 4, 1, [8], 5, buf)
        self.rstd(10, 9)
        A('v_mul_f32 v11, v10, v10')
        A('v_mul_f32 v11, v11, v9')
        self.rstd(11, 11)
        A('v_mul_f32 v10, v10, v11')
        self.gelu_consts(96, 10)
        self.small_main(marks, acc, buf)
        self.stamp()
        self.gelu(acc, 16, 96, buf, buf + 16)
        A(f's_add_u32 s26, s24, {H}')
        self.st(v(buf + 16, 4), 26)
        self.st(v(buf + 20, 4), 26, KB)
        self.end(name)
        return (name, 256, 68 * KB)

    def small_issue(self, xsrc, adv):
        A = self.A
        marks = []
        for c in range(4):
            self.dma_kstep(4, 20, 21, 22)
            for jj in range(4):
                so, io, vo = xsrc(c, jj)
                self.ld(a((4 * c + jj) * 4, 4), so, io, voff=vo)
            marks.append(A.vmark())
            if c < 3:
                A(f's_add_u32 s20, s20, {16 * KB}')
                A(f's_add_u32 s21, s21, {16 * KB}')
                for r in adv:
                    A(f's_add_u32 {s(r)}, {s(r)}, {4 * KB}')
        return marks

    def small_main(self, marks, acc, buf):
        A = self.A
        for c in range(4):
            if c in (0, 3, 13):
                self.stamp()
            A.wait(vm=marks[c])
            A('s_barrier')
            if c in (0, 1, 2, 3, 7, 13):
                self.stamp()
            self.gemm_chunk(list(range(4 * c, 4 * c + 4)), 1, 4, acc,
                            lambda mt, j: a(4 * j, 4), lambda j: j * 4 * KB, buf, 4, {0: VL16})

    def k4(self):
        A = self.A
        name = 'mix2_kernel'
        self.begin(name, 256)
        self.small_setup(W2)
        acc, buf = 16, 32
        A(f's_lshl_b32 s26, s16, 4')
        A(f'v_and_b32 v4, 15, {v(VLANE)}')
        A(f'v_add_u32 v4, s26, v4')
        A(f'v_and_b32 v5, 0x300, {v(VL16)}')
        A(f'v_mov_b32 v7, {OOB}')
        A(f's_movk_i32 s27, 2048')
        for gi, d in enumerate((-1, 1, -2, 2)):
            A(f'v_add_u32 v6, {d}, v4')
            A(f'v_cmp_gt_u32 vcc, s27, v6')
            A(f'v_lshrrev_b32 v3, 4, v6')
            A(f'v_lshl_add_u32 v3, v3, 14, v5')
            A(f'v_and_b32 v6, 15, v6')
            A(f'v_lshl_add_u32 v3, v6, 4, v3')
            A(f'v_cndmask_b32 {v(96 + gi)}, v7, v3, vcc')
        A(f's_mov_b32 s18, {H}')
        A(f's_lshl_b32 s26, s16, 10')
        A(f's_add_u32 s26, s26, {STA}')
        A(f's_add_u32 s27, s24, {XA}')
        A('s_waitcnt lgkmcnt(0)')
        self.stamp()
        self.ld(v(8, 4), 26)
        self.ld(v(buf, 4), 27)
        m_small = self.ld(v(buf + 4, 4), 27, KB)
        marks = self.small_issue(lambda c, jj: (18, jj * KB, 96 + c), [18])
        self.stats_voff(100)
        self.stamp()
        A.wait(vm=m_small)
        self.stamp()
        self.stats_consume(8, 3)
        self.rstd(9, 9)
        A('v_mul_f32 v8, v8, v9')
        self.unpack(acc, buf, 8)
        for i in range(0, 16, 2):
            A(f'v_pk_fma_f32 {v(acc + i, 2)}, {v(acc + i, 2)}, v[8:9], v[8:9] op_sel:[0,1,0] op_sel_hi:[1,1,0] neg_lo:[0,0,1] neg_hi:[0,0,1]')
        self.small_main(marks, acc, buf)
        self.store_tile(acc, buf, X1, ST1, 100)
        self.end(name)
        return (name, 256, 64 * KB)

    def k6(self, final):
        A = self.A
        name = 'down_out_kernel' if final else 'down_kernel'
        self.begin(name, 256)
        if final:
            A(f's_load_dwordx2 {s(SRD2, 2)}, s[0:1], 72')
            A(f's_mov_b32 {s(SRD2 + 2)}, {2048 * 512 * 2}')
            A(f's_mov_b32 {s(SRD2 + 3)}, 0x00020000')
        self.small_setup(W4, KS=56)
        acc, buf = 16, 32
        NS = 8
        A(f's_mul_i32 s18, s16, {56 * KB}')
        A(f's_add_u32 s18, s18, {G}')
        A(f's_add_u32 s26, s24, {XA}')
        A(f's_add_u32 s27, s24, {X1}')
        A(f'v_add_u32 v4, 0x10000, {v(VL16)}')
        A('s_waitcnt lgkmcnt(0)')
        self.stamp()
        self.ld(v(buf, 4), 26)
        self.ld(v(buf + 4, 4), 26, KB)
        self.ld(v(buf + 8, 4), 27)
        m_small = self.ld(v(buf + 12, 4), 27, KB)
        marks = []

        def issue(c):
            sl = c % NS
            A(f's_add_u32 s23, s21, {sl * 16 * KB}')
            self.dma_kstep(4, 20, 23, 22)
            for jj in range(4):
                self.ld(a((4 * sl + jj) * 4, 4), 18, jj * KB)
            marks.append(A.vmark())
            if c < 13:
                A(f's_add_u32 s20, s20, {16 * KB}')
                A(f's_add_u32 s18, s18, {4 * KB}')
        for c in range(7):
            issue(c)
        if final:
            A(f'v_and_b32 v5, 15, {v(VLANE)}')
            A(f'v_lshlrev_b32 v5, 10, v5')
            A(f'v_bfe_u32 v3, {v(VLANE)}, 4, 1')
            A(f'v_lshl_add_u32 v5, v3, 5, v5')
            A(f'v_lshrrev_b32 v3, 5, {v(VLANE)}')
            A(f'v_lshl_add_u32 v5, v3, 4, v5')
            A(f's_lshl_b32 s28, s16, 14')
            A(f's_lshl_b32 s29, s17, 7')
            A(f's_add_u32 s28, s28, s29')
        else:
            self.stats_voff(5)
        self.stamp()
        A.wait(vm=m_small)
        self.stamp()
        self.unpack(acc, buf, 8)
        self.unpack(buf + 16, buf + 8, 8)
        for i in range(0, 16, 2):
            A(f'v_pk_add_f32 {v(acc + i, 2)}, {v(acc + i, 2)}, {v(buf + 16 + i, 2)}')
        for c in range(14):
            if c in (0, 3, 13):
                self.stamp()
            A.wait(vm=marks[c])
            A('s_barrier')
            if c in (0, 1, 2, 3, 7, 13):
                self.stamp()
            if c + 7 < 14:
                issue(c + 7)
            sl = c % NS
            self.gemm_chunk(list(range(4 * sl, 4 * sl + 4)), 1, 4, acc,
                            lambda mt, j: a(4 * j, 4), lambda j: j * 4 * KB, buf, 4, {0: VL16, 1: 4})
        if final:
            self.pack(buf, acc, 8)
            for q in range(2):
                b = buf + 4 * q
                A(f'v_permlane16_swap_b32 {v(b)}, {v(b + 2)}')
                A(f'v_permlane16_swap_b32 {v(b + 1)}, {v(b + 3)}')
            for q in range(2):
                self.st(v(buf + 4 * q, 4), 28, 64 * q, voff=5, srd=SRD2)
        else:
            self.store_tile(acc, buf, X0, ST0, 5)
        self.end(name)
        return (name, 256, NS * 16 * KB)

    def build(self, header):
        k0 = self.k0()
        k1 = self.k1()
        k2 = self.k2()
        k3 = self.k3()
        k4 = self.k4()
        k5 = self.k5()
        k6a = self.k6(False)
        k6b = self.k6(True)
        seq = [k0, k1, k2, k3, k4, k5, k6a, k1, k2, k3, k4, k5, k6b]
        out = [header]
        for n, g, lds in seq:
            out.append(f'; @launch kernel={n} grid=({g},1,1) block=(256,1,1) lds={lds}')
        out.append('.amdgcn_target "amdgcn-amd-amdhsa--gfx950"')
        out.append('.text')
        out.append(self.A.text())
        out.append('.section .rodata,"a"')
        for n, nv, accum, ns in self.kernels:
            out.append('.p2align 6')
            out.append(f'.amdhsa_kernel {n}')
            out.append(f'  .amdhsa_next_free_vgpr {nv}')
            out.append(f'  .amdhsa_next_free_sgpr {max(ns, 16)}')
            out.append(f'  .amdhsa_accum_offset {accum}')
            out.append('  .amdhsa_group_segment_fixed_size 0')
            out.append('  .amdhsa_kernarg_size 96')
            out.append('  .amdhsa_user_sgpr_count 2')
            out.append('  .amdhsa_user_sgpr_kernarg_segment_ptr 1')
            out.append('  .amdhsa_system_sgpr_workgroup_id_x 1')
            out.append('  .amdhsa_float_denorm_mode_32 3')
            out.append('.end_amdhsa_kernel')
        return '\n'.join(out) + '\n'


def header():
    ref = open(f'cdna_kernels/{NAME}.s.ref').read().split('\n')
    h = []
    for l in ref:
        if not l.startswith(';') or '@launch' in l or 'Override launch' in l or 'grid=ceil' in l:
            break
        h.append(l)
    return '\n'.join(h)


if __name__ == '__main__':
    g = Gen()
    g.prof = 'prof' in sys.argv
    txt = g.build(header())
    out = sys.argv[1] if len(sys.argv) > 1 else f'cdna_kernels/{NAME}.s'
    open(out, 'w').write(txt)
    import json
    json.dump(LAYOUT, open('layout.json', 'w'))
    for k in g.kernels:
        print(k)
    print('nops inserted', g.A.nops, 'ws used', WS_USED)
```

```python
import sys, json
import gen as G1
from gen import Gen, KB, NAME, f32, LOG2E, OOB, SRD, SW, SRD2, VL16, VLANE, header
from asmlib import v, a, s

OPT = set(sys.argv[2:])

_off = 0
def _alloc(n):
    global _off
    r = _off
    _off += (n + 4095) // 4096 * 4096
    return r
WQKV = _alloc(1536 * KB); WO = _alloc(512 * KB); W1 = _alloc(512 * KB); W2 = _alloc(512 * KB)
W3 = _alloc(1792 * KB); W4 = _alloc(1792 * KB)
CSQ = _alloc(16 * KB); CS1 = _alloc(8 * KB); CS3 = _alloc(16 * KB); DUMMY = _alloc(4 * KB)
ZR = _alloc(512 * KB)
ZSTRIDE = 128 * KB
KV = ZR
Z = KV + 64 * KB
XT = ZR + 96 * KB
CSH = 11
CB = ZR + 256 * KB
C_X, C_O, C_XA, C_H, C_X1, C_G, C_KV = [CB + 128 * i for i in range(7)]
CSTRIDE = 1024
X0 = _alloc(2048 * KB); ST0 = _alloc(128 * KB); OB = _alloc(2048 * KB); G = _alloc(7168 * KB)
XA = X1 = X0
STA = ST1 = ST0
H = OB
PSTRIDE = 0
DBG = _alloc(16 * 512 * 128 * 2)
WS_USED = _off
LAYOUT = {k: val for k, val in globals().items() if k.isupper() and isinstance(val, int)}
for k_, v_ in LAYOUT.items():
    setattr(G1, k_, v_)

sT, sCG8, sT0, sCG16, sP, sPAIR, sZ, sTO = 16, 17, 18, 19, 20, 21, 22, 23
sTILE, sSTP, sC, sFAST, sFH = 24, 25, 44, 45, 46
sFG = 49
sF8, sF16 = 47, 48
VB64, VB128, VSTL, VL4, VONE, VP2 = 4, 5, 6, 7, 8, 9
VMR = 10
RES = 16
FREE = 32
PERM = 156 * KB
L_CSQ, L_CS1, L_CS3 = PERM, PERM + 384, PERM + 640
L_CF, L_CR, L_CB, L_MODE, L_GO = PERM + 2048, PERM + 2064, PERM + 2080, PERM + 2096, PERM + 2100
L_PS = PERM + 2112
sEV = 50
VPERM = 15
VOWN = 14
GR = 4 * KB
def map_wo(j): return (35 + j) * GR if j < 4 else (j - 4) * GR
def map_w1(j): return (12 + j) * GR
def map_w2(j): return (28 + j) * GR if j < 11 else (j - 11) * GR
def map_w3(j): return ((j + 3) % 16) * 7 * KB
def map_w4(j):
    if j >= 39: j -= 39
    return (28 + j) * GR if j < 11 else (22 + j - 11) * GR if j < 17 else (j - 17) * GR
def map_q(j): return j * 6 * KB


class Rec:
    def __init__(self):
        self.l = []

    def __call__(self, t):
        self.l.append(t)


class Gen3(Gen):
    persist = False
    first_wait = False
    DS = 8
    D4 = 10
    DB = 6

    def rec(self, fn):
        keep = self.A
        self.A = Rec()
        fn()
        l = self.A.l
        self.A = keep
        return l

    def ldx(self, dst, soff, ioff=0, voff=VL16, w=4, sc=None):
        o = f' offset:{ioff}' if ioff else ''
        wn = {1: 'dword', 2: 'dwordx2', 4: 'dwordx4'}[w]
        if sc is None:
            sc = '' if 'ldplain' in OPT else ' nt' if 'ldnt' in OPT else ' sc0' if 'ldsc0' in OPT else ' sc1'
        self.A(f'buffer_load_{wn} {dst}, {v(voff)}, {s(SRD, 4)}, {s(soff)} offen{o}{sc}')
        return self.A.vmark()

    dmant = False

    def dma(self, soff, ioff=0, voff=VL16, srd=SRD):
        o = f' offset:{ioff}' if ioff else ''
        nt = ' nt' if self.dmant else ''
        self.A(f'buffer_load_dwordx4 {v(voff)}, {s(srd, 4)}, {s(soff)} offen{o}{nt} lds')
        return self.A.vmark()

    def stores(self, lst, fast=sFAST):
        A = self.A
        Ls, Ld = A.newlabel('sts'), A.newlabel('std')

        def emit(sc):
            for src, soff, ioff, voff, w, ex in lst:
                o = f' offset:{ioff}' if ioff else ''
                wn = {1: 'dword', 2: 'dwordx2', 4: 'dwordx4'}[w]
                if ex:
                    A(f's_mov_b64 exec, {ex}')
                A(f'buffer_store_{wn} {src}, {v(voff)}, {s(SRD, 4)}, {s(soff)} offen{o}{sc}')
                if ex:
                    A('s_mov_b64 exec, -1')
        A(f's_cmp_eq_u32 {s(fast)}, 0')
        A(f's_cbranch_scc1 {Ls}')
        vm0 = A.vm
        emit(' nt' if 'stnt' in OPT else ' sc0' if 'stsc0' in OPT else ' sc1' if ('datasc1' in OPT and lst[0][4] != 1) else '')
        A(f's_branch {Ld}')
        A.label(Ls)
        A.vm = vm0
        emit(' sc1')
        A.label(Ld)

    def pstamp(self):
        if not self.prof:
            return
        A = self.A
        assert A.lg == A.lg_done
        i = self.nstamp
        self.nstamp += 1
        A('s_memtime s[60:61]')
        A('s_waitcnt lgkmcnt(0)')
        A(f'v_writelane_b32 v12, s60, {i}')

    def poll(self, sbase, voff, n, target=1, mode='auto', ioff=0):
        A = self.A
        assert A.lg == A.lg_done
        L, LS, LC, D = A.newlabel('poll'), A.newlabel('polls'), A.newlabel('pollc'), A.newlabel('polld')
        o = f' offset:{ioff}' if ioff else ''
        A(f's_mov_b64 exec, {(1 << n) - 1:#x}' if n < 32 else 's_mov_b32 exec_hi, 0')
        A.label(L)
        if mode == 'auto':
            A(f's_cmp_eq_u32 {s(sFAST)}, 0')
            A(f's_cbranch_scc1 {LS}')
            A(f'buffer_load_dword v3, {v(voff)}, {s(SRD, 4)}, {s(sbase)} offen{o} sc1')
            A(f's_branch {LC}')
            A.label(LS)
        A('v_mov_b32 v3, 0')
        A(f'buffer_atomic_add v3, {v(voff)}, {s(SRD, 4)}, {s(sbase)} offen{o} sc0')
        A.label(LC)
        A('s_waitcnt vmcnt(0)')
        A.vm_done = A.vm
        A(f'v_cmp_le_u32 vcc, {target}, v3')
        A('s_cmp_eq_u64 vcc, exec')
        A(f's_cbranch_scc1 {D}')
        A(f's_sub_u32 {s(sTO)}, {s(sTO)}, 1')
        A(f's_cbranch_scc1 {self.exit}')
        A(f's_branch {L}')
        A.label(D)
        A('s_mov_b64 exec, -1')

    def sig(self, base, k):
        A = self.A
        A(f's_add_u32 s51, {s(sEV)}, {k}')
        A('v_mov_b32 v3, s51')
        A(f'ds_write_b32 {v(VOWN)}, v3 offset:{base - L_CF}')

    def lwait(self, base, k, tmp, sleep=0, single=False):
        A = self.A
        L, D = A.newlabel('lw'), A.newlabel('lwd')
        A(f's_add_u32 s51, {s(sEV)}, {k}')
        A.label(L)
        if single:
            A(f'ds_read_b32 {v(tmp)}, {v(VPERM)} offset:{base - L_CF}')
            A.wait_all(vm=False)
        else:
            A(f'ds_read_b128 {v(tmp, 4)}, {v(VPERM)} offset:{base - L_CF}')
            A.wait_all(vm=False)
            A(f'v_min_u32 {v(tmp)}, {v(tmp)}, {v(tmp + 1)}')
            A(f'v_min3_u32 {v(tmp)}, {v(tmp)}, {v(tmp + 2)}, {v(tmp + 3)}')
        A(f'v_cmp_le_u32 vcc, s51, {v(tmp)}')
        A(f's_cbranch_vccnz {D}')
        A(f's_sub_u32 {s(sTO)}, {s(sTO)}, 1')
        A(f's_cbranch_scc1 {self.exit}')
        if sleep:
            A(f's_sleep {sleep}')
        A(f's_branch {L}')
        A.label(D)

    def flag(self, sbase, ioff, two=False, fast=sFAST):
        self.pstamp()
        self.A.wait_all(lg=False)
        self.stores([(v(VONE), sbase, ioff, VP2, 1, '0x101' if two else '1')], fast)
        self.pstamp()

    def gemm(self, KS, MT, NT, acc, xreg, ldsoff, buf, NB, xwait, hook=None, preread=None, fill=(), czero=False, fill0=1):
        A = self.A
        vbase = {0: VL16, 1: VB64, 2: VB128}
        fill = list(fill)

        def read(j, t):
            if t == 0 and preread:
                preread(j)
            off = ldsoff(j) + t * KB
            A(f'ds_read_b128 {v(buf + ((j % NB) * NT + t) * 4, 4)}, {v(vbase[off >> 16])} offset:{off & 0xffff}')
            return A.lmark()
        marks = {}
        pre = NB
        while pre * NT > 14:
            pre -= 1
        for j in range(pre):
            for t in range(NT):
                marks[(j, t)] = read(j, t)
        nxt = [(j, t) for j in range(pre, KS) for t in range(NT)]
        for j in range(KS):
            for t in range(NT):
                A.wait(vm=xwait(j) if t == 0 else None, lg=marks[(j, t)])
                for mt in range(MT):
                    r = acc + (mt * NT + t) * 4
                    c = '0' if (czero and j == 0) else v(r, 4)
                    A(f'v_mfma_f32_16x16x32_bf16 {v(r, 4)}, {v(buf + ((j % NB) * NT + t) * 4, 4)}, {xreg(mt, j)}, {c}')
                    if fill and j >= fill0:
                        A(fill.pop(0))
                if nxt:
                    j2, t2 = nxt[0]
                    if (j2 - NB, t2) <= (j, t):
                        marks[(j2, t2)] = read(j2, t2)
                        nxt.pop(0)
                if hook:
                    hook(j, t)
        assert not nxt and not fill, (len(fill))

    def cs_read(self, NT, cs, loc):
        A = self.A
        A(f'v_and_b32 v3, 0x30, {v(VLANE)}')
        A(f'v_add_u32 v3, {loc}, v3')
        for t in range(NT):
            A(f'ds_read_b128 {v(cs + 4 * t, 4)}, v3 offset:{t * 64}')

    def ln_fix(self, acc, n, cs, mean):
        for i in range(0, n, 2):
            self.A(f'v_pk_fma_f32 {v(acc + i, 2)}, {v(cs + i, 2)}, {v(mean, 2)}, {v(acc + i, 2)} op_sel_hi:[1,0,1] neg_lo:[0,1,0] neg_hi:[0,1,0]')

    def ld_stats(self, dst, soff, ioff=0):
        self.ldx(v(dst, 2), soff, ioff, voff=VSTL, w=2)
        return self.ldx(v(dst + 2, 2), soff, ioff + 128, voff=VSTL, w=2)

    def stats_calc(self, acc, n, tmp):
        A = self.A
        S, Q = tmp, tmp + 2
        A(f'v_pk_add_f32 {v(S, 2)}, {v(acc, 2)}, {v(acc + 2, 2)}')
        A(f'v_pk_mul_f32 {v(Q, 2)}, {v(acc, 2)}, {v(acc, 2)}')
        for i in range(2, n, 2):
            if i >= 4:
                A(f'v_pk_add_f32 {v(S, 2)}, {v(S, 2)}, {v(acc + i, 2)}')
            A(f'v_pk_fma_f32 {v(Q, 2)}, {v(acc + i, 2)}, {v(acc + i, 2)}, {v(Q, 2)}')
        A(f'v_add_f32 {v(S)}, {v(S)}, {v(S + 1)}')
        A(f'v_add_f32 {v(S + 1)}, {v(Q)}, {v(Q + 1)}')
        Q = S + 1
        A(f'v_permlane32_swap_b32 {v(S)}, {v(Q)}')
        A(f'v_add_f32 {v(S)}, {v(S)}, {v(Q)}')
        A(f'v_mov_b32 {v(Q)}, {v(S)}')
        A(f'v_permlane16_swap_b32 {v(S)}, {v(Q)}')
        A(f'v_add_f32 {v(S)}, {v(S)}, {v(Q)}')
        A(f'v_mov_b32 {v(Q)}, {v(S)}')
        A(f'v_permlane32_swap_b32 {v(S)}, {v(Q)}')

    def store_tile(self, acc, tmp, DST, STD, nextpair=False):
        A = self.A
        self.pack(tmp, acc, 8)
        add = PSTRIDE if nextpair else 0
        A(f's_add_u32 s26, {s(sTILE)}, {DST + add}')
        A(f's_add_u32 s27, {s(sSTP)}, {STD + add}')
        self.stores([(v(tmp, 4), 26, 0, VL16, 4, None), (v(tmp + 4, 4), 26, KB, VL16, 4, None)])
        self.stats_calc(acc, 16, tmp + 8)
        self.stores([(v(tmp + 8, 2), 27, 0, VSTL, 2, '0xffff')])

    def big_pre(self, XIN, STIN):
        A = self.A
        A(f's_lshl_b32 s26, {s(sT0)}, 14')
        A(f's_add_u32 s26, s26, {s(sP)}')
        A(f's_add_u32 s26, s26, {XIN}')
        A(f's_add_u32 s27, s26, {16 * KB}')
        A(f's_lshl_b32 s28, {s(sT0)}, 10')
        A(f's_add_u32 s28, s28, {s(sP)}')
        A(f's_add_u32 s28, s28, {STIN}')
        A(f's_lshl_b32 s29, {s(sT0)}, {CSH}')
        A(f's_add_u32 s29, s29, {s(sC)}')

    def big_main(self, NT, acc, buf, XR, ST, fill, lmap, late_j, late_id, xsig, fsig):
        A = self.A
        D, RING = self.DB, 8
        sX, sX2 = 26, 27
        xm = {}

        def xload(j, mt):
            xm[j] = self.ldx(v(XR + ((j % RING) * 2 + mt) * 4, 4), sX2 if mt else sX, (j & 3) * KB)
            if (j & 3) == 3 and j < 15:
                r = sX2 if mt else sX
                A(f's_add_u32 {s(r)}, {s(r)}, {4 * KB}')
        for j in range(D):
            xload(j, 0)
            xload(j, 1)
            if j == 1:
                self.ld_stats(ST, 28)
                self.ld_stats(ST + 4, 28, KB)
        if self.first_wait:
            self.first_wait = False
            Lf = A.newlabel('fw')
            A(f's_cmp_lg_u32 {s(sPAIR)}, 0')
            A(f's_cbranch_scc1 {Lf}')
            A(f's_add_u32 s28, {s(sTILE)}, {X0}')
            vm0 = A.vm
            self.ldx(v(RES + 8, 4), 28)
            self.ldx(v(RES + 12, 4), 28, KB)
            A.vm = vm0
            self.lwait(L_CR, 1, 252, sleep=1)
            A.label(Lf)
            self.cs_read(6, 224, L_CSQ)
            A.wait_all(vm=False)
        self.pstamp()

        def hook(j, t):
            if j == 0 and t == 0:
                self.sig(L_PS, 1 if NT == 6 else 2)
            if j + D < 16:
                if t == 1:
                    xload(j + D, 0)
                if t == 4:
                    xload(j + D, 1)
                    if j + D == 15 and xsig is not None:
                        self.sig(L_CF, xsig)

        def preread(j):
            if j == late_j:
                self.lwait(L_CR, late_id, 252)
        self.gemm(16, 2, NT, acc, lambda mt, j: v(XR + ((j % RING) * 2 + mt) * 4, 4), lmap,
                  buf, 2, lambda j: xm[j], hook, preread, fill=fill, czero=True, fill0=2)
        if fsig is not None:
            self.sig(L_CF, fsig)
        A.wait_all(vm=False)
        self.pstamp()

    def small_main(self, KS, acc, buf, XR, RING, D, src, lmap, fill=(), czero=False, extra=None, hook2=None, preread=None,
                   xsig=None, fsig=None):
        A = self.A
        xm = {}

        def xload(j):
            so, io, vo = src(j)
            xm[j] = self.ldx(v(XR + (j % RING) * 4, 4), so, io, voff=vo)
            if (j & 3) == 3 and j < KS - 1:
                A(f's_add_u32 {s(so)}, {s(so)}, {4 * KB}')
        for j in range(D):
            xload(j)
            if j == 1 and extra:
                extra()
        self.pstamp()

        def hook(j, t):
            if t == 1 and j + D < KS:
                xload(j + D)
                if j + D == KS - 1 and xsig is not None:
                    self.sig(L_CF, xsig)
            if hook2:
                hook2(j, t)
        self.gemm(KS, 1, 4, acc, lambda mt, j: v(XR + 4 * (j % RING), 4), lmap, buf, 4,
                  lambda j: xm[j], hook, preread, fill=fill, czero=czero, fill0=2)
        if fsig is not None:
            self.sig(L_CF, fsig)
        A.wait_all(vm=False)
        self.pstamp()

    def stage_qkv(self):
        A = self.A
        NT = 6
        ST, CC, acc, buf, XR, CS = 32, 40, 64, 112, 160, 224
        SCR, RSZ = 96 * KB, 336
        self.big_pre(X0, ST0)
        A(f'v_lshrrev_b32 v60, 4, {v(VLANE)}')
        A(f'v_and_b32 v61, 15, {v(VLANE)}')
        A(f's_mul_i32 s30, {s(SW)}, {32 * RSZ}')
        A(f's_add_u32 s30, s30, {SCR}')
        A(f'v_mul_u32_u24 v45, {RSZ}, v61')
        A(f'v_add_u32 v45, s30, v45')
        A(f'v_lshl_add_u32 v46, v60, 3, v45')
        A(f'v_lshl_add_u32 v44, v60, 4, v45')
        A(f'v_and_b32 v3, 1, v60')
        A(f'v_lshl_add_u32 v45, v3, 6, v45')
        A(f'v_lshrrev_b32 v3, 1, v60')
        A(f'v_mul_u32_u24 v3, {16 * RSZ}, v3')
        A(f'v_add_u32 v45, v45, v3')
        A(f'v_bfe_u32 v3, {v(VLANE)}, 2, 2')
        A(f'v_lshl_add_u32 v3, v60, 3, v3')
        A(f'v_mul_u32_u24 v47, {RSZ}, v3')
        A(f'v_and_b32 v3, 3, {v(VLANE)}')
        A(f's_lshr_b32 s30, {s(SW)}, 1')
        A(f's_and_b32 s31, {s(SW)}, 1')
        A(f's_lshl_b32 s32, s30, 6')
        A(f's_lshl_b32 s33, s31, 3')
        A(f's_add_u32 s32, s32, s33')
        A(f's_add_u32 s32, s32, {SCR + 128}')
        A(f'v_lshl_add_u32 v48, v3, 4, v47')
        A(f'v_add_u32 v48, s32, v48')
        A(f's_lshl_b32 s32, s30, 5')
        A(f's_add_u32 s32, s32, {SCR + 256}')
        A(f'v_lshl_add_u32 v49, v3, 3, v47')
        A(f'v_add_u32 v49, s32, v49')
        A(f's_lshl_b32 s42, {s(sCG16)}, 12')
        A(f's_add_u32 s42, s42, {s(sZ)}')
        A(f's_add_u32 s42, s42, {KV}')
        A(f's_lshl_b32 s32, {s(SW)}, 10')
        A(f's_add_u32 s32, s32, s42')
        A(f's_lshl_b32 s43, {s(sCG16)}, 8')
        A(f's_add_u32 s43, s43, {s(sZ)}')
        A(f's_add_u32 s43, s43, {Z}')
        A(f's_lshl_b32 s33, s30, 7')
        A(f's_add_u32 s33, s33, s43')
        A(f's_lshl_b32 s31, s31, 4')
        A(f's_add_u32 s33, s33, s31')
        A(f'v_lshlrev_b32 v50, 5, v60')
        A(f'v_lshl_add_u32 v51, v61, 2, v50')
        A(f'v_mov_b32 v3, {OOB}')
        A(f'v_cmp_gt_u32 vcc, 4, v61')
        A(f'v_cndmask_b32 v51, v3, v51, vcc')
        A(f'v_cmp_eq_u32 s[34:35], 1, v61')
        A(f'v_cmp_eq_u32 s[36:37], 2, v61')
        A(f'v_cmp_eq_u32 s[38:39], 3, v61')
        for i in range(4):
            A(f'v_mov_b32 {v(52 + i)}, 0x3f803f80')
            A(f'v_mov_b32 {v(56 + i)}, {f32(1e-6)}')
        Lskip = A.newlabel('nopoll')
        A.wait_all(vm=False)
        A(f's_cmp_eq_u32 {s(sPAIR)}, 0')
        A(f's_cbranch_scc1 {Lskip}')
        self.lwait(L_CR, 1, 252)
        A(f's_add_u32 s29, s29, {C_X}')
        self.poll(29, VP2, 16)
        A.label(Lskip)
        self.pstamp()

        def f():
            for mt in range(2):
                self.stats_consume(ST + 4 * mt, 3)
                self.rstd(CC + 1 + 2 * mt, ST + 4 * mt + 1)
                self.A(f'v_mul_f32 {v(CC + 2 * mt)}, {f32(LOG2E)}, {v(CC + 1 + 2 * mt)}')
            self.A(f'v_permlane32_swap_b32 {v(CC)}, {v(CC + 2)}')
        self.first_wait = True
        self.big_main(NT, acc, buf, XR, ST, self.rec(f), map_q, 14, 2, None, None if 'd1late' in OPT else 3)
        EP, EM, PK, M = 160, 176, 192, 208

        def softmax(P, off):
            cc = CC
            for op, d in (('max', M), ('min', M + 1)):
                A(f'v_{op}3_f32 {v(d)}, {v(P)}, {v(P + 1)}, {v(P + 2)}')
                for i in range(3, 15, 2):
                    A(f'v_{op}3_f32 {v(d)}, {v(d)}, {v(P + i)}, {v(P + i + 1)}')
                A(f'v_{op}_f32 {v(d)}, {v(d)}, {v(P + 15)}')
            A(f'v_pk_mul_f32 {v(M, 2)}, {v(M, 2)}, {v(cc, 2)} op_sel_hi:[1,0]')
            for i in range(0, 16, 2):
                A(f'v_pk_fma_f32 {v(EP + i, 2)}, {v(P + i, 2)}, {v(cc, 2)}, {v(M, 2)} op_sel_hi:[1,0,0] neg_lo:[0,0,1] neg_hi:[0,0,1]')
                A(f'v_pk_fma_f32 {v(EM + i, 2)}, {v(P + i, 2)}, {v(cc, 2)}, {v(M, 2)} op_sel:[0,0,1] op_sel_hi:[1,0,1] neg_lo:[0,1,0] neg_hi:[0,1,0]')
            for i in range(32):
                A(f'v_exp_f32 {v(EP + i)}, {v(EP + i)}')
            for E, d in ((EP, M + 2), (EM, M + 4)):
                A(f'v_pk_add_f32 {v(d, 2)}, {v(E, 2)}, {v(E + 2, 2)}')
                for i in range(4, 16, 2):
                    A(f'v_pk_add_f32 {v(d, 2)}, {v(d, 2)}, {v(E + i, 2)}')
            A(f'v_add_f32 {v(M + 2)}, {v(M + 2)}, {v(M + 3)}')
            A(f'v_add_f32 {v(M + 3)}, {v(M + 4)}, {v(M + 5)}')
            A(f'v_rcp_f32 {v(M + 2)}, {v(M + 2)}')
            A(f'v_rcp_f32 {v(M + 3)}, {v(M + 3)}')
            for t in range(4):
                for i in (4 * t, 4 * t + 2):
                    A(f'v_pk_mul_f32 {v(EP + i, 2)}, {v(EP + i, 2)}, {v(M + 2, 2)} op_sel_hi:[1,0]')
                    A(f'v_pk_mul_f32 {v(EM + i, 2)}, {v(EM + i, 2)}, {v(M + 2, 2)} op_sel:[0,1] op_sel_hi:[1,1]')
                self.pack(PK + 4 * t, EP + 4 * t, 2)
                self.pack(PK + 4 * t + 2, EM + 4 * t, 2)
                A(f'ds_write_b128 v45, {v(PK + 4 * t, 4)} offset:{off + 16 * t}')
        for mt in range(2):
            P = acc + mt * 24
            self.ln_fix(P, 24, CS, ST + 4 * mt)
        for i in range(16):
            A(f'v_permlane32_swap_b32 {v(acc + i)}, {v(acc + 24 + i)}')
        for mt in range(2):
            P = acc + mt * 24
            for hh in range(2):
                r = P + 16 + 4 * hh
                for i in (0, 2):
                    A(f'v_pk_mul_f32 {v(r + i, 2)}, {v(r + i, 2)}, {v(CC + 2 * mt, 2)} op_sel:[0,1] op_sel_hi:[1,1]')
                self.pack(r, r, 2)
                A(f'ds_write_b64 v46, {v(r, 2)} offset:{mt * 16 * RSZ + 256 + 32 * hh}')
        softmax(acc + 24, 128)
        A.wait_all(vm=False)
        self.pstamp()
        self.sig(L_CB, 1)
        self.lwait(L_CB, 1, 252)
        TA, TB = 112, 128
        for ks in range(4):
            for u2 in range(2):
                off = (32 * ks + 4 * u2) * RSZ
                A(f'ds_read_b64_tr_b16 {v(TA + 4 * ks + 2 * u2, 2)}, v48 offset:{off}')
                A(f'ds_read_b64_tr_b16 {v(TB + 4 * ks + 2 * u2, 2)}, v49 offset:{off}')
            if ks == 2:
                A.wait(lg=A.lmark() - 8)
        base = A.lmark() - 16
        KVA, ZA = 144, 148
        for ks in range(4):
            A.wait(lg=base + 4 * ks + 4)
            A(f'v_mfma_f32_16x16x32_bf16 {v(KVA, 4)}, {v(TA + 4 * ks, 4)}, {v(TB + 4 * ks, 4)}, {"0" if ks == 0 else v(KVA, 4)}')
            A(f'v_mfma_f32_16x16x32_bf16 {v(ZA, 4)}, {v(TA + 4 * ks, 4)}, v[52:55], {"0" if ks == 0 else v(ZA, 4)}')
        for r in range(4):
            o = f' offset:{256 * r}' if r else ''
            A(f'buffer_atomic_add_f32 {v(KVA + r)}, {v(VL4)}, {s(SRD, 4)}, s32 offen{o}')
        A(f'v_cndmask_b32 {v(ZA)}, {v(ZA)}, {v(ZA + 1)}, s[34:35]')
        A(f'v_cndmask_b32 {v(ZA)}, {v(ZA)}, {v(ZA + 2)}, s[36:37]')
        A(f'v_cndmask_b32 {v(ZA)}, {v(ZA)}, {v(ZA + 3)}, s[38:39]')
        A(f'buffer_atomic_add_f32 {v(ZA)}, v51, {s(SRD, 4)}, s33 offen')
        self.pstamp()
        if 'd1late' in OPT:
            self.sig(L_CF, 3)
        softmax(acc, 0)
        PQ = 160
        for mt in range(2):
            for hh in range(2):
                A(f'ds_read_b128 {v(PQ + 8 * mt + 4 * hh, 4)}, v44 offset:{mt * 16 * RSZ + 64 * hh}')
        A(f's_lshl_b32 s30, {s(sCG16)}, {CSH}')
        A(f's_add_u32 s30, s30, {s(sC)}')
        A(f's_add_u32 s30, s30, {C_KV}')
        A(f's_lshl_b32 s26, {s(sT0)}, 14')
        A(f's_lshl_b32 s27, {s(sCG16)}, 10')
        A(f's_add_u32 s26, s26, s27')
        A(f's_add_u32 s26, s26, {s(sP)}')
        A(f's_add_u32 s26, s26, {OB}')
        A(f's_add_u32 s27, s26, {16 * KB}')
        if 'd2early' in OPT:
            self.sig(L_CF, 4)
        Lm = A.newlabel('mode')
        A.wait_all(vm=False)
        A(f's_cmp_eq_u32 {s(sPAIR)}, 0')
        A(f's_cbranch_scc0 {Lm}')
        self.unpack(RES, RES + 8, 8)
        self.lwait(L_MODE, 1, 252, single=True)
        A(f'v_readfirstlane_b32 {s(sFAST)}, v252')
        A(f's_sub_u32 {s(sFAST)}, {s(sFAST)}, 1')
        A(f's_add_u32 s31, {s(sT)}, 1')
        A(f's_and_b32 s31, s31, 15')
        A(f's_cmp_le_u32 s31, 1')
        A(f's_cselect_b32 {s(sFH)}, 0, {s(sFAST)}')
        A.label(Lm)
        self.pstamp()
        A.wait_all()
        self.sig(L_CB, 2)
        A.wait_all(vm=False)
        self.pstamp()
        Lw, Lg, Lx = A.newlabel('kvw'), A.newlabel('kvg'), A.newlabel('kvx')
        A(f's_cmp_lg_u32 {s(SW)}, 0')
        A(f's_cbranch_scc1 {Lw}')
        self.lwait(L_CB, 2, 252)
        A('s_mov_b64 exec, 1')
        A('v_mov_b32 v3, 1')
        A(f'buffer_atomic_add v3, {v(VL4)}, {s(SRD, 4)}, s30 offen sc0')
        A('s_waitcnt vmcnt(0)')
        A('v_readfirstlane_b32 s31, v3')
        A('s_mov_b64 exec, -1')
        A('s_cmp_eq_u32 s31, 15')
        A(f's_cbranch_scc1 {Lg}')
        self.poll(30, VL4, 1, target=16, mode='atomic')
        A.label(Lg)
        self.sig(L_GO, 1)
        A.wait_all(vm=False)
        A(f's_branch {Lx}')
        A.label(Lw)
        self.lwait(L_GO, 1, 252, sleep=1, single=True)
        A.label(Lx)
        self.pstamp()
        KF, ZF = 64, 80
        for i in range(16):
            self.ldx(v(KF + i), 42, 256 * i, voff=VL4, w=1, sc=' sc1')
        for hh in range(2):
            for u in range(2):
                self.ldx(v(ZF + 8 * hh + 4 * u, 4), 43, 128 * hh + 16 * u, voff=50, sc=' sc1')
        A.wait(vm=A.vmark() - 4)
        self.pack(96, KF, 8)
        A.wait_all()
        self.pack(104, ZF, 8)
        ND = 112
        for mt in range(2):
            for hh in range(2):
                d = ND + 16 * mt + 8 * hh
                A(f'v_mfma_f32_16x16x32_bf16 {v(d + 4, 4)}, {v(104 + 4 * hh, 4)}, {v(PQ + 8 * mt + 4 * hh, 4)}, v[56:59]')
                A(f'v_mfma_f32_16x16x32_bf16 {v(d, 4)}, {v(96 + 4 * hh, 4)}, {v(PQ + 8 * mt + 4 * hh, 4)}, 0')
        for q in range(4):
            A(f'v_rcp_f32 {v(ND + 8 * q + 4)}, {v(ND + 8 * q + 4)}')
        for q in range(4):
            d = ND + 8 * q
            for i in (0, 2):
                A(f'v_pk_mul_f32 {v(d + i, 2)}, {v(d + i, 2)}, {v(d + 4, 2)} op_sel_hi:[1,0]')
            self.pack(144 + 2 * q, d, 2)
        self.stores([(v(144, 4), 26, 0, VL16, 4, None), (v(148, 4), 27, 0, VL16, 4, None)], sFG)
        self.flag(sF16, C_O - CB, two=True)

    def small_pre(self, XIN, mul=16):
        A = self.A
        A(f's_mul_i32 s26, {s(sT)}, {mul * KB}')
        A(f's_add_u32 s26, s26, {s(sP)}')
        A(f's_add_u32 s26, s26, {XIN}')
        A(f's_lshl_b32 s29, {s(sT)}, {CSH}')
        A(f's_add_u32 s29, s29, {s(sC)}')
        A(f's_add_u32 s29, s29, {CB}')

    def stage_wo(self):
        A = self.A
        buf, XR = 64, 128
        self.small_pre(OB)
        self.lwait(L_CR, 3, 252)
        self.poll(29, VL4, 16, ioff=C_O - CB)
        self.pstamp()
        self.small_main(16, RES, buf, XR, 16, self.DS, lambda j: (26, (j & 3) * KB, VL16), map_wo, xsig=None if 'd2early' in OPT else 4)
        self.store_tile(RES, buf, XA, STA)
        self.flag(sF8, C_XA - CB)

    def stage_w1(self):
        A = self.A
        ST, K, acc, buf, XR, CS = 32, 40, 48, 64, 128, 192
        self.cs_read(4, CS, L_CS1)
        self.small_pre(XA)
        A(f's_lshl_b32 s27, {s(sT)}, 10')
        A(f's_add_u32 s27, s27, {s(sP)}')
        A(f's_add_u32 s27, s27, {STA}')
        if 'd2early' in OPT:
            self.lwait(L_CR, 4, 252)
        A.wait_all(vm=False)
        self.poll(29, VL4, 8, ioff=C_XA - CB)
        self.pstamp()

        def f():
            A = self.A
            self.stats_consume(ST, 3)
            self.rstd(VMR + 1, ST + 1)
            A(f'v_mul_f32 {v(VMR)}, {v(ST)}, {v(VMR + 1)}')
            A(f'v_mul_f32 v38, {v(VMR + 1)}, {v(VMR + 1)}')
            A(f'v_mul_f32 v38, v38, {v(ST + 1)}')
            self.rstd(38, 38)
            A(f'v_mul_f32 v38, v38, {v(VMR + 1)}')
            self.gelu_consts(K, 38)
        self.small_main(16, acc, buf, XR, 16, self.DS, lambda j: (26, (j & 3) * KB, VL16), map_w1, fill=self.rec(f), czero=True,
                        extra=lambda: self.ld_stats(ST, 27), xsig=5,
                        preread=None if 'd2early' in OPT else (lambda j: self.lwait(L_CR, 4, 252) if j == 12 else None))
        self.ln_fix(acc, 16, CS, ST)
        self.gelu(acc, 16, K, buf, buf + 16)
        A(f's_add_u32 s26, {s(sTILE)}, {H}')
        self.stores([(v(buf + 16, 4), 26, 0, VL16, 4, None), (v(buf + 20, 4), 26, KB, VL16, 4, None)], sFH)
        self.flag(sF8, C_H - CB, fast=sFH)

    def stage_w2(self):
        A = self.A
        acc, buf, XR = 48, 64, 128
        A(f's_lshl_b32 s26, {s(sT)}, 4')
        A(f'v_and_b32 v13, 15, {v(VLANE)}')
        A(f'v_add_u32 v13, s26, v13')
        A(f'v_and_b32 v38, 0x300, {v(VL16)}')
        A(f'v_mov_b32 v39, {OOB}')
        A(f's_movk_i32 s27, 2048')
        for gi, d in enumerate((-1, 1, -2, 2)):
            A(f'v_add_u32 v36, {d}, v13')
            A(f'v_cmp_gt_u32 vcc, s27, v36')
            A(f'v_lshrrev_b32 v3, 4, v36')
            A(f'v_lshl_add_u32 v3, v3, 14, v38')
            A(f'v_and_b32 v36, 15, v36')
            A(f'v_lshl_add_u32 v3, v36, 4, v3')
            A(f'v_cndmask_b32 {v(FREE + gi)}, v39, v3, vcc')
        A(f's_add_u32 s26, {s(sP)}, {H}')
        A(f'v_and_b32 v13, 2, {v(VLANE)}')
        A(f'v_add_u32 v13, -1, v13')
        A(f'v_bfe_u32 v38, {v(VLANE)}, 3, 1')
        A(f'v_mul_i32_i24 v13, v13, v38')
        A(f'v_add_u32 v13, {s(sT)}, v13')
        A(f'v_max_i32 v13, 0, v13')
        A(f'v_min_i32 v13, 0x7f, v13')
        A(f'v_and_b32 v38, 0x1c, {v(VL4)}')
        A(f'v_lshl_add_u32 v13, v13, {CSH}, v38')
        A(f's_add_u32 s29, {s(sC)}, {C_H}')
        for i in range(0, 16, 2):
            A(f'v_pk_fma_f32 {v(acc + i, 2)}, {v(RES + i, 2)}, {v(VMR, 2)}, {v(VMR, 2)} op_sel:[0,1,0] op_sel_hi:[1,1,0] neg_lo:[0,0,1] neg_hi:[0,0,1]')
        self.lwait(L_CR, 5, 252)
        self.poll(29, 13, 16)
        self.pstamp()
        self.small_main(16, acc, buf, XR, 16, self.DS, lambda j: (26, (j & 3) * KB, FREE + (j >> 2)), map_w2, xsig=6, fsig=7)
        self.store_tile(acc, buf, X1, ST1)
        for i in range(0, 16, 2):
            A(f'v_pk_add_f32 {v(RES + i, 2)}, {v(RES + i, 2)}, {v(acc + i, 2)}')
        self.flag(sF8, C_X1 - CB)

    def stage_w3(self):
        A = self.A
        NT = 7
        ST, K, acc, buf, XR, CS = 32, 40, 48, 104, 160, 224
        self.cs_read(NT, CS, L_CS3)
        self.big_pre(X1, ST1)
        A(f's_add_u32 s29, s29, {C_X1}')
        A(f's_mul_i32 s30, {s(sT0)}, {56 * KB}')
        A(f's_add_u32 s30, s30, {s(sP)}')
        A(f's_add_u32 s30, s30, {G}')
        A(f's_lshl_b32 s32, {s(sCG16)}, 9')
        A(f's_add_u32 s32, s32, s30')
        A(f's_add_u32 s32, s32, {48 * KB}')
        A(f's_mul_i32 s31, {s(sCG16)}, {3 * KB}')
        A(f's_add_u32 s30, s30, s31')
        A(f's_add_u32 s31, s30, {56 * KB}')
        A(f'v_bfe_u32 v3, {v(VLANE)}, 4, 1')
        A(f'v_mul_u32_u24 v13, {56 * KB}, v3')
        A(f'v_lshrrev_b32 v3, 5, {v(VLANE)}')
        A(f'v_lshl_add_u32 v13, v3, 8, v13')
        A(f'v_and_b32 v3, 0xf0, {v(VL16)}')
        A(f'v_add_u32 v13, v13, v3')
        self.lwait(L_CR, 6, 252)
        self.poll(29, VP2, 16)
        self.pstamp()

        def f():
            for mt in range(2):
                self.stats_consume(ST + 4 * mt, 3)
                self.rstd(ST + 4 * mt + 2, ST + 4 * mt + 1)
                self.gelu_consts(K + 4 * mt, ST + 4 * mt + 2)
        self.big_main(NT, acc, buf, XR, ST, self.rec(f), map_w3, 13, 7, 8, 9)
        for mt in range(2):
            P = acc + 28 * mt
            self.ln_fix(P, 28, CS, ST + 4 * mt)
            out = 160 + 12 * mt
            self.gelu(P, 28, K + 4 * mt, buf, None)
            self.pack(out, buf, 12)
            self.pack(184 + 2 * mt, buf + 24, 2)
            lst = [(v(out + 4 * q, 4), 30 + mt, q * KB, VL16, 4, None) for q in range(3)]
            if mt == 1:
                A('v_permlane16_swap_b32 v184, v186')
                A('v_permlane16_swap_b32 v185, v187')
                lst.append((v(184, 4), 32, 0, 13, 4, None))
            self.stores(lst, sFG)
        self.flag(sF16, C_G - CB, two=True)

    def stage_w4(self, Lfinal):
        A = self.A
        buf, XR = 64, 128
        self.small_pre(G, 56)
        self.lwait(L_CR, 8, 252)
        self.poll(29, VL4, 16, ioff=C_G - CB)
        self.pstamp()

        def hook2(j, t):
            if j == 16 and t == 3:
                self.sig(L_CF, 10)
            if j == 38 and t == 3:
                self.sig(L_CF, 11)

        def preread(j):
            if j == 11:
                self.lwait(L_CR, 9, 252)
            if j == 39:
                self.lwait(L_CR, 10, 252)
        self.small_main(56, RES, buf, XR, 24, self.D4, lambda j: (26, (j & 3) * KB, VL16), map_w4,
                        hook2=hook2, preread=preread, fsig=12)
        A(f's_cmp_eq_u32 {s(sPAIR)}, 1')
        A(f's_cbranch_scc1 {Lfinal}')
        self.store_tile(RES, buf, X0, ST0, nextpair=True)
        self.flag(sF8, C_X - CB + CSTRIDE)

    def dump2(self):
        if not self.prof:
            return
        A = self.A
        A(f's_lshl_b32 s55, s2, 2')
        A(f's_add_u32 s55, s55, {s(SW)}')
        A(f's_lshl_b32 s55, s55, 1')
        A(f's_add_u32 s55, s55, {s(sPAIR)}')
        A(f's_lshl_b32 s55, s55, 8')
        A(f's_add_u32 s55, s55, {DBG + 512 * 128}')
        A(f'v_writelane_b32 v12, {s(sFAST)}, 61')
        A(f'buffer_store_dword v12, {v(VL4)}, {s(SRD, 4)}, s55 offen')

    def loader(self):
        A = self.A
        sLW, sWs, sM = 26, 27, 28
        A(f's_sub_u32 {s(sLW)}, {s(SW)}, 4')
        A('s_getreg_b32 s30, hwreg(HW_REG_XCC_ID)')
        A('s_add_u32 s30, s30, 1')
        A('s_and_b32 s31, s2, 7')
        A('s_lshl_b32 s31, s31, 7')
        A(f's_add_u32 s31, s31, {XT}')
        A('s_lshr_b32 s32, s2, 3')
        A('s_lshl_b32 s32, s32, 2')
        A('s_add_u32 s32, s32, s31')
        A('v_mov_b32 v10, s30')
        A('s_mov_b64 exec, 1')
        A(f'buffer_store_dword v10, {v(VL4)}, {s(SRD, 4)}, s32 offen sc1')
        A('s_mov_b64 exec, -1')
        A('s_lshr_b32 s34, s2, 3')
        A('s_lshl_b32 s34, s34, 2')
        A(f's_add_u32 s34, s34, {s(sLW)}')
        A('s_and_b32 s35, s2, 7')
        A(f's_mov_b32 {s(sP)}, 0')
        A(f's_mov_b32 {s(sFAST)}, 0')
        A(f'v_lshlrev_b32 v21, 7, {v(VLANE)}')
        A(f's_lshl_b32 s37, {s(sLW)}, 10')
        bases = {}
        for r, (nm, WP, scg, sz) in enumerate((('q', WQKV, sCG16, 96), ('o', WO, sCG8, 64), ('1', W1, sCG8, 64), ('2', W2, sCG8, 64),
                                               ('3', W3, sCG16, 112), ('4', W4, sCG8, 224))):
            A(f's_mul_i32 {s(52 + r)}, {s(scg)}, {sz * KB}')
            A(f's_add_u32 {s(52 + r)}, {s(52 + r)}, {WP}')
            if 'hotw' in OPT:
                A(f's_mov_b32 {s(52 + r)}, {WO}')
            bases[nm] = 52 + r
        A(f's_mov_b32 s39, {CS3}')
        A(f's_mov_b32 s40, 448')
        A(f's_mov_b32 s41, {L_CS3}')
        A(f's_cmp_eq_u32 {s(sLW)}, 1')
        A(f's_cselect_b32 s38, {s(sCG8)}, {s(sCG16)}')
        A(f's_cselect_b32 s39, {CS1}, s39')
        A(f's_cselect_b32 s40, 256, s40')
        A(f's_cselect_b32 s41, {L_CS1}, s41')
        A(f's_cmp_eq_u32 {s(sLW)}, 0')
        A(f's_cselect_b32 s39, {CSQ}, s39')
        A(f's_cselect_b32 s40, 384, s40')
        A(f's_cselect_b32 s41, {L_CSQ}, s41')
        A(f's_lshl_b32 s38, s38, 10')
        A(f's_add_u32 s38, s38, s39')
        A(f's_add_u32 s39, s38, s40')
        self.ld(v(28, 4), 38)
        m_cs = self.ld(v(32, 4), 39)

        def cs_fin():
            Lc = A.newlabel('csf')
            A(f's_cmp_lg_u32 {s(sPAIR)}, 0')
            A(f's_cbranch_scc1 {Lc}')
            A(f's_waitcnt vmcnt({A.vm - m_cs})')
            A('v_pk_add_f32 v[28:29], v[28:29], v[32:33]')
            A('v_pk_add_f32 v[30:31], v[30:31], v[34:35]')
            A(f'v_add_u32 v36, s41, {v(VL16)}')
            A(f'v_cmp_gt_u32 vcc, s40, {v(VL16)}')
            A('s_mov_b64 exec, vcc')
            A('ds_write_b128 v36, v[28:31]')
            A('s_mov_b64 exec, -1')
            A.label(Lc)
        L = A.newlabel('lloop')
        A.label(L)

        def run(nm, src0, lds0, n):
            for i in range(0, n, 4):
                if i + 4 <= n:
                    A(f's_add_u32 m0, s37, {lds0 + i * KB}')
                    A(f's_add_u32 s28, s37, {src0 + i * KB}')
                else:
                    A(f's_min_u32 s28, s37, {(n - 1 - i) * KB}')
                    A(f's_add_u32 m0, s28, {lds0 + i * KB}')
                    A(f's_add_u32 s28, s28, {src0 + i * KB}')
                A(f's_add_u32 s28, s28, {s(bases[nm])}')
                self.dma(28)

        def steps(nm, lmap, NT, j0, j1):
            j = j0
            while j < j1:
                e = j + 1
                while e < j1 and lmap(e) == lmap(e - 1) + NT * KB:
                    e += 1
                run(nm, j * NT * KB, lmap(j), (e - j) * NT)
                j = e

        def touch(base, size):
            share = size // 128
            A(f's_mul_i32 s33, s34, {share}')
            A(f's_add_u32 s33, s33, {base}')
            for i in range((share + 8191) // 8192):
                A(f'buffer_load_dword v20, v21, {s(SRD, 4)}, s33 offen')
                A(f's_add_u32 s33, s33, 8192')

        PK_ = int([o[2:] for o in OPT if o.startswith('pk')][0]) if any(o.startswith('pk') for o in OPT) else 16

        def pfl(base, size, trig=None):
            if trig:
                self.lwait(L_PS, trig, 24, sleep=2)
            share = size // 128
            lines = share // 128
            A(f's_mul_i32 s33, s34, {share}')
            A(f's_add_u32 s33, s33, {base}')
            A(f's_mov_b64 exec, {(1 << PK_) - 1:#x}')
            A(f's_mov_b32 s36, {(lines + PK_ - 1) // PK_}')
            Lp_ = A.newlabel('pf')
            A.label(Lp_)
            A(f'buffer_load_dword v20, v21, {s(SRD, 4)}, s33 offen')
            A(f's_add_u32 s33, s33, {PK_ * 128}')
            A('s_sub_u32 s36, s36, 1')
            A('s_cmp_lg_u32 s36, 0')
            A('s_waitcnt vmcnt(0)')
            A.vm_done = A.vm
            A(f's_cbranch_scc1 {Lp_}')
            A('s_mov_b64 exec, -1')

        def batch(k, parts, after=None):
            self.lwait(L_CF, k, 24, sleep=2)
            for p in parts:
                if 'now' not in OPT:
                    steps(*p)
            m = A.vmark()
            if after:
                after()
            A.wait(vm=m)
            self.sig(L_CR, k)
        batch(1, [('q', map_q, 6, 0, 14)], cs_fin)
        batch(2, [('q', map_q, 6, 14, 16)])
        Ln = A.newlabel('nochk')
        A.wait_all(vm=False)
        A(f's_or_b32 s33, {s(sPAIR)}, {s(sLW)}')
        A(f's_cmp_lg_u32 s33, 0')
        A(f's_cbranch_scc1 {Ln}')
        self.poll(31, VL4, 32, mode='atomic')
        A('s_mov_b32 exec_hi, 0')
        A('v_cmp_eq_u32 vcc, s30, v3')
        A('s_cmp_eq_u64 vcc, exec')
        A(f's_cselect_b32 s33, {1 if "slow" in OPT else 2}, 1')
        A('s_mov_b64 exec, -1')
        A('v_mov_b32 v10, s33')
        A(f'ds_write_b32 {v(VPERM)}, v10 offset:{L_MODE - L_CF}')
        A.wait_all(vm=False)
        A.label(Ln)
        if 'pa' in OPT:
            pfl(WO, 1024 * KB, 1)
        batch(3, [('o', map_wo, 4, 0, 16), ('1', map_w1, 4, 0, 12)],
              (lambda: touch(W3, 1792 * KB)) if 'pf3' in OPT else (lambda: touch(W3, 1024 * KB)) if 'pf3h' in OPT else None)
        batch(4, [('1', map_w1, 4, 12, 16), ('2', map_w2, 4, 0, 7)],
              (lambda: touch(W3, 1792 * KB)) if 'pf4' in OPT else None)
        batch(5, [('2', map_w2, 4, 7, 16), ('3', map_w3, 7, 0, 3)])
        batch(6, [('3', map_w3, 7, 3, 13)])
        batch(7, [('3', map_w3, 7, 13, 16)])
        if 'pb' in OPT:
            pfl(W4, 1792 * KB, 2)
        batch(8, [('4', map_w4, 4, 0, 11)])
        batch(9, [('4', map_w4, 4, 11, 39)])
        batch(10, [('4', map_w4, 4, 39, 56)])
        if 'pc' in OPT:
            Lq = A.newlabel('nopq')
            A(f's_cmp_lg_u32 {s(sPAIR)}, 0')
            A(f's_cbranch_scc1 {Lq}')
            pfl(WQKV, 1536 * KB)
            A.label(Lq)
        A.wait_all()
        A(f's_add_u32 {s(sEV)}, {s(sEV)}, 10')
        A(f's_add_u32 {s(sPAIR)}, {s(sPAIR)}, 1')
        A(f's_cmp_lt_u32 {s(sPAIR)}, 2')
        A(f's_cbranch_scc1 {L}')
        A('s_endpgm')

    def main(self):
        A = self.A
        name = 'main_kernel'
        prof = self.prof
        self.prof = False
        self.begin(name, 256)
        self.prof = prof
        if self.prof:
            A('s_memrealtime s[62:63]')
        A(f's_load_dwordx2 {s(SRD2, 2)}, s[0:1], 72')
        A(f's_mov_b32 {s(SRD2 + 2)}, {2048 * 512 * 2}')
        A(f's_mov_b32 {s(SRD2 + 3)}, 0x00020000')
        self.tile64(sT, sCG8)
        self.tile128(sT0, sCG16)
        A(f's_mov_b32 {s(sPAIR)}, 0')
        A(f's_mov_b32 {s(sTO)}, 0x40000')
        A(f'v_lshlrev_b32 {v(VL4)}, 2, {v(VLANE)}')
        A(f's_mov_b32 {s(sEV)}, 0')
        A(f'v_mov_b32 {v(VPERM)}, {L_CF}')
        A(f's_and_b32 s26, {s(SW)}, 3')
        A(f's_lshl_b32 s26, s26, 2')
        A(f'v_add_u32 {v(VOWN)}, s26, {v(VPERM)}')
        A(f'v_cmp_gt_u32 vcc, 4, {v(VLANE)}')
        A(f'v_cndmask_b32 v3, 0, 2, vcc')
        A(f'v_add_u32 v13, {v(VL4)}, {v(VPERM)}')
        A(f'ds_write_b32 v13, v3')
        LC = A.newlabel('compute')
        A(f's_cmp_lt_u32 {s(SW)}, 4')
        A('s_waitcnt lgkmcnt(0)')
        A.lg_done = A.lg
        A('s_barrier')
        A(f's_cbranch_scc1 {LC}')
        self.loader()
        A.label(LC)
        A.flush_hazards()
        A.vm = A.vm_done = A.lg = A.lg_done = 0
        if 'noprio' not in OPT:
            A('s_setprio 3')
        A(f's_mov_b32 {s(sP)}, 0')
        A(f's_mov_b32 {s(sZ)}, 0')
        A(f's_mov_b32 {s(sC)}, 0')
        A(f's_mov_b32 {s(sFAST)}, 0')
        A(f's_mov_b32 {s(sFH)}, 0')
        A(f's_mov_b32 {s(sFG)}, 0')
        A(f's_lshl_b32 {s(sT)}, {s(sT)}, 2')
        A(f's_add_u32 {s(sT)}, {s(sT)}, {s(SW)}')
        A(f's_lshl_b32 {s(sT0)}, {s(sT0)}, 3')
        A(f's_lshl_b32 s26, {s(SW)}, 1')
        A(f's_add_u32 {s(sT0)}, {s(sT0)}, s26')
        A(f's_lshl_b32 {s(sTILE)}, {s(sT)}, 14')
        A(f's_lshl_b32 s26, {s(sCG8)}, 11')
        A(f's_add_u32 {s(sTILE)}, {s(sTILE)}, s26')
        A(f's_lshl_b32 {s(sSTP)}, {s(sT)}, 10')
        A(f's_lshl_b32 s26, {s(sCG8)}, 7')
        A(f's_add_u32 {s(sSTP)}, {s(sSTP)}, s26')
        for f, t, c in ((sF8, sT, sCG8), (sF16, sT0, sCG16)):
            A(f's_lshl_b32 {s(f)}, {s(t)}, {CSH}')
            A(f's_lshl_b32 s26, {s(c)}, 2')
            A(f's_add_u32 {s(f)}, {s(f)}, s26')
            A(f's_add_u32 {s(f)}, {s(f)}, {CB}')
        A(f'v_add_u32 {v(VB64)}, 0x10000, {v(VL16)}')
        A(f'v_add_u32 {v(VB128)}, 0x20000, {v(VL16)}')
        A(f'v_and_b32 {v(VSTL)}, 0x300, {v(VL16)}')
        A(f'v_and_b32 v3, 15, {v(VLANE)}')
        A(f'v_lshl_add_u32 {v(VSTL)}, v3, 3, {v(VSTL)}')
        A(f'v_mov_b32 {v(VONE)}, 1')
        A(f'v_lshrrev_b32 {v(VP2)}, 3, {v(VLANE)}')
        A(f'v_and_b32 v3, 0x1c, {v(VL4)}')
        A(f'v_lshl_add_u32 {v(VP2)}, {v(VP2)}, {CSH}, v3')
        A('v_mov_b32 v12, 0')
        if self.prof:
            A('v_writelane_b32 v12, s62, 60')
        Lp = A.newlabel('pair')
        Lfinal = A.newlabel('final')
        A.label(Lp)
        self.nstamp = 0
        if self.prof:
            A('s_memrealtime s[60:61]')
            A('s_waitcnt lgkmcnt(0)')
            A('v_writelane_b32 v12, s60, 63')
        self.pstamp()
        self.stage_qkv()
        self.stage_wo()
        self.stage_w1()
        self.stage_w2()
        self.stage_w3()
        self.stage_w4(Lfinal)
        self.dump2()
        A(f's_mov_b32 {s(sPAIR)}, 1')
        A(f's_mov_b32 {s(sEV)}, 10')
        if 'gsc1' not in OPT:
            A(f's_mov_b32 {s(sFG)}, {s(sFAST)}')
        A(f's_mov_b32 {s(sP)}, {PSTRIDE}')
        A(f's_mov_b32 {s(sZ)}, {ZSTRIDE}')
        A(f's_mov_b32 {s(sC)}, {CSTRIDE}')
        A(f's_add_u32 {s(sTILE)}, {s(sTILE)}, {PSTRIDE}')
        A(f's_add_u32 {s(sSTP)}, {s(sSTP)}, {PSTRIDE}')
        A(f's_add_u32 {s(sF8)}, {s(sF8)}, {CSTRIDE}')
        A(f's_add_u32 {s(sF16)}, {s(sF16)}, {CSTRIDE}')
        A(f's_branch {Lp}')
        A.label(Lfinal)
        buf = 64
        A(f'v_and_b32 v13, 15, {v(VLANE)}')
        A(f'v_lshlrev_b32 v13, 10, v13')
        A(f'v_bfe_u32 v3, {v(VLANE)}, 4, 1')
        A(f'v_lshl_add_u32 v13, v3, 5, v13')
        A(f'v_lshrrev_b32 v3, 5, {v(VLANE)}')
        A(f'v_lshl_add_u32 v13, v3, 4, v13')
        A(f's_lshl_b32 s28, {s(sT)}, 14')
        A(f's_lshl_b32 s29, {s(sCG8)}, 7')
        A(f's_add_u32 s28, s28, s29')
        self.pack(buf, RES, 8)
        for q in range(2):
            b = buf + 4 * q
            A(f'v_permlane16_swap_b32 {v(b)}, {v(b + 2)}')
            A(f'v_permlane16_swap_b32 {v(b + 1)}, {v(b + 3)}')
        for q in range(2):
            self.st(v(buf + 4 * q, 4), 28, 64 * q, voff=13, srd=SRD2)
        if self.prof:
            A('s_memrealtime s[60:61]')
            A('s_waitcnt lgkmcnt(0)')
            A('v_writelane_b32 v12, s60, 62')
        self.dump2()
        prof = self.prof
        self.prof = False
        self.end(name)
        self.prof = prof
        return (name, 256, 160 * KB, 512)

    def build(self, hdr):
        self.zero_all = True
        self.codepf = 'nocodepf' not in OPT
        self.stsfx = ' sc1' if 'k0sc1' in OPT else ''
        k0 = self.k0() + (256,)
        self.stsfx = ''
        km = self.main()
        self.A.label('code_end')
        out = [hdr]
        for n, g, lds, blk in (k0, km):
            out.append(f'; @launch kernel={n} grid=({g},1,1) block=({blk},1,1) lds={lds}')
        out.append('.amdgcn_target "amdgcn-amd-amdhsa--gfx950"')
        out.append('.text')
        out.append(self.A.text())
        out.append('.section .rodata,"a"')
        for n, nv, accum, ns in self.kernels:
            assert nv <= 256
            out.append('.p2align 6')
            out.append(f'.amdhsa_kernel {n}')
            out.append(f'  .amdhsa_next_free_vgpr {nv}')
            out.append(f'  .amdhsa_next_free_sgpr {max(ns, 16)}')
            out.append(f'  .amdhsa_accum_offset {accum}')
            out.append('  .amdhsa_group_segment_fixed_size 0')
            out.append('  .amdhsa_kernarg_size 96')
            out.append('  .amdhsa_user_sgpr_count 2')
            out.append('  .amdhsa_user_sgpr_kernarg_segment_ptr 1')
            out.append('  .amdhsa_system_sgpr_workgroup_id_x 1')
            out.append('  .amdhsa_float_denorm_mode_32 3')
            out.append('.end_amdhsa_kernel')
        return '\n'.join(out) + '\n'


if __name__ == '__main__':
    g = Gen3()
    g.prof = 'prof' in OPT
    txt = g.build(header())
    out = sys.argv[1]
    if out == '-':
        out = f'cdna_kernels/{NAME}.s'
    open(out, 'w').write(txt)
    json.dump(LAYOUT, open('layout.json', 'w'))
    for k in g.kernels:
        print(k)
    print('nops inserted', g.A.nops, 'ws used', WS_USED, 'stamps', g.nstamp)
```

```python
import re

REG_RE = re.compile(r'^(-|abs\()?([vas])(\d+|\[(\d+):(\d+)\])\)?$')

TRANS = ('v_exp_f32', 'v_rcp_f32', 'v_rsq_f32', 'v_sqrt_f32', 'v_log_f32')


def regs_of(tok):
    tok = tok.strip()
    if tok in ('vcc', 'exec', 'm0', 'scc'):
        return {tok}
    if tok in ('vcc_lo', 'vcc_hi'):
        return {'vcc'}
    if tok in ('exec_lo', 'exec_hi'):
        return {'exec'}
    m = REG_RE.match(tok)
    if not m:
        return set()
    k = m.group(2)
    if m.group(4) is not None:
        return {(k, i) for i in range(int(m.group(4)), int(m.group(5)) + 1)}
    return {(k, int(m.group(3)))}


def split_ops(s):
    out, depth, cur = [], 0, ''
    for ch in s:
        if ch in '[(':
            depth += 1
        if ch in '])':
            depth -= 1
        if ch == ',' and depth == 0:
            out.append(cur.strip())
            cur = ''
        else:
            cur += ch
    if cur.strip():
        out.append(cur.strip())
    return out


class Ins:
    __slots__ = ('text', 'kind', 'w', 'r', 'pos', 'mn', 'srcc', 'srcab', 'sdata', 'lds_dma', 'dreg')


def v(i, n=1):
    return f'v{i}' if n == 1 else f'v[{i}:{i + n - 1}]'


def a(i, n=1):
    return f'a{i}' if n == 1 else f'a[{i}:{i + n - 1}]'


def s(i, n=1):
    return f's{i}' if n == 1 else f's[{i}:{i + n - 1}]'


class Asm:
    def __init__(self):
        self.lines = []
        self.hist = []
        self.pos = 0
        self.vm = 0
        self.vm_done = 0
        self.lg = 0
        self.lg_done = 0
        self.maxv = -1
        self.maxa = -1
        self.maxs = -1
        self.nops = 0
        self.nlabel = 0

    def raw(self, t):
        self.lines.append(t)

    def comment(self, t):
        self.lines.append('    ; ' + t)

    def label(self, name):
        self.lines.append(name + ':')

    def newlabel(self, base):
        self.nlabel += 1
        return f'.L{base}_{self.nlabel}'

    def reset_kernel(self):
        self.hist = []
        self.vm = self.vm_done = self.lg = self.lg_done = 0
        self.maxv = self.maxa = self.maxs = -1

    def flush_hazards(self, n=16):
        self.hist = []

    def _parse(self, text):
        t = text.split(';')[0].strip()
        parts = t.split(None, 1)
        mn = parts[0]
        ops = split_ops(parts[1]) if len(parts) > 1 else []
        mods = ''
        if ops:
            lp = ops[-1].split(None, 1)
            ops[-1] = lp[0]
            mods = lp[1] if len(lp) > 1 else ''
        I = Ins()
        I.text, I.mn = text, mn
        I.w, I.r = set(), set()
        I.srcc, I.srcab, I.sdata, I.lds_dma, I.dreg = set(), set(), set(), False, None
        R = [regs_of(o) for o in ops]
        if mn.startswith('v_mfma'):
            I.kind = 'mfma'
            I.w = R[0]
            I.srcab = R[1] | R[2]
            I.srcc = R[3]
            I.r = I.srcab | I.srcc
            I.dreg = (ops[0], ops[3])
        elif mn.startswith('v_'):
            I.kind = 'trans' if mn.replace('_e32', '').replace('_e64', '') in TRANS else 'valu'
            if mn.startswith('v_permlane') and 'swap' in mn:
                I.w = R[0] | R[1]
                I.r = R[0] | R[1]
            elif mn.startswith('v_cmp'):
                I.w = R[0]
                I.r = set().union(*R[1:])
                if mn.startswith('v_cmpx'):
                    I.w |= {'exec'}
            elif mn.startswith(('v_add_co', 'v_sub_co', 'v_addc_co', 'v_subb_co', 'v_mad_u64')):
                I.w = R[0] | R[1]
                I.r = set().union(*R[2:])
            else:
                I.w = R[0]
                I.r = set().union(*R[1:]) if len(R) > 1 else set()
                if mn.startswith(('v_fmac', 'v_dot2c', 'v_writelane')):
                    I.r |= R[0]
            I.r |= {'exec'}
        elif mn.startswith(('buffer_', 'global_')):
            I.kind = 'vmem'
            modl = mods.split()
            if 'lds' in modl or '_lds_' in mn:
                I.lds_dma = True
                I.r = set().union(*R) | {'m0'}
            elif 'load' in mn:
                I.w = R[0]
                I.r = set().union(*R[1:])
                if 'd16' in mn:
                    I.r |= R[0]
            elif 'atomic' in mn:
                I.r = set().union(*R)
                if 'sc0' in modl:
                    I.w = R[0]
            elif mn in ('buffer_wbl2', 'buffer_inv'):
                pass
            else:
                I.r = set().union(*R)
                if mn.startswith('buffer_store'):
                    d = R[0]
                else:
                    d = R[1]
                if 'x4' in mn or 'x3' in mn:
                    I.sdata = d
        elif mn.startswith('ds_'):
            I.kind = 'ds'
            if 'read' in mn or 'permute' in mn or 'swizzle' in mn:
                I.w = R[0]
                I.r = set().union(*R[1:])
            else:
                I.r = set().union(*R)
        elif mn.startswith('s_'):
            I.kind = 'salu'
            if mn.startswith(('s_cmp', 's_cbranch', 's_branch', 's_waitcnt', 's_barrier', 's_nop', 's_endpgm',
                              's_sleep', 's_setprio', 's_bitcmp')):
                I.r = set().union(*R) if R else set()
            elif 'saveexec' in mn:
                I.w = R[0] | {'exec'}
                I.r = set().union(*R[1:]) | {'exec'}
            else:
                I.w = R[0] if R else set()
                I.r = set().union(*R[1:]) if len(R) > 1 else set()
            if mn.startswith('s_load') or mn.startswith('s_buffer_load') or mn.startswith('s_mem'):
                I.kind = 'smem'
        else:
            raise ValueError('unknown instr ' + text)
        for r in I.w | I.r:
            if isinstance(r, tuple):
                if r[0] == 'v':
                    self.maxv = max(self.maxv, r[1])
                elif r[0] == 'a':
                    self.maxa = max(self.maxa, r[1])
                else:
                    self.maxs = max(self.maxs, r[1])
        return I

    def _need(self, P, C):
        n = 0
        isv = lambda x: x.kind in ('valu', 'trans')
        vec = lambda S: {r for r in S if isinstance(r, tuple) and r[0] in 'va'}
        sg = lambda S: {r for r in S if (isinstance(r, tuple) and r[0] == 's') or r == 'vcc'}
        if P.kind == 'mfma':
            big = '32x32' in P.mn
            raw = 12 if big else 8
            if C.kind == 'mfma':
                if P.w & C.srcab:
                    n = max(n, raw)
                if P.w & C.srcc:
                    if not (C.dreg[1] == P.dreg[0] and ('32x32' in C.mn) == big):
                        n = max(n, 10 if big else 6)
                elif P.w & C.w:
                    n = max(n, raw)
            else:
                if P.w & (C.r | C.w):
                    n = max(n, raw)
                if isv(C) and (P.srcc & C.w):
                    n = max(n, 7 if big else 3)
        if isv(P):
            if C.kind == 'mfma' and (vec(P.w) & C.r):
                n = max(n, 2)
            if C.kind == 'mfma' and 'exec' in P.w:
                n = max(n, 4)
            if P.kind == 'trans' and C.kind != 'trans' and (P.w & C.r):
                n = max(n, 1)
            if C.mn.startswith('v_permlane') and (vec(P.w) & C.r):
                n = max(n, 2)
            if C.mn.startswith(('v_readfirstlane', 'v_readlane')) and (vec(P.w) & C.r):
                n = max(n, 1)
            if 'dpp' in C.text or 'row_' in C.text or 'quad_perm' in C.text:
                if vec(P.w) & C.r:
                    n = max(n, 2)
            if sg(P.w):
                if C.kind == 'vmem' and (sg(P.w) & C.r):
                    n = max(n, 5)
                if isv(C) and (sg(P.w) & C.r):
                    n = max(n, 4 if C.mn.startswith(('v_readlane', 'v_writelane')) else 2)
                if C.kind in ('salu', 'smem') and (sg(P.w) & C.r):
                    n = max(n, 1)
            if 'exec' in P.w and C.mn.startswith(('v_readlane', 'v_readfirstlane', 'v_writelane', 'v_permlane')):
                n = max(n, 4)
        if P.mn.startswith('v_dot') and (P.w & (C.r | C.w)):
            if not (C.mn == P.mn and C.w == P.w):
                n = max(n, 3)
        if P.kind == 'salu' and 'm0' in P.w and C.lds_dma:
            n = max(n, 1)
        if P.sdata and (P.sdata & C.w):
            n = max(n, 2)
        return n

    def __call__(self, text):
        for line in text.strip().split('\n'):
            line = line.strip()
            if not line or line.startswith(';'):
                continue
            self._emit1(line)

    def _emit1(self, text):
        I = self._parse(text)
        if I.kind == 'ds' and self.lg - self.lg_done >= 15:
            self.wait(lg=self.lg - 8)
        need = 0
        for P in reversed(self.hist):
            d = self.pos - P.pos - 1
            if d >= 20:
                break
            n = self._need(P, I)
            if n - d > need:
                need = n - d
        if need > 0:
            self.lines.append(f'    s_nop {need - 1}')
            self.pos += need
            self.nops += 1
        I.pos = self.pos
        if I.mn == 's_nop':
            self.pos += int(text.split()[1], 0) + 1
        else:
            self.pos += 1
        self.hist.append(I)
        if len(self.hist) > 40:
            self.hist.pop(0)
        self.lines.append('    ' + text)
        if I.kind == 'vmem' and I.mn not in ('buffer_wbl2', 'buffer_inv'):
            self.vm += 1
            assert self.vm - self.vm_done <= 63, 'too many vmem outstanding: ' + text
        if I.kind == 'ds':
            self.lg += 1
            assert self.lg - self.lg_done <= 15, 'too many lds outstanding: ' + text

    def vmark(self):
        return self.vm

    def lmark(self):
        return self.lg

    def wait(self, vm=None, lg=None):
        parts = []
        if vm is not None and vm > self.vm_done:
            parts.append(f'vmcnt({self.vm - vm})')
            self.vm_done = vm
        if lg is not None and lg > self.lg_done:
            parts.append(f'lgkmcnt({self.lg - lg})')
            self.lg_done = lg
        if parts:
            self('s_waitcnt ' + ' '.join(parts))

    def wait_all(self, vm=True, lg=True):
        self.wait(self.vm if vm else None, self.lg if lg else None)

    def text(self):
        return '\n'.join(self.lines) + '\n'
```

```python
import sys, json
import gen as G1
from gen import Gen, KB, NAME, f32, LOG2E, OOB, SRD, SW, SRD2, VL16, VLANE, header
from asmlib import v, a, s

OPT = set(sys.argv[2:])

_off = 0
def _alloc(n):
    global _off
    r = _off
    _off += (n + 4095) // 4096 * 4096
    return r
WQKV = _alloc(1536 * KB); WO = _alloc(512 * KB); W1 = _alloc(512 * KB); W2 = _alloc(512 * KB)
W3 = _alloc(1792 * KB); W4 = _alloc(1792 * KB)
CSQ = _alloc(16 * KB); CS1 = _alloc(8 * KB); CS3 = _alloc(16 * KB); DUMMY = _alloc(4 * KB)
ZR = _alloc(512 * KB)
ZSTRIDE = 128 * KB
KV = ZR
Z = KV + 64 * KB
PC = ZR + 96 * KB
CSH = 11
CB = ZR + 256 * KB
C_X, C_O, C_XA, C_H, C_X1, C_G, C_KV = [CB + 128 * i for i in range(7)]
CSTRIDE = 1024
X0 = _alloc(2048 * KB); ST0 = _alloc(128 * KB); OB = _alloc(2048 * KB); G = _alloc(7168 * KB)
XA = X1 = X0
STA = ST1 = ST0
H = OB
PSTRIDE = 0
DBG = _alloc(16 * 512 * 128 * 2)
WS_USED = _off
LAYOUT = {k: val for k, val in globals().items() if k.isupper() and isinstance(val, int)}
for k_, v_ in LAYOUT.items():
    setattr(G1, k_, v_)

sT, sCG8, sT0, sCG16, sP, sPAIR, sZ, sTO = 16, 17, 18, 19, 20, 21, 22, 23
sTILE, sSTP, sC, sFAST, sFH = 24, 25, 44, 45, 46
sFG = 49
sF8, sF16 = 47, 48
VB64, VB128, VSTL, VL4, VONE, VP2 = 4, 5, 6, 7, 8, 9
VMR = 10
RES = 16
FREE = 32
PERM = 156 * KB
L_CSQ, L_CS1, L_CS3 = PERM, PERM + 384, PERM + 640
L_CF, L_CR, L_CB, L_MODE, L_GO = PERM + 2048, PERM + 2064, PERM + 2080, PERM + 2096, PERM + 2100
L_PS = PERM + 2112
L_CS = PERM + 2128
PA = 64
SRDD = 88
PST = 138 * KB
PHL = 154 * KB
sEV = 50
VPERM = 15
VOWN = 14
GR = 4 * KB
def map_wo(j): return (35 + j) * GR if j < 4 else (j - 4) * GR
def map_w1(j): return (12 + j) * GR
def map_w2(j): return (28 + j) * GR if j < 11 else (j - 11) * GR
def map_w3(j): return ((j + 3) % 16) * 7 * KB
def map_w4(j):
    if j >= 39: j -= 39
    return (28 + j) * GR if j < 11 else (22 + j - 11) * GR if j < 17 else (j - 17) * GR
def map_q(j): return j * 6 * KB


class Rec:
    def __init__(self):
        self.l = []

    def __call__(self, t):
        self.l.append(t)


class Gen3(Gen):
    persist = False
    first_wait = False
    XGO = int([o[3:] for o in OPT if o.startswith('xgo')][0]) if any(o.startswith('xgo') for o in OPT) else 2
    NPRE = int([o[4:] for o in OPT if o.startswith('npre')][0]) if any(o.startswith('npre') for o in OPT) else 2
    DS = 8
    D4 = 10
    DB = 6

    def rec(self, fn):
        keep = self.A
        self.A = Rec()
        fn()
        l = self.A.l
        self.A = keep
        return l

    def ldx(self, dst, soff, ioff=0, voff=VL16, w=4, sc=None):
        o = f' offset:{ioff}' if ioff else ''
        wn = {1: 'dword', 2: 'dwordx2', 4: 'dwordx4'}[w]
        if sc is None:
            sc = '' if 'ldplain' in OPT else ' nt' if 'ldnt' in OPT else ' sc0' if 'ldsc0' in OPT else ' sc1'
        self.A(f'buffer_load_{wn} {dst}, {v(voff)}, {s(SRD, 4)}, {s(soff)} offen{o}{sc}')
        return self.A.vmark()

    dmant = False

    def dma(self, soff, ioff=0, voff=VL16, srd=SRD):
        o = f' offset:{ioff}' if ioff else ''
        nt = ' sc1' if (srd == SRD and 'dmaplain' not in OPT) else ''
        self.A(f'buffer_load_dwordx4 {v(voff)}, {s(srd, 4)}, {s(soff)} offen{o}{nt} lds')
        return self.A.vmark()

    def stores(self, lst, fast=sFAST):
        A = self.A
        Ls, Ld = A.newlabel('sts'), A.newlabel('std')

        def emit(sc):
            for src, soff, ioff, voff, w, ex in lst:
                o = f' offset:{ioff}' if ioff else ''
                wn = {1: 'dword', 2: 'dwordx2', 4: 'dwordx4'}[w]
                if ex:
                    A(f's_mov_b64 exec, {ex}')
                A(f'buffer_store_{wn} {src}, {v(voff)}, {s(SRD, 4)}, {s(soff)} offen{o}{sc}')
                if ex:
                    A('s_mov_b64 exec, -1')
        A(f's_cmp_eq_u32 {s(fast)}, 0')
        A(f's_cbranch_scc1 {Ls}')
        vm0 = A.vm
        emit(' nt' if 'stnt' in OPT else ' sc0' if 'stsc0' in OPT else ' sc1' if ('datasc1' in OPT and lst[0][4] != 1) else '')
        A(f's_branch {Ld}')
        A.label(Ls)
        A.vm = vm0
        emit(' sc1')
        A.label(Ld)

    def pstamp(self):
        if not self.prof:
            return
        A = self.A
        assert A.lg == A.lg_done
        i = self.nstamp
        self.nstamp += 1
        A('s_memtime s[60:61]')
        A('s_waitcnt lgkmcnt(0)')
        A(f'v_writelane_b32 v12, s60, {i}')

    def poll(self, sbase, voff, n, target=1, mode='auto', ioff=0, srd=SRD, mask=None):
        A = self.A
        assert A.lg == A.lg_done
        L, LS, LC, D = A.newlabel('poll'), A.newlabel('polls'), A.newlabel('pollc'), A.newlabel('polld')
        o = f' offset:{ioff}' if ioff else ''
        A(f's_mov_b64 exec, {(1 << n) - 1:#x}' if n < 32 else 's_mov_b32 exec_hi, 0')
        A.label(L)
        if mode == 'auto':
            A(f's_cmp_eq_u32 {s(sFAST)}, 0')
            A(f's_cbranch_scc1 {LS}')
            A(f'buffer_load_dword v3, {v(voff)}, {s(SRD, 4)}, {s(sbase)} offen{o} sc1')
            A(f's_branch {LC}')
            A.label(LS)
        if mode == 'load':
            A(f'buffer_load_dword v3, {v(voff)}, {s(srd, 4)}, {s(sbase)} offen{o} sc1')
        else:
            A('v_mov_b32 v3, 0')
            A(f'buffer_atomic_add v3, {v(voff)}, {s(SRD, 4)}, {s(sbase)} offen{o} sc0')
        A.label(LC)
        A('s_waitcnt vmcnt(0)')
        A.vm_done = A.vm
        if mask:
            A(f'v_and_b32 v22, {mask}, v3')
            A(f'v_cmp_le_u32 vcc, {target}, v22')
        else:
            A(f'v_cmp_le_u32 vcc, {target}, v3')
        A('s_cmp_eq_u64 vcc, exec')
        A(f's_cbranch_scc1 {D}')
        A(f's_sub_u32 {s(sTO)}, {s(sTO)}, 1')
        A(f's_cbranch_scc1 {self.exit}')
        if mode == 'load':
            A('s_sleep 8')
        A(f's_branch {L}')
        A.label(D)
        A('s_mov_b64 exec, -1')

    def sig(self, base, k, absv=False):
        A = self.A
        if absv:
            A(f'v_mov_b32 v3, {k}')
        else:
            A(f's_add_u32 s51, {s(sEV)}, {k}')
            A('v_mov_b32 v3, s51')
        A(f'ds_write_b32 {v(VOWN)}, v3 offset:{base - L_CF}')

    def lwait(self, base, k, tmp, sleep=0, single=False, absv=False):
        A = self.A
        L, D = A.newlabel('lw'), A.newlabel('lwd')
        A(f's_mov_b32 s51, {k}' if absv else f's_add_u32 s51, {s(sEV)}, {k}')
        A.label(L)
        if single:
            A(f'ds_read_b32 {v(tmp)}, {v(VPERM)} offset:{base - L_CF}')
            A.wait_all(vm=False)
        else:
            A(f'ds_read_b128 {v(tmp, 4)}, {v(VPERM)} offset:{base - L_CF}')
            A.wait_all(vm=False)
            A(f'v_min_u32 {v(tmp)}, {v(tmp)}, {v(tmp + 1)}')
            A(f'v_min3_u32 {v(tmp)}, {v(tmp)}, {v(tmp + 2)}, {v(tmp + 3)}')
        A(f'v_cmp_le_u32 vcc, s51, {v(tmp)}')
        A(f's_cbranch_vccnz {D}')
        A(f's_sub_u32 {s(sTO)}, {s(sTO)}, 1')
        A(f's_cbranch_scc1 {self.exit}')
        if sleep:
            A(f's_sleep {sleep}')
        A(f's_branch {L}')
        A.label(D)

    def flag(self, sbase, ioff, two=False, fast=sFAST):
        self.pstamp()
        self.A.wait_all(lg=False)
        self.stores([(v(VONE), sbase, ioff, VP2, 1, '0x101' if two else '1')], fast)
        self.pstamp()

    def gemm(self, KS, MT, NT, acc, xreg, ldsoff, buf, NB, xwait, hook=None, preread=None, fill=(), czero=False, fill0=1):
        A = self.A
        vbase = {0: VL16, 1: VB64, 2: VB128}
        fill = list(fill)

        def read(j, t):
            if t == 0 and preread:
                preread(j)
            off = ldsoff(j) + t * KB
            A(f'ds_read_b128 {v(buf + ((j % NB) * NT + t) * 4, 4)}, {v(vbase[off >> 16])} offset:{off & 0xffff}')
            return A.lmark()
        marks = {}
        pre = NB
        while pre * NT > 14:
            pre -= 1
        for j in range(pre):
            for t in range(NT):
                marks[(j, t)] = read(j, t)
        nxt = [(j, t) for j in range(pre, KS) for t in range(NT)]
        for j in range(KS):
            for t in range(NT):
                A.wait(vm=xwait(j) if t == 0 else None, lg=marks[(j, t)])
                for mt in range(MT):
                    r = acc + (mt * NT + t) * 4
                    c = '0' if (czero and j == 0) else v(r, 4)
                    A(f'v_mfma_f32_16x16x32_bf16 {v(r, 4)}, {v(buf + ((j % NB) * NT + t) * 4, 4)}, {xreg(mt, j)}, {c}')
                    if fill and j >= fill0:
                        A(fill.pop(0))
                if nxt:
                    j2, t2 = nxt[0]
                    if (j2 - NB, t2) <= (j, t):
                        marks[(j2, t2)] = read(j2, t2)
                        nxt.pop(0)
                if hook:
                    hook(j, t)
        assert not nxt and not fill, (len(fill))

    def cs_read(self, NT, cs, loc):
        A = self.A
        A(f'v_and_b32 v3, 0x30, {v(VLANE)}')
        A(f'v_add_u32 v3, {loc}, v3')
        for t in range(NT):
            A(f'ds_read_b128 {v(cs + 4 * t, 4)}, v3 offset:{t * 64}')

    def ln_fix(self, acc, n, cs, mean):
        for i in range(0, n, 2):
            self.A(f'v_pk_fma_f32 {v(acc + i, 2)}, {v(cs + i, 2)}, {v(mean, 2)}, {v(acc + i, 2)} op_sel_hi:[1,0,1] neg_lo:[0,1,0] neg_hi:[0,1,0]')

    def ld_stats(self, dst, soff, ioff=0):
        self.ldx(v(dst, 2), soff, ioff, voff=VSTL, w=2)
        return self.ldx(v(dst + 2, 2), soff, ioff + 128, voff=VSTL, w=2)

    def stats_calc(self, acc, n, tmp):
        A = self.A
        S, Q = tmp, tmp + 2
        A(f'v_pk_add_f32 {v(S, 2)}, {v(acc, 2)}, {v(acc + 2, 2)}')
        A(f'v_pk_mul_f32 {v(Q, 2)}, {v(acc, 2)}, {v(acc, 2)}')
        for i in range(2, n, 2):
            if i >= 4:
                A(f'v_pk_add_f32 {v(S, 2)}, {v(S, 2)}, {v(acc + i, 2)}')
            A(f'v_pk_fma_f32 {v(Q, 2)}, {v(acc + i, 2)}, {v(acc + i, 2)}, {v(Q, 2)}')
        A(f'v_add_f32 {v(S)}, {v(S)}, {v(S + 1)}')
        A(f'v_add_f32 {v(S + 1)}, {v(Q)}, {v(Q + 1)}')
        Q = S + 1
        A(f'v_permlane32_swap_b32 {v(S)}, {v(Q)}')
        A(f'v_add_f32 {v(S)}, {v(S)}, {v(Q)}')
        A(f'v_mov_b32 {v(Q)}, {v(S)}')
        A(f'v_permlane16_swap_b32 {v(S)}, {v(Q)}')
        A(f'v_add_f32 {v(S)}, {v(S)}, {v(Q)}')
        A(f'v_mov_b32 {v(Q)}, {v(S)}')
        A(f'v_permlane32_swap_b32 {v(S)}, {v(Q)}')

    def store_tile(self, acc, tmp, DST, STD, nextpair=False, fast=sFAST):
        A = self.A
        self.pack(tmp, acc, 8)
        add = PSTRIDE if nextpair else 0
        A(f's_add_u32 s26, {s(sTILE)}, {DST + add}')
        A(f's_add_u32 s27, {s(sSTP)}, {STD + add}')
        self.stores([(v(tmp, 4), 26, 0, VL16, 4, None), (v(tmp + 4, 4), 26, KB, VL16, 4, None)], fast)
        self.stats_calc(acc, 16, tmp + 8)
        self.stores([(v(tmp + 8, 2), 27, 0, VSTL, 2, '0xffff')], fast)

    def big_pre(self, XIN, STIN):
        A = self.A
        A(f's_lshl_b32 s26, {s(sT0)}, 14')
        A(f's_add_u32 s26, s26, {s(sP)}')
        A(f's_add_u32 s26, s26, {XIN}')
        A(f's_add_u32 s27, s26, {16 * KB}')
        A(f's_lshl_b32 s28, {s(sT0)}, 10')
        A(f's_add_u32 s28, s28, {s(sP)}')
        A(f's_add_u32 s28, s28, {STIN}')
        A(f's_lshl_b32 s29, {s(sT0)}, {CSH}')
        A(f's_add_u32 s29, s29, {s(sC)}')

    def big_main(self, NT, acc, buf, XR, ST, fill, lmap, late_j, late_id, xsig, fsig):
        A = self.A
        D, RING = self.DB, 8
        sX, sX2 = 26, 27
        xm = {}

        def xload(j, mt):
            xm[j] = self.ldx(v(XR + ((j % RING) * 2 + mt) * 4, 4), sX2 if mt else sX, (j & 3) * KB)
            if (j & 3) == 3 and j < 15:
                r = sX2 if mt else sX
                A(f's_add_u32 {s(r)}, {s(r)}, {4 * KB}')
        for j in range(D):
            xload(j, 0)
            xload(j, 1)
            if j == 1:
                self.ld_stats(ST, 28)
                self.ld_stats(ST + 4, 28, KB)
        self.pstamp()

        def hook(j, t):
            if j == 0 and t == 0:
                self.sig(L_PS, 1 if NT == 6 else 2)
            if j + D < 16:
                if t == 1:
                    xload(j + D, 0)
                if t == 4:
                    xload(j + D, 1)
                    if j + D == 15 and xsig is not None:
                        self.sig(L_CF, xsig)

        def preread(j):
            if j == late_j:
                self.lwait(L_CR, late_id, 252)
                if NT == 7:
                    self.lwait(L_CS, 4, 252, absv=True)
                    self.cs_read(7, 224, L_CS3)
        self.gemm(16, 2, NT, acc, lambda mt, j: v(XR + ((j % RING) * 2 + mt) * 4, 4), lmap,
                  buf, 2, lambda j: xm[j], hook, preread, fill=fill, czero=True, fill0=2)
        if fsig is not None:
            self.sig(L_CF, fsig)
        A.wait_all(vm=False)
        self.pstamp()

    def small_main(self, KS, acc, buf, XR, RING, D, src, lmap, fill=(), czero=False, extra=None, hook2=None, preread=None,
                   xsig=None, fsig=None):
        A = self.A
        xm = {}

        def xload(j):
            so, io, vo = src(j)
            xm[j] = self.ldx(v(XR + (j % RING) * 4, 4), so, io, voff=vo)
            if (j & 3) == 3 and j < KS - 1:
                A(f's_add_u32 {s(so)}, {s(so)}, {4 * KB}')
        for j in range(D):
            xload(j)
            if j == 1 and extra:
                extra()
        self.pstamp()

        def hook(j, t):
            if t == 1 and j + D < KS:
                xload(j + D)
                if j + D == KS - 1 and xsig is not None:
                    self.sig(L_CF, xsig)
            if hook2:
                hook2(j, t)
        self.gemm(KS, 1, 4, acc, lambda mt, j: v(XR + 4 * (j % RING), 4), lmap, buf, 4,
                  lambda j: xm[j], hook, preread, fill=fill, czero=czero, fill0=2)
        if fsig is not None:
            self.sig(L_CF, fsig)
        A.wait_all(vm=False)
        self.pstamp()

    def stage_qkv(self):
        A = self.A
        NT = 6
        ST, CC, acc, buf, XR, CS = 32, 40, 64, 112, 160, 224
        SCR, RSZ = 96 * KB, 336

        def f():
            for mt in range(2):
                self.stats_consume(ST + 4 * mt, 3)
                self.rstd(CC + 1 + 2 * mt, ST + 4 * mt + 1)
                self.A(f'v_mul_f32 {v(CC + 2 * mt)}, {f32(LOG2E)}, {v(CC + 1 + 2 * mt)}')
            self.A(f'v_permlane32_swap_b32 {v(CC)}, {v(CC + 2)}')
        Lepi = A.newlabel('qepi')
        self.qkv_first(f, acc, buf, ST, CS, SCR, RSZ)
        A(f's_branch {Lepi}')
        A.label(self.Lp)
        self.nstamp = 0
        if self.prof:
            A('s_memrealtime s[60:61]')
            A('s_waitcnt lgkmcnt(0)')
            A('v_writelane_b32 v12, s60, 63')
        self.pstamp()
        self.big_pre(X0, ST0)
        self.cs_read(NT, CS, L_CSQ)
        self.qkv_addr(SCR, RSZ)
        self.lwait(L_CR, 1, 252)
        A(f's_add_u32 s29, s29, {C_X}')
        self.poll(29, VP2, 16)
        self.pstamp()
        self.big_main(NT, acc, buf, XR, ST, self.rec(f), map_q, 14, 2, None, 3)
        A.label(Lepi)
        A('s_nop 4')
        self.qkv_epi(ST, CC, acc, buf, CS, SCR, RSZ)

    def qkv_first(self, f, acc, buf, ST, CS, SCR, RSZ):
        A = self.A
        PB = [32, 224, 160, 192]
        self.nstamp = 0
        if self.prof:
            A('s_memrealtime s[60:61]')
            A('s_waitcnt lgkmcnt(0)')
            A('v_writelane_b32 v12, s60, 63')
        self.pstamp()
        WA, RA = 64, 68
        A(f's_mul_i32 s34, {s(SW)}, {32 * RSZ}')
        A(f's_add_u32 s34, s34, {SCR}')
        A(f'v_lshrrev_b32 v3, 4, {v(VLANE)}')
        A(f'v_and_b32 v76, 15, {v(VLANE)}')
        A(f'v_xor_b32 v77, v76, v3')
        A(f'v_lshlrev_b32 v77, 4, v77')
        A(f'v_lshl_add_u32 v77, v3, 8, v77')
        A(f'v_add_u32 v77, s34, v77')
        for n in range(4):
            A(f'v_xor_b32 {v(WA + n)}, {n * 64}, v77')
        A(f'v_lshrrev_b32 v77, 1, v3')
        A(f'v_xor_b32 v77, v77, v76')
        A(f'v_lshlrev_b32 v77, 4, v77')
        A(f'v_lshl_add_u32 v77, v76, 8, v77')
        A(f'v_and_b32 v3, 1, v3')
        A(f'v_lshl_add_u32 v77, v3, 3, v77')
        A(f'v_add_u32 v77, s34, v77')
        for m in range(8):
            A(f'v_xor_b32 {v(RA + m)}, {m * 32}, v77')
        for i in range(4):
            A(f'v_mov_b32 {v(16 + i)}, 0')
        A(f'v_and_b32 v13, 0x30, {v(VLANE)}')
        A(f'v_add_u32 v13, {L_CSQ}, v13')

        def stats(p):
            b = PB[p >> 1] + 16 * (p & 1)
            for i in range(16):
                A(f'v_dot2c_f32_bf16 {v(16 + 2 * (p & 1))}, 0x3f803f80, {v(b + i)}')
                A(f'v_dot2c_f32_bf16 {v(17 + 2 * (p & 1))}, {v(b + i)}, {v(b + i)}')
        for p in range(8):
            b = PB[p >> 1] + 16 * (p & 1)
            A.wait(vm=self.x0m[p], lg=A.lmark())
            for n in range(4):
                A(f'ds_write_b128 {v(WA + n)}, {v(b + 4 * n, 4)} offset:{n * 1024}')
            for m in range(8):
                A(f'ds_read_b64 {v(b + 2 * m, 2)}, {v(RA + m)}')
            if p:
                stats(p - 1)
        A.wait_all(vm=False)
        stats(7)
        self.pstamp()
        self.lwait(L_CR, 2, 20, sleep=1)
        self.pstamp()

        def g():
            A = self.A
            for mt in range(2):
                A(f'v_mov_b32 {v(ST + 4 * mt)}, {v(16 + 2 * mt)}')
                A(f'v_mov_b32 {v(ST + 4 * mt + 1)}, {v(17 + 2 * mt)}')
                A(f'v_mov_b32 {v(ST + 4 * mt + 2)}, 0')
                A(f'v_mov_b32 {v(ST + 4 * mt + 3)}, 0')
            f()
            self.qkv_addr(SCR, RSZ)

        def hook(j, t):
            if j == 9 and t == 0:
                self.lwait(L_CS, 1, 20, absv=True)
            if 9 <= j < 15 and t == 0:
                A(f'ds_read_b128 {v(CS + 4 * (j - 9), 4)}, v13 offset:{(j - 9) * 64}')
        self.gemm(16, 2, 6, acc, lambda mt, j: v(PB[j >> 2] + 16 * mt + 4 * (j & 3), 4), map_q,
                  buf, 2, lambda j: None, hook, None, fill=self.rec(g), czero=True, fill0=4)
        self.sig(L_CF, 3)
        A(f'v_and_b32 v3, 15, {v(VLANE)}')
        A(f'v_lshlrev_b32 v13, 10, v3')
        A(f'v_lshrrev_b32 v3, 4, {v(VLANE)}')
        A(f'v_lshl_add_u32 v13, v3, 3, v13')
        A(f's_lshl_b32 s28, {s(sT)}, 14')
        A(f's_lshl_b32 s29, {s(sCG8)}, 7')
        A(f's_add_u32 s28, s28, s29')
        for t in range(4):
            A(f'buffer_load_dwordx2 {v(RES + 8 + 2 * t, 2)}, v13, {s(SRD2, 4)}, s28 offen offset:{32 * t}')
        A.vm_done = A.vm
        A.wait_all(vm=False)
        self.pstamp()

    def qkv_addr(self, SCR, RSZ):
        A = self.A
        A(f'v_lshrrev_b32 v60, 4, {v(VLANE)}')
        A(f'v_and_b32 v61, 15, {v(VLANE)}')
        A(f's_mul_i32 s30, {s(SW)}, {32 * RSZ}')
        A(f's_add_u32 s30, s30, {SCR}')
        A(f'v_mul_u32_u24 v45, {RSZ}, v61')
        A(f'v_add_u32 v45, s30, v45')
        A(f'v_lshl_add_u32 v46, v60, 3, v45')
        A(f'v_lshl_add_u32 v44, v60, 4, v45')
        A(f'v_and_b32 v3, 1, v60')
        A(f'v_lshl_add_u32 v45, v3, 6, v45')
        A(f'v_lshrrev_b32 v3, 1, v60')
        A(f'v_mul_u32_u24 v3, {16 * RSZ}, v3')
        A(f'v_add_u32 v45, v45, v3')
        A(f'v_bfe_u32 v3, {v(VLANE)}, 2, 2')
        A(f'v_lshl_add_u32 v3, v60, 3, v3')
        A(f'v_mul_u32_u24 v47, {RSZ}, v3')
        A(f'v_and_b32 v3, 3, {v(VLANE)}')
        A(f's_lshr_b32 s30, {s(SW)}, 1')
        A(f's_and_b32 s31, {s(SW)}, 1')
        A(f's_lshl_b32 s32, s30, 6')
        A(f's_lshl_b32 s33, s31, 3')
        A(f's_add_u32 s32, s32, s33')
        A(f's_add_u32 s32, s32, {SCR + 128}')
        A(f'v_lshl_add_u32 v48, v3, 4, v47')
        A(f'v_add_u32 v48, s32, v48')
        A(f's_lshl_b32 s32, s30, 5')
        A(f's_add_u32 s32, s32, {SCR + 256}')
        A(f'v_lshl_add_u32 v49, v3, 3, v47')
        A(f'v_add_u32 v49, s32, v49')
        A(f's_lshl_b32 s42, {s(sCG16)}, 12')
        A(f's_add_u32 s42, s42, {s(sZ)}')
        A(f's_add_u32 s42, s42, {KV}')
        A(f's_lshl_b32 s32, {s(SW)}, 10')
        A(f's_add_u32 s32, s32, s42')
        A(f's_lshl_b32 s43, {s(sCG16)}, 8')
        A(f's_add_u32 s43, s43, {s(sZ)}')
        A(f's_add_u32 s43, s43, {Z}')
        A(f's_lshl_b32 s33, s30, 7')
        A(f's_add_u32 s33, s33, s43')
        A(f's_lshl_b32 s31, s31, 4')
        A(f's_add_u32 s33, s33, s31')
        A(f'v_lshlrev_b32 v50, 5, v60')
        A(f'v_lshl_add_u32 v51, v61, 2, v50')
        A(f'v_mov_b32 v3, {OOB}')
        A(f'v_cmp_gt_u32 vcc, 4, v61')
        A(f'v_cndmask_b32 v51, v3, v51, vcc')
        A(f'v_cmp_eq_u32 s[34:35], 1, v61')
        A(f'v_cmp_eq_u32 s[36:37], 2, v61')
        A(f'v_cmp_eq_u32 s[38:39], 3, v61')
        for i in range(4):
            A(f'v_mov_b32 {v(52 + i)}, 0x3f803f80')
            A(f'v_mov_b32 {v(56 + i)}, {f32(1e-6)}')

    def qkv_epi(self, ST, CC, acc, buf, CS, SCR, RSZ):
        A = self.A
        EP, EM, PK, M = 160, 176, 192, 208

        def softmax(P, off):
            cc = CC
            for op, d in (('max', M), ('min', M + 1)):
                A(f'v_{op}3_f32 {v(d)}, {v(P)}, {v(P + 1)}, {v(P + 2)}')
                for i in range(3, 15, 2):
                    A(f'v_{op}3_f32 {v(d)}, {v(d)}, {v(P + i)}, {v(P + i + 1)}')
                A(f'v_{op}_f32 {v(d)}, {v(d)}, {v(P + 15)}')
            A(f'v_pk_mul_f32 {v(M, 2)}, {v(M, 2)}, {v(cc, 2)} op_sel_hi:[1,0]')
            for i in range(0, 16, 2):
                A(f'v_pk_fma_f32 {v(EP + i, 2)}, {v(P + i, 2)}, {v(cc, 2)}, {v(M, 2)} op_sel_hi:[1,0,0] neg_lo:[0,0,1] neg_hi:[0,0,1]')
                A(f'v_pk_fma_f32 {v(EM + i, 2)}, {v(P + i, 2)}, {v(cc, 2)}, {v(M, 2)} op_sel:[0,0,1] op_sel_hi:[1,0,1] neg_lo:[0,1,0] neg_hi:[0,1,0]')
            for i in range(32):
                A(f'v_exp_f32 {v(EP + i)}, {v(EP + i)}')
            for E, d in ((EP, M + 2), (EM, M + 4)):
                A(f'v_pk_add_f32 {v(d, 2)}, {v(E, 2)}, {v(E + 2, 2)}')
                for i in range(4, 16, 2):
                    A(f'v_pk_add_f32 {v(d, 2)}, {v(d, 2)}, {v(E + i, 2)}')
            A(f'v_add_f32 {v(M + 2)}, {v(M + 2)}, {v(M + 3)}')
            A(f'v_add_f32 {v(M + 3)}, {v(M + 4)}, {v(M + 5)}')
            A(f'v_rcp_f32 {v(M + 2)}, {v(M + 2)}')
            A(f'v_rcp_f32 {v(M + 3)}, {v(M + 3)}')
            for t in range(4):
                for i in (4 * t, 4 * t + 2):
                    A(f'v_pk_mul_f32 {v(EP + i, 2)}, {v(EP + i, 2)}, {v(M + 2, 2)} op_sel_hi:[1,0]')
                    A(f'v_pk_mul_f32 {v(EM + i, 2)}, {v(EM + i, 2)}, {v(M + 2, 2)} op_sel:[0,1] op_sel_hi:[1,1]')
                self.pack(PK + 4 * t, EP + 4 * t, 2)
                self.pack(PK + 4 * t + 2, EM + 4 * t, 2)
                A(f'ds_write_b128 v45, {v(PK + 4 * t, 4)} offset:{off + 16 * t}')
        for mt in range(2):
            P = acc + mt * 24
            self.ln_fix(P, 24, CS, ST + 4 * mt)
        for i in range(16):
            A(f'v_permlane32_swap_b32 {v(acc + i)}, {v(acc + 24 + i)}')
        for mt in range(2):
            P = acc + mt * 24
            for hh in range(2):
                r = P + 16 + 4 * hh
                for i in (0, 2):
                    A(f'v_pk_mul_f32 {v(r + i, 2)}, {v(r + i, 2)}, {v(CC + 2 * mt, 2)} op_sel:[0,1] op_sel_hi:[1,1]')
                self.pack(r, r, 2)
                A(f'ds_write_b64 v46, {v(r, 2)} offset:{mt * 16 * RSZ + 256 + 32 * hh}')
        softmax(acc + 24, 128)
        A.wait_all(vm=False)
        self.pstamp()
        self.sig(L_CB, 1)
        Lm = A.newlabel('mode')
        A.wait_all(vm=False)
        A(f's_cmp_eq_u32 {s(sPAIR)}, 0')
        A(f's_cbranch_scc0 {Lm}')
        self.lwait(L_MODE, 1, 252, single=True)
        A(f'v_readfirstlane_b32 {s(sFAST)}, v252')
        A(f's_sub_u32 {s(sFAST)}, {s(sFAST)}, 1')
        A(f's_add_u32 s31, {s(sT)}, 1')
        A(f's_and_b32 s31, s31, 15')
        A(f's_cmp_le_u32 s31, 1')
        A(f's_cselect_b32 {s(sFH)}, 0, {s(sFAST)}')
        A('s_waitcnt vmcnt(0)')
        self.unpack(RES, RES + 8, 8)
        A.label(Lm)
        self.lwait(L_CB, 1, 252)
        TA, TB = 112, 128
        for ks in range(4):
            for u2 in range(2):
                off = (32 * ks + 4 * u2) * RSZ
                A(f'ds_read_b64_tr_b16 {v(TA + 4 * ks + 2 * u2, 2)}, v48 offset:{off}')
                A(f'ds_read_b64_tr_b16 {v(TB + 4 * ks + 2 * u2, 2)}, v49 offset:{off}')
            if ks == 2:
                A.wait(lg=A.lmark() - 8)
        base = A.lmark() - 16
        KVA, ZA = 144, 148
        for ks in range(4):
            A.wait(lg=base + 4 * ks + 4)
            A(f'v_mfma_f32_16x16x32_bf16 {v(KVA, 4)}, {v(TA + 4 * ks, 4)}, {v(TB + 4 * ks, 4)}, {"0" if ks == 0 else v(KVA, 4)}')
            A(f'v_mfma_f32_16x16x32_bf16 {v(ZA, 4)}, {v(TA + 4 * ks, 4)}, v[52:55], {"0" if ks == 0 else v(ZA, 4)}')
        for r in range(4):
            o = f' offset:{256 * r}' if r else ''
            A(f'buffer_atomic_add_f32 {v(KVA + r)}, {v(VL4)}, {s(SRD, 4)}, s32 offen{o}')
        A(f'v_cndmask_b32 {v(ZA)}, {v(ZA)}, {v(ZA + 1)}, s[34:35]')
        A(f'v_cndmask_b32 {v(ZA)}, {v(ZA)}, {v(ZA + 2)}, s[36:37]')
        A(f'v_cndmask_b32 {v(ZA)}, {v(ZA)}, {v(ZA + 3)}, s[38:39]')
        A(f'buffer_atomic_add_f32 {v(ZA)}, v51, {s(SRD, 4)}, s33 offen')
        self.pstamp()
        if 'd1late' in OPT:
            self.sig(L_CF, 3)
        softmax(acc, 0)
        PQ = 160
        for mt in range(2):
            for hh in range(2):
                A(f'ds_read_b128 {v(PQ + 8 * mt + 4 * hh, 4)}, v44 offset:{mt * 16 * RSZ + 64 * hh}')
        A(f's_lshl_b32 s30, {s(sCG16)}, {CSH}')
        A(f's_add_u32 s30, s30, {s(sC)}')
        A(f's_add_u32 s30, s30, {C_KV}')
        A(f's_lshl_b32 s26, {s(sT0)}, 14')
        A(f's_lshl_b32 s27, {s(sCG16)}, 10')
        A(f's_add_u32 s26, s26, s27')
        A(f's_add_u32 s26, s26, {s(sP)}')
        A(f's_add_u32 s26, s26, {OB}')
        A(f's_add_u32 s27, s26, {16 * KB}')
        if 'd2early' in OPT:
            self.sig(L_CF, 4)
        A.wait_all(vm=False)
        self.pstamp()
        A.wait_all()
        self.sig(L_CB, 2)
        A.wait_all(vm=False)
        self.pstamp()
        Lw, Lg, Lx = A.newlabel('kvw'), A.newlabel('kvg'), A.newlabel('kvx')
        A(f's_cmp_lg_u32 {s(SW)}, 0')
        A(f's_cbranch_scc1 {Lw}')
        self.lwait(L_CB, 2, 252)
        A('s_mov_b64 exec, 1')
        A('v_mov_b32 v3, 1')
        A(f'buffer_atomic_add v3, {v(VL4)}, {s(SRD, 4)}, s30 offen sc0')
        A('s_waitcnt vmcnt(0)')
        A('v_readfirstlane_b32 s31, v3')
        A('s_mov_b64 exec, -1')
        A('s_cmp_eq_u32 s31, 15')
        A(f's_cbranch_scc1 {Lg}')
        self.poll(30, VL4, 1, target=16, mode='atomic')
        A.label(Lg)
        self.sig(L_GO, 1)
        A.wait_all(vm=False)
        A(f's_branch {Lx}')
        A.label(Lw)
        self.lwait(L_GO, 1, 252, sleep=1, single=True)
        A.label(Lx)
        self.pstamp()
        KF, ZF = 64, 80
        for i in range(16):
            self.ldx(v(KF + i), 42, 256 * i, voff=VL4, w=1, sc=' sc1')
        for hh in range(2):
            for u in range(2):
                self.ldx(v(ZF + 8 * hh + 4 * u, 4), 43, 128 * hh + 16 * u, voff=50, sc=' sc1')
        A.wait(vm=A.vmark() - 4)
        self.pack(96, KF, 8)
        A.wait_all()
        self.pack(104, ZF, 8)
        ND = 112
        for mt in range(2):
            for hh in range(2):
                d = ND + 16 * mt + 8 * hh
                A(f'v_mfma_f32_16x16x32_bf16 {v(d + 4, 4)}, {v(104 + 4 * hh, 4)}, {v(PQ + 8 * mt + 4 * hh, 4)}, v[56:59]')
                A(f'v_mfma_f32_16x16x32_bf16 {v(d, 4)}, {v(96 + 4 * hh, 4)}, {v(PQ + 8 * mt + 4 * hh, 4)}, 0')
        for q in range(4):
            A(f'v_rcp_f32 {v(ND + 8 * q + 4)}, {v(ND + 8 * q + 4)}')
        for q in range(4):
            d = ND + 8 * q
            for i in (0, 2):
                A(f'v_pk_mul_f32 {v(d + i, 2)}, {v(d + i, 2)}, {v(d + 4, 2)} op_sel_hi:[1,0]')
            self.pack(144 + 2 * q, d, 2)
        self.stores([(v(144, 4), 26, 0, VL16, 4, None), (v(148, 4), 27, 0, VL16, 4, None)], sFG)
        self.flag(sF16, C_O - CB, two=True)

    def small_pre(self, XIN, mul=16):
        A = self.A
        A(f's_mul_i32 s26, {s(sT)}, {mul * KB}')
        A(f's_add_u32 s26, s26, {s(sP)}')
        A(f's_add_u32 s26, s26, {XIN}')
        A(f's_lshl_b32 s29, {s(sT)}, {CSH}')
        A(f's_add_u32 s29, s29, {s(sC)}')
        A(f's_add_u32 s29, s29, {CB}')

    def stage_wo(self):
        A = self.A
        buf, XR = 64, 128
        self.small_pre(OB)
        self.lwait(L_CR, 3, 252)
        self.poll(29, VL4, 16, ioff=C_O - CB)
        self.pstamp()
        self.small_main(16, RES, buf, XR, 16, self.DS, lambda j: (26, (j & 3) * KB, VL16), map_wo, xsig=None if 'd2early' in OPT else 4)
        self.store_tile(RES, buf, XA, STA, fast=sFG)
        self.flag(sF8, C_XA - CB)

    def stage_w1(self):
        A = self.A
        ST, K, acc, buf, XR, CS = 32, 40, 48, 64, 128, 192
        self.lwait(L_CS, 3, 252, absv=True)
        self.cs_read(4, CS, L_CS1)
        self.small_pre(XA)
        A(f's_lshl_b32 s27, {s(sT)}, 10')
        A(f's_add_u32 s27, s27, {s(sP)}')
        A(f's_add_u32 s27, s27, {STA}')
        if 'd2early' in OPT:
            self.lwait(L_CR, 4, 252)
        A.wait_all(vm=False)
        self.poll(29, VL4, 8, ioff=C_XA - CB)
        self.pstamp()

        def f():
            A = self.A
            self.stats_consume(ST, 3)
            self.rstd(VMR + 1, ST + 1)
            A(f'v_mul_f32 {v(VMR)}, {v(ST)}, {v(VMR + 1)}')
            A(f'v_mul_f32 v38, {v(VMR + 1)}, {v(VMR + 1)}')
            A(f'v_mul_f32 v38, v38, {v(ST + 1)}')
            self.rstd(38, 38)
            A(f'v_mul_f32 v38, v38, {v(VMR + 1)}')
            self.gelu_consts(K, 38)
        self.small_main(16, acc, buf, XR, 16, self.DS, lambda j: (26, (j & 3) * KB, VL16), map_w1, fill=self.rec(f), czero=True,
                        extra=lambda: self.ld_stats(ST, 27), xsig=5,
                        preread=None if 'd2early' in OPT else (lambda j: self.lwait(L_CR, 4, 252) if j == 12 else None))
        self.ln_fix(acc, 16, CS, ST)
        self.gelu(acc, 16, K, buf, buf + 16)
        A(f's_add_u32 s26, {s(sTILE)}, {H}')
        self.stores([(v(buf + 16, 4), 26, 0, VL16, 4, None), (v(buf + 20, 4), 26, KB, VL16, 4, None)], sFH)
        self.flag(sF8, C_H - CB, fast=sFH)

    def stage_w2(self):
        A = self.A
        acc, buf, XR = 48, 64, 128
        A(f's_lshl_b32 s26, {s(sT)}, 4')
        A(f'v_and_b32 v13, 15, {v(VLANE)}')
        A(f'v_add_u32 v13, s26, v13')
        A(f'v_and_b32 v38, 0x300, {v(VL16)}')
        A(f'v_mov_b32 v39, {OOB}')
        A(f's_movk_i32 s27, 2048')
        for gi, d in enumerate((-1, 1, -2, 2)):
            A(f'v_add_u32 v36, {d}, v13')
            A(f'v_cmp_gt_u32 vcc, s27, v36')
            A(f'v_lshrrev_b32 v3, 4, v36')
            A(f'v_lshl_add_u32 v3, v3, 14, v38')
            A(f'v_and_b32 v36, 15, v36')
            A(f'v_lshl_add_u32 v3, v36, 4, v3')
            A(f'v_cndmask_b32 {v(FREE + gi)}, v39, v3, vcc')
        A(f's_add_u32 s26, {s(sP)}, {H}')
        A(f'v_and_b32 v13, 2, {v(VLANE)}')
        A(f'v_add_u32 v13, -1, v13')
        A(f'v_bfe_u32 v38, {v(VLANE)}, 3, 1')
        A(f'v_mul_i32_i24 v13, v13, v38')
        A(f'v_add_u32 v13, {s(sT)}, v13')
        A(f'v_max_i32 v13, 0, v13')
        A(f'v_min_i32 v13, 0x7f, v13')
        A(f'v_and_b32 v38, 0x1c, {v(VL4)}')
        A(f'v_lshl_add_u32 v13, v13, {CSH}, v38')
        A(f's_add_u32 s29, {s(sC)}, {C_H}')
        for i in range(0, 16, 2):
            A(f'v_pk_fma_f32 {v(acc + i, 2)}, {v(RES + i, 2)}, {v(VMR, 2)}, {v(VMR, 2)} op_sel:[0,1,0] op_sel_hi:[1,1,0] neg_lo:[0,0,1] neg_hi:[0,0,1]')
        self.lwait(L_CR, 5, 252)
        self.poll(29, 13, 16)
        self.pstamp()
        self.small_main(16, acc, buf, XR, 16, self.DS, lambda j: (26, (j & 3) * KB, FREE + (j >> 2)), map_w2, xsig=6, fsig=7)
        self.store_tile(acc, buf, X1, ST1)
        for i in range(0, 16, 2):
            A(f'v_pk_add_f32 {v(RES + i, 2)}, {v(RES + i, 2)}, {v(acc + i, 2)}')
        self.flag(sF8, C_X1 - CB)

    def stage_w3(self):
        A = self.A
        NT = 7
        ST, K, acc, buf, XR, CS = 32, 40, 48, 104, 160, 224
        self.big_pre(X1, ST1)
        A(f's_add_u32 s29, s29, {C_X1}')
        A(f's_mul_i32 s30, {s(sT0)}, {56 * KB}')
        A(f's_add_u32 s30, s30, {s(sP)}')
        A(f's_add_u32 s30, s30, {G}')
        A(f's_lshl_b32 s32, {s(sCG16)}, 9')
        A(f's_add_u32 s32, s32, s30')
        A(f's_add_u32 s32, s32, {48 * KB}')
        A(f's_mul_i32 s31, {s(sCG16)}, {3 * KB}')
        A(f's_add_u32 s30, s30, s31')
        A(f's_add_u32 s31, s30, {56 * KB}')
        A(f'v_bfe_u32 v3, {v(VLANE)}, 4, 1')
        A(f'v_mul_u32_u24 v13, {56 * KB}, v3')
        A(f'v_lshrrev_b32 v3, 5, {v(VLANE)}')
        A(f'v_lshl_add_u32 v13, v3, 8, v13')
        A(f'v_and_b32 v3, 0xf0, {v(VL16)}')
        A(f'v_add_u32 v13, v13, v3')
        self.lwait(L_CR, 6, 252)
        self.poll(29, VP2, 16)
        self.pstamp()

        def f():
            for mt in range(2):
                self.stats_consume(ST + 4 * mt, 3)
                self.rstd(ST + 4 * mt + 2, ST + 4 * mt + 1)
                self.gelu_consts(K + 4 * mt, ST + 4 * mt + 2)
        self.big_main(NT, acc, buf, XR, ST, self.rec(f), map_w3, 13, 7, 8, 9)
        for mt in range(2):
            P = acc + 28 * mt
            self.ln_fix(P, 28, CS, ST + 4 * mt)
            out = 160 + 12 * mt
            self.gelu(P, 28, K + 4 * mt, buf, None)
            self.pack(out, buf, 12)
            self.pack(184 + 2 * mt, buf + 24, 2)
            lst = [(v(out + 4 * q, 4), 30 + mt, q * KB, VL16, 4, None) for q in range(3)]
            if mt == 1:
                A('v_permlane16_swap_b32 v184, v186')
                A('v_permlane16_swap_b32 v185, v187')
                lst.append((v(184, 4), 32, 0, 13, 4, None))
            self.stores(lst, sFG)
        self.flag(sF16, C_G - CB, two=True)

    def stage_w4(self, Lfinal):
        A = self.A
        buf, XR = 64, 128
        self.small_pre(G, 56)
        self.lwait(L_CR, 8, 252)
        self.poll(29, VL4, 16, ioff=C_G - CB)
        self.pstamp()

        def hook2(j, t):
            if j == 16 and t == 3:
                self.sig(L_CF, 10)
            if j == 38 and t == 3:
                self.sig(L_CF, 11)

        def preread(j):
            if j == 11:
                self.lwait(L_CR, 9, 252)
            if j == 39:
                self.lwait(L_CR, 10, 252)
        self.small_main(56, RES, buf, XR, 24, self.D4, lambda j: (26, (j & 3) * KB, VL16), map_w4,
                        hook2=hook2, preread=preread, fsig=12)
        A(f's_cmp_eq_u32 {s(sPAIR)}, 1')
        A(f's_cbranch_scc1 {Lfinal}')
        self.store_tile(RES, buf, X0, ST0, nextpair=True)
        self.flag(sF8, C_X - CB + CSTRIDE)

    def dump2(self):
        if not self.prof:
            return
        A = self.A
        A(f's_lshl_b32 s55, s2, 2')
        A(f's_add_u32 s55, s55, {s(SW)}')
        A(f's_lshl_b32 s55, s55, 1')
        A(f's_add_u32 s55, s55, {s(sPAIR)}')
        A(f's_lshl_b32 s55, s55, 8')
        A(f's_add_u32 s55, s55, {DBG + 512 * 128}')
        A(f'v_writelane_b32 v12, {s(sFAST)}, 61')
        A(f'buffer_store_dword v12, {v(VL4)}, {s(SRD, 4)}, s55 offen')

    def piece_decode(self, sp):
        A = self.A
        L3, L4, LJ = A.newlabel('pd3'), A.newlabel('pd4'), A.newlabel('pdj')
        A(f's_mov_b32 s46, 0')
        A(f's_cmp_ge_u32 {s(sp)}, 832')
        A(f's_cbranch_scc1 {L4}')
        A(f's_cmp_ge_u32 {s(sp)}, 384')
        A(f's_cbranch_scc1 {L3}')
        A(f's_lshr_b32 s28, {s(sp)}, 7')
        A(f's_and_b32 s29, {s(sp)}, 7')
        A(f's_bfe_u32 s30, {s(sp)}, 0x40003')
        A(f's_cmp_eq_u32 s28, 1')
        A(f's_cselect_b64 {s(SRD2, 2)}, {s(PA + 10, 2)}, {s(PA + 12, 2)}')
        A(f's_cmp_eq_u32 s28, 0')
        A(f's_cselect_b64 {s(SRD2, 2)}, {s(PA + 6, 2)}, {s(SRD2, 2)}')
        A(f's_mov_b32 {s(SRD2 + 2)}, {512 * KB}')
        A(f's_mov_b32 s41, 1024')
        A(f's_lshl_b32 s47, s28, 3')
        A(f's_add_u32 s47, s47, s29')
        A(f's_lshl_b32 s42, s47, 4')
        A(f's_add_u32 s42, s42, s30')
        A(f's_lshl_b32 s42, s42, 12')
        A(f's_add_u32 s42, s42, {WO}')
        for t in range(1, 4):
            A(f's_add_u32 {s(42 + t)}, s42, {t * KB}')
        A(f's_branch {LJ}')
        A.label(L3)
        A(f's_sub_u32 s28, {s(sp)}, 384')
        A(f's_and_b32 s30, s28, 15')
        A(f's_lshr_b32 s29, s28, 4')
        A(f's_mov_b64 {s(SRD2, 2)}, {s(PA + 14, 2)}')
        A(f's_mov_b32 {s(SRD2 + 2)}, {1792 * KB}')
        A(f's_mov_b32 s41, 3584')
        A(f's_add_u32 s47, s29, 24')
        A(f's_mul_i32 s31, s30, {7 * KB}')
        A(f's_add_u32 s31, s31, {W3}')
        for t in range(4):
            A(f's_lshl_b32 s28, s29, 2')
            A(f's_add_u32 s28, s28, {t}')
            A(f's_mul_i32 s32, s28, 43')
            A(f's_lshr_b32 s32, s32, 8')
            A(f's_mul_i32 s33, s32, 6')
            A(f's_sub_u32 s33, s28, s33')
            A(f's_sub_u32 s36, s28, 96')
            A(f's_cmp_ge_u32 s28, 96')
            A(f's_cselect_b32 s32, s36, s32')
            A(f's_cselect_b32 s33, 6, s33')
            A(f's_mul_i32 s32, s32, 112')
            A(f's_add_u32 s32, s32, s33')
            A(f's_lshl_b32 s32, s32, 10')
            A(f's_add_u32 {s(42 + t)}, s32, s31')
        A(f's_branch {LJ}')
        A.label(L4)
        A(f's_sub_u32 s28, {s(sp)}, 832')
        A(f's_and_b32 s29, s28, 7')
        A(f's_lshr_b32 s30, s28, 3')
        A(f's_mov_b64 {s(SRD2, 2)}, {s(PA + 16, 2)}')
        A(f's_mov_b32 {s(SRD2 + 2)}, {1792 * KB}')
        A(f's_mov_b32 s41, 1024')
        A(f's_add_u32 s47, s29, 52')
        A(f's_cmp_ge_u32 s30, 48')
        A(f's_cselect_b32 s46, 1, 0')
        A(f's_mul_i32 s42, s29, 56')
        A(f's_add_u32 s42, s42, s30')
        A(f's_lshl_b32 s42, s42, 12')
        A(f's_add_u32 s42, s42, {W4}')
        for t in range(1, 4):
            A(f's_add_u32 {s(42 + t)}, s42, {t * KB}')
        A.label(LJ)
        A(f's_mul_i32 s40, s30, s41')
        A(f's_lshl_b32 s40, s40, 5')
        A(f's_lshl_b32 s29, s29, 7')
        A(f's_add_u32 s40, s40, s29')
        A(f's_lshl_b32 s47, s47, 7')
        A(f's_add_u32 s47, s47, {PC}')
        A(f'v_lshrrev_b32 v40, 3, {v(VLANE)}')
        A(f'v_mul_u32_u24 v40, s41, v40')
        A(f'v_lshrrev_b32 v41, 1, {v(VLANE)}')
        A(f'v_lshrrev_b32 v42, 4, {v(VLANE)}')
        A(f'v_xor_b32 v41, v41, v42')
        A(f'v_and_b32 v41, 3, v41')
        A(f'v_lshl_add_u32 v40, v41, 5, v40')
        A(f'v_and_b32 v41, 1, {v(VLANE)}')
        A(f'v_lshl_add_u32 v40, v41, 4, v40')
        A(f's_lshl_b32 s41, s41, 3')
        for i in range(4):
            A(f's_add_u32 m0, s39, {i * KB}')
            self.dma(40, 0, voff=40, srd=SRD2)
            if i < 3:
                A(f's_add_u32 s40, s40, s41')
        return A.vmark()

    def piece_finish(self):
        A = self.A
        A(f's_cmp_eq_u32 s46, 1')
        A(f's_cselect_b32 s28, 8, 4')
        A(f's_cselect_b32 s29, 4, 16')
        A(f'v_lshrrev_b32 v41, 4, {v(VLANE)}')
        A(f'v_mul_u32_u24 v41, s28, v41')
        A(f'v_bfe_u32 v42, {v(VLANE)}, 2, 2')
        A(f'v_add_u32 v41, v41, v42')
        A(f'v_and_b32 v42, 3, {v(VLANE)}')
        A(f'v_lshlrev_b32 v42, 3, v42')
        A(f'v_add_u32 v42, s39, v42')
        for u in range(2):
            if u:
                A(f'v_add_u32 v41, s29, v41')
            A(f'v_bfe_u32 v43, v41, 1, 2')
            A(f'v_lshl_add_u32 v43, v43, 5, v42')
            A(f'v_lshl_add_u32 v43, v41, 7, v43')
            for t in range(4):
                A(f'v_xor_b32 v44, {32 * t}, v43')
                A(f'ds_read_b64_tr_b16 {v(48 + 4 * t + 2 * u, 2)}, v44')
        A.wait_all(vm=False)
        for t in range(4):
            A(f'buffer_store_dwordx4 {v(48 + 4 * t, 4)}, {v(VL16)}, {s(SRD, 4)}, {s(42 + t)} offen sc1')

    def count(self, sreg):
        A = self.A
        A('s_mov_b64 exec, 1')
        A(f'buffer_atomic_add {v(VONE)}, {v(VL4)}, {s(SRD, 4)}, {s(sreg)} offen')
        A('s_mov_b64 exec, -1')

    def cs_add(self, accs, addr):
        A = self.A
        A('s_mov_b32 exec_lo, 0x00010001')
        A('s_mov_b32 exec_hi, 0x00010001')
        for r, a_, off in accs:
            for i in range(4):
                A(f'ds_add_f32 {v(a_)}, {v(r + i)} offset:{off + 4 * i}')
                if A.lg - A.lg_done >= 14:
                    A.wait(lg=A.lmark() - 4)
        A('s_mov_b64 exec, -1')

    def loader(self):
        A = self.A
        sLW = 26
        ONES = 16
        A(f's_sub_u32 {s(sLW)}, {s(SW)}, 4')
        self.nstamp = 0
        if self.prof:
            A('v_mov_b32 v12, 0')
            A('s_memrealtime s[60:61]')
            A('s_waitcnt lgkmcnt(0)')
            A('v_writelane_b32 v12, s60, 63')
        self.pstamp()
        A(f's_mov_b64 {s(SRD2, 2)}, {s(PA + 4, 2)}')
        A(f's_mov_b32 {s(SRD2 + 2)}, {32 * 512}')
        A(f's_lshl_b32 s28, {s(sCG16)}, 10')
        A(f's_mov_b32 m0, {PHL}')
        self.dma(28, srd=SRD2)
        A(f's_mov_b64 {s(SRD2, 2)}, {s(PA + 2, 2)}')
        A(f's_mov_b32 {s(SRD2 + 2)}, {512 * 3072}')
        A(f'v_lshrrev_b32 v40, 2, {v(VLANE)}')
        A(f'v_mul_u32_u24 v40, 3072, v40')
        A(f'v_lshrrev_b32 v41, 4, {v(VLANE)}')
        A(f'v_xor_b32 v41, v41, {v(VLANE)}')
        A(f'v_and_b32 v41, 3, v41')
        A(f'v_lshl_add_u32 v40, v41, 4, v40')
        A(f's_mul_i32 s28, {s(sLW)}, {32 * 3072}')
        A(f's_lshl_b32 s29, {s(sCG16)}, 6')
        A(f's_add_u32 s28, s28, s29')
        A(f's_mul_i32 s38, {s(sLW)}, {6 * KB}')
        mw = []
        A('v_mov_b32 v47, v40')
        A('s_mov_b32 s59, s28')

        def wdma(c):
            for hr in range(2):
                for p in range(3):
                    A(f's_add_u32 m0, s38, {c * 24 * KB + p * 2 * KB + hr * KB - p * KB}')
                    A(f's_add_u32 s29, s59, {(c * 128 + hr * 16) * 3072}')
                    self.dma(29, p * KB, voff=47, srd=SRD2)
            mw.append(A.vmark())
        NPRE = self.NPRE
        for c in range(NPRE):
            wdma(c)
        A.wait_all(vm=False)
        self.pstamp()
        for i in range(4):
            A(f'v_mov_b32 {v(ONES + i)}, 0x3f803f80')
        A(f'v_mov_b32 {v(VONE)}, 1')
        A(f'v_and_b32 v32, 15, {v(VLANE)}')
        A(f'v_lshrrev_b32 v33, 4, {v(VLANE)}')
        A(f'v_lshrrev_b32 v34, 2, v32')
        A(f'v_lshrrev_b32 v35, 1, v33')
        A(f'v_xor_b32 v35, v35, v34')
        A(f'v_lshlrev_b32 v35, 4, v35')
        A(f'v_lshl_add_u32 v35, v32, 6, v35')
        A(f'v_and_b32 v36, 1, v33')
        A(f'v_lshl_add_u32 v35, v36, 3, v35')
        A(f'v_add_u32 v35, s38, v35')
        A(f'v_xor_b32 v36, 32, v35')
        A(f'v_bfe_u32 v37, {v(VLANE)}, 1, 1')
        A(f'v_xor_b32 v37, v37, v33')
        A(f'v_lshlrev_b32 v37, 4, v37')
        A(f'v_lshrrev_b32 v38, 2, {v(VLANE)}')
        A(f'v_lshl_add_u32 v37, v38, 6, v37')
        A(f'v_and_b32 v38, 1, {v(VLANE)}')
        A(f'v_lshl_add_u32 v37, v38, 3, v37')
        A(f'v_add_u32 v37, s38, v37')
        A(f'v_xor_b32 v38, 32, v37')
        A(f'v_lshlrev_b32 v39, 10, v34')
        A(f'v_lshl_add_u32 v39, v33, 8, v39')
        A(f'v_and_b32 v34, 3, v32')
        A(f'v_lshl_add_u32 v39, v34, 4, v39')
        A(f'v_add_u32 v39, s38, v39')
        A(f'v_add_u32 v45, s38, {v(VL16)}')
        A(f'v_lshlrev_b32 v46, 3, {v(VLANE)}')
        A(f'v_add_u32 v46, {PHL}, v46')
        A(f'v_lshlrev_b32 v30, 6, v33')
        A(f'v_add_u32 v30, {L_CSQ}, v30')
        A(f'v_lshlrev_b32 v31, 4, v33')
        A(f'v_add_u32 v31, {PERM}, v31')
        F, C, CSA = 80, 104, 136
        for r in (35, 36, 37, 38):
            A(f'v_add_u32 {v(r + 29)}, {48 * KB}, {v(r)}')

        def reads(c):
            R = 160 + 24 * c
            o = (c & 1) * 24 * KB
            ab = 35 if c < 2 else 64
            A.wait(vm=mw[c])
            if c == 0:
                A(f'ds_read_b64_tr_b16 v[20:21], v46')
                A(f'ds_read_b64_tr_b16 v[22:23], v46 offset:512')
            for hd in range(4):
                for u in range(2):
                    A(f'ds_read_b64 {v(R + 4 * hd + 2 * u, 2)}, {v(ab + (hd & 1))} offset:{o + (hd >> 1) * 2 * KB + u * KB}')
            for hh in range(2):
                for u in range(2):
                    A(f'ds_read_b64_tr_b16 {v(R + 16 + 4 * hh + 2 * u, 2)}, {v(ab + 2 + hh)} offset:{o + 4 * KB + u * KB}')
            return A.lmark()
        rm = reads(0)
        for c in range(4):
            R = 160 + 24 * c
            o = (c & 1) * 24 * KB
            A.wait(lg=rm)
            for hd in range(4):
                for u in range(2):
                    A(f'v_mfma_f32_16x16x16_bf16 {v(C + 8 * hd + 4 * u, 4)}, {v(R + 4 * hd + 2 * u, 2)}, {v(20 + 2 * (hd & 1), 2)}, 0')
            if c == 2:
                for r in (39, 45):
                    A(f'v_add_u32 {v(r)}, {48 * KB}, {v(r)}')
            for hh in range(2):
                A(f'ds_write_b128 v45, {v(R + 16 + 4 * hh, 4)} offset:{o + (4 + hh) * KB}')
            if c < 3 and NPRE >= 3:
                rm = reads(c + 1)
            for hd in range(4):
                self.pack(R + 4 * hd, C + 8 * hd, 4)
                A(f'ds_write_b128 v39, {v(R + 4 * hd, 4)} offset:{o + hd * 64}')
            if c + NPRE < 4:
                wdma(c + NPRE)
            if c + NPRE == 4:
                A(f's_lshl_b32 s39, {s(sLW)}, 12')
                A(f's_add_u32 s39, s39, {PST}')
                A(f's_lshl_b32 s49, s2, 2')
                A(f's_add_u32 s49, s49, {s(sLW)}')
                m_p1 = self.piece_decode(49)
            if c < 3 and NPRE < 3:
                rm = reads(c + 1)
        self.sig(L_CR, 2)
        A.wait_all(vm=False)
        self.pstamp()
        for c in range(4):
            for t in range(6):
                A(f'v_mfma_f32_16x16x32_bf16 {v(CSA + 4 * t, 4)}, {v(160 + 24 * c + 4 * t, 4)}, {v(ONES, 4)}, {"0" if c == 0 else v(CSA + 4 * t, 4)}')
        self.cs_add([(CSA + 4 * hd, 30, hd * 16) for hd in range(4)] + [(CSA + 16 + 4 * hh, 31, (4 + hh) * 64) for hh in range(2)], None)
        self.sig(L_CS, 1, absv=True)
        A.wait_all(vm=False)
        self.pstamp()
        bases = {}
        for r, (nm, WP, scg, sz) in enumerate((('q', WQKV, sCG16, 96), ('o', WO, sCG8, 64), ('1', W1, sCG8, 64), ('2', W2, sCG8, 64),
                                               ('3', W3, sCG16, 112), ('4', W4, sCG8, 224))):
            A(f's_mul_i32 {s(52 + r)}, {s(scg)}, {sz * KB}')
            A(f's_add_u32 {s(52 + r)}, {s(52 + r)}, {WP}')
            bases[nm] = 52 + r
        Lq = A.newlabel('nq')
        A.wait_all(vm=False)
        A(f's_and_b32 s28, {s(sT0)}, 3')
        A(f's_cmp_lg_u32 s28, {s(sLW)}')
        A(f's_cbranch_scc1 {Lq}')
        A(f's_mul_i32 s28, {s(sT0)}, {6 * KB}')
        A(f'v_add_u32 v45, s28, {v(VL16)}')
        A(f's_add_u32 s28, s28, s52')
        A(f's_add_u32 s29, s28, 4096')
        for t in range(6):
            A(f'ds_read_b128 {v(F + 4 * t, 4)}, v45 offset:{t * KB}')
        A.wait_all(vm=False)
        vm0 = A.vm
        for t in range(6):
            A(f'buffer_store_dwordx4 {v(F + 4 * t, 4)}, {v(VL16)}, {s(SRD, 4)}, {s(28 + (t >> 2))} offen offset:{(t & 3) * KB} sc1')
        A.vm = vm0
        A.label(Lq)
        A('s_waitcnt vmcnt(6)')
        A(f's_cbranch_scc0 {Lq}b')
        A('s_waitcnt vmcnt(0)')
        A.label(Lq + 'b')
        A.vm_done = A.vm
        self.piece_finish()
        self.pstamp()
        Ln = A.newlabel('nochk')
        A(f's_cmp_lg_u32 {s(sLW)}, 0')
        A(f's_cbranch_scc1 {Ln}')
        A('s_getreg_b32 s30, hwreg(HW_REG_XCC_ID)')
        A('s_and_b32 s30, s30, 15')
        A('s_mul_i32 s31, s30, s30')
        A('s_lshl_b32 s31, s31, 16')
        A('s_lshl_b32 s30, s30, 7')
        A('s_add_u32 s30, s30, s31')
        A('s_add_u32 s58, s30, 1')
        A('s_mov_b32 s31, 0')
        self.poll(31, VL4, 8, target=32, mode='load', srd=SRDD, mask=0x7f)
        A('s_and_b32 s31, s2, 7')
        A('v_readlane_b32 s30, v3, s31')
        A('s_lshl_b32 s31, s58, 5')
        A('s_cmp_eq_u32 s30, s31')
        A(f's_cselect_b32 s33, {1 if "slow" in OPT else 2}, 1')
        A('v_mov_b32 v3, s33')
        A(f'ds_write_b32 {v(VPERM)}, v3 offset:{L_MODE - L_CF}')
        A.wait_all(vm=False)
        A.label(Ln)
        self.lwait(L_MODE, 1, 24, sleep=2, single=True)
        self.pstamp()
        A('s_waitcnt vmcnt(0)')
        self.pstamp()
        A.vm_done = A.vm
        self.count(47)
        L2 = A.newlabel('ncq')
        A(f's_and_b32 s28, {s(sT0)}, 3')
        A(f's_cmp_lg_u32 s28, {s(sLW)}')
        A(f's_cbranch_scc1 {L2}')
        A(f's_lshl_b32 s28, {s(sCG16)}, 7')
        A(f's_add_u32 s28, s28, {PC + 60 * 128}')
        self.count(28)
        A.label(L2)
        L2 = A.newlabel('np2')
        A('s_cmp_lt_u32 s2, 192')
        A(f's_cbranch_scc1 {L2}')
        A(f's_add_u32 s49, s49, 256')
        self.piece_decode(49)
        A.wait_all()
        self.piece_finish()
        A.wait_all()
        self.count(47)
        A.label(L2)
        self.sig(L_CS, 2, absv=True)
        self.lwait(L_CS, 2, 24, sleep=1, absv=True)
        A('s_lshr_b32 s34, s2, 3')
        A('s_lshl_b32 s34, s34, 2')
        A(f's_add_u32 s34, s34, {s(sLW)}')
        A(f'v_lshlrev_b32 v21, 7, {v(VLANE)}')
        A(f's_lshl_b32 s37, {s(sLW)}, 10')
        L, L3 = A.newlabel('lloop'), A.newlabel('lb3')
        A(f's_branch {L3}')
        A.label(L)

        def run(nm, src0, lds0, n):
            for i in range(0, n, 4):
                if i + 4 <= n:
                    A(f's_add_u32 m0, s37, {lds0 + i * KB}')
                    A(f's_add_u32 s28, s37, {src0 + i * KB}')
                else:
                    A(f's_min_u32 s28, s37, {(n - 1 - i) * KB}')
                    A(f's_add_u32 m0, s28, {lds0 + i * KB}')
                    A(f's_add_u32 s28, s28, {src0 + i * KB}')
                A(f's_add_u32 s28, s28, {s(bases[nm])}')
                self.dma(28)

        def steps(nm, lmap, NT, j0, j1):
            j = j0
            while j < j1:
                e = j + 1
                while e < j1 and lmap(e) == lmap(e - 1) + NT * KB:
                    e += 1
                run(nm, j * NT * KB, lmap(j), (e - j) * NT)
                j = e

        def only(pair, fn):
            Lx = A.newlabel('only')
            A.wait_all(vm=False)
            A(f's_cmp_lg_u32 {s(sPAIR)}, {pair}')
            A(f's_cbranch_scc1 {Lx}')
            vmd = A.vm_done
            fn()
            A.wait_all(vm=False)
            A.vm_done = vmd
            A.label(Lx)

        def touch(base, size):
            share = size // 128
            A(f's_mul_i32 s33, s34, {share}')
            A(f's_add_u32 s33, s33, {base}')
            vm0 = A.vm
            for i in range((share + 8191) // 8192):
                A(f'buffer_load_dword v20, v21, {s(SRD, 4)}, s33 offen')
                A(f's_add_u32 s33, s33, 8192')
            A.vm = vm0

        PK_ = 28

        def pfl(base, size, trig):
            self.lwait(L_PS, trig, 24, sleep=2)
            share = size // 128
            lines = share // 128
            A(f's_mul_i32 s33, s34, {share}')
            A(f's_add_u32 s33, s33, {base}')
            A(f's_mov_b64 exec, {(1 << PK_) - 1:#x}')
            A(f's_mov_b32 s36, {(lines + PK_ - 1) // PK_}')
            Lp_ = A.newlabel('pf')
            A.label(Lp_)
            A(f'buffer_load_dword v20, v21, {s(SRD, 4)}, s33 offen')
            A(f's_add_u32 s33, s33, {PK_ * 128}')
            A('s_sub_u32 s36, s36, 1')
            A('s_cmp_lg_u32 s36, 0')
            A('s_waitcnt vmcnt(0)')
            A(f's_cbranch_scc1 {Lp_}')
            A('s_mov_b64 exec, -1')

        def need(idx0, scg, n, stride, target):
            A(f's_lshl_b32 s33, {s(scg)}, 7')
            A(f's_add_u32 s33, s33, {PC + idx0 * 128}')
            A(f'v_mul_u32_u24 v23, {stride}, v21')
            self.poll(33, 23, n, target=target, mode='load')

        def need3():
            A(f's_mul_i32 s33, {s(sCG16)}, 6')
            A(f's_lshr_b32 s33, s33, 2')
            A(f'v_add_u32 v23, s33, {v(VLANE)}')
            A(f's_lshr_b32 s33, {s(sCG16)}, 2')
            A(f's_add_u32 s33, s33, 24')
            A(f'v_writelane_b32 v23, s33, 2')
            A(f'v_lshlrev_b32 v23, 7, v23')
            A(f's_mov_b32 s33, {PC + 24 * 128}')
            self.poll(33, 23, 3, target=16, mode='load')

        def cs_build(k, lmap, NT, loc, val):
            self.lwait(L_CR, k, 24, sleep=1)
            st = NT * KB
            A(f's_mul_i32 s28, {s(sLW)}, {st}')
            base = min(lmap(j) for j in range(16))
            assert sorted(lmap(j) for j in range(16)) == [base + j * st for j in range(16)]
            A(f's_add_u32 s28, s28, {base}')
            A(f'v_add_u32 v45, s28, {v(VL16)}')
            for c in range(4):
                for t in range(NT):
                    A(f'ds_read_b128 {v(64 + 4 * t, 4)}, v45 offset:{(c & 1) * 4 * st + t * KB}')
                A.wait_all(vm=False)
                for t in range(NT):
                    A(f'v_mfma_f32_16x16x32_bf16 {v(CSA + 4 * t, 4)}, {v(64 + 4 * t, 4)}, {v(ONES, 4)}, {"0" if c == 0 else v(CSA + 4 * t, 4)}')
                if c == 1:
                    A(f'v_add_u32 v45, {8 * st}, v45')
            self.cs_add([(CSA + 4 * t, 31, loc - PERM + t * 64) for t in range(NT)], None)
            self.sig(L_CS, val, absv=True)

        def batch(k, parts, after=None):
            self.lwait(L_CF, k, 24, sleep=2)
            for p in parts:
                steps(*p)
            m = A.vmark()
            if after:
                after()
            A.wait(vm=m)
            self.sig(L_CR, k)
        A.vm_done = A.vm
        need(60, sCG16, 1, 0, 16)
        batch(1, [('q', map_q, 6, 0, 14)])
        batch(2, [('q', map_q, 6, 14, 16)])
        A.wait_all(vm=False)
        A.label(L3)
        def ldump():
            need(0, sCG8, 3, 8, 16)
            if self.prof:
                self.pstamp()
                A(f's_lshl_b32 s33, s2, 2')
                A(f's_add_u32 s33, s33, {s(sLW)}')
                A(f's_lshl_b32 s33, s33, 8')
                A(f's_add_u32 s33, s33, {DBG + 1024 * KB}')
                A(f'buffer_store_dword v12, {v(VL4)}, {s(SRD, 4)}, s33 offen')
        only(0, ldump)
        batch(3, [('o', map_wo, 4, 0, 16), ('1', map_w1, 4, 0, 12)])
        only(1, lambda: touch(W3, 1024 * KB))
        batch(4, [('1', map_w1, 4, 12, 16), ('2', map_w2, 4, 0, 7)])
        only(0, lambda: (cs_build(4, map_w1, 4, L_CS1, 3), A.wait_all(vm=False), need3()))
        batch(5, [('2', map_w2, 4, 7, 16), ('3', map_w3, 7, 0, 3)])
        batch(6, [('3', map_w3, 7, 3, 13)])
        batch(7, [('3', map_w3, 7, 13, 16)])
        only(0, lambda: (cs_build(7, map_w3, 7, L_CS3, 4), A.wait_all(vm=False), need(52, sCG8, 1, 0, 56)))
        only(1, lambda: pfl(W4, 1792 * KB, 2))
        batch(8, [('4', map_w4, 4, 0, 11)])
        batch(9, [('4', map_w4, 4, 11, 39)])
        batch(10, [('4', map_w4, 4, 39, 56)])
        A.wait_all()
        A(f's_add_u32 {s(sEV)}, {s(sEV)}, 10')
        A(f's_add_u32 {s(sPAIR)}, {s(sPAIR)}, 1')
        A(f's_cmp_lt_u32 {s(sPAIR)}, 2')
        A(f's_cbranch_scc1 {L}')
        A('s_endpgm')

    def main(self):
        A = self.A
        name = NAME + '_kernel'
        A.reset_kernel()
        A.raw('.p2align 8')
        A.raw(f'.globl {name}')
        A.raw(f'.type {name},@function')
        A.label(name)
        self.exit = A.newlabel('exit')
        A('s_cmp_ge_u32 s2, 256')
        A(f's_cbranch_scc1 {self.exit}')
        A(f's_load_dwordx16 {s(PA, 16)}, s[0:1], 0')
        A(f's_load_dwordx8 {s(PA + 16, 8)}, s[0:1], 64')
        if self.prof:
            A('s_memrealtime s[62:63]')
        Lpc = A.newlabel('pc')
        A('s_getpc_b64 s[40:41]')
        A.label(Lpc)
        A('v_lshlrev_b32 v3, 7, v0')
        A(f'v_min_u32 v3, code_end-{Lpc}-4, v3')
        A('global_load_dword v13, v3, s[40:41]')
        A(f'v_and_b32 {v(VLANE)}, 63, v0')
        A(f'v_lshrrev_b32 v3, 6, v0')
        A(f'v_lshlrev_b32 {v(VL16)}, 4, {v(VLANE)}')
        A(f'v_readfirstlane_b32 {s(SW)}, v3')
        A(f's_mov_b32 {s(SRD + 2)}, {WS_USED}')
        A(f's_mov_b32 {s(SRD + 3)}, 0x00020000')
        A(f's_mov_b32 {s(SRD2 + 3)}, 0x00020000')
        A(f's_mov_b32 {s(SRDD + 2)}, 256')
        A(f's_mov_b32 {s(SRDD + 3)}, 0x00020000')
        self.tile64(sT, sCG8)
        self.tile128(sT0, sCG16)
        A(f's_mov_b32 {s(sPAIR)}, 0')
        A(f's_mov_b32 {s(sTO)}, 0x40000')
        A(f'v_lshlrev_b32 {v(VL4)}, 2, {v(VLANE)}')
        A(f's_mov_b32 {s(sEV)}, 0')
        A(f'v_mov_b32 {v(VPERM)}, {L_CF}')
        A(f's_and_b32 s26, {s(SW)}, 3')
        A(f's_lshl_b32 s26, s26, 2')
        A(f'v_add_u32 {v(VOWN)}, s26, {v(VPERM)}')
        A(f'v_cmp_gt_u32 vcc, 4, {v(VLANE)}')
        A(f'v_cndmask_b32 v3, 0, 2, vcc')
        A(f'v_add_u32 v10, {v(VL4)}, {v(VPERM)}')
        A(f'ds_write_b32 v10, v3')
        A(f'v_lshlrev_b32 v10, 2, v0')
        A(f'v_add_u32 v10, {PERM}, v10')
        A(f'v_mov_b32 v11, 0')
        A(f'ds_write_b32 v10, v11')
        LC = A.newlabel('compute')
        A('s_waitcnt lgkmcnt(0)')
        A.lg_done = A.lg
        A(f's_mov_b64 {s(SRD, 2)}, {s(PA + 22, 2)}')
        A(f's_mov_b64 {s(SRDD, 2)}, {s(PA + 20, 2)}')
        if 'wpf' in OPT:
            A('s_lshr_b32 s26, s2, 3')
            A('s_lshl_b32 s27, s2, 2')
            A('s_add_u32 s26, s26, s27')
            A('s_and_b32 s26, s26, 31')
            A('s_lshl_b32 s26, s26, 3')
            A(f's_add_u32 s26, s26, {s(SW)}')
            A(f's_mul_i32 s26, s26, 6144')
            A(f's_mov_b64 {s(SRD2, 2)}, {s(PA + 2, 2)}')
            A(f's_mov_b32 {s(SRD2 + 2)}, {512 * 3072}')
            A(f'v_lshlrev_b32 v10, 7, {v(VLANE)}')
            A('s_mov_b32 exec_hi, 0xffff')
            A(f'buffer_load_dword v13, v10, {s(SRD2, 4)}, s26 offen')
            A('s_mov_b32 exec_hi, -1')
        A(f's_cmp_lt_u32 {s(SW)}, 4')
        A('s_barrier')
        A(f's_cbranch_scc1 {LC}')
        self.loader()
        A.label(LC)
        A.flush_hazards()
        A.vm = A.vm_done = A.lg = A.lg_done = 0
        A('s_setprio 3')
        A(f's_lshl_b32 {s(sT0)}, {s(sT0)}, 3')
        A(f's_lshl_b32 s26, {s(SW)}, 1')
        A(f's_add_u32 {s(sT0)}, {s(sT0)}, s26')
        Lz = A.newlabel('nz')
        A(f's_cmp_lg_u32 {s(SW)}, 3')
        A(f's_cbranch_scc1 {Lz}')
        for i in range(4):
            A(f'v_mov_b32 {v(28 + i)}, 0')
        A(f's_lshl_b32 s28, s2, 11')
        A(f's_add_u32 s28, s28, {ZR}')
        A(f'buffer_store_dwordx4 v[28:31], {v(VL16)}, {s(SRD, 4)}, s28 offen sc1')
        A(f'buffer_store_dwordx4 v[28:31], {v(VL16)}, {s(SRD, 4)}, s28 offen offset:1024 sc1')
        A.label(Lz)
        A.vm_done = A.vm
        A('s_nop 0')
        A(f's_mov_b64 {s(SRD2, 2)}, {s(PA, 2)}')
        A(f's_mov_b32 {s(SRD2 + 2)}, {2048 * 512 * 2}')
        A(f'v_lshrrev_b32 v3, 4, {v(VLANE)}')
        A(f'v_and_b32 v10, 0xf0, {v(VL16)}')
        A(f'v_lshl_add_u32 v10, v3, 10, v10')
        A(f's_lshl_b32 s26, {s(sT0)}, 14')
        for i in range(1, 8):
            A(f's_add_u32 {s(26 + i)}, s26, {i * 4096}')
        PB = [32, 224, 160, 192]
        self.x0m = []
        for q4 in range(4):
            for mt in range(2):
                for n in range(4):
                    self.ld(v(PB[q4] + 16 * mt + 4 * n, 4), 26 + 4 * mt + n, 256 * q4, voff=10, srd=SRD2)
                self.x0m.append(A.vmark())
        A(f's_mov_b32 {s(sP)}, 0')
        A(f's_mov_b32 {s(sZ)}, 0')
        A(f's_mov_b32 {s(sC)}, 0')
        A(f's_mov_b32 {s(sFAST)}, 0')
        A(f's_mov_b32 {s(sFH)}, 0')
        A(f's_mov_b32 {s(sFG)}, 0')
        A(f's_lshl_b32 {s(sT)}, {s(sT)}, 2')
        A(f's_add_u32 {s(sT)}, {s(sT)}, {s(SW)}')
        A(f's_lshl_b32 {s(sTILE)}, {s(sT)}, 14')
        A(f's_lshl_b32 s26, {s(sCG8)}, 11')
        A(f's_add_u32 {s(sTILE)}, {s(sTILE)}, s26')
        A(f's_lshl_b32 {s(sSTP)}, {s(sT)}, 10')
        A(f's_lshl_b32 s26, {s(sCG8)}, 7')
        A(f's_add_u32 {s(sSTP)}, {s(sSTP)}, s26')
        for f, t, c in ((sF8, sT, sCG8), (sF16, sT0, sCG16)):
            A(f's_lshl_b32 {s(f)}, {s(t)}, {CSH}')
            A(f's_lshl_b32 s26, {s(c)}, 2')
            A(f's_add_u32 {s(f)}, {s(f)}, s26')
            A(f's_add_u32 {s(f)}, {s(f)}, {CB}')
        A(f'v_add_u32 {v(VB64)}, 0x10000, {v(VL16)}')
        A(f'v_add_u32 {v(VB128)}, 0x20000, {v(VL16)}')
        A(f'v_and_b32 {v(VSTL)}, 0x300, {v(VL16)}')
        A(f'v_and_b32 v3, 15, {v(VLANE)}')
        A(f'v_lshl_add_u32 {v(VSTL)}, v3, 3, {v(VSTL)}')
        A(f'v_mov_b32 {v(VONE)}, 1')
        A(f'v_lshrrev_b32 {v(VP2)}, 3, {v(VLANE)}')
        A(f'v_and_b32 v3, 0x1c, {v(VL4)}')
        A(f'v_lshl_add_u32 {v(VP2)}, {v(VP2)}, {CSH}, v3')
        A('v_mov_b32 v12, 0')
        if self.prof:
            A('v_writelane_b32 v12, s62, 60')
        A.wait(vm=self.x0m[0])
        A('s_getreg_b32 s30, hwreg(HW_REG_XCC_ID)')
        A('s_and_b32 s30, s30, 15')
        A('s_mul_i32 s31, s30, s30')
        A('s_lshl_b32 s31, s31, 16')
        A('s_lshl_b32 s30, s30, 7')
        A('s_add_u32 s30, s30, s31')
        A('s_add_u32 s58, s30, 1')
        A('v_mov_b32 v3, s58')
        A('s_and_b32 s31, s2, 7')
        A('s_lshl_b32 s31, s31, 2')
        A(f's_cmp_eq_u32 {s(SW)}, 3')
        A('s_cselect_b32 s31, s31, 0x1000')
        A('s_mov_b64 exec, 1')
        A(f'buffer_atomic_add v3, {v(VL4)}, {s(SRDD, 4)}, s31 offen')
        A('s_mov_b64 exec, -1')
        self.Lp = A.newlabel('pair')
        Lfinal = A.newlabel('final')
        self.stage_qkv()
        self.stage_wo()
        self.stage_w1()
        self.stage_w2()
        self.stage_w3()
        self.stage_w4(Lfinal)
        self.dump2()
        A(f's_mov_b32 {s(sPAIR)}, 1')
        A(f's_mov_b32 {s(sEV)}, 10')
        A(f's_mov_b32 {s(sFG)}, {s(sFAST)}')
        A(f's_mov_b32 {s(sZ)}, {ZSTRIDE}')
        A(f's_mov_b32 {s(sC)}, {CSTRIDE}')
        A(f's_add_u32 {s(sF8)}, {s(sF8)}, {CSTRIDE}')
        A(f's_add_u32 {s(sF16)}, {s(sF16)}, {CSTRIDE}')
        A(f's_branch {self.Lp}')
        A.label(Lfinal)
        buf = 64
        A(f's_mov_b64 {s(SRD2, 2)}, {s(PA + 18, 2)}')
        A(f'v_and_b32 v13, 15, {v(VLANE)}')
        A(f'v_lshlrev_b32 v13, 10, v13')
        A(f'v_bfe_u32 v3, {v(VLANE)}, 4, 1')
        A(f'v_lshl_add_u32 v13, v3, 5, v13')
        A(f'v_lshrrev_b32 v3, 5, {v(VLANE)}')
        A(f'v_lshl_add_u32 v13, v3, 4, v13')
        A(f's_lshl_b32 s28, {s(sT)}, 14')
        A(f's_lshl_b32 s29, {s(sCG8)}, 7')
        A(f's_add_u32 s28, s28, s29')
        self.pack(buf, RES, 8)
        for q in range(2):
            b = buf + 4 * q
            A(f'v_permlane16_swap_b32 {v(b)}, {v(b + 2)}')
            A(f'v_permlane16_swap_b32 {v(b + 1)}, {v(b + 3)}')
        for q in range(2):
            self.st(v(buf + 4 * q, 4), 28, 64 * q, voff=13, srd=SRD2)
        if self.prof:
            A('s_memrealtime s[60:61]')
            A('s_waitcnt lgkmcnt(0)')
            A('v_writelane_b32 v12, s60, 62')
        self.dump2()
        A.label(self.exit)
        A('s_endpgm')
        A.label('code_end')
        self.kernels.append((name, A.maxv + 1, (A.maxv + 4) // 4 * 4, A.maxs + 1))

    def build(self, hdr):
        self.main()
        out = [hdr]
        out.append(f'; @launch grid=(256,1,1) block=(512,1,1) lds={160 * KB}')
        out.append('.amdgcn_target "amdgcn-amd-amdhsa--gfx950"')
        out.append('.text')
        out.append(self.A.text())
        out.append('.section .rodata,"a"')
        for n, nv, accum, ns in self.kernels:
            assert nv <= 256
            out.append('.p2align 6')
            out.append(f'.amdhsa_kernel {n}')
            out.append(f'  .amdhsa_next_free_vgpr {nv}')
            out.append(f'  .amdhsa_next_free_sgpr {max(ns, 16)}')
            out.append(f'  .amdhsa_accum_offset {accum}')
            out.append('  .amdhsa_group_segment_fixed_size 0')
            out.append('  .amdhsa_kernarg_size 96')
            out.append('  .amdhsa_user_sgpr_count 2')
            out.append('  .amdhsa_user_sgpr_kernarg_segment_ptr 1')
            out.append('  .amdhsa_system_sgpr_workgroup_id_x 1')
            out.append('  .amdhsa_float_denorm_mode_32 3')
            out.append('.end_amdhsa_kernel')
        return '\n'.join(out) + '\n'


if __name__ == '__main__':
    OPT.add('d2early')
    g = Gen3()
    g.prof = 'prof' in OPT
    txt = g.build(header())
    out = sys.argv[1]
    if out == '-':
        out = f'cdna_kernels/{NAME}.s'
    open(out, 'w').write(txt)
    json.dump(LAYOUT, open('layout.json', 'w'))
    for k in g.kernels:
        print(k)
    print('nops inserted', g.A.nops, 'ws used', WS_USED, 'stamps', g.nstamp)
```

```python
import sys, json
import gen as G1
from gen import Gen, KB, NAME, f32, LOG2E, OOB, SRD, SW, SRD2, VL16, VLANE, header
from asmlib import v, a, s

OPT = set(sys.argv[2:])

_off = 0
def _alloc(n):
    global _off
    r = _off
    _off += (n + 4095) // 4096 * 4096
    return r
WQKV = _alloc(1536 * KB); WO = _alloc(512 * KB); W1 = _alloc(512 * KB); W2 = _alloc(512 * KB)
W3 = _alloc(1792 * KB); W4 = _alloc(1792 * KB)
CSQ = _alloc(16 * KB); CS1 = _alloc(8 * KB); CS3 = _alloc(16 * KB); DUMMY = _alloc(4 * KB)
ZR = _alloc(512 * KB)
ZSTRIDE = 128 * KB
KV = ZR
Z = KV + 64 * KB
PC = ZR + 96 * KB
CSH = 11
CB = ZR + 256 * KB
C_X, C_O, C_XA, C_H, C_X1, C_G, C_KV = [CB + 128 * i for i in range(7)]
CSTRIDE = 1024
X0 = _alloc(2048 * KB); ST0 = _alloc(128 * KB); OB = _alloc(2048 * KB); G = _alloc(7168 * KB)
XA = X1 = X0
STA = ST1 = ST0
H = OB
PSTRIDE = 0
DBG = _alloc(16 * 512 * 128 * 2)
WS_USED = _off
LAYOUT = {k: val for k, val in globals().items() if k.isupper() and isinstance(val, int)}
for k_, v_ in LAYOUT.items():
    setattr(G1, k_, v_)

sT, sCG8, sT0, sCG16, sP, sPAIR, sZ, sTO = 16, 17, 18, 19, 20, 21, 22, 23
sTILE, sSTP, sC, sFAST, sFH = 24, 25, 44, 45, 46
sFG = 49
sF8, sF16 = 47, 48
VB64, VB128, VSTL, VL4, VONE, VP2 = 4, 5, 6, 7, 8, 9
VMR = 10
RES = 16
FREE = 32
PERM = 156 * KB
L_CSQ, L_CS1, L_CS3 = PERM, PERM + 384, PERM + 640
L_CF, L_CR, L_CB, L_MODE, L_GO = PERM + 2048, PERM + 2064, PERM + 2080, PERM + 2096, PERM + 2100
L_PS = PERM + 2112
L_CS = PERM + 2128
PA = 64
SRDD = 88
PST = 138 * KB
PHL = 154 * KB
sEV = 50
VPERM = 15
VOWN = 14
GR = 4 * KB
def map_wo(j): return (35 + j) * GR if j < 4 else (j - 4) * GR
def map_w1(j): return (12 + j) * GR
def map_w2(j): return (28 + j) * GR if j < 11 else (j - 11) * GR
def map_w3(j): return ((j + 3) % 16) * 7 * KB
def map_w4(j):
    if j >= 39: j -= 39
    return (28 + j) * GR if j < 11 else (22 + j - 11) * GR if j < 17 else (j - 17) * GR
def map_q(j): return j * 6 * KB


class Rec:
    def __init__(self):
        self.l = []

    def __call__(self, t):
        self.l.append(t)


class Gen3(Gen):
    persist = False
    first_wait = False
    XGO = int([o[3:] for o in OPT if o.startswith('xgo')][0]) if any(o.startswith('xgo') for o in OPT) else 2
    NPRE = int([o[4:] for o in OPT if o.startswith('npre')][0]) if any(o.startswith('npre') for o in OPT) else 2
    DS = 8
    D4 = 10
    DB = 6

    def rec(self, fn):
        keep = self.A
        self.A = Rec()
        fn()
        l = self.A.l
        self.A = keep
        return l

    def ldx(self, dst, soff, ioff=0, voff=VL16, w=4, sc=None):
        o = f' offset:{ioff}' if ioff else ''
        wn = {1: 'dword', 2: 'dwordx2', 4: 'dwordx4'}[w]
        if sc is None:
            sc = '' if 'ldplain' in OPT else ' nt' if 'ldnt' in OPT else ' sc0' if 'ldsc0' in OPT else ' sc1'
        self.A(f'buffer_load_{wn} {dst}, {v(voff)}, {s(SRD, 4)}, {s(soff)} offen{o}{sc}')
        return self.A.vmark()

    dmant = False

    def dma(self, soff, ioff=0, voff=VL16, srd=SRD):
        o = f' offset:{ioff}' if ioff else ''
        nt = ' sc1' if (srd == SRD and 'dmaplain' not in OPT) else ''
        self.A(f'buffer_load_dwordx4 {v(voff)}, {s(srd, 4)}, {s(soff)} offen{o}{nt} lds')
        return self.A.vmark()

    def stores(self, lst, fast=sFAST):
        A = self.A
        Ls, Ld = A.newlabel('sts'), A.newlabel('std')

        def emit(sc):
            for src, soff, ioff, voff, w, ex in lst:
                o = f' offset:{ioff}' if ioff else ''
                wn = {1: 'dword', 2: 'dwordx2', 4: 'dwordx4'}[w]
                if ex:
                    A(f's_mov_b64 exec, {ex}')
                A(f'buffer_store_{wn} {src}, {v(voff)}, {s(SRD, 4)}, {s(soff)} offen{o}{sc}')
                if ex:
                    A('s_mov_b64 exec, -1')
        A(f's_cmp_eq_u32 {s(fast)}, 0')
        A(f's_cbranch_scc1 {Ls}')
        vm0 = A.vm
        emit(' nt' if 'stnt' in OPT else ' sc0' if 'stsc0' in OPT else ' sc1' if ('datasc1' in OPT and lst[0][4] != 1) else '')
        A(f's_branch {Ld}')
        A.label(Ls)
        A.vm = vm0
        emit(' sc1')
        A.label(Ld)

    def pstamp(self):
        if not self.prof:
            return
        A = self.A
        assert A.lg == A.lg_done
        i = self.nstamp
        self.nstamp += 1
        A('s_memtime s[60:61]')
        A('s_waitcnt lgkmcnt(0)')
        A(f'v_writelane_b32 v12, s60, {i}')

    def dbgt(self, slot, inv=False):
        if 'dbgt' not in OPT:
            return
        A = self.A
        assert A.lg == A.lg_done
        A('s_memrealtime s[60:61]')
        A('s_waitcnt lgkmcnt(0)')
        if inv:
            A('s_not_b32 s60, s60')
        A('v_mov_b32 v12, s60')
        A('s_mov_b64 exec, 1')
        A(f'buffer_atomic_umax v12, {v(VL4)}, {s(SRDD, 4)}, 0 offen offset:{slot * 4}')
        A.vm -= 1
        A('s_mov_b64 exec, -1')

    def poll(self, sbase, voff, n, target=1, mode='auto', ioff=0, srd=SRD, mask=None):
        A = self.A
        assert A.lg == A.lg_done
        L, LS, LC, D = A.newlabel('poll'), A.newlabel('polls'), A.newlabel('pollc'), A.newlabel('polld')
        o = f' offset:{ioff}' if ioff else ''
        A(f's_mov_b64 exec, {(1 << n) - 1:#x}' if n < 32 else 's_mov_b32 exec_hi, 0')
        A.label(L)
        if mode == 'auto':
            A(f's_cmp_eq_u32 {s(sFAST)}, 0')
            A(f's_cbranch_scc1 {LS}')
            A(f'buffer_load_dword v3, {v(voff)}, {s(SRD, 4)}, {s(sbase)} offen{o} sc1')
            A(f's_branch {LC}')
            A.label(LS)
        if mode == 'load':
            A(f'buffer_load_dword v3, {v(voff)}, {s(srd, 4)}, {s(sbase)} offen{o} sc1')
        else:
            A('v_mov_b32 v3, 0')
            A(f'buffer_atomic_add v3, {v(voff)}, {s(SRD, 4)}, {s(sbase)} offen{o} sc0')
        A.label(LC)
        A('s_waitcnt vmcnt(0)')
        A.vm_done = A.vm
        if mask:
            A(f'v_and_b32 v22, {mask}, v3')
            A(f'v_cmp_le_u32 vcc, {target}, v22')
        else:
            A(f'v_cmp_le_u32 vcc, {target}, v3')
        A('s_cmp_eq_u64 vcc, exec')
        A(f's_cbranch_scc1 {D}')
        A(f's_sub_u32 {s(sTO)}, {s(sTO)}, 1')
        A(f's_cbranch_scc1 {self.exit}')
        if mode == 'load':
            A('s_sleep 8')
        A(f's_branch {L}')
        A.label(D)
        A('s_mov_b64 exec, -1')

    def sig(self, base, k, absv=False):
        A = self.A
        if absv:
            A(f'v_mov_b32 v3, {k}')
        else:
            A(f's_add_u32 s51, {s(sEV)}, {k}')
            A('v_mov_b32 v3, s51')
        A(f'ds_write_b32 {v(VOWN)}, v3 offset:{base - L_CF}')

    def lwait(self, base, k, tmp, sleep=0, single=False, absv=False):
        A = self.A
        L, D = A.newlabel('lw'), A.newlabel('lwd')
        A(f's_mov_b32 s51, {k}' if absv else f's_add_u32 s51, {s(sEV)}, {k}')
        A.label(L)
        if single:
            A(f'ds_read_b32 {v(tmp)}, {v(VPERM)} offset:{base - L_CF}')
            A.wait_all(vm=False)
        else:
            A(f'ds_read_b128 {v(tmp, 4)}, {v(VPERM)} offset:{base - L_CF}')
            A.wait_all(vm=False)
            A(f'v_min_u32 {v(tmp)}, {v(tmp)}, {v(tmp + 1)}')
            A(f'v_min3_u32 {v(tmp)}, {v(tmp)}, {v(tmp + 2)}, {v(tmp + 3)}')
        A(f'v_cmp_le_u32 vcc, s51, {v(tmp)}')
        A(f's_cbranch_vccnz {D}')
        A(f's_sub_u32 {s(sTO)}, {s(sTO)}, 1')
        A(f's_cbranch_scc1 {self.exit}')
        if sleep:
            A(f's_sleep {sleep}')
        A(f's_branch {L}')
        A.label(D)

    def flag(self, sbase, ioff, two=False, fast=sFAST):
        self.pstamp()
        self.A.wait_all(lg=False)
        self.stores([(v(VONE), sbase, ioff, VP2, 1, '0x101' if two else '1')], fast)
        self.pstamp()

    def gemm(self, KS, MT, NT, acc, xreg, ldsoff, buf, NB, xwait, hook=None, preread=None, fill=(), czero=False, fill0=1):
        A = self.A
        vbase = {0: VL16, 1: VB64, 2: VB128}
        fill = list(fill)

        def read(j, t):
            if t == 0 and preread:
                preread(j)
            off = ldsoff(j) + t * KB
            A(f'ds_read_b128 {v(buf + ((j % NB) * NT + t) * 4, 4)}, {v(vbase[off >> 16])} offset:{off & 0xffff}')
            return A.lmark()
        marks = {}
        pre = NB
        while pre * NT > 14:
            pre -= 1
        for j in range(pre):
            for t in range(NT):
                marks[(j, t)] = read(j, t)
        nxt = [(j, t) for j in range(pre, KS) for t in range(NT)]
        for j in range(KS):
            for t in range(NT):
                A.wait(vm=xwait(j) if t == 0 else None, lg=marks[(j, t)])
                for mt in range(MT):
                    r = acc + (mt * NT + t) * 4
                    c = '0' if (czero and j == 0) else v(r, 4)
                    A(f'v_mfma_f32_16x16x32_bf16 {v(r, 4)}, {v(buf + ((j % NB) * NT + t) * 4, 4)}, {xreg(mt, j)}, {c}')
                    if fill and j >= fill0:
                        A(fill.pop(0))
                if nxt:
                    j2, t2 = nxt[0]
                    if (j2 - NB, t2) <= (j, t):
                        marks[(j2, t2)] = read(j2, t2)
                        nxt.pop(0)
                if hook:
                    hook(j, t)
        assert not nxt and not fill, (len(fill))

    def cs_read(self, NT, cs, loc):
        A = self.A
        A(f'v_and_b32 v3, 0x30, {v(VLANE)}')
        A(f'v_add_u32 v3, {loc}, v3')
        for t in range(NT):
            A(f'ds_read_b128 {v(cs + 4 * t, 4)}, v3 offset:{t * 64}')

    def ln_fix(self, acc, n, cs, mean):
        for i in range(0, n, 2):
            self.A(f'v_pk_fma_f32 {v(acc + i, 2)}, {v(cs + i, 2)}, {v(mean, 2)}, {v(acc + i, 2)} op_sel_hi:[1,0,1] neg_lo:[0,1,0] neg_hi:[0,1,0]')

    def ld_stats(self, dst, soff, ioff=0):
        self.ldx(v(dst, 2), soff, ioff, voff=VSTL, w=2)
        return self.ldx(v(dst + 2, 2), soff, ioff + 128, voff=VSTL, w=2)

    def stats_calc(self, acc, n, tmp):
        A = self.A
        S, Q = tmp, tmp + 2
        A(f'v_pk_add_f32 {v(S, 2)}, {v(acc, 2)}, {v(acc + 2, 2)}')
        A(f'v_pk_mul_f32 {v(Q, 2)}, {v(acc, 2)}, {v(acc, 2)}')
        for i in range(2, n, 2):
            if i >= 4:
                A(f'v_pk_add_f32 {v(S, 2)}, {v(S, 2)}, {v(acc + i, 2)}')
            A(f'v_pk_fma_f32 {v(Q, 2)}, {v(acc + i, 2)}, {v(acc + i, 2)}, {v(Q, 2)}')
        A(f'v_add_f32 {v(S)}, {v(S)}, {v(S + 1)}')
        A(f'v_add_f32 {v(S + 1)}, {v(Q)}, {v(Q + 1)}')
        Q = S + 1
        A(f'v_permlane32_swap_b32 {v(S)}, {v(Q)}')
        A(f'v_add_f32 {v(S)}, {v(S)}, {v(Q)}')
        A(f'v_mov_b32 {v(Q)}, {v(S)}')
        A(f'v_permlane16_swap_b32 {v(S)}, {v(Q)}')
        A(f'v_add_f32 {v(S)}, {v(S)}, {v(Q)}')
        A(f'v_mov_b32 {v(Q)}, {v(S)}')
        A(f'v_permlane32_swap_b32 {v(S)}, {v(Q)}')

    def store_tile(self, acc, tmp, DST, STD, nextpair=False, fast=sFAST):
        A = self.A
        self.pack(tmp, acc, 8)
        add = PSTRIDE if nextpair else 0
        A(f's_add_u32 s26, {s(sTILE)}, {DST + add}')
        A(f's_add_u32 s27, {s(sSTP)}, {STD + add}')
        self.stores([(v(tmp, 4), 26, 0, VL16, 4, None), (v(tmp + 4, 4), 26, KB, VL16, 4, None)], fast)
        self.stats_calc(acc, 16, tmp + 8)
        self.stores([(v(tmp + 8, 2), 27, 0, VSTL, 2, '0xffff')], fast)

    def big_pre(self, XIN, STIN):
        A = self.A
        A(f's_lshl_b32 s26, {s(sT0)}, 14')
        A(f's_add_u32 s26, s26, {s(sP)}')
        A(f's_add_u32 s26, s26, {XIN}')
        A(f's_add_u32 s27, s26, {16 * KB}')
        A(f's_lshl_b32 s28, {s(sT0)}, 10')
        A(f's_add_u32 s28, s28, {s(sP)}')
        A(f's_add_u32 s28, s28, {STIN}')
        A(f's_lshl_b32 s29, {s(sT0)}, {CSH}')
        A(f's_add_u32 s29, s29, {s(sC)}')

    def big_main(self, NT, acc, buf, XR, ST, fill, lmap, late_j, late_id, xsig, fsig):
        A = self.A
        D, RING = self.DB, 8
        sX, sX2 = 26, 27
        xm = {}

        def xload(j, mt):
            xm[j] = self.ldx(v(XR + ((j % RING) * 2 + mt) * 4, 4), sX2 if mt else sX, (j & 3) * KB)
            if (j & 3) == 3 and j < 15:
                r = sX2 if mt else sX
                A(f's_add_u32 {s(r)}, {s(r)}, {4 * KB}')
        for j in range(D):
            xload(j, 0)
            xload(j, 1)
            if j == 1:
                self.ld_stats(ST, 28)
                self.ld_stats(ST + 4, 28, KB)
        self.pstamp()

        def hook(j, t):
            if j == 0 and t == 0:
                self.sig(L_PS, 1 if NT == 6 else 2)
            if j + D < 16:
                if t == 1:
                    xload(j + D, 0)
                if t == 4:
                    xload(j + D, 1)
                    if j + D == 15 and xsig is not None:
                        self.sig(L_CF, xsig)

        def preread(j):
            if j == late_j:
                self.lwait(L_CR, late_id, 252)
                if NT == 7:
                    self.lwait(L_CS, 4, 252, absv=True)
                    self.cs_read(7, 224, L_CS3)
        self.gemm(16, 2, NT, acc, lambda mt, j: v(XR + ((j % RING) * 2 + mt) * 4, 4), lmap,
                  buf, 2, lambda j: xm[j], hook, preread, fill=fill, czero=True, fill0=2)
        if fsig is not None:
            self.sig(L_CF, fsig)
        A.wait_all(vm=False)
        self.pstamp()

    def small_main(self, KS, acc, buf, XR, RING, D, src, lmap, fill=(), czero=False, extra=None, hook2=None, preread=None,
                   xsig=None, fsig=None):
        A = self.A
        xm = {}

        def xload(j):
            so, io, vo = src(j)
            xm[j] = self.ldx(v(XR + (j % RING) * 4, 4), so, io, voff=vo)
            if (j & 3) == 3 and j < KS - 1:
                A(f's_add_u32 {s(so)}, {s(so)}, {4 * KB}')
        for j in range(D):
            xload(j)
            if j == 1 and extra:
                extra()
        self.pstamp()

        def hook(j, t):
            if t == 1 and j + D < KS:
                xload(j + D)
                if j + D == KS - 1 and xsig is not None:
                    self.sig(L_CF, xsig)
            if hook2:
                hook2(j, t)
        self.gemm(KS, 1, 4, acc, lambda mt, j: v(XR + 4 * (j % RING), 4), lmap, buf, 4,
                  lambda j: xm[j], hook, preread, fill=fill, czero=czero, fill0=2)
        if fsig is not None:
            self.sig(L_CF, fsig)
        A.wait_all(vm=False)
        self.pstamp()

    def stage_qkv(self):
        A = self.A
        NT = 6
        ST, CC, acc, buf, XR, CS = 32, 40, 64, 112, 160, 224
        SCR, RSZ = 96 * KB, 336

        def f():
            for mt in range(2):
                self.stats_consume(ST + 4 * mt, 3)
                self.rstd(CC + 1 + 2 * mt, ST + 4 * mt + 1)
                self.A(f'v_mul_f32 {v(CC + 2 * mt)}, {f32(LOG2E)}, {v(CC + 1 + 2 * mt)}')
            self.A(f'v_permlane32_swap_b32 {v(CC)}, {v(CC + 2)}')
        Lepi = A.newlabel('qepi')
        self.qkv_first(f, acc, buf, ST, CS, SCR, RSZ)
        A(f's_branch {Lepi}')
        A.label(self.Lp)
        self.nstamp = 0
        if self.prof:
            A('s_memrealtime s[60:61]')
            A('s_waitcnt lgkmcnt(0)')
            A('v_writelane_b32 v12, s60, 63')
        self.pstamp()
        self.big_pre(X0, ST0)
        self.cs_read(NT, CS, L_CSQ)
        self.qkv_addr(SCR, RSZ)
        self.lwait(L_CR, 1, 252)
        A(f's_add_u32 s29, s29, {C_X}')
        self.poll(29, VP2, 16)
        self.pstamp()
        self.big_main(NT, acc, buf, XR, ST, self.rec(f), map_q, 14, 2, None, 3)
        A.label(Lepi)
        A('s_nop 4')
        self.qkv_epi(ST, CC, acc, buf, CS, SCR, RSZ)

    def qkv_first(self, f, acc, buf, ST, CS, SCR, RSZ):
        A = self.A
        PB = [32, 224, 160, 192]
        self.nstamp = 0
        if self.prof:
            A('s_memrealtime s[60:61]')
            A('s_waitcnt lgkmcnt(0)')
            A('v_writelane_b32 v12, s60, 63')
        self.pstamp()
        WA, RA = 64, 68
        A(f's_mul_i32 s34, {s(SW)}, {32 * RSZ}')
        A(f's_add_u32 s34, s34, {SCR}')
        A(f'v_lshrrev_b32 v3, 4, {v(VLANE)}')
        A(f'v_and_b32 v76, 15, {v(VLANE)}')
        A(f'v_xor_b32 v77, v76, v3')
        A(f'v_lshlrev_b32 v77, 4, v77')
        A(f'v_lshl_add_u32 v77, v3, 8, v77')
        A(f'v_add_u32 v77, s34, v77')
        for n in range(4):
            A(f'v_xor_b32 {v(WA + n)}, {n * 64}, v77')
        A(f'v_lshrrev_b32 v77, 1, v3')
        A(f'v_xor_b32 v77, v77, v76')
        A(f'v_lshlrev_b32 v77, 4, v77')
        A(f'v_lshl_add_u32 v77, v76, 8, v77')
        A(f'v_and_b32 v3, 1, v3')
        A(f'v_lshl_add_u32 v77, v3, 3, v77')
        A(f'v_add_u32 v77, s34, v77')
        for m in range(8):
            A(f'v_xor_b32 {v(RA + m)}, {m * 32}, v77')
        for i in range(4):
            A(f'v_mov_b32 {v(16 + i)}, 0')
        A(f'v_and_b32 v13, 0x30, {v(VLANE)}')
        A(f'v_add_u32 v13, {L_CSQ}, v13')

        def stats(p):
            b = PB[p >> 1] + 16 * (p & 1)
            for i in range(16):
                A(f'v_dot2c_f32_bf16 {v(16 + 2 * (p & 1))}, 0x3f803f80, {v(b + i)}')
                A(f'v_dot2c_f32_bf16 {v(17 + 2 * (p & 1))}, {v(b + i)}, {v(b + i)}')
        for p in range(8):
            b = PB[p >> 1] + 16 * (p & 1)
            A.wait(vm=self.x0m[p], lg=A.lmark())
            for n in range(4):
                A(f'ds_write_b128 {v(WA + n)}, {v(b + 4 * n, 4)} offset:{n * 1024}')
            for m in range(8):
                A(f'ds_read_b64 {v(b + 2 * m, 2)}, {v(RA + m)}')
            if p:
                stats(p - 1)
        A.wait_all(vm=False)
        stats(7)
        self.pstamp()
        self.lwait(L_CR, 2, 20, sleep=1)
        if 'dbgt' in OPT:
            A('s_memrealtime s[60:61]')
            A('s_waitcnt lgkmcnt(0)')
            A('s_mov_b32 s92, s60')
        if 'dbgt' in OPT:
            A('s_memrealtime s[60:61]')
            A('s_waitcnt lgkmcnt(0)')
            A('s_mov_b32 s93, s60')
        self.pstamp()

        def g():
            A = self.A
            for mt in range(2):
                A(f'v_mov_b32 {v(ST + 4 * mt)}, {v(16 + 2 * mt)}')
                A(f'v_mov_b32 {v(ST + 4 * mt + 1)}, {v(17 + 2 * mt)}')
                A(f'v_mov_b32 {v(ST + 4 * mt + 2)}, 0')
                A(f'v_mov_b32 {v(ST + 4 * mt + 3)}, 0')
            f()
            self.qkv_addr(SCR, RSZ)

        def hook(j, t):
            if j == 9 and t == 0:
                self.lwait(L_CS, 1, 20, absv=True)
            if 9 <= j < 15 and t == 0:
                A(f'ds_read_b128 {v(CS + 4 * (j - 9), 4)}, v13 offset:{(j - 9) * 64}')
        self.gemm(16, 2, 6, acc, lambda mt, j: v(PB[j >> 2] + 16 * mt + 4 * (j & 3), 4), map_q,
                  buf, 2, lambda j: None, hook, None, fill=self.rec(g), czero=True, fill0=4)
        self.sig(L_CF, 3)
        A(f'v_and_b32 v3, 15, {v(VLANE)}')
        A(f'v_lshlrev_b32 v13, 10, v3')
        A(f'v_lshrrev_b32 v3, 4, {v(VLANE)}')
        A(f'v_lshl_add_u32 v13, v3, 3, v13')
        A(f's_lshl_b32 s28, {s(sT)}, 14')
        A(f's_lshl_b32 s29, {s(sCG8)}, 7')
        A(f's_add_u32 s28, s28, s29')
        for t in range(4):
            A(f'buffer_load_dwordx2 {v(RES + 8 + 2 * t, 2)}, v13, {s(SRD2, 4)}, s28 offen offset:{32 * t}')
        A.vm_done = A.vm
        A.wait_all(vm=False)
        self.pstamp()

    def qkv_addr(self, SCR, RSZ):
        A = self.A
        A(f'v_lshrrev_b32 v60, 4, {v(VLANE)}')
        A(f'v_and_b32 v61, 15, {v(VLANE)}')
        A(f's_mul_i32 s30, {s(SW)}, {32 * RSZ}')
        A(f's_add_u32 s30, s30, {SCR}')
        A(f'v_mul_u32_u24 v45, {RSZ}, v61')
        A(f'v_add_u32 v45, s30, v45')
        A(f'v_lshl_add_u32 v46, v60, 3, v45')
        A(f'v_lshl_add_u32 v44, v60, 4, v45')
        A(f'v_and_b32 v3, 1, v60')
        A(f'v_lshl_add_u32 v45, v3, 6, v45')
        A(f'v_lshrrev_b32 v3, 1, v60')
        A(f'v_mul_u32_u24 v3, {16 * RSZ}, v3')
        A(f'v_add_u32 v45, v45, v3')
        A(f'v_bfe_u32 v3, {v(VLANE)}, 2, 2')
        A(f'v_lshl_add_u32 v3, v60, 3, v3')
        A(f'v_mul_u32_u24 v47, {RSZ}, v3')
        A(f'v_and_b32 v3, 3, {v(VLANE)}')
        A(f's_lshr_b32 s30, {s(SW)}, 1')
        A(f's_and_b32 s31, {s(SW)}, 1')
        A(f's_lshl_b32 s32, s30, 6')
        A(f's_lshl_b32 s33, s31, 3')
        A(f's_add_u32 s32, s32, s33')
        A(f's_add_u32 s32, s32, {SCR + 128}')
        A(f'v_lshl_add_u32 v48, v3, 4, v47')
        A(f'v_add_u32 v48, s32, v48')
        A(f's_lshl_b32 s32, s30, 5')
        A(f's_add_u32 s32, s32, {SCR + 256}')
        A(f'v_lshl_add_u32 v49, v3, 3, v47')
        A(f'v_add_u32 v49, s32, v49')
        A(f's_lshl_b32 s42, {s(sCG16)}, 12')
        A(f's_add_u32 s42, s42, {s(sZ)}')
        A(f's_add_u32 s42, s42, {KV}')
        A(f's_lshl_b32 s32, {s(SW)}, 10')
        A(f's_add_u32 s32, s32, s42')
        A(f's_lshl_b32 s43, {s(sCG16)}, 8')
        A(f's_add_u32 s43, s43, {s(sZ)}')
        A(f's_add_u32 s43, s43, {Z}')
        A(f's_lshl_b32 s33, s30, 7')
        A(f's_add_u32 s33, s33, s43')
        A(f's_lshl_b32 s31, s31, 4')
        A(f's_add_u32 s33, s33, s31')
        A(f'v_lshlrev_b32 v50, 5, v60')
        A(f'v_lshl_add_u32 v51, v61, 2, v50')
        A(f'v_mov_b32 v3, {OOB}')
        A(f'v_cmp_gt_u32 vcc, 4, v61')
        A(f'v_cndmask_b32 v51, v3, v51, vcc')
        A(f'v_cmp_eq_u32 s[34:35], 1, v61')
        A(f'v_cmp_eq_u32 s[36:37], 2, v61')
        A(f'v_cmp_eq_u32 s[38:39], 3, v61')
        for i in range(4):
            A(f'v_mov_b32 {v(52 + i)}, 0x3f803f80')
            A(f'v_mov_b32 {v(56 + i)}, {f32(1e-6)}')

    def qkv_epi(self, ST, CC, acc, buf, CS, SCR, RSZ):
        A = self.A
        EP, EM, PK, M = 160, 176, 192, 208

        def softmax(P, off):
            cc = CC
            for op, d in (('max', M), ('min', M + 1)):
                A(f'v_{op}3_f32 {v(d)}, {v(P)}, {v(P + 1)}, {v(P + 2)}')
                for i in range(3, 15, 2):
                    A(f'v_{op}3_f32 {v(d)}, {v(d)}, {v(P + i)}, {v(P + i + 1)}')
                A(f'v_{op}_f32 {v(d)}, {v(d)}, {v(P + 15)}')
            A(f'v_pk_mul_f32 {v(M, 2)}, {v(M, 2)}, {v(cc, 2)} op_sel_hi:[1,0]')
            for i in range(0, 16, 2):
                A(f'v_pk_fma_f32 {v(EP + i, 2)}, {v(P + i, 2)}, {v(cc, 2)}, {v(M, 2)} op_sel_hi:[1,0,0] neg_lo:[0,0,1] neg_hi:[0,0,1]')
                A(f'v_pk_fma_f32 {v(EM + i, 2)}, {v(P + i, 2)}, {v(cc, 2)}, {v(M, 2)} op_sel:[0,0,1] op_sel_hi:[1,0,1] neg_lo:[0,1,0] neg_hi:[0,1,0]')
            for i in range(32):
                A(f'v_exp_f32 {v(EP + i)}, {v(EP + i)}')
            for E, d in ((EP, M + 2), (EM, M + 4)):
                A(f'v_pk_add_f32 {v(d, 2)}, {v(E, 2)}, {v(E + 2, 2)}')
                for i in range(4, 16, 2):
                    A(f'v_pk_add_f32 {v(d, 2)}, {v(d, 2)}, {v(E + i, 2)}')
            A(f'v_add_f32 {v(M + 2)}, {v(M + 2)}, {v(M + 3)}')
            A(f'v_add_f32 {v(M + 3)}, {v(M + 4)}, {v(M + 5)}')
            A(f'v_rcp_f32 {v(M + 2)}, {v(M + 2)}')
            A(f'v_rcp_f32 {v(M + 3)}, {v(M + 3)}')
            for t in range(4):
                for i in (4 * t, 4 * t + 2):
                    A(f'v_pk_mul_f32 {v(EP + i, 2)}, {v(EP + i, 2)}, {v(M + 2, 2)} op_sel_hi:[1,0]')
                    A(f'v_pk_mul_f32 {v(EM + i, 2)}, {v(EM + i, 2)}, {v(M + 2, 2)} op_sel:[0,1] op_sel_hi:[1,1]')
                self.pack(PK + 4 * t, EP + 4 * t, 2)
                self.pack(PK + 4 * t + 2, EM + 4 * t, 2)
                A(f'ds_write_b128 v45, {v(PK + 4 * t, 4)} offset:{off + 16 * t}')
        for mt in range(2):
            P = acc + mt * 24
            self.ln_fix(P, 24, CS, ST + 4 * mt)
        for i in range(16):
            A(f'v_permlane32_swap_b32 {v(acc + i)}, {v(acc + 24 + i)}')
        for mt in range(2):
            P = acc + mt * 24
            for hh in range(2):
                r = P + 16 + 4 * hh
                for i in (0, 2):
                    A(f'v_pk_mul_f32 {v(r + i, 2)}, {v(r + i, 2)}, {v(CC + 2 * mt, 2)} op_sel:[0,1] op_sel_hi:[1,1]')
                self.pack(r, r, 2)
                A(f'ds_write_b64 v46, {v(r, 2)} offset:{mt * 16 * RSZ + 256 + 32 * hh}')
        softmax(acc + 24, 128)
        A.wait_all(vm=False)
        self.pstamp()
        self.sig(L_CB, 1)
        Lm = A.newlabel('mode')
        A.wait_all(vm=False)
        A(f's_cmp_eq_u32 {s(sPAIR)}, 0')
        A(f's_cbranch_scc0 {Lm}')
        self.lwait(L_MODE, 1, 252, single=True)
        A(f'v_readfirstlane_b32 {s(sFAST)}, v252')
        A(f's_sub_u32 {s(sFAST)}, {s(sFAST)}, 1')
        A(f's_add_u32 s31, {s(sT)}, 1')
        A(f's_and_b32 s31, s31, 15')
        A(f's_cmp_le_u32 s31, 1')
        A(f's_cselect_b32 {s(sFH)}, 0, {s(sFAST)}')
        A('s_waitcnt vmcnt(0)')
        self.unpack(RES, RES + 8, 8)
        A.label(Lm)
        self.lwait(L_CB, 1, 252)
        TA, TB = 112, 128
        for ks in range(4):
            for u2 in range(2):
                off = (32 * ks + 4 * u2) * RSZ
                A(f'ds_read_b64_tr_b16 {v(TA + 4 * ks + 2 * u2, 2)}, v48 offset:{off}')
                A(f'ds_read_b64_tr_b16 {v(TB + 4 * ks + 2 * u2, 2)}, v49 offset:{off}')
            if ks == 2:
                A.wait(lg=A.lmark() - 8)
        base = A.lmark() - 16
        KVA, ZA = 144, 148
        for ks in range(4):
            A.wait(lg=base + 4 * ks + 4)
            A(f'v_mfma_f32_16x16x32_bf16 {v(KVA, 4)}, {v(TA + 4 * ks, 4)}, {v(TB + 4 * ks, 4)}, {"0" if ks == 0 else v(KVA, 4)}')
            A(f'v_mfma_f32_16x16x32_bf16 {v(ZA, 4)}, {v(TA + 4 * ks, 4)}, v[52:55], {"0" if ks == 0 else v(ZA, 4)}')
        for r in range(4):
            o = f' offset:{256 * r}' if r else ''
            A(f'buffer_atomic_add_f32 {v(KVA + r)}, {v(VL4)}, {s(SRD, 4)}, s32 offen{o}')
        A(f'v_cndmask_b32 {v(ZA)}, {v(ZA)}, {v(ZA + 1)}, s[34:35]')
        A(f'v_cndmask_b32 {v(ZA)}, {v(ZA)}, {v(ZA + 2)}, s[36:37]')
        A(f'v_cndmask_b32 {v(ZA)}, {v(ZA)}, {v(ZA + 3)}, s[38:39]')
        A(f'buffer_atomic_add_f32 {v(ZA)}, v51, {s(SRD, 4)}, s33 offen')
        self.pstamp()
        if 'd1late' in OPT:
            self.sig(L_CF, 3)
        softmax(acc, 0)
        PQ = 160
        for mt in range(2):
            for hh in range(2):
                A(f'ds_read_b128 {v(PQ + 8 * mt + 4 * hh, 4)}, v44 offset:{mt * 16 * RSZ + 64 * hh}')
        A(f's_lshl_b32 s30, {s(sCG16)}, {CSH}')
        A(f's_add_u32 s30, s30, {s(sC)}')
        A(f's_add_u32 s30, s30, {C_KV}')
        A(f's_lshl_b32 s26, {s(sT0)}, 14')
        A(f's_lshl_b32 s27, {s(sCG16)}, 10')
        A(f's_add_u32 s26, s26, s27')
        A(f's_add_u32 s26, s26, {s(sP)}')
        A(f's_add_u32 s26, s26, {OB}')
        A(f's_add_u32 s27, s26, {16 * KB}')
        if 'd2early' in OPT:
            self.sig(L_CF, 4)
        A.wait_all(vm=False)
        self.pstamp()
        A.wait_all()
        self.sig(L_CB, 2)
        A.wait_all(vm=False)
        self.pstamp()
        Lw, Lg, Lx = A.newlabel('kvw'), A.newlabel('kvg'), A.newlabel('kvx')
        A(f's_cmp_lg_u32 {s(SW)}, 0')
        A(f's_cbranch_scc1 {Lw}')
        self.lwait(L_CB, 2, 252)
        A('s_mov_b64 exec, 1')
        A('v_mov_b32 v3, 1')
        A(f'buffer_atomic_add v3, {v(VL4)}, {s(SRD, 4)}, s30 offen sc0')
        A('s_waitcnt vmcnt(0)')
        A('v_readfirstlane_b32 s31, v3')
        A('s_mov_b64 exec, -1')
        A('s_cmp_eq_u32 s31, 15')
        A(f's_cbranch_scc1 {Lg}')
        self.poll(30, VL4, 1, target=16, mode='atomic')
        A.label(Lg)
        self.sig(L_GO, 1)
        A.wait_all(vm=False)
        A(f's_branch {Lx}')
        A.label(Lw)
        self.lwait(L_GO, 1, 252, sleep=1, single=True)
        A.label(Lx)
        self.pstamp()
        KF, ZF = 64, 80
        for i in range(16):
            self.ldx(v(KF + i), 42, 256 * i, voff=VL4, w=1, sc=' sc1')
        for hh in range(2):
            for u in range(2):
                self.ldx(v(ZF + 8 * hh + 4 * u, 4), 43, 128 * hh + 16 * u, voff=50, sc=' sc1')
        A.wait(vm=A.vmark() - 4)
        self.pack(96, KF, 8)
        A.wait_all()
        self.pack(104, ZF, 8)
        ND = 112
        for mt in range(2):
            for hh in range(2):
                d = ND + 16 * mt + 8 * hh
                A(f'v_mfma_f32_16x16x32_bf16 {v(d + 4, 4)}, {v(104 + 4 * hh, 4)}, {v(PQ + 8 * mt + 4 * hh, 4)}, v[56:59]')
                A(f'v_mfma_f32_16x16x32_bf16 {v(d, 4)}, {v(96 + 4 * hh, 4)}, {v(PQ + 8 * mt + 4 * hh, 4)}, 0')
        for q in range(4):
            A(f'v_rcp_f32 {v(ND + 8 * q + 4)}, {v(ND + 8 * q + 4)}')
        for q in range(4):
            d = ND + 8 * q
            for i in (0, 2):
                A(f'v_pk_mul_f32 {v(d + i, 2)}, {v(d + i, 2)}, {v(d + 4, 2)} op_sel_hi:[1,0]')
            self.pack(144 + 2 * q, d, 2)
        self.stores([(v(144, 4), 26, 0, VL16, 4, None), (v(148, 4), 27, 0, VL16, 4, None)], sFG)
        self.flag(sF16, C_O - CB, two=True)

    def small_pre(self, XIN, mul=16):
        A = self.A
        A(f's_mul_i32 s26, {s(sT)}, {mul * KB}')
        A(f's_add_u32 s26, s26, {s(sP)}')
        A(f's_add_u32 s26, s26, {XIN}')
        A(f's_lshl_b32 s29, {s(sT)}, {CSH}')
        A(f's_add_u32 s29, s29, {s(sC)}')
        A(f's_add_u32 s29, s29, {CB}')

    def stage_wo(self):
        A = self.A
        buf, XR = 64, 128
        self.small_pre(OB)
        self.lwait(L_CR, 3, 252)
        self.poll(29, VL4, 16, ioff=C_O - CB)
        self.pstamp()
        self.small_main(16, RES, buf, XR, 16, self.DS, lambda j: (26, (j & 3) * KB, VL16), map_wo, xsig=None if 'd2early' in OPT else 4)
        self.store_tile(RES, buf, XA, STA, fast=sFG)
        self.flag(sF8, C_XA - CB)

    def stage_w1(self):
        A = self.A
        ST, K, acc, buf, XR, CS = 32, 40, 48, 64, 128, 192
        self.lwait(L_CS, 3, 252, absv=True)
        self.cs_read(4, CS, L_CS1)
        self.small_pre(XA)
        A(f's_lshl_b32 s27, {s(sT)}, 10')
        A(f's_add_u32 s27, s27, {s(sP)}')
        A(f's_add_u32 s27, s27, {STA}')
        if 'd2early' in OPT:
            self.lwait(L_CR, 4, 252)
        A.wait_all(vm=False)
        self.poll(29, VL4, 8, ioff=C_XA - CB)
        self.pstamp()

        def f():
            A = self.A
            self.stats_consume(ST, 3)
            self.rstd(VMR + 1, ST + 1)
            A(f'v_mul_f32 {v(VMR)}, {v(ST)}, {v(VMR + 1)}')
            A(f'v_mul_f32 v38, {v(VMR + 1)}, {v(VMR + 1)}')
            A(f'v_mul_f32 v38, v38, {v(ST + 1)}')
            self.rstd(38, 38)
            A(f'v_mul_f32 v38, v38, {v(VMR + 1)}')
            self.gelu_consts(K, 38)
        self.small_main(16, acc, buf, XR, 16, self.DS, lambda j: (26, (j & 3) * KB, VL16), map_w1, fill=self.rec(f), czero=True,
                        extra=lambda: self.ld_stats(ST, 27), xsig=5,
                        preread=None if 'd2early' in OPT else (lambda j: self.lwait(L_CR, 4, 252) if j == 12 else None))
        self.ln_fix(acc, 16, CS, ST)
        self.gelu(acc, 16, K, buf, buf + 16)
        A(f's_add_u32 s26, {s(sTILE)}, {H}')
        self.stores([(v(buf + 16, 4), 26, 0, VL16, 4, None), (v(buf + 20, 4), 26, KB, VL16, 4, None)], sFH)
        self.flag(sF8, C_H - CB, fast=sFH)

    def stage_w2(self):
        A = self.A
        acc, buf, XR = 48, 64, 128
        A(f's_lshl_b32 s26, {s(sT)}, 4')
        A(f'v_and_b32 v13, 15, {v(VLANE)}')
        A(f'v_add_u32 v13, s26, v13')
        A(f'v_and_b32 v38, 0x300, {v(VL16)}')
        A(f'v_mov_b32 v39, {OOB}')
        A(f's_movk_i32 s27, 2048')
        for gi, d in enumerate((-1, 1, -2, 2)):
            A(f'v_add_u32 v36, {d}, v13')
            A(f'v_cmp_gt_u32 vcc, s27, v36')
            A(f'v_lshrrev_b32 v3, 4, v36')
            A(f'v_lshl_add_u32 v3, v3, 14, v38')
            A(f'v_and_b32 v36, 15, v36')
            A(f'v_lshl_add_u32 v3, v36, 4, v3')
            A(f'v_cndmask_b32 {v(FREE + gi)}, v39, v3, vcc')
        A(f's_add_u32 s26, {s(sP)}, {H}')
        A(f'v_and_b32 v13, 2, {v(VLANE)}')
        A(f'v_add_u32 v13, -1, v13')
        A(f'v_bfe_u32 v38, {v(VLANE)}, 3, 1')
        A(f'v_mul_i32_i24 v13, v13, v38')
        A(f'v_add_u32 v13, {s(sT)}, v13')
        A(f'v_max_i32 v13, 0, v13')
        A(f'v_min_i32 v13, 0x7f, v13')
        A(f'v_and_b32 v38, 0x1c, {v(VL4)}')
        A(f'v_lshl_add_u32 v13, v13, {CSH}, v38')
        A(f's_add_u32 s29, {s(sC)}, {C_H}')
        for i in range(0, 16, 2):
            A(f'v_pk_fma_f32 {v(acc + i, 2)}, {v(RES + i, 2)}, {v(VMR, 2)}, {v(VMR, 2)} op_sel:[0,1,0] op_sel_hi:[1,1,0] neg_lo:[0,0,1] neg_hi:[0,0,1]')
        self.lwait(L_CR, 5, 252)
        self.poll(29, 13, 16)
        self.pstamp()
        self.small_main(16, acc, buf, XR, 16, self.DS, lambda j: (26, (j & 3) * KB, FREE + (j >> 2)), map_w2, xsig=6, fsig=7)
        self.store_tile(acc, buf, X1, ST1)
        for i in range(0, 16, 2):
            A(f'v_pk_add_f32 {v(RES + i, 2)}, {v(RES + i, 2)}, {v(acc + i, 2)}')
        self.flag(sF8, C_X1 - CB)

    def stage_w3(self):
        A = self.A
        NT = 7
        ST, K, acc, buf, XR, CS = 32, 40, 48, 104, 160, 224
        self.big_pre(X1, ST1)
        A(f's_add_u32 s29, s29, {C_X1}')
        A(f's_mul_i32 s30, {s(sT0)}, {56 * KB}')
        A(f's_add_u32 s30, s30, {s(sP)}')
        A(f's_add_u32 s30, s30, {G}')
        A(f's_lshl_b32 s32, {s(sCG16)}, 9')
        A(f's_add_u32 s32, s32, s30')
        A(f's_add_u32 s32, s32, {48 * KB}')
        A(f's_mul_i32 s31, {s(sCG16)}, {3 * KB}')
        A(f's_add_u32 s30, s30, s31')
        A(f's_add_u32 s31, s30, {56 * KB}')
        A(f'v_bfe_u32 v3, {v(VLANE)}, 4, 1')
        A(f'v_mul_u32_u24 v13, {56 * KB}, v3')
        A(f'v_lshrrev_b32 v3, 5, {v(VLANE)}')
        A(f'v_lshl_add_u32 v13, v3, 8, v13')
        A(f'v_and_b32 v3, 0xf0, {v(VL16)}')
        A(f'v_add_u32 v13, v13, v3')
        self.lwait(L_CR, 6, 252)
        self.poll(29, VP2, 16)
        self.pstamp()

        def f():
            for mt in range(2):
                self.stats_consume(ST + 4 * mt, 3)
                self.rstd(ST + 4 * mt + 2, ST + 4 * mt + 1)
                self.gelu_consts(K + 4 * mt, ST + 4 * mt + 2)
        self.big_main(NT, acc, buf, XR, ST, self.rec(f), map_w3, 13, 7, 8, 9)
        for mt in range(2):
            P = acc + 28 * mt
            self.ln_fix(P, 28, CS, ST + 4 * mt)
            out = 160 + 12 * mt
            self.gelu(P, 28, K + 4 * mt, buf, None)
            self.pack(out, buf, 12)
            self.pack(184 + 2 * mt, buf + 24, 2)
            lst = [(v(out + 4 * q, 4), 30 + mt, q * KB, VL16, 4, None) for q in range(3)]
            if mt == 1:
                A('v_permlane16_swap_b32 v184, v186')
                A('v_permlane16_swap_b32 v185, v187')
                lst.append((v(184, 4), 32, 0, 13, 4, None))
            self.stores(lst, sFG)
        self.flag(sF16, C_G - CB, two=True)

    def stage_w4(self, Lfinal):
        A = self.A
        buf, XR = 64, 128
        self.small_pre(G, 56)
        self.lwait(L_CR, 8, 252)
        self.poll(29, VL4, 16, ioff=C_G - CB)
        self.pstamp()

        def hook2(j, t):
            if j == 16 and t == 3:
                self.sig(L_CF, 10)
            if j == 38 and t == 3:
                self.sig(L_CF, 11)

        def preread(j):
            if j == 11:
                self.lwait(L_CR, 9, 252)
            if j == 39:
                self.lwait(L_CR, 10, 252)
        self.small_main(56, RES, buf, XR, 24, self.D4, lambda j: (26, (j & 3) * KB, VL16), map_w4,
                        hook2=hook2, preread=preread, fsig=12)
        A(f's_cmp_eq_u32 {s(sPAIR)}, 1')
        A(f's_cbranch_scc1 {Lfinal}')
        self.store_tile(RES, buf, X0, ST0, nextpair=True)
        self.flag(sF8, C_X - CB + CSTRIDE)

    def dump2(self):
        if not self.prof:
            return
        A = self.A
        A(f's_lshl_b32 s55, s2, 2')
        A(f's_add_u32 s55, s55, {s(SW)}')
        A(f's_lshl_b32 s55, s55, 1')
        A(f's_add_u32 s55, s55, {s(sPAIR)}')
        A(f's_lshl_b32 s55, s55, 8')
        A(f's_add_u32 s55, s55, {DBG + 512 * 128}')
        A(f'v_writelane_b32 v12, {s(sFAST)}, 61')
        A(f'buffer_store_dword v12, {v(VL4)}, {s(SRD, 4)}, s55 offen')

    def piece_decode(self, sp):
        A = self.A
        L3, L4, LJ = A.newlabel('pd3'), A.newlabel('pd4'), A.newlabel('pdj')
        A(f's_mov_b32 s46, 0')
        A(f's_cmp_ge_u32 {s(sp)}, 832')
        A(f's_cbranch_scc1 {L4}')
        A(f's_cmp_ge_u32 {s(sp)}, 384')
        A(f's_cbranch_scc1 {L3}')
        A(f's_lshr_b32 s28, {s(sp)}, 7')
        A(f's_and_b32 s29, {s(sp)}, 7')
        A(f's_bfe_u32 s30, {s(sp)}, 0x40003')
        A(f's_cmp_eq_u32 s28, 1')
        A(f's_cselect_b64 {s(SRD2, 2)}, {s(PA + 10, 2)}, {s(PA + 12, 2)}')
        A(f's_cmp_eq_u32 s28, 0')
        A(f's_cselect_b64 {s(SRD2, 2)}, {s(PA + 6, 2)}, {s(SRD2, 2)}')
        A(f's_mov_b32 {s(SRD2 + 2)}, {512 * KB}')
        A(f's_mov_b32 s41, 1024')
        A(f's_lshl_b32 s47, s28, 3')
        A(f's_add_u32 s47, s47, s29')
        A(f's_lshl_b32 s42, s47, 4')
        A(f's_add_u32 s42, s42, s30')
        A(f's_lshl_b32 s42, s42, 12')
        A(f's_add_u32 s42, s42, {WO}')
        for t in range(1, 4):
            A(f's_add_u32 {s(42 + t)}, s42, {t * KB}')
        A(f's_branch {LJ}')
        A.label(L3)
        A(f's_sub_u32 s28, {s(sp)}, 384')
        A(f's_and_b32 s30, s28, 15')
        A(f's_lshr_b32 s29, s28, 4')
        A(f's_mov_b64 {s(SRD2, 2)}, {s(PA + 14, 2)}')
        A(f's_mov_b32 {s(SRD2 + 2)}, {1792 * KB}')
        A(f's_mov_b32 s41, 3584')
        A(f's_add_u32 s47, s29, 24')
        A(f's_mul_i32 s31, s30, {7 * KB}')
        A(f's_add_u32 s31, s31, {W3}')
        for t in range(4):
            A(f's_lshl_b32 s28, s29, 2')
            A(f's_add_u32 s28, s28, {t}')
            A(f's_mul_i32 s32, s28, 43')
            A(f's_lshr_b32 s32, s32, 8')
            A(f's_mul_i32 s33, s32, 6')
            A(f's_sub_u32 s33, s28, s33')
            A(f's_sub_u32 s36, s28, 96')
            A(f's_cmp_ge_u32 s28, 96')
            A(f's_cselect_b32 s32, s36, s32')
            A(f's_cselect_b32 s33, 6, s33')
            A(f's_mul_i32 s32, s32, 112')
            A(f's_add_u32 s32, s32, s33')
            A(f's_lshl_b32 s32, s32, 10')
            A(f's_add_u32 {s(42 + t)}, s32, s31')
        A(f's_branch {LJ}')
        A.label(L4)
        A(f's_sub_u32 s28, {s(sp)}, 832')
        A(f's_and_b32 s29, s28, 7')
        A(f's_lshr_b32 s30, s28, 3')
        A(f's_mov_b64 {s(SRD2, 2)}, {s(PA + 16, 2)}')
        A(f's_mov_b32 {s(SRD2 + 2)}, {1792 * KB}')
        A(f's_mov_b32 s41, 1024')
        A(f's_add_u32 s47, s29, 52')
        A(f's_cmp_ge_u32 s30, 48')
        A(f's_cselect_b32 s46, 1, 0')
        A(f's_mul_i32 s42, s29, 56')
        A(f's_add_u32 s42, s42, s30')
        A(f's_lshl_b32 s42, s42, 12')
        A(f's_add_u32 s42, s42, {W4}')
        for t in range(1, 4):
            A(f's_add_u32 {s(42 + t)}, s42, {t * KB}')
        A.label(LJ)
        A(f's_mul_i32 s40, s30, s41')
        A(f's_lshl_b32 s40, s40, 5')
        A(f's_lshl_b32 s29, s29, 7')
        A(f's_add_u32 s40, s40, s29')
        A(f's_lshl_b32 s47, s47, 7')
        A(f's_add_u32 s47, s47, {PC}')
        A(f'v_lshrrev_b32 v40, 3, {v(VLANE)}')
        A(f'v_mul_u32_u24 v40, s41, v40')
        A(f'v_lshrrev_b32 v41, 1, {v(VLANE)}')
        A(f'v_lshrrev_b32 v42, 4, {v(VLANE)}')
        A(f'v_xor_b32 v41, v41, v42')
        A(f'v_and_b32 v41, 3, v41')
        A(f'v_lshl_add_u32 v40, v41, 5, v40')
        A(f'v_and_b32 v41, 1, {v(VLANE)}')
        A(f'v_lshl_add_u32 v40, v41, 4, v40')
        A(f's_lshl_b32 s41, s41, 3')
        for i in range(4):
            A(f's_add_u32 m0, s39, {i * KB}')
            self.dma(40, 0, voff=40, srd=SRD2)
            if i < 3:
                A(f's_add_u32 s40, s40, s41')
        return A.vmark()

    def piece_finish(self):
        A = self.A
        A(f's_cmp_eq_u32 s46, 1')
        A(f's_cselect_b32 s28, 8, 4')
        A(f's_cselect_b32 s29, 4, 16')
        A(f'v_lshrrev_b32 v41, 4, {v(VLANE)}')
        A(f'v_mul_u32_u24 v41, s28, v41')
        A(f'v_bfe_u32 v42, {v(VLANE)}, 2, 2')
        A(f'v_add_u32 v41, v41, v42')
        A(f'v_and_b32 v42, 3, {v(VLANE)}')
        A(f'v_lshlrev_b32 v42, 3, v42')
        A(f'v_add_u32 v42, s39, v42')
        for u in range(2):
            if u:
                A(f'v_add_u32 v41, s29, v41')
            A(f'v_bfe_u32 v43, v41, 1, 2')
            A(f'v_lshl_add_u32 v43, v43, 5, v42')
            A(f'v_lshl_add_u32 v43, v41, 7, v43')
            for t in range(4):
                A(f'v_xor_b32 v44, {32 * t}, v43')
                A(f'ds_read_b64_tr_b16 {v(48 + 4 * t + 2 * u, 2)}, v44')
        A.wait_all(vm=False)
        for t in range(4):
            A(f'buffer_store_dwordx4 {v(48 + 4 * t, 4)}, {v(VL16)}, {s(SRD, 4)}, {s(42 + t)} offen sc1')

    def count(self, sreg):
        A = self.A
        A('s_mov_b64 exec, 1')
        A(f'buffer_atomic_add {v(VONE)}, {v(VL4)}, {s(SRD, 4)}, {s(sreg)} offen')
        A('s_mov_b64 exec, -1')

    def cs_add(self, accs, addr):
        A = self.A
        A('s_mov_b32 exec_lo, 0x00010001')
        A('s_mov_b32 exec_hi, 0x00010001')
        for r, a_, off in accs:
            for i in range(4):
                A(f'ds_add_f32 {v(a_)}, {v(r + i)} offset:{off + 4 * i}')
                if A.lg - A.lg_done >= 14:
                    A.wait(lg=A.lmark() - 4)
        A('s_mov_b64 exec, -1')

    def loader(self):
        A = self.A
        sLW = 26
        ONES = 16
        A(f's_sub_u32 {s(sLW)}, {s(SW)}, 4')
        self.nstamp = 0
        if self.prof:
            A('v_mov_b32 v12, 0')
            A('s_memrealtime s[60:61]')
            A('s_waitcnt lgkmcnt(0)')
            A('v_writelane_b32 v12, s60, 63')
        self.pstamp()
        A(f's_mov_b64 {s(SRD2, 2)}, {s(PA + 4, 2)}')
        A(f's_mov_b32 {s(SRD2 + 2)}, {32 * 512}')
        A(f's_lshl_b32 s28, {s(sCG16)}, 10')
        A(f's_mov_b32 m0, {PHL}')
        self.dma(28, srd=SRD2)
        A(f's_mov_b64 {s(SRD2, 2)}, {s(PA + 2, 2)}')
        A(f's_mov_b32 {s(SRD2 + 2)}, {512 * 3072}')
        A(f'v_lshrrev_b32 v40, 2, {v(VLANE)}')
        A(f'v_mul_u32_u24 v40, 3072, v40')
        A(f'v_lshrrev_b32 v41, 4, {v(VLANE)}')
        A(f'v_xor_b32 v41, v41, {v(VLANE)}')
        A(f'v_and_b32 v41, 3, v41')
        A(f'v_lshl_add_u32 v40, v41, 4, v40')
        A(f's_mul_i32 s28, {s(sLW)}, {32 * 3072}')
        A(f's_lshl_b32 s29, {s(sCG16)}, 6')
        A(f's_add_u32 s28, s28, s29')
        A(f's_mul_i32 s38, {s(sLW)}, {6 * KB}')
        mw = []
        A('v_mov_b32 v47, v40')
        A('s_mov_b32 s59, s28')

        def wdma(c):
            for hr in range(2):
                for p in range(3):
                    A(f's_add_u32 m0, s38, {c * 24 * KB + p * 2 * KB + hr * KB - p * KB}')
                    A(f's_add_u32 s29, s59, {(c * 128 + hr * 16) * 3072}')
                    self.dma(29, p * KB, voff=47, srd=SRD2)
            mw.append(A.vmark())
        NPRE = self.NPRE
        for c in range(NPRE):
            wdma(c)
        A.wait_all(vm=False)
        self.pstamp()
        for i in range(4):
            A(f'v_mov_b32 {v(ONES + i)}, 0x3f803f80')
        A(f'v_mov_b32 {v(VONE)}, 1')
        A(f'v_and_b32 v32, 15, {v(VLANE)}')
        A(f'v_lshrrev_b32 v33, 4, {v(VLANE)}')
        A(f'v_lshrrev_b32 v34, 2, v32')
        A(f'v_lshrrev_b32 v35, 1, v33')
        A(f'v_xor_b32 v35, v35, v34')
        A(f'v_lshlrev_b32 v35, 4, v35')
        A(f'v_lshl_add_u32 v35, v32, 6, v35')
        A(f'v_and_b32 v36, 1, v33')
        A(f'v_lshl_add_u32 v35, v36, 3, v35')
        A(f'v_add_u32 v35, s38, v35')
        A(f'v_xor_b32 v36, 32, v35')
        A(f'v_bfe_u32 v37, {v(VLANE)}, 1, 1')
        A(f'v_xor_b32 v37, v37, v33')
        A(f'v_lshlrev_b32 v37, 4, v37')
        A(f'v_lshrrev_b32 v38, 2, {v(VLANE)}')
        A(f'v_lshl_add_u32 v37, v38, 6, v37')
        A(f'v_and_b32 v38, 1, {v(VLANE)}')
        A(f'v_lshl_add_u32 v37, v38, 3, v37')
        A(f'v_add_u32 v37, s38, v37')
        A(f'v_xor_b32 v38, 32, v37')
        A(f'v_lshlrev_b32 v39, 10, v34')
        A(f'v_lshl_add_u32 v39, v33, 8, v39')
        A(f'v_and_b32 v34, 3, v32')
        A(f'v_lshl_add_u32 v39, v34, 4, v39')
        A(f'v_add_u32 v39, s38, v39')
        A(f'v_add_u32 v45, s38, {v(VL16)}')
        A(f'v_lshlrev_b32 v46, 3, {v(VLANE)}')
        A(f'v_add_u32 v46, {PHL}, v46')
        A(f'v_lshlrev_b32 v30, 6, v33')
        A(f'v_add_u32 v30, {L_CSQ}, v30')
        A(f'v_lshlrev_b32 v31, 4, v33')
        A(f'v_add_u32 v31, {PERM}, v31')
        F, C, CSA = 80, 104, 136
        for r in (35, 36, 37, 38):
            A(f'v_add_u32 {v(r + 29)}, {48 * KB}, {v(r)}')

        def reads(c):
            R = 160 + 24 * c
            o = (c & 1) * 24 * KB
            ab = 35 if c < 2 else 64
            A.wait(vm=mw[c])
            if c == 0:
                A(f'ds_read_b64_tr_b16 v[20:21], v46')
                A(f'ds_read_b64_tr_b16 v[22:23], v46 offset:512')
            for hd in range(4):
                for u in range(2):
                    A(f'ds_read_b64 {v(R + 4 * hd + 2 * u, 2)}, {v(ab + (hd & 1))} offset:{o + (hd >> 1) * 2 * KB + u * KB}')
            for hh in range(2):
                for u in range(2):
                    A(f'ds_read_b64_tr_b16 {v(R + 16 + 4 * hh + 2 * u, 2)}, {v(ab + 2 + hh)} offset:{o + 4 * KB + u * KB}')
            return A.lmark()
        rm = reads(0)
        for c in range(4):
            R = 160 + 24 * c
            o = (c & 1) * 24 * KB
            A.wait(lg=rm)
            for hd in range(4):
                for u in range(2):
                    A(f'v_mfma_f32_16x16x16_bf16 {v(C + 8 * hd + 4 * u, 4)}, {v(R + 4 * hd + 2 * u, 2)}, {v(20 + 2 * (hd & 1), 2)}, 0')
            if c == 2:
                for r in (39, 45):
                    A(f'v_add_u32 {v(r)}, {48 * KB}, {v(r)}')
            for hh in range(2):
                A(f'ds_write_b128 v45, {v(R + 16 + 4 * hh, 4)} offset:{o + (4 + hh) * KB}')
            if c < 3 and NPRE >= 3:
                rm = reads(c + 1)
            for hd in range(4):
                self.pack(R + 4 * hd, C + 8 * hd, 4)
                A(f'ds_write_b128 v39, {v(R + 4 * hd, 4)} offset:{o + hd * 64}')
            if c + NPRE < 4:
                wdma(c + NPRE)
            if c + NPRE == 4:
                A(f's_lshl_b32 s39, {s(sLW)}, 12')
                A(f's_add_u32 s39, s39, {PST}')
                A(f's_lshl_b32 s49, s2, 2')
                A(f's_add_u32 s49, s49, {s(sLW)}')
                m_p1 = self.piece_decode(49)
            if c < 3 and NPRE < 3:
                rm = reads(c + 1)
        self.sig(L_CR, 2)
        A.wait_all(vm=False)
        self.pstamp()
        for c in range(4):
            for t in range(6):
                A(f'v_mfma_f32_16x16x32_bf16 {v(CSA + 4 * t, 4)}, {v(160 + 24 * c + 4 * t, 4)}, {v(ONES, 4)}, {"0" if c == 0 else v(CSA + 4 * t, 4)}')
        self.cs_add([(CSA + 4 * hd, 30, hd * 16) for hd in range(4)] + [(CSA + 16 + 4 * hh, 31, (4 + hh) * 64) for hh in range(2)], None)
        self.sig(L_CS, 1, absv=True)
        A.wait_all(vm=False)
        self.pstamp()
        bases = {}
        for r, (nm, WP, scg, sz) in enumerate((('q', WQKV, sCG16, 96), ('o', WO, sCG8, 64), ('1', W1, sCG8, 64), ('2', W2, sCG8, 64),
                                               ('3', W3, sCG16, 112), ('4', W4, sCG8, 224))):
            A(f's_mul_i32 {s(52 + r)}, {s(scg)}, {sz * KB}')
            A(f's_add_u32 {s(52 + r)}, {s(52 + r)}, {WP}')
            bases[nm] = 52 + r
        Lq = A.newlabel('nq')
        A.wait_all(vm=False)
        A(f's_and_b32 s28, {s(sT0)}, 3')
        A(f's_cmp_lg_u32 s28, {s(sLW)}')
        A(f's_cbranch_scc1 {Lq}')
        A(f's_mul_i32 s28, {s(sT0)}, {6 * KB}')
        A(f'v_add_u32 v45, s28, {v(VL16)}')
        A(f's_add_u32 s28, s28, s52')
        A(f's_add_u32 s29, s28, 4096')
        for t in range(6):
            A(f'ds_read_b128 {v(F + 4 * t, 4)}, v45 offset:{t * KB}')
        A.wait_all(vm=False)
        vm0 = A.vm
        for t in range(6):
            A(f'buffer_store_dwordx4 {v(F + 4 * t, 4)}, {v(VL16)}, {s(SRD, 4)}, {s(28 + (t >> 2))} offen offset:{(t & 3) * KB} sc1')
        A.vm = vm0
        A.label(Lq)
        A('s_waitcnt vmcnt(6)')
        A(f's_cbranch_scc0 {Lq}b')
        A('s_waitcnt vmcnt(0)')
        A.label(Lq + 'b')
        A.vm_done = A.vm
        self.piece_finish()
        self.pstamp()
        Ln = A.newlabel('nochk')
        A(f's_cmp_lg_u32 {s(sLW)}, 0')
        A(f's_cbranch_scc1 {Ln}')
        A('s_getreg_b32 s30, hwreg(HW_REG_XCC_ID)')
        A('s_and_b32 s30, s30, 15')
        A('s_mul_i32 s31, s30, s30')
        A('s_lshl_b32 s31, s31, 16')
        A('s_lshl_b32 s30, s30, 7')
        A('s_add_u32 s30, s30, s31')
        A('s_add_u32 s58, s30, 1')
        A('s_mov_b32 s31, 0')
        self.poll(31, VL4, 8, target=32, mode='load', srd=SRDD, mask=0x7f)
        A('s_and_b32 s31, s2, 7')
        A('v_readlane_b32 s30, v3, s31')
        A('s_lshl_b32 s31, s58, 5')
        A('s_cmp_eq_u32 s30, s31')
        A(f's_cselect_b32 s33, {1 if "slow" in OPT else 2}, 1')
        A('v_mov_b32 v3, s33')
        A(f'ds_write_b32 {v(VPERM)}, v3 offset:{L_MODE - L_CF}')
        A.wait_all(vm=False)
        A.label(Ln)
        self.lwait(L_MODE, 1, 24, sleep=2, single=True)
        self.pstamp()
        A('s_waitcnt vmcnt(0)')
        self.pstamp()
        A.vm_done = A.vm
        self.count(47)
        L2 = A.newlabel('ncq')
        A(f's_and_b32 s28, {s(sT0)}, 3')
        A(f's_cmp_lg_u32 s28, {s(sLW)}')
        A(f's_cbranch_scc1 {L2}')
        A(f's_lshl_b32 s28, {s(sCG16)}, 7')
        A(f's_add_u32 s28, s28, {PC + 60 * 128}')
        self.count(28)
        A.label(L2)
        L2 = A.newlabel('np2')
        A('s_cmp_lt_u32 s2, 192')
        A(f's_cbranch_scc1 {L2}')
        A(f's_add_u32 s49, s49, 256')
        self.piece_decode(49)
        A.wait_all()
        self.piece_finish()
        A.wait_all()
        self.count(47)
        A.label(L2)
        self.sig(L_CS, 2, absv=True)
        self.lwait(L_CS, 2, 24, sleep=1, absv=True)
        A('s_lshr_b32 s34, s2, 3')
        A('s_lshl_b32 s34, s34, 2')
        A(f's_add_u32 s34, s34, {s(sLW)}')
        A(f'v_lshlrev_b32 v21, 7, {v(VLANE)}')
        A(f's_lshl_b32 s37, {s(sLW)}, 10')
        L, L3 = A.newlabel('lloop'), A.newlabel('lb3')
        A(f's_branch {L3}')
        A.label(L)

        def run(nm, src0, lds0, n):
            for i in range(0, n, 4):
                if i + 4 <= n:
                    A(f's_add_u32 m0, s37, {lds0 + i * KB}')
                    A(f's_add_u32 s28, s37, {src0 + i * KB}')
                else:
                    A(f's_min_u32 s28, s37, {(n - 1 - i) * KB}')
                    A(f's_add_u32 m0, s28, {lds0 + i * KB}')
                    A(f's_add_u32 s28, s28, {src0 + i * KB}')
                A(f's_add_u32 s28, s28, {s(bases[nm])}')
                self.dma(28)

        def steps(nm, lmap, NT, j0, j1):
            j = j0
            while j < j1:
                e = j + 1
                while e < j1 and lmap(e) == lmap(e - 1) + NT * KB:
                    e += 1
                run(nm, j * NT * KB, lmap(j), (e - j) * NT)
                j = e

        def only(pair, fn):
            Lx = A.newlabel('only')
            A.wait_all(vm=False)
            A(f's_cmp_lg_u32 {s(sPAIR)}, {pair}')
            A(f's_cbranch_scc1 {Lx}')
            vmd = A.vm_done
            fn()
            A.wait_all(vm=False)
            A.vm_done = vmd
            A.label(Lx)

        def touch(base, size):
            share = size // 128
            A(f's_mul_i32 s33, s34, {share}')
            A(f's_add_u32 s33, s33, {base}')
            vm0 = A.vm
            for i in range((share + 8191) // 8192):
                A(f'buffer_load_dword v20, v21, {s(SRD, 4)}, s33 offen')
                A(f's_add_u32 s33, s33, 8192')
            A.vm = vm0

        PK_ = 28

        def pfl(base, size, trig):
            self.lwait(L_PS, trig, 24, sleep=2)
            share = size // 128
            lines = share // 128
            A(f's_mul_i32 s33, s34, {share}')
            A(f's_add_u32 s33, s33, {base}')
            A(f's_mov_b64 exec, {(1 << PK_) - 1:#x}')
            A(f's_mov_b32 s36, {(lines + PK_ - 1) // PK_}')
            Lp_ = A.newlabel('pf')
            A.label(Lp_)
            A(f'buffer_load_dword v20, v21, {s(SRD, 4)}, s33 offen')
            A(f's_add_u32 s33, s33, {PK_ * 128}')
            A('s_sub_u32 s36, s36, 1')
            A('s_cmp_lg_u32 s36, 0')
            A('s_waitcnt vmcnt(0)')
            A(f's_cbranch_scc1 {Lp_}')
            A('s_mov_b64 exec, -1')

        def need(idx0, scg, n, stride, target):
            A(f's_lshl_b32 s33, {s(scg)}, 7')
            A(f's_add_u32 s33, s33, {PC + idx0 * 128}')
            A(f'v_mul_u32_u24 v23, {stride}, v21')
            self.poll(33, 23, n, target=target, mode='load')

        def need3():
            A(f's_mul_i32 s33, {s(sCG16)}, 6')
            A(f's_lshr_b32 s33, s33, 2')
            A(f'v_add_u32 v23, s33, {v(VLANE)}')
            A(f's_lshr_b32 s33, {s(sCG16)}, 2')
            A(f's_add_u32 s33, s33, 24')
            A(f'v_writelane_b32 v23, s33, 2')
            A(f'v_lshlrev_b32 v23, 7, v23')
            A(f's_mov_b32 s33, {PC + 24 * 128}')
            self.poll(33, 23, 3, target=16, mode='load')

        def cs_build(k, lmap, NT, loc, val):
            self.lwait(L_CR, k, 24, sleep=1)
            st = NT * KB
            A(f's_mul_i32 s28, {s(sLW)}, {st}')
            base = min(lmap(j) for j in range(16))
            assert sorted(lmap(j) for j in range(16)) == [base + j * st for j in range(16)]
            A(f's_add_u32 s28, s28, {base}')
            A(f'v_add_u32 v45, s28, {v(VL16)}')
            for c in range(4):
                for t in range(NT):
                    A(f'ds_read_b128 {v(64 + 4 * t, 4)}, v45 offset:{(c & 1) * 4 * st + t * KB}')
                A.wait_all(vm=False)
                for t in range(NT):
                    A(f'v_mfma_f32_16x16x32_bf16 {v(CSA + 4 * t, 4)}, {v(64 + 4 * t, 4)}, {v(ONES, 4)}, {"0" if c == 0 else v(CSA + 4 * t, 4)}')
                if c == 1:
                    A(f'v_add_u32 v45, {8 * st}, v45')
            self.cs_add([(CSA + 4 * t, 31, loc - PERM + t * 64) for t in range(NT)], None)
            self.sig(L_CS, val, absv=True)

        def batch(k, parts, after=None):
            self.lwait(L_CF, k, 24, sleep=2)
            for p in parts:
                steps(*p)
            m = A.vmark()
            if after:
                after()
            A.wait(vm=m)
            self.sig(L_CR, k)
        A.vm_done = A.vm
        need(60, sCG16, 1, 0, 16)
        batch(1, [('q', map_q, 6, 0, 14)])
        batch(2, [('q', map_q, 6, 14, 16)])
        A.wait_all(vm=False)
        A.label(L3)
        def ldump():
            need(0, sCG8, 3, 8, 16)
            if self.prof:
                self.pstamp()
                A(f's_lshl_b32 s33, s2, 2')
                A(f's_add_u32 s33, s33, {s(sLW)}')
                A(f's_lshl_b32 s33, s33, 8')
                A(f's_add_u32 s33, s33, {DBG + 1024 * KB}')
                A(f'buffer_store_dword v12, {v(VL4)}, {s(SRD, 4)}, s33 offen')
        only(0, ldump)
        batch(3, [('o', map_wo, 4, 0, 16), ('1', map_w1, 4, 0, 12)])
        only(1, lambda: touch(W3, 1024 * KB))
        batch(4, [('1', map_w1, 4, 12, 16), ('2', map_w2, 4, 0, 7)])
        only(0, lambda: (cs_build(4, map_w1, 4, L_CS1, 3), A.wait_all(vm=False), need3()))
        batch(5, [('2', map_w2, 4, 7, 16), ('3', map_w3, 7, 0, 3)])
        batch(6, [('3', map_w3, 7, 3, 13)])
        batch(7, [('3', map_w3, 7, 13, 16)])
        only(0, lambda: (cs_build(7, map_w3, 7, L_CS3, 4), A.wait_all(vm=False), need(52, sCG8, 1, 0, 56)))
        only(1, lambda: pfl(W4, 1792 * KB, 2))
        batch(8, [('4', map_w4, 4, 0, 11)])
        batch(9, [('4', map_w4, 4, 11, 39)])
        batch(10, [('4', map_w4, 4, 39, 56)])
        A.wait_all()
        A(f's_add_u32 {s(sEV)}, {s(sEV)}, 10')
        A(f's_add_u32 {s(sPAIR)}, {s(sPAIR)}, 1')
        A(f's_cmp_lt_u32 {s(sPAIR)}, 2')
        A(f's_cbranch_scc1 {L}')
        A('s_endpgm')

    def main(self):
        A = self.A
        name = NAME + '_kernel'
        A.reset_kernel()
        A.raw('.p2align 8')
        A.raw(f'.globl {name}')
        A.raw(f'.type {name},@function')
        A.label(name)
        self.exit = A.newlabel('exit')
        A('s_cmp_ge_u32 s2, 256')
        A(f's_cbranch_scc1 {self.exit}')
        A(f's_load_dwordx16 {s(PA, 16)}, s[0:1], 0')
        A(f's_load_dwordx8 {s(PA + 16, 8)}, s[0:1], 64')
        if self.prof or 'dbgt' in OPT:
            A('s_memrealtime s[62:63]')
        Lpc = A.newlabel('pc')
        A('s_getpc_b64 s[40:41]')
        A.label(Lpc)
        A('v_lshlrev_b32 v3, 7, v0')
        A(f'v_min_u32 v3, code_end-{Lpc}-4, v3')
        A('global_load_dword v13, v3, s[40:41]')
        A(f'v_and_b32 {v(VLANE)}, 63, v0')
        A(f'v_lshrrev_b32 v3, 6, v0')
        A(f'v_lshlrev_b32 {v(VL16)}, 4, {v(VLANE)}')
        A(f'v_readfirstlane_b32 {s(SW)}, v3')
        A(f's_mov_b32 {s(SRD + 2)}, {WS_USED}')
        A(f's_mov_b32 {s(SRD + 3)}, 0x00020000')
        A(f's_mov_b32 {s(SRD2 + 3)}, 0x00020000')
        A(f's_mov_b32 {s(SRDD + 2)}, 256')
        A(f's_mov_b32 {s(SRDD + 3)}, 0x00020000')
        self.tile64(sT, sCG8)
        self.tile128(sT0, sCG16)
        A(f's_mov_b32 {s(sPAIR)}, 0')
        A(f's_mov_b32 {s(sTO)}, 0x40000')
        A(f'v_lshlrev_b32 {v(VL4)}, 2, {v(VLANE)}')
        A(f's_mov_b32 {s(sEV)}, 0')
        A(f'v_mov_b32 {v(VPERM)}, {L_CF}')
        A(f's_and_b32 s26, {s(SW)}, 3')
        A(f's_lshl_b32 s26, s26, 2')
        A(f'v_add_u32 {v(VOWN)}, s26, {v(VPERM)}')
        A(f'v_cmp_gt_u32 vcc, 4, {v(VLANE)}')
        A(f'v_cndmask_b32 v3, 0, 2, vcc')
        A(f'v_add_u32 v10, {v(VL4)}, {v(VPERM)}')
        A(f'ds_write_b32 v10, v3')
        A(f'v_lshlrev_b32 v10, 2, v0')
        A(f'v_add_u32 v10, {PERM}, v10')
        A(f'v_mov_b32 v11, 0')
        A(f'ds_write_b32 v10, v11')
        LC = A.newlabel('compute')
        A('s_waitcnt lgkmcnt(0)')
        A.lg_done = A.lg
        A(f's_mov_b64 {s(SRD, 2)}, {s(PA + 22, 2)}')
        A(f's_mov_b64 {s(SRDD, 2)}, {s(PA + 20, 2)}')
        if 'wpf' in OPT:
            A('s_lshr_b32 s26, s2, 3')
            A('s_lshl_b32 s27, s2, 2')
            A('s_add_u32 s26, s26, s27')
            A('s_and_b32 s26, s26, 31')
            A('s_lshl_b32 s26, s26, 3')
            A(f's_add_u32 s26, s26, {s(SW)}')
            A(f's_mul_i32 s26, s26, 6144')
            A(f's_mov_b64 {s(SRD2, 2)}, {s(PA + 2, 2)}')
            A(f's_mov_b32 {s(SRD2 + 2)}, {512 * 3072}')
            A(f'v_lshlrev_b32 v10, 7, {v(VLANE)}')
            A('s_mov_b32 exec_hi, 0xffff')
            A(f'buffer_load_dword v13, v10, {s(SRD2, 4)}, s26 offen')
            A('s_mov_b32 exec_hi, -1')
        A(f's_cmp_lt_u32 {s(SW)}, 4')
        A('s_barrier')
        A(f's_cbranch_scc1 {LC}')
        self.loader()
        A.label(LC)
        A.flush_hazards()
        A.vm = A.vm_done = A.lg = A.lg_done = 0
        A('s_setprio 3')
        A(f's_lshl_b32 {s(sT0)}, {s(sT0)}, 3')
        A(f's_lshl_b32 s26, {s(SW)}, 1')
        A(f's_add_u32 {s(sT0)}, {s(sT0)}, s26')
        Lz = A.newlabel('nz')
        A(f's_cmp_lg_u32 {s(SW)}, 3')
        A(f's_cbranch_scc1 {Lz}')
        for i in range(4):
            A(f'v_mov_b32 {v(28 + i)}, 0')
        A(f's_lshl_b32 s28, s2, 11')
        A(f's_add_u32 s28, s28, {ZR}')
        A(f'buffer_store_dwordx4 v[28:31], {v(VL16)}, {s(SRD, 4)}, s28 offen sc1')
        A(f'buffer_store_dwordx4 v[28:31], {v(VL16)}, {s(SRD, 4)}, s28 offen offset:1024 sc1')
        A.label(Lz)
        A.vm_done = A.vm
        A('s_nop 0')
        A(f's_mov_b64 {s(SRD2, 2)}, {s(PA, 2)}')
        A(f's_mov_b32 {s(SRD2 + 2)}, {2048 * 512 * 2}')
        A(f'v_lshrrev_b32 v3, 4, {v(VLANE)}')
        A(f'v_and_b32 v10, 0xf0, {v(VL16)}')
        A(f'v_lshl_add_u32 v10, v3, 10, v10')
        A(f's_lshl_b32 s26, {s(sT0)}, 14')
        for i in range(1, 8):
            A(f's_add_u32 {s(26 + i)}, s26, {i * 4096}')
        PB = [32, 224, 160, 192]
        self.x0m = []
        for q4 in range(4):
            for mt in range(2):
                for n in range(4):
                    self.ld(v(PB[q4] + 16 * mt + 4 * n, 4), 26 + 4 * mt + n, 256 * q4, voff=10, srd=SRD2)
                self.x0m.append(A.vmark())
        A(f's_mov_b32 {s(sP)}, 0')
        A(f's_mov_b32 {s(sZ)}, 0')
        A(f's_mov_b32 {s(sC)}, 0')
        A(f's_mov_b32 {s(sFAST)}, 0')
        A(f's_mov_b32 {s(sFH)}, 0')
        A(f's_mov_b32 {s(sFG)}, 0')
        A(f's_lshl_b32 {s(sT)}, {s(sT)}, 2')
        A(f's_add_u32 {s(sT)}, {s(sT)}, {s(SW)}')
        A(f's_lshl_b32 {s(sTILE)}, {s(sT)}, 14')
        A(f's_lshl_b32 s26, {s(sCG8)}, 11')
        A(f's_add_u32 {s(sTILE)}, {s(sTILE)}, s26')
        A(f's_lshl_b32 {s(sSTP)}, {s(sT)}, 10')
        A(f's_lshl_b32 s26, {s(sCG8)}, 7')
        A(f's_add_u32 {s(sSTP)}, {s(sSTP)}, s26')
        for f, t, c in ((sF8, sT, sCG8), (sF16, sT0, sCG16)):
            A(f's_lshl_b32 {s(f)}, {s(t)}, {CSH}')
            A(f's_lshl_b32 s26, {s(c)}, 2')
            A(f's_add_u32 {s(f)}, {s(f)}, s26')
            A(f's_add_u32 {s(f)}, {s(f)}, {CB}')
        A(f'v_add_u32 {v(VB64)}, 0x10000, {v(VL16)}')
        A(f'v_add_u32 {v(VB128)}, 0x20000, {v(VL16)}')
        A(f'v_and_b32 {v(VSTL)}, 0x300, {v(VL16)}')
        A(f'v_and_b32 v3, 15, {v(VLANE)}')
        A(f'v_lshl_add_u32 {v(VSTL)}, v3, 3, {v(VSTL)}')
        A(f'v_mov_b32 {v(VONE)}, 1')
        A(f'v_lshrrev_b32 {v(VP2)}, 3, {v(VLANE)}')
        A(f'v_and_b32 v3, 0x1c, {v(VL4)}')
        A(f'v_lshl_add_u32 {v(VP2)}, {v(VP2)}, {CSH}, v3')
        A('v_mov_b32 v12, 0')
        if self.prof:
            A('v_writelane_b32 v12, s62, 60')
        A.wait(vm=self.x0m[0])
        A('s_getreg_b32 s30, hwreg(HW_REG_XCC_ID)')
        A('s_and_b32 s30, s30, 15')
        A('s_mul_i32 s31, s30, s30')
        A('s_lshl_b32 s31, s31, 16')
        A('s_lshl_b32 s30, s30, 7')
        A('s_add_u32 s30, s30, s31')
        A('s_add_u32 s58, s30, 1')
        A('v_mov_b32 v3, s58')
        A('s_and_b32 s31, s2, 7')
        A('s_lshl_b32 s31, s31, 2')
        A(f's_cmp_eq_u32 {s(SW)}, 3')
        A('s_cselect_b32 s31, s31, 0x1000')
        A('s_mov_b64 exec, 1')
        A(f'buffer_atomic_add v3, {v(VL4)}, {s(SRDD, 4)}, s31 offen')
        A('s_mov_b64 exec, -1')
        self.Lp = A.newlabel('pair')
        Lfinal = A.newlabel('final')
        self.stage_qkv()
        self.stage_wo()
        self.stage_w1()
        self.stage_w2()
        self.stage_w3()
        self.stage_w4(Lfinal)
        self.dump2()
        if 'dbgt' in OPT:
            A('s_memrealtime s[60:61]')
            A('s_waitcnt lgkmcnt(0)')
            A('s_mov_b32 s94, s60')
        A(f's_mov_b32 {s(sPAIR)}, 1')
        A(f's_mov_b32 {s(sEV)}, 10')
        A(f's_mov_b32 {s(sFG)}, {s(sFAST)}')
        A(f's_mov_b32 {s(sZ)}, {ZSTRIDE}')
        A(f's_mov_b32 {s(sC)}, {CSTRIDE}')
        A(f's_add_u32 {s(sF8)}, {s(sF8)}, {CSTRIDE}')
        A(f's_add_u32 {s(sF16)}, {s(sF16)}, {CSTRIDE}')
        A(f's_branch {self.Lp}')
        A.label(Lfinal)
        buf = 64
        A(f's_mov_b64 {s(SRD2, 2)}, {s(PA + 18, 2)}')
        A(f'v_and_b32 v13, 15, {v(VLANE)}')
        A(f'v_lshlrev_b32 v13, 10, v13')
        A(f'v_bfe_u32 v3, {v(VLANE)}, 4, 1')
        A(f'v_lshl_add_u32 v13, v3, 5, v13')
        A(f'v_lshrrev_b32 v3, 5, {v(VLANE)}')
        A(f'v_lshl_add_u32 v13, v3, 4, v13')
        A(f's_lshl_b32 s28, {s(sT)}, 14')
        A(f's_lshl_b32 s29, {s(sCG8)}, 7')
        A(f's_add_u32 s28, s28, s29')
        self.pack(buf, RES, 8)
        for q in range(2):
            b = buf + 4 * q
            A(f'v_permlane16_swap_b32 {v(b)}, {v(b + 2)}')
            A(f'v_permlane16_swap_b32 {v(b + 1)}, {v(b + 3)}')
        for q in range(2):
            self.st(v(buf + 4 * q, 4), 28, 64 * q, voff=13, srd=SRD2)
        if 'dbgt' in OPT:
            A('s_not_b32 s62, s62')
            A('v_mov_b32 v12, s62')
            A('s_mov_b64 exec, 1')
            A(f'buffer_atomic_umax v12, {v(VL4)}, {s(SRDD, 4)}, 0 offen offset:32')
            A('s_mov_b64 exec, -1')
        self.dbgt(9)
        for i_, r_ in enumerate((92, 93, 94)):
            if 'dbgt' in OPT:
                A(f'v_mov_b32 v12, {s(r_)}')
                A('s_mov_b64 exec, 1')
                A(f'buffer_atomic_umax v12, {v(VL4)}, {s(SRDD, 4)}, 0 offen offset:{40 + 4 * i_}')
                A('s_mov_b64 exec, -1')
        if self.prof:
            A('s_memrealtime s[60:61]')
            A('s_waitcnt lgkmcnt(0)')
            A('v_writelane_b32 v12, s60, 62')
        self.dump2()
        A.label(self.exit)
        A('s_endpgm')
        A.label('code_end')
        self.kernels.append((name, A.maxv + 1, (A.maxv + 4) // 4 * 4, A.maxs + 1))

    def build(self, hdr):
        self.main()
        out = [hdr]
        out.append(f'; @launch grid=(256,1,1) block=(512,1,1) lds={160 * KB}')
        out.append('.amdgcn_target "amdgcn-amd-amdhsa--gfx950"')
        out.append('.text')
        out.append(self.A.text())
        out.append('.section .rodata,"a"')
        for n, nv, accum, ns in self.kernels:
            assert nv <= 256
            out.append('.p2align 6')
            out.append(f'.amdhsa_kernel {n}')
            out.append(f'  .amdhsa_next_free_vgpr {nv}')
            out.append(f'  .amdhsa_next_free_sgpr {max(ns, 16)}')
            out.append(f'  .amdhsa_accum_offset {accum}')
            out.append('  .amdhsa_group_segment_fixed_size 0')
            out.append('  .amdhsa_kernarg_size 96')
            out.append('  .amdhsa_user_sgpr_count 2')
            out.append('  .amdhsa_user_sgpr_kernarg_segment_ptr 1')
            out.append('  .amdhsa_system_sgpr_workgroup_id_x 1')
            out.append('  .amdhsa_float_denorm_mode_32 3')
            out.append('.end_amdhsa_kernel')
        return '\n'.join(out) + '\n'


if __name__ == '__main__':
    OPT.add('d2early')
    g = Gen3()
    g.prof = 'prof' in OPT
    txt = g.build(header())
    out = sys.argv[1]
    if out == '-':
        out = f'cdna_kernels/{NAME}.s'
    open(out, 'w').write(txt)
    json.dump(LAYOUT, open('layout.json', 'w'))
    for k in g.kernels:
        print(k)
    print('nops inserted', g.A.nops, 'ws used', WS_USED, 'stamps', g.nstamp)
```

```python
import sys, json
import gen as G1
from gen import Gen, KB, NAME, f32, LOG2E, OOB, SRD, SW, SRD2, VL16, VLANE, header
from asmlib import v, a, s

OPT = set(sys.argv[2:])

_off = 0
def _alloc(n):
    global _off
    r = _off
    _off += (n + 4095) // 4096 * 4096
    return r
WQKV = _alloc(1536 * KB); WO = _alloc(512 * KB); W1 = _alloc(512 * KB); W2 = _alloc(512 * KB)
W3 = _alloc(1792 * KB); W4 = _alloc(1792 * KB)
CSQ = _alloc(16 * KB); CS1 = _alloc(8 * KB); CS3 = _alloc(16 * KB); DUMMY = _alloc(4 * KB)
ZR = _alloc(288 * KB)
ZSTRIDE = 68 * KB
KV = ZR
Z = KV + 64 * KB
PC = ZR + 136 * KB
XW = ZR + 146 * KB
CSH = 10
CB = ZR + 160 * KB
C_X, C_O, C_XA, C_H, C_X1, C_G, C_KV, C_HH = [CB + 128 * i for i in range(8)]
CSTRIDE = 64
X0 = _alloc(2048 * KB); ST0 = _alloc(128 * KB); OB = _alloc(2048 * KB); G = _alloc(7168 * KB)
HH = _alloc(4096 * KB)
XA = X1 = X0
STA = ST1 = ST0
H = OB
PSTRIDE = 0
DBG = _alloc(16 * 512 * 128 * 2)
WS_USED = _off
LAYOUT = {k: val for k, val in globals().items() if k.isupper() and isinstance(val, int)}
for k_, v_ in LAYOUT.items():
    setattr(G1, k_, v_)

sT, sCG8, sT0, sCG16, sP, sPAIR, sZ, sTO = 16, 17, 18, 19, 20, 21, 22, 23
sTILE, sSTP, sC, sFAST, sFH = 24, 25, 44, 45, 46
sFG = 49
sHH, sRH = 52, 53
sF8, sF16 = 47, 48
VB64, VB128, VSTL, VL4, VONE, VP2 = 4, 5, 6, 7, 8, 9
VMR = 10
RES = 16
FREE = 32
PERM = 156 * KB
L_CSQ, L_CS1, L_CS3 = PERM, PERM + 384, PERM + 640
L_CF, L_CR, L_CB, L_MODE, L_GO = PERM + 2048, PERM + 2064, PERM + 2080, PERM + 2096, PERM + 2100
L_PS = PERM + 2112
L_CS = PERM + 2128
L_INIT = PERM + 2104
L_ST = PERM + 2148
PA = 64
SRDD = 88
PST = 138 * KB
PHL = 154 * KB
sEV = 50
VPERM = 15
VOWN = 14
GR = 4 * KB
def map_wo(j): return (35 + j) * GR if j < 4 else (j - 4) * GR
def map_w1(j): return (12 + j) * GR
def map_w2(j): return (28 + j) * GR if j < 11 else (j - 11) * GR
def map_w3(j): return ((j + 3) % 16) * 7 * KB
def map_w4(j):
    if j >= 39: j -= 39
    return (28 + j) * GR if j < 11 else (22 + j - 11) * GR if j < 17 else (j - 17) * GR
def map_q(j): return j * 6 * KB


class Rec:
    def __init__(self):
        self.l = []

    def __call__(self, t):
        self.l.append(t)


class Gen3(Gen):
    persist = False
    first_wait = False
    XGO = int([o[3:] for o in OPT if o.startswith('xgo')][0]) if any(o.startswith('xgo') for o in OPT) else 2
    NPRE = int([o[4:] for o in OPT if o.startswith('npre')][0]) if any(o.startswith('npre') for o in OPT) else 2
    DS = int([o[2:] for o in OPT if o.startswith('ds')][0]) if any(o.startswith('ds') for o in OPT) else 16
    SG = int([o[2:] for o in OPT if o.startswith('sg')][0]) if any(o.startswith('sg') for o in OPT) else 11
    D4 = int([o[2:] for o in OPT if o.startswith('dw')][0]) if any(o.startswith('dw') for o in OPT) else 10
    DB = int([o[2:] for o in OPT if o.startswith('db')][0]) if any(o.startswith('db') for o in OPT) else 6

    def rec(self, fn):
        keep = self.A
        self.A = Rec()
        fn()
        l = self.A.l
        self.A = keep
        return l

    def ldx(self, dst, soff, ioff=0, voff=VL16, w=4, sc=None):
        o = f' offset:{ioff}' if ioff else ''
        wn = {1: 'dword', 2: 'dwordx2', 4: 'dwordx4'}[w]
        if sc is None:
            sc = '' if 'ldplain' in OPT else ' nt' if 'ldnt' in OPT else ' sc0' if 'ldsc0' in OPT else ' sc1'
        self.A(f'buffer_load_{wn} {dst}, {v(voff)}, {s(SRD, 4)}, {s(soff)} offen{o}{sc}')
        return self.A.vmark()

    dmant = False

    def dma(self, soff, ioff=0, voff=VL16, srd=SRD):
        o = f' offset:{ioff}' if ioff else ''
        nt = ' sc1' if (srd == SRD and 'dmaplain' not in OPT) else ''
        self.A(f'buffer_load_dwordx4 {v(voff)}, {s(srd, 4)}, {s(soff)} offen{o}{nt} lds')
        return self.A.vmark()

    def stores(self, lst, fast=sFAST):
        A = self.A
        Ls, Ld = A.newlabel('sts'), A.newlabel('std')

        def emit(sc):
            for src, soff, ioff, voff, w, ex in lst:
                o = f' offset:{ioff}' if ioff else ''
                wn = {1: 'dword', 2: 'dwordx2', 4: 'dwordx4'}[w]
                if ex:
                    A(f's_mov_b64 exec, {ex}')
                A(f'buffer_store_{wn} {src}, {v(voff)}, {s(SRD, 4)}, {s(soff)} offen{o}{sc}')
                if ex:
                    A('s_mov_b64 exec, -1')
        A(f's_cmp_eq_u32 {s(fast)}, 0')
        A(f's_cbranch_scc1 {Ls}')
        vm0 = A.vm
        emit(' nt' if 'stnt' in OPT else ' sc0' if 'stsc0' in OPT else ' sc1' if ('datasc1' in OPT and lst[0][4] != 1) else '')
        A(f's_branch {Ld}')
        A.label(Ls)
        A.vm = vm0
        emit(' sc1')
        A.label(Ld)

    def pstamp(self):
        if not self.prof:
            return
        A = self.A
        i = self.nstamp
        self.nstamp += 1
        A('s_memtime s[60:61]')
        A('s_waitcnt lgkmcnt(0)')
        A.lg_done = A.lg
        A(f'v_writelane_b32 v12, s60, {i}')

    def dbgt(self, slot, inv=False):
        if 'dbgt' not in OPT:
            return
        A = self.A
        assert A.lg == A.lg_done
        A('s_memrealtime s[60:61]')
        A('s_waitcnt lgkmcnt(0)')
        if inv:
            A('s_not_b32 s60, s60')
        A('v_mov_b32 v12, s60')
        A('s_mov_b64 exec, 1')
        A(f'buffer_atomic_umax v12, {v(VL4)}, {s(SRDD, 4)}, 0 offen offset:{slot * 4}')
        A.vm -= 1
        A('s_mov_b64 exec, -1')

    def poll(self, sbase, voff, n, target=1, mode='auto', ioff=0, srd=SRD, mask=None):
        A = self.A
        L, LS, LC, D = A.newlabel('poll'), A.newlabel('polls'), A.newlabel('pollc'), A.newlabel('polld')
        o = f' offset:{ioff}' if ioff else ''
        A(f's_mov_b64 exec, {(1 << n) - 1:#x}' if n < 32 else 's_mov_b32 exec_hi, 0')
        A.label(L)
        if mode == 'auto':
            A(f's_cmp_eq_u32 {s(sFAST)}, 0')
            A(f's_cbranch_scc1 {LS}')
            A(f'buffer_load_dword v3, {v(voff)}, {s(SRD, 4)}, {s(sbase)} offen{o} sc1')
            A(f's_branch {LC}')
            A.label(LS)
        if mode == 'load':
            A(f'buffer_load_dword v3, {v(voff)}, {s(srd, 4)}, {s(sbase)} offen{o} sc1')
        else:
            A('v_mov_b32 v3, 0')
            A(f'buffer_atomic_add v3, {v(voff)}, {s(SRD, 4)}, {s(sbase)} offen{o} sc0')
        A.label(LC)
        A('s_waitcnt vmcnt(0)')
        A.vm_done = A.vm
        if mask:
            A(f'v_and_b32 v22, {mask}, v3')
            A(f'v_cmp_le_u32 vcc, {target}, v22')
        else:
            A(f'v_cmp_le_u32 vcc, {target}, v3')
        A('s_cmp_eq_u64 vcc, exec')
        A(f's_cbranch_scc1 {D}')
        A(f's_sub_u32 {s(sTO)}, {s(sTO)}, 1')
        A(f's_cbranch_scc1 {self.exit}')
        if mode == 'load':
            A('s_sleep 8')
        A(f's_branch {L}')
        A.label(D)
        A('s_mov_b64 exec, -1')

    def sig(self, base, k, absv=False):
        A = self.A
        if absv:
            A(f'v_mov_b32 v3, {k}')
        else:
            A(f's_add_u32 s51, {s(sEV)}, {k}')
            A('v_mov_b32 v3, s51')
        A(f'ds_write_b32 {v(VOWN)}, v3 offset:{base - L_CF}')

    def lwait(self, base, k, tmp, sleep=0, single=False, absv=False, own=False):
        A = self.A
        L, D = A.newlabel('lw'), A.newlabel('lwd')
        A(f's_mov_b32 s51, {k}' if absv else f's_add_u32 s51, {s(sEV)}, {k}')
        A.label(L)
        if single:
            A(f'ds_read_b32 {v(tmp)}, {v(VOWN if own else VPERM)} offset:{base - L_CF}')
            A.wait_all(vm=False)
        else:
            A(f'ds_read_b128 {v(tmp, 4)}, {v(VPERM)} offset:{base - L_CF}')
            A.wait_all(vm=False)
            A(f'v_min_u32 {v(tmp)}, {v(tmp)}, {v(tmp + 1)}')
            A(f'v_min3_u32 {v(tmp)}, {v(tmp)}, {v(tmp + 2)}, {v(tmp + 3)}')
        A(f'v_cmp_le_u32 vcc, s51, {v(tmp)}')
        A(f's_cbranch_vccnz {D}')
        A(f's_sub_u32 {s(sTO)}, {s(sTO)}, 1')
        A(f's_cbranch_scc1 {self.exit}')
        if sleep:
            A(f's_sleep {sleep}')
        A(f's_branch {L}')
        A.label(D)

    def lpeek(self, base, tmp):
        self.A(f'ds_read_b128 {v(tmp, 4)}, {v(VPERM)} offset:{base - L_CF}')
        return self.A.lmark()

    def ltest(self, mark, base, k, tmp, absv=False):
        A = self.A
        D = A.newlabel('lt')
        A(f's_mov_b32 s51, {k}' if absv else f's_add_u32 s51, {s(sEV)}, {k}')
        A.wait(lg=mark)
        A(f'v_min_u32 {v(tmp)}, {v(tmp)}, {v(tmp + 1)}')
        A(f'v_min3_u32 {v(tmp)}, {v(tmp)}, {v(tmp + 2)}, {v(tmp + 3)}')
        A(f'v_cmp_le_u32 vcc, s51, {v(tmp)}')
        A(f's_cbranch_vccnz {D}')
        lg, ld = A.lg, A.lg_done
        self.lwait(base, k, tmp, absv=absv)
        A.lg, A.lg_done = lg, ld
        A.label(D)

    def acheck(self, specs):
        marks = {}

        def pr(j):
            for n, (jj, base, k, tmp, absv, after) in enumerate(specs):
                if j == jj:
                    self.ltest(marks[n], base, k, tmp, absv)
                    if after:
                        after()
            for n, (jj, base, k, tmp, absv, after) in enumerate(specs):
                if j == jj - 1:
                    marks[n] = self.lpeek(base, tmp)
        return pr

    def flag(self, sbase, ioff, two=False, fast=sFAST, pre=None):
        self.pstamp()
        if pre:
            pre()
        self.A.wait_all(lg=False)
        self.stores([(v(VONE), sbase, ioff, VP2, 1, '0x101' if two else '1')], fast)
        self.pstamp()

    def gemm(self, KS, MT, NT, acc, xreg, ldsoff, buf, NB, xwait, hook=None, preread=None, fill=(), czero=False, fill0=1, npre=0):
        A = self.A
        vbase = {0: VL16, 1: VB64, 2: VB128}
        fill = list(fill)

        def read(j, t):
            if t == 0 and preread:
                preread(j)
            off = ldsoff(j) + t * KB
            A(f'ds_read_b128 {v(buf + ((j % NB) * NT + t) * 4, 4)}, {v(vbase[off >> 16])} offset:{off & 0xffff}')
            return A.lmark()
        marks = {}
        pre = NB
        while pre * NT > 14:
            pre -= 1
        if npre:
            pre = npre
            A.wait_all(vm=False)
        for j in range(pre):
            for t in range(NT):
                marks[(j, t)] = 0 if npre else read(j, t)
        fper = 1 if len(fill) < (KS - fill0) * (NT - 2) else 2
        nxt = [(j, t) for j in range(pre, KS) for t in range(NT)]
        for j in range(KS):
            if 'lstamp' in OPT and NT == 7 and j % 2 == 0:
                i_ = self.nstamp
                self.nstamp += 1
                A(f's_memtime {s(64 + j, 2)}')
                self.late = getattr(self, 'late', []) + [(64 + j, i_)]
                A.lg_done = max(0, A.lg_done)
            for t in range(NT):
                A.wait(vm=xwait(j) if t == 0 else None, lg=marks[(j, NT - 1 if (NB > 4 and (j, NT - 1) in marks) else min(NT - 1, t | 1) if 'w2' in OPT else t)])
                for mt in range(MT):
                    r = acc + (mt * NT + t) * 4
                    c = '0' if (czero and j == 0) else v(r, 4)
                    A(f'v_mfma_f32_16x16x32_bf16 {v(r, 4)}, {v(buf + ((j % NB) * NT + t) * 4, 4)}, {xreg(mt, j)}, {c}')
                    if mt == 0 and (MT == 2 or (t < NT - 1 if 'oldm1' in OPT else (t in (1, 3) or not nxt))):
                        n0 = len(A.lines)
                        if hook and MT == 2:
                            hook(j, t)
                        room = (2 if MT == 2 else 1) - (len(A.lines) - n0)
                        for _ in range(min(room, fper)):
                            if fill and j >= fill0:
                                A(fill.pop(0))
                if MT == 1 and 'oldm1' not in OPT:
                    for _ in range(2 if t in (0, 2) else 0):
                        if nxt and nxt[0][0] - NB < j:
                            j2, t2 = nxt.pop(0)
                            marks[(j2, t2)] = read(j2, t2)
                elif nxt:
                    j2, t2 = nxt[0]
                    if (j2 - NB, t2) <= (j, t):
                        marks[(j2, t2)] = read(j2, t2)
                        nxt.pop(0)
                if hook and MT == 1:
                    hook(j, t)
        assert not nxt and not fill, (len(fill))
        if 'lstamp' in OPT and NT == 7:
            A('s_waitcnt lgkmcnt(0)')
            for r_, i_ in self.late:
                A(f'v_writelane_b32 v12, {s(r_)}, {i_}')

    def wpre(self, n, NT, buf, ldsoff, j0=0):
        A = self.A
        vbase = {0: VL16, 1: VB64, 2: VB128}
        for j in range(j0, n):
            for t in range(NT):
                off = ldsoff(j) + t * KB
                A(f'ds_read_b128 {v(buf + (j * NT + t) * 4, 4)}, {v(vbase[off >> 16])} offset:{off & 0xffff}')

    def cs_read(self, NT, cs, loc):
        A = self.A
        A(f'v_and_b32 v3, 0x30, {v(VLANE)}')
        A(f'v_add_u32 v3, {loc}, v3')
        for t in range(NT):
            A(f'ds_read_b128 {v(cs + 4 * t, 4)}, v3 offset:{t * 64}')

    def ln_fix(self, acc, n, cs, mean):
        for i in range(0, n, 2):
            self.A(f'v_pk_fma_f32 {v(acc + i, 2)}, {v(cs + i, 2)}, {v(mean, 2)}, {v(acc + i, 2)} op_sel_hi:[1,0,1] neg_lo:[0,1,0] neg_hi:[0,1,0]')

    def ld_stats(self, dst, soff, ioff=0):
        self.ldx(v(dst, 2), soff, ioff, voff=VSTL, w=2)
        return self.ldx(v(dst + 2, 2), soff, ioff + 128, voff=VSTL, w=2)

    def stats_calc(self, acc, n, tmp):
        A = self.A
        S, Q = tmp, tmp + 2
        A(f'v_pk_add_f32 {v(S, 2)}, {v(acc, 2)}, {v(acc + 2, 2)}')
        A(f'v_pk_mul_f32 {v(Q, 2)}, {v(acc, 2)}, {v(acc, 2)}')
        for i in range(2, n, 2):
            if i >= 4:
                A(f'v_pk_add_f32 {v(S, 2)}, {v(S, 2)}, {v(acc + i, 2)}')
            A(f'v_pk_fma_f32 {v(Q, 2)}, {v(acc + i, 2)}, {v(acc + i, 2)}, {v(Q, 2)}')
        A(f'v_add_f32 {v(S)}, {v(S)}, {v(S + 1)}')
        A(f'v_add_f32 {v(S + 1)}, {v(Q)}, {v(Q + 1)}')
        Q = S + 1
        A(f'v_permlane32_swap_b32 {v(S)}, {v(Q)}')
        A(f'v_add_f32 {v(S)}, {v(S)}, {v(Q)}')
        A(f'v_mov_b32 {v(Q)}, {v(S)}')
        A(f'v_permlane16_swap_b32 {v(S)}, {v(Q)}')
        A(f'v_add_f32 {v(S)}, {v(S)}, {v(Q)}')
        A(f'v_mov_b32 {v(Q)}, {v(S)}')
        A(f'v_permlane32_swap_b32 {v(S)}, {v(Q)}')

    def store_tile(self, acc, tmp, DST, STD, nextpair=False, fast=sFAST):
        A = self.A
        self.pack(tmp, acc, 8)
        add = PSTRIDE if nextpair else 0
        A(f's_add_u32 s26, {s(sTILE)}, {DST + add}')
        A(f's_add_u32 s27, {s(sSTP)}, {STD + add}')
        self.stores([(v(tmp, 4), 26, 0, VL16, 4, None), (v(tmp + 4, 4), 26, KB, VL16, 4, None)], fast)
        self.stats_calc(acc, 16, tmp + 8)
        self.stores([(v(tmp + 8, 2), 27, 0, VSTL, 2, '0xffff')], fast)

    def big_pre(self, XIN, STIN):
        A = self.A
        A(f's_lshl_b32 s26, {s(sT0)}, 14')
        A(f's_add_u32 s26, s26, {s(sP)}')
        A(f's_add_u32 s26, s26, {XIN}')
        A(f's_add_u32 s27, s26, {16 * KB}')
        A(f's_lshl_b32 s28, {s(sT0)}, 10')
        A(f's_add_u32 s28, s28, {s(sP)}')
        A(f's_add_u32 s28, s28, {STIN}')
        A(f's_lshl_b32 s29, {s(sT0)}, {CSH}')
        A(f's_add_u32 s29, s29, {s(sC)}')

    def big_main(self, NT, acc, buf, XR, ST, fill, lmap, late_j, late_id, xsig, fsig):
        A = self.A
        D, RING = self.DB, 8
        sX, sX2 = 26, 27
        xm = {}

        def xload(j, mt):
            if 'noxl' in OPT and j >= D:
                xm[j] = A.vmark()
                return
            xm[j] = self.ldx(v(XR + ((j % RING) * 2 + mt) * 4, 4), sX2 if mt else sX, (j & 3) * KB)
            if (j & 3) == 3 and j < 15:
                r = sX2 if mt else sX
                A(f's_add_u32 {s(r)}, {s(r)}, {4 * KB}')
        for j in range(D):
            xload(j, 0)
            xload(j, 1)
            if j == 1:
                self.ld_stats(ST, 28)
                self.ld_stats(ST + 4, 28, KB)
        self.pstamp()

        def hook(j, t):
            if j == 0 and t == 0:
                self.sig(L_PS, 1 if NT == 6 else 2)
            if j + D < 16:
                if t == 1:
                    xload(j + D, 0)
                if t == 4:
                    xload(j + D, 1)
                    if j + D == 15 and xsig is not None:
                        self.sig(L_CF, xsig)

        specs = [(late_j, L_CR, late_id, 252, False, None)]
        if NT == 7:
            specs.append((15, L_CS, 4, 252, True, lambda: self.cs_read(7, 224, L_CS3)))
        preread = self.acheck(specs)
        self.gemm(16, 2, NT, acc, lambda mt, j: v(XR + ((j % RING) * 2 + mt) * 4, 4), lmap,
                  buf, 2, lambda j: xm[j], hook, preread, fill=fill, czero=True, fill0=2, npre=2)
        if fsig is not None:
            self.sig(L_CF, fsig)
        self.pstamp()

    def small_main(self, KS, acc, buf, XR, RING, D, src, lmap, fill=(), czero=False, extra=None, hook2=None, preread=None,
                   xsig=None, fsig=None, stagger=0, NB=4):
        A = self.A
        xm = {}

        def xload(j):
            so, io, vo = src(j)
            xm[j] = self.ldx(v(XR + (j % RING) * 4, 4), so, io, voff=vo)
            if (j & 3) == 3 and j < KS - 1:
                A(f's_add_u32 {s(so)}, {s(so)}, {4 * KB}')
        if stagger and 'stag' in OPT:
            Ls = A.newlabel('stg')
            A(f's_cmp_eq_u32 {s(SW)}, 0')
            A(f's_cbranch_scc1 {Ls}')
            self.lwait(L_ST - 4, stagger, 44, single=True, own=True)
            A.label(Ls)
        for j in range(D):
            xload(j)
            if j == 1 and extra:
                extra()
            if j == self.SG and stagger and 'stag' in OPT:
                self.sig(L_ST, stagger)
        if D == KS and xsig is not None:
            self.sig(L_CF, xsig)
        self.pstamp()

        def hook(j, t):
            if t == 1 and j + D < KS:
                xload(j + D)
                if j + D == KS - 1 and xsig is not None:
                    self.sig(L_CF, xsig)
            if hook2:
                hook2(j, t)
        self.gemm(KS, 1, 4, acc, lambda mt, j: v(XR + 4 * (j % RING), 4), lmap, buf, NB,
                  lambda j: xm[j], hook, preread, fill=fill, czero=czero, fill0=2, npre=NB)
        if fsig is not None:
            self.sig(L_CF, fsig)
        self.pstamp()

    def stage_qkv(self):
        A = self.A
        NT = 6
        ST, CC, acc, buf, XR, CS = 32, 40, 64, 112, 160, 224
        SCR, RSZ = 96 * KB, 336

        def f():
            for mt in range(2):
                self.stats_consume(ST + 4 * mt, 3)
                self.rstd(CC + 1 + 2 * mt, ST + 4 * mt + 1)
                self.A(f'v_mul_f32 {v(CC + 2 * mt)}, {f32(LOG2E)}, {v(CC + 1 + 2 * mt)}')
            self.A(f'v_permlane32_swap_b32 {v(CC)}, {v(CC + 2)}')
        Lepi = A.newlabel('qepi')
        self.qkv_first(f, acc, buf, ST, CS, SCR, RSZ)
        A(f's_branch {Lepi}')
        A.label(self.Lp)
        self.nstamp = 0
        if self.prof:
            A('s_memrealtime s[60:61]')
            A('s_waitcnt lgkmcnt(0)')
            A('v_writelane_b32 v12, s60, 63')
        self.pstamp()
        self.big_pre(X0, ST0)
        self.cs_read(NT, CS, L_CSQ)
        self.qkv_addr(SCR, RSZ)
        self.lwait(L_CR, 1, 252)
        self.wpre(2, NT, buf, map_q)
        A(f's_add_u32 s29, s29, {C_X}')
        self.poll(29, VP2, 16)
        self.pstamp()
        self.big_main(NT, acc, buf, XR, ST, self.rec(f), map_q, 14, 2, None, 3)
        A.label(Lepi)
        A('s_nop 4')
        self.qkv_epi(ST, CC, acc, buf, CS, SCR, RSZ)

    def qkv_first(self, f, acc, buf, ST, CS, SCR, RSZ):
        A = self.A
        PB = [32, 224, 160, 192]
        self.nstamp = 0
        if self.prof:
            A('s_memrealtime s[60:61]')
            A('s_waitcnt lgkmcnt(0)')
            A('v_writelane_b32 v12, s60, 63')
        self.pstamp()
        WA, RA = 64, 68
        A(f's_mul_i32 s34, {s(SW)}, {32 * RSZ}')
        A(f's_add_u32 s34, s34, {SCR}')
        A(f'v_lshrrev_b32 v3, 4, {v(VLANE)}')
        A(f'v_and_b32 v76, 15, {v(VLANE)}')
        A(f'v_xor_b32 v77, v76, v3')
        A(f'v_lshlrev_b32 v77, 4, v77')
        A(f'v_lshl_add_u32 v77, v3, 8, v77')
        A(f'v_add_u32 v77, s34, v77')
        for n in range(4):
            A(f'v_xor_b32 {v(WA + n)}, {n * 64}, v77')
        A(f'v_lshrrev_b32 v77, 1, v3')
        A(f'v_xor_b32 v77, v77, v76')
        A(f'v_lshlrev_b32 v77, 4, v77')
        A(f'v_lshl_add_u32 v77, v76, 8, v77')
        A(f'v_and_b32 v3, 1, v3')
        A(f'v_lshl_add_u32 v77, v3, 3, v77')
        A(f'v_add_u32 v77, s34, v77')
        for m in range(8):
            A(f'v_xor_b32 {v(RA + m)}, {m * 32}, v77')
        for i in range(4):
            A(f'v_mov_b32 {v(16 + i)}, 0')
        A(f'v_and_b32 v13, 0x30, {v(VLANE)}')
        A(f'v_add_u32 v13, {L_CSQ}, v13')

        def stats(p):
            b = PB[p >> 1] + 16 * (p & 1)
            for i in range(16):
                A(f'v_dot2c_f32_bf16 {v(16 + 2 * (p & 1))}, 0x3f803f80, {v(b + i)}')
                A(f'v_dot2c_f32_bf16 {v(17 + 2 * (p & 1))}, {v(b + i)}, {v(b + i)}')
        for p in range(8):
            b = PB[p >> 1] + 16 * (p & 1)
            A.wait(vm=self.x0m[p], lg=A.lmark())
            for n in range(4):
                A(f'ds_write_b128 {v(WA + n)}, {v(b + 4 * n, 4)} offset:{n * 1024}')
            for m in range(8):
                A(f'ds_read_b64 {v(b + 2 * m, 2)}, {v(RA + m)}')
            if p:
                stats(p - 1)
        A.wait_all(vm=False)
        stats(7)
        self.pstamp()
        self.lwait(L_CR, 2, 20, sleep=1)
        if 'dbgt' in OPT:
            A('s_memrealtime s[60:61]')
            A('s_waitcnt lgkmcnt(0)')
            A('s_mov_b32 s92, s60')
        if 'dbgt' in OPT:
            A('s_memrealtime s[60:61]')
            A('s_waitcnt lgkmcnt(0)')
            A('s_mov_b32 s93, s60')
        self.pstamp()

        def g():
            A = self.A
            for mt in range(2):
                A(f'v_mov_b32 {v(ST + 4 * mt)}, {v(16 + 2 * mt)}')
                A(f'v_mov_b32 {v(ST + 4 * mt + 1)}, {v(17 + 2 * mt)}')
                A(f'v_mov_b32 {v(ST + 4 * mt + 2)}, 0')
                A(f'v_mov_b32 {v(ST + 4 * mt + 3)}, 0')
            f()
            self.qkv_addr(SCR, RSZ)

        def hook(j, t):
            if j == 9 and t == 0:
                self.lwait(L_CS, 1, 20, absv=True)
            if 9 <= j < 15 and t == 0:
                A(f'ds_read_b128 {v(CS + 4 * (j - 9), 4)}, v13 offset:{(j - 9) * 64}')
        self.gemm(16, 2, 6, acc, lambda mt, j: v(PB[j >> 2] + 16 * mt + 4 * (j & 3), 4), map_q,
                  buf, 2, lambda j: None, hook, None, fill=self.rec(g), czero=True, fill0=4)
        self.sig(L_CF, 3)
        A(f'v_and_b32 v3, 15, {v(VLANE)}')
        A(f'v_lshlrev_b32 v13, 10, v3')
        A(f'v_lshrrev_b32 v3, 4, {v(VLANE)}')
        A(f'v_lshl_add_u32 v13, v3, 3, v13')
        A(f's_lshl_b32 s28, {s(sT)}, 14')
        A(f's_lshl_b32 s29, {s(sCG8)}, 7')
        A(f's_add_u32 s28, s28, s29')
        for t in range(4):
            A(f'buffer_load_dwordx2 {v(RES + 8 + 2 * t, 2)}, v13, {s(SRD2, 4)}, s28 offen offset:{32 * t}')
        A.vm_done = A.vm
        A.wait_all(vm=False)
        self.pstamp()

    def qkv_addr(self, SCR, RSZ):
        A = self.A
        A(f'v_lshrrev_b32 v60, 4, {v(VLANE)}')
        A(f'v_and_b32 v61, 15, {v(VLANE)}')
        A(f's_mul_i32 s30, {s(SW)}, {32 * RSZ}')
        A(f's_add_u32 s30, s30, {SCR}')
        A(f'v_mul_u32_u24 v45, {RSZ}, v61')
        A(f'v_add_u32 v45, s30, v45')
        A(f'v_lshl_add_u32 v46, v60, 3, v45')
        A(f'v_lshl_add_u32 v44, v60, 4, v45')
        A(f'v_and_b32 v3, 1, v60')
        A(f'v_lshl_add_u32 v45, v3, 6, v45')
        A(f'v_lshrrev_b32 v3, 1, v60')
        A(f'v_mul_u32_u24 v3, {16 * RSZ}, v3')
        A(f'v_add_u32 v45, v45, v3')
        A(f'v_bfe_u32 v3, {v(VLANE)}, 2, 2')
        A(f'v_lshl_add_u32 v3, v60, 3, v3')
        A(f'v_mul_u32_u24 v47, {RSZ}, v3')
        A(f'v_and_b32 v3, 3, {v(VLANE)}')
        A(f's_lshr_b32 s30, {s(SW)}, 1')
        A(f's_and_b32 s31, {s(SW)}, 1')
        A(f's_lshl_b32 s32, s30, 6')
        A(f's_lshl_b32 s33, s31, 3')
        A(f's_add_u32 s32, s32, s33')
        A(f's_add_u32 s32, s32, {SCR + 128}')
        A(f'v_lshl_add_u32 v48, v3, 4, v47')
        A(f'v_add_u32 v48, s32, v48')
        A(f's_lshl_b32 s32, s30, 5')
        A(f's_add_u32 s32, s32, {SCR + 256}')
        A(f'v_lshl_add_u32 v49, v3, 3, v47')
        A(f'v_add_u32 v49, s32, v49')
        A(f's_lshl_b32 s42, {s(sCG16)}, 12')
        A(f's_add_u32 s42, s42, {s(sZ)}')
        A(f's_add_u32 s42, s42, {KV}')
        A(f's_lshl_b32 s32, {s(SW)}, 10')
        A(f's_add_u32 s32, s32, s42')
        A(f's_lshl_b32 s43, {s(sCG16)}, 8')
        A(f's_add_u32 s43, s43, {s(sZ)}')
        A(f's_add_u32 s43, s43, {Z}')
        A(f's_lshl_b32 s33, s30, 7')
        A(f's_add_u32 s33, s33, s43')
        A(f's_lshl_b32 s31, s31, 4')
        A(f's_add_u32 s33, s33, s31')
        A(f'v_lshlrev_b32 v50, 5, v60')
        A(f'v_lshl_add_u32 v51, v61, 2, v50')
        A(f'v_mov_b32 v3, {OOB}')
        A(f'v_cmp_gt_u32 vcc, 4, v61')
        A(f'v_cndmask_b32 v51, v3, v51, vcc')
        A(f'v_cmp_eq_u32 s[34:35], 1, v61')
        A(f'v_cmp_eq_u32 s[36:37], 2, v61')
        A(f'v_cmp_eq_u32 s[38:39], 3, v61')
        for i in range(4):
            A(f'v_mov_b32 {v(52 + i)}, 0x3f803f80')
            A(f'v_mov_b32 {v(56 + i)}, {f32(1e-6)}')

    def qkv_epi(self, ST, CC, acc, buf, CS, SCR, RSZ):
        A = self.A
        EP, EM, PK, M = 160, 176, 192, 208

        def softmax(P, off):
            cc = CC
            for op, d in (('max', M), ('min', M + 1)):
                A(f'v_{op}3_f32 {v(d)}, {v(P)}, {v(P + 1)}, {v(P + 2)}')
                for i in range(3, 15, 2):
                    A(f'v_{op}3_f32 {v(d)}, {v(d)}, {v(P + i)}, {v(P + i + 1)}')
                A(f'v_{op}_f32 {v(d)}, {v(d)}, {v(P + 15)}')
            A(f'v_pk_mul_f32 {v(M, 2)}, {v(M, 2)}, {v(cc, 2)} op_sel_hi:[1,0]')
            for i in range(0, 16, 2):
                A(f'v_pk_fma_f32 {v(EP + i, 2)}, {v(P + i, 2)}, {v(cc, 2)}, {v(M, 2)} op_sel_hi:[1,0,0] neg_lo:[0,0,1] neg_hi:[0,0,1]')
                A(f'v_pk_fma_f32 {v(EM + i, 2)}, {v(P + i, 2)}, {v(cc, 2)}, {v(M, 2)} op_sel:[0,0,1] op_sel_hi:[1,0,1] neg_lo:[0,1,0] neg_hi:[0,1,0]')
            for i in range(32):
                A(f'v_exp_f32 {v(EP + i)}, {v(EP + i)}')
            for E, d in ((EP, M + 2), (EM, M + 4)):
                A(f'v_pk_add_f32 {v(d, 2)}, {v(E, 2)}, {v(E + 2, 2)}')
                for i in range(4, 16, 2):
                    A(f'v_pk_add_f32 {v(d, 2)}, {v(d, 2)}, {v(E + i, 2)}')
            A(f'v_add_f32 {v(M + 2)}, {v(M + 2)}, {v(M + 3)}')
            A(f'v_add_f32 {v(M + 3)}, {v(M + 4)}, {v(M + 5)}')
            A(f'v_rcp_f32 {v(M + 2)}, {v(M + 2)}')
            A(f'v_rcp_f32 {v(M + 3)}, {v(M + 3)}')
            for t in range(4):
                for i in (4 * t, 4 * t + 2):
                    A(f'v_pk_mul_f32 {v(EP + i, 2)}, {v(EP + i, 2)}, {v(M + 2, 2)} op_sel_hi:[1,0]')
                    A(f'v_pk_mul_f32 {v(EM + i, 2)}, {v(EM + i, 2)}, {v(M + 2, 2)} op_sel:[0,1] op_sel_hi:[1,1]')
                self.pack(PK + 4 * t, EP + 4 * t, 2)
                self.pack(PK + 4 * t + 2, EM + 4 * t, 2)
                A(f'ds_write_b128 v45, {v(PK + 4 * t, 4)} offset:{off + 16 * t}')
        for mt in range(2):
            P = acc + mt * 24
            self.ln_fix(P, 24, CS, ST + 4 * mt)
        for i in range(16):
            A(f'v_permlane32_swap_b32 {v(acc + i)}, {v(acc + 24 + i)}')
        for mt in range(2):
            P = acc + mt * 24
            for hh in range(2):
                r = P + 16 + 4 * hh
                for i in (0, 2):
                    A(f'v_pk_mul_f32 {v(r + i, 2)}, {v(r + i, 2)}, {v(CC + 2 * mt, 2)} op_sel:[0,1] op_sel_hi:[1,1]')
                self.pack(r, r, 2)
                A(f'ds_write_b64 v46, {v(r, 2)} offset:{mt * 16 * RSZ + 256 + 32 * hh}')
        softmax(acc + 24, 128)
        self.pstamp()
        self.sig(L_CB, 1)
        Lm = A.newlabel('mode')
        A(f's_cmp_eq_u32 {s(sPAIR)}, 0')
        A(f's_cbranch_scc0 {Lm}')
        self.lwait(L_INIT, 1, 252, single=True)
        A('s_waitcnt vmcnt(0)')
        self.unpack(RES, RES + 8, 8)
        A.label(Lm)
        self.lwait(L_CB, 1, 252)
        TA, TB = 112, 128
        for ks in range(4):
            for u2 in range(2):
                off = (32 * ks + 4 * u2) * RSZ
                A(f'ds_read_b64_tr_b16 {v(TA + 4 * ks + 2 * u2, 2)}, v48 offset:{off}')
                A(f'ds_read_b64_tr_b16 {v(TB + 4 * ks + 2 * u2, 2)}, v49 offset:{off}')
            if ks == 2:
                A.wait(lg=A.lmark() - 8)
        base = A.lmark() - 16
        KVA, ZA = 144, 148
        for ks in range(4):
            A.wait(lg=base + 4 * ks + 4)
            A(f'v_mfma_f32_16x16x32_bf16 {v(KVA, 4)}, {v(TA + 4 * ks, 4)}, {v(TB + 4 * ks, 4)}, {"0" if ks == 0 else v(KVA, 4)}')
            A(f'v_mfma_f32_16x16x32_bf16 {v(ZA, 4)}, {v(TA + 4 * ks, 4)}, v[52:55], {"0" if ks == 0 else v(ZA, 4)}')
        for r in range(4):
            o = f' offset:{256 * r}' if r else ''
            A(f'buffer_atomic_add_f32 {v(KVA + r)}, {v(VL4)}, {s(SRD, 4)}, s32 offen{o}')
        A(f'v_cndmask_b32 {v(ZA)}, {v(ZA)}, {v(ZA + 1)}, s[34:35]')
        A(f'v_cndmask_b32 {v(ZA)}, {v(ZA)}, {v(ZA + 2)}, s[36:37]')
        A(f'v_cndmask_b32 {v(ZA)}, {v(ZA)}, {v(ZA + 3)}, s[38:39]')
        A(f'buffer_atomic_add_f32 {v(ZA)}, v51, {s(SRD, 4)}, s33 offen')
        self.pstamp()
        if 'd1late' in OPT:
            self.sig(L_CF, 3)
        softmax(acc, 0)
        PQ = 160
        for mt in range(2):
            for hh in range(2):
                A(f'ds_read_b128 {v(PQ + 8 * mt + 4 * hh, 4)}, v44 offset:{mt * 16 * RSZ + 64 * hh}')
        A(f's_lshl_b32 s30, {s(sCG16)}, {CSH}')
        A(f's_add_u32 s30, s30, {s(sC)}')
        A(f's_add_u32 s30, s30, {C_KV}')
        A(f's_lshl_b32 s26, {s(sT0)}, 14')
        A(f's_lshl_b32 s27, {s(sCG16)}, 10')
        A(f's_add_u32 s26, s26, s27')
        A(f's_add_u32 s26, s26, {s(sP)}')
        A(f's_add_u32 s26, s26, {OB}')
        A(f's_add_u32 s27, s26, {16 * KB}')
        if 'd2early' in OPT:
            self.sig(L_CF, 4)
        self.pstamp()
        A.wait_all()
        self.sig(L_CB, 2)
        self.pstamp()
        Lw, Lg, Lx = A.newlabel('kvw'), A.newlabel('kvg'), A.newlabel('kvx')
        A(f's_cmp_lg_u32 {s(SW)}, 0')
        A(f's_cbranch_scc1 {Lw}')
        self.lwait(L_CB, 2, 252)
        A('s_mov_b64 exec, 1')
        A('v_mov_b32 v3, 1')
        A(f'buffer_atomic_add v3, {v(VL4)}, {s(SRD, 4)}, s30 offen sc0')
        A('s_waitcnt vmcnt(0)')
        A('v_readfirstlane_b32 s31, v3')
        A('s_mov_b64 exec, -1')
        A('s_cmp_eq_u32 s31, 15')
        A(f's_cbranch_scc1 {Lg}')
        self.poll(30, VL4, 1, target=16, mode='atomic')
        A.label(Lg)
        self.sig(L_GO, 1)
        A(f's_branch {Lx}')
        A.label(Lw)
        self.lwait(L_GO, 1, 252, sleep=1, single=True)
        A.label(Lx)
        self.pstamp()
        Lm = A.newlabel('mode')
        A(f's_cmp_eq_u32 {s(sPAIR)}, 0')
        A(f's_cbranch_scc0 {Lm}')
        self.lwait(L_MODE, 1, 252, single=True)
        A(f'v_readfirstlane_b32 {s(sFAST)}, v252')
        A(f's_sub_u32 {s(sFAST)}, {s(sFAST)}, 1')
        A.label(Lm)
        KF, ZF = 64, 80
        for i in range(16):
            self.ldx(v(KF + i), 42, 256 * i, voff=VL4, w=1, sc=' sc1')
        for hh in range(2):
            for u in range(2):
                self.ldx(v(ZF + 8 * hh + 4 * u, 4), 43, 128 * hh + 16 * u, voff=50, sc=' sc1')
        A.wait(vm=A.vmark() - 4)
        self.pack(96, KF, 8)
        A.wait_all()
        self.pack(104, ZF, 8)
        ND = 112
        for mt in range(2):
            for hh in range(2):
                d = ND + 16 * mt + 8 * hh
                A(f'v_mfma_f32_16x16x32_bf16 {v(d + 4, 4)}, {v(104 + 4 * hh, 4)}, {v(PQ + 8 * mt + 4 * hh, 4)}, v[56:59]')
                A(f'v_mfma_f32_16x16x32_bf16 {v(d, 4)}, {v(96 + 4 * hh, 4)}, {v(PQ + 8 * mt + 4 * hh, 4)}, 0')
        for q in range(4):
            A(f'v_rcp_f32 {v(ND + 8 * q + 4)}, {v(ND + 8 * q + 4)}')
        for q in range(4):
            d = ND + 8 * q
            for i in (0, 2):
                A(f'v_pk_mul_f32 {v(d + i, 2)}, {v(d + i, 2)}, {v(d + 4, 2)} op_sel_hi:[1,0]')
            self.pack(64 + 2 * q, d, 2)
        self.stores([(v(64, 4), 26, 0, VL16, 4, None), (v(68, 4), 27, 0, VL16, 4, None)], sFG)
        self.flag(sF16, C_O - CB, two=True)

    def small_pre(self, XIN, mul=16):
        A = self.A
        A(f's_mul_i32 s26, {s(sT)}, {mul * KB}')
        A(f's_add_u32 s26, s26, {s(sP)}')
        A(f's_add_u32 s26, s26, {XIN}')
        A(f's_lshl_b32 s29, {s(sT)}, {CSH}')
        A(f's_add_u32 s29, s29, {s(sC)}')
        A(f's_add_u32 s29, s29, {CB}')

    def stage_wo(self):
        A = self.A
        XR, buf = 64, 128
        self.small_pre(OB)
        self.lwait(L_CR, 3, 44)
        self.wpre(8, 4, buf, map_wo)
        self.poll(29, VL4, 16, ioff=C_O - CB)
        self.pstamp()
        self.small_main(16, RES, buf, XR, 16, self.DS, lambda j: (26, (j & 3) * KB, VL16), map_wo, stagger=1, NB=8)
        self.store_tile(RES, XR, XA, STA, fast=sFG)
        self.flag(sF8, C_XA - CB, pre=lambda: (self.lwait(L_CR, 4, 44), self.wpre(3, 4, buf, map_w1)))

    def stage_w1(self):
        A = self.A
        ST, K, acc, XR, buf, CS = 32, 40, 48, 64, 128, 240
        self.small_pre(XA)
        A(f's_lshl_b32 s27, {s(sT)}, 10')
        A(f's_add_u32 s27, s27, {STA}')
        self.lwait(L_CS, 3, 44, absv=True)
        self.cs_read(4, CS, L_CS1)
        self.wpre(7, 4, buf, map_w1, 3)
        self.poll(29, VL4, 8, ioff=C_XA - CB)
        self.pstamp()

        def f():
            A = self.A
            self.stats_consume(ST, 3)
            self.rstd(VMR + 1, ST + 1)
            A(f'v_mul_f32 {v(VMR)}, {v(ST)}, {v(VMR + 1)}')
            A(f'v_mul_f32 v38, {v(VMR + 1)}, {v(VMR + 1)}')
            A(f'v_mul_f32 v38, v38, {v(ST + 1)}')
            self.rstd(38, 38)
            A(f'v_mul_f32 v38, v38, {v(VMR + 1)}')
            self.gelu_consts(K, 38)
        self.small_main(16, acc, buf, XR, 16, self.DS, lambda j: (26, (j & 3) * KB, VL16), map_w1, fill=self.rec(f), czero=True,
                        extra=lambda: self.ld_stats(ST, 27), xsig=5, NB=7)
        self.ln_fix(acc, 16, CS, ST)
        self.gelu(acc, 16, K, XR, XR + 16)
        A(f's_add_u32 s26, {s(sTILE)}, {H}')
        Lh, Lh2 = A.newlabel('hh'), A.newlabel('hh2')
        self.stores([(v(XR + 16, 4), 26, 0, VL16, 4, None), (v(XR + 20, 4), 26, KB, VL16, 4, None)])
        A(f's_add_u32 s27, s26, {s(sHH)}')
        A(f's_cmp_eq_u32 {s(sFH)}, 0')
        A(f's_cselect_b32 s27, {WS_USED}, s27')
        m = A.vmark()
        A(f'buffer_store_dwordx4 {v(XR + 16, 4)}, {v(VL16)}, {s(SRD, 4)}, s27 offen sc1')
        A(f'buffer_store_dwordx4 {v(XR + 20, 4)}, {v(VL16)}, {s(SRD, 4)}, s27 offen offset:1024 sc1')
        self.pstamp()
        self.wpre(3, 4, buf, map_w2)
        A.wait(vm=m)
        self.stores([(v(VONE), sF8, C_H - CB, VP2, 1, '1')])
        self.pstamp()
        A(f's_cmp_eq_u32 {s(sFH)}, 0')
        A(f's_cbranch_scc1 {Lh2}')
        A('s_waitcnt vmcnt(1)')
        A('s_mov_b64 exec, 1')
        A(f'buffer_store_dword {v(VONE)}, {v(VL4)}, {s(SRD, 4)}, {s(sF8)} offen offset:{C_HH - CB} sc1')
        A('s_mov_b64 exec, -1')
        A.label(Lh2)

    def stage_w2(self):
        A = self.A
        acc, XR, buf = 48, 64, 128
        self.wpre(7, 4, buf, map_w2, 3)
        A(f's_lshl_b32 s26, {s(sT)}, 4')
        A(f'v_and_b32 v13, 15, {v(VLANE)}')
        A(f'v_add_u32 v13, s26, v13')
        A(f'v_and_b32 v38, 0x300, {v(VL16)}')
        A(f'v_mov_b32 v39, {OOB}')
        A(f's_movk_i32 s27, 2048')
        A(f's_lshr_b32 s28, {s(sT)}, 4')
        for gi, d in enumerate((-1, 1, -2, 2)):
            A(f'v_add_u32 v36, {d}, v13')
            A(f'v_lshrrev_b32 v37, 8, v36')
            A(f'v_cmp_ne_u32 s[30:31], s28, v37')
            A(f'v_cmp_gt_u32 vcc, s27, v36')
            A(f'v_lshrrev_b32 v3, 4, v36')
            A(f'v_lshl_add_u32 v3, v3, 14, v38')
            A(f'v_and_b32 v36, 15, v36')
            A(f'v_lshl_add_u32 v3, v36, 4, v3')
            A(f'v_add_u32 v37, {s(sHH)}, v3')
            A(f'v_cndmask_b32 v3, v3, v37, s[30:31]')
            A(f'v_cndmask_b32 {v(FREE + gi)}, v39, v3, vcc')
        A(f's_mov_b32 s26, {H}')
        A(f's_and_b32 s30, {s(sT)}, 0x70')
        A(f's_or_b32 s31, {s(sT)}, 15')
        A(f'v_and_b32 v13, 2, {v(VLANE)}')
        A(f'v_add_u32 v13, -1, v13')
        A(f'v_bfe_u32 v38, {v(VLANE)}, 3, 1')
        A(f'v_mul_i32_i24 v13, v13, v38')
        A(f'v_add_u32 v13, {s(sT)}, v13')
        A(f'v_max_i32 v13, s30, v13')
        A(f'v_min_i32 v13, s31, v13')
        A(f'v_and_b32 v38, 0x1c, {v(VL4)}')
        A(f'v_lshl_add_u32 v13, v13, {CSH}, v38')
        A(f's_add_u32 s29, {s(sC)}, {C_H}')
        A(f'v_and_b32 v36, 1, {v(VLANE)}')
        A(f'v_bfe_u32 v37, {v(VLANE)}, 1, 1')
        A(f'v_lshlrev_b32 v36, 2, v36')
        A(f'v_lshl_add_u32 v36, v37, 4, v36')
        for i in range(0, 16, 2):
            A(f'v_pk_fma_f32 {v(acc + i, 2)}, {v(RES + i, 2)}, {v(VMR, 2)}, {v(VMR, 2)} op_sel:[0,1,0] op_sel_hi:[1,1,0] neg_lo:[0,0,1] neg_hi:[0,0,1]')
        self.poll(29, 13, 16)
        pk5 = self.lpeek(L_CR, 44)
        Lr = A.newlabel('rh')
        A(f's_cmp_eq_u32 {s(sRH)}, 0')
        A(f's_cbranch_scc1 {Lr}')
        A(f's_add_u32 s29, {s(sRH)}, {s(sC)}')
        self.poll(29, 36, 4, mode='atomic')
        A.label(Lr)
        self.pstamp()
        self.small_main(16, acc, buf, XR, 16, self.DS, lambda j: (26, (j & 3) * KB, FREE + (j >> 2)), map_w2, xsig=6, fsig=7, NB=7,
                        preread=lambda j: self.ltest(pk5, L_CR, 5, 44) if j == 7 else None)
        self.store_tile(acc, XR, X1, ST1)
        for i in range(0, 16, 2):
            A(f'v_pk_add_f32 {v(RES + i, 2)}, {v(RES + i, 2)}, {v(acc + i, 2)}')
        self.flag(sF8, C_X1 - CB)

    def stage_w3(self):
        A = self.A
        NT = 7
        ST, K, acc, buf, XR, CS = 32, 40, 48, 104, 160, 224
        self.big_pre(X1, ST1)
        A(f's_add_u32 s29, s29, {C_X1}')
        A(f's_mul_i32 s30, {s(sT0)}, {56 * KB}')
        A(f's_add_u32 s30, s30, {s(sP)}')
        A(f's_add_u32 s30, s30, {G}')
        A(f's_lshl_b32 s32, {s(sCG16)}, 9')
        A(f's_add_u32 s32, s32, s30')
        A(f's_add_u32 s32, s32, {48 * KB}')
        A(f's_mul_i32 s31, {s(sCG16)}, {3 * KB}')
        A(f's_add_u32 s30, s30, s31')
        A(f's_add_u32 s31, s30, {56 * KB}')
        A(f'v_bfe_u32 v3, {v(VLANE)}, 4, 1')
        A(f'v_mul_u32_u24 v13, {56 * KB}, v3')
        A(f'v_lshrrev_b32 v3, 5, {v(VLANE)}')
        A(f'v_lshl_add_u32 v13, v3, 8, v13')
        A(f'v_and_b32 v3, 0xf0, {v(VL16)}')
        A(f'v_add_u32 v13, v13, v3')
        self.lwait(L_CR, 6, 252)
        self.wpre(2, NT, buf, map_w3)
        self.poll(29, VP2, 16)
        self.pstamp()

        def f():
            for mt in range(2):
                self.stats_consume(ST + 4 * mt, 3)
                self.rstd(ST + 4 * mt + 2, ST + 4 * mt + 1)
                self.gelu_consts(K + 4 * mt, ST + 4 * mt + 2)
        self.big_main(NT, acc, buf, XR, ST, self.rec(f), map_w3, 13, 7, 8, 9)
        for mt in range(2):
            P = acc + 28 * mt
            A.wait(lg=A.lmark() - 1)
            self.ln_fix(P, 28, CS, ST + 4 * mt)
            out = 160 + 12 * mt
            self.gelu(P, 28, K + 4 * mt, buf, None)
            self.pack(out, buf, 12)
            self.pack(184 + 2 * mt, buf + 24, 2)
            lst = [(v(out + 4 * q, 4), 30 + mt, q * KB, VL16, 4, None) for q in range(3)]
            if mt == 1:
                A('v_permlane16_swap_b32 v184, v186')
                A('v_permlane16_swap_b32 v185, v187')
                lst.append((v(184, 4), 32, 0, 13, 4, None))
            self.stores(lst, sP if 'gsc1' in OPT else sFAST if ('gt' in OPT or 'gt2' in OPT) else sFG)
        self.flag(sF16, C_G - CB, two=True)

    def stage_w4(self, Lfinal):
        A = self.A
        XR, buf = 64, 144
        self.small_pre(G, 56)
        self.lwait(L_CR, 8, 252)
        self.wpre(6, 4, buf, map_w4)
        self.poll(29, VL4, 16, ioff=C_G - CB)
        self.pstamp()

        def hook2(j, t):
            if j == 16 and t == 3:
                self.sig(L_CF, 10)
            if j == 38 and t == 3:
                self.sig(L_CF, 11)

        preread = self.acheck([(11, L_CR, 9, 252, False, None), (39, L_CR, 10, 252, False, None)])
        self.small_main(56, RES, buf, XR, 20, self.D4, lambda j: (26, (j & 3) * KB, VL16), map_w4,
                        hook2=hook2, preread=preread, fsig=12, NB=6)
        A(f's_cmp_eq_u32 {s(sPAIR)}, 1')
        A(f's_cbranch_scc1 {Lfinal}')
        self.store_tile(RES, XR, X0, ST0, nextpair=True)
        self.flag(sF8, C_X - CB + CSTRIDE)

    def dump2(self):
        if not self.prof:
            return
        A = self.A
        A(f's_lshl_b32 s55, s2, 2')
        A(f's_add_u32 s55, s55, {s(SW)}')
        A(f's_lshl_b32 s55, s55, 1')
        A(f's_add_u32 s55, s55, {s(sPAIR)}')
        A(f's_lshl_b32 s55, s55, 8')
        A(f's_add_u32 s55, s55, {DBG + 512 * 128}')
        A(f'v_writelane_b32 v12, {s(sFAST)}, 61')
        A(f'buffer_store_dword v12, {v(VL4)}, {s(SRD, 4)}, s55 offen')

    def piece_decode(self, sp):
        A = self.A
        L3, L4, LJ = A.newlabel('pd3'), A.newlabel('pd4'), A.newlabel('pdj')
        A(f's_mov_b32 s46, 0')
        A(f's_cmp_ge_u32 {s(sp)}, 832')
        A(f's_cbranch_scc1 {L4}')
        A(f's_cmp_ge_u32 {s(sp)}, 384')
        A(f's_cbranch_scc1 {L3}')
        A(f's_lshr_b32 s28, {s(sp)}, 7')
        A(f's_and_b32 s29, {s(sp)}, 7')
        A(f's_bfe_u32 s30, {s(sp)}, 0x40003')
        A(f's_cmp_eq_u32 s28, 1')
        A(f's_cselect_b64 {s(SRD2, 2)}, {s(PA + 10, 2)}, {s(PA + 12, 2)}')
        A(f's_cmp_eq_u32 s28, 0')
        A(f's_cselect_b64 {s(SRD2, 2)}, {s(PA + 6, 2)}, {s(SRD2, 2)}')
        A(f's_mov_b32 {s(SRD2 + 2)}, {512 * KB}')
        A(f's_mov_b32 s41, 1024')
        A(f's_lshl_b32 s47, s28, 3')
        A(f's_add_u32 s47, s47, s29')
        A(f's_lshl_b32 s42, s47, 4')
        A(f's_add_u32 s42, s42, s30')
        A(f's_lshl_b32 s42, s42, 12')
        A(f's_add_u32 s42, s42, {WO}')
        for t in range(1, 4):
            A(f's_add_u32 {s(42 + t)}, s42, {t * KB}')
        A(f's_branch {LJ}')
        A.label(L3)
        A(f's_sub_u32 s28, {s(sp)}, 384')
        A(f's_and_b32 s30, s28, 15')
        A(f's_lshr_b32 s29, s28, 4')
        A(f's_mov_b64 {s(SRD2, 2)}, {s(PA + 14, 2)}')
        A(f's_mov_b32 {s(SRD2 + 2)}, {1792 * KB}')
        A(f's_mov_b32 s41, 3584')
        A(f's_add_u32 s47, s29, 24')
        A(f's_mul_i32 s31, s30, {7 * KB}')
        A(f's_add_u32 s31, s31, {W3}')
        for t in range(4):
            A(f's_lshl_b32 s28, s29, 2')
            A(f's_add_u32 s28, s28, {t}')
            A(f's_mul_i32 s32, s28, 43')
            A(f's_lshr_b32 s32, s32, 8')
            A(f's_mul_i32 s33, s32, 6')
            A(f's_sub_u32 s33, s28, s33')
            A(f's_sub_u32 s36, s28, 96')
            A(f's_cmp_ge_u32 s28, 96')
            A(f's_cselect_b32 s32, s36, s32')
            A(f's_cselect_b32 s33, 6, s33')
            A(f's_mul_i32 s32, s32, 112')
            A(f's_add_u32 s32, s32, s33')
            A(f's_lshl_b32 s32, s32, 10')
            A(f's_add_u32 {s(42 + t)}, s32, s31')
        A(f's_branch {LJ}')
        A.label(L4)
        A(f's_sub_u32 s28, {s(sp)}, 832')
        A(f's_and_b32 s29, s28, 7')
        A(f's_lshr_b32 s30, s28, 3')
        A(f's_mov_b64 {s(SRD2, 2)}, {s(PA + 16, 2)}')
        A(f's_mov_b32 {s(SRD2 + 2)}, {1792 * KB}')
        A(f's_mov_b32 s41, 1024')
        A(f's_add_u32 s47, s29, 52')
        A(f's_cmp_ge_u32 s30, 48')
        A(f's_cselect_b32 s46, 1, 0')
        A(f's_mul_i32 s42, s29, 56')
        A(f's_add_u32 s42, s42, s30')
        A(f's_lshl_b32 s42, s42, 12')
        A(f's_add_u32 s42, s42, {W4}')
        for t in range(1, 4):
            A(f's_add_u32 {s(42 + t)}, s42, {t * KB}')
        A.label(LJ)
        A(f's_mul_i32 s40, s30, s41')
        A(f's_lshl_b32 s40, s40, 5')
        A(f's_lshl_b32 s29, s29, 7')
        A(f's_add_u32 s40, s40, s29')
        A(f's_lshl_b32 s47, s47, 7')
        A(f's_add_u32 s47, s47, {PC}')
        A(f'v_lshrrev_b32 v40, 3, {v(VLANE)}')
        A(f'v_mul_u32_u24 v40, s41, v40')
        A(f'v_lshrrev_b32 v41, 1, {v(VLANE)}')
        A(f'v_lshrrev_b32 v42, 4, {v(VLANE)}')
        A(f'v_xor_b32 v41, v41, v42')
        A(f'v_and_b32 v41, 3, v41')
        A(f'v_lshl_add_u32 v40, v41, 5, v40')
        A(f'v_and_b32 v41, 1, {v(VLANE)}')
        A(f'v_lshl_add_u32 v40, v41, 4, v40')
        A(f's_lshl_b32 s41, s41, 3')
        for i in range(4):
            A(f's_add_u32 m0, s39, {i * KB}')
            self.dma(40, 0, voff=40, srd=SRD2)
            if i < 3:
                A(f's_add_u32 s40, s40, s41')
        return A.vmark()

    def piece_finish(self):
        A = self.A
        A(f's_cmp_eq_u32 s46, 1')
        A(f's_cselect_b32 s28, 8, 4')
        A(f's_cselect_b32 s29, 4, 16')
        A(f'v_lshrrev_b32 v41, 4, {v(VLANE)}')
        A(f'v_mul_u32_u24 v41, s28, v41')
        A(f'v_bfe_u32 v42, {v(VLANE)}, 2, 2')
        A(f'v_add_u32 v41, v41, v42')
        A(f'v_and_b32 v42, 3, {v(VLANE)}')
        A(f'v_lshlrev_b32 v42, 3, v42')
        A(f'v_add_u32 v42, s39, v42')
        for u in range(2):
            if u:
                A(f'v_add_u32 v41, s29, v41')
            A(f'v_bfe_u32 v43, v41, 1, 2')
            A(f'v_lshl_add_u32 v43, v43, 5, v42')
            A(f'v_lshl_add_u32 v43, v41, 7, v43')
            for t in range(4):
                A(f'v_xor_b32 v44, {32 * t}, v43')
                A(f'ds_read_b64_tr_b16 {v(48 + 4 * t + 2 * u, 2)}, v44')
        A.wait_all(vm=False)
        for t in range(4):
            A(f'buffer_store_dwordx4 {v(48 + 4 * t, 4)}, {v(VL16)}, {s(SRD, 4)}, {s(42 + t)} offen sc1')

    def count(self, sreg):
        A = self.A
        A('s_mov_b64 exec, 1')
        A(f'buffer_atomic_add {v(VONE)}, {v(VL4)}, {s(SRD, 4)}, {s(sreg)} offen')
        A('s_mov_b64 exec, -1')

    def cs_add(self, accs, addr):
        A = self.A
        A('s_mov_b32 exec_lo, 0x00010001')
        A('s_mov_b32 exec_hi, 0x00010001')
        for r, a_, off in accs:
            for i in range(4):
                A(f'ds_add_f32 {v(a_)}, {v(r + i)} offset:{off + 4 * i}')
                if A.lg - A.lg_done >= 14:
                    A.wait(lg=A.lmark() - 4)
        A('s_mov_b64 exec, -1')

    def loader(self):
        A = self.A
        sLW = 26
        ONES = 16
        A(f's_sub_u32 {s(sLW)}, {s(SW)}, 4')
        self.nstamp = 0
        if self.prof:
            A('v_mov_b32 v12, 0')
            A('s_memrealtime s[60:61]')
            A('s_waitcnt lgkmcnt(0)')
            A('v_writelane_b32 v12, s60, 63')
        self.pstamp()
        A(f's_mov_b64 {s(SRD2, 2)}, {s(PA + 4, 2)}')
        A(f's_mov_b32 {s(SRD2 + 2)}, {32 * 512}')
        A(f's_lshl_b32 s28, {s(sCG16)}, 10')
        A(f's_mov_b32 m0, {PHL}')
        self.dma(28, srd=SRD2)
        A(f's_mov_b64 {s(SRD2, 2)}, {s(PA + 2, 2)}')
        A(f's_mov_b32 {s(SRD2 + 2)}, {512 * 3072}')
        A(f'v_lshrrev_b32 v40, 2, {v(VLANE)}')
        A(f'v_mul_u32_u24 v40, 3072, v40')
        A(f'v_lshrrev_b32 v41, 4, {v(VLANE)}')
        A(f'v_xor_b32 v41, v41, {v(VLANE)}')
        A(f'v_and_b32 v41, 3, v41')
        A(f'v_lshl_add_u32 v40, v41, 4, v40')
        A(f's_mul_i32 s28, {s(sLW)}, {32 * 3072}')
        A(f's_lshl_b32 s29, {s(sCG16)}, 6')
        A(f's_add_u32 s28, s28, s29')
        A(f's_mul_i32 s38, {s(sLW)}, {6 * KB}')
        mw = []
        A('v_mov_b32 v47, v40')
        A('s_mov_b32 s59, s28')

        def wdma(c):
            for hr in range(2):
                for p in range(3):
                    A(f's_add_u32 m0, s38, {c * 24 * KB + p * 2 * KB + hr * KB - p * KB}')
                    A(f's_add_u32 s29, s59, {(c * 128 + hr * 16) * 3072}')
                    self.dma(29, p * KB, voff=47, srd=SRD2)
            mw.append(A.vmark())
        NPRE = self.NPRE
        for c in range(NPRE):
            wdma(c)
        A.wait_all(vm=False)
        self.pstamp()
        for i in range(4):
            A(f'v_mov_b32 {v(ONES + i)}, 0x3f803f80')
        A(f'v_mov_b32 {v(VONE)}, 1')
        A(f'v_and_b32 v32, 15, {v(VLANE)}')
        A(f'v_lshrrev_b32 v33, 4, {v(VLANE)}')
        A(f'v_lshrrev_b32 v34, 2, v32')
        A(f'v_lshrrev_b32 v35, 1, v33')
        A(f'v_xor_b32 v35, v35, v34')
        A(f'v_lshlrev_b32 v35, 4, v35')
        A(f'v_lshl_add_u32 v35, v32, 6, v35')
        A(f'v_and_b32 v36, 1, v33')
        A(f'v_lshl_add_u32 v35, v36, 3, v35')
        A(f'v_add_u32 v35, s38, v35')
        A(f'v_xor_b32 v36, 32, v35')
        A(f'v_bfe_u32 v37, {v(VLANE)}, 1, 1')
        A(f'v_xor_b32 v37, v37, v33')
        A(f'v_lshlrev_b32 v37, 4, v37')
        A(f'v_lshrrev_b32 v38, 2, {v(VLANE)}')
        A(f'v_lshl_add_u32 v37, v38, 6, v37')
        A(f'v_and_b32 v38, 1, {v(VLANE)}')
        A(f'v_lshl_add_u32 v37, v38, 3, v37')
        A(f'v_add_u32 v37, s38, v37')
        A(f'v_xor_b32 v38, 32, v37')
        A(f'v_lshlrev_b32 v39, 10, v34')
        A(f'v_lshl_add_u32 v39, v33, 8, v39')
        A(f'v_and_b32 v34, 3, v32')
        A(f'v_lshl_add_u32 v39, v34, 4, v39')
        A(f'v_add_u32 v39, s38, v39')
        A(f'v_add_u32 v45, s38, {v(VL16)}')
        A(f'v_lshlrev_b32 v46, 3, {v(VLANE)}')
        A(f'v_add_u32 v46, {PHL}, v46')
        A(f'v_lshlrev_b32 v30, 6, v33')
        A(f'v_add_u32 v30, {L_CSQ}, v30')
        A(f'v_lshlrev_b32 v31, 4, v33')
        A(f'v_add_u32 v31, {PERM}, v31')
        F, C, CSA = 80, 104, 136
        for r in (35, 36, 37, 38):
            A(f'v_add_u32 {v(r + 29)}, {48 * KB}, {v(r)}')

        def reads(c):
            R = 160 + 24 * c
            o = (c & 1) * 24 * KB
            ab = 35 if c < 2 else 64
            A.wait(vm=mw[c])
            if c == 0:
                A(f'ds_read_b64_tr_b16 v[20:21], v46')
                A(f'ds_read_b64_tr_b16 v[22:23], v46 offset:512')
            for hd in range(4):
                for u in range(2):
                    A(f'ds_read_b64 {v(R + 4 * hd + 2 * u, 2)}, {v(ab + (hd & 1))} offset:{o + (hd >> 1) * 2 * KB + u * KB}')
            for hh in range(2):
                for u in range(2):
                    A(f'ds_read_b64_tr_b16 {v(R + 16 + 4 * hh + 2 * u, 2)}, {v(ab + 2 + hh)} offset:{o + 4 * KB + u * KB}')
            return A.lmark()
        rm = reads(0)
        for c in range(4):
            R = 160 + 24 * c
            o = (c & 1) * 24 * KB
            A.wait(lg=rm)
            for hd in range(4):
                for u in range(2):
                    A(f'v_mfma_f32_16x16x16_bf16 {v(C + 8 * hd + 4 * u, 4)}, {v(R + 4 * hd + 2 * u, 2)}, {v(20 + 2 * (hd & 1), 2)}, 0')
            if c == 2:
                for r in (39, 45):
                    A(f'v_add_u32 {v(r)}, {48 * KB}, {v(r)}')
            for hh in range(2):
                A(f'ds_write_b128 v45, {v(R + 16 + 4 * hh, 4)} offset:{o + (4 + hh) * KB}')
            if c < 3 and NPRE >= 3:
                rm = reads(c + 1)
            for hd in range(4):
                self.pack(R + 4 * hd, C + 8 * hd, 4)
                A(f'ds_write_b128 v39, {v(R + 4 * hd, 4)} offset:{o + hd * 64}')
            if c + NPRE < 4:
                wdma(c + NPRE)
            if c + NPRE == 4:
                A(f's_lshl_b32 s39, {s(sLW)}, 12')
                A(f's_add_u32 s39, s39, {PST}')
                A(f's_lshl_b32 s49, s2, 2')
                A(f's_add_u32 s49, s49, {s(sLW)}')
                m_p1 = self.piece_decode(49)
            if c < 3 and NPRE < 3:
                rm = reads(c + 1)
        self.sig(L_CR, 2)
        A.wait_all(vm=False)
        self.pstamp()
        for c in range(4):
            for t in range(6):
                A(f'v_mfma_f32_16x16x32_bf16 {v(CSA + 4 * t, 4)}, {v(160 + 24 * c + 4 * t, 4)}, {v(ONES, 4)}, {"0" if c == 0 else v(CSA + 4 * t, 4)}')
        self.cs_add([(CSA + 4 * hd, 30, hd * 16) for hd in range(4)] + [(CSA + 16 + 4 * hh, 31, (4 + hh) * 64) for hh in range(2)], None)
        self.sig(L_CS, 1, absv=True)
        A.wait_all(vm=False)
        self.pstamp()
        bases = {}
        for r, (nm, WP, scg, sz) in enumerate((('q', WQKV, sCG16, 96), ('o', WO, sCG8, 64), ('1', W1, sCG8, 64), ('2', W2, sCG8, 64),
                                               ('3', W3, sCG16, 112), ('4', W4, sCG8, 224))):
            A(f's_mul_i32 {s(52 + r)}, {s(scg)}, {sz * KB}')
            A(f's_add_u32 {s(52 + r)}, {s(52 + r)}, {WP}')
            bases[nm] = 52 + r
        Lq = A.newlabel('nq')
        A.wait_all(vm=False)
        A(f's_and_b32 s28, {s(sT0)}, 3')
        A(f's_cmp_lg_u32 s28, {s(sLW)}')
        A(f's_cbranch_scc1 {Lq}')
        A(f's_mul_i32 s28, {s(sT0)}, {6 * KB}')
        A(f'v_add_u32 v45, s28, {v(VL16)}')
        A(f's_add_u32 s28, s28, s52')
        A(f's_add_u32 s29, s28, 4096')
        for t in range(6):
            A(f'ds_read_b128 {v(F + 4 * t, 4)}, v45 offset:{t * KB}')
        A.wait_all(vm=False)
        vm0 = A.vm
        for t in range(6):
            A(f'buffer_store_dwordx4 {v(F + 4 * t, 4)}, {v(VL16)}, {s(SRD, 4)}, {s(28 + (t >> 2))} offen offset:{(t & 3) * KB} sc1')
        A.vm = vm0
        A.label(Lq)
        A('s_waitcnt vmcnt(6)')
        A(f's_cbranch_scc0 {Lq}b')
        A('s_waitcnt vmcnt(0)')
        A.label(Lq + 'b')
        A.vm_done = A.vm
        self.piece_finish()
        self.pstamp()
        Ln = A.newlabel('nochk')
        A(f's_cmp_lg_u32 {s(sLW)}, 0')
        A(f's_cbranch_scc1 {Ln}')
        A('s_mov_b32 s31, 0')
        self.poll(31, VL4, 1, target=32, mode='load', srd=SRDD)
        A(f'ds_write_b32 {v(VPERM)}, {v(VONE)} offset:{L_INIT - L_CF}')
        A('s_getreg_b32 s30, hwreg(HW_REG_XCC_ID)')
        A('s_and_b32 s30, s30, 15')
        A('s_mul_i32 s31, s30, s30')
        A('s_lshl_b32 s31, s31, 16')
        A('s_lshl_b32 s30, s30, 7')
        A('s_add_u32 s30, s30, s31')
        A('s_add_u32 s58, s30, 1')
        A('v_mov_b32 v10, s58')
        A('s_and_b32 s59, s2, 7')
        A('s_lshl_b32 s59, s59, 7')
        A(f's_add_u32 s59, s59, {XW}')
        A('s_mov_b64 exec, 1')
        A(f'buffer_atomic_add v10, {v(VL4)}, {s(SRD, 4)}, s59 offen')
        A('s_mov_b64 exec, -1')
        A.wait_all(vm=False)
        A.label(Ln)
        self.lwait(L_INIT, 1, 24, sleep=2, single=True)
        self.pstamp()
        A('s_waitcnt vmcnt(0)')
        self.pstamp()
        A.vm_done = A.vm
        self.count(47)
        L2 = A.newlabel('ncq')
        A(f's_and_b32 s28, {s(sT0)}, 3')
        A(f's_cmp_lg_u32 s28, {s(sLW)}')
        A(f's_cbranch_scc1 {L2}')
        A(f's_lshl_b32 s28, {s(sCG16)}, 7')
        A(f's_add_u32 s28, s28, {PC + 60 * 128}')
        self.count(28)
        A.label(L2)
        L2 = A.newlabel('np2')
        A('s_cmp_lt_u32 s2, 192')
        A(f's_cbranch_scc1 {L2}')
        A(f's_add_u32 s49, s49, 256')
        self.piece_decode(49)
        A.wait_all()
        self.piece_finish()
        A.wait_all()
        self.count(47)
        A.label(L2)
        self.sig(L_CS, 2, absv=True)
        self.lwait(L_CS, 2, 24, sleep=1, absv=True)
        A('s_lshr_b32 s34, s2, 3')
        A('s_lshl_b32 s34, s34, 2')
        A(f's_add_u32 s34, s34, {s(sLW)}')
        A(f'v_lshlrev_b32 v21, 7, {v(VLANE)}')
        A(f's_lshl_b32 s37, {s(sLW)}, 10')
        L, L3 = A.newlabel('lloop'), A.newlabel('lb3')
        A(f's_branch {L3}')
        A.label(L)

        def run(nm, src0, lds0, n):
            for i in range(0, n, 4):
                if i + 4 <= n:
                    A(f's_add_u32 m0, s37, {lds0 + i * KB}')
                    A(f's_add_u32 s28, s37, {src0 + i * KB}')
                else:
                    A(f's_min_u32 s28, s37, {(n - 1 - i) * KB}')
                    A(f's_add_u32 m0, s28, {lds0 + i * KB}')
                    A(f's_add_u32 s28, s28, {src0 + i * KB}')
                A(f's_add_u32 s28, s28, {s(bases[nm])}')
                self.dma(28)

        def steps(nm, lmap, NT, j0, j1):
            j = j0
            while j < j1:
                e = j + 1
                while e < j1 and lmap(e) == lmap(e - 1) + NT * KB:
                    e += 1
                run(nm, j * NT * KB, lmap(j), (e - j) * NT)
                j = e

        def only(pair, fn):
            Lx = A.newlabel('only')
            A.wait_all(vm=False)
            A(f's_cmp_lg_u32 {s(sPAIR)}, {pair}')
            A(f's_cbranch_scc1 {Lx}')
            vmd = A.vm_done
            fn()
            A.wait_all(vm=False)
            A.vm_done = vmd
            A.label(Lx)

        def touch(base, size):
            share = size // 128
            A(f's_mul_i32 s33, s34, {share}')
            A(f's_add_u32 s33, s33, {base}')
            vm0 = A.vm
            for i in range((share + 8191) // 8192):
                A(f'buffer_load_dword v20, v21, {s(SRD, 4)}, s33 offen')
                A(f's_add_u32 s33, s33, 8192')
            A.vm = vm0

        PK_ = 28

        def pfl(base, size, trig):
            self.lwait(L_PS, trig, 24, sleep=2)
            share = size // 128
            lines = share // 128
            A(f's_mul_i32 s33, s34, {share}')
            A(f's_add_u32 s33, s33, {base}')
            A(f's_mov_b64 exec, {(1 << PK_) - 1:#x}')
            A(f's_mov_b32 s36, {(lines + PK_ - 1) // PK_}')
            Lp_ = A.newlabel('pf')
            A.label(Lp_)
            A(f'buffer_load_dword v20, v21, {s(SRD, 4)}, s33 offen')
            A(f's_add_u32 s33, s33, {PK_ * 128}')
            A('s_sub_u32 s36, s36, 1')
            A('s_cmp_lg_u32 s36, 0')
            A('s_waitcnt vmcnt(0)')
            A(f's_cbranch_scc1 {Lp_}')
            A('s_mov_b64 exec, -1')

        def need(idx0, scg, n, stride, target):
            A(f's_lshl_b32 s33, {s(scg)}, 7')
            A(f's_add_u32 s33, s33, {PC + idx0 * 128}')
            A(f'v_mul_u32_u24 v23, {stride}, v21')
            self.poll(33, 23, n, target=target, mode='load')

        def need3():
            A(f's_mul_i32 s33, {s(sCG16)}, 6')
            A(f's_lshr_b32 s33, s33, 2')
            A(f'v_add_u32 v23, s33, {v(VLANE)}')
            A(f's_lshr_b32 s33, {s(sCG16)}, 2')
            A(f's_add_u32 s33, s33, 24')
            A(f'v_writelane_b32 v23, s33, 2')
            A(f'v_lshlrev_b32 v23, 7, v23')
            A(f's_mov_b32 s33, {PC + 24 * 128}')
            self.poll(33, 23, 3, target=16, mode='load')

        def cs_build(k, lmap, NT, loc, val):
            self.lwait(L_CR, k, 24, sleep=1)
            st = NT * KB
            A(f's_mul_i32 s28, {s(sLW)}, {st}')
            base = min(lmap(j) for j in range(16))
            assert sorted(lmap(j) for j in range(16)) == [base + j * st for j in range(16)]
            A(f's_add_u32 s28, s28, {base}')
            A(f'v_add_u32 v45, s28, {v(VL16)}')
            for c in range(4):
                for t in range(NT):
                    A(f'ds_read_b128 {v(64 + 4 * t, 4)}, v45 offset:{(c & 1) * 4 * st + t * KB}')
                A.wait_all(vm=False)
                for t in range(NT):
                    A(f'v_mfma_f32_16x16x32_bf16 {v(CSA + 4 * t, 4)}, {v(64 + 4 * t, 4)}, {v(ONES, 4)}, {"0" if c == 0 else v(CSA + 4 * t, 4)}')
                if c == 1:
                    A(f'v_add_u32 v45, {8 * st}, v45')
            self.cs_add([(CSA + 4 * t, 31, loc - PERM + t * 64) for t in range(NT)], None)
            self.sig(L_CS, val, absv=True)

        def batch(k, parts, after=None):
            self.lwait(L_CF, k, 24, sleep=2)
            for p in parts:
                steps(*p)
            m = A.vmark()
            if after:
                after()
            A.wait(vm=m)
            self.sig(L_CR, k)
        A.vm_done = A.vm
        need(60, sCG16, 1, 0, 16)
        batch(1, [('q', map_q, 6, 0, 14)])
        batch(2, [('q', map_q, 6, 14, 16)])
        if 'nopq' not in OPT:
            pfl(W2, 1536 * KB, 1)
        if 'pq2' in OPT:
            pfl(W1 + 256 * KB, 2048 * KB, 1)
        A.wait_all(vm=False)
        A.label(L3)
        def ldump():
            need(0, sCG8, 3, 8, 16)
            Ln = A.newlabel('nomode')
            A(f's_cmp_lg_u32 {s(sLW)}, 0')
            A(f's_cbranch_scc1 {Ln}')
            self.poll(59, VL4, 1, target=32, mode='load', mask=0x7f)
            A('v_readfirstlane_b32 s30, v3')
            A('s_lshl_b32 s31, s58, 5')
            A('s_cmp_eq_u32 s30, s31')
            A(f's_cselect_b32 s33, {1 if "slow" in OPT else 2}, 1')
            A('v_mov_b32 v3, s33')
            A(f'ds_write_b32 {v(VPERM)}, v3 offset:{L_MODE - L_CF}')
            A.wait_all(vm=False)
            A.label(Ln)
            if self.prof:
                self.pstamp()
                A(f's_lshl_b32 s33, s2, 2')
                A(f's_add_u32 s33, s33, {s(sLW)}')
                A(f's_lshl_b32 s33, s33, 8')
                A(f's_add_u32 s33, s33, {DBG + 1024 * KB}')
                A(f'buffer_store_dword v12, {v(VL4)}, {s(SRD, 4)}, s33 offen')
        only(0, ldump)
        batch(3, [('o', map_wo, 4, 0, 16), ('1', map_w1, 4, 0, 12)])
        if 'touch' in OPT:
            only(1, lambda: touch(W3, 1024 * KB))
        batch(4, [('1', map_w1, 4, 12, 16), ('2', map_w2, 4, 0, 7)])
        only(0, lambda: (cs_build(4, map_w1, 4, L_CS1, 3), A.wait_all(vm=False), need3()))
        batch(5, [('2', map_w2, 4, 7, 16), ('3', map_w3, 7, 0, 3)])
        batch(6, [('3', map_w3, 7, 3, 13)])
        batch(7, [('3', map_w3, 7, 13, 16)])
        only(0, lambda: (cs_build(7, map_w3, 7, L_CS3, 4), A.wait_all(vm=False), need(52, sCG8, 1, 0, 56)))
        RG = int([o[2:] for o in OPT if o.startswith('rg')][0]) if any(o.startswith('rg') for o in OPT) else 99

        def regload():
            A(f's_add_u32 s28, s37, {s(bases["4"])}')
            A(f's_add_u32 s28, s28, {39 * 4 * KB}')
            for i in range(17):
                self.ldx(v(164 + 4 * i, 4), 28, sc=' sc1')
                A(f's_add_u32 s28, s28, {4 * KB}')
                if i % RG == RG - 1:
                    A.wait_all(lg=False)
        if 'v2' in OPT:
            self.lwait(L_PS, 2, 24, sleep=2)
            regload()
            batch(8, [('4', map_w4, 4, 0, 11)])
        elif 'v3' in OPT:
            batch(8, [('4', map_w4, 4, 0, 11)], regload)
        else:
            def gtouch():
                Lt = A.newlabel('gt')
                A(f'ds_read_b32 v24, {v(VPERM)} offset:{L_MODE - L_CF}')
                A.wait_all(vm=False)
                A('v_readfirstlane_b32 s33, v24')
                A('s_cmp_lg_u32 s33, 2')
                A(f's_cbranch_scc1 {Lt}')
                A(f's_mul_i32 s33, s34, {7 * KB}')
                A('s_and_b32 s36, s2, 7')
                A(f's_mul_i32 s36, s36, {896 * KB}')
                A('s_add_u32 s33, s33, s36')
                A(f's_add_u32 s33, s33, {G}')
                A('s_mov_b32 exec_hi, 0xffffff')
                A(f'buffer_load_dword v20, v21, {s(SRD, 4)}, s33 offen')
                A('s_mov_b32 exec_hi, -1')
                A.label(Lt)
            self.lwait(L_PS, 2, 24, sleep=2)
            if 'gt' in OPT:
                gtouch()
            steps('4', map_w4, 4, 0, 11)
            if 'gt2' in OPT:
                gtouch()
            A.wait_all(lg=False)
            self.sig(L_CR, 8)
            self.lwait(L_CF, 8, 24, sleep=2)
            regload()
        batch(9, [('4', map_w4, 4, 11, 39)])
        if 'noreg' not in OPT:
            A(f'v_add_u32 v45, s37, {v(VL16)}')
            A(f'v_add_u32 v45, {map_w4(50)}, v45')
            A(f'v_add_u32 v46, {32 * KB}, v45')
            self.lwait(L_CF, 10, 24, sleep=2)
            for i in range(17):
                o_ = map_w4(39 + i) - map_w4(50)
                A(f'ds_write_b128 {v(45 + (o_ >= 32 * KB))}, {v(164 + 4 * i, 4)} offset:{o_ - 32 * KB * (o_ >= 32 * KB)}')
            self.sig(L_CR, 10)
        else:
            batch(10, [('4', map_w4, 4, 39, 56)])
        A.wait_all()
        A(f's_add_u32 {s(sEV)}, {s(sEV)}, 10')
        A(f's_add_u32 {s(sPAIR)}, {s(sPAIR)}, 1')
        A(f's_cmp_lt_u32 {s(sPAIR)}, 2')
        A(f's_cbranch_scc1 {L}')
        A('s_endpgm')

    def main(self):
        A = self.A
        name = NAME + '_kernel'
        A.reset_kernel()
        A.raw('.p2align 8')
        A.raw(f'.globl {name}')
        A.raw(f'.type {name},@function')
        A.label(name)
        self.exit = A.newlabel('exit')
        A('s_cmp_ge_u32 s2, 256')
        A(f's_cbranch_scc1 {self.exit}')
        A(f's_load_dwordx16 {s(PA, 16)}, s[0:1], 0')
        A(f's_load_dwordx8 {s(PA + 16, 8)}, s[0:1], 64')
        if self.prof or 'dbgt' in OPT:
            A('s_memrealtime s[62:63]')
        Lpc = A.newlabel('pc')
        A('s_getpc_b64 s[40:41]')
        A.label(Lpc)
        A('v_lshlrev_b32 v3, 7, v0')
        A(f'v_min_u32 v3, code_end-{Lpc}-4, v3')
        A('global_load_dword v13, v3, s[40:41]')
        A(f'v_and_b32 {v(VLANE)}, 63, v0')
        A(f'v_lshrrev_b32 v3, 6, v0')
        A(f'v_lshlrev_b32 {v(VL16)}, 4, {v(VLANE)}')
        A(f'v_readfirstlane_b32 {s(SW)}, v3')
        A(f's_mov_b32 {s(SRD + 2)}, {WS_USED}')
        A(f's_mov_b32 {s(SRD + 3)}, 0x00020000')
        A(f's_mov_b32 {s(SRD2 + 3)}, 0x00020000')
        A(f's_mov_b32 {s(SRDD + 2)}, 256')
        A(f's_mov_b32 {s(SRDD + 3)}, 0x00020000')
        self.tile64(sT, sCG8)
        self.tile128(sT0, sCG16)
        A(f's_mov_b32 {s(sPAIR)}, 0')
        A(f's_mov_b32 {s(sTO)}, 0x40000')
        A(f'v_lshlrev_b32 {v(VL4)}, 2, {v(VLANE)}')
        A(f's_mov_b32 {s(sEV)}, 0')
        A(f'v_mov_b32 {v(VPERM)}, {L_CF}')
        A(f's_and_b32 s26, {s(SW)}, 3')
        A(f's_lshl_b32 s26, s26, 2')
        A(f'v_add_u32 {v(VOWN)}, s26, {v(VPERM)}')
        A(f'v_cmp_gt_u32 vcc, 4, {v(VLANE)}')
        A(f'v_cndmask_b32 v3, 0, 2, vcc')
        A(f'v_add_u32 v10, {v(VL4)}, {v(VPERM)}')
        A(f'ds_write_b32 v10, v3')
        A(f'v_lshlrev_b32 v10, 2, v0')
        A(f'v_add_u32 v10, {PERM}, v10')
        A(f'v_mov_b32 v11, 0')
        A(f'ds_write_b32 v10, v11')
        LC = A.newlabel('compute')
        A('s_waitcnt lgkmcnt(0)')
        A.lg_done = A.lg
        A(f's_mov_b64 {s(SRD, 2)}, {s(PA + 22, 2)}')
        A(f's_mov_b64 {s(SRDD, 2)}, {s(PA + 20, 2)}')
        if 'wpf' in OPT:
            A('s_lshr_b32 s26, s2, 3')
            A('s_lshl_b32 s27, s2, 2')
            A('s_add_u32 s26, s26, s27')
            A('s_and_b32 s26, s26, 31')
            A('s_lshl_b32 s26, s26, 3')
            A(f's_add_u32 s26, s26, {s(SW)}')
            A(f's_mul_i32 s26, s26, 6144')
            A(f's_mov_b64 {s(SRD2, 2)}, {s(PA + 2, 2)}')
            A(f's_mov_b32 {s(SRD2 + 2)}, {512 * 3072}')
            A(f'v_lshlrev_b32 v10, 7, {v(VLANE)}')
            A('s_mov_b32 exec_hi, 0xffff')
            A(f'buffer_load_dword v13, v10, {s(SRD2, 4)}, s26 offen')
            A('s_mov_b32 exec_hi, -1')
        A(f's_cmp_lt_u32 {s(SW)}, 4')
        A('s_barrier')
        A(f's_cbranch_scc1 {LC}')
        self.loader()
        A.label(LC)
        A.flush_hazards()
        A.vm = A.vm_done = A.lg = A.lg_done = 0
        A('s_setprio 3')
        A(f's_lshl_b32 {s(sT0)}, {s(sT0)}, 3')
        A(f's_lshl_b32 s26, {s(SW)}, 1')
        A(f's_add_u32 {s(sT0)}, {s(sT0)}, s26')
        Lz = A.newlabel('nz')
        A(f's_cmp_lt_u32 s2, 32')
        A(f's_cselect_b32 s58, {s(SW)}, 0')
        A(f's_cmp_lg_u32 s58, 3')
        A(f's_cbranch_scc1 {Lz}')
        for i in range(4):
            A(f'v_mov_b32 {v(28 + i)}, 0')
        A(f's_mul_i32 s28, s2, {9 * KB}')
        A(f's_add_u32 s28, s28, {ZR}')
        for i in range(9):
            A(f'buffer_store_dwordx4 v[28:31], {v(VL16)}, {s(SRD, 4)}, s28 offen offset:{(i % 3) * KB} sc1')
            if i % 3 == 2:
                A(f's_add_u32 s28, s28, {3 * KB}')
        A.label(Lz)
        A.vm_done = A.vm
        A('s_nop 0')
        A(f's_mov_b64 {s(SRD2, 2)}, {s(PA, 2)}')
        A(f's_mov_b32 {s(SRD2 + 2)}, {2048 * 512 * 2}')
        A(f'v_lshrrev_b32 v3, 4, {v(VLANE)}')
        A(f'v_and_b32 v10, 0xf0, {v(VL16)}')
        A(f'v_lshl_add_u32 v10, v3, 10, v10')
        A(f's_lshl_b32 s26, {s(sT0)}, 14')
        for i in range(1, 8):
            A(f's_add_u32 {s(26 + i)}, s26, {i * 4096}')
        PB = [32, 224, 160, 192]
        self.x0m = []
        for q4 in range(4):
            for mt in range(2):
                for n in range(4):
                    self.ld(v(PB[q4] + 16 * mt + 4 * n, 4), 26 + 4 * mt + n, 256 * q4, voff=10, srd=SRD2)
                self.x0m.append(A.vmark())
        A(f's_mov_b32 {s(sP)}, 0')
        A(f's_mov_b32 {s(sZ)}, 0')
        A(f's_mov_b32 {s(sC)}, 0')
        A(f's_mov_b32 {s(sFAST)}, 0')
        A(f's_mov_b32 {s(sFG)}, 0')
        A(f's_lshl_b32 {s(sT)}, {s(sT)}, 2')
        A(f's_add_u32 {s(sT)}, {s(sT)}, {s(SW)}')
        A(f's_lshl_b32 {s(sTILE)}, {s(sT)}, 14')
        A(f's_lshl_b32 s26, {s(sCG8)}, 11')
        A(f's_add_u32 {s(sTILE)}, {s(sTILE)}, s26')
        A(f's_lshl_b32 {s(sSTP)}, {s(sT)}, 10')
        A(f's_lshl_b32 s26, {s(sCG8)}, 7')
        A(f's_add_u32 {s(sSTP)}, {s(sSTP)}, s26')
        A(f's_mov_b32 {s(sHH)}, {HH - H}')
        A(f's_and_b32 s26, {s(sT)}, 15')
        A(f's_bitcmp1_b32 {s(sCG8)}, 1')
        A(f's_cselect_b32 s27, 0, 15')
        A(f's_cmp_eq_u32 s26, s27')
        A(f's_cselect_b32 {s(sFH)}, 1, 0')
        A(f's_lshl_b32 s27, {s(sT)}, {CSH}')
        A(f's_add_u32 s28, s27, {C_HH - (1 << CSH)}')
        A(f's_add_u32 s27, s27, {C_HH + (1 << CSH) + 8}')
        A(f's_cmp_eq_u32 s26, 15')
        A(f's_cselect_b32 {s(sRH)}, s27, 0')
        A(f's_cmp_eq_u32 s26, 0')
        A(f's_cselect_b32 {s(sRH)}, s28, {s(sRH)}')
        A(f's_cmp_eq_u32 {s(sT)}, 0')
        A(f's_cselect_b32 {s(sRH)}, 0, {s(sRH)}')
        A(f's_cmp_eq_u32 {s(sT)}, 127')
        A(f's_cselect_b32 {s(sRH)}, 0, {s(sRH)}')
        for f, t, c in ((sF8, sT, sCG8), (sF16, sT0, sCG16)):
            A(f's_lshl_b32 {s(f)}, {s(t)}, {CSH}')
            A(f's_lshl_b32 s26, {s(c)}, 2')
            A(f's_add_u32 {s(f)}, {s(f)}, s26')
            A(f's_add_u32 {s(f)}, {s(f)}, {CB}')
        A(f'v_add_u32 {v(VB64)}, 0x10000, {v(VL16)}')
        A(f'v_add_u32 {v(VB128)}, 0x20000, {v(VL16)}')
        A(f'v_and_b32 {v(VSTL)}, 0x300, {v(VL16)}')
        A(f'v_and_b32 v3, 15, {v(VLANE)}')
        A(f'v_lshl_add_u32 {v(VSTL)}, v3, 3, {v(VSTL)}')
        A(f'v_mov_b32 {v(VONE)}, 1')
        A(f'v_lshrrev_b32 {v(VP2)}, 3, {v(VLANE)}')
        A(f'v_and_b32 v3, 0x1c, {v(VL4)}')
        A(f'v_lshl_add_u32 {v(VP2)}, {v(VP2)}, {CSH}, v3')
        A('v_mov_b32 v12, 0')
        if self.prof:
            A('v_writelane_b32 v12, s62, 60')
        A.wait(vm=self.x0m[0])
        A(f's_cmp_eq_u32 s58, 3')
        A('s_cselect_b32 s31, 0, 0x1000')
        A('s_mov_b64 exec, 1')
        A(f'buffer_atomic_add {v(VONE)}, {v(VL4)}, {s(SRDD, 4)}, s31 offen')
        A('s_mov_b64 exec, -1')
        self.Lp = A.newlabel('pair')
        Lfinal = A.newlabel('final')
        self.stage_qkv()
        self.stage_wo()
        self.stage_w1()
        self.stage_w2()
        self.stage_w3()
        self.stage_w4(Lfinal)
        self.dump2()
        if 'dbgt' in OPT:
            A('s_memrealtime s[60:61]')
            A('s_waitcnt lgkmcnt(0)')
            A('s_mov_b32 s94, s60')
        A(f's_mov_b32 {s(sPAIR)}, 1')
        A(f's_mov_b32 {s(sEV)}, 10')
        A(f's_mov_b32 {s(sHH)}, {HH - H + 2048 * KB}')
        A(f's_mov_b32 {s(sFG)}, {s(sFAST)}')
        A(f's_mov_b32 {s(sZ)}, {ZSTRIDE}')
        A(f's_mov_b32 {s(sC)}, {CSTRIDE}')
        A(f's_add_u32 {s(sF8)}, {s(sF8)}, {CSTRIDE}')
        A(f's_add_u32 {s(sF16)}, {s(sF16)}, {CSTRIDE}')
        A(f's_branch {self.Lp}')
        A.label(Lfinal)
        buf = 64
        A(f's_mov_b64 {s(SRD2, 2)}, {s(PA + 18, 2)}')
        A(f'v_and_b32 v13, 15, {v(VLANE)}')
        A(f'v_lshlrev_b32 v13, 10, v13')
        A(f'v_bfe_u32 v3, {v(VLANE)}, 4, 1')
        A(f'v_lshl_add_u32 v13, v3, 5, v13')
        A(f'v_lshrrev_b32 v3, 5, {v(VLANE)}')
        A(f'v_lshl_add_u32 v13, v3, 4, v13')
        A(f's_lshl_b32 s28, {s(sT)}, 14')
        A(f's_lshl_b32 s29, {s(sCG8)}, 7')
        A(f's_add_u32 s28, s28, s29')
        self.pack(buf, RES, 8)
        for q in range(2):
            b = buf + 4 * q
            A(f'v_permlane16_swap_b32 {v(b)}, {v(b + 2)}')
            A(f'v_permlane16_swap_b32 {v(b + 1)}, {v(b + 3)}')
        for q in range(2):
            self.st(v(buf + 4 * q, 4), 28, 64 * q, voff=13, srd=SRD2)
        if 'dbgt' in OPT:
            A('s_not_b32 s62, s62')
            A('v_mov_b32 v12, s62')
            A('s_mov_b64 exec, 1')
            A(f'buffer_atomic_umax v12, {v(VL4)}, {s(SRDD, 4)}, 0 offen offset:32')
            A('s_mov_b64 exec, -1')
        self.dbgt(9)
        for i_, r_ in enumerate((92, 93, 94)):
            if 'dbgt' in OPT:
                A(f'v_mov_b32 v12, {s(r_)}')
                A('s_mov_b64 exec, 1')
                A(f'buffer_atomic_umax v12, {v(VL4)}, {s(SRDD, 4)}, 0 offen offset:{40 + 4 * i_}')
                A('s_mov_b64 exec, -1')
        if self.prof:
            A('s_memrealtime s[60:61]')
            A('s_waitcnt lgkmcnt(0)')
            A('v_writelane_b32 v12, s60, 62')
        self.dump2()
        A.label(self.exit)
        A('s_endpgm')
        A.label('code_end')
        self.kernels.append((name, A.maxv + 1, (A.maxv + 4) // 4 * 4, A.maxs + 1))

    def build(self, hdr):
        self.main()
        out = [hdr]
        out.append(f'; @launch grid=(256,1,1) block=(512,1,1) lds={160 * KB}')
        out.append('.amdgcn_target "amdgcn-amd-amdhsa--gfx950"')
        out.append('.text')
        out.append(self.A.text())
        out.append('.section .rodata,"a"')
        for n, nv, accum, ns in self.kernels:
            assert nv <= 256
            out.append('.p2align 6')
            out.append(f'.amdhsa_kernel {n}')
            out.append(f'  .amdhsa_next_free_vgpr {nv}')
            out.append(f'  .amdhsa_next_free_sgpr {max(ns, 16)}')
            out.append(f'  .amdhsa_accum_offset {accum}')
            out.append('  .amdhsa_group_segment_fixed_size 0')
            out.append('  .amdhsa_kernarg_size 96')
            out.append('  .amdhsa_user_sgpr_count 2')
            out.append('  .amdhsa_user_sgpr_kernarg_segment_ptr 1')
            out.append('  .amdhsa_system_sgpr_workgroup_id_x 1')
            out.append('  .amdhsa_float_denorm_mode_32 3')
            out.append('.end_amdhsa_kernel')
        return '\n'.join(out) + '\n'


if __name__ == '__main__':
    OPT.add('d2early')
    g = Gen3()
    g.prof = 'prof' in OPT
    txt = g.build(header())
    out = sys.argv[1]
    if out == '-':
        out = f'cdna_kernels/{NAME}.s'
    open(out, 'w').write(txt)
    json.dump(LAYOUT, open('layout.json', 'w'))
    for k in g.kernels:
        print(k)
    print('nops inserted', g.A.nops, 'ws used', WS_USED, 'stamps', g.nstamp)
```

```python
import sys, json
import gen as G1
from gen import Gen, KB, NAME, f32, LOG2E, OOB, SRD, SW, SRD2, VL16, VLANE, header
from asmlib import v, a, s

OPT = set(sys.argv[2:])

_off = 0
def _alloc(n):
    global _off
    r = _off
    _off += (n + 4095) // 4096 * 4096
    return r
WQKV = _alloc(1536 * KB); WO = _alloc(512 * KB); W1 = _alloc(512 * KB); W2 = _alloc(512 * KB)
W3 = _alloc(1792 * KB); W4 = _alloc(1792 * KB)
CSQ = _alloc(16 * KB); CS1 = _alloc(8 * KB); CS3 = _alloc(16 * KB); DUMMY = _alloc(4 * KB)
ZR = _alloc(288 * KB)
ZSTRIDE = 68 * KB
KV = ZR
Z = KV + 64 * KB
PC = ZR + 136 * KB
XW = ZR + 146 * KB
CSH = 10
CB = ZR + 160 * KB
C_X, C_O, C_XA, C_H, C_X1, C_G, C_KV, C_HH = [CB + 128 * i for i in range(8)]
CSTRIDE = 64
X0 = _alloc(2048 * KB); ST0 = _alloc(128 * KB); OB = _alloc(2048 * KB); G = _alloc(7168 * KB)
HH = _alloc(4096 * KB)
XA = X1 = X0
STA = ST1 = ST0
H = OB
PSTRIDE = 0
DBG = _alloc(16 * 512 * 128 * 2)
WS_USED = _off
LAYOUT = {k: val for k, val in globals().items() if k.isupper() and isinstance(val, int)}
for k_, v_ in LAYOUT.items():
    setattr(G1, k_, v_)

sT, sCG8, sT0, sCG16, sP, sPAIR, sZ, sTO = 16, 17, 18, 19, 20, 21, 22, 23
sTILE, sSTP, sC, sFAST, sFH = 24, 25, 44, 45, 46
sFG = 49
sHH, sRH = 52, 53
sF8, sF16 = 47, 48
VB64, VB128, VSTL, VL4, VONE, VP2 = 4, 5, 6, 7, 8, 9
VMR = 10
RES = 16
FREE = 32
PERM = 156 * KB
L_CSQ, L_CS1, L_CS3 = PERM, PERM + 384, PERM + 640
L_CF, L_CR, L_CB, L_MODE, L_GO = PERM + 2048, PERM + 2064, PERM + 2080, PERM + 2096, PERM + 2100
L_PS = PERM + 2112
L_CS = PERM + 2128
L_INIT = PERM + 2104
L_KD = PERM + 2176
L_ST = PERM + 2148
PA = 64
SRDD = 88
PST = 138 * KB
PHL = 154 * KB
sEV = 50
VPERM = 15
VOWN = 14
GR = 4 * KB
def map_wo(j): return (35 + j) * GR if j < 4 else (j - 4) * GR
def map_w1(j): return (12 + j) * GR
def map_w2(j): return (28 + j) * GR if j < 11 else (j - 11) * GR
def map_w3(j): return ((j + 3) % 16) * 7 * KB
def map_w4(j):
    if j >= 39: j -= 39
    return (28 + j) * GR if j < 11 else (22 + j - 11) * GR if j < 17 else (j - 17) * GR
def map_kv(j): return j * 4 * KB
def map_q(j): return 64 * KB + j * 2 * KB
def xq(mt, j): return 128 + (j >> 2) * 32 + mt * 16 + (j & 3) * 4


class Rec:
    def __init__(self):
        self.l = []

    def __call__(self, t):
        self.l.append(t)


class Gen3(Gen):
    persist = False
    first_wait = False
    XGO = int([o[3:] for o in OPT if o.startswith('xgo')][0]) if any(o.startswith('xgo') for o in OPT) else 2
    NPRE = int([o[4:] for o in OPT if o.startswith('npre')][0]) if any(o.startswith('npre') for o in OPT) else 3
    XPRE = int([o[4:] for o in OPT if o.startswith('xpre')][0]) if any(o.startswith('xpre') for o in OPT) else 4
    DQ = int([o[2:] for o in OPT if o.startswith('dq')][0]) if any(o.startswith('dq') for o in OPT) else 6
    QD = int([o[2:] for o in OPT if o.startswith('qd')][0]) if any(o.startswith('qd') for o in OPT) else 1
    DS = int([o[2:] for o in OPT if o.startswith('ds')][0]) if any(o.startswith('ds') for o in OPT) else 16
    SG = int([o[2:] for o in OPT if o.startswith('sg')][0]) if any(o.startswith('sg') for o in OPT) else 11
    D4 = int([o[2:] for o in OPT if o.startswith('dw')][0]) if any(o.startswith('dw') for o in OPT) else 10
    DB = int([o[2:] for o in OPT if o.startswith('db')][0]) if any(o.startswith('db') for o in OPT) else 6

    def rec(self, fn):
        keep = self.A
        self.A = Rec()
        fn()
        l = self.A.l
        self.A = keep
        return l

    def ldx(self, dst, soff, ioff=0, voff=VL16, w=4, sc=None):
        o = f' offset:{ioff}' if ioff else ''
        wn = {1: 'dword', 2: 'dwordx2', 4: 'dwordx4'}[w]
        if sc is None:
            sc = '' if 'ldplain' in OPT else ' nt' if 'ldnt' in OPT else ' sc0' if 'ldsc0' in OPT else ' sc1'
        self.A(f'buffer_load_{wn} {dst}, {v(voff)}, {s(SRD, 4)}, {s(soff)} offen{o}{sc}')
        return self.A.vmark()

    dmant = False

    def dma(self, soff, ioff=0, voff=VL16, srd=SRD):
        o = f' offset:{ioff}' if ioff else ''
        nt = ' sc1' if (srd == SRD and 'dmaplain' not in OPT) else ''
        self.A(f'buffer_load_dwordx4 {v(voff)}, {s(srd, 4)}, {s(soff)} offen{o}{nt} lds')
        return self.A.vmark()

    def stores(self, lst, fast=sFAST):
        A = self.A
        Ls, Ld = A.newlabel('sts'), A.newlabel('std')

        def emit(sc):
            for src, soff, ioff, voff, w, ex in lst:
                o = f' offset:{ioff}' if ioff else ''
                wn = {1: 'dword', 2: 'dwordx2', 4: 'dwordx4'}[w]
                if ex:
                    A(f's_mov_b64 exec, {ex}')
                A(f'buffer_store_{wn} {src}, {v(voff)}, {s(SRD, 4)}, {s(soff)} offen{o}{sc}')
                if ex:
                    A('s_mov_b64 exec, -1')
        A(f's_cmp_eq_u32 {s(fast)}, 0')
        A(f's_cbranch_scc1 {Ls}')
        vm0 = A.vm
        emit(' nt' if 'stnt' in OPT else ' sc0' if 'stsc0' in OPT else ' sc1' if ('datasc1' in OPT and lst[0][4] != 1) else '')
        A(f's_branch {Ld}')
        A.label(Ls)
        A.vm = vm0
        emit(' sc1')
        A.label(Ld)

    def pstamp(self):
        if not self.prof:
            return
        A = self.A
        i = self.nstamp
        self.nstamp += 1
        A('s_memtime s[60:61]')
        A('s_waitcnt lgkmcnt(0)')
        A.lg_done = A.lg
        A(f'v_writelane_b32 v12, s60, {i}')

    def dbgt(self, slot, inv=False):
        if 'dbgt' not in OPT:
            return
        A = self.A
        assert A.lg == A.lg_done
        A('s_memrealtime s[60:61]')
        A('s_waitcnt lgkmcnt(0)')
        if inv:
            A('s_not_b32 s60, s60')
        A('v_mov_b32 v12, s60')
        A('s_mov_b64 exec, 1')
        A(f'buffer_atomic_umax v12, {v(VL4)}, {s(SRDD, 4)}, 0 offen offset:{slot * 4}')
        A.vm -= 1
        A('s_mov_b64 exec, -1')

    def poll(self, sbase, voff, n, target=1, mode='auto', ioff=0, srd=SRD, mask=None):
        A = self.A
        L, LS, LC, D = A.newlabel('poll'), A.newlabel('polls'), A.newlabel('pollc'), A.newlabel('polld')
        o = f' offset:{ioff}' if ioff else ''
        A(f's_mov_b64 exec, {(1 << n) - 1:#x}' if n < 32 else 's_mov_b32 exec_hi, 0')
        A.label(L)
        if mode == 'auto':
            A(f's_cmp_eq_u32 {s(sFAST)}, 0')
            A(f's_cbranch_scc1 {LS}')
            A(f'buffer_load_dword v3, {v(voff)}, {s(SRD, 4)}, {s(sbase)} offen{o} sc1')
            A(f's_branch {LC}')
            A.label(LS)
        if mode == 'load':
            A(f'buffer_load_dword v3, {v(voff)}, {s(srd, 4)}, {s(sbase)} offen{o} sc1')
        else:
            A('v_mov_b32 v3, 0')
            A(f'buffer_atomic_add v3, {v(voff)}, {s(SRD, 4)}, {s(sbase)} offen{o} sc0')
        A.label(LC)
        A('s_waitcnt vmcnt(0)')
        A.vm_done = A.vm
        if mask:
            A(f'v_and_b32 v22, {mask}, v3')
            A(f'v_cmp_le_u32 vcc, {target}, v22')
        else:
            A(f'v_cmp_le_u32 vcc, {target}, v3')
        A('s_cmp_eq_u64 vcc, exec')
        A(f's_cbranch_scc1 {D}')
        A(f's_sub_u32 {s(sTO)}, {s(sTO)}, 1')
        A(f's_cbranch_scc1 {self.exit}')
        if mode == 'load':
            A('s_sleep 8')
        A(f's_branch {L}')
        A.label(D)
        A('s_mov_b64 exec, -1')

    def sig(self, base, k, absv=False):
        A = self.A
        if absv:
            A(f'v_mov_b32 v3, {k}')
        else:
            A(f's_add_u32 s51, {s(sEV)}, {k}')
            A('v_mov_b32 v3, s51')
        A(f'ds_write_b32 {v(VOWN)}, v3 offset:{base - L_CF}')

    def lwait(self, base, k, tmp, sleep=0, single=False, absv=False, own=False):
        A = self.A
        L, D = A.newlabel('lw'), A.newlabel('lwd')
        A(f's_mov_b32 s51, {k}' if absv else f's_add_u32 s51, {s(sEV)}, {k}')
        A.label(L)
        if single:
            A(f'ds_read_b32 {v(tmp)}, {v(VOWN if own else VPERM)} offset:{base - L_CF}')
            A.wait_all(vm=False)
        else:
            A(f'ds_read_b128 {v(tmp, 4)}, {v(VPERM)} offset:{base - L_CF}')
            A.wait_all(vm=False)
            A(f'v_min_u32 {v(tmp)}, {v(tmp)}, {v(tmp + 1)}')
            A(f'v_min3_u32 {v(tmp)}, {v(tmp)}, {v(tmp + 2)}, {v(tmp + 3)}')
        A(f'v_cmp_le_u32 vcc, s51, {v(tmp)}')
        A(f's_cbranch_vccnz {D}')
        A(f's_sub_u32 {s(sTO)}, {s(sTO)}, 1')
        A(f's_cbranch_scc1 {self.exit}')
        if sleep:
            A(f's_sleep {sleep}')
        A(f's_branch {L}')
        A.label(D)

    def lpeek(self, base, tmp):
        self.A(f'ds_read_b128 {v(tmp, 4)}, {v(VPERM)} offset:{base - L_CF}')
        return self.A.lmark()

    def ltest(self, mark, base, k, tmp, absv=False):
        A = self.A
        D = A.newlabel('lt')
        A(f's_mov_b32 s51, {k}' if absv else f's_add_u32 s51, {s(sEV)}, {k}')
        A.wait(lg=mark)
        A(f'v_min_u32 {v(tmp)}, {v(tmp)}, {v(tmp + 1)}')
        A(f'v_min3_u32 {v(tmp)}, {v(tmp)}, {v(tmp + 2)}, {v(tmp + 3)}')
        A(f'v_cmp_le_u32 vcc, s51, {v(tmp)}')
        A(f's_cbranch_vccnz {D}')
        lg, ld = A.lg, A.lg_done
        self.lwait(base, k, tmp, absv=absv)
        A.lg, A.lg_done = lg, ld
        A.label(D)

    def acheck(self, specs):
        marks = {}

        def pr(j):
            for n, (jj, base, k, tmp, absv, after) in enumerate(specs):
                if j == jj:
                    self.ltest(marks[n], base, k, tmp, absv)
                    if after:
                        after()
            for n, (jj, base, k, tmp, absv, after) in enumerate(specs):
                if j == jj - 1:
                    marks[n] = self.lpeek(base, tmp)
        return pr

    def flag(self, sbase, ioff, two=False, fast=sFAST, pre=None):
        self.pstamp()
        if pre:
            pre()
        self.A.wait_all(lg=False)
        self.stores([(v(VONE), sbase, ioff, VP2, 1, '0x101' if two else '1')], fast)
        self.pstamp()

    def gemm(self, KS, MT, NT, acc, xreg, ldsoff, buf, NB, xwait, hook=None, preread=None, fill=(), czero=False, fill0=1, npre=0):
        A = self.A
        vbase = {0: VL16, 1: VB64, 2: VB128}
        fill = list(fill)

        def read(j, t):
            if t == 0 and preread:
                preread(j)
            off = ldsoff(j) + t * KB
            A(f'ds_read_b128 {v(buf + ((j % NB) * NT + t) * 4, 4)}, {v(vbase[off >> 16])} offset:{off & 0xffff}')
            return A.lmark()
        marks = {}
        pre = NB
        while pre * NT > 14:
            pre -= 1
        if npre:
            pre = npre
            A.wait_all(vm=False)
        for j in range(pre):
            for t in range(NT):
                marks[(j, t)] = 0 if npre else read(j, t)
        fper = 1 if len(fill) < (KS - fill0) * (NT - 2) else 2
        nxt = [(j, t) for j in range(pre, KS) for t in range(NT)]
        for j in range(KS):
            if 'lstamp' in OPT and NT == 7 and j % 2 == 0:
                i_ = self.nstamp
                self.nstamp += 1
                A(f's_memtime {s(64 + j, 2)}')
                self.late = getattr(self, 'late', []) + [(64 + j, i_)]
                A.lg_done = max(0, A.lg_done)
            for t in range(NT):
                A.wait(vm=xwait(j) if t == 0 else None, lg=marks[(j, NT - 1 if (NB > 4 and (j, NT - 1) in marks) else min(NT - 1, t | 1) if 'w2' in OPT else t)])
                for mt in range(MT):
                    r = acc + (mt * NT + t) * 4
                    c = '0' if (czero and j == 0) else v(r, 4)
                    A(f'v_mfma_f32_16x16x32_bf16 {v(r, 4)}, {v(buf + ((j % NB) * NT + t) * 4, 4)}, {xreg(mt, j)}, {c}')
                    if mt == 0 and (MT == 2 or (t < NT - 1 if 'oldm1' in OPT else (t in (1, 3) or not nxt))):
                        n0 = len(A.lines)
                        if hook and MT == 2:
                            hook(j, t)
                        room = (2 if MT == 2 else 1) - (len(A.lines) - n0)
                        for _ in range(min(room, fper)):
                            if fill and j >= fill0:
                                A(fill.pop(0))
                if MT == 1 and 'oldm1' not in OPT:
                    for _ in range(2 if t in (0, 2) else 0):
                        if nxt and nxt[0][0] - NB < j:
                            j2, t2 = nxt.pop(0)
                            marks[(j2, t2)] = read(j2, t2)
                elif nxt:
                    j2, t2 = nxt[0]
                    if (j2 - NB, t2) <= (j, t):
                        marks[(j2, t2)] = read(j2, t2)
                        nxt.pop(0)
                if hook and MT == 1:
                    hook(j, t)
        assert not nxt and not fill, (len(fill))
        if 'lstamp' in OPT and NT == 7:
            A('s_waitcnt lgkmcnt(0)')
            for r_, i_ in self.late:
                A(f'v_writelane_b32 v12, {s(r_)}, {i_}')

    def wpre(self, n, NT, buf, ldsoff, j0=0):
        A = self.A
        vbase = {0: VL16, 1: VB64, 2: VB128}
        for j in range(j0, n):
            for t in range(NT):
                off = ldsoff(j) + t * KB
                A(f'ds_read_b128 {v(buf + (j * NT + t) * 4, 4)}, {v(vbase[off >> 16])} offset:{off & 0xffff}')

    def cs_read(self, NT, cs, loc):
        A = self.A
        A(f'v_and_b32 v3, 0x30, {v(VLANE)}')
        A(f'v_add_u32 v3, {loc}, v3')
        for t in range(NT):
            A(f'ds_read_b128 {v(cs + 4 * t, 4)}, v3 offset:{t * 64}')

    def ln_fix(self, acc, n, cs, mean):
        for i in range(0, n, 2):
            self.A(f'v_pk_fma_f32 {v(acc + i, 2)}, {v(cs + i, 2)}, {v(mean, 2)}, {v(acc + i, 2)} op_sel_hi:[1,0,1] neg_lo:[0,1,0] neg_hi:[0,1,0]')

    def ld_stats(self, dst, soff, ioff=0):
        self.ldx(v(dst, 2), soff, ioff, voff=VSTL, w=2)
        return self.ldx(v(dst + 2, 2), soff, ioff + 128, voff=VSTL, w=2)

    def stats_calc(self, acc, n, tmp):
        A = self.A
        S, Q = tmp, tmp + 2
        A(f'v_pk_add_f32 {v(S, 2)}, {v(acc, 2)}, {v(acc + 2, 2)}')
        A(f'v_pk_mul_f32 {v(Q, 2)}, {v(acc, 2)}, {v(acc, 2)}')
        for i in range(2, n, 2):
            if i >= 4:
                A(f'v_pk_add_f32 {v(S, 2)}, {v(S, 2)}, {v(acc + i, 2)}')
            A(f'v_pk_fma_f32 {v(Q, 2)}, {v(acc + i, 2)}, {v(acc + i, 2)}, {v(Q, 2)}')
        A(f'v_add_f32 {v(S)}, {v(S)}, {v(S + 1)}')
        A(f'v_add_f32 {v(S + 1)}, {v(Q)}, {v(Q + 1)}')
        Q = S + 1
        A(f'v_permlane32_swap_b32 {v(S)}, {v(Q)}')
        A(f'v_add_f32 {v(S)}, {v(S)}, {v(Q)}')
        A(f'v_mov_b32 {v(Q)}, {v(S)}')
        A(f'v_permlane16_swap_b32 {v(S)}, {v(Q)}')
        A(f'v_add_f32 {v(S)}, {v(S)}, {v(Q)}')
        A(f'v_mov_b32 {v(Q)}, {v(S)}')
        A(f'v_permlane32_swap_b32 {v(S)}, {v(Q)}')

    def store_tile(self, acc, tmp, DST, STD, nextpair=False, fast=sFAST):
        A = self.A
        self.pack(tmp, acc, 8)
        add = PSTRIDE if nextpair else 0
        A(f's_add_u32 s26, {s(sTILE)}, {DST + add}')
        A(f's_add_u32 s27, {s(sSTP)}, {STD + add}')
        self.stores([(v(tmp, 4), 26, 0, VL16, 4, None), (v(tmp + 4, 4), 26, KB, VL16, 4, None)], fast)
        self.stats_calc(acc, 16, tmp + 8)
        self.stores([(v(tmp + 8, 2), 27, 0, VSTL, 2, '0xffff')], fast)

    def big_pre(self, XIN, STIN):
        A = self.A
        A(f's_lshl_b32 s26, {s(sT0)}, 14')
        A(f's_add_u32 s26, s26, {s(sP)}')
        A(f's_add_u32 s26, s26, {XIN}')
        A(f's_add_u32 s27, s26, {16 * KB}')
        A(f's_lshl_b32 s28, {s(sT0)}, 10')
        A(f's_add_u32 s28, s28, {s(sP)}')
        A(f's_add_u32 s28, s28, {STIN}')
        A(f's_lshl_b32 s29, {s(sT0)}, {CSH}')
        A(f's_add_u32 s29, s29, {s(sC)}')

    def big_main(self, NT, acc, buf, XR, ST, fill, lmap, late_j, late_id, xsig, fsig):
        A = self.A
        D, RING = self.DB, 8
        sX, sX2 = 26, 27
        xm = {}

        def xload(j, mt):
            if 'noxl' in OPT and j >= D:
                xm[j] = A.vmark()
                return
            xm[j] = self.ldx(v(XR + ((j % RING) * 2 + mt) * 4, 4), sX2 if mt else sX, (j & 3) * KB)
            if (j & 3) == 3 and j < 15:
                r = sX2 if mt else sX
                A(f's_add_u32 {s(r)}, {s(r)}, {4 * KB}')
        for j in range(D):
            xload(j, 0)
            xload(j, 1)
            if j == 1:
                self.ld_stats(ST, 28)
                self.ld_stats(ST + 4, 28, KB)
        self.pstamp()

        def hook(j, t):
            if j == 0 and t == 0:
                self.sig(L_PS, 2)
            if j + D < 16:
                if t == 1:
                    xload(j + D, 0)
                if t == 4:
                    xload(j + D, 1)
                    if j + D == 15 and xsig is not None:
                        self.sig(L_CF, xsig)

        specs = [(late_j, L_CR, late_id, 252, False, None)]
        if NT == 7:
            specs.append((15, L_CS, 5, 252, True, lambda: self.cs_read(7, 224, L_CS3)))
        preread = self.acheck(specs)
        self.gemm(16, 2, NT, acc, lambda mt, j: v(XR + ((j % RING) * 2 + mt) * 4, 4), lmap,
                  buf, 2, lambda j: xm[j], hook, preread, fill=fill, czero=True, fill0=2, npre=2)
        if fsig is not None:
            self.sig(L_CF, fsig)
        self.pstamp()

    def small_main(self, KS, acc, buf, XR, RING, D, src, lmap, fill=(), czero=False, extra=None, hook2=None, preread=None,
                   xsig=None, fsig=None, stagger=0, NB=4):
        A = self.A
        xm = {}

        def xload(j):
            so, io, vo = src(j)
            xm[j] = self.ldx(v(XR + (j % RING) * 4, 4), so, io, voff=vo)
            if (j & 3) == 3 and j < KS - 1:
                A(f's_add_u32 {s(so)}, {s(so)}, {4 * KB}')
        if stagger and 'stag' in OPT:
            Ls = A.newlabel('stg')
            A(f's_cmp_eq_u32 {s(SW)}, 0')
            A(f's_cbranch_scc1 {Ls}')
            self.lwait(L_ST - 4, stagger, 44, single=True, own=True)
            A.label(Ls)
        for j in range(D):
            xload(j)
            if j == 1 and extra:
                extra()
            if j == self.SG and stagger and 'stag' in OPT:
                self.sig(L_ST, stagger)
        if D == KS and xsig is not None:
            self.sig(L_CF, xsig)
        self.pstamp()

        def hook(j, t):
            if t == 1 and j + D < KS:
                xload(j + D)
                if j + D == KS - 1 and xsig is not None:
                    self.sig(L_CF, xsig)
            if hook2:
                hook2(j, t)
        self.gemm(KS, 1, 4, acc, lambda mt, j: v(XR + 4 * (j % RING), 4), lmap, buf, NB,
                  lambda j: xm[j], hook, preread, fill=fill, czero=czero, fill0=2, npre=NB)
        if fsig is not None:
            self.sig(L_CF, fsig)
        self.pstamp()

    def stage_qkv(self):
        A = self.A
        ST, CC, acc, buf = 32, 40, 64, 96
        SCR, RSZ = 96 * KB, 336

        def f():
            for mt in range(2):
                self.stats_consume(ST + 4 * mt, 3)
                self.rstd(CC + 1 + 2 * mt, ST + 4 * mt + 1)
                self.A(f'v_mul_f32 {v(CC + 2 * mt)}, {f32(LOG2E)}, {v(CC + 1 + 2 * mt)}')
            self.A(f'v_permlane32_swap_b32 {v(CC)}, {v(CC + 2)}')
        Lepi = A.newlabel('qepi')
        self.qkv_first(f, acc, buf, ST, SCR, RSZ)
        A(f's_branch {Lepi}')
        A.label(self.Lp)
        self.nstamp = 0
        if self.prof:
            A('s_memrealtime s[60:61]')
            A('s_waitcnt lgkmcnt(0)')
            A('v_writelane_b32 v12, s60, 63')
        self.pstamp()
        self.big_pre(X0, ST0)
        self.qkv_addr(SCR, RSZ)
        self.lwait(L_CR, 1, 60)
        self.wpre(2, 4, buf, map_kv)
        A(f's_add_u32 s29, s29, {C_X}')
        self.poll(29, VP2, 16)
        self.pstamp()
        D = self.DQ
        xm = {}

        def xload(j, mt):
            xm[j] = self.ldx(v(xq(mt, j), 4), 26 + mt, (j & 3) * KB)
            if (j & 3) == 3 and j < 15:
                A(f's_add_u32 {s(26 + mt)}, {s(26 + mt)}, {4 * KB}')
        for j in range(D):
            xload(j, 0)
            xload(j, 1)
            if j == 1:
                self.ld_stats(ST, 28)
                self.ld_stats(ST + 4, 28, KB)
        self.pstamp()

        def hook(j, t):
            if j + D < 16 and t in (0, 2):
                xload(j + D, t >> 1)
                if j + D == 15 and t == 2:
                    self.sig(L_PS, 1)
            self.kv_cs(j, t, buf)
        self.gemm(16, 2, 4, acc, lambda mt, j: v(xq(mt, j), 4), map_kv, buf, 2, lambda j: xm[j], hook, None,
                  fill=self.rec(f), czero=True, fill0=2, npre=2)
        self.sig(L_CF, 3)
        self.pstamp()
        A.label(Lepi)
        A('s_waitcnt lgkmcnt(1)')
        A.lg_done = max(A.lg_done, A.lg - 1)
        A('s_nop 3')
        self.qkv_epi(ST, CC, acc, buf, SCR, RSZ)

    def kv_cs(self, j, t, buf):
        if j == 15:
            self.A(f'ds_read_b128 {v(buf + 4 * t, 4)}, v13 offset:{t * 64}')

    def qkv_first(self, f, acc, buf, ST, SCR, RSZ):
        A = self.A
        PB = [128, 160, 192, 224]
        self.nstamp = 0
        if self.prof:
            A('s_memrealtime s[60:61]')
            A('s_waitcnt lgkmcnt(0)')
            A('v_writelane_b32 v12, s60, 63')
        self.pstamp()
        WA, RA = 64, 68
        A(f's_mul_i32 s34, {s(SW)}, {32 * RSZ}')
        A(f's_add_u32 s34, s34, {SCR}')
        A(f'v_lshrrev_b32 v3, 4, {v(VLANE)}')
        A(f'v_and_b32 v76, 15, {v(VLANE)}')
        A(f'v_xor_b32 v77, v76, v3')
        A(f'v_lshlrev_b32 v77, 4, v77')
        A(f'v_lshl_add_u32 v77, v3, 8, v77')
        A(f'v_add_u32 v77, s34, v77')
        for n in range(4):
            A(f'v_xor_b32 {v(WA + n)}, {n * 64}, v77')
        A(f'v_lshrrev_b32 v77, 1, v3')
        A(f'v_xor_b32 v77, v77, v76')
        A(f'v_lshlrev_b32 v77, 4, v77')
        A(f'v_lshl_add_u32 v77, v76, 8, v77')
        A(f'v_and_b32 v3, 1, v3')
        A(f'v_lshl_add_u32 v77, v3, 3, v77')
        A(f'v_add_u32 v77, s34, v77')
        for m in range(8):
            A(f'v_xor_b32 {v(RA + m)}, {m * 32}, v77')
        for i in range(4):
            A(f'v_mov_b32 {v(104 + i)}, 0x3f803f80')

        def stats(p):
            b = PB[p >> 1] + 16 * (p & 1)
            S = 108 + 8 * (p & 1)
            for i in range(4):
                z = p < 2 and i == 0
                A(f'v_mfma_f32_16x16x32_bf16 {v(S, 4)}, v[104:107], {v(b + 4 * i, 4)}, {"0" if z else v(S, 4)}')
                A(f'v_mfma_f32_16x16x32_bf16 {v(S + 4, 4)}, {v(b + 4 * i, 4)}, {v(b + 4 * i, 4)}, {"0" if z else v(S + 4, 4)}')

        def arrive():
            A(f's_cmp_eq_u32 s58, 3')
            A('s_cselect_b32 s31, 0, 0x1000')
            A('s_mov_b64 exec, 1')
            A(f'buffer_atomic_add {v(VONE)}, {v(VL4)}, {s(SRDD, 4)}, s31 offen')
            A('s_mov_b64 exec, -1')
        if self.XPRE == 4:
            arrive()
        for p in range(8):
            b = PB[p >> 1] + 16 * (p & 1)
            A.wait(vm=self.x0m[p], lg=A.lmark())
            for n in range(4):
                A(f'ds_write_b128 {v(WA + n)}, {v(b + 4 * n, 4)} offset:{n * 1024}')
            for m in range(8):
                A(f'ds_read_b64 {v(b + 2 * m, 2)}, {v(RA + m)}')
            if p:
                stats(p - 1)
            if (p & 1) and (p >> 1) + self.XPRE < 4:
                self.x0load((p >> 1) + self.XPRE)
                if (p >> 1) + self.XPRE == 3:
                    arrive()
        A.wait_all(vm=False)
        stats(7)
        A(f'v_and_b32 v3, 3, {v(VLANE)}')
        for i in range(1, 4):
            A(f'v_cmp_eq_u32 {s(26 + 2 * i, 2)}, {i}, v3')
        A(f'v_bfe_u32 v3, {v(VLANE)}, 2, 2')
        A(f'v_lshrrev_b32 v20, 4, {v(VLANE)}')
        A(f'v_cmp_eq_u32 vcc, v3, v20')
        for mt in range(2):
            Q = 112 + 8 * mt
            for i in range(1, 4):
                A(f'v_cndmask_b32 {v(Q)}, {v(Q)}, {v(Q + i)}, {s(26 + 2 * i, 2)}')
            A(f'v_cndmask_b32 {v(ST + 4 * mt)}, 0, {v(Q - 4)}, vcc')
            A(f'v_cndmask_b32 {v(ST + 4 * mt + 1)}, 0, {v(Q)}, vcc')
            A(f'v_mov_b32 {v(ST + 4 * mt + 2)}, 0')
            A(f'v_mov_b32 {v(ST + 4 * mt + 3)}, 0')
        f()
        self.pstamp()
        L2 = A.newlabel('np2')
        A(f's_cmp_lg_u32 {s(SW)}, 2')
        A(f's_cbranch_scc1 {L2}')
        vmd = A.vm_done
        A(f's_mov_b32 s100, {96 * KB + 2 * 32 * 336}')
        A(f's_add_u32 s101, s2, 1024')
        self.piece_decode(101)
        A.wait_all()
        self.piece_finish()
        A.vm_done = vmd
        A.label(L2)
        Ln = A.newlabel('nochk')
        A(f's_cmp_lg_u32 {s(SW)}, 0')
        A(f's_cbranch_scc1 {Ln}')
        A('s_mov_b32 s31, 0')
        vmd = A.vm_done
        self.poll(31, VL4, 1, target=32, mode='load', srd=SRDD)
        A.vm_done = vmd
        A(f'ds_write_b32 {v(VPERM)}, {v(VONE)} offset:{L_INIT - L_CF}')
        A('s_getreg_b32 s30, hwreg(HW_REG_XCC_ID)')
        A('s_and_b32 s30, s30, 15')
        A('s_mul_i32 s31, s30, s30')
        A('s_lshl_b32 s31, s31, 16')
        A('s_lshl_b32 s30, s30, 7')
        A('s_add_u32 s30, s30, s31')
        A('s_add_u32 s58, s30, 1')
        A('s_and_b32 s59, s2, 7')
        A('s_lshl_b32 s59, s59, 7')
        A(f's_add_u32 s59, s59, {XW}')
        A('v_mov_b32 v3, s58')
        A('s_mov_b64 exec, 1')
        A(f'buffer_atomic_add v3, {v(VL4)}, {s(SRD, 4)}, s59 offen')
        A('s_mov_b64 exec, -1')
        A.label(Ln)
        A(f's_mov_b64 {s(SRD2, 2)}, {s(PA, 2)}')
        A(f's_mov_b32 {s(SRD2 + 2)}, {2048 * 512 * 2}')
        A(f'v_and_b32 v3, 15, {v(VLANE)}')
        A(f'v_lshlrev_b32 v62, 10, v3')
        A(f'v_lshrrev_b32 v3, 4, {v(VLANE)}')
        A(f'v_lshl_add_u32 v62, v3, 3, v62')
        A(f's_lshl_b32 s28, {s(sT)}, 14')
        A(f's_lshl_b32 s29, {s(sCG8)}, 7')
        A(f's_add_u32 s28, s28, s29')
        self.qkv_addr(SCR, RSZ)
        self.lwait(L_CR, 1, 20, sleep=1)
        self.pstamp()
        for t in range(4):
            A(f'buffer_load_dwordx2 {v(RES + 8 + 2 * t, 2)}, v62, {s(SRD2, 4)}, s28 offen offset:{32 * t}')
        A.vm_done = A.vm
        self.gemm(16, 2, 4, acc, lambda mt, j: v(xq(mt, j), 4), map_kv, buf, 2, lambda j: None,
                  lambda j, t: self.kv_cs(j, t, buf), self.acheck([(15, L_CS, 1, 20, True, None)]), czero=True)
        self.sig(L_CF, 3)
        self.pstamp()

    def qkv_addr(self, SCR, RSZ):
        A = self.A
        A(f'v_and_b32 v13, 0x30, {v(VLANE)}')
        A(f'v_add_u32 v13, {L_CSQ}, v13')
        A(f'v_lshrrev_b32 v60, 4, {v(VLANE)}')
        A(f'v_and_b32 v61, 15, {v(VLANE)}')
        A(f's_mul_i32 s30, {s(SW)}, {32 * RSZ}')
        A(f's_add_u32 s30, s30, {SCR}')
        A(f'v_mul_u32_u24 v45, {RSZ}, v61')
        A(f'v_add_u32 v45, s30, v45')
        A(f'v_lshl_add_u32 v46, v60, 3, v45')
        A(f'v_lshl_add_u32 v44, v60, 4, v45')
        A(f'v_and_b32 v3, 1, v60')
        A(f'v_lshl_add_u32 v45, v3, 6, v45')
        A(f'v_lshrrev_b32 v3, 1, v60')
        A(f'v_mul_u32_u24 v3, {16 * RSZ}, v3')
        A(f'v_add_u32 v45, v45, v3')
        A(f's_lshl_b32 s42, {s(sCG16)}, 12')
        A(f's_add_u32 s42, s42, {s(sZ)}')
        A(f's_add_u32 s42, s42, {KV}')
        A(f's_lshl_b32 s43, {s(sCG16)}, 8')
        A(f's_add_u32 s43, s43, {s(sZ)}')
        A(f's_add_u32 s43, s43, {Z}')
        A(f'v_lshlrev_b32 v50, 5, v60')
        for i in range(4):
            A(f'v_mov_b32 {v(56 + i)}, {f32(1e-6)}')

    def qkv_epi(self, ST, CC, acc, buf, SCR, RSZ):
        A = self.A
        EP, EM = 96, 112

        def softmax(P0, P1, M, off):
            cc = CC
            R = lambda i: (P0 + i) if i < 8 else (P1 + i - 8)
            for op, d in (('max', M), ('min', M + 1)):
                A(f'v_{op}3_f32 {v(d)}, {v(R(0))}, {v(R(1))}, {v(R(2))}')
                for i in range(3, 15, 2):
                    A(f'v_{op}3_f32 {v(d)}, {v(d)}, {v(R(i))}, {v(R(i + 1))}')
                A(f'v_{op}_f32 {v(d)}, {v(d)}, {v(R(15))}')
            A(f'v_pk_mul_f32 {v(M, 2)}, {v(M, 2)}, {v(cc, 2)} op_sel_hi:[1,0]')
            for i in range(0, 16, 2):
                A(f'v_pk_fma_f32 {v(EP + i, 2)}, {v(R(i), 2)}, {v(cc, 2)}, {v(M, 2)} op_sel_hi:[1,0,0] neg_lo:[0,0,1] neg_hi:[0,0,1]')
                A(f'v_pk_fma_f32 {v(EM + i, 2)}, {v(R(i), 2)}, {v(cc, 2)}, {v(M, 2)} op_sel:[0,0,1] op_sel_hi:[1,0,1] neg_lo:[0,1,0] neg_hi:[0,1,0]')
            for i in range(32):
                A(f'v_exp_f32 {v(EP + i)}, {v(EP + i)}')
            for E, d in ((EP, M + 2), (EM, M + 4)):
                A(f'v_pk_add_f32 {v(d, 2)}, {v(E, 2)}, {v(E + 2, 2)}')
                for i in range(4, 16, 2):
                    A(f'v_pk_add_f32 {v(d, 2)}, {v(d, 2)}, {v(E + i, 2)}')
            A(f'v_add_f32 {v(M + 2)}, {v(M + 2)}, {v(M + 3)}')
            A(f'v_add_f32 {v(M + 3)}, {v(M + 4)}, {v(M + 5)}')
            A(f'v_rcp_f32 {v(M + 2)}, {v(M + 2)}')
            A(f'v_rcp_f32 {v(M + 3)}, {v(M + 3)}')
            for t in range(4):
                for i in (4 * t, 4 * t + 2):
                    A(f'v_pk_mul_f32 {v(EP + i, 2)}, {v(EP + i, 2)}, {v(M + 2, 2)} op_sel_hi:[1,0]')
                    A(f'v_pk_mul_f32 {v(EM + i, 2)}, {v(EM + i, 2)}, {v(M + 2, 2)} op_sel:[0,1] op_sel_hi:[1,1]')
                self.pack(R(4 * t), EP + 4 * t, 2)
                self.pack(R(4 * t) + 2, EM + 4 * t, 2)
                A(f'ds_write_b128 v45, {v(R(4 * t), 4)} offset:{off + 16 * t}')
        for mt in range(2):
            self.ln_fix(acc + 16 * mt, 16, buf, ST + 4 * mt)
        for i in range(8):
            A(f'v_permlane32_swap_b32 {v(acc + i)}, {v(acc + 16 + i)}')
        for mt in range(2):
            for hh in range(2):
                r = acc + 16 * mt + 8 + 4 * hh
                for i in (0, 2):
                    A(f'v_pk_mul_f32 {v(r + i, 2)}, {v(r + i, 2)}, {v(CC + 2 * mt, 2)} op_sel:[0,1] op_sel_hi:[1,1]')
                d = acc + 24 + 4 * mt + 2 * hh if mt == 0 else r
                d = r
                self.pack(d, r, 2)
                A(f'ds_write_b64 v46, {v(d, 2)} offset:{mt * 16 * RSZ + 256 + 32 * hh}')
        softmax(acc, acc + 16, acc + 8, 128)
        self.pstamp()
        self.sig(L_CB, 1)
        self.lwait(L_CR, 2, 60)
        self.lwait(L_CS, 2, 60, absv=True)
        for t in range(2):
            A(f'ds_read_b128 {v(88 + 4 * t, 4)}, v13 offset:{(4 + t) * 64}')
        self.gemm(16, 2, 2, 72, lambda mt, j: v(xq(mt, j), 4), map_q, buf, 4, lambda j: None, czero=True)
        self.pstamp()
        for mt in range(2):
            self.ln_fix(72 + 8 * mt, 8, 88, ST + 4 * mt)
        for i in range(8):
            A(f'v_permlane32_swap_b32 {v(72 + i)}, {v(80 + i)}')
        softmax(72, 80, 64, 0)
        PQ = 160
        for mt in range(2):
            for hh in range(2):
                A(f'ds_read_b128 {v(PQ + 8 * mt + 4 * hh, 4)}, v44 offset:{mt * 16 * RSZ + 64 * hh}')
        A(f's_lshl_b32 s30, {s(sCG16)}, {CSH}')
        A(f's_add_u32 s30, s30, {s(sC)}')
        A(f's_add_u32 s30, s30, {C_KV}')
        A(f's_lshl_b32 s26, {s(sT0)}, 14')
        A(f's_lshl_b32 s27, {s(sCG16)}, 10')
        A(f's_add_u32 s26, s26, s27')
        A(f's_add_u32 s26, s26, {s(sP)}')
        A(f's_add_u32 s26, s26, {OB}')
        A(f's_add_u32 s27, s26, {16 * KB}')
        if 'd2early' in OPT:
            self.sig(L_CF, 4)
        self.pstamp()
        Lw, Lg, Lx = A.newlabel('kvw'), A.newlabel('kvg'), A.newlabel('kvx')
        A(f's_cmp_lg_u32 {s(SW)}, 0')
        A(f's_cbranch_scc1 {Lw}')
        self.lwait(L_KD, 1, 252)
        self.poll(30, VL4, 1, target=16, mode='atomic')
        A.label(Lg)
        self.sig(L_GO, 1)
        A(f's_branch {Lx}')
        A.label(Lw)
        self.lwait(L_GO, 1, 252, sleep=1, single=True)
        A.label(Lx)
        self.pstamp()
        Lm = A.newlabel('mode')
        A(f's_cmp_eq_u32 {s(sPAIR)}, 0')
        A(f's_cbranch_scc0 {Lm}')
        A('s_waitcnt vmcnt(0)')
        A(f's_cmp_eq_u32 {s(SW)}, 2')
        A(f's_cselect_b32 s99, s99, {WS_USED}')
        self.count(99)
        A.vm -= 1
        self.unpack(RES, RES + 8, 8)
        self.lwait(L_MODE, 1, 252, single=True)
        A(f'v_readfirstlane_b32 {s(sFAST)}, v252')
        A(f's_sub_u32 {s(sFAST)}, {s(sFAST)}, 1')
        A.label(Lm)
        KF, ZF = 64, 80
        for i in range(16):
            self.ldx(v(KF + i), 42, 256 * i, voff=VL4, w=1, sc=' sc1')
        for hh in range(2):
            for u in range(2):
                self.ldx(v(ZF + 8 * hh + 4 * u, 4), 43, 128 * hh + 16 * u, voff=50, sc=' sc1')
        A.wait(vm=A.vmark() - 4)
        self.pack(96, KF, 8)
        A('s_waitcnt vmcnt(0) lgkmcnt(0)')
        A.vm_done, A.lg_done = A.vm, A.lg
        self.pack(104, ZF, 8)
        ND = 112
        for mt in range(2):
            for hh in range(2):
                d = ND + 16 * mt + 8 * hh
                A(f'v_mfma_f32_16x16x32_bf16 {v(d + 4, 4)}, {v(104 + 4 * hh, 4)}, {v(PQ + 8 * mt + 4 * hh, 4)}, v[56:59]')
                A(f'v_mfma_f32_16x16x32_bf16 {v(d, 4)}, {v(96 + 4 * hh, 4)}, {v(PQ + 8 * mt + 4 * hh, 4)}, 0')
        for q in range(4):
            A(f'v_rcp_f32 {v(ND + 8 * q + 4)}, {v(ND + 8 * q + 4)}')
        for q in range(4):
            d = ND + 8 * q
            for i in (0, 2):
                A(f'v_pk_mul_f32 {v(d + i, 2)}, {v(d + i, 2)}, {v(d + 4, 2)} op_sel_hi:[1,0]')
            self.pack(64 + 2 * q, d, 2)
        self.stores([(v(64, 4), 26, 0, VL16, 4, None), (v(68, 4), 27, 0, VL16, 4, None)], sFG)
        self.flag(sF16, C_O - CB, two=True)

    def small_pre(self, XIN, mul=16):
        A = self.A
        A(f's_mul_i32 s26, {s(sT)}, {mul * KB}')
        A(f's_add_u32 s26, s26, {s(sP)}')
        A(f's_add_u32 s26, s26, {XIN}')
        A(f's_lshl_b32 s29, {s(sT)}, {CSH}')
        A(f's_add_u32 s29, s29, {s(sC)}')
        A(f's_add_u32 s29, s29, {CB}')

    def stage_wo(self):
        A = self.A
        XR, buf = 64, 128
        self.small_pre(OB)
        self.lwait(L_CR, 3, 44)
        self.wpre(8, 4, buf, map_wo)
        self.poll(29, VL4, 16, ioff=C_O - CB)
        self.pstamp()
        self.small_main(16, RES, buf, XR, 16, self.DS, lambda j: (26, (j & 3) * KB, VL16), map_wo, stagger=1, NB=8)
        self.store_tile(RES, XR, XA, STA, fast=sFG)
        self.flag(sF8, C_XA - CB, pre=lambda: (self.lwait(L_CR, 4, 44), self.wpre(3, 4, buf, map_w1)))

    def stage_w1(self):
        A = self.A
        ST, K, acc, XR, buf, CS = 32, 40, 48, 64, 128, 240
        self.small_pre(XA)
        A(f's_lshl_b32 s27, {s(sT)}, 10')
        A(f's_add_u32 s27, s27, {STA}')
        self.lwait(L_CS, 4, 44, absv=True)
        self.cs_read(4, CS, L_CS1)
        self.wpre(7, 4, buf, map_w1, 3)
        self.poll(29, VL4, 8, ioff=C_XA - CB)
        self.pstamp()

        def f():
            A = self.A
            self.stats_consume(ST, 3)
            self.rstd(VMR + 1, ST + 1)
            A(f'v_mul_f32 {v(VMR)}, {v(ST)}, {v(VMR + 1)}')
            A(f'v_mul_f32 v38, {v(VMR + 1)}, {v(VMR + 1)}')
            A(f'v_mul_f32 v38, v38, {v(ST + 1)}')
            self.rstd(38, 38)
            A(f'v_mul_f32 v38, v38, {v(VMR + 1)}')
            self.gelu_consts(K, 38)
        self.small_main(16, acc, buf, XR, 16, self.DS, lambda j: (26, (j & 3) * KB, VL16), map_w1, fill=self.rec(f), czero=True,
                        extra=lambda: self.ld_stats(ST, 27), xsig=5, NB=7)
        self.ln_fix(acc, 16, CS, ST)
        self.gelu(acc, 16, K, XR, XR + 16)
        A(f's_add_u32 s26, {s(sTILE)}, {H}')
        Lh, Lh2 = A.newlabel('hh'), A.newlabel('hh2')
        self.stores([(v(XR + 16, 4), 26, 0, VL16, 4, None), (v(XR + 20, 4), 26, KB, VL16, 4, None)])
        A(f's_add_u32 s27, s26, {s(sHH)}')
        A(f's_cmp_eq_u32 {s(sFH)}, 0')
        A(f's_cselect_b32 s27, {WS_USED}, s27')
        m = A.vmark()
        A(f'buffer_store_dwordx4 {v(XR + 16, 4)}, {v(VL16)}, {s(SRD, 4)}, s27 offen sc1')
        A(f'buffer_store_dwordx4 {v(XR + 20, 4)}, {v(VL16)}, {s(SRD, 4)}, s27 offen offset:1024 sc1')
        self.pstamp()
        self.wpre(3, 4, buf, map_w2)
        A.wait(vm=m)
        self.stores([(v(VONE), sF8, C_H - CB, VP2, 1, '1')])
        self.pstamp()
        A(f's_cmp_eq_u32 {s(sFH)}, 0')
        A(f's_cbranch_scc1 {Lh2}')
        A('s_waitcnt vmcnt(1)')
        A('s_mov_b64 exec, 1')
        A(f'buffer_store_dword {v(VONE)}, {v(VL4)}, {s(SRD, 4)}, {s(sF8)} offen offset:{C_HH - CB} sc1')
        A('s_mov_b64 exec, -1')
        A.label(Lh2)

    def stage_w2(self):
        A = self.A
        acc, XR, buf = 48, 64, 128
        self.wpre(7, 4, buf, map_w2, 3)
        A(f's_lshl_b32 s26, {s(sT)}, 4')
        A(f'v_and_b32 v13, 15, {v(VLANE)}')
        A(f'v_add_u32 v13, s26, v13')
        A(f'v_and_b32 v38, 0x300, {v(VL16)}')
        A(f'v_mov_b32 v39, {OOB}')
        A(f's_movk_i32 s27, 2048')
        A(f's_lshr_b32 s28, {s(sT)}, 4')
        for gi, d in enumerate((-1, 1, -2, 2)):
            A(f'v_add_u32 v36, {d}, v13')
            A(f'v_lshrrev_b32 v37, 8, v36')
            A(f'v_cmp_ne_u32 s[30:31], s28, v37')
            A(f'v_cmp_gt_u32 vcc, s27, v36')
            A(f'v_lshrrev_b32 v3, 4, v36')
            A(f'v_lshl_add_u32 v3, v3, 14, v38')
            A(f'v_and_b32 v36, 15, v36')
            A(f'v_lshl_add_u32 v3, v36, 4, v3')
            A(f'v_add_u32 v37, {s(sHH)}, v3')
            A(f'v_cndmask_b32 v3, v3, v37, s[30:31]')
            A(f'v_cndmask_b32 {v(FREE + gi)}, v39, v3, vcc')
        A(f's_mov_b32 s26, {H}')
        A(f's_and_b32 s30, {s(sT)}, 0x70')
        A(f's_or_b32 s31, {s(sT)}, 15')
        A(f'v_and_b32 v13, 2, {v(VLANE)}')
        A(f'v_add_u32 v13, -1, v13')
        A(f'v_bfe_u32 v38, {v(VLANE)}, 3, 1')
        A(f'v_mul_i32_i24 v13, v13, v38')
        A(f'v_add_u32 v13, {s(sT)}, v13')
        A(f'v_max_i32 v13, s30, v13')
        A(f'v_min_i32 v13, s31, v13')
        A(f'v_and_b32 v38, 0x1c, {v(VL4)}')
        A(f'v_lshl_add_u32 v13, v13, {CSH}, v38')
        A(f's_add_u32 s29, {s(sC)}, {C_H}')
        A(f'v_and_b32 v36, 1, {v(VLANE)}')
        A(f'v_bfe_u32 v37, {v(VLANE)}, 1, 1')
        A(f'v_lshlrev_b32 v36, 2, v36')
        A(f'v_lshl_add_u32 v36, v37, 4, v36')
        for i in range(0, 16, 2):
            A(f'v_pk_fma_f32 {v(acc + i, 2)}, {v(RES + i, 2)}, {v(VMR, 2)}, {v(VMR, 2)} op_sel:[0,1,0] op_sel_hi:[1,1,0] neg_lo:[0,0,1] neg_hi:[0,0,1]')
        self.poll(29, 13, 16)
        pk5 = self.lpeek(L_CR, 44)
        Lr = A.newlabel('rh')
        A(f's_cmp_eq_u32 {s(sRH)}, 0')
        A(f's_cbranch_scc1 {Lr}')
        A(f's_add_u32 s29, {s(sRH)}, {s(sC)}')
        self.poll(29, 36, 4, mode='atomic')
        A.label(Lr)
        self.pstamp()
        self.small_main(16, acc, buf, XR, 16, self.DS, lambda j: (26, (j & 3) * KB, FREE + (j >> 2)), map_w2, xsig=6, fsig=7, NB=7,
                        preread=lambda j: self.ltest(pk5, L_CR, 5, 44) if j == 7 else None)
        self.store_tile(acc, XR, X1, ST1)
        for i in range(0, 16, 2):
            A(f'v_pk_add_f32 {v(RES + i, 2)}, {v(RES + i, 2)}, {v(acc + i, 2)}')
        self.flag(sF8, C_X1 - CB)

    def stage_w3(self):
        A = self.A
        NT = 7
        ST, K, acc, buf, XR, CS = 32, 40, 48, 104, 160, 224
        self.big_pre(X1, ST1)
        A(f's_add_u32 s29, s29, {C_X1}')
        A(f's_mul_i32 s30, {s(sT0)}, {56 * KB}')
        A(f's_add_u32 s30, s30, {s(sP)}')
        A(f's_add_u32 s30, s30, {G}')
        A(f's_lshl_b32 s32, {s(sCG16)}, 9')
        A(f's_add_u32 s32, s32, s30')
        A(f's_add_u32 s32, s32, {48 * KB}')
        A(f's_mul_i32 s31, {s(sCG16)}, {3 * KB}')
        A(f's_add_u32 s30, s30, s31')
        A(f's_add_u32 s31, s30, {56 * KB}')
        A(f'v_bfe_u32 v3, {v(VLANE)}, 4, 1')
        A(f'v_mul_u32_u24 v13, {56 * KB}, v3')
        A(f'v_lshrrev_b32 v3, 5, {v(VLANE)}')
        A(f'v_lshl_add_u32 v13, v3, 8, v13')
        A(f'v_and_b32 v3, 0xf0, {v(VL16)}')
        A(f'v_add_u32 v13, v13, v3')
        self.lwait(L_CR, 6, 252)
        self.wpre(2, NT, buf, map_w3)
        self.poll(29, VP2, 16)
        self.pstamp()

        def f():
            for mt in range(2):
                self.stats_consume(ST + 4 * mt, 3)
                self.rstd(ST + 4 * mt + 2, ST + 4 * mt + 1)
                self.gelu_consts(K + 4 * mt, ST + 4 * mt + 2)
        self.big_main(NT, acc, buf, XR, ST, self.rec(f), map_w3, 13, 7, 8, 9)
        for mt in range(2):
            P = acc + 28 * mt
            A.wait(lg=A.lmark() - 1)
            self.ln_fix(P, 28, CS, ST + 4 * mt)
            out = 160 + 12 * mt
            self.gelu(P, 28, K + 4 * mt, buf, None)
            self.pack(out, buf, 12)
            self.pack(184 + 2 * mt, buf + 24, 2)
            lst = [(v(out + 4 * q, 4), 30 + mt, q * KB, VL16, 4, None) for q in range(3)]
            if mt == 1:
                A('v_permlane16_swap_b32 v184, v186')
                A('v_permlane16_swap_b32 v185, v187')
                lst.append((v(184, 4), 32, 0, 13, 4, None))
            self.stores(lst, sP if 'gsc1' in OPT else sFAST if ('gt' in OPT or 'gt2' in OPT) else sFG)
        self.flag(sF16, C_G - CB, two=True)

    def stage_w4(self, Lfinal):
        A = self.A
        XR, buf = 64, 144
        self.small_pre(G, 56)
        self.lwait(L_CR, 8, 252)
        self.wpre(6, 4, buf, map_w4)
        self.poll(29, VL4, 16, ioff=C_G - CB)
        self.pstamp()

        def hook2(j, t):
            if j == 16 and t == 3:
                self.sig(L_CF, 10)
            if j == 38 and t == 3:
                self.sig(L_CF, 11)

        preread = self.acheck([(11, L_CR, 9, 252, False, None), (39, L_CR, 10, 252, False, None)])
        self.small_main(56, RES, buf, XR, 20, self.D4, lambda j: (26, (j & 3) * KB, VL16), map_w4,
                        hook2=hook2, preread=preread, fsig=12, NB=6)
        A(f's_cmp_eq_u32 {s(sPAIR)}, 1')
        A(f's_cbranch_scc1 {Lfinal}')
        self.store_tile(RES, XR, X0, ST0, nextpair=True)
        self.flag(sF8, C_X - CB + CSTRIDE)

    def dump2(self):
        if not self.prof:
            return
        A = self.A
        A(f's_lshl_b32 s55, s2, 2')
        A(f's_add_u32 s55, s55, {s(SW)}')
        A(f's_lshl_b32 s55, s55, 1')
        A(f's_add_u32 s55, s55, {s(sPAIR)}')
        A(f's_lshl_b32 s55, s55, 8')
        A(f's_add_u32 s55, s55, {DBG + 512 * 128}')
        A(f'v_writelane_b32 v12, {s(sFAST)}, 61')
        A(f'buffer_store_dword v12, {v(VL4)}, {s(SRD, 4)}, s55 offen')

    def piece_decode(self, sp):
        A = self.A
        L3, L4, LJ = A.newlabel('pd3'), A.newlabel('pd4'), A.newlabel('pdj')
        A(f's_mov_b32 s98, 0')
        A(f's_cmp_ge_u32 {s(sp)}, 832')
        A(f's_cbranch_scc1 {L4}')
        A(f's_cmp_ge_u32 {s(sp)}, 384')
        A(f's_cbranch_scc1 {L3}')
        A(f's_lshr_b32 s28, {s(sp)}, 7')
        A(f's_and_b32 s29, {s(sp)}, 7')
        A(f's_bfe_u32 s30, {s(sp)}, 0x40003')
        A(f's_cmp_eq_u32 s28, 1')
        A(f's_cselect_b64 {s(SRD2, 2)}, {s(PA + 10, 2)}, {s(PA + 12, 2)}')
        A(f's_cmp_eq_u32 s28, 0')
        A(f's_cselect_b64 {s(SRD2, 2)}, {s(PA + 6, 2)}, {s(SRD2, 2)}')
        A(f's_mov_b32 {s(SRD2 + 2)}, {512 * KB}')
        A(f's_mov_b32 s93, 1024')
        A(f's_lshl_b32 s99, s28, 3')
        A(f's_add_u32 s99, s99, s29')
        A(f's_lshl_b32 s94, s99, 4')
        A(f's_add_u32 s94, s94, s30')
        A(f's_lshl_b32 s94, s94, 12')
        A(f's_add_u32 s94, s94, {WO}')
        for t in range(1, 4):
            A(f's_add_u32 {s(94 + t)}, s94, {t * KB}')
        A(f's_branch {LJ}')
        A.label(L3)
        A(f's_sub_u32 s28, {s(sp)}, 384')
        A(f's_and_b32 s30, s28, 15')
        A(f's_lshr_b32 s29, s28, 4')
        A(f's_mov_b64 {s(SRD2, 2)}, {s(PA + 14, 2)}')
        A(f's_mov_b32 {s(SRD2 + 2)}, {1792 * KB}')
        A(f's_mov_b32 s93, 3584')
        A(f's_add_u32 s99, s29, 24')
        A(f's_mul_i32 s31, s30, {7 * KB}')
        A(f's_add_u32 s31, s31, {W3}')
        for t in range(4):
            A(f's_lshl_b32 s28, s29, 2')
            A(f's_add_u32 s28, s28, {t}')
            A(f's_mul_i32 s32, s28, 43')
            A(f's_lshr_b32 s32, s32, 8')
            A(f's_mul_i32 s33, s32, 6')
            A(f's_sub_u32 s33, s28, s33')
            A(f's_sub_u32 s36, s28, 96')
            A(f's_cmp_ge_u32 s28, 96')
            A(f's_cselect_b32 s32, s36, s32')
            A(f's_cselect_b32 s33, 6, s33')
            A(f's_mul_i32 s32, s32, 112')
            A(f's_add_u32 s32, s32, s33')
            A(f's_lshl_b32 s32, s32, 10')
            A(f's_add_u32 {s(94 + t)}, s32, s31')
        A(f's_branch {LJ}')
        A.label(L4)
        A(f's_sub_u32 s28, {s(sp)}, 832')
        A(f's_and_b32 s29, s28, 7')
        A(f's_lshr_b32 s30, s28, 3')
        A(f's_mov_b64 {s(SRD2, 2)}, {s(PA + 16, 2)}')
        A(f's_mov_b32 {s(SRD2 + 2)}, {1792 * KB}')
        A(f's_mov_b32 s93, 1024')
        A(f's_add_u32 s99, s29, 52')
        A(f's_cmp_ge_u32 s30, 48')
        A(f's_cselect_b32 s98, 1, 0')
        A(f's_mul_i32 s94, s29, 56')
        A(f's_add_u32 s94, s94, s30')
        A(f's_lshl_b32 s94, s94, 12')
        A(f's_add_u32 s94, s94, {W4}')
        for t in range(1, 4):
            A(f's_add_u32 {s(94 + t)}, s94, {t * KB}')
        A.label(LJ)
        A(f's_mul_i32 s92, s30, s93')
        A(f's_lshl_b32 s92, s92, 5')
        A(f's_lshl_b32 s29, s29, 7')
        A(f's_add_u32 s92, s92, s29')
        A(f's_lshl_b32 s99, s99, 7')
        A(f's_add_u32 s99, s99, {PC}')
        A(f'v_lshrrev_b32 v80, 3, {v(VLANE)}')
        A(f'v_mul_u32_u24 v80, s93, v80')
        A(f'v_lshrrev_b32 v81, 1, {v(VLANE)}')
        A(f'v_lshrrev_b32 v82, 4, {v(VLANE)}')
        A(f'v_xor_b32 v81, v81, v82')
        A(f'v_and_b32 v81, 3, v81')
        A(f'v_lshl_add_u32 v80, v81, 5, v80')
        A(f'v_and_b32 v81, 1, {v(VLANE)}')
        A(f'v_lshl_add_u32 v80, v81, 4, v80')
        A(f's_lshl_b32 s93, s93, 3')
        for i in range(4):
            A(f's_add_u32 m0, s100, {i * KB}')
            self.dma(92, 0, voff=80, srd=SRD2)
            if i < 3:
                A(f's_add_u32 s92, s92, s93')
        return A.vmark()

    def piece_finish(self):
        A = self.A
        A(f's_cmp_eq_u32 s98, 1')
        A(f's_cselect_b32 s28, 8, 4')
        A(f's_cselect_b32 s29, 4, 16')
        A(f'v_lshrrev_b32 v81, 4, {v(VLANE)}')
        A(f'v_mul_u32_u24 v81, s28, v81')
        A(f'v_bfe_u32 v82, {v(VLANE)}, 2, 2')
        A(f'v_add_u32 v81, v81, v82')
        A(f'v_and_b32 v82, 3, {v(VLANE)}')
        A(f'v_lshlrev_b32 v82, 3, v82')
        A(f'v_add_u32 v82, s100, v82')
        for u in range(2):
            if u:
                A(f'v_add_u32 v81, s29, v81')
            A(f'v_bfe_u32 v83, v81, 1, 2')
            A(f'v_lshl_add_u32 v83, v83, 5, v82')
            A(f'v_lshl_add_u32 v83, v81, 7, v83')
            for t in range(4):
                A(f'v_xor_b32 v84, {32 * t}, v83')
                A(f'ds_read_b64_tr_b16 {v(88 + 4 * t + 2 * u, 2)}, v84')
        A.wait_all(vm=False)
        for t in range(4):
            A(f'buffer_store_dwordx4 {v(88 + 4 * t, 4)}, {v(VL16)}, {s(SRD, 4)}, {s(94 + t)} offen sc1')

    def count(self, sreg):
        A = self.A
        A('s_mov_b64 exec, 1')
        A(f'buffer_atomic_add {v(VONE)}, {v(VL4)}, {s(SRD, 4)}, {s(sreg)} offen')
        A('s_mov_b64 exec, -1')

    def cs_add(self, accs, addr):
        A = self.A
        A(f'v_and_b32 v3, 15, {v(VLANE)}')
        for i in range(1, 4):
            A(f'v_cmp_eq_u32 {s(26 + 2 * i, 2)}, {i}, v3')
        for r, a_, off in accs:
            for i in range(1, 4):
                A(f'v_cndmask_b32 {v(r)}, {v(r)}, {v(r + i)}, {s(26 + 2 * i, 2)}')
        A('s_mov_b32 exec_lo, 0x000f000f')
        A('s_mov_b32 exec_hi, 0x000f000f')
        for r, a_, off in accs:
            A(f'ds_add_f32 {v(a_)}, {v(r)} offset:{off}')
        A('s_mov_b64 exec, -1')

    def loader(self):
        A = self.A
        sLW = 26
        ONES = 16
        A(f's_sub_u32 {s(sLW)}, {s(SW)}, 4')
        if 'lp' in OPT or 'lp0' in OPT:
            A('s_setprio 3')
        self.nstamp = 0
        if self.prof:
            A('v_mov_b32 v12, 0')
            A('s_memrealtime s[60:61]')
            A('s_waitcnt lgkmcnt(0)')
            A('v_writelane_b32 v12, s60, 63')
        self.pstamp()
        A(f's_mov_b64 {s(SRD2, 2)}, {s(PA + 4, 2)}')
        A(f's_mov_b32 {s(SRD2 + 2)}, {32 * 512}')
        A(f's_lshl_b32 s28, {s(sCG16)}, 10')
        A(f's_mov_b32 m0, {PHL}')
        self.dma(28, srd=SRD2)
        A(f's_mov_b64 {s(SRD2, 2)}, {s(PA + 2, 2)}')
        A(f's_mov_b32 {s(SRD2 + 2)}, {512 * 3072}')
        A(f'v_lshrrev_b32 v40, 2, {v(VLANE)}')
        A(f'v_mul_u32_u24 v40, 3072, v40')
        A(f'v_lshrrev_b32 v41, 4, {v(VLANE)}')
        A(f'v_xor_b32 v41, v41, {v(VLANE)}')
        A(f'v_and_b32 v41, 3, v41')
        A(f'v_lshl_add_u32 v40, v41, 4, v40')
        A(f's_lshl_b32 s59, {s(sCG16)}, 6')
        mw = {}
        for c in range(4):
            A(f's_add_u32 s28, {s(sT0)}, {c}')
            A(f's_and_b32 s28, s28, 3')
            A(f's_lshl_b32 s28, s28, 2')
            A(f's_add_u32 s28, s28, {s(sLW)}')
            A(f's_lshl_b32 {s(40 + c)}, s28, 12')
            A(f's_lshl_b32 {s(44 + c)}, s28, 11')
            A(f's_add_u32 {s(44 + c)}, {s(44 + c)}, {64 * KB}')

        def wdma(u):
            A(f's_mul_i32 s38, {s(40 + (u & 3))}, 24')
            A(f's_add_u32 s38, s38, s59')
            for hr in range(2):
                for p in ((1, 2) if u < 4 else (0,)):
                    A(f's_add_u32 m0, {s(40 + u)}, {max(p - 1, 0) * 2 * KB + hr * KB}')
                    A(f's_add_u32 s29, s38, {hr * 16 * 3072 + p * KB}')
                    self.dma(29, 0, voff=40, srd=SRD2)
            mw[u] = A.vmark()
        for u in range(4):
            wdma(u)
        A.wait_all(vm=False)
        self.pstamp()
        for i in range(4):
            A(f'v_mov_b32 {v(ONES + i)}, 0x3f803f80')
        A(f'v_mov_b32 {v(VONE)}, 1')
        A(f'v_and_b32 v32, 15, {v(VLANE)}')
        A(f'v_lshrrev_b32 v33, 4, {v(VLANE)}')
        A(f'v_lshrrev_b32 v34, 2, v32')
        A(f'v_lshrrev_b32 v35, 1, v33')
        A(f'v_xor_b32 v35, v35, v34')
        A(f'v_lshlrev_b32 v35, 4, v35')
        A(f'v_lshl_add_u32 v35, v32, 6, v35')
        A(f'v_and_b32 v36, 1, v33')
        A(f'v_lshl_add_u32 v35, v36, 3, v35')
        A(f'v_xor_b32 v36, 32, v35')
        A(f'v_bfe_u32 v37, {v(VLANE)}, 1, 1')
        A(f'v_xor_b32 v37, v37, v33')
        A(f'v_lshlrev_b32 v37, 4, v37')
        A(f'v_lshrrev_b32 v38, 2, {v(VLANE)}')
        A(f'v_lshl_add_u32 v37, v38, 6, v37')
        A(f'v_and_b32 v38, 1, {v(VLANE)}')
        A(f'v_lshl_add_u32 v37, v38, 3, v37')
        A(f'v_xor_b32 v38, 32, v37')
        A(f'v_and_b32 v39, 1, v34')
        A(f'v_lshlrev_b32 v39, 10, v39')
        A(f'v_lshl_add_u32 v39, v33, 8, v39')
        A(f'v_lshrrev_b32 v34, 3, v32')
        A(f'v_lshl_add_u32 v39, v34, 7, v39')
        A(f'v_and_b32 v34, 3, v32')
        A(f'v_lshl_add_u32 v39, v34, 4, v39')
        A(f'v_lshlrev_b32 v46, 3, {v(VLANE)}')
        A(f'v_add_u32 v46, {PHL}, v46')
        A(f'v_and_b32 v30, 1, v33')
        A(f'v_lshlrev_b32 v30, 6, v30')
        A(f'v_lshrrev_b32 v34, 1, v33')
        A(f'v_lshl_add_u32 v30, v34, 5, v30')
        A(f'v_add_u32 v30, {L_CSQ}, v30')
        A(f'v_lshl_add_u32 v30, v32, 2, v30')
        A(f'v_lshlrev_b32 v31, 4, v33')
        A(f'v_add_u32 v31, {PERM}, v31')
        A(f'v_lshl_add_u32 v31, v32, 2, v31')
        F, C, CSA = 104, 104, 136

        def RB(u):
            return 160 + 16 * u if u < 4 else 224 + 8 * (u - 4)

        def reads(u):
            R = RB(u)
            for r in range(4 if u < 4 else 2):
                A(f'v_add_u32 {v(64 + r)}, {s(40 + u)}, {v(35 + r)}')
            A.wait(vm=mw[u])
            if u == 0:
                A(f'ds_read_b64_tr_b16 v[20:21], v46')
                A(f'ds_read_b64_tr_b16 v[22:23], v46 offset:512')
            for hh in range(2):
                for h2 in range(2):
                    A(f'ds_read_b64 {v(R + 4 * hh + 2 * h2, 2)}, {v(64 + hh)} offset:{h2 * KB}')
            if u < 4:
                for hh in range(2):
                    for h2 in range(2):
                        A(f'ds_read_b64_tr_b16 {v(R + 8 + 4 * hh + 2 * h2, 2)}, {v(66 + hh)} offset:{2 * KB + h2 * KB}')
            return A.lmark()
        rm = reads(0)
        for u in range(8):
            R = RB(u)
            A(f'v_add_u32 v68, {s(40 + u)}, v39')
            if u < 4:
                A(f'v_add_u32 v69, {s(40 + u)}, {v(VL16)}')
            A.wait(lg=rm)
            for hh in range(2):
                for h2 in range(2):
                    A(f'v_mfma_f32_16x16x16_bf16 {v(C + 8 * hh + 4 * h2, 4)}, {v(R + 4 * hh + 2 * h2, 2)}, {v(20 + 2 * hh, 2)}, 0')
            if u < 4:
                for hh in range(2):
                    A(f'ds_write_b128 v69, {v(R + 8 + 4 * hh, 4)} offset:{(2 + hh) * KB}')
            if u not in (3, 7):
                rm = reads(u + 1)
            for hh in range(2):
                self.pack(R + 4 * hh, C + 8 * hh, 4)
                A(f'ds_write_b128 v68, {v(R + 4 * hh, 4)} offset:{hh * 64}')
            if u in (3, 7):
                self.sig(L_CR, 1 if u == 3 else 2)
            for t in range(4 if u < 4 else 2):
                a_ = CSA + 4 * t + (16 if u >= 4 else 0)
                A(f'v_mfma_f32_16x16x32_bf16 {v(a_, 4)}, {v(R + 4 * t, 4)}, {v(ONES, 4)}, {"0" if (u & 3) == 0 else v(a_, 4)}')
            if u == self.QD:
                for u2 in range(4, 8):
                    wdma(u2)
            if u == 3:
                self.pstamp()
                self.cs_add([(CSA + 4 * hh, 30, hh * 16) for hh in range(2)] + [(CSA + 8 + 4 * hh, 31, (2 + hh) * 64) for hh in range(2)], None)
                self.sig(L_CS, 1, absv=True)
                A(f's_lshl_b32 s100, {s(sLW)}, 12')
                A(f's_add_u32 s100, s100, {PST}')
                A(f's_lshl_b32 s49, s2, 2')
                A(f's_add_u32 s49, s49, {s(sLW)}')
                m_p1 = self.piece_decode(49)
                rm = reads(4)
        self.cs_add([(CSA + 16 + 4 * hh, 30, 256 + hh * 16) for hh in range(2)], None)
        self.sig(L_CS, 2, absv=True)
        A.wait_all(vm=False)
        self.pstamp()
        A.wait(vm=m_p1)
        self.piece_finish()
        bases = {}
        for r, (nm, WP, scg, sz) in enumerate((('q', WQKV, sCG16, 96), ('o', WO, sCG8, 64), ('1', W1, sCG8, 64), ('2', W2, sCG8, 64),
                                               ('3', W3, sCG16, 112), ('4', W4, sCG8, 224))):
            A(f's_mul_i32 {s(52 + r)}, {s(scg)}, {sz * KB}')
            A(f's_add_u32 {s(52 + r)}, {s(52 + r)}, {WP}')
            bases[nm] = 52 + r
        self.lwait(L_INIT, 1, 24, sleep=1, single=True)
        self.pstamp()
        A('s_lshr_b32 s34, s2, 3')
        A('s_lshl_b32 s34, s34, 2')
        A(f's_add_u32 s34, s34, {s(sLW)}')
        A(f'v_lshlrev_b32 v21, 7, {v(VLANE)}')
        A(f's_lshl_b32 s37, {s(sLW)}, 10')
        SCR, RSZ = 96 * KB, 336
        A(f'v_bfe_u32 v3, {v(VLANE)}, 2, 2')
        A(f'v_lshl_add_u32 v3, v33, 3, v3')
        A(f'v_mul_u32_u24 v47, {RSZ}, v3')
        A(f'v_and_b32 v3, 3, {v(VLANE)}')
        A(f's_lshr_b32 s30, {s(sLW)}, 1')
        A(f's_and_b32 s31, {s(sLW)}, 1')
        A(f's_lshl_b32 s32, s30, 6')
        A(f's_lshl_b32 s33, s31, 3')
        A(f's_add_u32 s32, s32, s33')
        A(f's_add_u32 s32, s32, {SCR + 128}')
        A(f'v_lshl_add_u32 v48, v3, 4, v47')
        A(f'v_add_u32 v48, s32, v48')
        A(f's_lshl_b32 s32, s30, 5')
        A(f's_add_u32 s32, s32, {SCR + 256}')
        A(f'v_lshl_add_u32 v49, v3, 3, v47')
        A(f'v_add_u32 v49, s32, v49')
        A(f's_lshl_b32 s40, {s(sCG16)}, 12')
        A(f's_add_u32 s40, s40, s37')
        A(f's_add_u32 s40, s40, {KV}')
        A(f's_lshl_b32 s41, {s(sCG16)}, 8')
        A(f's_lshl_b32 s33, s30, 7')
        A(f's_add_u32 s41, s41, s33')
        A(f's_lshl_b32 s31, s31, 4')
        A(f's_add_u32 s41, s41, s31')
        A(f's_add_u32 s41, s41, {Z}')
        A(f's_lshl_b32 s48, {s(sCG16)}, {CSH}')
        A(f's_add_u32 s48, s48, {C_KV}')
        A(f'v_lshlrev_b32 v50, 5, v33')
        A(f'v_lshl_add_u32 v51, v32, 2, v50')
        A(f'v_mov_b32 v3, {OOB}')
        A(f'v_cmp_gt_u32 vcc, 4, v32')
        A(f'v_cndmask_b32 v51, v3, v51, vcc')
        A(f'v_cmp_eq_u32 s[42:43], 1, v32')
        A(f'v_cmp_eq_u32 s[44:45], 2, v32')
        A(f'v_cmp_eq_u32 s[46:47], 3, v32')

        def kvjob(mid=None):
            TA, TB, KVA, ZA = 104, 120, 136, 140
            kp = 'kprof' in OPT
            if kp:
                self.nstamp = 0
                A('s_memrealtime s[60:61]')
                A('s_waitcnt lgkmcnt(0)')
                A('v_mov_b32 v12, 0')
                A('v_writelane_b32 v12, s60, 63')
                self.pstamp()
            self.lwait(L_CB, 1, 24, sleep=1)
            A('s_setprio 3')
            if kp:
                self.pstamp()
            for ks in range(4):
                for u2 in range(2):
                    off = (32 * ks + 4 * u2) * RSZ
                    A(f'ds_read_b64_tr_b16 {v(TA + 4 * ks + 2 * u2, 2)}, v48 offset:{off}')
                    A(f'ds_read_b64_tr_b16 {v(TB + 4 * ks + 2 * u2, 2)}, v49 offset:{off}')
                if ks == 2:
                    A.wait(lg=A.lmark() - 8)
            base = A.lmark() - 16
            for ks in range(4):
                A.wait(lg=base + 4 * ks + 4)
                A(f'v_mfma_f32_16x16x32_bf16 {v(KVA, 4)}, {v(TA + 4 * ks, 4)}, {v(TB + 4 * ks, 4)}, {"0" if ks == 0 else v(KVA, 4)}')
                A(f'v_mfma_f32_16x16x32_bf16 {v(ZA, 4)}, {v(TA + 4 * ks, 4)}, {v(ONES, 4)}, {"0" if ks == 0 else v(ZA, 4)}')
            for r in range(4):
                o = f' offset:{256 * r}' if r else ''
                A(f'buffer_atomic_add_f32 {v(KVA + r)}, {v(VL4)}, {s(SRD, 4)}, s40 offen{o}')
            for i in range(1, 4):
                A(f'v_cndmask_b32 {v(ZA)}, {v(ZA)}, {v(ZA + i)}, {s(40 + 2 * i, 2)}')
            A(f'buffer_atomic_add_f32 {v(ZA)}, v51, {s(SRD, 4)}, s41 offen')
            if kp:
                self.pstamp()
            A('s_waitcnt vmcnt(0)')
            A.vm_done = A.vm
            if kp:
                self.pstamp()
            self.sig(L_KD, 1)
            self.lwait(L_KD, 1, 24)
            Lk = A.newlabel('kadd')
            A(f's_cmp_lg_u32 {s(sLW)}, 3')
            A(f's_cbranch_scc1 {Lk}')
            self.count(48)
            A.label(Lk)
            A('s_setprio 0')
            if kp:
                self.pstamp()
                A('s_waitcnt vmcnt(0)')
                self.pstamp()
                A(f's_lshl_b32 s33, s2, 2')
                A(f's_add_u32 s33, s33, {s(sLW)}')
                A(f's_lshl_b32 s33, s33, 8')
                A(f's_add_u32 s33, s33, {DBG + 1024 * KB}')
                A(f'buffer_store_dword v12, {v(VL4)}, {s(SRD, 4)}, s33 offen')
        L, L3 = A.newlabel('lloop'), A.newlabel('lb3')
        if 'lp0' in OPT:
            A('s_setprio 0')
        A.wait_all()
        self.count(99)
        A(f's_branch {L3}')
        A.label(L)

        def run(nm, src0, lds0, n):
            for i in range(0, n, 4):
                if i + 4 <= n:
                    A(f's_add_u32 m0, s37, {lds0 + i * KB}')
                    A(f's_add_u32 s28, s37, {src0 + i * KB}')
                else:
                    A(f's_min_u32 s28, s37, {(n - 1 - i) * KB}')
                    A(f's_add_u32 m0, s28, {lds0 + i * KB}')
                    A(f's_add_u32 s28, s28, {src0 + i * KB}')
                A(f's_add_u32 s28, s28, {s(bases[nm])}')
                self.dma(28)

        def steps(nm, lmap, NT, j0, j1):
            j = j0
            while j < j1:
                e = j + 1
                while e < j1 and lmap(e) == lmap(e - 1) + NT * KB:
                    e += 1
                run(nm, j * NT * KB, lmap(j), (e - j) * NT)
                j = e

        def only(pair, fn):
            Lx = A.newlabel('only')
            A.wait_all(vm=False)
            A(f's_cmp_lg_u32 {s(sPAIR)}, {pair}')
            A(f's_cbranch_scc1 {Lx}')
            vmd = A.vm_done
            fn()
            A.wait_all(vm=False)
            A.vm_done = vmd
            A.label(Lx)

        def touch(base, size):
            share = size // 128
            A(f's_mul_i32 s33, s34, {share}')
            A(f's_add_u32 s33, s33, {base}')
            vm0 = A.vm
            for i in range((share + 8191) // 8192):
                A(f'buffer_load_dword v20, v21, {s(SRD, 4)}, s33 offen')
                A(f's_add_u32 s33, s33, 8192')
            A.vm = vm0

        PK_ = 28

        def pfl(base, size, trig):
            self.lwait(L_PS, trig, 24, sleep=2)
            share = size // 128
            lines = share // 128
            A(f's_mul_i32 s33, s34, {share}')
            A(f's_add_u32 s33, s33, {base}')
            A(f's_mov_b64 exec, {(1 << PK_) - 1:#x}')
            A(f's_mov_b32 s36, {(lines + PK_ - 1) // PK_}')
            Lp_ = A.newlabel('pf')
            A.label(Lp_)
            A(f'buffer_load_dword v20, v21, {s(SRD, 4)}, s33 offen')
            A(f's_add_u32 s33, s33, {PK_ * 128}')
            A('s_sub_u32 s36, s36, 1')
            A('s_cmp_lg_u32 s36, 0')
            A('s_waitcnt vmcnt(0)')
            A(f's_cbranch_scc1 {Lp_}')
            A('s_mov_b64 exec, -1')

        def need(idx0, scg, n, stride, target):
            A(f's_lshl_b32 s33, {s(scg)}, 7')
            A(f's_add_u32 s33, s33, {PC + idx0 * 128}')
            A(f'v_mul_u32_u24 v23, {stride}, v21')
            self.poll(33, 23, n, target=target, mode='load')

        def need3():
            A(f's_mul_i32 s33, {s(sCG16)}, 6')
            A(f's_lshr_b32 s33, s33, 2')
            A(f'v_add_u32 v23, s33, {v(VLANE)}')
            A(f's_lshr_b32 s33, {s(sCG16)}, 2')
            A(f's_add_u32 s33, s33, 24')
            A(f'v_writelane_b32 v23, s33, 2')
            A(f'v_lshlrev_b32 v23, 7, v23')
            A(f's_mov_b32 s33, {PC + 24 * 128}')
            self.poll(33, 23, 3, target=16, mode='load')

        def cs_build(k, lmap, NT, loc, val):
            self.lwait(L_CR, k, 24, sleep=1)
            st = NT * KB
            A(f's_mul_i32 s28, {s(sLW)}, {st}')
            base = min(lmap(j) for j in range(16))
            assert sorted(lmap(j) for j in range(16)) == [base + j * st for j in range(16)]
            A(f's_add_u32 s28, s28, {base}')
            A(f'v_add_u32 v45, s28, {v(VL16)}')
            for c in range(4):
                for t in range(NT):
                    A(f'ds_read_b128 {v(64 + 4 * t, 4)}, v45 offset:{(c & 1) * 4 * st + t * KB}')
                A.wait_all(vm=False)
                for t in range(NT):
                    A(f'v_mfma_f32_16x16x32_bf16 {v(CSA + 4 * t, 4)}, {v(64 + 4 * t, 4)}, {v(ONES, 4)}, {"0" if c == 0 else v(CSA + 4 * t, 4)}')
                if c == 1:
                    A(f'v_add_u32 v45, {8 * st}, v45')
            self.cs_add([(CSA + 4 * t, 31, loc - PERM + t * 64) for t in range(NT)], None)
            self.sig(L_CS, val, absv=True)

        def batch(k, parts, after=None):
            self.lwait(L_CF, k, 24, sleep=2)
            for p in parts:
                steps(*p)
            m = A.vmark()
            if after:
                after()
            A.wait(vm=m)
            self.sig(L_CR, k)
        A.vm_done = A.vm
        need(60, sCG16, 1, 0, 16)
        lin = lambda j: j * KB
        batch(1, [('q', lin, 1, 0, 84)])
        batch(2, [('q', lin, 1, 84, 96)])
        D1 = [('o', map_wo, 4, 0, 16), ('1', map_w1, 4, 0, 4)]
        if 'd1e' in OPT:
            self.lwait(L_CF, 3, 24, sleep=1)
            for p in D1:
                steps(*p)
        A.wait_all(vm=False)
        A.label(L3)
        kvjob()

        def ldump():
            Ln = A.newlabel('nomode')
            A(f's_cmp_lg_u32 {s(sLW)}, 0')
            A(f's_cbranch_scc1 {Ln}')
            A('s_getreg_b32 s30, hwreg(HW_REG_XCC_ID)')
            A('s_and_b32 s30, s30, 15')
            A('s_mul_i32 s31, s30, s30')
            A('s_lshl_b32 s31, s31, 16')
            A('s_lshl_b32 s30, s30, 7')
            A('s_add_u32 s30, s30, s31')
            A('s_add_u32 s58, s30, 1')
            A('s_and_b32 s59, s2, 7')
            A('s_lshl_b32 s59, s59, 7')
            A(f's_add_u32 s59, s59, {XW}')
            self.poll(59, VL4, 1, target=32, mode='load', mask=0x7f)
            A('v_readfirstlane_b32 s30, v3')
            A('s_lshl_b32 s31, s58, 5')
            A('s_cmp_eq_u32 s30, s31')
            A(f's_cselect_b32 s33, {1 if "slow" in OPT else 2}, 1')
            A('v_mov_b32 v3, s33')
            A(f'ds_write_b32 {v(VPERM)}, v3 offset:{L_MODE - L_CF}')
            A.wait_all(vm=False)
            A.label(Ln)
            Lq = A.newlabel('nq')
            A(f's_and_b32 s28, {s(sT0)}, 3')
            A(f's_cmp_lg_u32 s28, {s(sLW)}')
            A(f's_cbranch_scc1 {Lq}')
            A(f's_lshl_b32 s28, {s(sT0)}, 12')
            A(f's_lshl_b32 s29, {s(sT0)}, 11')
            A(f's_add_u32 s29, s29, {64 * KB}')
            A(f'v_add_u32 v45, s28, {v(VL16)}')
            A(f'v_add_u32 v44, s29, {v(VL16)}')
            A(f's_add_u32 s28, s28, s52')
            A(f's_add_u32 s29, s29, s52')
            for t in range(6):
                A(f'ds_read_b128 {v(F + 4 * t, 4)}, {v(45 if t < 4 else 44)} offset:{(t & 3) * KB}')
            A.wait_all(vm=False)
            for t in range(6):
                A(f'buffer_store_dwordx4 {v(F + 4 * t, 4)}, {v(VL16)}, {s(SRD, 4)}, {s(28 + (t >> 2))} offen offset:{(t & 3) * KB} sc1')
            A.label(Lq)
            self.sig(L_CS, 3, absv=True)
            need(0, sCG8, 3, 8, 16)
            L2 = A.newlabel('ncq')
            A(f's_and_b32 s28, {s(sT0)}, 3')
            A(f's_cmp_lg_u32 s28, {s(sLW)}')
            A(f's_cbranch_scc1 {L2}')
            A(f's_lshl_b32 s28, {s(sCG16)}, 7')
            A(f's_add_u32 s28, s28, {PC + 60 * 128}')
            self.count(28)
            A.label(L2)
            self.lwait(L_CS, 3, 24, sleep=1, absv=True)
            if self.prof and 'kprof' not in OPT:
                self.pstamp()
                A(f's_lshl_b32 s33, s2, 2')
                A(f's_add_u32 s33, s33, {s(sLW)}')
                A(f's_lshl_b32 s33, s33, 8')
                A(f's_add_u32 s33, s33, {DBG + 1024 * KB}')
                A(f'buffer_store_dword v12, {v(VL4)}, {s(SRD, 4)}, s33 offen')
        only(0, ldump)
        if 'd1e' in OPT:
            def d1():
                for p in D1:
                    steps(*p)
                A('s_waitcnt vmcnt(0)')
            only(0, d1)
            self.sig(L_CR, 3)
        else:
            batch(3, D1)
        if 'pq' in OPT:
            only(1, lambda: pfl(W2, 1536 * KB, 1))
        if 'touch' in OPT:
            only(1, lambda: touch(W3, 1024 * KB))
        batch(4, [('1', map_w1, 4, 4, 16), ('2', map_w2, 4, 0, 7)])
        only(0, lambda: (cs_build(4, map_w1, 4, L_CS1, 4), A.wait_all(vm=False), need3()))
        batch(5, [('2', map_w2, 4, 7, 16), ('3', map_w3, 7, 0, 3)])
        batch(6, [('3', map_w3, 7, 3, 13)])
        batch(7, [('3', map_w3, 7, 13, 16)])
        only(0, lambda: (cs_build(7, map_w3, 7, L_CS3, 5), A.wait_all(vm=False), need(52, sCG8, 1, 0, 56)))
        RG = int([o[2:] for o in OPT if o.startswith('rg')][0]) if any(o.startswith('rg') for o in OPT) else 99

        def regload():
            A(f's_add_u32 s28, s37, {s(bases["4"])}')
            A(f's_add_u32 s28, s28, {39 * 4 * KB}')
            for i in range(17):
                self.ldx(v(164 + 4 * i, 4), 28, sc=' sc1')
                A(f's_add_u32 s28, s28, {4 * KB}')
                if i % RG == RG - 1:
                    A.wait_all(lg=False)
        if 'v2' in OPT:
            self.lwait(L_PS, 2, 24, sleep=2)
            regload()
            batch(8, [('4', map_w4, 4, 0, 11)])
        elif 'v3' in OPT:
            batch(8, [('4', map_w4, 4, 0, 11)], regload)
        else:
            def gtouch():
                Lt = A.newlabel('gt')
                A(f'ds_read_b32 v24, {v(VPERM)} offset:{L_MODE - L_CF}')
                A.wait_all(vm=False)
                A('v_readfirstlane_b32 s33, v24')
                A('s_cmp_lg_u32 s33, 2')
                A(f's_cbranch_scc1 {Lt}')
                A(f's_mul_i32 s33, s34, {7 * KB}')
                A('s_and_b32 s36, s2, 7')
                A(f's_mul_i32 s36, s36, {896 * KB}')
                A('s_add_u32 s33, s33, s36')
                A(f's_add_u32 s33, s33, {G}')
                A('s_mov_b32 exec_hi, 0xffffff')
                A(f'buffer_load_dword v20, v21, {s(SRD, 4)}, s33 offen')
                A('s_mov_b32 exec_hi, -1')
                A.label(Lt)
            self.lwait(L_PS, 2, 24, sleep=2)
            if 'gt' in OPT:
                gtouch()
            steps('4', map_w4, 4, 0, 11)
            if 'gt2' in OPT:
                gtouch()
            A.wait_all(lg=False)
            self.sig(L_CR, 8)
            self.lwait(L_CF, 8, 24, sleep=2)
            regload()
        batch(9, [('4', map_w4, 4, 11, 39)])
        if 'noreg' not in OPT:
            A(f'v_add_u32 v45, s37, {v(VL16)}')
            A(f'v_add_u32 v45, {map_w4(50)}, v45')
            A(f'v_add_u32 v46, {32 * KB}, v45')
            self.lwait(L_CF, 10, 24, sleep=2)
            for i in range(17):
                o_ = map_w4(39 + i) - map_w4(50)
                A(f'ds_write_b128 {v(45 + (o_ >= 32 * KB))}, {v(164 + 4 * i, 4)} offset:{o_ - 32 * KB * (o_ >= 32 * KB)}')
            self.sig(L_CR, 10)
        else:
            batch(10, [('4', map_w4, 4, 39, 56)])
        A.wait_all()
        A(f's_add_u32 {s(sEV)}, {s(sEV)}, 10')
        A(f's_add_u32 s40, s40, {ZSTRIDE}')
        A(f's_add_u32 s41, s41, {ZSTRIDE}')
        A(f's_add_u32 s48, s48, {CSTRIDE}')
        A(f's_add_u32 {s(sPAIR)}, {s(sPAIR)}, 1')
        A(f's_cmp_lt_u32 {s(sPAIR)}, 2')
        A(f's_cbranch_scc1 {L}')
        A('s_endpgm')

    def main(self):
        A = self.A
        name = NAME + '_kernel'
        A.reset_kernel()
        A.raw('.p2align 8')
        A.raw(f'.globl {name}')
        A.raw(f'.type {name},@function')
        A.label(name)
        self.exit = A.newlabel('exit')
        A('s_cmp_ge_u32 s2, 256')
        A(f's_cbranch_scc1 {self.exit}')
        A(f's_load_dwordx16 {s(PA, 16)}, s[0:1], 0')
        A(f's_load_dwordx8 {s(PA + 16, 8)}, s[0:1], 64')
        if self.prof or 'dbgt' in OPT:
            A('s_memrealtime s[62:63]')
        Lpc = A.newlabel('pc')
        A('s_getpc_b64 s[40:41]')
        A.label(Lpc)
        A('v_lshlrev_b32 v3, 7, v0')
        A(f'v_min_u32 v3, code_end-{Lpc}-4, v3')
        A('global_load_dword v13, v3, s[40:41]')
        A(f'v_and_b32 {v(VLANE)}, 63, v0')
        A(f'v_lshrrev_b32 v3, 6, v0')
        A(f'v_lshlrev_b32 {v(VL16)}, 4, {v(VLANE)}')
        A(f'v_readfirstlane_b32 {s(SW)}, v3')
        A(f's_mov_b32 {s(SRD + 2)}, {WS_USED}')
        A(f's_mov_b32 {s(SRD + 3)}, 0x00020000')
        A(f's_mov_b32 {s(SRD2 + 3)}, 0x00020000')
        A(f's_mov_b32 {s(SRDD + 2)}, 256')
        A(f's_mov_b32 {s(SRDD + 3)}, 0x00020000')
        self.tile64(sT, sCG8)
        self.tile128(sT0, sCG16)
        A(f's_mov_b32 {s(sPAIR)}, 0')
        A(f's_mov_b32 {s(sTO)}, 0x40000')
        A(f'v_lshlrev_b32 {v(VL4)}, 2, {v(VLANE)}')
        A(f's_mov_b32 {s(sEV)}, 0')
        A(f'v_mov_b32 {v(VPERM)}, {L_CF}')
        A(f's_and_b32 s26, {s(SW)}, 3')
        A(f's_lshl_b32 s26, s26, 2')
        A(f'v_add_u32 {v(VOWN)}, s26, {v(VPERM)}')
        A(f'v_cmp_gt_u32 vcc, 4, {v(VLANE)}')
        A(f'v_cndmask_b32 v3, 0, 2, vcc')
        A(f'v_add_u32 v10, {v(VL4)}, {v(VPERM)}')
        A(f'ds_write_b32 v10, v3')
        A(f'v_lshlrev_b32 v10, 2, v0')
        A(f'v_add_u32 v10, {PERM}, v10')
        A(f'v_mov_b32 v11, 0')
        A(f'ds_write_b32 v10, v11')
        LC = A.newlabel('compute')
        A('s_waitcnt lgkmcnt(0)')
        A.lg_done = A.lg
        A(f's_mov_b64 {s(SRD, 2)}, {s(PA + 22, 2)}')
        A(f's_mov_b64 {s(SRDD, 2)}, {s(PA + 20, 2)}')
        if 'wpf' in OPT:
            A('s_lshr_b32 s26, s2, 3')
            A('s_lshl_b32 s27, s2, 2')
            A('s_add_u32 s26, s26, s27')
            A('s_and_b32 s26, s26, 31')
            A('s_lshl_b32 s26, s26, 3')
            A(f's_add_u32 s26, s26, {s(SW)}')
            A(f's_mul_i32 s26, s26, 6144')
            A(f's_mov_b64 {s(SRD2, 2)}, {s(PA + 2, 2)}')
            A(f's_mov_b32 {s(SRD2 + 2)}, {512 * 3072}')
            A(f'v_lshlrev_b32 v10, 7, {v(VLANE)}')
            A('s_mov_b32 exec_hi, 0xffff')
            A(f'buffer_load_dword v13, v10, {s(SRD2, 4)}, s26 offen')
            A('s_mov_b32 exec_hi, -1')
        A(f's_cmp_lt_u32 {s(SW)}, 4')
        A('s_barrier')
        A(f's_cbranch_scc1 {LC}')
        self.loader()
        A.label(LC)
        A.flush_hazards()
        A.vm = A.vm_done = A.lg = A.lg_done = 0
        if 'eq' not in OPT:
            A('s_setprio 2')
        A(f's_lshl_b32 {s(sT0)}, {s(sT0)}, 3')
        A(f's_lshl_b32 s26, {s(SW)}, 1')
        A(f's_add_u32 {s(sT0)}, {s(sT0)}, s26')
        Lz = A.newlabel('nz')
        A(f's_cmp_lt_u32 s2, 32')
        A(f's_cselect_b32 s58, {s(SW)}, 0')
        A(f's_cmp_lg_u32 s58, 3')
        A(f's_cbranch_scc1 {Lz}')
        for i in range(4):
            A(f'v_mov_b32 {v(28 + i)}, 0')
        A(f's_mul_i32 s28, s2, {9 * KB}')
        A(f's_add_u32 s28, s28, {ZR}')
        for i in range(9):
            A(f'buffer_store_dwordx4 v[28:31], {v(VL16)}, {s(SRD, 4)}, s28 offen offset:{(i % 3) * KB} sc1')
            if i % 3 == 2:
                A(f's_add_u32 s28, s28, {3 * KB}')
        A.label(Lz)
        A.vm_done = A.vm
        A('s_nop 0')
        A(f's_mov_b64 {s(SRD2, 2)}, {s(PA, 2)}')
        A(f's_mov_b32 {s(SRD2 + 2)}, {2048 * 512 * 2}')
        A(f'v_lshrrev_b32 v3, 4, {v(VLANE)}')
        A(f'v_and_b32 v10, 0xf0, {v(VL16)}')
        A(f'v_lshl_add_u32 v10, v3, 10, v10')
        A(f's_lshl_b32 s92, {s(sT0)}, 14')
        for i in range(1, 8):
            A(f's_add_u32 {s(92 + i)}, s92, {i * 4096}')
        PB = [128, 160, 192, 224]
        self.x0m = []

        def x0load(q4):
            for mt in range(2):
                for n in range(4):
                    self.ld(v(PB[q4] + 16 * mt + 4 * n, 4), 92 + 4 * mt + n, 256 * q4, voff=10, srd=SRD2)
                self.x0m.append(A.vmark())
        self.x0load = x0load
        for q4 in range(self.XPRE):
            x0load(q4)
        A(f's_mov_b32 {s(sP)}, 0')
        A(f's_mov_b32 {s(sZ)}, 0')
        A(f's_mov_b32 {s(sC)}, 0')
        A(f's_mov_b32 {s(sFAST)}, 0')
        A(f's_mov_b32 {s(sFG)}, 0')
        A(f's_lshl_b32 {s(sT)}, {s(sT)}, 2')
        A(f's_add_u32 {s(sT)}, {s(sT)}, {s(SW)}')
        A(f's_lshl_b32 {s(sTILE)}, {s(sT)}, 14')
        A(f's_lshl_b32 s26, {s(sCG8)}, 11')
        A(f's_add_u32 {s(sTILE)}, {s(sTILE)}, s26')
        A(f's_lshl_b32 {s(sSTP)}, {s(sT)}, 10')
        A(f's_lshl_b32 s26, {s(sCG8)}, 7')
        A(f's_add_u32 {s(sSTP)}, {s(sSTP)}, s26')
        A(f's_mov_b32 {s(sHH)}, {HH - H}')
        A(f's_and_b32 s26, {s(sT)}, 15')
        A(f's_bitcmp1_b32 {s(sCG8)}, 1')
        A(f's_cselect_b32 s27, 0, 15')
        A(f's_cmp_eq_u32 s26, s27')
        A(f's_cselect_b32 {s(sFH)}, 1, 0')
        A(f's_lshl_b32 s27, {s(sT)}, {CSH}')
        A(f's_add_u32 s28, s27, {C_HH - (1 << CSH)}')
        A(f's_add_u32 s27, s27, {C_HH + (1 << CSH) + 8}')
        A(f's_cmp_eq_u32 s26, 15')
        A(f's_cselect_b32 {s(sRH)}, s27, 0')
        A(f's_cmp_eq_u32 s26, 0')
        A(f's_cselect_b32 {s(sRH)}, s28, {s(sRH)}')
        A(f's_cmp_eq_u32 {s(sT)}, 0')
        A(f's_cselect_b32 {s(sRH)}, 0, {s(sRH)}')
        A(f's_cmp_eq_u32 {s(sT)}, 127')
        A(f's_cselect_b32 {s(sRH)}, 0, {s(sRH)}')
        for f, t, c in ((sF8, sT, sCG8), (sF16, sT0, sCG16)):
            A(f's_lshl_b32 {s(f)}, {s(t)}, {CSH}')
            A(f's_lshl_b32 s26, {s(c)}, 2')
            A(f's_add_u32 {s(f)}, {s(f)}, s26')
            A(f's_add_u32 {s(f)}, {s(f)}, {CB}')
        A(f'v_add_u32 {v(VB64)}, 0x10000, {v(VL16)}')
        A(f'v_add_u32 {v(VB128)}, 0x20000, {v(VL16)}')
        A(f'v_and_b32 {v(VSTL)}, 0x300, {v(VL16)}')
        A(f'v_and_b32 v3, 15, {v(VLANE)}')
        A(f'v_lshl_add_u32 {v(VSTL)}, v3, 3, {v(VSTL)}')
        A(f'v_mov_b32 {v(VONE)}, 1')
        A(f'v_lshrrev_b32 {v(VP2)}, 3, {v(VLANE)}')
        A(f'v_and_b32 v3, 0x1c, {v(VL4)}')
        A(f'v_lshl_add_u32 {v(VP2)}, {v(VP2)}, {CSH}, v3')
        A('v_mov_b32 v12, 0')
        if self.prof:
            A('v_writelane_b32 v12, s62, 60')
        A.wait(vm=self.x0m[0])
        self.Lp = A.newlabel('pair')
        Lfinal = A.newlabel('final')
        self.stage_qkv()
        self.stage_wo()
        self.stage_w1()
        self.stage_w2()
        self.stage_w3()
        self.stage_w4(Lfinal)
        self.dump2()
        if 'dbgt' in OPT:
            A('s_memrealtime s[60:61]')
            A('s_waitcnt lgkmcnt(0)')
            A('s_mov_b32 s94, s60')
        A(f's_mov_b32 {s(sPAIR)}, 1')
        A(f's_mov_b32 {s(sEV)}, 10')
        A(f's_mov_b32 {s(sHH)}, {HH - H + 2048 * KB}')
        A(f's_mov_b32 {s(sFG)}, {s(sFAST)}')
        A(f's_mov_b32 {s(sZ)}, {ZSTRIDE}')
        A(f's_mov_b32 {s(sC)}, {CSTRIDE}')
        A(f's_add_u32 {s(sF8)}, {s(sF8)}, {CSTRIDE}')
        A(f's_add_u32 {s(sF16)}, {s(sF16)}, {CSTRIDE}')
        A(f's_branch {self.Lp}')
        A.label(Lfinal)
        buf = 64
        A(f's_mov_b64 {s(SRD2, 2)}, {s(PA + 18, 2)}')
        A(f'v_and_b32 v13, 15, {v(VLANE)}')
        A(f'v_lshlrev_b32 v13, 10, v13')
        A(f'v_bfe_u32 v3, {v(VLANE)}, 4, 1')
        A(f'v_lshl_add_u32 v13, v3, 5, v13')
        A(f'v_lshrrev_b32 v3, 5, {v(VLANE)}')
        A(f'v_lshl_add_u32 v13, v3, 4, v13')
        A(f's_lshl_b32 s28, {s(sT)}, 14')
        A(f's_lshl_b32 s29, {s(sCG8)}, 7')
        A(f's_add_u32 s28, s28, s29')
        self.pack(buf, RES, 8)
        for q in range(2):
            b = buf + 4 * q
            A(f'v_permlane16_swap_b32 {v(b)}, {v(b + 2)}')
            A(f'v_permlane16_swap_b32 {v(b + 1)}, {v(b + 3)}')
        for q in range(2):
            self.st(v(buf + 4 * q, 4), 28, 64 * q, voff=13, srd=SRD2)
        if 'dbgt' in OPT:
            A('s_not_b32 s62, s62')
            A('v_mov_b32 v12, s62')
            A('s_mov_b64 exec, 1')
            A(f'buffer_atomic_umax v12, {v(VL4)}, {s(SRDD, 4)}, 0 offen offset:32')
            A('s_mov_b64 exec, -1')
        self.dbgt(9)
        for i_, r_ in enumerate((92, 93, 94)):
            if 'dbgt' in OPT:
                A(f'v_mov_b32 v12, {s(r_)}')
                A('s_mov_b64 exec, 1')
                A(f'buffer_atomic_umax v12, {v(VL4)}, {s(SRDD, 4)}, 0 offen offset:{40 + 4 * i_}')
                A('s_mov_b64 exec, -1')
        if self.prof:
            A('s_memrealtime s[60:61]')
            A('s_waitcnt lgkmcnt(0)')
            A('v_writelane_b32 v12, s60, 62')
        self.dump2()
        A.label(self.exit)
        A('s_endpgm')
        A.label('code_end')
        self.kernels.append((name, A.maxv + 1, (A.maxv + 4) // 4 * 4, A.maxs + 1))

    def build(self, hdr):
        self.main()
        out = [hdr]
        out.append(f'; @launch grid=(256,1,1) block=(512,1,1) lds={160 * KB}')
        out.append('.amdgcn_target "amdgcn-amd-amdhsa--gfx950"')
        out.append('.text')
        out.append(self.A.text())
        out.append('.section .rodata,"a"')
        for n, nv, accum, ns in self.kernels:
            assert nv <= 256
            out.append('.p2align 6')
            out.append(f'.amdhsa_kernel {n}')
            out.append(f'  .amdhsa_next_free_vgpr {nv}')
            out.append(f'  .amdhsa_next_free_sgpr {max(ns, 16)}')
            out.append(f'  .amdhsa_accum_offset {accum}')
            out.append('  .amdhsa_group_segment_fixed_size 0')
            out.append('  .amdhsa_kernarg_size 96')
            out.append('  .amdhsa_user_sgpr_count 2')
            out.append('  .amdhsa_user_sgpr_kernarg_segment_ptr 1')
            out.append('  .amdhsa_system_sgpr_workgroup_id_x 1')
            out.append('  .amdhsa_float_denorm_mode_32 3')
            out.append('.end_amdhsa_kernel')
        return '\n'.join(out) + '\n'


if __name__ == '__main__':
    OPT.add('d2early')
    g = Gen3()
    g.prof = 'prof' in OPT
    txt = g.build(header())
    out = sys.argv[1]
    if out == '-':
        out = f'cdna_kernels/{NAME}.s'
    open(out, 'w').write(txt)
    json.dump(LAYOUT, open('layout.json', 'w'))
    for k in g.kernels:
        print(k)
    print('nops inserted', g.A.nops, 'ws used', WS_USED, 'stamps', g.nstamp)
```

```python
import sys, json
import gen as G1
from gen import Gen, KB, NAME, f32, LOG2E, OOB, SRD, SW, SRD2, VL16, VLANE, header
from asmlib import v, a, s

OPT = set(sys.argv[2:])

_off = 0
def _alloc(n):
    global _off
    r = _off
    _off += (n + 4095) // 4096 * 4096
    return r
WQKV = _alloc(1536 * KB); WO = _alloc(512 * KB); W1 = _alloc(512 * KB); W2 = _alloc(512 * KB)
W3 = _alloc(1792 * KB); W4 = _alloc(1792 * KB)
CSQ = _alloc(16 * KB); CS1 = _alloc(8 * KB); CS3 = _alloc(16 * KB); DUMMY = _alloc(4 * KB)
ZR = _alloc(288 * KB)
ZSTRIDE = 68 * KB
KV = ZR
Z = KV + 64 * KB
PC = ZR + 136 * KB
XW = ZR + 146 * KB
CSH = 10
CB = ZR + 160 * KB
C_X, C_O, C_XA, C_H, C_X1, C_G, C_KV, C_HH = [CB + 128 * i for i in range(8)]
CSTRIDE = 64
X0 = _alloc(2048 * KB); ST0 = _alloc(128 * KB); OB = _alloc(2048 * KB); G = _alloc(7168 * KB)
HH = _alloc(4096 * KB)
XA = X1 = X0
STA = ST1 = ST0
H = OB
PSTRIDE = 0
DBG = _alloc(16 * 512 * 128 * 2)
WS_USED = _off
LAYOUT = {k: val for k, val in globals().items() if k.isupper() and isinstance(val, int)}
for k_, v_ in LAYOUT.items():
    setattr(G1, k_, v_)

sT, sCG8, sT0, sCG16, sP, sPAIR, sZ, sTO = 16, 17, 18, 19, 20, 21, 22, 23
sTILE, sSTP, sC, sFAST, sFH = 24, 25, 44, 45, 46
sFG = 49
sHH, sRH = 52, 53
sF8, sF16 = 47, 48
VB64, VB128, VSTL, VL4, VONE, VP2 = 4, 5, 6, 7, 8, 9
VMR = 10
RES = 16
FREE = 32
PERM = 156 * KB
L_CSQ, L_CS1, L_CS3 = PERM, PERM + 384, PERM + 640
L_CF, L_CR, L_CB, L_MODE, L_GO = PERM + 2048, PERM + 2064, PERM + 2080, PERM + 2096, PERM + 2100
L_PS = PERM + 2112
L_CS = PERM + 2128
L_INIT = PERM + 2104
L_KD = PERM + 2176
L_ST = PERM + 2148
PA = 64
SRDD = 88
PST = 138 * KB
PHL = 154 * KB
sEV = 50
VPERM = 15
VOWN = 14
GR = 4 * KB
def map_wo(j): return (35 + j) * GR if j < 4 else (j - 4) * GR
def map_w1(j): return (12 + j) * GR
def map_w2(j): return (28 + j) * GR if j < 11 else (j - 11) * GR
def map_w3(j): return ((j + 3) % 16) * 7 * KB
def map_w4(j):
    if j >= 39: j -= 39
    return (28 + j) * GR if j < 11 else (22 + j - 11) * GR if j < 17 else (j - 17) * GR
def map_kv(j): return j * 4 * KB
def map_q(j): return 64 * KB + j * 2 * KB
def xq(mt, j): return 128 + (j >> 2) * 32 + mt * 16 + (j & 3) * 4


class Rec:
    def __init__(self):
        self.l = []

    def __call__(self, t):
        self.l.append(t)


class Gen3(Gen):
    persist = False
    first_wait = False
    XGO = int([o[3:] for o in OPT if o.startswith('xgo')][0]) if any(o.startswith('xgo') for o in OPT) else 2
    NPRE = int([o[4:] for o in OPT if o.startswith('npre')][0]) if any(o.startswith('npre') for o in OPT) else 3
    XPRE = int([o[4:] for o in OPT if o.startswith('xpre')][0]) if any(o.startswith('xpre') for o in OPT) else 4
    DQ = int([o[2:] for o in OPT if o.startswith('dq')][0]) if any(o.startswith('dq') for o in OPT) else 6
    QD = int([o[2:] for o in OPT if o.startswith('qd')][0]) if any(o.startswith('qd') for o in OPT) else 1
    NPOLL = int([o[2:] for o in OPT if o.startswith('np')][0]) if any(o.startswith('np') for o in OPT) else 1
    PGAP = int([o[2:] for o in OPT if o.startswith('pg')][0]) if any(o.startswith('pg') for o in OPT) else 2
    SP = int([o[2:] for o in OPT if o.startswith('sp')][0]) if any(o.startswith('sp') for o in OPT) else 5
    LPU = int([o[3:] for o in OPT if o.startswith('lpu')][0]) if any(o.startswith('lpu') for o in OPT) else 9
    DS = int([o[2:] for o in OPT if o.startswith('ds')][0]) if any(o.startswith('ds') for o in OPT) else 16
    SG = int([o[2:] for o in OPT if o.startswith('sg')][0]) if any(o.startswith('sg') for o in OPT) else 11
    D4 = int([o[2:] for o in OPT if o.startswith('dw')][0]) if any(o.startswith('dw') for o in OPT) else 10
    DB = int([o[2:] for o in OPT if o.startswith('db')][0]) if any(o.startswith('db') for o in OPT) else 6

    def rec(self, fn):
        keep = self.A
        self.A = Rec()
        fn()
        l = self.A.l
        self.A = keep
        return l

    def ldx(self, dst, soff, ioff=0, voff=VL16, w=4, sc=None):
        o = f' offset:{ioff}' if ioff else ''
        wn = {1: 'dword', 2: 'dwordx2', 4: 'dwordx4'}[w]
        if sc is None:
            sc = '' if 'ldplain' in OPT else ' nt' if 'ldnt' in OPT else ' sc0' if 'ldsc0' in OPT else ' sc1'
        self.A(f'buffer_load_{wn} {dst}, {v(voff)}, {s(SRD, 4)}, {s(soff)} offen{o}{sc}')
        return self.A.vmark()

    dmant = False

    def dma(self, soff, ioff=0, voff=VL16, srd=SRD):
        o = f' offset:{ioff}' if ioff else ''
        nt = ' sc1' if (srd == SRD and 'dmaplain' not in OPT) else ''
        self.A(f'buffer_load_dwordx4 {v(voff)}, {s(srd, 4)}, {s(soff)} offen{o}{nt} lds')
        return self.A.vmark()

    def stores(self, lst, fast=sFAST):
        A = self.A
        Ls, Ld = A.newlabel('sts'), A.newlabel('std')

        def emit(sc):
            for src, soff, ioff, voff, w, ex in lst:
                o = f' offset:{ioff}' if ioff else ''
                wn = {1: 'dword', 2: 'dwordx2', 4: 'dwordx4'}[w]
                if ex:
                    A(f's_mov_b64 exec, {ex}')
                A(f'buffer_store_{wn} {src}, {v(voff)}, {s(SRD, 4)}, {s(soff)} offen{o}{sc}')
                if ex:
                    A('s_mov_b64 exec, -1')
        A(f's_cmp_eq_u32 {s(fast)}, 0')
        A(f's_cbranch_scc1 {Ls}')
        vm0 = A.vm
        emit(' nt' if 'stnt' in OPT else ' sc0' if 'stsc0' in OPT else ' sc1' if ('datasc1' in OPT and lst[0][4] != 1) else '')
        A(f's_branch {Ld}')
        A.label(Ls)
        A.vm = vm0
        emit(' sc1')
        A.label(Ld)

    def pstamp(self):
        if not self.prof:
            return
        A = self.A
        i = self.nstamp
        self.nstamp += 1
        A('s_memtime s[60:61]')
        A('s_waitcnt lgkmcnt(0)')
        A.lg_done = A.lg
        A(f'v_writelane_b32 v12, s60, {i}')

    def dbgt(self, slot, inv=False):
        if 'dbgt' not in OPT:
            return
        A = self.A
        assert A.lg == A.lg_done
        A('s_memrealtime s[60:61]')
        A('s_waitcnt lgkmcnt(0)')
        if inv:
            A('s_not_b32 s60, s60')
        A('v_mov_b32 v12, s60')
        A('s_mov_b64 exec, 1')
        A(f'buffer_atomic_umax v12, {v(VL4)}, {s(SRDD, 4)}, 0 offen offset:{slot * 4}')
        A.vm -= 1
        A('s_mov_b64 exec, -1')

    def mark(self, k, pair0=True):
        if f'mk{k}' not in OPT:
            return
        A = self.A
        L = A.newlabel('mk')
        if pair0:
            A(f's_cmp_lg_u32 {s(sPAIR)}, 0')
            A(f's_cbranch_scc1 {L}')
        A('s_memrealtime s[54:55]')
        A('s_waitcnt lgkmcnt(0)')
        A.label(L)

    def poll(self, sbase, voff, n, target=1, mode='auto', ioff=0, srd=SRD, mask=None, during=None):
        A = self.A
        L, LS, LC, D = A.newlabel('poll'), A.newlabel('polls'), A.newlabel('pollc'), A.newlabel('polld')
        o = f' offset:{ioff}' if ioff else ''
        A(f's_mov_b64 exec, {(1 << n) - 1:#x}' if n < 32 else 's_mov_b32 exec_hi, 0')
        if during and 'nodur' in OPT:
            A('s_mov_b64 exec, -1')
            during()
            A(f's_mov_b64 exec, {(1 << n) - 1:#x}')
        elif during:
            A(f'buffer_load_dword v0, {v(voff)}, {s(SRD, 4)}, {s(sbase)} offen{o} sc1')
            A('s_mov_b64 exec, -1')
            during()
            A(f's_mov_b64 exec, {(1 << n) - 1:#x}')
            A('s_waitcnt vmcnt(0)')
            A(f'v_cmp_le_u32 vcc, {target}, v0')
            A('s_cmp_eq_u64 vcc, exec')
            A(f's_cbranch_scc1 {D}')
        NP = self.NPOLL
        if mode == 'auto' and NP > 1 and not self.prof:
            LF = A.newlabel('pollf')
            regs = [12, 0]
            A(f's_cmp_eq_u32 {s(sFAST)}, 0')
            A(f's_cbranch_scc1 {L}')
            vm0 = A.vm
            for r in regs[:-1]:
                A(f'buffer_load_dword {v(r)}, {v(voff)}, {s(SRD, 4)}, {s(sbase)} offen{o} sc1')
                for _ in range(self.PGAP):
                    A('s_nop 15')
            A.label(LF)
            for i, r in enumerate(regs):
                A(f'buffer_load_dword {v(regs[i - 1])}, {v(voff)}, {s(SRD, 4)}, {s(sbase)} offen{o} sc1')
                A(f's_waitcnt vmcnt({len(regs) - 1})')
                A(f'v_cmp_le_u32 vcc, {target}, {v(r)}')
                A('s_cmp_eq_u64 vcc, exec')
                A(f's_cbranch_scc1 {D}')
            A(f's_sub_u32 {s(sTO)}, {s(sTO)}, 1')
            A(f's_cbranch_scc0 {LF}')
            A(f's_branch {self.exit}')
            A.vm = vm0
            mode = 'atomic'
        A.label(L)
        if mode == 'auto':
            A(f's_cmp_eq_u32 {s(sFAST)}, 0')
            A(f's_cbranch_scc1 {LS}')
            A(f'buffer_load_dword v3, {v(voff)}, {s(SRD, 4)}, {s(sbase)} offen{o} sc1')
            A(f's_branch {LC}')
            A.label(LS)
        if mode == 'load':
            A(f'buffer_load_dword v3, {v(voff)}, {s(srd, 4)}, {s(sbase)} offen{o} sc1')
        else:
            A('v_mov_b32 v3, 0')
            A(f'buffer_atomic_add v3, {v(voff)}, {s(SRD, 4)}, {s(sbase)} offen{o} sc0')
        A.label(LC)
        A('s_waitcnt vmcnt(0)')
        A.vm_done = A.vm
        if mask:
            A(f'v_and_b32 v22, {mask}, v3')
            A(f'v_cmp_le_u32 vcc, {target}, v22')
        else:
            A(f'v_cmp_le_u32 vcc, {target}, v3')
        A('s_cmp_eq_u64 vcc, exec')
        A(f's_cbranch_scc1 {D}')
        A(f's_sub_u32 {s(sTO)}, {s(sTO)}, 1')
        A(f's_cbranch_scc1 {self.exit}')
        if mode == 'load':
            A('s_sleep 8')
        A(f's_branch {L}')
        A.label(D)
        A('s_mov_b64 exec, -1')

    def sig(self, base, k, absv=False):
        A = self.A
        if absv:
            A(f'v_mov_b32 v3, {k}')
        else:
            A(f's_add_u32 s51, {s(sEV)}, {k}')
            A('v_mov_b32 v3, s51')
        A(f'ds_write_b32 {v(VOWN)}, v3 offset:{base - L_CF}')

    def lwait(self, base, k, tmp, sleep=0, single=False, absv=False, own=False):
        A = self.A
        L, D = A.newlabel('lw'), A.newlabel('lwd')
        A(f's_mov_b32 s51, {k}' if absv else f's_add_u32 s51, {s(sEV)}, {k}')
        A.label(L)
        if single:
            A(f'ds_read_b32 {v(tmp)}, {v(VOWN if own else VPERM)} offset:{base - L_CF}')
            A.wait_all(vm=False)
        else:
            A(f'ds_read_b128 {v(tmp, 4)}, {v(VPERM)} offset:{base - L_CF}')
            A.wait_all(vm=False)
            A(f'v_min_u32 {v(tmp)}, {v(tmp)}, {v(tmp + 1)}')
            A(f'v_min3_u32 {v(tmp)}, {v(tmp)}, {v(tmp + 2)}, {v(tmp + 3)}')
        A(f'v_cmp_le_u32 vcc, s51, {v(tmp)}')
        A(f's_cbranch_vccnz {D}')
        A(f's_sub_u32 {s(sTO)}, {s(sTO)}, 1')
        A(f's_cbranch_scc1 {self.exit}')
        if sleep:
            A(f's_sleep {sleep}')
        A(f's_branch {L}')
        A.label(D)

    def lpeek(self, base, tmp):
        self.A(f'ds_read_b128 {v(tmp, 4)}, {v(VPERM)} offset:{base - L_CF}')
        return self.A.lmark()

    def ltest(self, mark, base, k, tmp, absv=False):
        A = self.A
        D = A.newlabel('lt')
        A(f's_mov_b32 s51, {k}' if absv else f's_add_u32 s51, {s(sEV)}, {k}')
        A.wait(lg=mark)
        A(f'v_min_u32 {v(tmp)}, {v(tmp)}, {v(tmp + 1)}')
        A(f'v_min3_u32 {v(tmp)}, {v(tmp)}, {v(tmp + 2)}, {v(tmp + 3)}')
        A(f'v_cmp_le_u32 vcc, s51, {v(tmp)}')
        A(f's_cbranch_vccnz {D}')
        lg, ld = A.lg, A.lg_done
        self.lwait(base, k, tmp, absv=absv)
        A.lg, A.lg_done = lg, ld
        A.label(D)

    def acheck(self, specs):
        marks = {}

        def pr(j):
            for n, (jj, base, k, tmp, absv, after) in enumerate(specs):
                if j == jj:
                    self.ltest(marks[n], base, k, tmp, absv)
                    if after:
                        after()
            for n, (jj, base, k, tmp, absv, after) in enumerate(specs):
                if j == jj - 1:
                    marks[n] = self.lpeek(base, tmp)
        return pr

    def flag(self, sbase, ioff, two=False, fast=sFAST, pre=None):
        self.pstamp()
        if pre:
            pre()
        self.A.wait_all(lg=False)
        self.stores([(v(VONE), sbase, ioff, VP2, 1, '0x101' if two else '1')], fast)
        self.pstamp()

    def gemm(self, KS, MT, NT, acc, xreg, ldsoff, buf, NB, xwait, hook=None, preread=None, fill=(), czero=False, fill0=1, npre=0):
        A = self.A
        vbase = {0: VL16, 1: VB64, 2: VB128}
        fill = list(fill)

        def read(j, t):
            if t == 0 and preread:
                preread(j)
            off = ldsoff(j) + t * KB
            A(f'ds_read_b128 {v(buf + ((j % NB) * NT + t) * 4, 4)}, {v(vbase[off >> 16])} offset:{off & 0xffff}')
            return A.lmark()
        marks = {}
        pre = NB
        while pre * NT > 14:
            pre -= 1
        if npre:
            pre = npre
            A.wait_all(vm=False)
        for j in range(pre):
            for t in range(NT):
                marks[(j, t)] = 0 if npre else read(j, t)
        fper = 1 if len(fill) < (KS - fill0) * (NT - 2) else 2
        nxt = [(j, t) for j in range(pre, KS) for t in range(NT)]
        for j in range(KS):
            if 'lstamp' in OPT and NT == 7 and j % 2 == 0:
                i_ = self.nstamp
                self.nstamp += 1
                A(f's_memtime {s(64 + j, 2)}')
                self.late = getattr(self, 'late', []) + [(64 + j, i_)]
                A.lg_done = max(0, A.lg_done)
            for t in range(NT):
                A.wait(vm=xwait(j) if t == 0 else None, lg=marks[(j, NT - 1 if (NB > 4 and (j, NT - 1) in marks) else min(NT - 1, t | 1) if 'w2' in OPT else t)])
                for mt in range(MT):
                    r = acc + (mt * NT + t) * 4
                    c = '0' if (czero and j == 0) else v(r, 4)
                    A(f'v_mfma_f32_16x16x32_bf16 {v(r, 4)}, {v(buf + ((j % NB) * NT + t) * 4, 4)}, {xreg(mt, j)}, {c}')
                    if mt == 0 and (MT == 2 or (t < NT - 1 if 'oldm1' in OPT else (t in (1, 3) or not nxt))):
                        n0 = len(A.lines)
                        if hook and MT == 2:
                            hook(j, t)
                        room = (2 if MT == 2 else 1) - (len(A.lines) - n0)
                        for _ in range(min(room, fper)):
                            if fill and j >= fill0:
                                A(fill.pop(0))
                if MT == 1 and 'oldm1' not in OPT:
                    for _ in range(2 if t in (0, 2) else 0):
                        if nxt and nxt[0][0] - NB < j:
                            j2, t2 = nxt.pop(0)
                            marks[(j2, t2)] = read(j2, t2)
                elif nxt:
                    j2, t2 = nxt[0]
                    if (j2 - NB, t2) <= (j, t):
                        marks[(j2, t2)] = read(j2, t2)
                        nxt.pop(0)
                if hook and MT == 1:
                    hook(j, t)
        assert not nxt and not fill, (len(fill))
        if 'lstamp' in OPT and NT == 7:
            A('s_waitcnt lgkmcnt(0)')
            for r_, i_ in self.late:
                A(f'v_writelane_b32 v12, {s(r_)}, {i_}')

    def wpre(self, n, NT, buf, ldsoff, j0=0):
        A = self.A
        vbase = {0: VL16, 1: VB64, 2: VB128}
        for j in range(j0, n):
            for t in range(NT):
                off = ldsoff(j) + t * KB
                A(f'ds_read_b128 {v(buf + (j * NT + t) * 4, 4)}, {v(vbase[off >> 16])} offset:{off & 0xffff}')

    def cs_read(self, NT, cs, loc):
        A = self.A
        A(f'v_and_b32 v3, 0x30, {v(VLANE)}')
        A(f'v_add_u32 v3, {loc}, v3')
        for t in range(NT):
            A(f'ds_read_b128 {v(cs + 4 * t, 4)}, v3 offset:{t * 64}')

    def ln_fix(self, acc, n, cs, mean):
        for i in range(0, n, 2):
            self.A(f'v_pk_fma_f32 {v(acc + i, 2)}, {v(cs + i, 2)}, {v(mean, 2)}, {v(acc + i, 2)} op_sel_hi:[1,0,1] neg_lo:[0,1,0] neg_hi:[0,1,0]')

    def ld_stats(self, dst, soff, ioff=0):
        self.ldx(v(dst, 2), soff, ioff, voff=VSTL, w=2)
        return self.ldx(v(dst + 2, 2), soff, ioff + 128, voff=VSTL, w=2)

    def stats_calc(self, acc, n, tmp):
        A = self.A
        S, Q = tmp, tmp + 2
        A(f'v_pk_add_f32 {v(S, 2)}, {v(acc, 2)}, {v(acc + 2, 2)}')
        A(f'v_pk_mul_f32 {v(Q, 2)}, {v(acc, 2)}, {v(acc, 2)}')
        for i in range(2, n, 2):
            if i >= 4:
                A(f'v_pk_add_f32 {v(S, 2)}, {v(S, 2)}, {v(acc + i, 2)}')
            A(f'v_pk_fma_f32 {v(Q, 2)}, {v(acc + i, 2)}, {v(acc + i, 2)}, {v(Q, 2)}')
        A(f'v_add_f32 {v(S)}, {v(S)}, {v(S + 1)}')
        A(f'v_add_f32 {v(S + 1)}, {v(Q)}, {v(Q + 1)}')
        Q = S + 1
        A(f'v_permlane32_swap_b32 {v(S)}, {v(Q)}')
        A(f'v_add_f32 {v(S)}, {v(S)}, {v(Q)}')
        A(f'v_mov_b32 {v(Q)}, {v(S)}')
        A(f'v_permlane16_swap_b32 {v(S)}, {v(Q)}')
        A(f'v_add_f32 {v(S)}, {v(S)}, {v(Q)}')
        A(f'v_mov_b32 {v(Q)}, {v(S)}')
        A(f'v_permlane32_swap_b32 {v(S)}, {v(Q)}')

    def store_tile(self, acc, tmp, DST, STD, nextpair=False, fast=sFAST):
        A = self.A
        self.pack(tmp, acc, 8)
        add = PSTRIDE if nextpair else 0
        A(f's_add_u32 s26, {s(sTILE)}, {DST + add}')
        A(f's_add_u32 s27, {s(sSTP)}, {STD + add}')
        self.stores([(v(tmp, 4), 26, 0, VL16, 4, None), (v(tmp + 4, 4), 26, KB, VL16, 4, None)], fast)
        self.stats_calc(acc, 16, tmp + 8)
        self.stores([(v(tmp + 8, 2), 27, 0, VSTL, 2, '0xffff')], fast)

    def big_pre(self, XIN, STIN):
        A = self.A
        A(f's_lshl_b32 s26, {s(sT0)}, 14')
        A(f's_add_u32 s26, s26, {s(sP)}')
        A(f's_add_u32 s26, s26, {XIN}')
        A(f's_add_u32 s27, s26, {16 * KB}')
        A(f's_lshl_b32 s28, {s(sT0)}, 10')
        A(f's_add_u32 s28, s28, {s(sP)}')
        A(f's_add_u32 s28, s28, {STIN}')
        A(f's_lshl_b32 s29, {s(sT0)}, {CSH}')
        A(f's_add_u32 s29, s29, {s(sC)}')

    def big_main(self, NT, acc, buf, XR, ST, fill, lmap, late_j, late_id, xsig, fsig):
        A = self.A
        D, RING = self.DB, 8
        sX, sX2 = 26, 27
        xm = {}

        def xload(j, mt):
            if 'noxl' in OPT and j >= D:
                xm[j] = A.vmark()
                return
            xm[j] = self.ldx(v(XR + ((j % RING) * 2 + mt) * 4, 4), sX2 if mt else sX, (j & 3) * KB)
            if (j & 3) == 3 and j < 15:
                r = sX2 if mt else sX
                A(f's_add_u32 {s(r)}, {s(r)}, {4 * KB}')
        for j in range(D):
            xload(j, 0)
            xload(j, 1)
            if j == 1:
                self.ld_stats(ST, 28)
                self.ld_stats(ST + 4, 28, KB)
        self.pstamp()

        def hook(j, t):
            if j == 0 and t == 0:
                self.sig(L_PS, 2)
            if j + D < 16:
                if t == 1:
                    xload(j + D, 0)
                if t == 4:
                    xload(j + D, 1)
                    if j + D == 15 and xsig is not None:
                        self.sig(L_CF, xsig)

        specs = [(late_j, L_CR, late_id, 252, False, None)]
        if NT == 7:
            specs.append((15, L_CS, 5, 252, True, lambda: self.cs_read(7, 224, L_CS3)))
        preread = self.acheck(specs)
        self.gemm(16, 2, NT, acc, lambda mt, j: v(XR + ((j % RING) * 2 + mt) * 4, 4), lmap,
                  buf, 2, lambda j: xm[j], hook, preread, fill=fill, czero=True, fill0=2, npre=2)
        if fsig is not None:
            self.sig(L_CF, fsig)
        self.pstamp()

    def small_main(self, KS, acc, buf, XR, RING, D, src, lmap, fill=(), czero=False, extra=None, hook2=None, preread=None,
                   xsig=None, fsig=None, stagger=0, NB=4):
        A = self.A
        xm = {}

        def xload(j):
            so, io, vo = src(j)
            xm[j] = self.ldx(v(XR + (j % RING) * 4, 4), so, io, voff=vo)
            if (j & 3) == 3 and j < KS - 1:
                A(f's_add_u32 {s(so)}, {s(so)}, {4 * KB}')
        if stagger and 'stag' in OPT:
            Ls = A.newlabel('stg')
            A(f's_cmp_eq_u32 {s(SW)}, 0')
            A(f's_cbranch_scc1 {Ls}')
            self.lwait(L_ST - 4, stagger, 44, single=True, own=True)
            A.label(Ls)
        for j in range(D):
            xload(j)
            if j == 1 and extra:
                extra()
            if j == self.SG and stagger and 'stag' in OPT:
                self.sig(L_ST, stagger)
        if D == KS and xsig is not None:
            self.sig(L_CF, xsig)
        self.pstamp()

        def hook(j, t):
            if t == 1 and j + D < KS:
                xload(j + D)
                if j + D == KS - 1 and xsig is not None:
                    self.sig(L_CF, xsig)
            if hook2:
                hook2(j, t)
        self.gemm(KS, 1, 4, acc, lambda mt, j: v(XR + 4 * (j % RING), 4), lmap, buf, NB,
                  lambda j: xm[j], hook, preread, fill=fill, czero=czero, fill0=2, npre=NB)
        if fsig is not None:
            self.sig(L_CF, fsig)
        self.pstamp()

    def stage_qkv(self):
        A = self.A
        ST, CC, acc, buf = 32, 40, 64, 96
        SCR, RSZ = 96 * KB, 336

        def f():
            for mt in range(2):
                self.stats_consume(ST + 4 * mt, 3)
                self.rstd(CC + 1 + 2 * mt, ST + 4 * mt + 1)
                self.A(f'v_mul_f32 {v(CC + 2 * mt)}, {f32(LOG2E)}, {v(CC + 1 + 2 * mt)}')
            self.A(f'v_permlane32_swap_b32 {v(CC)}, {v(CC + 2)}')
        Lepi = A.newlabel('qepi')
        self.qkv_first(f, acc, buf, ST, SCR, RSZ)
        A(f's_branch {Lepi}')
        A.label(self.Lp)
        A.label('.Lst_q')
        self.nstamp = 0
        if self.prof:
            A('s_memrealtime s[60:61]')
            A('s_waitcnt lgkmcnt(0)')
            A('v_writelane_b32 v12, s60, 63')
        self.pstamp()
        self.big_pre(X0, ST0)
        self.qkv_addr(SCR, RSZ)
        self.lwait(L_CR, 1, 60)
        A(f's_add_u32 s29, s29, {C_X}')
        self.poll(29, VP2, 16, during=lambda: self.wpre(2, 4, buf, map_kv))
        self.pstamp()
        D = self.DQ
        xm = {}

        def xload(j, mt):
            xm[j] = self.ldx(v(xq(mt, j), 4), 26 + mt, (j & 3) * KB)
            if (j & 3) == 3 and j < 15:
                A(f's_add_u32 {s(26 + mt)}, {s(26 + mt)}, {4 * KB}')
        for j in range(D):
            xload(j, 0)
            xload(j, 1)
            if j == 1:
                self.ld_stats(ST, 28)
                self.ld_stats(ST + 4, 28, KB)
        self.pstamp()

        def hook(j, t):
            if j + D < 16 and t in (0, 2):
                xload(j + D, t >> 1)
            self.kv_cs(j, t, buf)
        self.gemm(16, 2, 4, acc, lambda mt, j: v(xq(mt, j), 4), map_kv, buf, 2, lambda j: xm[j], hook, None,
                  fill=self.rec(f), czero=True, fill0=2, npre=2)
        self.sig(L_CF, 3)
        self.pstamp()
        A.label(Lepi)
        A('s_waitcnt lgkmcnt(1)')
        A.lg_done = max(A.lg_done, A.lg - 1)
        A('s_nop 3')
        self.qkv_epi(ST, CC, acc, buf, SCR, RSZ)

    def kv_cs(self, j, t, buf):
        if j == 15:
            self.A(f'ds_read_b128 {v(buf + 4 * t, 4)}, v13 offset:{t * 64}')

    def qkv_first(self, f, acc, buf, ST, SCR, RSZ):
        A = self.A
        PB = [128, 160, 192, 224]
        self.nstamp = 0
        if self.prof:
            A('s_memrealtime s[60:61]')
            A('s_waitcnt lgkmcnt(0)')
            A('v_writelane_b32 v12, s60, 63')
        self.pstamp()
        WA, RA = 64, 68
        A(f's_mul_i32 s34, {s(SW)}, {32 * RSZ}')
        A(f's_add_u32 s34, s34, {SCR}')
        A(f'v_lshrrev_b32 v3, 4, {v(VLANE)}')
        A(f'v_and_b32 v76, 15, {v(VLANE)}')
        A(f'v_xor_b32 v77, v76, v3')
        A(f'v_lshlrev_b32 v77, 4, v77')
        A(f'v_lshl_add_u32 v77, v3, 8, v77')
        A(f'v_add_u32 v77, s34, v77')
        for n in range(4):
            A(f'v_xor_b32 {v(WA + n)}, {n * 64}, v77')
        A(f'v_lshrrev_b32 v77, 1, v3')
        A(f'v_xor_b32 v77, v77, v76')
        A(f'v_lshlrev_b32 v77, 4, v77')
        A(f'v_lshl_add_u32 v77, v76, 8, v77')
        A(f'v_and_b32 v3, 1, v3')
        A(f'v_lshl_add_u32 v77, v3, 3, v77')
        A(f'v_add_u32 v77, s34, v77')
        for m in range(8):
            A(f'v_xor_b32 {v(RA + m)}, {m * 32}, v77')
        for i in range(4):
            A(f'v_mov_b32 {v(104 + i)}, 0x3f803f80')

        def stats(p):
            b = PB[p >> 1] + 16 * (p & 1)
            S = 108 + 8 * (p & 1)
            for i in range(4):
                z = p < 2 and i == 0
                A(f'v_mfma_f32_16x16x32_bf16 {v(S, 4)}, v[104:107], {v(b + 4 * i, 4)}, {"0" if z else v(S, 4)}')
                A(f'v_mfma_f32_16x16x32_bf16 {v(S + 4, 4)}, {v(b + 4 * i, 4)}, {v(b + 4 * i, 4)}, {"0" if z else v(S + 4, 4)}')

        def arrive():
            A(f's_cmp_eq_u32 s58, 3')
            A('s_cselect_b32 s31, 0, 0x1000')
            A('s_mov_b64 exec, 1')
            A(f'buffer_atomic_add {v(VONE)}, {v(VL4)}, {s(SRDD, 4)}, s31 offen')
            A('s_mov_b64 exec, -1')
        if self.XPRE == 4:
            arrive()
        for p in range(8):
            b = PB[p >> 1] + 16 * (p & 1)
            A.wait(vm=self.x0m[p], lg=A.lmark())
            for n in range(4):
                A(f'ds_write_b128 {v(WA + n)}, {v(b + 4 * n, 4)} offset:{n * 1024}')
            for m in range(8):
                A(f'ds_read_b64 {v(b + 2 * m, 2)}, {v(RA + m)}')
            if p:
                stats(p - 1)
            if (p & 1) and (p >> 1) + self.XPRE < 4:
                self.x0load((p >> 1) + self.XPRE)
                if (p >> 1) + self.XPRE == 3:
                    arrive()
        A.wait_all(vm=False)
        stats(7)
        A(f'v_and_b32 v3, 3, {v(VLANE)}')
        for i in range(1, 4):
            A(f'v_cmp_eq_u32 {s(26 + 2 * i, 2)}, {i}, v3')
        A(f'v_bfe_u32 v3, {v(VLANE)}, 2, 2')
        A(f'v_lshrrev_b32 v20, 4, {v(VLANE)}')
        A(f'v_cmp_eq_u32 vcc, v3, v20')
        for mt in range(2):
            Q = 112 + 8 * mt
            for i in range(1, 4):
                A(f'v_cndmask_b32 {v(Q)}, {v(Q)}, {v(Q + i)}, {s(26 + 2 * i, 2)}')
            A(f'v_cndmask_b32 {v(ST + 4 * mt)}, 0, {v(Q - 4)}, vcc')
            A(f'v_cndmask_b32 {v(ST + 4 * mt + 1)}, 0, {v(Q)}, vcc')
            A(f'v_mov_b32 {v(ST + 4 * mt + 2)}, 0')
            A(f'v_mov_b32 {v(ST + 4 * mt + 3)}, 0')
        f()
        self.pstamp()
        L2 = A.newlabel('np2')
        A(f's_cmp_lg_u32 {s(SW)}, 2')
        A(f's_cbranch_scc1 {L2}')
        vmd = A.vm_done
        A(f's_mov_b32 s100, {96 * KB + 2 * 32 * 336}')
        A(f's_mov_b32 s101, s2')
        self.piece_decode(101)
        A.wait_all()
        self.piece_finish()
        A.vm_done = vmd
        A.label(L2)
        Ln = A.newlabel('nochk')
        A(f's_cmp_lg_u32 {s(SW)}, 0')
        A(f's_cbranch_scc1 {Ln}')
        A('s_mov_b32 s31, 0')
        vmd = A.vm_done
        self.poll(31, VL4, 1, target=32, mode='load', srd=SRDD)
        A.vm_done = vmd
        A(f'ds_write_b32 {v(VPERM)}, {v(VONE)} offset:{L_INIT - L_CF}')
        A('s_getreg_b32 s30, hwreg(HW_REG_XCC_ID)')
        A('s_and_b32 s30, s30, 15')
        A('s_mul_i32 s31, s30, s30')
        A('s_lshl_b32 s31, s31, 16')
        A('s_lshl_b32 s30, s30, 7')
        A('s_add_u32 s30, s30, s31')
        A('s_add_u32 s58, s30, 1')
        A('s_and_b32 s59, s2, 7')
        A('s_lshl_b32 s59, s59, 7')
        A(f's_add_u32 s59, s59, {XW}')
        A('v_mov_b32 v3, s58')
        A('s_mov_b64 exec, 1')
        A(f'buffer_atomic_add v3, {v(VL4)}, {s(SRD, 4)}, s59 offen')
        A('s_mov_b64 exec, -1')
        A.label(Ln)
        A(f's_mov_b64 {s(SRD2, 2)}, {s(PA, 2)}')
        A(f's_mov_b32 {s(SRD2 + 2)}, {2048 * 512 * 2}')
        A(f'v_and_b32 v3, 15, {v(VLANE)}')
        A(f'v_lshlrev_b32 v62, 10, v3')
        A(f'v_lshrrev_b32 v3, 4, {v(VLANE)}')
        A(f'v_lshl_add_u32 v62, v3, 3, v62')
        A(f's_lshl_b32 s28, {s(sT)}, 14')
        A(f's_lshl_b32 s29, {s(sCG8)}, 7')
        A(f's_add_u32 s28, s28, s29')
        self.qkv_addr(SCR, RSZ)
        self.lwait(L_CR, 1, 20, sleep=1)
        if 'eq' in OPT:
            A('s_setprio 2')
        self.mark(1)
        self.pstamp()
        for t in range(4):
            A(f'buffer_load_dwordx2 {v(RES + 8 + 2 * t, 2)}, v62, {s(SRD2, 4)}, s28 offen offset:{32 * t}')
        A.vm_done = A.vm
        self.gemm(16, 2, 4, acc, lambda mt, j: v(xq(mt, j), 4), map_kv, buf, 2, lambda j: None,
                  lambda j, t: self.kv_cs(j, t, buf), self.acheck([(15, L_CS, 1, 20, True, None)]), czero=True)
        L2 = A.newlabel('nc2')
        A(f's_cmp_lg_u32 {s(SW)}, 2')
        A(f's_cbranch_scc1 {L2}')
        lg, ld = A.lg, A.lg_done
        self.lwait(L_INIT, 1, 20, single=True)
        A.lg, A.lg_done = lg, ld
        A('s_waitcnt vmcnt(0)')
        self.count(99)
        A.vm -= 1
        A.label(L2)
        self.sig(L_CF, 3)
        self.pstamp()

    def qkv_addr(self, SCR, RSZ):
        A = self.A
        A(f'v_and_b32 v13, 0x30, {v(VLANE)}')
        A(f'v_add_u32 v13, {L_CSQ}, v13')
        A(f'v_lshrrev_b32 v60, 4, {v(VLANE)}')
        A(f'v_and_b32 v61, 15, {v(VLANE)}')
        A(f's_mul_i32 s30, {s(SW)}, {32 * RSZ}')
        A(f's_add_u32 s30, s30, {SCR}')
        A(f'v_mul_u32_u24 v45, {RSZ}, v61')
        A(f'v_add_u32 v45, s30, v45')
        A(f'v_lshl_add_u32 v46, v60, 3, v45')
        A(f'v_lshl_add_u32 v44, v60, 4, v45')
        A(f'v_and_b32 v3, 1, v60')
        A(f'v_lshl_add_u32 v45, v3, 6, v45')
        A(f'v_lshrrev_b32 v3, 1, v60')
        A(f'v_mul_u32_u24 v3, {16 * RSZ}, v3')
        A(f'v_add_u32 v45, v45, v3')
        A(f's_lshl_b32 s42, {s(sCG16)}, 12')
        A(f's_add_u32 s42, s42, {s(sZ)}')
        A(f's_add_u32 s42, s42, {KV}')
        A(f's_lshl_b32 s43, {s(sCG16)}, 8')
        A(f's_add_u32 s43, s43, {s(sZ)}')
        A(f's_add_u32 s43, s43, {Z}')
        A(f'v_lshlrev_b32 v50, 5, v60')
        for i in range(4):
            A(f'v_mov_b32 {v(56 + i)}, {f32(1e-6)}')

    def qkv_epi(self, ST, CC, acc, buf, SCR, RSZ):
        A = self.A
        EP, EM = 96, 112

        def softmax(P0, P1, M, off):
            cc = CC
            R = lambda i: (P0 + i) if i < 8 else (P1 + i - 8)
            for op, d in (('max', M), ('min', M + 1)):
                A(f'v_{op}3_f32 {v(d)}, {v(R(0))}, {v(R(1))}, {v(R(2))}')
                for i in range(3, 15, 2):
                    A(f'v_{op}3_f32 {v(d)}, {v(d)}, {v(R(i))}, {v(R(i + 1))}')
                A(f'v_{op}_f32 {v(d)}, {v(d)}, {v(R(15))}')
            A(f'v_pk_mul_f32 {v(M, 2)}, {v(M, 2)}, {v(cc, 2)} op_sel_hi:[1,0]')
            for i in range(0, 16, 2):
                A(f'v_pk_fma_f32 {v(EP + i, 2)}, {v(R(i), 2)}, {v(cc, 2)}, {v(M, 2)} op_sel_hi:[1,0,0] neg_lo:[0,0,1] neg_hi:[0,0,1]')
                A(f'v_pk_fma_f32 {v(EM + i, 2)}, {v(R(i), 2)}, {v(cc, 2)}, {v(M, 2)} op_sel:[0,0,1] op_sel_hi:[1,0,1] neg_lo:[0,1,0] neg_hi:[0,1,0]')
            for i in range(32):
                A(f'v_exp_f32 {v(EP + i)}, {v(EP + i)}')
            for E, d in ((EP, M + 2), (EM, M + 4)):
                A(f'v_pk_add_f32 {v(d, 2)}, {v(E, 2)}, {v(E + 2, 2)}')
                for i in range(4, 16, 2):
                    A(f'v_pk_add_f32 {v(d, 2)}, {v(d, 2)}, {v(E + i, 2)}')
            A(f'v_add_f32 {v(M + 2)}, {v(M + 2)}, {v(M + 3)}')
            A(f'v_add_f32 {v(M + 3)}, {v(M + 4)}, {v(M + 5)}')
            A(f'v_rcp_f32 {v(M + 2)}, {v(M + 2)}')
            A(f'v_rcp_f32 {v(M + 3)}, {v(M + 3)}')
            for t in range(4):
                for i in (4 * t, 4 * t + 2):
                    A(f'v_pk_mul_f32 {v(EP + i, 2)}, {v(EP + i, 2)}, {v(M + 2, 2)} op_sel_hi:[1,0]')
                    A(f'v_pk_mul_f32 {v(EM + i, 2)}, {v(EM + i, 2)}, {v(M + 2, 2)} op_sel:[0,1] op_sel_hi:[1,1]')
                self.pack(R(4 * t), EP + 4 * t, 2)
                self.pack(R(4 * t) + 2, EM + 4 * t, 2)
                A(f'ds_write_b128 v45, {v(R(4 * t), 4)} offset:{off + 16 * t}')
        for mt in range(2):
            self.ln_fix(acc + 16 * mt, 16, buf, ST + 4 * mt)
        for i in range(8):
            A(f'v_permlane32_swap_b32 {v(acc + i)}, {v(acc + 16 + i)}')
        for mt in range(2):
            for hh in range(2):
                r = acc + 16 * mt + 8 + 4 * hh
                for i in (0, 2):
                    A(f'v_pk_mul_f32 {v(r + i, 2)}, {v(r + i, 2)}, {v(CC + 2 * mt, 2)} op_sel:[0,1] op_sel_hi:[1,1]')
                d = acc + 24 + 4 * mt + 2 * hh if mt == 0 else r
                d = r
                self.pack(d, r, 2)
                A(f'ds_write_b64 v46, {v(d, 2)} offset:{mt * 16 * RSZ + 256 + 32 * hh}')
        softmax(acc, acc + 16, acc + 8, 128)
        self.pstamp()
        self.sig(L_CB, 1)
        self.lwait(L_CR, 2, 60)
        self.lwait(L_CS, 2, 60, absv=True)
        for t in range(2):
            A(f'ds_read_b128 {v(88 + 4 * t, 4)}, v13 offset:{(4 + t) * 64}')
        self.gemm(16, 2, 2, 72, lambda mt, j: v(xq(mt, j), 4), map_q, buf, 4, lambda j: None, czero=True)
        self.pstamp()
        for mt in range(2):
            self.ln_fix(72 + 8 * mt, 8, 88, ST + 4 * mt)
        for i in range(8):
            A(f'v_permlane32_swap_b32 {v(72 + i)}, {v(80 + i)}')
        softmax(72, 80, 64, 0)
        PQ = 160
        for mt in range(2):
            for hh in range(2):
                A(f'ds_read_b128 {v(PQ + 8 * mt + 4 * hh, 4)}, v44 offset:{mt * 16 * RSZ + 64 * hh}')
        A(f's_lshl_b32 s30, {s(sCG16)}, {CSH}')
        A(f's_add_u32 s30, s30, {s(sC)}')
        A(f's_add_u32 s30, s30, {C_KV}')
        A(f's_lshl_b32 s26, {s(sT0)}, 14')
        A(f's_lshl_b32 s27, {s(sCG16)}, 10')
        A(f's_add_u32 s26, s26, s27')
        A(f's_add_u32 s26, s26, {s(sP)}')
        A(f's_add_u32 s26, s26, {OB}')
        A(f's_add_u32 s27, s26, {16 * KB}')
        if 'd2early' in OPT:
            self.sig(L_CF, 4)
        self.pstamp()
        Lw, Lg, Lx = A.newlabel('kvw'), A.newlabel('kvg'), A.newlabel('kvx')
        A(f's_cmp_lg_u32 {s(SW)}, 0')
        A(f's_cbranch_scc1 {Lw}')
        self.lwait(L_KD, 1, 252)
        self.poll(30, VL4, 1, target=16, mode='atomic')
        A.label(Lg)
        self.sig(L_GO, 1)
        A(f's_branch {Lx}')
        A.label(Lw)
        self.lwait(L_GO, 1, 252, sleep=1, single=True)
        A.label(Lx)
        self.pstamp()
        Lm = A.newlabel('mode')
        A(f's_cmp_eq_u32 {s(sPAIR)}, 0')
        A(f's_cbranch_scc0 {Lm}')
        A('s_waitcnt vmcnt(0)')
        self.unpack(RES, RES + 8, 8)
        self.lwait(L_MODE, 1, 252, single=True)
        A(f'v_readfirstlane_b32 {s(sFAST)}, v252')
        A(f's_sub_u32 {s(sFAST)}, {s(sFAST)}, 1')
        A.label(Lm)
        KF, ZF = 64, 80
        for i in range(16):
            self.ldx(v(KF + i), 42, 256 * i, voff=VL4, w=1, sc=' sc1')
        for hh in range(2):
            for u in range(2):
                self.ldx(v(ZF + 8 * hh + 4 * u, 4), 43, 128 * hh + 16 * u, voff=50, sc=' sc1')
        A.wait(vm=A.vmark() - 4)
        self.pack(96, KF, 8)
        A('s_waitcnt vmcnt(0) lgkmcnt(0)')
        A.vm_done, A.lg_done = A.vm, A.lg
        self.pack(104, ZF, 8)
        ND = 112
        for mt in range(2):
            for hh in range(2):
                d = ND + 16 * mt + 8 * hh
                A(f'v_mfma_f32_16x16x32_bf16 {v(d + 4, 4)}, {v(104 + 4 * hh, 4)}, {v(PQ + 8 * mt + 4 * hh, 4)}, v[56:59]')
                A(f'v_mfma_f32_16x16x32_bf16 {v(d, 4)}, {v(96 + 4 * hh, 4)}, {v(PQ + 8 * mt + 4 * hh, 4)}, 0')
        for q in range(4):
            A(f'v_rcp_f32 {v(ND + 8 * q + 4)}, {v(ND + 8 * q + 4)}')
        for q in range(4):
            d = ND + 8 * q
            for i in (0, 2):
                A(f'v_pk_mul_f32 {v(d + i, 2)}, {v(d + i, 2)}, {v(d + 4, 2)} op_sel_hi:[1,0]')
            self.pack(64 + 2 * q, d, 2)
        self.stores([(v(64, 4), 26, 0, VL16, 4, None), (v(68, 4), 27, 0, VL16, 4, None)], sFG)
        self.flag(sF16, C_O - CB, two=True)

    def small_pre(self, XIN, mul=16):
        A = self.A
        A(f's_mul_i32 s26, {s(sT)}, {mul * KB}')
        A(f's_add_u32 s26, s26, {s(sP)}')
        A(f's_add_u32 s26, s26, {XIN}')
        A(f's_lshl_b32 s29, {s(sT)}, {CSH}')
        A(f's_add_u32 s29, s29, {s(sC)}')
        A(f's_add_u32 s29, s29, {CB}')

    def stage_wo(self):
        A = self.A
        XR, buf = 64, 128
        self.small_pre(OB)
        self.lwait(L_CR, 3, 44)
        self.wpre(self.SP - 1, 4, buf, map_wo)
        self.poll(29, VL4, 16, ioff=C_O - CB, during=lambda: self.wpre(8, 4, buf, map_wo, self.SP - 1))
        self.mark(2)
        self.pstamp()
        self.small_main(16, RES, buf, XR, 16, self.DS, lambda j: (26, (j & 3) * KB, VL16), map_wo, stagger=1, NB=8)
        self.store_tile(RES, XR, XA, STA, fast=sFG)
        self.flag(sF8, C_XA - CB, pre=lambda: (self.lwait(L_CR, 4, 44), self.wpre(3, 4, buf, map_w1)))

    def stage_w1(self):
        A = self.A
        ST, K, acc, XR, buf, CS = 32, 40, 48, 64, 128, 240
        self.small_pre(XA)
        A(f's_lshl_b32 s27, {s(sT)}, 10')
        A(f's_add_u32 s27, s27, {STA}')
        self.lwait(L_CS, 4, 44, absv=True)
        self.cs_read(4, CS, L_CS1)
        self.wpre(self.SP - 1, 4, buf, map_w1, 3)
        self.poll(29, VL4, 8, ioff=C_XA - CB, during=lambda: self.wpre(7, 4, buf, map_w1, self.SP - 1))
        self.pstamp()

        def f():
            A = self.A
            self.stats_consume(ST, 3)
            self.rstd(VMR + 1, ST + 1)
            A(f'v_mul_f32 {v(VMR)}, {v(ST)}, {v(VMR + 1)}')
            A(f'v_mul_f32 v38, {v(VMR + 1)}, {v(VMR + 1)}')
            A(f'v_mul_f32 v38, v38, {v(ST + 1)}')
            self.rstd(38, 38)
            A(f'v_mul_f32 v38, v38, {v(VMR + 1)}')
            self.gelu_consts(K, 38)
        self.small_main(16, acc, buf, XR, 16, self.DS, lambda j: (26, (j & 3) * KB, VL16), map_w1, fill=self.rec(f), czero=True,
                        extra=lambda: self.ld_stats(ST, 27), xsig=5, NB=7)
        self.sig(L_PS, 1)
        self.ln_fix(acc, 16, CS, ST)
        self.gelu(acc, 16, K, XR, XR + 16)
        A(f's_add_u32 s26, {s(sTILE)}, {H}')
        Lh, Lh2 = A.newlabel('hh'), A.newlabel('hh2')
        self.stores([(v(XR + 16, 4), 26, 0, VL16, 4, None), (v(XR + 20, 4), 26, KB, VL16, 4, None)])
        A(f's_add_u32 s27, s26, {s(sHH)}')
        A(f's_cmp_eq_u32 {s(sFH)}, 0')
        A(f's_cselect_b32 s27, {WS_USED}, s27')
        m = A.vmark()
        A(f'buffer_store_dwordx4 {v(XR + 16, 4)}, {v(VL16)}, {s(SRD, 4)}, s27 offen sc1')
        A(f'buffer_store_dwordx4 {v(XR + 20, 4)}, {v(VL16)}, {s(SRD, 4)}, s27 offen offset:1024 sc1')
        self.pstamp()
        self.wpre(3, 4, buf, map_w2)
        A.wait(vm=m)
        self.stores([(v(VONE), sF8, C_H - CB, VP2, 1, '1')])
        self.pstamp()
        A(f's_cmp_eq_u32 {s(sFH)}, 0')
        A(f's_cbranch_scc1 {Lh2}')
        A('s_waitcnt vmcnt(1)')
        A('s_mov_b64 exec, 1')
        A(f'buffer_store_dword {v(VONE)}, {v(VL4)}, {s(SRD, 4)}, {s(sF8)} offen offset:{C_HH - CB} sc1')
        A('s_mov_b64 exec, -1')
        A.label(Lh2)

    def stage_w2(self):
        A = self.A
        acc, XR, buf = 48, 64, 128
        self.wpre(self.SP - 1, 4, buf, map_w2, 3)
        A(f's_lshl_b32 s26, {s(sT)}, 4')
        A(f'v_and_b32 v13, 15, {v(VLANE)}')
        A(f'v_add_u32 v13, s26, v13')
        A(f'v_and_b32 v38, 0x300, {v(VL16)}')
        A(f'v_mov_b32 v39, {OOB}')
        A(f's_movk_i32 s27, 2048')
        A(f's_lshr_b32 s28, {s(sT)}, 4')
        for gi, d in enumerate((-1, 1, -2, 2)):
            A(f'v_add_u32 v36, {d}, v13')
            A(f'v_lshrrev_b32 v37, 8, v36')
            A(f'v_cmp_ne_u32 s[30:31], s28, v37')
            A(f'v_cmp_gt_u32 vcc, s27, v36')
            A(f'v_lshrrev_b32 v3, 4, v36')
            A(f'v_lshl_add_u32 v3, v3, 14, v38')
            A(f'v_and_b32 v36, 15, v36')
            A(f'v_lshl_add_u32 v3, v36, 4, v3')
            A(f'v_add_u32 v37, {s(sHH)}, v3')
            A(f'v_cndmask_b32 v3, v3, v37, s[30:31]')
            A(f'v_cndmask_b32 {v(FREE + gi)}, v39, v3, vcc')
        A(f's_mov_b32 s26, {H}')
        A(f's_and_b32 s30, {s(sT)}, 0x70')
        A(f's_or_b32 s31, {s(sT)}, 15')
        A(f'v_and_b32 v13, 2, {v(VLANE)}')
        A(f'v_add_u32 v13, -1, v13')
        A(f'v_bfe_u32 v38, {v(VLANE)}, 3, 1')
        A(f'v_mul_i32_i24 v13, v13, v38')
        A(f'v_add_u32 v13, {s(sT)}, v13')
        A(f'v_max_i32 v13, s30, v13')
        A(f'v_min_i32 v13, s31, v13')
        A(f'v_and_b32 v38, 0x1c, {v(VL4)}')
        A(f'v_lshl_add_u32 v13, v13, {CSH}, v38')
        A(f's_add_u32 s29, {s(sC)}, {C_H}')
        A(f'v_and_b32 v36, 1, {v(VLANE)}')
        A(f'v_bfe_u32 v37, {v(VLANE)}, 1, 1')
        A(f'v_lshlrev_b32 v36, 2, v36')
        A(f'v_lshl_add_u32 v36, v37, 4, v36')
        for i in range(0, 16, 2):
            A(f'v_pk_fma_f32 {v(acc + i, 2)}, {v(RES + i, 2)}, {v(VMR, 2)}, {v(VMR, 2)} op_sel:[0,1,0] op_sel_hi:[1,1,0] neg_lo:[0,0,1] neg_hi:[0,0,1]')
        self.poll(29, 13, 16, during=lambda: self.wpre(7, 4, buf, map_w2, self.SP - 1))
        pk5 = self.lpeek(L_CR, 44)
        Lr = A.newlabel('rh')
        A(f's_cmp_eq_u32 {s(sRH)}, 0')
        A(f's_cbranch_scc1 {Lr}')
        A(f's_add_u32 s29, {s(sRH)}, {s(sC)}')
        self.poll(29, 36, 4, mode='atomic')
        A.label(Lr)
        self.pstamp()
        self.small_main(16, acc, buf, XR, 16, self.DS, lambda j: (26, (j & 3) * KB, FREE + (j >> 2)), map_w2, xsig=6, fsig=7, NB=7,
                        preread=lambda j: self.ltest(pk5, L_CR, 5, 44) if j == 7 else None)
        self.store_tile(acc, XR, X1, ST1)
        for i in range(0, 16, 2):
            A(f'v_pk_add_f32 {v(RES + i, 2)}, {v(RES + i, 2)}, {v(acc + i, 2)}')
        self.flag(sF8, C_X1 - CB)

    def stage_w3(self):
        A = self.A
        NT = 7
        ST, K, acc, buf, XR, CS = 32, 40, 48, 104, 160, 224
        self.big_pre(X1, ST1)
        A(f's_add_u32 s29, s29, {C_X1}')
        A(f's_mul_i32 s30, {s(sT0)}, {56 * KB}')
        A(f's_add_u32 s30, s30, {s(sP)}')
        A(f's_add_u32 s30, s30, {G}')
        A(f's_lshl_b32 s32, {s(sCG16)}, 9')
        A(f's_add_u32 s32, s32, s30')
        A(f's_add_u32 s32, s32, {48 * KB}')
        A(f's_mul_i32 s31, {s(sCG16)}, {3 * KB}')
        A(f's_add_u32 s30, s30, s31')
        A(f's_add_u32 s31, s30, {56 * KB}')
        A(f'v_bfe_u32 v3, {v(VLANE)}, 4, 1')
        A(f'v_mul_u32_u24 v13, {56 * KB}, v3')
        A(f'v_lshrrev_b32 v3, 5, {v(VLANE)}')
        A(f'v_lshl_add_u32 v13, v3, 8, v13')
        A(f'v_and_b32 v3, 0xf0, {v(VL16)}')
        A(f'v_add_u32 v13, v13, v3')
        self.lwait(L_CR, 6, 252)
        self.poll(29, VP2, 16, during=lambda: self.wpre(2, NT, buf, map_w3))
        self.pstamp()

        def f():
            for mt in range(2):
                self.stats_consume(ST + 4 * mt, 3)
                self.rstd(ST + 4 * mt + 2, ST + 4 * mt + 1)
                self.gelu_consts(K + 4 * mt, ST + 4 * mt + 2)
        self.big_main(NT, acc, buf, XR, ST, self.rec(f), map_w3, 13, 7, 8, 9)
        for mt in range(2):
            P = acc + 28 * mt
            A.wait(lg=A.lmark() - 1)
            self.ln_fix(P, 28, CS, ST + 4 * mt)
            out = 160 + 12 * mt
            self.gelu(P, 28, K + 4 * mt, buf, None)
            self.pack(out, buf, 12)
            self.pack(184 + 2 * mt, buf + 24, 2)
            lst = [(v(out + 4 * q, 4), 30 + mt, q * KB, VL16, 4, None) for q in range(3)]
            if mt == 1:
                A('v_permlane16_swap_b32 v184, v186')
                A('v_permlane16_swap_b32 v185, v187')
                lst.append((v(184, 4), 32, 0, 13, 4, None))
            self.stores(lst, sP if 'gsc1' in OPT else sFAST if ('gt' in OPT or 'gt2' in OPT) else sFG)
        self.flag(sF16, C_G - CB, two=True)

    def stage_w4(self, Lfinal):
        A = self.A
        XR, buf = 64, 144
        self.small_pre(G, 56)
        self.lwait(L_CR, 8, 252)
        self.wpre(2, 4, buf, map_w4)
        self.poll(29, VL4, 16, ioff=C_G - CB, during=lambda: self.wpre(6, 4, buf, map_w4, 2))
        self.pstamp()

        def hook2(j, t):
            if j == 16 and t == 3:
                self.sig(L_CF, 10)
            if j == (32 if 'e11' in OPT else 38) and t == 3:
                self.sig(L_CF, 11)

        preread = self.acheck([(11, L_CR, 9, 252, False, None), (39, L_CR, 10, 252, False, None)])
        self.small_main(56, RES, buf, XR, 20, self.D4, lambda j: (26, (j & 3) * KB, VL16), map_w4,
                        hook2=hook2, preread=preread, fsig=12, NB=6)
        A(f's_cmp_eq_u32 {s(sPAIR)}, 1')
        A(f's_cbranch_scc1 {Lfinal}')
        self.store_tile(RES, XR, X0, ST0, nextpair=True)
        self.flag(sF8, C_X - CB + CSTRIDE)

    def dump2(self):
        if not self.prof:
            return
        A = self.A
        A(f's_lshl_b32 s55, s2, 2')
        A(f's_add_u32 s55, s55, {s(SW)}')
        A(f's_lshl_b32 s55, s55, 1')
        A(f's_add_u32 s55, s55, {s(sPAIR)}')
        A(f's_lshl_b32 s55, s55, 8')
        A(f's_add_u32 s55, s55, {DBG + 512 * 128}')
        A(f'v_writelane_b32 v12, {s(sFAST)}, 61')
        A(f'buffer_store_dword v12, {v(VL4)}, {s(SRD, 4)}, s55 offen')

    def piece_decode(self, sp):
        A = self.A
        L3, L4, LJ = A.newlabel('pd3'), A.newlabel('pd4'), A.newlabel('pdj')
        A(f's_mov_b32 s98, 0')
        A(f's_cmp_ge_u32 {s(sp)}, 832')
        A(f's_cbranch_scc1 {L4}')
        A(f's_cmp_ge_u32 {s(sp)}, 384')
        A(f's_cbranch_scc1 {L3}')
        A(f's_lshr_b32 s28, {s(sp)}, 7')
        A(f's_and_b32 s29, {s(sp)}, 7')
        A(f's_bfe_u32 s30, {s(sp)}, 0x40003')
        A(f's_cmp_eq_u32 s28, 1')
        A(f's_cselect_b64 {s(SRD2, 2)}, {s(PA + 10, 2)}, {s(PA + 12, 2)}')
        A(f's_cmp_eq_u32 s28, 0')
        A(f's_cselect_b64 {s(SRD2, 2)}, {s(PA + 6, 2)}, {s(SRD2, 2)}')
        A(f's_mov_b32 {s(SRD2 + 2)}, {512 * KB}')
        A(f's_mov_b32 s93, 1024')
        A(f's_lshl_b32 s99, s28, 3')
        A(f's_add_u32 s99, s99, s29')
        A(f's_lshl_b32 s94, s99, 4')
        A(f's_add_u32 s94, s94, s30')
        A(f's_lshl_b32 s94, s94, 12')
        A(f's_add_u32 s94, s94, {WO}')
        for t in range(1, 4):
            A(f's_add_u32 {s(94 + t)}, s94, {t * KB}')
        A(f's_branch {LJ}')
        A.label(L3)
        A(f's_sub_u32 s28, {s(sp)}, 384')
        A(f's_and_b32 s30, s28, 15')
        A(f's_lshr_b32 s29, s28, 4')
        A(f's_mov_b64 {s(SRD2, 2)}, {s(PA + 14, 2)}')
        A(f's_mov_b32 {s(SRD2 + 2)}, {1792 * KB}')
        A(f's_mov_b32 s93, 3584')
        A(f's_add_u32 s99, s29, 24')
        A(f's_mul_i32 s31, s30, {7 * KB}')
        A(f's_add_u32 s31, s31, {W3}')
        for t in range(4):
            A(f's_lshl_b32 s28, s29, 2')
            A(f's_add_u32 s28, s28, {t}')
            A(f's_mul_i32 s32, s28, 43')
            A(f's_lshr_b32 s32, s32, 8')
            A(f's_mul_i32 s33, s32, 6')
            A(f's_sub_u32 s33, s28, s33')
            A(f's_sub_u32 s36, s28, 96')
            A(f's_cmp_ge_u32 s28, 96')
            A(f's_cselect_b32 s32, s36, s32')
            A(f's_cselect_b32 s33, 6, s33')
            A(f's_mul_i32 s32, s32, 112')
            A(f's_add_u32 s32, s32, s33')
            A(f's_lshl_b32 s32, s32, 10')
            A(f's_add_u32 {s(94 + t)}, s32, s31')
        A(f's_branch {LJ}')
        A.label(L4)
        A(f's_sub_u32 s28, {s(sp)}, 832')
        A(f's_and_b32 s29, s28, 7')
        A(f's_lshr_b32 s30, s28, 3')
        A(f's_mov_b64 {s(SRD2, 2)}, {s(PA + 16, 2)}')
        A(f's_mov_b32 {s(SRD2 + 2)}, {1792 * KB}')
        A(f's_mov_b32 s93, 1024')
        A(f's_add_u32 s99, s29, 52')
        A(f's_cmp_ge_u32 s30, 48')
        A(f's_cselect_b32 s98, 1, 0')
        A(f's_mul_i32 s94, s29, 56')
        A(f's_add_u32 s94, s94, s30')
        A(f's_lshl_b32 s94, s94, 12')
        A(f's_add_u32 s94, s94, {W4}')
        for t in range(1, 4):
            A(f's_add_u32 {s(94 + t)}, s94, {t * KB}')
        A.label(LJ)
        A(f's_mul_i32 s92, s30, s93')
        A(f's_lshl_b32 s92, s92, 5')
        A(f's_lshl_b32 s29, s29, 7')
        A(f's_add_u32 s92, s92, s29')
        A(f's_lshl_b32 s99, s99, 7')
        A(f's_add_u32 s99, s99, {PC}')
        A(f'v_lshrrev_b32 v80, 3, {v(VLANE)}')
        A(f'v_mul_u32_u24 v80, s93, v80')
        A(f'v_lshrrev_b32 v81, 1, {v(VLANE)}')
        A(f'v_lshrrev_b32 v82, 4, {v(VLANE)}')
        A(f'v_xor_b32 v81, v81, v82')
        A(f'v_and_b32 v81, 3, v81')
        A(f'v_lshl_add_u32 v80, v81, 5, v80')
        A(f'v_and_b32 v81, 1, {v(VLANE)}')
        A(f'v_lshl_add_u32 v80, v81, 4, v80')
        A(f's_lshl_b32 s93, s93, 3')
        for i in range(4):
            A(f's_add_u32 m0, s100, {i * KB}')
            self.dma(92, 0, voff=80, srd=SRD2)
            if i < 3:
                A(f's_add_u32 s92, s92, s93')
        return A.vmark()

    def piece_finish(self):
        A = self.A
        A(f's_cmp_eq_u32 s98, 1')
        A(f's_cselect_b32 s28, 8, 4')
        A(f's_cselect_b32 s29, 4, 16')
        A(f'v_lshrrev_b32 v81, 4, {v(VLANE)}')
        A(f'v_mul_u32_u24 v81, s28, v81')
        A(f'v_bfe_u32 v82, {v(VLANE)}, 2, 2')
        A(f'v_add_u32 v81, v81, v82')
        A(f'v_and_b32 v82, 3, {v(VLANE)}')
        A(f'v_lshlrev_b32 v82, 3, v82')
        A(f'v_add_u32 v82, s100, v82')
        for u in range(2):
            if u:
                A(f'v_add_u32 v81, s29, v81')
            A(f'v_bfe_u32 v83, v81, 1, 2')
            A(f'v_lshl_add_u32 v83, v83, 5, v82')
            A(f'v_lshl_add_u32 v83, v81, 7, v83')
            for t in range(4):
                A(f'v_xor_b32 v84, {32 * t}, v83')
                A(f'ds_read_b64_tr_b16 {v(88 + 4 * t + 2 * u, 2)}, v84')
        A.wait_all(vm=False)
        for t in range(4):
            A(f'buffer_store_dwordx4 {v(88 + 4 * t, 4)}, {v(VL16)}, {s(SRD, 4)}, {s(94 + t)} offen sc1')

    def count(self, sreg):
        A = self.A
        A('s_mov_b64 exec, 1')
        A(f'buffer_atomic_add {v(VONE)}, {v(VL4)}, {s(SRD, 4)}, {s(sreg)} offen')
        A('s_mov_b64 exec, -1')

    def cs_add(self, accs, addr):
        A = self.A
        A(f'v_and_b32 v3, 15, {v(VLANE)}')
        for i in range(1, 4):
            A(f'v_cmp_eq_u32 {s(26 + 2 * i, 2)}, {i}, v3')
        for r, a_, off in accs:
            for i in range(1, 4):
                A(f'v_cndmask_b32 {v(r)}, {v(r)}, {v(r + i)}, {s(26 + 2 * i, 2)}')
        A('s_mov_b32 exec_lo, 0x000f000f')
        A('s_mov_b32 exec_hi, 0x000f000f')
        for r, a_, off in accs:
            A(f'ds_add_f32 {v(a_)}, {v(r)} offset:{off}')
        A('s_mov_b64 exec, -1')

    def loader(self):
        A = self.A
        sLW = 26
        ONES = 16
        A(f's_sub_u32 {s(sLW)}, {s(SW)}, 4')
        if 'lp' in OPT or 'lp0' in OPT:
            A('s_setprio 3')
        self.nstamp = 0
        if self.prof:
            A('v_mov_b32 v12, 0')
            A('s_memrealtime s[60:61]')
            A('s_waitcnt lgkmcnt(0)')
            A('v_writelane_b32 v12, s60, 63')
        self.pstamp()
        A(f's_mov_b64 {s(SRD2, 2)}, {s(PA + 4, 2)}')
        A(f's_mov_b32 {s(SRD2 + 2)}, {32 * 512}')
        A(f's_lshl_b32 s28, {s(sCG16)}, 10')
        A(f's_mov_b32 m0, {PHL}')
        self.dma(28, srd=SRD2)
        A(f's_mov_b64 {s(SRD2, 2)}, {s(PA + 2, 2)}')
        A(f's_mov_b32 {s(SRD2 + 2)}, {512 * 3072}')
        A(f'v_lshrrev_b32 v40, 2, {v(VLANE)}')
        A(f'v_mul_u32_u24 v40, 3072, v40')
        A(f'v_lshrrev_b32 v41, 4, {v(VLANE)}')
        A(f'v_xor_b32 v41, v41, {v(VLANE)}')
        A(f'v_and_b32 v41, 3, v41')
        A(f'v_lshl_add_u32 v40, v41, 4, v40')
        A(f's_lshl_b32 s59, {s(sCG16)}, 6')
        mw = {}
        for c in range(4):
            A(f's_add_u32 s28, {s(sT0)}, {c}')
            A(f's_and_b32 s28, s28, 3')
            A(f's_lshl_b32 s28, s28, 2')
            A(f's_add_u32 s28, s28, {s(sLW)}')
            A(f's_lshl_b32 {s(40 + c)}, s28, 12')
            A(f's_lshl_b32 {s(44 + c)}, s28, 11')
            A(f's_add_u32 {s(44 + c)}, {s(44 + c)}, {64 * KB}')

        def wdma(u):
            A(f's_mul_i32 s38, {s(40 + (u & 3))}, 24')
            A(f's_add_u32 s38, s38, s59')
            for hr in range(2):
                for p in ((1, 2) if u < 4 else (0,)):
                    A(f's_add_u32 m0, {s(40 + u)}, {max(p - 1, 0) * 2 * KB + hr * KB}')
                    A(f's_add_u32 s29, s38, {hr * 16 * 3072 + p * KB}')
                    self.dma(29, 0, voff=40, srd=SRD2)
            mw[u] = A.vmark()
        for u in range(4):
            wdma(u)
        A.wait_all(vm=False)
        self.pstamp()
        for i in range(4):
            A(f'v_mov_b32 {v(ONES + i)}, 0x3f803f80')
        A(f'v_mov_b32 {v(VONE)}, 1')
        A(f'v_and_b32 v32, 15, {v(VLANE)}')
        A(f'v_lshrrev_b32 v33, 4, {v(VLANE)}')
        A(f'v_lshrrev_b32 v34, 2, v32')
        A(f'v_lshrrev_b32 v35, 1, v33')
        A(f'v_xor_b32 v35, v35, v34')
        A(f'v_lshlrev_b32 v35, 4, v35')
        A(f'v_lshl_add_u32 v35, v32, 6, v35')
        A(f'v_and_b32 v36, 1, v33')
        A(f'v_lshl_add_u32 v35, v36, 3, v35')
        A(f'v_xor_b32 v36, 32, v35')
        A(f'v_bfe_u32 v37, {v(VLANE)}, 1, 1')
        A(f'v_xor_b32 v37, v37, v33')
        A(f'v_lshlrev_b32 v37, 4, v37')
        A(f'v_lshrrev_b32 v38, 2, {v(VLANE)}')
        A(f'v_lshl_add_u32 v37, v38, 6, v37')
        A(f'v_and_b32 v38, 1, {v(VLANE)}')
        A(f'v_lshl_add_u32 v37, v38, 3, v37')
        A(f'v_xor_b32 v38, 32, v37')
        A(f'v_and_b32 v39, 1, v34')
        A(f'v_lshlrev_b32 v39, 10, v39')
        A(f'v_lshl_add_u32 v39, v33, 8, v39')
        A(f'v_lshrrev_b32 v34, 3, v32')
        A(f'v_lshl_add_u32 v39, v34, 7, v39')
        A(f'v_and_b32 v34, 3, v32')
        A(f'v_lshl_add_u32 v39, v34, 4, v39')
        A(f'v_lshlrev_b32 v46, 3, {v(VLANE)}')
        A(f'v_add_u32 v46, {PHL}, v46')
        A(f'v_and_b32 v30, 1, v33')
        A(f'v_lshlrev_b32 v30, 6, v30')
        A(f'v_lshrrev_b32 v34, 1, v33')
        A(f'v_lshl_add_u32 v30, v34, 5, v30')
        A(f'v_add_u32 v30, {L_CSQ}, v30')
        A(f'v_lshl_add_u32 v30, v32, 2, v30')
        A(f'v_lshlrev_b32 v31, 4, v33')
        A(f'v_add_u32 v31, {PERM}, v31')
        A(f'v_lshl_add_u32 v31, v32, 2, v31')
        F, C, CSA = 104, 104, 120

        def RB(u):
            return 160 + 16 * u if u < 4 else 224 + 8 * (u - 4)

        def reads(u):
            R = RB(u)
            for r in range(4 if u < 4 else 2):
                A(f'v_add_u32 {v(64 + r)}, {s(40 + u)}, {v(35 + r)}')
            A.wait(vm=mw[u])
            if u == 0:
                A(f'ds_read_b64_tr_b16 v[20:21], v46')
                A(f'ds_read_b64_tr_b16 v[22:23], v46 offset:512')
            for hh in range(2):
                for h2 in range(2):
                    A(f'ds_read_b64 {v(R + 4 * hh + 2 * h2, 2)}, {v(64 + hh)} offset:{h2 * KB}')
            if u < 4:
                for hh in range(2):
                    for h2 in range(2):
                        A(f'ds_read_b64_tr_b16 {v(R + 8 + 4 * hh + 2 * h2, 2)}, {v(66 + hh)} offset:{2 * KB + h2 * KB}')
            return A.lmark()
        rm = reads(0)
        for u in range(8):
            R = RB(u)
            A(f'v_add_u32 v68, {s(40 + u)}, v39')
            if u < 4:
                A(f'v_add_u32 v69, {s(40 + u)}, {v(VL16)}')
            A.wait(lg=rm)
            for hh in range(2):
                for h2 in range(2):
                    A(f'v_mfma_f32_16x16x16_bf16 {v(C + 8 * hh + 4 * h2, 4)}, {v(R + 4 * hh + 2 * h2, 2)}, {v(20 + 2 * hh, 2)}, 0')
            if u < 4:
                for hh in range(2):
                    A(f'ds_write_b128 v69, {v(R + 8 + 4 * hh, 4)} offset:{(2 + hh) * KB}')
            if u not in (3, 7):
                rm = reads(u + 1)
            for hh in range(2):
                self.pack(R + 4 * hh, C + 8 * hh, 4)
                A(f'ds_write_b128 v68, {v(R + 4 * hh, 4)} offset:{hh * 64}')
            if u in (3, 7):
                self.sig(L_CR, 1 if u == 3 else 2)
            if u == self.LPU:
                A('s_setprio 3')
            for t in range(4 if u < 4 else 2):
                a_ = CSA + 4 * t + (16 if u >= 4 else 0)
                A(f'v_mfma_f32_16x16x32_bf16 {v(a_, 4)}, {v(R + 4 * t, 4)}, {v(ONES, 4)}, {"0" if (u & 3) == 0 else v(a_, 4)}')
            if u == self.QD:
                for u2 in range(4, 8):
                    wdma(u2)
            if u == 3:
                self.pstamp()
                self.cs_add([(CSA + 4 * hh, 30, hh * 16) for hh in range(2)] + [(CSA + 8 + 4 * hh, 31, (2 + hh) * 64) for hh in range(2)], None)
                self.sig(L_CS, 1, absv=True)
                A(f's_lshl_b32 s100, {s(sLW)}, 12')
                A(f's_add_u32 s100, s100, {PST}')
                A(f's_lshl_b32 s49, s2, 2')
                A(f's_add_u32 s49, s49, {s(sLW)}')
                A(f's_add_u32 s49, s49, 256')
                m_p1 = self.piece_decode(49)
                rm = reads(4)
        self.cs_add([(CSA + 16 + 4 * hh, 30, 256 + hh * 16) for hh in range(2)], None)
        self.sig(L_CS, 2, absv=True)
        A.wait_all(vm=False)
        self.pstamp()
        A.wait(vm=m_p1)
        self.piece_finish()
        bases = {}
        for r, (nm, WP, scg, sz) in enumerate((('q', WQKV, sCG16, 96), ('o', WO, sCG8, 64), ('1', W1, sCG8, 64), ('2', W2, sCG8, 64),
                                               ('3', W3, sCG16, 112), ('4', W4, sCG8, 224))):
            A(f's_mul_i32 {s(52 + r)}, {s(scg)}, {sz * KB}')
            A(f's_add_u32 {s(52 + r)}, {s(52 + r)}, {WP}')
            bases[nm] = 52 + r
        self.lwait(L_INIT, 1, 24, sleep=1, single=True)
        self.pstamp()
        A('s_lshr_b32 s34, s2, 3')
        A('s_lshl_b32 s34, s34, 2')
        A(f's_add_u32 s34, s34, {s(sLW)}')
        A(f'v_lshlrev_b32 v21, 7, {v(VLANE)}')
        A(f's_lshl_b32 s37, {s(sLW)}, 10')
        for u in range(8):
            A(f's_mov_b32 {s(64 + u)}, {s(40 + u)}')
        A('v_mov_b32 v28, v39')
        SCR, RSZ = 96 * KB, 336
        A(f'v_bfe_u32 v3, {v(VLANE)}, 2, 2')
        A(f'v_lshl_add_u32 v3, v33, 3, v3')
        A(f'v_mul_u32_u24 v47, {RSZ}, v3')
        A(f'v_and_b32 v3, 3, {v(VLANE)}')
        A(f's_lshr_b32 s30, {s(sLW)}, 1')
        A(f's_and_b32 s31, {s(sLW)}, 1')
        A(f's_lshl_b32 s32, s30, 6')
        A(f's_lshl_b32 s33, s31, 3')
        A(f's_add_u32 s32, s32, s33')
        A(f's_add_u32 s32, s32, {SCR + 128}')
        A(f'v_lshl_add_u32 v4, v3, 4, v47')
        A(f'v_add_u32 v4, s32, v4')
        A(f's_lshl_b32 s32, s30, 5')
        A(f's_add_u32 s32, s32, {SCR + 256}')
        A(f'v_lshl_add_u32 v5, v3, 3, v47')
        A(f'v_add_u32 v5, s32, v5')
        A(f's_lshl_b32 s40, {s(sCG16)}, 12')
        A(f's_add_u32 s40, s40, s37')
        A(f's_add_u32 s40, s40, {KV}')
        A(f's_lshl_b32 s41, {s(sCG16)}, 8')
        A(f's_lshl_b32 s33, s30, 7')
        A(f's_add_u32 s41, s41, s33')
        A(f's_lshl_b32 s31, s31, 4')
        A(f's_add_u32 s41, s41, s31')
        A(f's_add_u32 s41, s41, {Z}')
        A(f's_lshl_b32 s48, {s(sCG16)}, {CSH}')
        A(f's_add_u32 s48, s48, {C_KV}')
        A(f'v_lshlrev_b32 v50, 5, v33')
        A(f'v_lshl_add_u32 v6, v32, 2, v50')
        A(f'v_mov_b32 v3, {OOB}')
        A(f'v_cmp_gt_u32 vcc, 4, v32')
        A(f'v_cndmask_b32 v6, v3, v6, vcc')
        A(f'v_cmp_eq_u32 s[42:43], 1, v32')
        A(f'v_cmp_eq_u32 s[44:45], 2, v32')
        A(f'v_cmp_eq_u32 s[46:47], 3, v32')

        def kvjob(TA):
            TB, KVA, ZA = TA + 16, TA + 32, TA + 36
            kp = 'kprof' in OPT
            if kp:
                self.nstamp = 0
                A('s_memrealtime s[60:61]')
                A('s_waitcnt lgkmcnt(0)')
                A('v_mov_b32 v12, 0')
                A('v_writelane_b32 v12, s60, 63')
                self.pstamp()
            self.lwait(L_CB, 1, 24, sleep=1)
            A('s_setprio 3')
            if kp:
                self.pstamp()
            for ks in range(4):
                for u2 in range(2):
                    off = (32 * ks + 4 * u2) * RSZ
                    A(f'ds_read_b64_tr_b16 {v(TA + 4 * ks + 2 * u2, 2)}, v4 offset:{off}')
                    A(f'ds_read_b64_tr_b16 {v(TB + 4 * ks + 2 * u2, 2)}, v5 offset:{off}')
                if ks == 2:
                    A.wait(lg=A.lmark() - 8)
            base = A.lmark() - 16
            for ks in range(4):
                A.wait(lg=base + 4 * ks + 4)
                A(f'v_mfma_f32_16x16x32_bf16 {v(KVA, 4)}, {v(TA + 4 * ks, 4)}, {v(TB + 4 * ks, 4)}, {"0" if ks == 0 else v(KVA, 4)}')
                A(f'v_mfma_f32_16x16x32_bf16 {v(ZA, 4)}, {v(TA + 4 * ks, 4)}, {v(ONES, 4)}, {"0" if ks == 0 else v(ZA, 4)}')
            for r in range(4):
                o = f' offset:{256 * r}' if r else ''
                A(f'buffer_atomic_add_f32 {v(KVA + r)}, {v(VL4)}, {s(SRD, 4)}, s40 offen{o}')
            for i in range(1, 4):
                A(f'v_cndmask_b32 {v(ZA)}, {v(ZA)}, {v(ZA + i)}, {s(40 + 2 * i, 2)}')
            A(f'buffer_atomic_add_f32 {v(ZA)}, v6, {s(SRD, 4)}, s41 offen')
            if kp:
                self.pstamp()
            KT = int([o[2:] for o in OPT if o.startswith('kt')][0]) if any(o.startswith('kt') for o in OPT) else 0
            if KT:
                A(f's_mul_i32 s33, s34, {14 * KB}')
                A(f's_add_u32 s33, s33, {W3}')
                A(f's_cmp_eq_u32 {s(sPAIR)}, 0')
                A(f's_cselect_b32 s33, {WS_USED}, s33')
                A(f'buffer_load_dword v20, v21, {s(SRD, 4)}, s33 offen')
                if KT > 64:
                    A(f's_add_u32 s33, s33, 8192')
                    n2 = KT - 64
                    A(f's_mov_b64 exec, {(1 << n2) - 1:#x}' if n2 < 32 else f's_mov_b32 exec_hi, {(1 << (n2 - 32)) - 1:#x}')
                    A(f'buffer_load_dword v20, v21, {s(SRD, 4)}, s33 offen')
                    A('s_mov_b64 exec, -1')
            A(f's_waitcnt vmcnt({0 if not KT else 1 if KT <= 64 else 2})')
            A.vm_done = A.vm
            if kp:
                self.pstamp()
            self.sig(L_KD, 1)
            self.lwait(L_KD, 1, 24)
            Lk = A.newlabel('kadd')
            A(f's_cmp_lg_u32 {s(sLW)}, 3')
            A(f's_cbranch_scc1 {Lk}')
            self.count(48)
            A.label(Lk)
            A('s_setprio 0')
            if kp:
                self.pstamp()
                A('s_waitcnt vmcnt(0)')
                self.pstamp()
                A(f's_lshl_b32 s33, s2, 2')
                A(f's_add_u32 s33, s33, {s(sLW)}')
                A(f's_lshl_b32 s33, s33, 8')
                A(f's_add_u32 s33, s33, {DBG + 1024 * KB}')
                A(f'buffer_store_dword v12, {v(VL4)}, {s(SRD, 4)}, s33 offen')
        L, L3 = A.newlabel('lloop'), A.newlabel('lb3')
        if 'lp0' in OPT:
            A('s_setprio 0')
        self.sig(L_CS, 3, absv=True)
        A('s_waitcnt vmcnt(0)')
        A.vm_done = A.vm
        self.count(99)
        Ln = A.newlabel('nomode')
        A(f's_cmp_lg_u32 {s(sLW)}, 0')
        A(f's_cbranch_scc1 {Ln}')
        A('s_getreg_b32 s30, hwreg(HW_REG_XCC_ID)')
        A('s_and_b32 s30, s30, 15')
        A('s_mul_i32 s31, s30, s30')
        A('s_lshl_b32 s31, s31, 16')
        A('s_lshl_b32 s30, s30, 7')
        A('s_add_u32 s30, s30, s31')
        A('s_add_u32 s58, s30, 1')
        A('s_and_b32 s59, s2, 7')
        A('s_lshl_b32 s59, s59, 7')
        A(f's_add_u32 s59, s59, {XW}')
        self.poll(59, VL4, 1, target=32, mode='load', mask=0x7f)
        A('v_readfirstlane_b32 s30, v3')
        A('s_lshl_b32 s31, s58, 5')
        A('s_cmp_eq_u32 s30, s31')
        A(f's_cselect_b32 s33, {1 if "slow" in OPT else 2}, 1')
        A('v_mov_b32 v3, s33')
        A(f'ds_write_b32 {v(VPERM)}, v3 offset:{L_MODE - L_CF}')
        A.wait_all(vm=False)
        A.label(Ln)
        kvjob(104)
        A(f's_branch {L3}')
        A.label(L)

        def run(nm, src0, lds0, n):
            for i in range(0, n, 4):
                if i + 4 <= n:
                    A(f's_add_u32 m0, s37, {lds0 + i * KB}')
                    A(f's_add_u32 s28, s37, {src0 + i * KB}')
                else:
                    A(f's_min_u32 s28, s37, {(n - 1 - i) * KB}')
                    A(f's_add_u32 m0, s28, {lds0 + i * KB}')
                    A(f's_add_u32 s28, s28, {src0 + i * KB}')
                A(f's_add_u32 s28, s28, {s(bases[nm])}')
                self.dma(28)

        def steps(nm, lmap, NT, j0, j1):
            j = j0
            while j < j1:
                e = j + 1
                while e < j1 and lmap(e) == lmap(e - 1) + NT * KB:
                    e += 1
                run(nm, j * NT * KB, lmap(j), (e - j) * NT)
                j = e

        def only(pair, fn):
            Lx = A.newlabel('only')
            A.wait_all(vm=False)
            A(f's_cmp_lg_u32 {s(sPAIR)}, {pair}')
            A(f's_cbranch_scc1 {Lx}')
            vmd = A.vm_done
            fn()
            A.wait_all(vm=False)
            A.vm_done = vmd
            A.label(Lx)

        def touch(base, size):
            share = size // 128
            A(f's_mul_i32 s33, s34, {share}')
            A(f's_add_u32 s33, s33, {base}')
            vm0 = A.vm
            for i in range((share + 8191) // 8192):
                A(f'buffer_load_dword v20, v21, {s(SRD, 4)}, s33 offen')
                A(f's_add_u32 s33, s33, 8192')
            A.vm = vm0

        PK_ = 28

        def pfl(base, size, trig):
            self.lwait(L_PS, trig, 24, sleep=2)
            share = size // 128
            lines = share // 128
            A(f's_mul_i32 s33, s34, {share}')
            A(f's_add_u32 s33, s33, {base}')
            A(f's_mov_b64 exec, {(1 << PK_) - 1:#x}')
            A(f's_mov_b32 s36, {(lines + PK_ - 1) // PK_}')
            Lp_ = A.newlabel('pf')
            A.label(Lp_)
            A(f'buffer_load_dword v20, v21, {s(SRD, 4)}, s33 offen')
            A(f's_add_u32 s33, s33, {PK_ * 128}')
            A('s_sub_u32 s36, s36, 1')
            A('s_cmp_lg_u32 s36, 0')
            A('s_waitcnt vmcnt(0)')
            A(f's_cbranch_scc1 {Lp_}')
            A('s_mov_b64 exec, -1')

        def need(idx0, scg, n, stride, target):
            A(f's_lshl_b32 s33, {s(scg)}, 7')
            A(f's_add_u32 s33, s33, {PC + idx0 * 128}')
            A(f'v_mul_u32_u24 v23, {stride}, v21')
            self.poll(33, 23, n, target=target, mode='load')

        def need3():
            A(f's_mul_i32 s33, {s(sCG16)}, 6')
            A(f's_lshr_b32 s33, s33, 2')
            A(f'v_add_u32 v23, s33, {v(VLANE)}')
            A(f's_lshr_b32 s33, {s(sCG16)}, 2')
            A(f's_add_u32 s33, s33, 24')
            A(f'v_writelane_b32 v23, s33, 2')
            A(f'v_lshlrev_b32 v23, 7, v23')
            A(f's_mov_b32 s33, {PC + 24 * 128}')
            self.poll(33, 23, 3, target=16, mode='load')

        def cs_build(k, lmap, NT, loc, val, cs=(0, 1, 2, 3), first=True):
            self.lwait(L_CR, k, 24, sleep=1)
            st = NT * KB
            base = min(lmap(j) for j in range(16))
            assert sorted(lmap(j) for j in range(16)) == [base + j * st for j in range(16)]
            for c in cs:
                A(f's_mul_i32 s28, {s(sLW)}, {st}')
                A(f's_add_u32 s28, s28, {base + 4 * c * st}')
                A(f'v_add_u32 v9, s28, {v(VL16)}')
                for t in range(NT):
                    A(f'ds_read_b128 {v(92 + 4 * t, 4)}, v9 offset:{t * KB}')
                A.wait_all(vm=False)
                for t in range(NT):
                    A(f'v_mfma_f32_16x16x32_bf16 {v(CSA + 4 * t, 4)}, {v(92 + 4 * t, 4)}, {v(ONES, 4)}, {"0" if (first and c == cs[0]) else v(CSA + 4 * t, 4)}')
            if val:
                self.cs_add([(CSA + 4 * t, 31, loc - PERM + t * 64) for t in range(NT)], None)
                self.sig(L_CS, val, absv=True)

        def code_touch(lab):
            if 'ct' not in OPT:
                return
            Lpc = A.newlabel('pc')
            A('s_getpc_b64 s[30:31]')
            A.label(Lpc)
            A(f's_lshl_b32 s28, {s(sLW)}, 11')
            A(f's_add_u32 s28, s28, {lab}-{Lpc}')
            A('s_add_u32 s30, s30, s28')
            A('s_addc_u32 s31, s31, 0')
            A('s_mov_b64 exec, 0xffff')
            A('global_load_dword v20, v21, s[30:31]')
            A.vm -= 1
            A('s_mov_b64 exec, -1')

        def batch(k, parts, after=None):
            self.lwait(L_CF, k, 24, sleep=2)
            for p in parts:
                steps(*p)
            m = A.vmark()
            if after:
                after()
            A.wait(vm=m)
            self.sig(L_CR, k)
        A.vm_done = A.vm
        for k, us in ((1, range(4)), (2, range(4, 8))):
            self.lwait(L_CF, k, 24, sleep=2)
            for u in us:
                A(f'v_add_u32 v9, {s(64 + u)}, v28')
                for hh in range(2):
                    A(f'ds_write_b128 v9, {v(RB(u) + 4 * hh, 4)} offset:{hh * 64}')
                if u < 4:
                    A(f'v_add_u32 v10, {s(64 + u)}, {v(VL16)}')
                    for hh in range(2):
                        A(f'ds_write_b128 v10, {v(RB(u) + 8 + 4 * hh, 4)} offset:{(2 + hh) * KB}')
            self.sig(L_CR, k)
        D1 = [('o', map_wo, 4, 0, 16), ('1', map_w1, 4, 0, 4)]
        if 'd1e' in OPT:
            self.lwait(L_CF, 3, 24, sleep=1)
            for p in D1:
                steps(*p)
        kvjob(160)
        A.wait_all(vm=False)
        A.label(L3)

        def ldump():
            need(0, sCG8, 2, 8, 16)
            self.lwait(L_CS, 3, 24, sleep=1, absv=True)
            if self.prof and 'kprof' not in OPT:
                self.pstamp()
                A(f's_lshl_b32 s33, s2, 2')
                A(f's_add_u32 s33, s33, {s(sLW)}')
                A(f's_lshl_b32 s33, s33, 8')
                A(f's_add_u32 s33, s33, {DBG + 1024 * KB}')
                A(f'buffer_store_dword v12, {v(VL4)}, {s(SRD, 4)}, s33 offen')
        only(0, ldump)
        if 'd1e' in OPT:
            def d1():
                for p in D1:
                    steps(*p)
                A('s_waitcnt vmcnt(0)')
            only(0, d1)
            self.sig(L_CR, 3)
        else:
            batch(3, D1)
        if 'pq' in OPT:
            only(1, lambda: pfl(W2, 1536 * KB, 1))
        if 'touch' in OPT:
            only(1, lambda: touch(W3, 1024 * KB))
        only(0, lambda: need(16, sCG8, 1, 0, 16))
        batch(4, [('1', map_w1, 4, 4, 16), ('2', map_w2, 4, 0, 7)])
        only(0, lambda: (cs_build(4, map_w1, 4, L_CS1, 4), A.wait_all(vm=False), need3()))
        batch(5, [('2', map_w2, 4, 7, 16), ('3', map_w3, 7, 0, 3)], lambda: only(0, lambda: code_touch('.Lst_w3')))
        A(f'v_add_u32 v9, s37, {v(VL16)}')
        A(f'v_add_u32 v9, {map_w3(3)}, v9')

        def w3out():
            self.lwait(L_PS, 1, 24, sleep=2)
            for i in range(15):
                A(f'ds_write_b128 v9, {v(32 + 4 * i, 4)} offset:{i * 4 * KB}')
        only(1, w3out)
        self.lwait(L_CF, 6, 24, sleep=2)
        run('3', 81 * KB, map_w3(3) + 60 * KB, 10)
        only(0, lambda: run('3', 21 * KB, map_w3(3), 60))
        A('s_waitcnt vmcnt(0)')
        A.vm_done = A.vm
        self.sig(L_CR, 6)

        def w3in():
            for i in range(15):
                A(f'ds_read_b128 {v(32 + 4 * i, 4)}, v9 offset:{i * 4 * KB}')
        only(0, w3in)
        batch(7, [('3', map_w3, 7, 13, 16)], lambda: only(0, lambda: cs_build(6, map_w3, 7, L_CS3, 0, (1, 2, 3))))
        only(0, lambda: (cs_build(7, map_w3, 7, L_CS3, 5, (0,), False), A.wait_all(vm=False), need(52, sCG8, 1, 0, 56)))
        RG = int([o[2:] for o in OPT if o.startswith('rg')][0]) if any(o.startswith('rg') for o in OPT) else 99

        def regload():
            A(f's_add_u32 s28, s37, {s(bases["4"])}')
            A(f's_add_u32 s28, s28, {39 * 4 * KB}')
            for i in range(17):
                self.ldx(v(92 + 4 * i, 4), 28, sc=' sc1')
                A(f's_add_u32 s28, s28, {4 * KB}')
                if i % RG == RG - 1:
                    A.wait_all(lg=False)
        if 'v2' in OPT:
            self.lwait(L_PS, 2, 24, sleep=2)
            regload()
            batch(8, [('4', map_w4, 4, 0, 11)])
        elif 'v3' in OPT:
            batch(8, [('4', map_w4, 4, 0, 11)], regload)
        else:
            def gtouch():
                Lt = A.newlabel('gt')
                A(f'ds_read_b32 v24, {v(VPERM)} offset:{L_MODE - L_CF}')
                A.wait_all(vm=False)
                A('v_readfirstlane_b32 s33, v24')
                A('s_cmp_lg_u32 s33, 2')
                A(f's_cbranch_scc1 {Lt}')
                A(f's_mul_i32 s33, s34, {7 * KB}')
                A('s_and_b32 s36, s2, 7')
                A(f's_mul_i32 s36, s36, {896 * KB}')
                A('s_add_u32 s33, s33, s36')
                A(f's_add_u32 s33, s33, {G}')
                A('s_mov_b32 exec_hi, 0xffffff')
                A(f'buffer_load_dword v20, v21, {s(SRD, 4)}, s33 offen')
                A('s_mov_b32 exec_hi, -1')
                A.label(Lt)
            self.lwait(L_PS, 2, 24, sleep=2)
            if 'gt' in OPT:
                gtouch()
            steps('4', map_w4, 4, 0, 11)
            if 'gt2' in OPT:
                gtouch()
            A.wait_all(lg=False)
            self.sig(L_CR, 8)
            only(0, lambda: (self.lwait(L_CF, 8, 24, sleep=2), regload()))
            only(0, lambda: (code_touch('.Lst_w4'), code_touch('.Lst_q')))
        batch(9, [('4', map_w4, 4, 11, 39)])
        if 'noreg' not in OPT:
            A(f'v_add_u32 v9, s37, {v(VL16)}')
            A(f'v_add_u32 v9, {map_w4(50)}, v9')
            A(f'v_add_u32 v10, {32 * KB}, v9')
            self.lwait(L_CF, 10, 24, sleep=2)
            for i in range(17):
                o_ = map_w4(39 + i) - map_w4(50)
                A(f'ds_write_b128 {v(9 + (o_ >= 32 * KB))}, {v(92 + 4 * i, 4)} offset:{o_ - 32 * KB * (o_ >= 32 * KB)}')
            self.sig(L_CR, 10)
        else:
            batch(10, [('4', map_w4, 4, 39, 56)])
        A.wait_all()
        A(f's_add_u32 {s(sEV)}, {s(sEV)}, 10')
        A(f's_add_u32 s40, s40, {ZSTRIDE}')
        A(f's_add_u32 s41, s41, {ZSTRIDE}')
        A(f's_add_u32 s48, s48, {CSTRIDE}')
        A(f's_add_u32 {s(sPAIR)}, {s(sPAIR)}, 1')
        A(f's_cmp_lt_u32 {s(sPAIR)}, 2')
        A(f's_cbranch_scc1 {L}')
        A('s_endpgm')

    def main(self):
        A = self.A
        name = NAME + '_kernel'
        A.reset_kernel()
        A.raw('.p2align 8')
        A.raw(f'.globl {name}')
        A.raw(f'.type {name},@function')
        A.label(name)
        self.exit = A.newlabel('exit')
        A('s_cmp_ge_u32 s2, 256')
        A(f's_cbranch_scc1 {self.exit}')
        A(f's_load_dwordx16 {s(PA, 16)}, s[0:1], 0')
        A(f's_load_dwordx8 {s(PA + 16, 8)}, s[0:1], 64')
        if self.prof or 'dbgt' in OPT or any(o.startswith('mk') for o in OPT):
            A('s_memrealtime s[62:63]')
        Lpc = A.newlabel('pc')
        A('s_getpc_b64 s[40:41]')
        A.label(Lpc)
        if 'cpfull' in OPT:
            A('v_lshlrev_b32 v3, 7, v0')
            A(f'v_min_u32 v3, code_end-{Lpc}-4, v3')
            A('global_load_dword v13, v3, s[40:41]')
        elif 'cpnone' not in OPT:
            A('s_lshr_b32 s42, s2, 3')
            A('s_lshl_b32 s42, s42, 11')
            A('v_lshlrev_b32 v3, 2, v0')
            A('v_add_u32 v3, s42, v3')
            A(f'v_min_u32 v3, code_end-{Lpc}-4, v3')
            A('s_mov_b32 exec_lo, 1')
            A('s_mov_b32 exec_hi, 1')
            A('global_load_dword v13, v3, s[40:41]')
            A('s_mov_b64 exec, -1')
        A(f'v_and_b32 {v(VLANE)}, 63, v0')
        A(f'v_lshrrev_b32 v3, 6, v0')
        A(f'v_lshlrev_b32 {v(VL16)}, 4, {v(VLANE)}')
        A(f'v_readfirstlane_b32 {s(SW)}, v3')
        A(f's_mov_b32 {s(SRD + 2)}, {WS_USED}')
        A(f's_mov_b32 {s(SRD + 3)}, 0x00020000')
        A(f's_mov_b32 {s(SRD2 + 3)}, 0x00020000')
        A(f's_mov_b32 {s(SRDD + 2)}, 256')
        A(f's_mov_b32 {s(SRDD + 3)}, 0x00020000')
        self.tile64(sT, sCG8)
        self.tile128(sT0, sCG16)
        A(f's_mov_b32 {s(sPAIR)}, 0')
        A(f's_mov_b32 {s(sTO)}, 0x200000')
        A(f'v_lshlrev_b32 {v(VL4)}, 2, {v(VLANE)}')
        A(f's_mov_b32 {s(sEV)}, 0')
        A(f'v_mov_b32 {v(VPERM)}, {L_CF}')
        A(f's_and_b32 s26, {s(SW)}, 3')
        A(f's_lshl_b32 s26, s26, 2')
        A(f'v_add_u32 {v(VOWN)}, s26, {v(VPERM)}')
        A(f'v_cmp_gt_u32 vcc, 4, {v(VLANE)}')
        A(f'v_cndmask_b32 v3, 0, 2, vcc')
        A(f'v_add_u32 v10, {v(VL4)}, {v(VPERM)}')
        A(f'ds_write_b32 v10, v3')
        A(f'v_lshlrev_b32 v10, 2, v0')
        A(f'v_add_u32 v10, {PERM}, v10')
        A(f'v_mov_b32 v11, 0')
        A(f'ds_write_b32 v10, v11')
        LC = A.newlabel('compute')
        A('s_waitcnt lgkmcnt(0)')
        A.lg_done = A.lg
        A(f's_mov_b64 {s(SRD, 2)}, {s(PA + 22, 2)}')
        A(f's_mov_b64 {s(SRDD, 2)}, {s(PA + 20, 2)}')
        if 'wpf' in OPT:
            A('s_lshr_b32 s26, s2, 3')
            A('s_lshl_b32 s27, s2, 2')
            A('s_add_u32 s26, s26, s27')
            A('s_and_b32 s26, s26, 31')
            A('s_lshl_b32 s26, s26, 3')
            A(f's_add_u32 s26, s26, {s(SW)}')
            A(f's_mul_i32 s26, s26, 6144')
            A(f's_mov_b64 {s(SRD2, 2)}, {s(PA + 2, 2)}')
            A(f's_mov_b32 {s(SRD2 + 2)}, {512 * 3072}')
            A(f'v_lshlrev_b32 v10, 7, {v(VLANE)}')
            A('s_mov_b32 exec_hi, 0xffff')
            A(f'buffer_load_dword v13, v10, {s(SRD2, 4)}, s26 offen')
            A('s_mov_b32 exec_hi, -1')
        A(f's_cmp_lt_u32 {s(SW)}, 4')
        A('s_barrier')
        A(f's_cbranch_scc1 {LC}')
        self.loader()
        A.label(LC)
        A.flush_hazards()
        A.vm = A.vm_done = A.lg = A.lg_done = 0
        if 'eq' not in OPT:
            A('s_setprio 2')
        A(f's_lshl_b32 {s(sT0)}, {s(sT0)}, 3')
        A(f's_lshl_b32 s26, {s(SW)}, 1')
        A(f's_add_u32 {s(sT0)}, {s(sT0)}, s26')
        Lz = A.newlabel('nz')
        A(f's_cmp_lt_u32 s2, 32')
        A(f's_cselect_b32 s58, {s(SW)}, 0')
        A(f's_cmp_lg_u32 s58, 3')
        A(f's_cbranch_scc1 {Lz}')
        for i in range(4):
            A(f'v_mov_b32 {v(28 + i)}, 0')
        A(f's_mul_i32 s28, s2, {5 * KB}')
        A(f's_add_u32 s28, s28, {ZR}')
        A(f's_add_u32 s29, s28, {4 * KB}')
        A(f's_and_b32 s30, s2, 7')
        A(f's_lshl_b32 s30, s30, 14')
        A(f's_lshr_b32 s31, s2, 3')
        A(f's_lshl_b32 s31, s31, 12')
        A(f's_add_u32 s30, s30, s31')
        A(f's_add_u32 s30, s30, {CB}')
        assert CB == ZR + 160 * KB
        for i in range(9):
            r, o = (28, i) if i < 4 else (29, 0) if i == 4 else (30, i - 5)
            A(f'buffer_store_dwordx4 v[28:31], {v(VL16)}, {s(SRD, 4)}, {s(r)} offen offset:{o * KB} sc1')
        A.label(Lz)
        A.vm_done = A.vm
        A('s_nop 0')
        A(f's_mov_b64 {s(SRD2, 2)}, {s(PA, 2)}')
        A(f's_mov_b32 {s(SRD2 + 2)}, {2048 * 512 * 2}')
        A(f'v_lshrrev_b32 v3, 4, {v(VLANE)}')
        A(f'v_and_b32 v10, 0xf0, {v(VL16)}')
        A(f'v_lshl_add_u32 v10, v3, 10, v10')
        A(f's_lshl_b32 s92, {s(sT0)}, 14')
        for i in range(1, 8):
            A(f's_add_u32 {s(92 + i)}, s92, {i * 4096}')
        PB = [128, 160, 192, 224]
        self.x0m = []

        def x0load(q4):
            for mt in range(2):
                for n in range(4):
                    self.ld(v(PB[q4] + 16 * mt + 4 * n, 4), 92 + 4 * mt + n, 256 * q4, voff=10, srd=SRD2)
                self.x0m.append(A.vmark())
        self.x0load = x0load
        for q4 in range(self.XPRE):
            x0load(q4)
        A(f's_mov_b32 {s(sP)}, 0')
        A(f's_mov_b32 {s(sZ)}, 0')
        A(f's_mov_b32 {s(sC)}, 0')
        A(f's_mov_b32 {s(sFAST)}, 0')
        A(f's_mov_b32 {s(sFG)}, 0')
        A(f's_lshl_b32 {s(sT)}, {s(sT)}, 2')
        A(f's_add_u32 {s(sT)}, {s(sT)}, {s(SW)}')
        A(f's_lshl_b32 {s(sTILE)}, {s(sT)}, 14')
        A(f's_lshl_b32 s26, {s(sCG8)}, 11')
        A(f's_add_u32 {s(sTILE)}, {s(sTILE)}, s26')
        A(f's_lshl_b32 {s(sSTP)}, {s(sT)}, 10')
        A(f's_lshl_b32 s26, {s(sCG8)}, 7')
        A(f's_add_u32 {s(sSTP)}, {s(sSTP)}, s26')
        A(f's_mov_b32 {s(sHH)}, {HH - H}')
        A(f's_and_b32 s26, {s(sT)}, 15')
        A(f's_bitcmp1_b32 {s(sCG8)}, 1')
        A(f's_cselect_b32 s27, 0, 15')
        A(f's_cmp_eq_u32 s26, s27')
        A(f's_cselect_b32 {s(sFH)}, 1, 0')
        A(f's_lshl_b32 s27, {s(sT)}, {CSH}')
        A(f's_add_u32 s28, s27, {C_HH - (1 << CSH)}')
        A(f's_add_u32 s27, s27, {C_HH + (1 << CSH) + 8}')
        A(f's_cmp_eq_u32 s26, 15')
        A(f's_cselect_b32 {s(sRH)}, s27, 0')
        A(f's_cmp_eq_u32 s26, 0')
        A(f's_cselect_b32 {s(sRH)}, s28, {s(sRH)}')
        A(f's_cmp_eq_u32 {s(sT)}, 0')
        A(f's_cselect_b32 {s(sRH)}, 0, {s(sRH)}')
        A(f's_cmp_eq_u32 {s(sT)}, 127')
        A(f's_cselect_b32 {s(sRH)}, 0, {s(sRH)}')
        for f, t, c in ((sF8, sT, sCG8), (sF16, sT0, sCG16)):
            A(f's_lshl_b32 {s(f)}, {s(t)}, {CSH}')
            A(f's_lshl_b32 s26, {s(c)}, 2')
            A(f's_add_u32 {s(f)}, {s(f)}, s26')
            A(f's_add_u32 {s(f)}, {s(f)}, {CB}')
        A(f'v_add_u32 {v(VB64)}, 0x10000, {v(VL16)}')
        A(f'v_add_u32 {v(VB128)}, 0x20000, {v(VL16)}')
        A(f'v_and_b32 {v(VSTL)}, 0x300, {v(VL16)}')
        A(f'v_and_b32 v3, 15, {v(VLANE)}')
        A(f'v_lshl_add_u32 {v(VSTL)}, v3, 3, {v(VSTL)}')
        A(f'v_mov_b32 {v(VONE)}, 1')
        A(f'v_lshrrev_b32 {v(VP2)}, 3, {v(VLANE)}')
        A(f'v_and_b32 v3, 0x1c, {v(VL4)}')
        A(f'v_lshl_add_u32 {v(VP2)}, {v(VP2)}, {CSH}, v3')
        A('v_mov_b32 v12, 0')
        if self.prof:
            A('v_writelane_b32 v12, s62, 60')
        A.wait(vm=self.x0m[0])
        self.Lp = A.newlabel('pair')
        Lfinal = A.newlabel('final')
        self.stage_qkv()
        self.stage_wo()
        self.stage_w1()
        self.stage_w2()
        A.label('.Lst_w3')
        self.stage_w3()
        A.label('.Lst_w4')
        self.stage_w4(Lfinal)
        self.dump2()
        self.mark(3)
        if 'dbgt' in OPT:
            A('s_memrealtime s[60:61]')
            A('s_waitcnt lgkmcnt(0)')
            A('s_mov_b32 s94, s60')
        A(f's_mov_b32 {s(sPAIR)}, 1')
        A(f's_mov_b32 {s(sEV)}, 10')
        A(f's_mov_b32 {s(sHH)}, {HH - H + 2048 * KB}')
        A(f's_mov_b32 {s(sFG)}, {s(sFAST)}')
        A(f's_mov_b32 {s(sZ)}, {ZSTRIDE}')
        A(f's_mov_b32 {s(sC)}, {CSTRIDE}')
        A(f's_add_u32 {s(sF8)}, {s(sF8)}, {CSTRIDE}')
        A(f's_add_u32 {s(sF16)}, {s(sF16)}, {CSTRIDE}')
        A(f's_branch {self.Lp}')
        A.label(Lfinal)
        buf = 64
        A(f's_mov_b64 {s(SRD2, 2)}, {s(PA + 18, 2)}')
        A(f'v_and_b32 v13, 15, {v(VLANE)}')
        A(f'v_lshlrev_b32 v13, 10, v13')
        A(f'v_bfe_u32 v3, {v(VLANE)}, 4, 1')
        A(f'v_lshl_add_u32 v13, v3, 5, v13')
        A(f'v_lshrrev_b32 v3, 5, {v(VLANE)}')
        A(f'v_lshl_add_u32 v13, v3, 4, v13')
        A(f's_lshl_b32 s28, {s(sT)}, 14')
        A(f's_lshl_b32 s29, {s(sCG8)}, 7')
        A(f's_add_u32 s28, s28, s29')
        self.pack(buf, RES, 8)
        for q in range(2):
            b = buf + 4 * q
            A(f'v_permlane16_swap_b32 {v(b)}, {v(b + 2)}')
            A(f'v_permlane16_swap_b32 {v(b + 1)}, {v(b + 3)}')
        for q in range(2):
            self.stsfx = ' sc1' if 'osc1' in OPT else ' nt' if 'ont' in OPT else ''
            self.st(v(buf + 4 * q, 4), 28, 64 * q, voff=13, srd=SRD2)
        if 'dbgt' in OPT:
            A('s_not_b32 s62, s62')
            A('v_mov_b32 v12, s62')
            A('s_mov_b64 exec, 1')
            A(f'buffer_atomic_umax v12, {v(VL4)}, {s(SRDD, 4)}, 0 offen offset:32')
            A('s_mov_b64 exec, -1')
        self.dbgt(9)
        for i_, r_ in enumerate((92, 93, 94)):
            if 'dbgt' in OPT:
                A(f'v_mov_b32 v12, {s(r_)}')
                A('s_mov_b64 exec, 1')
                A(f'buffer_atomic_umax v12, {v(VL4)}, {s(SRDD, 4)}, 0 offen offset:{40 + 4 * i_}')
                A('s_mov_b64 exec, -1')
        if self.prof:
            A('s_memrealtime s[60:61]')
            A('s_waitcnt lgkmcnt(0)')
            A('v_writelane_b32 v12, s60, 62')
        self.dump2()
        self.mark(4, False)
        if any(o.startswith('mk') for o in OPT):
            Ls = A.newlabel('spin')
            A('s_memrealtime s[56:57]')
            A('s_waitcnt lgkmcnt(0)')
            A('s_sub_u32 s54, s54, s62')
            A.label(Ls)
            A('s_memrealtime s[58:59]')
            A('s_waitcnt lgkmcnt(0)')
            A('s_sub_u32 s58, s58, s56')
            A('s_cmp_lt_u32 s58, s54')
            A(f's_cbranch_scc1 {Ls}')
        A.label(self.exit)
        A('s_endpgm')
        A.label('code_end')
        if 'ct' in OPT:
            A.raw('.fill 2048, 4, 0xbf810000')
        self.kernels.append((name, A.maxv + 1, (A.maxv + 4) // 4 * 4, A.maxs + 1))

    def build(self, hdr):
        self.main()
        out = [hdr]
        out.append(f'; @launch grid=(256,1,1) block=(512,1,1) lds={160 * KB}')
        out.append('.amdgcn_target "amdgcn-amd-amdhsa--gfx950"')
        out.append('.text')
        out.append(self.A.text())
        out.append('.section .rodata,"a"')
        for n, nv, accum, ns in self.kernels:
            assert nv <= 256
            out.append('.p2align 6')
            out.append(f'.amdhsa_kernel {n}')
            out.append(f'  .amdhsa_next_free_vgpr {nv}')
            out.append(f'  .amdhsa_next_free_sgpr {max(ns, 16)}')
            out.append(f'  .amdhsa_accum_offset {accum}')
            out.append('  .amdhsa_group_segment_fixed_size 0')
            out.append('  .amdhsa_kernarg_size 96')
            out.append('  .amdhsa_user_sgpr_count 2')
            out.append('  .amdhsa_user_sgpr_kernarg_segment_ptr 1')
            out.append('  .amdhsa_system_sgpr_workgroup_id_x 1')
            out.append('  .amdhsa_float_denorm_mode_32 3')
            out.append('.end_amdhsa_kernel')
        return '\n'.join(out) + '\n'


if __name__ == '__main__':
    OPT.add('d2early')
    g = Gen3()
    g.prof = 'prof' in OPT
    txt = g.build(header())
    out = sys.argv[1]
    if out == '-':
        out = f'cdna_kernels/{NAME}.s'
    open(out, 'w').write(txt)
    json.dump(LAYOUT, open('layout.json', 'w'))
    for k in g.kernels:
        print(k)
    print('nops inserted', g.A.nops, 'ws used', WS_USED, 'stamps', g.nstamp)
```

```python
import sys, json
import gen as G1
from gen import Gen, KB, NAME, f32, LOG2E, OOB, SRD, SW, SRD2, VL16, VLANE, header
from asmlib import v, a, s

OPT = set(sys.argv[2:])

_off = 0
def _alloc(n):
    global _off
    r = _off
    _off += (n + 4095) // 4096 * 4096
    return r
WQKV = _alloc(1536 * KB); WO = _alloc(512 * KB); W1 = _alloc(512 * KB); W2 = _alloc(512 * KB)
W3 = _alloc(1792 * KB); W4 = _alloc(1792 * KB)
CSQ = _alloc(16 * KB); CS1 = _alloc(8 * KB); CS3 = _alloc(16 * KB); DUMMY = _alloc(4 * KB)
ZR = _alloc(288 * KB)
ZSTRIDE = 68 * KB
KV = ZR
Z = KV + 64 * KB
PC = ZR + 136 * KB
XW = ZR + 146 * KB
CSH = 10
CB = ZR + 160 * KB
C_X, C_O, C_XA, C_H, C_X1, C_G, C_KV, C_HH = [CB + 128 * i for i in range(8)]
CSTRIDE = 64
X0 = _alloc(2048 * KB); ST0 = _alloc(128 * KB); OB = _alloc(2048 * KB); G = _alloc(7168 * KB)
HH = _alloc(4096 * KB)
CS3G = _alloc(128 * KB)
XA = X1 = X0
STA = ST1 = ST0
H = OB
PSTRIDE = 0
DBG = _alloc(16 * 512 * 128 * 2)
WS_USED = _off
LAYOUT = {k: val for k, val in globals().items() if k.isupper() and isinstance(val, int)}
for k_, v_ in LAYOUT.items():
    setattr(G1, k_, v_)

sT, sCG8, sT0, sCG16, sP, sPAIR, sZ, sTO = 16, 17, 18, 19, 20, 21, 22, 23
sTILE, sSTP, sC, sFAST, sFH = 24, 25, 44, 45, 46
sFG = 49
sHH, sRH = 52, 53
sF8, sF16 = 47, 48
VB64, VB128, VSTL, VL4, VONE, VP2 = 4, 5, 6, 7, 8, 9
VMR = 10
RES = 16
FREE = 32
PERM = 156 * KB
L_CSQ, L_CS1, L_CS3 = PERM, PERM + 384, PERM + 640
L_CF, L_CR, L_CB, L_MODE, L_GO = PERM + 2048, PERM + 2064, PERM + 2080, PERM + 2096, PERM + 2100
L_PS = PERM + 2112
L_CS = PERM + 2128
L_INIT = PERM + 2104
L_KD = PERM + 2176
L_ST = PERM + 2148
PA = 64
SRDD = 88
PST = 138 * KB
PHL = 154 * KB
sEV = 50
VPERM = 15
VOWN = 14
GR = 4 * KB
def map_wo(j): return (35 + j) * GR if j < 4 else (j - 4) * GR
def map_w1(j): return (12 + j) * GR
def map_w2(j): return (28 + j) * GR if j < 11 else (j - 11) * GR
def map_w3(j): return ((j + 3) % 16) * 7 * KB
def map_w4(j):
    if j >= 39: j -= 39
    return (28 + j) * GR if j < 11 else (22 + j - 11) * GR if j < 17 else (j - 17) * GR
def map_kv(j): return j * 4 * KB
def map_q(j): return 64 * KB + j * 2 * KB
def xq(mt, j): return 128 + (j >> 2) * 32 + mt * 16 + (j & 3) * 4


class Rec:
    def __init__(self):
        self.l = []

    def __call__(self, t):
        self.l.append(t)


class Gen3(Gen):
    persist = False
    first_wait = False
    XGO = int([o[3:] for o in OPT if o.startswith('xgo')][0]) if any(o.startswith('xgo') for o in OPT) else 2
    NPRE = int([o[4:] for o in OPT if o.startswith('npre')][0]) if any(o.startswith('npre') for o in OPT) else 3
    XPRE = int([o[4:] for o in OPT if o.startswith('xpre')][0]) if any(o.startswith('xpre') for o in OPT) else 4
    DQ = int([o[2:] for o in OPT if o.startswith('dq')][0]) if any(o.startswith('dq') for o in OPT) else 6
    QD = int([o[2:] for o in OPT if o.startswith('qd')][0]) if any(o.startswith('qd') for o in OPT) else 1
    NPOLL = int([o[2:] for o in OPT if o.startswith('np')][0]) if any(o.startswith('np') for o in OPT) else 1
    PGAP = int([o[2:] for o in OPT if o.startswith('pg')][0]) if any(o.startswith('pg') for o in OPT) else 2
    SP = int([o[2:] for o in OPT if o.startswith('sp')][0]) if any(o.startswith('sp') for o in OPT) else 5
    LPU = int([o[3:] for o in OPT if o.startswith('lpu')][0]) if any(o.startswith('lpu') for o in OPT) else 9
    E11 = int([o[1:] for o in OPT if o.startswith('e') and o[1:].isdigit()][0]) if any(o.startswith('e') and o[1:].isdigit() for o in OPT) else 48
    DS = int([o[2:] for o in OPT if o.startswith('ds')][0]) if any(o.startswith('ds') for o in OPT) else 16
    SG = int([o[2:] for o in OPT if o.startswith('sg')][0]) if any(o.startswith('sg') for o in OPT) else 11
    D4 = int([o[2:] for o in OPT if o.startswith('dw')][0]) if any(o.startswith('dw') for o in OPT) else 10
    DB = int([o[2:] for o in OPT if o.startswith('db')][0]) if any(o.startswith('db') for o in OPT) else 6

    def rec(self, fn):
        keep = self.A
        self.A = Rec()
        fn()
        l = self.A.l
        self.A = keep
        return l

    def ldx(self, dst, soff, ioff=0, voff=VL16, w=4, sc=None):
        o = f' offset:{ioff}' if ioff else ''
        wn = {1: 'dword', 2: 'dwordx2', 4: 'dwordx4'}[w]
        if sc is None:
            sc = '' if 'ldplain' in OPT else ' nt' if 'ldnt' in OPT else ' sc0' if 'ldsc0' in OPT else ' sc1'
        self.A(f'buffer_load_{wn} {dst}, {v(voff)}, {s(SRD, 4)}, {s(soff)} offen{o}{sc}')
        return self.A.vmark()

    dmant = False

    def dma(self, soff, ioff=0, voff=VL16, srd=SRD):
        o = f' offset:{ioff}' if ioff else ''
        nt = ' sc1' if (srd == SRD and 'dmaplain' not in OPT) else ''
        self.A(f'buffer_load_dwordx4 {v(voff)}, {s(srd, 4)}, {s(soff)} offen{o}{nt} lds')
        return self.A.vmark()

    def stores(self, lst, fast=sFAST):
        A = self.A
        Ls, Ld = A.newlabel('sts'), A.newlabel('std')

        def emit(sc):
            for src, soff, ioff, voff, w, ex in lst:
                o = f' offset:{ioff}' if ioff else ''
                wn = {1: 'dword', 2: 'dwordx2', 4: 'dwordx4'}[w]
                if ex:
                    A(f's_mov_b64 exec, {ex}')
                A(f'buffer_store_{wn} {src}, {v(voff)}, {s(SRD, 4)}, {s(soff)} offen{o}{sc}')
                if ex:
                    A('s_mov_b64 exec, -1')
        A(f's_cmp_eq_u32 {s(fast)}, 0')
        A(f's_cbranch_scc1 {Ls}')
        vm0 = A.vm
        emit(' nt' if 'stnt' in OPT else ' sc0' if 'stsc0' in OPT else ' sc1' if ('datasc1' in OPT and lst[0][4] != 1) else '')
        A(f's_branch {Ld}')
        A.label(Ls)
        A.vm = vm0
        emit(' sc1')
        A.label(Ld)

    def pstamp(self):
        if not self.prof:
            return
        A = self.A
        i = self.nstamp
        self.nstamp += 1
        A('s_memtime s[60:61]')
        A('s_waitcnt lgkmcnt(0)')
        A.lg_done = A.lg
        A(f'v_writelane_b32 v12, s60, {i}')

    def dbgt(self, slot, inv=False):
        if 'dbgt' not in OPT:
            return
        A = self.A
        assert A.lg == A.lg_done
        A('s_memrealtime s[60:61]')
        A('s_waitcnt lgkmcnt(0)')
        if inv:
            A('s_not_b32 s60, s60')
        A('v_mov_b32 v12, s60')
        A('s_mov_b64 exec, 1')
        A(f'buffer_atomic_umax v12, {v(VL4)}, {s(SRDD, 4)}, 0 offen offset:{slot * 4}')
        A.vm -= 1
        A('s_mov_b64 exec, -1')

    def mark(self, k, pair0=True):
        if f'mk{k}' not in OPT:
            return
        A = self.A
        L = A.newlabel('mk')
        if pair0:
            A(f's_cmp_lg_u32 {s(sPAIR)}, 0')
            A(f's_cbranch_scc1 {L}')
        A('s_memrealtime s[54:55]')
        A('s_waitcnt lgkmcnt(0)')
        A.label(L)

    def poll(self, sbase, voff, n, target=1, mode='auto', ioff=0, srd=SRD, mask=None, during=None):
        A = self.A
        L, LS, LC, D = A.newlabel('poll'), A.newlabel('polls'), A.newlabel('pollc'), A.newlabel('polld')
        o = f' offset:{ioff}' if ioff else ''
        A(f's_mov_b64 exec, {(1 << n) - 1:#x}' if n < 32 else 's_mov_b32 exec_hi, 0')
        if during and 'nodur' in OPT:
            A('s_mov_b64 exec, -1')
            during()
            A(f's_mov_b64 exec, {(1 << n) - 1:#x}')
        elif during:
            A(f'buffer_load_dword v0, {v(voff)}, {s(SRD, 4)}, {s(sbase)} offen{o} sc1')
            A('s_mov_b64 exec, -1')
            during()
            A(f's_mov_b64 exec, {(1 << n) - 1:#x}')
            A('s_waitcnt vmcnt(0)')
            A(f'v_cmp_le_u32 vcc, {target}, v0')
            A('s_cmp_eq_u64 vcc, exec')
            A(f's_cbranch_scc1 {D}')
        NP = self.NPOLL
        if mode == 'auto' and NP > 1 and not self.prof:
            LF = A.newlabel('pollf')
            regs = [12, 0]
            A(f's_cmp_eq_u32 {s(sFAST)}, 0')
            A(f's_cbranch_scc1 {L}')
            vm0 = A.vm
            for r in regs[:-1]:
                A(f'buffer_load_dword {v(r)}, {v(voff)}, {s(SRD, 4)}, {s(sbase)} offen{o} sc1')
                for _ in range(self.PGAP):
                    A('s_nop 15')
            A.label(LF)
            for i, r in enumerate(regs):
                A(f'buffer_load_dword {v(regs[i - 1])}, {v(voff)}, {s(SRD, 4)}, {s(sbase)} offen{o} sc1')
                A(f's_waitcnt vmcnt({len(regs) - 1})')
                A(f'v_cmp_le_u32 vcc, {target}, {v(r)}')
                A('s_cmp_eq_u64 vcc, exec')
                A(f's_cbranch_scc1 {D}')
            A(f's_sub_u32 {s(sTO)}, {s(sTO)}, 1')
            A(f's_cbranch_scc0 {LF}')
            A(f's_branch {self.exit}')
            A.vm = vm0
            mode = 'atomic'
        A.label(L)
        if mode == 'auto':
            A(f's_cmp_eq_u32 {s(sFAST)}, 0')
            A(f's_cbranch_scc1 {LS}')
            A(f'buffer_load_dword v3, {v(voff)}, {s(SRD, 4)}, {s(sbase)} offen{o} sc1')
            A(f's_branch {LC}')
            A.label(LS)
        if mode == 'load':
            A(f'buffer_load_dword v3, {v(voff)}, {s(srd, 4)}, {s(sbase)} offen{o} sc1')
        else:
            A('v_mov_b32 v3, 0')
            A(f'buffer_atomic_add v3, {v(voff)}, {s(SRD, 4)}, {s(sbase)} offen{o} sc0')
        A.label(LC)
        A('s_waitcnt vmcnt(0)')
        A.vm_done = A.vm
        if mask:
            A(f'v_and_b32 v22, {mask}, v3')
            A(f'v_cmp_le_u32 vcc, {target}, v22')
        else:
            A(f'v_cmp_le_u32 vcc, {target}, v3')
        A('s_cmp_eq_u64 vcc, exec')
        A(f's_cbranch_scc1 {D}')
        A(f's_sub_u32 {s(sTO)}, {s(sTO)}, 1')
        A(f's_cbranch_scc1 {self.exit}')
        if mode == 'load':
            A('s_sleep 8')
        A(f's_branch {L}')
        A.label(D)
        A('s_mov_b64 exec, -1')

    def sig(self, base, k, absv=False):
        A = self.A
        if absv:
            A(f'v_mov_b32 v3, {k}')
        else:
            A(f's_add_u32 s51, {s(sEV)}, {k}')
            A('v_mov_b32 v3, s51')
        A(f'ds_write_b32 {v(VOWN)}, v3 offset:{base - L_CF}')

    def lwait(self, base, k, tmp, sleep=0, single=False, absv=False, own=False):
        A = self.A
        L, D = A.newlabel('lw'), A.newlabel('lwd')
        A(f's_mov_b32 s51, {k}' if absv else f's_add_u32 s51, {s(sEV)}, {k}')
        A.label(L)
        if single:
            A(f'ds_read_b32 {v(tmp)}, {v(VOWN if own else VPERM)} offset:{base - L_CF}')
            A.wait_all(vm=False)
        else:
            A(f'ds_read_b128 {v(tmp, 4)}, {v(VPERM)} offset:{base - L_CF}')
            A.wait_all(vm=False)
            A(f'v_min_u32 {v(tmp)}, {v(tmp)}, {v(tmp + 1)}')
            A(f'v_min3_u32 {v(tmp)}, {v(tmp)}, {v(tmp + 2)}, {v(tmp + 3)}')
        A(f'v_cmp_le_u32 vcc, s51, {v(tmp)}')
        A(f's_cbranch_vccnz {D}')
        A(f's_sub_u32 {s(sTO)}, {s(sTO)}, 1')
        A(f's_cbranch_scc1 {self.exit}')
        if sleep:
            A(f's_sleep {sleep}')
        A(f's_branch {L}')
        A.label(D)

    def lpeek(self, base, tmp):
        self.A(f'ds_read_b128 {v(tmp, 4)}, {v(VPERM)} offset:{base - L_CF}')
        return self.A.lmark()

    def ltest(self, mark, base, k, tmp, absv=False):
        A = self.A
        D = A.newlabel('lt')
        A(f's_mov_b32 s51, {k}' if absv else f's_add_u32 s51, {s(sEV)}, {k}')
        A.wait(lg=mark)
        A(f'v_min_u32 {v(tmp)}, {v(tmp)}, {v(tmp + 1)}')
        A(f'v_min3_u32 {v(tmp)}, {v(tmp)}, {v(tmp + 2)}, {v(tmp + 3)}')
        A(f'v_cmp_le_u32 vcc, s51, {v(tmp)}')
        A(f's_cbranch_vccnz {D}')
        lg, ld = A.lg, A.lg_done
        self.lwait(base, k, tmp, absv=absv)
        A.lg, A.lg_done = lg, ld
        A.label(D)

    def acheck(self, specs):
        marks = {}

        def pr(j):
            for n, (jj, base, k, tmp, absv, after) in enumerate(specs):
                if j == jj:
                    self.ltest(marks[n], base, k, tmp, absv)
                    if after:
                        after()
            for n, (jj, base, k, tmp, absv, after) in enumerate(specs):
                if j == jj - 1:
                    marks[n] = self.lpeek(base, tmp)
        return pr

    def flag(self, sbase, ioff, two=False, fast=sFAST, pre=None):
        self.pstamp()
        if pre:
            pre()
        self.A.wait_all(lg=False)
        self.stores([(v(VONE), sbase, ioff, VP2, 1, '0x101' if two else '1')], fast)
        self.pstamp()

    def gemm(self, KS, MT, NT, acc, xreg, ldsoff, buf, NB, xwait, hook=None, preread=None, fill=(), czero=False, fill0=1, npre=0):
        A = self.A
        vbase = {0: VL16, 1: VB64, 2: VB128}
        fill = list(fill)

        def read(j, t):
            if t == 0 and preread:
                preread(j)
            off = ldsoff(j) + t * KB
            A(f'ds_read_b128 {v(buf + ((j % NB) * NT + t) * 4, 4)}, {v(vbase[off >> 16])} offset:{off & 0xffff}')
            return A.lmark()
        marks = {}
        pre = NB
        while pre * NT > 14:
            pre -= 1
        if npre:
            pre = npre
            A.wait_all(vm=False)
        for j in range(pre):
            for t in range(NT):
                marks[(j, t)] = 0 if npre else read(j, t)
        fper = 1 if len(fill) < (KS - fill0) * (NT - 2) else 2
        nxt = [(j, t) for j in range(pre, KS) for t in range(NT)]
        for j in range(KS):
            if 'lstamp' in OPT and NT == 7 and j % 2 == 0:
                i_ = self.nstamp
                self.nstamp += 1
                A(f's_memtime {s(64 + j, 2)}')
                self.late = getattr(self, 'late', []) + [(64 + j, i_)]
                A.lg_done = max(0, A.lg_done)
            for t in range(NT):
                A.wait(vm=xwait(j) if t == 0 else None, lg=marks[(j, NT - 1 if (NB > 4 and (j, NT - 1) in marks) else min(NT - 1, t | 1) if 'w2' in OPT else t)])
                for mt in range(MT):
                    r = acc + (mt * NT + t) * 4
                    c = '0' if (czero and j == 0) else v(r, 4)
                    A(f'v_mfma_f32_16x16x32_bf16 {v(r, 4)}, {v(buf + ((j % NB) * NT + t) * 4, 4)}, {xreg(mt, j)}, {c}')
                    if mt == 0 and (MT == 2 or (t < NT - 1 if 'oldm1' in OPT else (t in (1, 3) or not nxt))):
                        n0 = len(A.lines)
                        if hook and MT == 2:
                            hook(j, t)
                        room = (2 if MT == 2 else 1) - (len(A.lines) - n0)
                        for _ in range(min(room, fper)):
                            if fill and j >= fill0:
                                A(fill.pop(0))
                if MT == 1 and 'oldm1' not in OPT:
                    for _ in range(2 if t in (0, 2) else 0):
                        if nxt and nxt[0][0] - NB < j:
                            j2, t2 = nxt.pop(0)
                            marks[(j2, t2)] = read(j2, t2)
                elif nxt:
                    j2, t2 = nxt[0]
                    if (j2 - NB, t2) <= (j, t):
                        marks[(j2, t2)] = read(j2, t2)
                        nxt.pop(0)
                if hook and MT == 1:
                    hook(j, t)
        assert not nxt and not fill, (len(fill))
        if 'lstamp' in OPT and NT == 7:
            A('s_waitcnt lgkmcnt(0)')
            for r_, i_ in self.late:
                A(f'v_writelane_b32 v12, {s(r_)}, {i_}')

    def wpre(self, n, NT, buf, ldsoff, j0=0):
        A = self.A
        vbase = {0: VL16, 1: VB64, 2: VB128}
        for j in range(j0, n):
            for t in range(NT):
                off = ldsoff(j) + t * KB
                A(f'ds_read_b128 {v(buf + (j * NT + t) * 4, 4)}, {v(vbase[off >> 16])} offset:{off & 0xffff}')

    def cs_read(self, NT, cs, loc):
        A = self.A
        A(f'v_and_b32 v3, 0x30, {v(VLANE)}')
        A(f'v_add_u32 v3, {loc}, v3')
        for t in range(NT):
            A(f'ds_read_b128 {v(cs + 4 * t, 4)}, v3 offset:{t * 64}')

    def ln_fix(self, acc, n, cs, mean):
        for i in range(0, n, 2):
            self.A(f'v_pk_fma_f32 {v(acc + i, 2)}, {v(cs + i, 2)}, {v(mean, 2)}, {v(acc + i, 2)} op_sel_hi:[1,0,1] neg_lo:[0,1,0] neg_hi:[0,1,0]')

    def ld_stats(self, dst, soff, ioff=0):
        self.ldx(v(dst, 2), soff, ioff, voff=VSTL, w=2)
        return self.ldx(v(dst + 2, 2), soff, ioff + 128, voff=VSTL, w=2)

    def stats_calc(self, acc, n, tmp):
        A = self.A
        S, Q = tmp, tmp + 2
        A(f'v_pk_add_f32 {v(S, 2)}, {v(acc, 2)}, {v(acc + 2, 2)}')
        A(f'v_pk_mul_f32 {v(Q, 2)}, {v(acc, 2)}, {v(acc, 2)}')
        for i in range(2, n, 2):
            if i >= 4:
                A(f'v_pk_add_f32 {v(S, 2)}, {v(S, 2)}, {v(acc + i, 2)}')
            A(f'v_pk_fma_f32 {v(Q, 2)}, {v(acc + i, 2)}, {v(acc + i, 2)}, {v(Q, 2)}')
        A(f'v_add_f32 {v(S)}, {v(S)}, {v(S + 1)}')
        A(f'v_add_f32 {v(S + 1)}, {v(Q)}, {v(Q + 1)}')
        Q = S + 1
        A(f'v_permlane32_swap_b32 {v(S)}, {v(Q)}')
        A(f'v_add_f32 {v(S)}, {v(S)}, {v(Q)}')
        A(f'v_mov_b32 {v(Q)}, {v(S)}')
        A(f'v_permlane16_swap_b32 {v(S)}, {v(Q)}')
        A(f'v_add_f32 {v(S)}, {v(S)}, {v(Q)}')
        A(f'v_mov_b32 {v(Q)}, {v(S)}')
        A(f'v_permlane32_swap_b32 {v(S)}, {v(Q)}')

    def store_tile(self, acc, tmp, DST, STD, nextpair=False, fast=sFAST):
        A = self.A
        self.pack(tmp, acc, 8)
        add = PSTRIDE if nextpair else 0
        A(f's_add_u32 s26, {s(sTILE)}, {DST + add}')
        A(f's_add_u32 s27, {s(sSTP)}, {STD + add}')
        self.stores([(v(tmp, 4), 26, 0, VL16, 4, None), (v(tmp + 4, 4), 26, KB, VL16, 4, None)], fast)
        self.stats_calc(acc, 16, tmp + 8)
        self.stores([(v(tmp + 8, 2), 27, 0, VSTL, 2, '0xffff')], fast)

    def big_pre(self, XIN, STIN):
        A = self.A
        A(f's_lshl_b32 s26, {s(sT0)}, 14')
        A(f's_add_u32 s26, s26, {s(sP)}')
        A(f's_add_u32 s26, s26, {XIN}')
        A(f's_add_u32 s27, s26, {16 * KB}')
        A(f's_lshl_b32 s28, {s(sT0)}, 10')
        A(f's_add_u32 s28, s28, {s(sP)}')
        A(f's_add_u32 s28, s28, {STIN}')
        A(f's_lshl_b32 s29, {s(sT0)}, {CSH}')
        A(f's_add_u32 s29, s29, {s(sC)}')

    def big_main(self, NT, acc, buf, XR, ST, fill, lmap, late_j, late_id, xsig, fsig):
        A = self.A
        D, RING = self.DB, 8
        sX, sX2 = 26, 27
        xm = {}

        def xload(j, mt):
            if 'noxl' in OPT and j >= D:
                xm[j] = A.vmark()
                return
            xm[j] = self.ldx(v(XR + ((j % RING) * 2 + mt) * 4, 4), sX2 if mt else sX, (j & 3) * KB)
            if (j & 3) == 3 and j < 15:
                r = sX2 if mt else sX
                A(f's_add_u32 {s(r)}, {s(r)}, {4 * KB}')
        for j in range(D):
            xload(j, 0)
            xload(j, 1)
            if j == 1:
                self.ld_stats(ST, 28)
                self.ld_stats(ST + 4, 28, KB)
        self.pstamp()

        def hook(j, t):
            if j == 0 and t == 0:
                self.sig(L_PS, 2)
            if j + D < 16:
                if t == 1:
                    xload(j + D, 0)
                if t == 4:
                    xload(j + D, 1)
                    if j + D == 15 and xsig is not None:
                        self.sig(L_CF, xsig)

        specs = [(late_j, L_CR, late_id, 252, False, None)]
        preread = self.acheck(specs)
        self.gemm(16, 2, NT, acc, lambda mt, j: v(XR + ((j % RING) * 2 + mt) * 4, 4), lmap,
                  buf, 2, lambda j: xm[j], hook, preread, fill=fill, czero=True, fill0=2, npre=2)
        if fsig is not None:
            self.sig(L_CF, fsig)
        self.pstamp()

    def small_main(self, KS, acc, buf, XR, RING, D, src, lmap, fill=(), czero=False, extra=None, hook2=None, preread=None,
                   xsig=None, fsig=None, stagger=0, NB=4):
        A = self.A
        xm = {}

        def xload(j):
            so, io, vo = src(j)
            xm[j] = self.ldx(v(XR + (j % RING) * 4, 4), so, io, voff=vo)
            if (j & 3) == 3 and j < KS - 1:
                A(f's_add_u32 {s(so)}, {s(so)}, {4 * KB}')
        if stagger and 'stag' in OPT:
            Ls = A.newlabel('stg')
            A(f's_cmp_eq_u32 {s(SW)}, 0')
            A(f's_cbranch_scc1 {Ls}')
            self.lwait(L_ST - 4, stagger, 44, single=True, own=True)
            A.label(Ls)
        for j in range(D):
            xload(j)
            if j == 1 and extra:
                extra()
            if j == self.SG and stagger and 'stag' in OPT:
                self.sig(L_ST, stagger)
        if D == KS and xsig is not None:
            self.sig(L_CF, xsig)
        self.pstamp()

        def hook(j, t):
            if t == 1 and j + D < KS:
                xload(j + D)
                if j + D == KS - 1 and xsig is not None:
                    self.sig(L_CF, xsig)
            if hook2:
                hook2(j, t)
        self.gemm(KS, 1, 4, acc, lambda mt, j: v(XR + 4 * (j % RING), 4), lmap, buf, NB,
                  lambda j: xm[j], hook, preread, fill=fill, czero=czero, fill0=2, npre=NB)
        if fsig is not None:
            self.sig(L_CF, fsig)
        self.pstamp()

    def stage_qkv(self):
        A = self.A
        ST, CC, acc, buf = 32, 40, 64, 96
        SCR, RSZ = 96 * KB, 336

        def f():
            for mt in range(2):
                self.stats_consume(ST + 4 * mt, 3)
                self.rstd(CC + 1 + 2 * mt, ST + 4 * mt + 1)
                self.A(f'v_mul_f32 {v(CC + 2 * mt)}, {f32(LOG2E)}, {v(CC + 1 + 2 * mt)}')
            self.A(f'v_permlane32_swap_b32 {v(CC)}, {v(CC + 2)}')
        Lepi = A.newlabel('qepi')
        self.qkv_first(f, acc, buf, ST, SCR, RSZ)
        A(f's_branch {Lepi}')
        A.label(self.Lp)
        A.label('.Lst_q')
        self.nstamp = 0
        if self.prof:
            A('s_memrealtime s[60:61]')
            A('s_waitcnt lgkmcnt(0)')
            A('v_writelane_b32 v12, s60, 63')
        self.pstamp()
        self.big_pre(X0, ST0)
        self.qkv_addr(SCR, RSZ)
        self.lwait(L_CR, 1, 60)
        A(f's_add_u32 s29, s29, {C_X}')
        self.poll(29, VP2, 16, during=lambda: self.wpre(2, 4, buf, map_kv))
        self.pstamp()
        D = self.DQ
        xm = {}

        def xload(j, mt):
            xm[j] = self.ldx(v(xq(mt, j), 4), 26 + mt, (j & 3) * KB)
            if (j & 3) == 3 and j < 15:
                A(f's_add_u32 {s(26 + mt)}, {s(26 + mt)}, {4 * KB}')
        for j in range(D):
            xload(j, 0)
            xload(j, 1)
            if j == 1:
                self.ld_stats(ST, 28)
                self.ld_stats(ST + 4, 28, KB)
        self.pstamp()

        def hook(j, t):
            if j + D < 16 and t in (0, 2):
                xload(j + D, t >> 1)
            self.kv_cs(j, t, buf)
        self.gemm(16, 2, 4, acc, lambda mt, j: v(xq(mt, j), 4), map_kv, buf, 2, lambda j: xm[j], hook, None,
                  fill=self.rec(f), czero=True, fill0=2, npre=2)
        self.sig(L_CF, 3)
        self.pstamp()
        A.label(Lepi)
        A('s_waitcnt lgkmcnt(1)')
        A.lg_done = max(A.lg_done, A.lg - 1)
        A('s_nop 3')
        self.qkv_epi(ST, CC, acc, buf, SCR, RSZ)

    def kv_cs(self, j, t, buf):
        if j == 15:
            self.A(f'ds_read_b128 {v(buf + 4 * t, 4)}, v13 offset:{t * 64}')

    def qkv_first(self, f, acc, buf, ST, SCR, RSZ):
        A = self.A
        PB = [128, 160, 192, 224]
        self.nstamp = 0
        if self.prof:
            A('s_memrealtime s[60:61]')
            A('s_waitcnt lgkmcnt(0)')
            A('v_writelane_b32 v12, s60, 63')
        self.pstamp()
        WA, RA = 64, 68
        A(f's_mul_i32 s34, {s(SW)}, {32 * RSZ}')
        A(f's_add_u32 s34, s34, {SCR}')
        A(f'v_lshrrev_b32 v3, 4, {v(VLANE)}')
        A(f'v_and_b32 v76, 15, {v(VLANE)}')
        A(f'v_xor_b32 v77, v76, v3')
        A(f'v_lshlrev_b32 v77, 4, v77')
        A(f'v_lshl_add_u32 v77, v3, 8, v77')
        A(f'v_add_u32 v77, s34, v77')
        for n in range(4):
            A(f'v_xor_b32 {v(WA + n)}, {n * 64}, v77')
        A(f'v_lshrrev_b32 v77, 1, v3')
        A(f'v_xor_b32 v77, v77, v76')
        A(f'v_lshlrev_b32 v77, 4, v77')
        A(f'v_lshl_add_u32 v77, v76, 8, v77')
        A(f'v_and_b32 v3, 1, v3')
        A(f'v_lshl_add_u32 v77, v3, 3, v77')
        A(f'v_add_u32 v77, s34, v77')
        for m in range(8):
            A(f'v_xor_b32 {v(RA + m)}, {m * 32}, v77')
        for i in range(4):
            A(f'v_mov_b32 {v(104 + i)}, 0x3f803f80')

        def stats(p):
            b = PB[p >> 1] + 16 * (p & 1)
            S = 108 + 8 * (p & 1)
            for i in range(4):
                z = p < 2 and i == 0
                A(f'v_mfma_f32_16x16x32_bf16 {v(S, 4)}, v[104:107], {v(b + 4 * i, 4)}, {"0" if z else v(S, 4)}')
                A(f'v_mfma_f32_16x16x32_bf16 {v(S + 4, 4)}, {v(b + 4 * i, 4)}, {v(b + 4 * i, 4)}, {"0" if z else v(S + 4, 4)}')

        def arrive():
            A(f's_cmp_eq_u32 s58, 3')
            A('s_cselect_b32 s31, 0, 0x1000')
            A('s_mov_b64 exec, 1')
            A(f'buffer_atomic_add {v(VONE)}, {v(VL4)}, {s(SRDD, 4)}, s31 offen')
            A('s_mov_b64 exec, -1')
        if self.XPRE == 4:
            arrive()
        if 'plate' not in OPT:
            L2 = A.newlabel('np1')
            A(f's_cmp_lg_u32 {s(SW)}, 2')
            A(f's_cbranch_scc1 {L2}')
            vm0 = A.vm
            A(f's_mov_b32 s100, {100 * KB + 2 * 32 * 336}')
            A(f's_mov_b32 s101, s2')
            self.piece_decode(101)
            A.vm = vm0
            A.label(L2)
        for p in range(8):
            b = PB[p >> 1] + 16 * (p & 1)
            A.wait(vm=self.x0m[p], lg=A.lmark())
            for n in range(4):
                A(f'ds_write_b128 {v(WA + n)}, {v(b + 4 * n, 4)} offset:{n * 1024}')
            for m in range(8):
                A(f'ds_read_b64 {v(b + 2 * m, 2)}, {v(RA + m)}')
            if p:
                stats(p - 1)
            if (p & 1) and (p >> 1) + self.XPRE < 4:
                self.x0load((p >> 1) + self.XPRE)
                if (p >> 1) + self.XPRE == 3:
                    arrive()
        A.wait_all(vm=False)
        stats(7)
        A(f'v_and_b32 v3, 3, {v(VLANE)}')
        for i in range(1, 4):
            A(f'v_cmp_eq_u32 {s(26 + 2 * i, 2)}, {i}, v3')
        A(f'v_bfe_u32 v3, {v(VLANE)}, 2, 2')
        A(f'v_lshrrev_b32 v20, 4, {v(VLANE)}')
        A(f'v_cmp_eq_u32 vcc, v3, v20')
        for mt in range(2):
            Q = 112 + 8 * mt
            for i in range(1, 4):
                A(f'v_cndmask_b32 {v(Q)}, {v(Q)}, {v(Q + i)}, {s(26 + 2 * i, 2)}')
            A(f'v_cndmask_b32 {v(ST + 4 * mt)}, 0, {v(Q - 4)}, vcc')
            A(f'v_cndmask_b32 {v(ST + 4 * mt + 1)}, 0, {v(Q)}, vcc')
            A(f'v_mov_b32 {v(ST + 4 * mt + 2)}, 0')
            A(f'v_mov_b32 {v(ST + 4 * mt + 3)}, 0')
        f()
        self.pstamp()
        L2 = A.newlabel('np2')
        A(f's_cmp_lg_u32 {s(SW)}, 2')
        A(f's_cbranch_scc1 {L2}')
        vmd = A.vm_done
        if 'plate' in OPT:
            A(f's_mov_b32 s100, {96 * KB + 2 * 32 * 336}')
            A(f's_mov_b32 s101, s2')
            self.piece_decode(101)
        A('s_waitcnt vmcnt(0)')
        self.piece_finish()
        A.vm_done = vmd
        A.label(L2)
        Ln = A.newlabel('nochk')
        A(f's_cmp_lg_u32 {s(SW)}, 0')
        A(f's_cbranch_scc1 {Ln}')
        A('s_mov_b32 s31, 0')
        vmd = A.vm_done
        self.poll(31, VL4, 1, target=32, mode='load', srd=SRDD)
        A.vm_done = vmd
        A(f'ds_write_b32 {v(VPERM)}, {v(VONE)} offset:{L_INIT - L_CF}')
        A('s_getreg_b32 s30, hwreg(HW_REG_XCC_ID)')
        A('s_and_b32 s30, s30, 15')
        A('s_mul_i32 s31, s30, s30')
        A('s_lshl_b32 s31, s31, 16')
        A('s_lshl_b32 s30, s30, 7')
        A('s_add_u32 s30, s30, s31')
        A('s_add_u32 s58, s30, 1')
        A('s_and_b32 s59, s2, 7')
        A('s_lshl_b32 s59, s59, 7')
        A(f's_add_u32 s59, s59, {XW}')
        A('v_mov_b32 v3, s58')
        A('s_mov_b64 exec, 1')
        A(f'buffer_atomic_add v3, {v(VL4)}, {s(SRD, 4)}, s59 offen')
        A('s_mov_b64 exec, -1')
        A.label(Ln)
        A(f's_mov_b64 {s(SRD2, 2)}, {s(PA, 2)}')
        A(f's_mov_b32 {s(SRD2 + 2)}, {2048 * 512 * 2}')
        A(f'v_and_b32 v3, 15, {v(VLANE)}')
        A(f'v_lshlrev_b32 v62, 10, v3')
        A(f'v_lshrrev_b32 v3, 4, {v(VLANE)}')
        A(f'v_lshl_add_u32 v62, v3, 3, v62')
        A(f's_lshl_b32 s28, {s(sT)}, 14')
        A(f's_lshl_b32 s29, {s(sCG8)}, 7')
        A(f's_add_u32 s28, s28, s29')
        self.qkv_addr(SCR, RSZ)
        self.lwait(L_CR, 1, 20, sleep=1)
        if 'eq' in OPT:
            A('s_setprio 2')
        self.mark(1)
        self.pstamp()
        for t in range(4):
            A(f'buffer_load_dwordx2 {v(RES + 8 + 2 * t, 2)}, v62, {s(SRD2, 4)}, s28 offen offset:{32 * t}')
        A.vm_done = A.vm
        self.gemm(16, 2, 4, acc, lambda mt, j: v(xq(mt, j), 4), map_kv, buf, 2, lambda j: None,
                  lambda j, t: self.kv_cs(j, t, buf), self.acheck([(15, L_CS, 1, 20, True, None)]), czero=True)
        L2 = A.newlabel('nc2')
        A(f's_cmp_lg_u32 {s(SW)}, 2')
        A(f's_cbranch_scc1 {L2}')
        lg, ld = A.lg, A.lg_done
        self.lwait(L_INIT, 1, 20, single=True)
        A.lg, A.lg_done = lg, ld
        A('s_waitcnt vmcnt(0)')
        self.count(99)
        A.vm -= 1
        A.label(L2)
        self.sig(L_CF, 3)
        self.pstamp()

    def qkv_addr(self, SCR, RSZ):
        A = self.A
        A(f'v_and_b32 v13, 0x30, {v(VLANE)}')
        A(f'v_add_u32 v13, {L_CSQ}, v13')
        A(f'v_lshrrev_b32 v60, 4, {v(VLANE)}')
        A(f'v_and_b32 v61, 15, {v(VLANE)}')
        A(f's_mul_i32 s30, {s(SW)}, {32 * RSZ}')
        A(f's_add_u32 s30, s30, {SCR}')
        A(f'v_mul_u32_u24 v45, {RSZ}, v61')
        A(f'v_add_u32 v45, s30, v45')
        A(f'v_lshl_add_u32 v46, v60, 3, v45')
        A(f'v_lshl_add_u32 v44, v60, 4, v45')
        A(f'v_and_b32 v3, 1, v60')
        A(f'v_lshl_add_u32 v45, v3, 6, v45')
        A(f'v_lshrrev_b32 v3, 1, v60')
        A(f'v_mul_u32_u24 v3, {16 * RSZ}, v3')
        A(f'v_add_u32 v45, v45, v3')
        A(f's_lshl_b32 s42, {s(sCG16)}, 12')
        A(f's_add_u32 s42, s42, {s(sZ)}')
        A(f's_add_u32 s42, s42, {KV}')
        A(f's_lshl_b32 s43, {s(sCG16)}, 8')
        A(f's_add_u32 s43, s43, {s(sZ)}')
        A(f's_add_u32 s43, s43, {Z}')
        A(f'v_lshlrev_b32 v50, 5, v60')
        for i in range(4):
            A(f'v_mov_b32 {v(56 + i)}, {f32(1e-6)}')

    def qkv_epi(self, ST, CC, acc, buf, SCR, RSZ):
        A = self.A
        EP, EM = 96, 112

        def softmax(P0, P1, M, off):
            cc = CC
            R = lambda i: (P0 + i) if i < 8 else (P1 + i - 8)
            for op, d in (('max', M), ('min', M + 1)):
                A(f'v_{op}3_f32 {v(d)}, {v(R(0))}, {v(R(1))}, {v(R(2))}')
                for i in range(3, 15, 2):
                    A(f'v_{op}3_f32 {v(d)}, {v(d)}, {v(R(i))}, {v(R(i + 1))}')
                A(f'v_{op}_f32 {v(d)}, {v(d)}, {v(R(15))}')
            A(f'v_pk_mul_f32 {v(M, 2)}, {v(M, 2)}, {v(cc, 2)} op_sel_hi:[1,0]')
            for i in range(0, 16, 2):
                A(f'v_pk_fma_f32 {v(EP + i, 2)}, {v(R(i), 2)}, {v(cc, 2)}, {v(M, 2)} op_sel_hi:[1,0,0] neg_lo:[0,0,1] neg_hi:[0,0,1]')
                A(f'v_pk_fma_f32 {v(EM + i, 2)}, {v(R(i), 2)}, {v(cc, 2)}, {v(M, 2)} op_sel:[0,0,1] op_sel_hi:[1,0,1] neg_lo:[0,1,0] neg_hi:[0,1,0]')
            for i in range(32):
                A(f'v_exp_f32 {v(EP + i)}, {v(EP + i)}')
            for E, d in ((EP, M + 2), (EM, M + 4)):
                A(f'v_pk_add_f32 {v(d, 2)}, {v(E, 2)}, {v(E + 2, 2)}')
                for i in range(4, 16, 2):
                    A(f'v_pk_add_f32 {v(d, 2)}, {v(d, 2)}, {v(E + i, 2)}')
            A(f'v_add_f32 {v(M + 2)}, {v(M + 2)}, {v(M + 3)}')
            A(f'v_add_f32 {v(M + 3)}, {v(M + 4)}, {v(M + 5)}')
            A(f'v_rcp_f32 {v(M + 2)}, {v(M + 2)}')
            A(f'v_rcp_f32 {v(M + 3)}, {v(M + 3)}')
            for t in range(4):
                for i in (4 * t, 4 * t + 2):
                    A(f'v_pk_mul_f32 {v(EP + i, 2)}, {v(EP + i, 2)}, {v(M + 2, 2)} op_sel_hi:[1,0]')
                    A(f'v_pk_mul_f32 {v(EM + i, 2)}, {v(EM + i, 2)}, {v(M + 2, 2)} op_sel:[0,1] op_sel_hi:[1,1]')
                self.pack(R(4 * t), EP + 4 * t, 2)
                self.pack(R(4 * t) + 2, EM + 4 * t, 2)
                A(f'ds_write_b128 v45, {v(R(4 * t), 4)} offset:{off + 16 * t}')
        for mt in range(2):
            self.ln_fix(acc + 16 * mt, 16, buf, ST + 4 * mt)
        for i in range(8):
            A(f'v_permlane32_swap_b32 {v(acc + i)}, {v(acc + 16 + i)}')
        for mt in range(2):
            for hh in range(2):
                r = acc + 16 * mt + 8 + 4 * hh
                for i in (0, 2):
                    A(f'v_pk_mul_f32 {v(r + i, 2)}, {v(r + i, 2)}, {v(CC + 2 * mt, 2)} op_sel:[0,1] op_sel_hi:[1,1]')
                d = acc + 24 + 4 * mt + 2 * hh if mt == 0 else r
                d = r
                self.pack(d, r, 2)
                A(f'ds_write_b64 v46, {v(d, 2)} offset:{mt * 16 * RSZ + 256 + 32 * hh}')
        softmax(acc, acc + 16, acc + 8, 128)
        self.pstamp()
        self.sig(L_CB, 1)
        self.lwait(L_CR, 2, 60)
        self.lwait(L_CS, 2, 60, absv=True)
        for t in range(2):
            A(f'ds_read_b128 {v(88 + 4 * t, 4)}, v13 offset:{(4 + t) * 64}')
        self.gemm(16, 2, 2, 72, lambda mt, j: v(xq(mt, j), 4), map_q, buf, 4, lambda j: None, czero=True)
        self.pstamp()
        for mt in range(2):
            self.ln_fix(72 + 8 * mt, 8, 88, ST + 4 * mt)
        for i in range(8):
            A(f'v_permlane32_swap_b32 {v(72 + i)}, {v(80 + i)}')
        softmax(72, 80, 64, 0)
        PQ = 160
        for mt in range(2):
            for hh in range(2):
                A(f'ds_read_b128 {v(PQ + 8 * mt + 4 * hh, 4)}, v44 offset:{mt * 16 * RSZ + 64 * hh}')
        A(f's_lshl_b32 s30, {s(sCG16)}, {CSH + 2}')
        A(f's_add_u32 s30, s30, {s(sC)}')
        A(f's_add_u32 s30, s30, {C_KV}')
        A(f'v_lshlrev_b32 v47, {CSH}, {v(VLANE)}')
        A(f's_lshl_b32 s26, {s(sT0)}, 14')
        A(f's_lshl_b32 s27, {s(sCG16)}, 10')
        A(f's_add_u32 s26, s26, s27')
        A(f's_add_u32 s26, s26, {s(sP)}')
        A(f's_add_u32 s26, s26, {OB}')
        A(f's_add_u32 s27, s26, {16 * KB}')
        if 'd2early' in OPT:
            self.sig(L_CF, 4)
        self.pstamp()
        Lw, Lg, Lx = A.newlabel('kvw'), A.newlabel('kvg'), A.newlabel('kvx')
        A(f's_cmp_lg_u32 {s(SW)}, 0')
        A(f's_cbranch_scc1 {Lw}')
        self.lwait(L_KD, 1, 252)
        self.poll(30, 47, 4, target=16, mode='atomic')
        A.label(Lg)
        self.sig(L_GO, 1)
        A(f's_branch {Lx}')
        A.label(Lw)
        self.lwait(L_GO, 1, 252, sleep=0, single=True)
        A.label(Lx)
        self.pstamp()
        Lm = A.newlabel('mode')
        A(f's_cmp_eq_u32 {s(sPAIR)}, 0')
        A(f's_cbranch_scc0 {Lm}')
        A('s_waitcnt vmcnt(0)')
        self.unpack(RES, RES + 8, 8)
        self.lwait(L_MODE, 1, 252, single=True)
        A(f'v_readfirstlane_b32 {s(sFAST)}, v252')
        A(f's_sub_u32 {s(sFAST)}, {s(sFAST)}, 1')
        A.label(Lm)
        KF, ZF = 64, 80
        for i in range(16):
            self.ldx(v(KF + i), 42, 256 * i, voff=VL4, w=1, sc=' sc1')
        for hh in range(2):
            for u in range(2):
                self.ldx(v(ZF + 8 * hh + 4 * u, 4), 43, 128 * hh + 16 * u, voff=50, sc=' sc1')
        A.wait(vm=A.vmark() - 4)
        self.pack(96, KF, 8)
        A('s_waitcnt vmcnt(0) lgkmcnt(0)')
        A.vm_done, A.lg_done = A.vm, A.lg
        self.pack(104, ZF, 8)
        ND = 112
        for mt in range(2):
            for hh in range(2):
                d = ND + 16 * mt + 8 * hh
                A(f'v_mfma_f32_16x16x32_bf16 {v(d + 4, 4)}, {v(104 + 4 * hh, 4)}, {v(PQ + 8 * mt + 4 * hh, 4)}, v[56:59]')
                A(f'v_mfma_f32_16x16x32_bf16 {v(d, 4)}, {v(96 + 4 * hh, 4)}, {v(PQ + 8 * mt + 4 * hh, 4)}, 0')
        for q in range(4):
            A(f'v_rcp_f32 {v(ND + 8 * q + 4)}, {v(ND + 8 * q + 4)}')
        for q in range(4):
            d = ND + 8 * q
            for i in (0, 2):
                A(f'v_pk_mul_f32 {v(d + i, 2)}, {v(d + i, 2)}, {v(d + 4, 2)} op_sel_hi:[1,0]')
            self.pack(64 + 2 * q, d, 2)
        self.stores([(v(64, 4), 26, 0, VL16, 4, None), (v(68, 4), 27, 0, VL16, 4, None)], sFG)
        self.flag(sF16, C_O - CB, two=True)

    def small_pre(self, XIN, mul=16):
        A = self.A
        A(f's_mul_i32 s26, {s(sT)}, {mul * KB}')
        A(f's_add_u32 s26, s26, {s(sP)}')
        A(f's_add_u32 s26, s26, {XIN}')
        A(f's_lshl_b32 s29, {s(sT)}, {CSH}')
        A(f's_add_u32 s29, s29, {s(sC)}')
        A(f's_add_u32 s29, s29, {CB}')

    def stage_wo(self):
        A = self.A
        XR, buf = 64, 128
        self.small_pre(OB)
        self.lwait(L_CR, 3, 44)
        self.wpre(self.SP - 1, 4, buf, map_wo)
        self.poll(29, VL4, 16, ioff=C_O - CB, during=lambda: self.wpre(8, 4, buf, map_wo, self.SP - 1))
        self.mark(2)
        self.pstamp()
        self.small_main(16, RES, buf, XR, 16, self.DS, lambda j: (26, (j & 3) * KB, VL16), map_wo, stagger=1, NB=8)
        self.store_tile(RES, XR, XA, STA, fast=sFG)
        self.flag(sF8, C_XA - CB, pre=lambda: (self.lwait(L_CR, 4, 44), self.wpre(3, 4, buf, map_w1)))

    def stage_w1(self):
        A = self.A
        ST, K, acc, XR, buf, CS = 32, 40, 48, 64, 128, 240
        self.small_pre(XA)
        A(f's_lshl_b32 s27, {s(sT)}, 10')
        A(f's_add_u32 s27, s27, {STA}')
        self.lwait(L_CS, 4, 44, absv=True)
        self.cs_read(4, CS, L_CS1)
        self.wpre(self.SP - 1, 4, buf, map_w1, 3)
        self.poll(29, VL4, 8, ioff=C_XA - CB, during=lambda: self.wpre(7, 4, buf, map_w1, self.SP - 1))
        self.pstamp()

        def f():
            A = self.A
            self.stats_consume(ST, 3)
            self.rstd(VMR + 1, ST + 1)
            A(f'v_mul_f32 {v(VMR)}, {v(ST)}, {v(VMR + 1)}')
            A(f'v_mul_f32 v38, {v(VMR + 1)}, {v(VMR + 1)}')
            A(f'v_mul_f32 v38, v38, {v(ST + 1)}')
            self.rstd(38, 38)
            A(f'v_mul_f32 v38, v38, {v(VMR + 1)}')
            self.gelu_consts(K, 38)
        self.small_main(16, acc, buf, XR, 16, self.DS, lambda j: (26, (j & 3) * KB, VL16), map_w1, fill=self.rec(f), czero=True,
                        extra=lambda: self.ld_stats(ST, 27), xsig=5, NB=7)
        self.sig(L_PS, 1)
        self.ln_fix(acc, 16, CS, ST)
        self.gelu(acc, 16, K, XR, XR + 16)
        A(f's_add_u32 s26, {s(sTILE)}, {H}')
        Lh, Lh2 = A.newlabel('hh'), A.newlabel('hh2')
        self.stores([(v(XR + 16, 4), 26, 0, VL16, 4, None), (v(XR + 20, 4), 26, KB, VL16, 4, None)])
        A(f's_add_u32 s27, s26, {s(sHH)}')
        A(f's_cmp_eq_u32 {s(sFH)}, 0')
        A(f's_cselect_b32 s27, {WS_USED}, s27')
        m = A.vmark()
        A(f'buffer_store_dwordx4 {v(XR + 16, 4)}, {v(VL16)}, {s(SRD, 4)}, s27 offen sc1')
        A(f'buffer_store_dwordx4 {v(XR + 20, 4)}, {v(VL16)}, {s(SRD, 4)}, s27 offen offset:1024 sc1')
        self.pstamp()
        self.wpre(3, 4, buf, map_w2)
        A.wait(vm=m)
        self.stores([(v(VONE), sF8, C_H - CB, VP2, 1, '1')])
        self.pstamp()
        A(f's_cmp_eq_u32 {s(sFH)}, 0')
        A(f's_cbranch_scc1 {Lh2}')
        A('s_waitcnt vmcnt(1)')
        A('s_mov_b64 exec, 1')
        A(f'buffer_store_dword {v(VONE)}, {v(VL4)}, {s(SRD, 4)}, {s(sF8)} offen offset:{C_HH - CB} sc1')
        A('s_mov_b64 exec, -1')
        A.label(Lh2)

    def stage_w2(self):
        A = self.A
        acc, XR, buf = 48, 64, 128
        self.wpre(self.SP - 1, 4, buf, map_w2, 3)
        A(f's_lshl_b32 s26, {s(sT)}, 4')
        A(f'v_and_b32 v13, 15, {v(VLANE)}')
        A(f'v_add_u32 v13, s26, v13')
        A(f'v_and_b32 v38, 0x300, {v(VL16)}')
        A(f'v_mov_b32 v39, {OOB}')
        A(f's_movk_i32 s27, 2048')
        A(f's_lshr_b32 s28, {s(sT)}, 4')
        for gi, d in enumerate((-1, 1, -2, 2)):
            A(f'v_add_u32 v36, {d}, v13')
            A(f'v_lshrrev_b32 v37, 8, v36')
            A(f'v_cmp_ne_u32 s[30:31], s28, v37')
            A(f'v_cmp_gt_u32 vcc, s27, v36')
            A(f'v_lshrrev_b32 v3, 4, v36')
            A(f'v_lshl_add_u32 v3, v3, 14, v38')
            A(f'v_and_b32 v36, 15, v36')
            A(f'v_lshl_add_u32 v3, v36, 4, v3')
            A(f'v_add_u32 v37, {s(sHH)}, v3')
            A(f'v_cndmask_b32 v3, v3, v37, s[30:31]')
            A(f'v_cndmask_b32 {v(FREE + gi)}, v39, v3, vcc')
        A(f's_mov_b32 s26, {H}')
        A(f's_and_b32 s30, {s(sT)}, 0x70')
        A(f's_or_b32 s31, {s(sT)}, 15')
        A(f'v_and_b32 v13, 2, {v(VLANE)}')
        A(f'v_add_u32 v13, -1, v13')
        A(f'v_bfe_u32 v38, {v(VLANE)}, 3, 1')
        A(f'v_mul_i32_i24 v13, v13, v38')
        A(f'v_add_u32 v13, {s(sT)}, v13')
        A(f'v_max_i32 v13, s30, v13')
        A(f'v_min_i32 v13, s31, v13')
        A(f'v_and_b32 v38, 0x1c, {v(VL4)}')
        A(f'v_lshl_add_u32 v13, v13, {CSH}, v38')
        A(f's_add_u32 s29, {s(sC)}, {C_H}')
        A(f'v_and_b32 v36, 1, {v(VLANE)}')
        A(f'v_bfe_u32 v37, {v(VLANE)}, 1, 1')
        A(f'v_lshlrev_b32 v36, 2, v36')
        A(f'v_lshl_add_u32 v36, v37, 4, v36')
        for i in range(0, 16, 2):
            A(f'v_pk_fma_f32 {v(acc + i, 2)}, {v(RES + i, 2)}, {v(VMR, 2)}, {v(VMR, 2)} op_sel:[0,1,0] op_sel_hi:[1,1,0] neg_lo:[0,0,1] neg_hi:[0,0,1]')
        self.poll(29, 13, 16, during=lambda: self.wpre(7, 4, buf, map_w2, self.SP - 1))
        pk5 = self.lpeek(L_CR, 44)
        Lr = A.newlabel('rh')
        A(f's_cmp_eq_u32 {s(sRH)}, 0')
        A(f's_cbranch_scc1 {Lr}')
        A(f's_add_u32 s29, {s(sRH)}, {s(sC)}')
        self.poll(29, 36, 4, mode='atomic')
        A.label(Lr)
        self.pstamp()
        self.small_main(16, acc, buf, XR, 16, self.DS, lambda j: (26, (j & 3) * KB, FREE + (j >> 2)), map_w2, xsig=6, fsig=7, NB=7,
                        preread=lambda j: self.ltest(pk5, L_CR, 5, 44) if j == 7 else None)
        self.store_tile(acc, XR, X1, ST1)
        for i in range(0, 16, 2):
            A(f'v_pk_add_f32 {v(RES + i, 2)}, {v(RES + i, 2)}, {v(acc + i, 2)}')
        self.flag(sF8, C_X1 - CB)

    def stage_w3(self):
        A = self.A
        NT = 7
        ST, K, acc, buf, XR, CS = 32, 40, 48, 104, 160, 224
        self.big_pre(X1, ST1)
        A(f's_add_u32 s29, s29, {C_X1}')
        A(f's_mul_i32 s30, {s(sT0)}, {56 * KB}')
        A(f's_add_u32 s30, s30, {s(sP)}')
        A(f's_add_u32 s30, s30, {G}')
        A(f's_lshl_b32 s32, {s(sCG16)}, 9')
        A(f's_add_u32 s32, s32, s30')
        A(f's_add_u32 s32, s32, {48 * KB}')
        A(f's_mul_i32 s31, {s(sCG16)}, {3 * KB}')
        A(f's_add_u32 s30, s30, s31')
        A(f's_add_u32 s31, s30, {56 * KB}')
        A(f'v_bfe_u32 v3, {v(VLANE)}, 4, 1')
        A(f'v_mul_u32_u24 v13, {56 * KB}, v3')
        A(f'v_lshrrev_b32 v3, 5, {v(VLANE)}')
        A(f'v_lshl_add_u32 v13, v3, 8, v13')
        A(f'v_and_b32 v3, 0xf0, {v(VL16)}')
        A(f'v_add_u32 v13, v13, v3')
        self.lwait(L_CR, 6, 252)
        self.cs_read(NT, CS, L_CS3)
        self.poll(29, VP2, 16, during=lambda: self.wpre(2, NT, buf, map_w3))
        self.pstamp()

        def f():
            for mt in range(2):
                self.stats_consume(ST + 4 * mt, 3)
                self.rstd(ST + 4 * mt + 2, ST + 4 * mt + 1)
                self.gelu_consts(K + 4 * mt, ST + 4 * mt + 2)
        self.big_main(NT, acc, buf, XR, ST, self.rec(f), map_w3, 13, 7, 8, 9)
        for mt in range(2):
            P = acc + 28 * mt
            self.ln_fix(P, 28, CS, ST + 4 * mt)
            out = 160 + 12 * mt
            self.gelu(P, 28, K + 4 * mt, buf, None)
            self.pack(out, buf, 12)
            self.pack(184 + 2 * mt, buf + 24, 2)
            lst = [(v(out + 4 * q, 4), 30 + mt, q * KB, VL16, 4, None) for q in range(3)]
            if mt == 1:
                A('v_permlane16_swap_b32 v184, v186')
                A('v_permlane16_swap_b32 v185, v187')
                lst.append((v(184, 4), 32, 0, 13, 4, None))
            self.stores(lst, sP if 'gsc1' in OPT else sFAST if ('gt' in OPT or 'gt2' in OPT) else sFG)
        self.flag(sF16, C_G - CB, two=True)

    def stage_w4(self, Lfinal):
        A = self.A
        XR, buf = 64, 144
        self.small_pre(G, 56)
        self.lwait(L_CR, 8, 252)
        self.wpre(2, 4, buf, map_w4)
        self.poll(29, VL4, 16, ioff=C_G - CB, during=lambda: self.wpre(6, 4, buf, map_w4, 2))
        self.pstamp()

        def hook2(j, t):
            if j == 16 and t == 3:
                self.sig(L_CF, 10)
            if j == self.E11 and t == 3:
                self.sig(L_CF, 11)

        preread = self.acheck([(11, L_CR, 9, 252, False, None), (39, L_CR, 10, 252, False, None)])
        self.small_main(56, RES, buf, XR, 20, self.D4, lambda j: (26, (j & 3) * KB, VL16), map_w4,
                        hook2=hook2, preread=preread, fsig=12, NB=6)
        A(f's_cmp_eq_u32 {s(sPAIR)}, 1')
        A(f's_cbranch_scc1 {Lfinal}')
        self.store_tile(RES, XR, X0, ST0, nextpair=True)
        self.flag(sF8, C_X - CB + CSTRIDE)

    def dump2(self):
        if not self.prof:
            return
        A = self.A
        A(f's_lshl_b32 s55, s2, 2')
        A(f's_add_u32 s55, s55, {s(SW)}')
        A(f's_lshl_b32 s55, s55, 1')
        A(f's_add_u32 s55, s55, {s(sPAIR)}')
        A(f's_lshl_b32 s55, s55, 8')
        A(f's_add_u32 s55, s55, {DBG + 512 * 128}')
        A(f'v_writelane_b32 v12, {s(sFAST)}, 61')
        A(f'buffer_store_dword v12, {v(VL4)}, {s(SRD, 4)}, s55 offen')

    def piece_decode(self, sp):
        A = self.A
        L3, L4, LJ = A.newlabel('pd3'), A.newlabel('pd4'), A.newlabel('pdj')
        A(f's_mov_b32 s98, 0')
        A(f's_cmp_ge_u32 {s(sp)}, 832')
        A(f's_cbranch_scc1 {L4}')
        A(f's_cmp_ge_u32 {s(sp)}, 384')
        A(f's_cbranch_scc1 {L3}')
        A(f's_lshr_b32 s28, {s(sp)}, 7')
        A(f's_and_b32 s29, {s(sp)}, 7')
        A(f's_bfe_u32 s30, {s(sp)}, 0x40003')
        A(f's_cmp_eq_u32 s28, 1')
        A(f's_cselect_b64 {s(SRD2, 2)}, {s(PA + 10, 2)}, {s(PA + 12, 2)}')
        A(f's_cmp_eq_u32 s28, 0')
        A(f's_cselect_b64 {s(SRD2, 2)}, {s(PA + 6, 2)}, {s(SRD2, 2)}')
        A(f's_mov_b32 {s(SRD2 + 2)}, {512 * KB}')
        A(f's_mov_b32 s93, 1024')
        A(f's_lshl_b32 s99, s28, 3')
        A(f's_add_u32 s99, s99, s29')
        A(f's_lshl_b32 s94, s99, 4')
        A(f's_add_u32 s94, s94, s30')
        A(f's_lshl_b32 s94, s94, 12')
        A(f's_add_u32 s94, s94, {WO}')
        for t in range(1, 4):
            A(f's_add_u32 {s(94 + t)}, s94, {t * KB}')
        A(f's_branch {LJ}')
        A.label(L3)
        A(f's_sub_u32 s28, {s(sp)}, 384')
        A(f's_and_b32 s30, s28, 15')
        A(f's_lshr_b32 s29, s28, 4')
        A(f's_mov_b64 {s(SRD2, 2)}, {s(PA + 14, 2)}')
        A(f's_mov_b32 {s(SRD2 + 2)}, {1792 * KB}')
        A(f's_mov_b32 s93, 3584')
        A(f's_add_u32 s99, s29, 24')
        A(f's_mul_i32 s31, s30, {7 * KB}')
        A(f's_add_u32 s31, s31, {W3}')
        for t in range(4):
            A(f's_lshl_b32 s28, s29, 2')
            A(f's_add_u32 s28, s28, {t}')
            A(f's_mul_i32 s32, s28, 43')
            A(f's_lshr_b32 s32, s32, 8')
            A(f's_mul_i32 s33, s32, 6')
            A(f's_sub_u32 s33, s28, s33')
            A(f's_sub_u32 s36, s28, 96')
            A(f's_cmp_ge_u32 s28, 96')
            A(f's_cselect_b32 s32, s36, s32')
            A(f's_cselect_b32 s33, 6, s33')
            A(f's_lshl_b32 s36, s32, 3')
            A(f's_add_u32 s36, s36, s33')
            A(f's_lshl_b32 s36, s36, 4')
            A(f's_add_u32 s36, s36, s30')
            A(f's_lshl_b32 s36, s36, 6')
            A(f's_add_u32 {s(72 + t)}, s36, {CS3G}')
            A(f's_mul_i32 s32, s32, 112')
            A(f's_add_u32 s32, s32, s33')
            A(f's_lshl_b32 s32, s32, 10')
            A(f's_add_u32 {s(94 + t)}, s32, s31')
        A(f's_branch {LJ}')
        A.label(L4)
        A(f's_sub_u32 s28, {s(sp)}, 832')
        A(f's_and_b32 s29, s28, 7')
        A(f's_lshr_b32 s30, s28, 3')
        A(f's_mov_b64 {s(SRD2, 2)}, {s(PA + 16, 2)}')
        A(f's_mov_b32 {s(SRD2 + 2)}, {1792 * KB}')
        A(f's_mov_b32 s93, 1024')
        A(f's_add_u32 s99, s29, 52')
        A(f's_cmp_ge_u32 s30, 48')
        A(f's_cselect_b32 s98, 1, 0')
        A(f's_mul_i32 s94, s29, 56')
        A(f's_add_u32 s94, s94, s30')
        A(f's_lshl_b32 s94, s94, 12')
        A(f's_add_u32 s94, s94, {W4}')
        for t in range(1, 4):
            A(f's_add_u32 {s(94 + t)}, s94, {t * KB}')
        A.label(LJ)
        A(f's_mul_i32 s92, s30, s93')
        A(f's_lshl_b32 s92, s92, 5')
        A(f's_lshl_b32 s29, s29, 7')
        A(f's_add_u32 s92, s92, s29')
        A(f's_lshl_b32 s99, s99, 7')
        A(f's_add_u32 s99, s99, {PC}')
        A(f'v_lshrrev_b32 v80, 3, {v(VLANE)}')
        A(f'v_mul_u32_u24 v80, s93, v80')
        A(f'v_lshrrev_b32 v81, 1, {v(VLANE)}')
        A(f'v_lshrrev_b32 v82, 4, {v(VLANE)}')
        A(f'v_xor_b32 v81, v81, v82')
        A(f'v_and_b32 v81, 3, v81')
        A(f'v_lshl_add_u32 v80, v81, 5, v80')
        A(f'v_and_b32 v81, 1, {v(VLANE)}')
        A(f'v_lshl_add_u32 v80, v81, 4, v80')
        A(f's_lshl_b32 s93, s93, 3')
        for i in range(4):
            A(f's_add_u32 m0, s100, {i * KB}')
            self.dma(92, 0, voff=80, srd=SRD2)
            if i < 3:
                A(f's_add_u32 s92, s92, s93')
        return A.vmark()

    def piece_finish(self):
        A = self.A
        A(f's_cmp_eq_u32 s98, 1')
        A(f's_cselect_b32 s28, 8, 4')
        A(f's_cselect_b32 s29, 4, 16')
        A(f'v_lshrrev_b32 v81, 4, {v(VLANE)}')
        A(f'v_mul_u32_u24 v81, s28, v81')
        A(f'v_bfe_u32 v82, {v(VLANE)}, 2, 2')
        A(f'v_add_u32 v81, v81, v82')
        A(f'v_and_b32 v82, 3, {v(VLANE)}')
        A(f'v_lshlrev_b32 v82, 3, v82')
        A(f'v_add_u32 v82, s100, v82')
        for u in range(2):
            if u:
                A(f'v_add_u32 v81, s29, v81')
            A(f'v_bfe_u32 v83, v81, 1, 2')
            A(f'v_lshl_add_u32 v83, v83, 5, v82')
            A(f'v_lshl_add_u32 v83, v81, 7, v83')
            for t in range(4):
                A(f'v_xor_b32 v84, {32 * t}, v83')
                A(f'ds_read_b64_tr_b16 {v(88 + 4 * t + 2 * u, 2)}, v84')
        A.wait_all(vm=False)
        for t in range(4):
            A(f'buffer_store_dwordx4 {v(88 + 4 * t, 4)}, {v(VL16)}, {s(SRD, 4)}, {s(94 + t)} offen sc1')

    def count(self, sreg):
        A = self.A
        A('s_mov_b64 exec, 1')
        A(f'buffer_atomic_add {v(VONE)}, {v(VL4)}, {s(SRD, 4)}, {s(sreg)} offen')
        A('s_mov_b64 exec, -1')

    def cs_add(self, accs, addr):
        A = self.A
        A(f'v_and_b32 v3, 15, {v(VLANE)}')
        for i in range(1, 4):
            A(f'v_cmp_eq_u32 {s(26 + 2 * i, 2)}, {i}, v3')
        for r, a_, off in accs:
            for i in range(1, 4):
                A(f'v_cndmask_b32 {v(r)}, {v(r)}, {v(r + i)}, {s(26 + 2 * i, 2)}')
        A('s_mov_b32 exec_lo, 0x000f000f')
        A('s_mov_b32 exec_hi, 0x000f000f')
        for r, a_, off in accs:
            A(f'ds_add_f32 {v(a_)}, {v(r)} offset:{off}')
        A('s_mov_b64 exec, -1')

    def loader(self):
        A = self.A
        sLW = 26
        ONES = 16
        A(f's_sub_u32 {s(sLW)}, {s(SW)}, 4')
        if 'lp' in OPT or 'lp0' in OPT:
            A('s_setprio 3')
        self.nstamp = 0
        if self.prof:
            A('v_mov_b32 v12, 0')
            A('s_memrealtime s[60:61]')
            A('s_waitcnt lgkmcnt(0)')
            A('v_writelane_b32 v12, s60, 63')
        self.pstamp()
        if 'p67' in OPT:
            Lp7 = A.newlabel('p67')
            A(f's_lshr_b32 s28, {s(sCG16)}, 1')
            A('s_cmp_lg_u32 s28, 3')
            A(f's_cbranch_scc1 {Lp7}')
            A('s_setprio 3')
            A.label(Lp7)
        A(f's_mov_b64 {s(SRD2, 2)}, {s(PA + 4, 2)}')
        A(f's_mov_b32 {s(SRD2 + 2)}, {32 * 512}')
        A(f's_lshl_b32 s28, {s(sCG16)}, 10')
        A(f's_mov_b32 m0, {PHL}')
        self.dma(28, srd=SRD2)
        A(f's_mov_b64 {s(SRD2, 2)}, {s(PA + 2, 2)}')
        A(f's_mov_b32 {s(SRD2 + 2)}, {512 * 3072}')
        A(f'v_lshrrev_b32 v40, 2, {v(VLANE)}')
        A(f'v_mul_u32_u24 v40, 3072, v40')
        A(f'v_lshrrev_b32 v41, 4, {v(VLANE)}')
        A(f'v_xor_b32 v41, v41, {v(VLANE)}')
        A(f'v_and_b32 v41, 3, v41')
        A(f'v_lshl_add_u32 v40, v41, 4, v40')
        A(f's_lshl_b32 s59, {s(sCG16)}, 6')
        mw = {}
        for c in range(4):
            A(f's_add_u32 s28, {s(sT0)}, {c}')
            A(f's_and_b32 s28, s28, 3')
            A(f's_lshl_b32 s28, s28, 2')
            A(f's_add_u32 s28, s28, {s(sLW)}')
            A(f's_lshl_b32 {s(40 + c)}, s28, 12')
            A(f's_lshl_b32 {s(44 + c)}, s28, 11')
            A(f's_add_u32 {s(44 + c)}, {s(44 + c)}, {64 * KB}')

        def wdma(u):
            A(f's_mul_i32 s38, {s(40 + (u & 3))}, 24')
            A(f's_add_u32 s38, s38, s59')
            for hr in range(2):
                for p in ((1, 2) if u < 4 else (0,)):
                    A(f's_add_u32 m0, {s(40 + u)}, {max(p - 1, 0) * 2 * KB + hr * KB}')
                    A(f's_add_u32 s29, s38, {hr * 16 * 3072 + p * KB}')
                    self.dma(29, 0, voff=40, srd=SRD2)
            mw[u] = A.vmark()
        for u in range(4):
            wdma(u)
        if 'p67' in OPT:
            A('s_setprio 0')
        A.wait_all(vm=False)
        self.pstamp()
        for i in range(4):
            A(f'v_mov_b32 {v(ONES + i)}, 0x3f803f80')
        A(f'v_mov_b32 {v(VONE)}, 1')
        A(f'v_and_b32 v32, 15, {v(VLANE)}')
        A(f'v_lshrrev_b32 v33, 4, {v(VLANE)}')
        A(f'v_lshrrev_b32 v34, 2, v32')
        A(f'v_lshrrev_b32 v35, 1, v33')
        A(f'v_xor_b32 v35, v35, v34')
        A(f'v_lshlrev_b32 v35, 4, v35')
        A(f'v_lshl_add_u32 v35, v32, 6, v35')
        A(f'v_and_b32 v36, 1, v33')
        A(f'v_lshl_add_u32 v35, v36, 3, v35')
        A(f'v_xor_b32 v36, 32, v35')
        A(f'v_bfe_u32 v37, {v(VLANE)}, 1, 1')
        A(f'v_xor_b32 v37, v37, v33')
        A(f'v_lshlrev_b32 v37, 4, v37')
        A(f'v_lshrrev_b32 v38, 2, {v(VLANE)}')
        A(f'v_lshl_add_u32 v37, v38, 6, v37')
        A(f'v_and_b32 v38, 1, {v(VLANE)}')
        A(f'v_lshl_add_u32 v37, v38, 3, v37')
        A(f'v_xor_b32 v38, 32, v37')
        A(f'v_and_b32 v39, 1, v34')
        A(f'v_lshlrev_b32 v39, 10, v39')
        A(f'v_lshl_add_u32 v39, v33, 8, v39')
        A(f'v_lshrrev_b32 v34, 3, v32')
        A(f'v_lshl_add_u32 v39, v34, 7, v39')
        A(f'v_and_b32 v34, 3, v32')
        A(f'v_lshl_add_u32 v39, v34, 4, v39')
        A(f'v_lshlrev_b32 v46, 3, {v(VLANE)}')
        A(f'v_add_u32 v46, {PHL}, v46')
        A(f'v_and_b32 v30, 1, v33')
        A(f'v_lshlrev_b32 v30, 6, v30')
        A(f'v_lshrrev_b32 v34, 1, v33')
        A(f'v_lshl_add_u32 v30, v34, 5, v30')
        A(f'v_add_u32 v30, {L_CSQ}, v30')
        A(f'v_lshl_add_u32 v30, v32, 2, v30')
        A(f'v_lshlrev_b32 v31, 4, v33')
        A(f'v_add_u32 v31, {PERM}, v31')
        A(f'v_lshl_add_u32 v31, v32, 2, v31')
        F, C, CSA = 104, 104, 120

        def RB(u):
            return 160 + 16 * u if u < 4 else 224 + 8 * (u - 4)

        def reads(u):
            R = RB(u)
            for r in range(4 if u < 4 else 2):
                A(f'v_add_u32 {v(64 + r)}, {s(40 + u)}, {v(35 + r)}')
            A.wait(vm=mw[u])
            if u == 0:
                A(f'ds_read_b64_tr_b16 v[20:21], v46')
                A(f'ds_read_b64_tr_b16 v[22:23], v46 offset:512')
            for hh in range(2):
                for h2 in range(2):
                    A(f'ds_read_b64 {v(R + 4 * hh + 2 * h2, 2)}, {v(64 + hh)} offset:{h2 * KB}')
            if u < 4:
                for hh in range(2):
                    for h2 in range(2):
                        A(f'ds_read_b64_tr_b16 {v(R + 8 + 4 * hh + 2 * h2, 2)}, {v(66 + hh)} offset:{2 * KB + h2 * KB}')
            return A.lmark()
        rm = reads(0)
        for u in range(8):
            R = RB(u)
            A(f'v_add_u32 v68, {s(40 + u)}, v39')
            if u < 4:
                A(f'v_add_u32 v69, {s(40 + u)}, {v(VL16)}')
            A.wait(lg=rm)
            for hh in range(2):
                for h2 in range(2):
                    A(f'v_mfma_f32_16x16x16_bf16 {v(C + 8 * hh + 4 * h2, 4)}, {v(R + 4 * hh + 2 * h2, 2)}, {v(20 + 2 * hh, 2)}, 0')
            if u < 4:
                for hh in range(2):
                    A(f'ds_write_b128 v69, {v(R + 8 + 4 * hh, 4)} offset:{(2 + hh) * KB}')
            if u not in (3, 7):
                rm = reads(u + 1)
            for hh in range(2):
                self.pack(R + 4 * hh, C + 8 * hh, 4)
                A(f'ds_write_b128 v68, {v(R + 4 * hh, 4)} offset:{hh * 64}')
            if u in (3, 7):
                self.sig(L_CR, 1 if u == 3 else 2)
            if u == self.LPU:
                A('s_setprio 3')
            for t in range(4 if u < 4 else 2):
                a_ = CSA + 4 * t + (16 if u >= 4 else 0)
                A(f'v_mfma_f32_16x16x32_bf16 {v(a_, 4)}, {v(R + 4 * t, 4)}, {v(ONES, 4)}, {"0" if (u & 3) == 0 else v(a_, 4)}')
            if u == self.QD:
                for u2 in range(4, 8):
                    wdma(u2)
            if u == 3:
                self.pstamp()
                self.cs_add([(CSA + 4 * hh, 30, hh * 16) for hh in range(2)] + [(CSA + 8 + 4 * hh, 31, (2 + hh) * 64) for hh in range(2)], None)
                self.sig(L_CS, 1, absv=True)
                A(f's_lshl_b32 s100, {s(sLW)}, 12')
                A(f's_add_u32 s100, s100, {PST}')
                A(f's_lshl_b32 s49, s2, 2')
                A(f's_add_u32 s49, s49, {s(sLW)}')
                A(f's_add_u32 s49, s49, 256')
                m_p1 = self.piece_decode(49)
                rm = reads(4)
        self.cs_add([(CSA + 16 + 4 * hh, 30, 256 + hh * 16) for hh in range(2)], None)
        self.sig(L_CS, 2, absv=True)
        A.wait_all(vm=False)
        self.pstamp()
        A.wait(vm=m_p1)
        self.piece_finish()
        for t in range(4):
            A(f'v_mfma_f32_16x16x32_bf16 {v(144 + 4 * t, 4)}, {v(88 + 4 * t, 4)}, {v(ONES, 4)}, 0')
        A(f's_sub_u32 s28, s49, 384')
        A(f's_cmp_lt_u32 s28, 448')
        for t in range(4):
            A(f's_cselect_b32 {s(72 + t)}, {s(72 + t)}, {WS_USED}')
        A('s_mov_b32 exec_lo, 0x00010001')
        A('s_mov_b32 exec_hi, 0x00010001')
        for t in range(4):
            A(f'buffer_store_dwordx4 {v(144 + 4 * t, 4)}, {v(VLANE)}, {s(SRD, 4)}, {s(72 + t)} offen sc1')
        A('s_mov_b64 exec, -1')
        bases = {}
        for r, (nm, WP, scg, sz) in enumerate((('q', WQKV, sCG16, 96), ('o', WO, sCG8, 64), ('1', W1, sCG8, 64), ('2', W2, sCG8, 64),
                                               ('3', W3, sCG16, 112), ('4', W4, sCG8, 224))):
            A(f's_mul_i32 {s(52 + r)}, {s(scg)}, {sz * KB}')
            A(f's_add_u32 {s(52 + r)}, {s(52 + r)}, {WP}')
            bases[nm] = 52 + r
        self.lwait(L_INIT, 1, 24, sleep=1, single=True)
        self.pstamp()
        A('s_lshr_b32 s34, s2, 3')
        A('s_lshl_b32 s34, s34, 2')
        A(f's_add_u32 s34, s34, {s(sLW)}')
        A(f'v_lshlrev_b32 v21, 7, {v(VLANE)}')
        A(f's_lshl_b32 s37, {s(sLW)}, 10')
        for u in range(8):
            A(f's_mov_b32 {s(64 + u)}, {s(40 + u)}')
        A('v_mov_b32 v28, v39')
        SCR, RSZ = 96 * KB, 336
        A(f'v_bfe_u32 v3, {v(VLANE)}, 2, 2')
        A(f'v_lshl_add_u32 v3, v33, 3, v3')
        A(f'v_mul_u32_u24 v47, {RSZ}, v3')
        A(f'v_and_b32 v3, 3, {v(VLANE)}')
        A(f's_lshr_b32 s30, {s(sLW)}, 1')
        A(f's_and_b32 s31, {s(sLW)}, 1')
        A(f's_lshl_b32 s32, s30, 6')
        A(f's_lshl_b32 s33, s31, 3')
        A(f's_add_u32 s32, s32, s33')
        A(f's_add_u32 s32, s32, {SCR + 128}')
        A(f'v_lshl_add_u32 v4, v3, 4, v47')
        A(f'v_add_u32 v4, s32, v4')
        A(f's_lshl_b32 s32, s30, 5')
        A(f's_add_u32 s32, s32, {SCR + 256}')
        A(f'v_lshl_add_u32 v5, v3, 3, v47')
        A(f'v_add_u32 v5, s32, v5')
        A(f's_lshl_b32 s40, {s(sCG16)}, 12')
        A(f's_add_u32 s40, s40, s37')
        A(f's_add_u32 s40, s40, {KV}')
        A(f's_lshl_b32 s41, {s(sCG16)}, 8')
        A(f's_lshl_b32 s33, s30, 7')
        A(f's_add_u32 s41, s41, s33')
        A(f's_lshl_b32 s31, s31, 4')
        A(f's_add_u32 s41, s41, s31')
        A(f's_add_u32 s41, s41, {Z}')
        A(f's_lshl_b32 s48, {s(sCG16)}, {CSH + 2}')
        A(f's_add_u32 s48, s48, s37')
        A(f's_add_u32 s48, s48, {C_KV}')
        assert CSH == 10
        A(f'v_lshlrev_b32 v50, 5, v33')
        A(f'v_lshl_add_u32 v6, v32, 2, v50')
        A(f'v_mov_b32 v3, {OOB}')
        A(f'v_cmp_gt_u32 vcc, 4, v32')
        A(f'v_cndmask_b32 v6, v3, v6, vcc')
        A(f'v_cmp_eq_u32 s[42:43], 1, v32')
        A(f'v_cmp_eq_u32 s[44:45], 2, v32')
        A(f'v_cmp_eq_u32 s[46:47], 3, v32')

        def kvjob(TA):
            TB, KVA, ZA = TA + 16, TA + 32, TA + 36
            kp = 'kprof' in OPT
            if kp:
                self.nstamp = 0
                A('s_memrealtime s[60:61]')
                A('s_waitcnt lgkmcnt(0)')
                A('v_mov_b32 v12, 0')
                A('v_writelane_b32 v12, s60, 63')
                self.pstamp()
            self.lwait(L_CF, 3, 24, sleep=2)
            self.lwait(L_CB, 1, 24, sleep=0)
            A('s_setprio 3')
            if kp:
                self.pstamp()
            for ks in range(4):
                for u2 in range(2):
                    off = (32 * ks + 4 * u2) * RSZ
                    A(f'ds_read_b64_tr_b16 {v(TA + 4 * ks + 2 * u2, 2)}, v4 offset:{off}')
                    A(f'ds_read_b64_tr_b16 {v(TB + 4 * ks + 2 * u2, 2)}, v5 offset:{off}')
                if ks == 2:
                    A.wait(lg=A.lmark() - 8)
            base = A.lmark() - 16
            for ks in range(4):
                A.wait(lg=base + 4 * ks + 4)
                A(f'v_mfma_f32_16x16x32_bf16 {v(KVA, 4)}, {v(TA + 4 * ks, 4)}, {v(TB + 4 * ks, 4)}, {"0" if ks == 0 else v(KVA, 4)}')
                A(f'v_mfma_f32_16x16x32_bf16 {v(ZA, 4)}, {v(TA + 4 * ks, 4)}, {v(ONES, 4)}, {"0" if ks == 0 else v(ZA, 4)}')
            for r in range(4):
                o = f' offset:{256 * r}' if r else ''
                A(f'buffer_atomic_add_f32 {v(KVA + r)}, {v(VL4)}, {s(SRD, 4)}, s40 offen{o}')
            for i in range(1, 4):
                A(f'v_cndmask_b32 {v(ZA)}, {v(ZA)}, {v(ZA + i)}, {s(40 + 2 * i, 2)}')
            A(f'buffer_atomic_add_f32 {v(ZA)}, v6, {s(SRD, 4)}, s41 offen')
            if kp:
                self.pstamp()
            KT = int([o[2:] for o in OPT if o.startswith('kt')][0]) if any(o.startswith('kt') for o in OPT) else 0
            if KT:
                A(f's_mul_i32 s33, s34, {14 * KB}')
                A(f's_add_u32 s33, s33, {W3}')
                A(f's_cmp_eq_u32 {s(sPAIR)}, 0')
                A(f's_cselect_b32 s33, {WS_USED}, s33')
                A(f'buffer_load_dword v20, v21, {s(SRD, 4)}, s33 offen')
                if KT > 64:
                    A(f's_add_u32 s33, s33, 8192')
                    n2 = KT - 64
                    A(f's_mov_b64 exec, {(1 << n2) - 1:#x}' if n2 < 32 else f's_mov_b32 exec_hi, {(1 << (n2 - 32)) - 1:#x}')
                    A(f'buffer_load_dword v20, v21, {s(SRD, 4)}, s33 offen')
                    A('s_mov_b64 exec, -1')
            A(f's_waitcnt vmcnt({0 if not KT else 1 if KT <= 64 else 2})')
            A.vm_done = A.vm
            if kp:
                self.pstamp()
            self.count(48)
            self.sig(L_KD, 1)
            A('s_setprio 0')
            if kp:
                self.pstamp()
                A('s_waitcnt vmcnt(0)')
                self.pstamp()
                A(f's_lshl_b32 s33, s2, 2')
                A(f's_add_u32 s33, s33, {s(sLW)}')
                A(f's_lshl_b32 s33, s33, 8')
                A(f's_add_u32 s33, s33, {DBG + 1024 * KB}')
                A(f'buffer_store_dword v12, {v(VL4)}, {s(SRD, 4)}, s33 offen')
        L, L3 = A.newlabel('lloop'), A.newlabel('lb3')
        if 'lp0' in OPT:
            A('s_setprio 0')
        self.sig(L_CS, 3, absv=True)
        A('s_waitcnt vmcnt(0)')
        A.vm_done = A.vm
        self.count(99)
        Ln = A.newlabel('nomode')
        A(f's_cmp_lg_u32 {s(sLW)}, 0')
        A(f's_cbranch_scc1 {Ln}')
        A('s_getreg_b32 s30, hwreg(HW_REG_XCC_ID)')
        A('s_and_b32 s30, s30, 15')
        A('s_mul_i32 s31, s30, s30')
        A('s_lshl_b32 s31, s31, 16')
        A('s_lshl_b32 s30, s30, 7')
        A('s_add_u32 s30, s30, s31')
        A('s_add_u32 s58, s30, 1')
        A('s_and_b32 s59, s2, 7')
        A('s_lshl_b32 s59, s59, 7')
        A(f's_add_u32 s59, s59, {XW}')
        self.poll(59, VL4, 1, target=32, mode='load', mask=0x7f)
        A('v_readfirstlane_b32 s30, v3')
        A('s_lshl_b32 s31, s58, 5')
        A('s_cmp_eq_u32 s30, s31')
        A(f's_cselect_b32 s33, {1 if "slow" in OPT else 2}, 1')
        A('v_mov_b32 v3, s33')
        A(f'ds_write_b32 {v(VPERM)}, v3 offset:{L_MODE - L_CF}')
        A.wait_all(vm=False)
        A.label(Ln)
        kvjob(104)
        A(f's_branch {L3}')
        A.label(L)

        def run(nm, src0, lds0, n):
            for i in range(0, n, 4):
                if i + 4 <= n:
                    A(f's_add_u32 m0, s37, {lds0 + i * KB}')
                    A(f's_add_u32 s28, s37, {src0 + i * KB}')
                else:
                    A(f's_min_u32 s28, s37, {(n - 1 - i) * KB}')
                    A(f's_add_u32 m0, s28, {lds0 + i * KB}')
                    A(f's_add_u32 s28, s28, {src0 + i * KB}')
                A(f's_add_u32 s28, s28, {s(bases[nm])}')
                self.dma(28)

        def steps(nm, lmap, NT, j0, j1):
            j = j0
            while j < j1:
                e = j + 1
                while e < j1 and lmap(e) == lmap(e - 1) + NT * KB:
                    e += 1
                run(nm, j * NT * KB, lmap(j), (e - j) * NT)
                j = e

        def only(pair, fn):
            Lx = A.newlabel('only')
            A.wait_all(vm=False)
            A(f's_cmp_lg_u32 {s(sPAIR)}, {pair}')
            A(f's_cbranch_scc1 {Lx}')
            vmd = A.vm_done
            fn()
            A.wait_all(vm=False)
            A.vm_done = vmd
            A.label(Lx)

        def touch(base, size):
            share = size // 128
            A(f's_mul_i32 s33, s34, {share}')
            A(f's_add_u32 s33, s33, {base}')
            vm0 = A.vm
            for i in range((share + 8191) // 8192):
                A(f'buffer_load_dword v20, v21, {s(SRD, 4)}, s33 offen')
                A(f's_add_u32 s33, s33, 8192')
            A.vm = vm0

        PK_ = 28

        def pfl(base, size, trig):
            self.lwait(L_PS, trig, 24, sleep=2)
            share = size // 128
            lines = share // 128
            A(f's_mul_i32 s33, s34, {share}')
            A(f's_add_u32 s33, s33, {base}')
            A(f's_mov_b64 exec, {(1 << PK_) - 1:#x}')
            A(f's_mov_b32 s36, {(lines + PK_ - 1) // PK_}')
            Lp_ = A.newlabel('pf')
            A.label(Lp_)
            A(f'buffer_load_dword v20, v21, {s(SRD, 4)}, s33 offen')
            A(f's_add_u32 s33, s33, {PK_ * 128}')
            A('s_sub_u32 s36, s36, 1')
            A('s_cmp_lg_u32 s36, 0')
            A('s_waitcnt vmcnt(0)')
            A(f's_cbranch_scc1 {Lp_}')
            A('s_mov_b64 exec, -1')

        def need(idx0, scg, n, stride, target):
            A(f's_lshl_b32 s33, {s(scg)}, 7')
            A(f's_add_u32 s33, s33, {PC + idx0 * 128}')
            A(f'v_mul_u32_u24 v23, {stride}, v21')
            self.poll(33, 23, n, target=target, mode='load')

        def need3():
            A(f's_mul_i32 s33, {s(sCG16)}, 6')
            A(f's_lshr_b32 s33, s33, 2')
            A(f'v_add_u32 v23, s33, {v(VLANE)}')
            A(f's_lshr_b32 s33, {s(sCG16)}, 2')
            A(f's_add_u32 s33, s33, 24')
            A(f'v_writelane_b32 v23, s33, 2')
            A(f'v_lshlrev_b32 v23, 7, v23')
            A(f's_mov_b32 s33, {PC + 24 * 128}')
            self.poll(33, 23, 3, target=16, mode='load')
            A(f's_lshl_b32 s33, {s(sCG16)}, 13')
            A(f's_add_u32 s33, s33, s37')
            A(f's_add_u32 s33, s33, {CS3G}')
            A(f's_add_u32 s36, s33, 4096')
            A(f's_cmp_eq_u32 {s(sLW)}, 3')
            A(f's_cselect_b32 s36, {WS_USED}, s36')
            self.ldx(v(144, 4), 33, sc=' sc1')
            self.ldx(v(148, 4), 36, sc=' sc1')
            A(f's_lshl_b32 s33, {s(sLW)}, 6')
            A(f's_add_u32 s33, s33, {L_CS3}')
            A(f'v_and_b32 v9, 0x30, {v(VL16)}')
            A(f'v_add_u32 v9, s33, v9')
            A('s_waitcnt vmcnt(0)')
            for rot in (4, 8):
                for i in range(8):
                    A(f'v_add_f32_dpp {v(144 + i)}, {v(144 + i)}, {v(144 + i)} row_ror:{rot} row_mask:0xf bank_mask:0xf')
            for sw in (16, 32):
                for i in range(8):
                    A(f'v_mov_b32 {v(152 + i)}, {v(144 + i)}')
                for i in range(8):
                    A(f'v_permlane{sw}_swap_b32 {v(144 + i)}, {v(152 + i)}')
                for i in range(8):
                    A(f'v_add_f32 {v(144 + i)}, {v(144 + i)}, {v(152 + i)}')
            A('s_mov_b64 exec, 15')
            A('ds_write_b128 v9, v[144:147]')
            A('ds_write_b128 v9, v[148:151] offset:256')
            A('s_mov_b64 exec, -1')

        def cs_build(k, lmap, NT, loc, val, cs=(0, 1, 2, 3), first=True):
            self.lwait(L_CR, k, 24, sleep=1)
            st = NT * KB
            base = min(lmap(j) for j in range(16))
            assert sorted(lmap(j) for j in range(16)) == [base + j * st for j in range(16)]
            for c in cs:
                A(f's_mul_i32 s28, {s(sLW)}, {st}')
                A(f's_add_u32 s28, s28, {base + 4 * c * st}')
                A(f'v_add_u32 v9, s28, {v(VL16)}')
                for t in range(NT):
                    A(f'ds_read_b128 {v(92 + 4 * t, 4)}, v9 offset:{t * KB}')
                A.wait_all(vm=False)
                for t in range(NT):
                    A(f'v_mfma_f32_16x16x32_bf16 {v(CSA + 4 * t, 4)}, {v(92 + 4 * t, 4)}, {v(ONES, 4)}, {"0" if (first and c == cs[0]) else v(CSA + 4 * t, 4)}')
            if val:
                self.cs_add([(CSA + 4 * t, 31, loc - PERM + t * 64) for t in range(NT)], None)
                self.sig(L_CS, val, absv=True)

        def code_touch(lab):
            if 'ct' not in OPT:
                return
            Lpc = A.newlabel('pc')
            A('s_getpc_b64 s[30:31]')
            A.label(Lpc)
            A(f's_lshl_b32 s28, {s(sLW)}, 11')
            A(f's_add_u32 s28, s28, {lab}-{Lpc}')
            A('s_add_u32 s30, s30, s28')
            A('s_addc_u32 s31, s31, 0')
            A('s_mov_b64 exec, 0xffff')
            A('global_load_dword v20, v21, s[30:31]')
            A.vm -= 1
            A('s_mov_b64 exec, -1')

        def batch(k, parts, after=None):
            self.lwait(L_CF, k, 24, sleep=2)
            for p in parts:
                steps(*p)
            m = A.vmark()
            if after:
                after()
            A.wait(vm=m)
            self.sig(L_CR, k)
        A.vm_done = A.vm
        for k, us in ((1, range(4)), (2, range(4, 8))):
            self.lwait(L_CF, k, 24, sleep=2)
            for u in us:
                A(f'v_add_u32 v9, {s(64 + u)}, v28')
                for hh in range(2):
                    A(f'ds_write_b128 v9, {v(RB(u) + 4 * hh, 4)} offset:{hh * 64}')
                if u < 4:
                    A(f'v_add_u32 v10, {s(64 + u)}, {v(VL16)}')
                    for hh in range(2):
                        A(f'ds_write_b128 v10, {v(RB(u) + 8 + 4 * hh, 4)} offset:{(2 + hh) * KB}')
            self.sig(L_CR, k)
        D1 = [('o', map_wo, 4, 0, 16), ('1', map_w1, 4, 0, 4)]
        if 'd1e' in OPT:
            self.lwait(L_CF, 3, 24, sleep=1)
            for p in D1:
                steps(*p)
        kvjob(160)
        A.wait_all(vm=False)
        A.label(L3)

        def ldump():
            need(0, sCG8, 2, 8, 16)
            self.lwait(L_CS, 3, 24, sleep=1, absv=True)
            if self.prof and 'kprof' not in OPT:
                self.pstamp()
                A(f's_lshl_b32 s33, s2, 2')
                A(f's_add_u32 s33, s33, {s(sLW)}')
                A(f's_lshl_b32 s33, s33, 8')
                A(f's_add_u32 s33, s33, {DBG + 1024 * KB}')
                A(f'buffer_store_dword v12, {v(VL4)}, {s(SRD, 4)}, s33 offen')
        only(0, ldump)
        if 'd1e' in OPT:
            def d1():
                for p in D1:
                    steps(*p)
                A('s_waitcnt vmcnt(0)')
            only(0, d1)
            self.sig(L_CR, 3)
        else:
            batch(3, D1)
        if 'pq' in OPT:
            only(1, lambda: pfl(W2, 1536 * KB, 1))
        if 'touch' in OPT:
            only(1, lambda: touch(W3, 1024 * KB))
        only(0, lambda: need(16, sCG8, 1, 0, 16))
        self.lwait(L_KD, 1, 24, sleep=1)
        batch(4, [('1', map_w1, 4, 4, 16), ('2', map_w2, 4, 0, 7)])
        RG = int([o[2:] for o in OPT if o.startswith('rg')][0]) if any(o.startswith('rg') for o in OPT) else 99

        def regload():
            A(f's_add_u32 s28, s37, {s(bases["4"])}')
            A(f's_add_u32 s28, s28, {39 * 4 * KB}')
            for i in range(17):
                self.ldx(v(92 + 4 * i, 4), 28, sc=' sc1')
                A(f's_add_u32 s28, s28, {4 * KB}')
                if i % RG == RG - 1:
                    A.wait_all(lg=False)
        only(0, lambda: (cs_build(4, map_w1, 4, L_CS1, 4), A.wait_all(vm=False), need3()))
        if 'norl5' not in OPT:
            only(0, lambda: (need(52, sCG8, 1, 0, 56), self.lwait(L_PS, 1, 24, sleep=2, absv=True) if 'rlp' in OPT else None, regload()))
        batch(5, [('2', map_w2, 4, 7, 16), ('3', map_w3, 7, 0, 3)], lambda: only(0, lambda: code_touch('.Lst_w3')))
        A(f'v_add_u32 v9, s37, {v(VL16)}')
        A(f'v_add_u32 v9, {map_w3(3)}, v9')

        def w3out():
            self.lwait(L_PS, 1, 24, sleep=2)
            for i in range(15):
                A(f'ds_write_b128 v9, {v(32 + 4 * i, 4)} offset:{i * 4 * KB}')
        only(1, w3out)
        self.lwait(L_CF, 6, 24, sleep=2)
        run('3', 81 * KB, map_w3(3) + 60 * KB, 10)
        only(0, lambda: run('3', 21 * KB, map_w3(3), 60))
        A('s_waitcnt vmcnt(0)')
        A.vm_done = A.vm
        self.sig(L_CR, 6)

        def w3in():
            for i in range(15):
                A(f'ds_read_b128 {v(32 + 4 * i, 4)}, v9 offset:{i * 4 * KB}')
            self.sig(L_CS, 5, absv=True)
        only(0, w3in)
        batch(7, [('3', map_w3, 7, 13, 16)])
        if 'norl5' in OPT:
            only(0, lambda: need(52, sCG8, 1, 0, 56))
        if 'v2' in OPT:
            self.lwait(L_PS, 2, 24, sleep=2)
            regload()
            batch(8, [('4', map_w4, 4, 0, 11)])
        elif 'v3' in OPT:
            batch(8, [('4', map_w4, 4, 0, 11)], regload)
        else:
            def gtouch():
                Lt = A.newlabel('gt')
                A(f'ds_read_b32 v24, {v(VPERM)} offset:{L_MODE - L_CF}')
                A.wait_all(vm=False)
                A('v_readfirstlane_b32 s33, v24')
                A('s_cmp_lg_u32 s33, 2')
                A(f's_cbranch_scc1 {Lt}')
                A(f's_mul_i32 s33, s34, {7 * KB}')
                A('s_and_b32 s36, s2, 7')
                A(f's_mul_i32 s36, s36, {896 * KB}')
                A('s_add_u32 s33, s33, s36')
                A(f's_add_u32 s33, s33, {G}')
                A('s_mov_b32 exec_hi, 0xffffff')
                A(f'buffer_load_dword v20, v21, {s(SRD, 4)}, s33 offen')
                A('s_mov_b32 exec_hi, -1')
                A.label(Lt)
            self.lwait(L_PS, 2, 24, sleep=2)
            if 'gt' in OPT:
                gtouch()
            steps('4', map_w4, 4, 0, 11)
            if 'gt2' in OPT:
                gtouch()
            A.wait_all(lg=False)
            self.sig(L_CR, 8)
            self.lwait(L_CF, 8, 24, sleep=2)
            if 'nosplit' not in OPT:
                assert map_w4(23) >= map_w3(0) and map_w4(37) + 4 * KB <= map_w3(8) + 7 * KB
                self.lwait(L_CS, 5, 24, sleep=1, absv=True)
                steps('4', map_w4, 4, 23, 38)
            if 'norl5' in OPT:
                only(0, regload)
            if 'g1' in OPT:
                only(1, lambda: (self.lwait(L_CF, 8, 24, sleep=2), gtouch()))
            if 'g2' in OPT:
                only(1, gtouch)
            if 'p4' in OPT:
                only(1, lambda: touch(W4, 1792 * KB))
            only(0, lambda: (code_touch('.Lst_w4'), code_touch('.Lst_q')))
        batch(9, [('4', map_w4, 4, 11, 39)] if 'nosplit' in OPT else [('4', map_w4, 4, 11, 23), ('4', map_w4, 4, 38, 39)])
        if 'noreg' not in OPT:
            A(f'v_add_u32 v9, s37, {v(VL16)}')
            A(f'v_add_u32 v9, {map_w4(50)}, v9')
            A(f'v_add_u32 v10, {32 * KB}, v9')
            self.lwait(L_CF, 10, 24, sleep=2)
            for i in range(17):
                o_ = map_w4(39 + i) - map_w4(50)
                A(f'ds_write_b128 {v(9 + (o_ >= 32 * KB))}, {v(92 + 4 * i, 4)} offset:{o_ - 32 * KB * (o_ >= 32 * KB)}')
            self.sig(L_CR, 10)
        else:
            batch(10, [('4', map_w4, 4, 39, 56)])
        A.wait_all()
        A(f's_add_u32 {s(sEV)}, {s(sEV)}, 10')
        A(f's_add_u32 s40, s40, {ZSTRIDE}')
        A(f's_add_u32 s41, s41, {ZSTRIDE}')
        A(f's_add_u32 s48, s48, {CSTRIDE}')
        A(f's_add_u32 {s(sPAIR)}, {s(sPAIR)}, 1')
        A(f's_cmp_lt_u32 {s(sPAIR)}, 2')
        A(f's_cbranch_scc1 {L}')
        A('s_endpgm')

    def main(self):
        A = self.A
        name = NAME + '_kernel'
        A.reset_kernel()
        A.raw('.p2align 8')
        A.raw(f'.globl {name}')
        A.raw(f'.type {name},@function')
        A.label(name)
        self.exit = A.newlabel('exit')
        A('s_cmp_ge_u32 s2, 256')
        A(f's_cbranch_scc1 {self.exit}')
        A(f's_load_dwordx16 {s(PA, 16)}, s[0:1], 0')
        A(f's_load_dwordx8 {s(PA + 16, 8)}, s[0:1], 64')
        if self.prof or 'dbgt' in OPT or any(o.startswith('mk') for o in OPT):
            A('s_memrealtime s[62:63]')
        Lpc = A.newlabel('pc')
        A('s_getpc_b64 s[40:41]')
        A.label(Lpc)
        if 'cpfull' in OPT:
            A('v_lshlrev_b32 v3, 7, v0')
            A(f'v_min_u32 v3, code_end-{Lpc}-4, v3')
            A('global_load_dword v13, v3, s[40:41]')
        elif 'cpnone' not in OPT:
            A('s_lshr_b32 s42, s2, 3')
            A('s_lshl_b32 s42, s42, 11')
            A('v_lshlrev_b32 v3, 2, v0')
            A('v_add_u32 v3, s42, v3')
            A(f'v_min_u32 v3, code_end-{Lpc}-4, v3')
            A('s_mov_b32 exec_lo, 1')
            A('s_mov_b32 exec_hi, 1')
            A('global_load_dword v13, v3, s[40:41]')
            A('s_mov_b64 exec, -1')
        A(f'v_and_b32 {v(VLANE)}, 63, v0')
        A(f'v_lshrrev_b32 v3, 6, v0')
        A(f'v_lshlrev_b32 {v(VL16)}, 4, {v(VLANE)}')
        A(f'v_readfirstlane_b32 {s(SW)}, v3')
        A(f's_mov_b32 {s(SRD + 2)}, {WS_USED}')
        A(f's_mov_b32 {s(SRD + 3)}, 0x00020000')
        A(f's_mov_b32 {s(SRD2 + 3)}, 0x00020000')
        A(f's_mov_b32 {s(SRDD + 2)}, 256')
        A(f's_mov_b32 {s(SRDD + 3)}, 0x00020000')
        self.tile64(sT, sCG8)
        self.tile128(sT0, sCG16)
        A(f's_mov_b32 {s(sPAIR)}, 0')
        A(f's_mov_b32 {s(sTO)}, 0x200000')
        A(f'v_lshlrev_b32 {v(VL4)}, 2, {v(VLANE)}')
        A(f's_mov_b32 {s(sEV)}, 0')
        A(f'v_mov_b32 {v(VPERM)}, {L_CF}')
        A(f's_and_b32 s26, {s(SW)}, 3')
        A(f's_lshl_b32 s26, s26, 2')
        A(f'v_add_u32 {v(VOWN)}, s26, {v(VPERM)}')
        A(f'v_cmp_gt_u32 vcc, 4, {v(VLANE)}')
        A(f'v_cndmask_b32 v3, 0, 2, vcc')
        A(f'v_add_u32 v10, {v(VL4)}, {v(VPERM)}')
        A(f'ds_write_b32 v10, v3')
        A(f'v_lshlrev_b32 v10, 2, v0')
        A(f'v_add_u32 v10, {PERM}, v10')
        A(f'v_mov_b32 v11, 0')
        A(f'ds_write_b32 v10, v11')
        LC = A.newlabel('compute')
        A('s_waitcnt lgkmcnt(0)')
        A.lg_done = A.lg
        A(f's_mov_b64 {s(SRD, 2)}, {s(PA + 22, 2)}')
        A(f's_mov_b64 {s(SRDD, 2)}, {s(PA + 20, 2)}')
        if 'wpf' in OPT:
            A('s_lshr_b32 s26, s2, 3')
            A('s_lshl_b32 s27, s2, 2')
            A('s_add_u32 s26, s26, s27')
            A('s_and_b32 s26, s26, 31')
            A('s_lshl_b32 s26, s26, 3')
            A(f's_add_u32 s26, s26, {s(SW)}')
            A(f's_mul_i32 s26, s26, 6144')
            A(f's_mov_b64 {s(SRD2, 2)}, {s(PA + 2, 2)}')
            A(f's_mov_b32 {s(SRD2 + 2)}, {512 * 3072}')
            A(f'v_lshlrev_b32 v10, 7, {v(VLANE)}')
            A('s_mov_b32 exec_hi, 0xffff')
            A(f'buffer_load_dword v13, v10, {s(SRD2, 4)}, s26 offen')
            A('s_mov_b32 exec_hi, -1')
        A(f's_cmp_lt_u32 {s(SW)}, 4')
        A('s_barrier')
        A(f's_cbranch_scc1 {LC}')
        self.loader()
        A.label(LC)
        A.flush_hazards()
        A.vm = A.vm_done = A.lg = A.lg_done = 0
        if 'eq' not in OPT:
            A('s_setprio 2')
        A(f's_lshl_b32 {s(sT0)}, {s(sT0)}, 3')
        A(f's_lshl_b32 s26, {s(SW)}, 1')
        A(f's_add_u32 {s(sT0)}, {s(sT0)}, s26')
        Lz = A.newlabel('nz')
        A(f's_cmp_lt_u32 s2, 32')
        A(f's_cselect_b32 s58, {s(SW)}, 0')
        A(f's_cmp_lg_u32 s58, 3')
        A(f's_cbranch_scc1 {Lz}')
        for i in range(4):
            A(f'v_mov_b32 {v(28 + i)}, 0')
        A(f's_mul_i32 s28, s2, {5 * KB}')
        A(f's_add_u32 s28, s28, {ZR}')
        A(f's_add_u32 s29, s28, {4 * KB}')
        A(f's_and_b32 s30, s2, 7')
        A(f's_lshl_b32 s30, s30, 14')
        A(f's_lshr_b32 s31, s2, 3')
        A(f's_lshl_b32 s31, s31, 12')
        A(f's_add_u32 s30, s30, s31')
        A(f's_add_u32 s30, s30, {CB}')
        assert CB == ZR + 160 * KB
        for i in range(9):
            r, o = (28, i) if i < 4 else (29, 0) if i == 4 else (30, i - 5)
            A(f'buffer_store_dwordx4 v[28:31], {v(VL16)}, {s(SRD, 4)}, {s(r)} offen offset:{o * KB} sc1')
        A.label(Lz)
        A.vm_done = A.vm
        A('s_nop 0')
        A(f's_mov_b64 {s(SRD2, 2)}, {s(PA, 2)}')
        A(f's_mov_b32 {s(SRD2 + 2)}, {2048 * 512 * 2}')
        A(f'v_lshrrev_b32 v3, 4, {v(VLANE)}')
        A(f'v_and_b32 v10, 0xf0, {v(VL16)}')
        A(f'v_lshl_add_u32 v10, v3, 10, v10')
        A(f's_lshl_b32 s92, {s(sT0)}, 14')
        for i in range(1, 8):
            A(f's_add_u32 {s(92 + i)}, s92, {i * 4096}')
        PB = [128, 160, 192, 224]
        self.x0m = []

        def x0load(q4):
            for mt in range(2):
                for n in range(4):
                    self.ld(v(PB[q4] + 16 * mt + 4 * n, 4), 92 + 4 * mt + n, 256 * q4, voff=10, srd=SRD2)
                self.x0m.append(A.vmark())
        self.x0load = x0load
        for q4 in range(self.XPRE):
            x0load(q4)
        A(f's_mov_b32 {s(sP)}, 0')
        A(f's_mov_b32 {s(sZ)}, 0')
        A(f's_mov_b32 {s(sC)}, 0')
        A(f's_mov_b32 {s(sFAST)}, 0')
        A(f's_mov_b32 {s(sFG)}, 0')
        A(f's_lshl_b32 {s(sT)}, {s(sT)}, 2')
        A(f's_add_u32 {s(sT)}, {s(sT)}, {s(SW)}')
        A(f's_lshl_b32 {s(sTILE)}, {s(sT)}, 14')
        A(f's_lshl_b32 s26, {s(sCG8)}, 11')
        A(f's_add_u32 {s(sTILE)}, {s(sTILE)}, s26')
        A(f's_lshl_b32 {s(sSTP)}, {s(sT)}, 10')
        A(f's_lshl_b32 s26, {s(sCG8)}, 7')
        A(f's_add_u32 {s(sSTP)}, {s(sSTP)}, s26')
        A(f's_mov_b32 {s(sHH)}, {HH - H}')
        A(f's_and_b32 s26, {s(sT)}, 15')
        A(f's_bitcmp1_b32 {s(sCG8)}, 1')
        A(f's_cselect_b32 s27, 0, 15')
        A(f's_cmp_eq_u32 s26, s27')
        A(f's_cselect_b32 {s(sFH)}, 1, 0')
        A(f's_lshl_b32 s27, {s(sT)}, {CSH}')
        A(f's_add_u32 s28, s27, {C_HH - (1 << CSH)}')
        A(f's_add_u32 s27, s27, {C_HH + (1 << CSH) + 8}')
        A(f's_cmp_eq_u32 s26, 15')
        A(f's_cselect_b32 {s(sRH)}, s27, 0')
        A(f's_cmp_eq_u32 s26, 0')
        A(f's_cselect_b32 {s(sRH)}, s28, {s(sRH)}')
        A(f's_cmp_eq_u32 {s(sT)}, 0')
        A(f's_cselect_b32 {s(sRH)}, 0, {s(sRH)}')
        A(f's_cmp_eq_u32 {s(sT)}, 127')
        A(f's_cselect_b32 {s(sRH)}, 0, {s(sRH)}')
        for f, t, c in ((sF8, sT, sCG8), (sF16, sT0, sCG16)):
            A(f's_lshl_b32 {s(f)}, {s(t)}, {CSH}')
            A(f's_lshl_b32 s26, {s(c)}, 2')
            A(f's_add_u32 {s(f)}, {s(f)}, s26')
            A(f's_add_u32 {s(f)}, {s(f)}, {CB}')
        A(f'v_add_u32 {v(VB64)}, 0x10000, {v(VL16)}')
        A(f'v_add_u32 {v(VB128)}, 0x20000, {v(VL16)}')
        A(f'v_and_b32 {v(VSTL)}, 0x300, {v(VL16)}')
        A(f'v_and_b32 v3, 15, {v(VLANE)}')
        A(f'v_lshl_add_u32 {v(VSTL)}, v3, 3, {v(VSTL)}')
        A(f'v_mov_b32 {v(VONE)}, 1')
        A(f'v_lshrrev_b32 {v(VP2)}, 3, {v(VLANE)}')
        A(f'v_and_b32 v3, 0x1c, {v(VL4)}')
        A(f'v_lshl_add_u32 {v(VP2)}, {v(VP2)}, {CSH}, v3')
        A('v_mov_b32 v12, 0')
        if self.prof:
            A('v_writelane_b32 v12, s62, 60')
        A.wait(vm=self.x0m[0])
        self.Lp = A.newlabel('pair')
        Lfinal = A.newlabel('final')
        self.stage_qkv()
        self.stage_wo()
        self.stage_w1()
        self.stage_w2()
        A.label('.Lst_w3')
        self.stage_w3()
        A.label('.Lst_w4')
        self.stage_w4(Lfinal)
        self.dump2()
        self.mark(3)
        if 'dbgt' in OPT:
            A('s_memrealtime s[60:61]')
            A('s_waitcnt lgkmcnt(0)')
            A('s_mov_b32 s94, s60')
        A(f's_mov_b32 {s(sPAIR)}, 1')
        A(f's_mov_b32 {s(sEV)}, 10')
        A(f's_mov_b32 {s(sHH)}, {HH - H + 2048 * KB}')
        A(f's_mov_b32 {s(sFG)}, {s(sFAST)}')
        A(f's_mov_b32 {s(sZ)}, {ZSTRIDE}')
        A(f's_mov_b32 {s(sC)}, {CSTRIDE}')
        A(f's_add_u32 {s(sF8)}, {s(sF8)}, {CSTRIDE}')
        A(f's_add_u32 {s(sF16)}, {s(sF16)}, {CSTRIDE}')
        A(f's_branch {self.Lp}')
        A.label(Lfinal)
        buf = 64
        A(f's_mov_b64 {s(SRD2, 2)}, {s(PA + 18, 2)}')
        A(f'v_and_b32 v13, 15, {v(VLANE)}')
        A(f'v_lshlrev_b32 v13, 10, v13')
        A(f'v_bfe_u32 v3, {v(VLANE)}, 4, 1')
        A(f'v_lshl_add_u32 v13, v3, 5, v13')
        A(f'v_lshrrev_b32 v3, 5, {v(VLANE)}')
        A(f'v_lshl_add_u32 v13, v3, 4, v13')
        A(f's_lshl_b32 s28, {s(sT)}, 14')
        A(f's_lshl_b32 s29, {s(sCG8)}, 7')
        A(f's_add_u32 s28, s28, s29')
        self.pack(buf, RES, 8)
        for q in range(2):
            b = buf + 4 * q
            A(f'v_permlane16_swap_b32 {v(b)}, {v(b + 2)}')
            A(f'v_permlane16_swap_b32 {v(b + 1)}, {v(b + 3)}')
        for q in range(2):
            self.stsfx = ' sc1' if 'osc1' in OPT else ' nt' if 'ont' in OPT else ''
            self.st(v(buf + 4 * q, 4), 28, 64 * q, voff=13, srd=SRD2)
        if 'dbgt' in OPT:
            A('s_not_b32 s62, s62')
            A('v_mov_b32 v12, s62')
            A('s_mov_b64 exec, 1')
            A(f'buffer_atomic_umax v12, {v(VL4)}, {s(SRDD, 4)}, 0 offen offset:32')
            A('s_mov_b64 exec, -1')
        self.dbgt(9)
        for i_, r_ in enumerate((92, 93, 94)):
            if 'dbgt' in OPT:
                A(f'v_mov_b32 v12, {s(r_)}')
                A('s_mov_b64 exec, 1')
                A(f'buffer_atomic_umax v12, {v(VL4)}, {s(SRDD, 4)}, 0 offen offset:{40 + 4 * i_}')
                A('s_mov_b64 exec, -1')
        if self.prof:
            A('s_memrealtime s[60:61]')
            A('s_waitcnt lgkmcnt(0)')
            A('v_writelane_b32 v12, s60, 62')
        self.dump2()
        self.mark(4, False)
        if any(o.startswith('mk') for o in OPT):
            Ls = A.newlabel('spin')
            A('s_memrealtime s[56:57]')
            A('s_waitcnt lgkmcnt(0)')
            A('s_sub_u32 s54, s54, s62')
            A.label(Ls)
            A('s_memrealtime s[58:59]')
            A('s_waitcnt lgkmcnt(0)')
            A('s_sub_u32 s58, s58, s56')
            A('s_cmp_lt_u32 s58, s54')
            A(f's_cbranch_scc1 {Ls}')
        A.label(self.exit)
        A('s_endpgm')
        A.label('code_end')
        if 'ct' in OPT:
            A.raw('.fill 2048, 4, 0xbf810000')
        self.kernels.append((name, A.maxv + 1, (A.maxv + 4) // 4 * 4, A.maxs + 1))

    def build(self, hdr):
        self.main()
        out = [hdr]
        out.append(f'; @launch grid=(256,1,1) block=(512,1,1) lds={160 * KB}')
        out.append('.amdgcn_target "amdgcn-amd-amdhsa--gfx950"')
        out.append('.text')
        out.append(self.A.text())
        out.append('.section .rodata,"a"')
        for n, nv, accum, ns in self.kernels:
            assert nv <= 256
            out.append('.p2align 6')
            out.append(f'.amdhsa_kernel {n}')
            out.append(f'  .amdhsa_next_free_vgpr {nv}')
            out.append(f'  .amdhsa_next_free_sgpr {max(ns, 16)}')
            out.append(f'  .amdhsa_accum_offset {accum}')
            out.append('  .amdhsa_group_segment_fixed_size 0')
            out.append('  .amdhsa_kernarg_size 96')
            out.append('  .amdhsa_user_sgpr_count 2')
            out.append('  .amdhsa_user_sgpr_kernarg_segment_ptr 1')
            out.append('  .amdhsa_system_sgpr_workgroup_id_x 1')
            out.append('  .amdhsa_float_denorm_mode_32 3')
            out.append('.end_amdhsa_kernel')
        return '\n'.join(out) + '\n'


if __name__ == '__main__':
    OPT.add('d2early')
    g = Gen3()
    g.prof = 'prof' in OPT
    txt = g.build(header())
    out = sys.argv[1]
    if out == '-':
        out = f'cdna_kernels/{NAME}.s'
    open(out, 'w').write(txt)
    json.dump(LAYOUT, open('layout.json', 'w'))
    for k in g.kernels:
        print(k)
    print('nops inserted', g.A.nops, 'ws used', WS_USED, 'stamps', g.nstamp)
```

```python
import re

REG_RE = re.compile(r'^(-|abs\()?([vas])(\d+|\[(\d+):(\d+)\])\)?$')

import sys
TRANS_WS = 4 if 'tw4' in sys.argv else 1
PERM_WS = 3 if 'pw3' in sys.argv else 0
DS_WS = 3 if 'dw3x' in sys.argv else 0
TRANS = ('v_exp_f32', 'v_rcp_f32', 'v_rsq_f32', 'v_sqrt_f32', 'v_log_f32')


def regs_of(tok):
    tok = tok.strip()
    if tok in ('vcc', 'exec', 'm0', 'scc'):
        return {tok}
    if tok in ('vcc_lo', 'vcc_hi'):
        return {'vcc'}
    if tok in ('exec_lo', 'exec_hi'):
        return {'exec'}
    m = REG_RE.match(tok)
    if not m:
        return set()
    k = m.group(2)
    if m.group(4) is not None:
        return {(k, i) for i in range(int(m.group(4)), int(m.group(5)) + 1)}
    return {(k, int(m.group(3)))}


def split_ops(s):
    out, depth, cur = [], 0, ''
    for ch in s:
        if ch in '[(':
            depth += 1
        if ch in '])':
            depth -= 1
        if ch == ',' and depth == 0:
            out.append(cur.strip())
            cur = ''
        else:
            cur += ch
    if cur.strip():
        out.append(cur.strip())
    return out


class Ins:
    __slots__ = ('text', 'kind', 'w', 'r', 'pos', 'mn', 'srcc', 'srcab', 'sdata', 'lds_dma', 'dreg')


def v(i, n=1):
    return f'v{i}' if n == 1 else f'v[{i}:{i + n - 1}]'


def a(i, n=1):
    return f'a{i}' if n == 1 else f'a[{i}:{i + n - 1}]'


def s(i, n=1):
    return f's{i}' if n == 1 else f's[{i}:{i + n - 1}]'


class Asm:
    def __init__(self):
        self.lines = []
        self.hist = []
        self.pos = 0
        self.vm = 0
        self.vm_done = 0
        self.lg = 0
        self.lg_done = 0
        self.maxv = -1
        self.maxa = -1
        self.maxs = -1
        self.nops = 0
        self.nlabel = 0

    def raw(self, t):
        self.lines.append(t)

    def comment(self, t):
        self.lines.append('    ; ' + t)

    def label(self, name):
        self.lines.append(name + ':')

    def newlabel(self, base):
        self.nlabel += 1
        return f'.L{base}_{self.nlabel}'

    def reset_kernel(self):
        self.hist = []
        self.vm = self.vm_done = self.lg = self.lg_done = 0
        self.maxv = self.maxa = self.maxs = -1

    def flush_hazards(self, n=16):
        self.hist = []

    def _parse(self, text):
        t = text.split(';')[0].strip()
        parts = t.split(None, 1)
        mn = parts[0]
        ops = split_ops(parts[1]) if len(parts) > 1 else []
        mods = ''
        if ops:
            lp = ops[-1].split(None, 1)
            ops[-1] = lp[0]
            mods = lp[1] if len(lp) > 1 else ''
        I = Ins()
        I.text, I.mn = text, mn
        I.w, I.r = set(), set()
        I.srcc, I.srcab, I.sdata, I.lds_dma, I.dreg = set(), set(), set(), False, None
        R = [regs_of(o) for o in ops]
        if mn.startswith('v_mfma'):
            I.kind = 'mfma'
            I.w = R[0]
            I.srcab = R[1] | R[2]
            I.srcc = R[3]
            I.r = I.srcab | I.srcc
            I.dreg = (ops[0], ops[3])
        elif mn.startswith('v_'):
            I.kind = 'trans' if mn.replace('_e32', '').replace('_e64', '') in TRANS else 'valu'
            if mn.startswith('v_permlane') and 'swap' in mn:
                I.w = R[0] | R[1]
                I.r = R[0] | R[1]
            elif mn.startswith('v_cmp'):
                I.w = R[0]
                I.r = set().union(*R[1:])
                if mn.startswith('v_cmpx'):
                    I.w |= {'exec'}
            elif mn.startswith(('v_add_co', 'v_sub_co', 'v_addc_co', 'v_subb_co', 'v_mad_u64')):
                I.w = R[0] | R[1]
                I.r = set().union(*R[2:])
            else:
                I.w = R[0]
                I.r = set().union(*R[1:]) if len(R) > 1 else set()
                if mn.startswith(('v_fmac', 'v_dot2c', 'v_writelane')):
                    I.r |= R[0]
            I.r |= {'exec'}
        elif mn.startswith(('buffer_', 'global_')):
            I.kind = 'vmem'
            modl = mods.split()
            if 'lds' in modl or '_lds_' in mn:
                I.lds_dma = True
                I.r = set().union(*R) | {'m0'}
            elif 'load' in mn:
                I.w = R[0]
                I.r = set().union(*R[1:])
                if 'd16' in mn:
                    I.r |= R[0]
            elif 'atomic' in mn:
                I.r = set().union(*R)
                if 'sc0' in modl:
                    I.w = R[0]
            elif mn in ('buffer_wbl2', 'buffer_inv'):
                pass
            else:
                I.r = set().union(*R)
                if mn.startswith('buffer_store'):
                    d = R[0]
                else:
                    d = R[1]
                if 'x4' in mn or 'x3' in mn:
                    I.sdata = d
        elif mn.startswith('ds_'):
            I.kind = 'ds'
            if 'read' in mn or 'permute' in mn or 'swizzle' in mn:
                I.w = R[0]
                I.r = set().union(*R[1:])
            else:
                I.r = set().union(*R)
        elif mn.startswith('s_'):
            I.kind = 'salu'
            if mn.startswith(('s_cmp', 's_cbranch', 's_branch', 's_waitcnt', 's_barrier', 's_nop', 's_endpgm',
                              's_sleep', 's_setprio', 's_bitcmp')):
                I.r = set().union(*R) if R else set()
            elif 'saveexec' in mn:
                I.w = R[0] | {'exec'}
                I.r = set().union(*R[1:]) | {'exec'}
            else:
                I.w = R[0] if R else set()
                I.r = set().union(*R[1:]) if len(R) > 1 else set()
            if mn.startswith('s_load') or mn.startswith('s_buffer_load') or mn.startswith('s_mem'):
                I.kind = 'smem'
        else:
            raise ValueError('unknown instr ' + text)
        for r in I.w | I.r:
            if isinstance(r, tuple):
                if r[0] == 'v':
                    self.maxv = max(self.maxv, r[1])
                elif r[0] == 'a':
                    self.maxa = max(self.maxa, r[1])
                else:
                    self.maxs = max(self.maxs, r[1])
        return I

    def _need(self, P, C):
        n = 0
        isv = lambda x: x.kind in ('valu', 'trans')
        vec = lambda S: {r for r in S if isinstance(r, tuple) and r[0] in 'va'}
        sg = lambda S: {r for r in S if (isinstance(r, tuple) and r[0] == 's') or r == 'vcc'}
        if P.kind == 'mfma':
            big = '32x32' in P.mn
            raw = 12 if big else 8
            if C.kind == 'mfma':
                if P.w & C.srcab:
                    n = max(n, raw)
                if P.w & C.srcc:
                    if not (C.dreg[1] == P.dreg[0] and ('32x32' in C.mn) == big):
                        n = max(n, 10 if big else 6)
                elif P.w & C.w:
                    n = max(n, raw)
            else:
                if P.w & (C.r | C.w):
                    n = max(n, raw)
                if isv(C) and (P.srcc & C.w):
                    n = max(n, 7 if big else 3)
        if isv(P):
            if C.kind == 'mfma' and (vec(P.w) & C.r):
                n = max(n, 2)
            if C.kind == 'mfma' and 'exec' in P.w:
                n = max(n, 4)
            if P.kind == 'trans' and C.kind != 'trans' and (P.w & C.r):
                n = max(n, TRANS_WS)
            if P.mn.startswith('v_permlane') and (P.w & C.r):
                n = max(n, PERM_WS)
            if C.kind == 'ds' and (vec(P.w) & C.r):
                n = max(n, DS_WS)
            if C.mn.startswith('v_permlane') and (vec(P.w) & C.r):
                n = max(n, 2)
            if C.mn.startswith(('v_readfirstlane', 'v_readlane')) and (vec(P.w) & C.r):
                n = max(n, 1)
            if 'dpp' in C.text or 'row_' in C.text or 'quad_perm' in C.text:
                if vec(P.w) & C.r:
                    n = max(n, 2)
            if sg(P.w):
                if C.kind == 'vmem' and (sg(P.w) & C.r):
                    n = max(n, 5)
                if isv(C) and (sg(P.w) & C.r):
                    n = max(n, 4 if C.mn.startswith(('v_readlane', 'v_writelane')) else 2)
                if C.kind in ('salu', 'smem') and (sg(P.w) & C.r):
                    n = max(n, 1)
            if 'exec' in P.w and C.mn.startswith(('v_readlane', 'v_readfirstlane', 'v_writelane', 'v_permlane')):
                n = max(n, 4)
        if P.mn.startswith('v_dot') and (P.w & (C.r | C.w)):
            if not (C.mn == P.mn and C.w == P.w):
                n = max(n, 3)
        if P.kind == 'salu' and 'm0' in P.w and C.lds_dma:
            n = max(n, 1)
        if P.sdata and (P.sdata & C.w):
            n = max(n, 2)
        return n

    def __call__(self, text):
        for line in text.strip().split('\n'):
            line = line.strip()
            if not line or line.startswith(';'):
                continue
            self._emit1(line)

    def _emit1(self, text):
        I = self._parse(text)
        if I.kind == 'ds' and self.lg - self.lg_done >= 15:
            self.wait(lg=self.lg - 8)
        need = 0
        for P in reversed(self.hist):
            d = self.pos - P.pos - 1
            if d >= 20:
                break
            n = self._need(P, I)
            if n - d > need:
                need = n - d
        if need > 0:
            self.lines.append(f'    s_nop {need - 1}')
            self.pos += need
            self.nops += 1
        I.pos = self.pos
        if I.mn == 's_nop':
            self.pos += int(text.split()[1], 0) + 1
        else:
            self.pos += 1
        self.hist.append(I)
        if len(self.hist) > 40:
            self.hist.pop(0)
        self.lines.append('    ' + text)
        if I.kind == 'vmem' and I.mn not in ('buffer_wbl2', 'buffer_inv'):
            self.vm += 1
            assert self.vm - self.vm_done <= 63, 'too many vmem outstanding: ' + text
        if I.kind == 'ds':
            self.lg += 1
            assert self.lg - self.lg_done <= 15, 'too many lds outstanding: ' + text

    def vmark(self):
        return self.vm

    def lmark(self):
        return self.lg

    def wait(self, vm=None, lg=None):
        parts = []
        if vm is not None and vm > self.vm_done:
            parts.append(f'vmcnt({self.vm - vm})')
            self.vm_done = vm
        if lg is not None and lg > self.lg_done:
            parts.append(f'lgkmcnt({self.lg - lg})')
            self.lg_done = lg
        if parts:
            self('s_waitcnt ' + ' '.join(parts))

    def wait_all(self, vm=True, lg=True):
        self.wait(self.vm if vm else None, self.lg if lg else None)

    def text(self):
        return '\n'.join(self.lines) + '\n'
```

```python
import sys, json
import gen as G1
from gen import Gen, KB, NAME, f32, LOG2E, OOB, SRD, SW, SRD2, VL16, VLANE, header
from asmlib import v, a, s

OPT = set(sys.argv[2:])

_off = 0
def _alloc(n):
    global _off
    r = _off
    _off += (n + 4095) // 4096 * 4096
    return r
WQKV = _alloc(1536 * KB); WO = _alloc(512 * KB); W1 = _alloc(512 * KB); W2 = _alloc(512 * KB)
W3 = _alloc(1792 * KB); W4 = _alloc(1792 * KB)
CSQ = _alloc(16 * KB); CS1 = _alloc(8 * KB); CS3 = _alloc(16 * KB); DUMMY = _alloc(4 * KB)
ZR = _alloc(288 * KB)
ZSTRIDE = 68 * KB
KV = ZR
Z = KV + 64 * KB
PC = ZR + 136 * KB
XW = ZR + 146 * KB
CSH = 10
CB = ZR + 160 * KB
C_X, C_O, C_XA, C_H, C_X1, C_G, C_KV, C_HH = [CB + 128 * i for i in range(8)]
CSTRIDE = 64
X0 = _alloc(2048 * KB); ST0 = _alloc(128 * KB); OB = _alloc(2048 * KB); G = _alloc(7168 * KB)
HH = _alloc(4096 * KB)
CS3G = _alloc(128 * KB)
XA = X1 = X0
STA = ST1 = ST0
H = OB
PSTRIDE = 0
DBG = _alloc(16 * 512 * 128 * 2)
DBG2 = _alloc(1024 * 16 * KB if 'dump' in OPT else 4096)
WS_USED = _off
LAYOUT = {k: val for k, val in globals().items() if k.isupper() and isinstance(val, int)}
for k_, v_ in LAYOUT.items():
    setattr(G1, k_, v_)

sT, sCG8, sT0, sCG16, sP, sPAIR, sZ, sTO = 16, 17, 18, 19, 20, 21, 22, 23
sTILE, sSTP, sC, sFAST, sFH = 24, 25, 44, 45, 46
sFG = 49
sHH, sRH = 52, 53
sF8, sF16 = 47, 48
VB64, VB128, VSTL, VL4, VONE, VP2 = 4, 5, 6, 7, 8, 9
VMR = 10
RES = 16
FREE = 32
PERM = 156 * KB
L_CSQ, L_CS1, L_CS3 = PERM, PERM + 384, PERM + 640
L_CF, L_CR, L_CB, L_MODE, L_GO = PERM + 2048, PERM + 2064, PERM + 2080, PERM + 2096, PERM + 2100
L_PS = PERM + 2112
L_CS = PERM + 2128
L_INIT = PERM + 2104
L_KD = PERM + 2176
L_D1 = PERM + 2192
L_ST = PERM + 2148
PA = 64
SRDD = 88
PST = 138 * KB
PHL = 154 * KB
sEV = 50
VPERM = 15
VOWN = 14
GR = 4 * KB
def map_wo(j): return (35 + j) * GR if j < 4 else (j - 4) * GR
def map_w1(j): return (12 + j) * GR
def map_w2(j): return (28 + j) * GR if j < 11 else (j - 11) * GR
def map_w3(j): return ((j + 3) % 16) * 7 * KB
def map_w4(j):
    if j >= 39: j -= 39
    return (28 + j) * GR if j < 11 else (22 + j - 11) * GR if j < 17 else (j - 17) * GR
def map_kv(j): return j * 4 * KB
def map_q(j): return 64 * KB + j * 2 * KB
def xq(mt, j): return 128 + (j >> 2) * 32 + mt * 16 + (j & 3) * 4


class Rec:
    def __init__(self):
        self.l = []

    def __call__(self, t):
        self.l.append(t)


class Gen3(Gen):
    persist = False
    first_wait = False
    XGO = int([o[3:] for o in OPT if o.startswith('xgo')][0]) if any(o.startswith('xgo') for o in OPT) else 2
    NPRE = int([o[4:] for o in OPT if o.startswith('npre')][0]) if any(o.startswith('npre') for o in OPT) else 3
    XPRE = int([o[4:] for o in OPT if o.startswith('xpre')][0]) if any(o.startswith('xpre') for o in OPT) else 4
    DQ = int([o[2:] for o in OPT if o.startswith('dq')][0]) if any(o.startswith('dq') for o in OPT) else 6
    QD = int([o[2:] for o in OPT if o.startswith('qd')][0]) if any(o.startswith('qd') for o in OPT) else 1
    NPOLL = int([o[2:] for o in OPT if o.startswith('np')][0]) if any(o.startswith('np') for o in OPT) else 1
    PGAP = int([o[2:] for o in OPT if o.startswith('pg')][0]) if any(o.startswith('pg') for o in OPT) else 2
    SP = int([o[2:] for o in OPT if o.startswith('sp')][0]) if any(o.startswith('sp') for o in OPT) else 5
    LPU = int([o[3:] for o in OPT if o.startswith('lpu')][0]) if any(o.startswith('lpu') for o in OPT) else 9
    E11 = int([o[1:] for o in OPT if o.startswith('e') and o[1:].isdigit()][0]) if any(o.startswith('e') and o[1:].isdigit() for o in OPT) else 48
    SL = int([o[2:] for o in OPT if o.startswith('sl') and o[2:].isdigit()][0]) if any(o.startswith('sl') and o[2:].isdigit() for o in OPT) else 2
    DS = int([o[2:] for o in OPT if o.startswith('ds')][0]) if any(o.startswith('ds') for o in OPT) else 16
    SG = int([o[2:] for o in OPT if o.startswith('sg')][0]) if any(o.startswith('sg') for o in OPT) else 11
    D4 = int([o[2:] for o in OPT if (o.startswith('dw') and o[2:].isdigit())][0]) if any((o.startswith('dw') and o[2:].isdigit()) for o in OPT) else 10
    DB = int([o[2:] for o in OPT if o.startswith('db')][0]) if any(o.startswith('db') for o in OPT) else 6

    def rec(self, fn):
        keep = self.A
        self.A = Rec()
        fn()
        l = self.A.l
        self.A = keep
        return l

    def ldx(self, dst, soff, ioff=0, voff=VL16, w=4, sc=None):
        o = f' offset:{ioff}' if ioff else ''
        wn = {1: 'dword', 2: 'dwordx2', 4: 'dwordx4'}[w]
        if sc is None:
            sc = '' if 'ldplain' in OPT else ' nt' if 'ldnt' in OPT else ' sc0' if 'ldsc0' in OPT else ' sc1'
        self.A(f'buffer_load_{wn} {dst}, {v(voff)}, {s(SRD, 4)}, {s(soff)} offen{o}{sc}')
        return self.A.vmark()

    dmant = False

    def dma(self, soff, ioff=0, voff=VL16, srd=SRD):
        o = f' offset:{ioff}' if ioff else ''
        nt = ' sc1' if (srd == SRD and 'dmaplain' not in OPT) else ''
        self.A(f'buffer_load_dwordx4 {v(voff)}, {s(srd, 4)}, {s(soff)} offen{o}{nt} lds')
        return self.A.vmark()

    def stores(self, lst, fast=sFAST):
        A = self.A
        Ls, Ld = A.newlabel('sts'), A.newlabel('std')

        def emit(sc):
            for src, soff, ioff, voff, w, ex in lst:
                o = f' offset:{ioff}' if ioff else ''
                wn = {1: 'dword', 2: 'dwordx2', 4: 'dwordx4'}[w]
                if ex:
                    A(f's_mov_b64 exec, {ex}')
                A(f'buffer_store_{wn} {src}, {v(voff)}, {s(SRD, 4)}, {s(soff)} offen{o}{sc}')
                if ex:
                    A('s_mov_b64 exec, -1')
        A(f's_cmp_eq_u32 {s(fast)}, 0')
        A(f's_cbranch_scc1 {Ls}')
        vm0 = A.vm
        emit(' nt' if 'stnt' in OPT else ' sc0' if 'stsc0' in OPT else ' sc1' if ('datasc1' in OPT and lst[0][4] != 1) else '')
        A(f's_branch {Ld}')
        A.label(Ls)
        A.vm = vm0
        emit(' sc1')
        A.label(Ld)

    njit = 0

    def jitter(self):
        js = [o for o in OPT if o.startswith('jit')]
        if not js:
            return
        k = int(js[0][3:])
        A = self.A
        self.njit += 1
        L = A.newlabel('jit')
        A(f's_mul_i32 s60, s2, {2 * k + 1}')
        A(f's_mul_i32 s61, {s(SW)}, {k + 2}')
        A('s_add_u32 s60, s60, s61')
        A(f's_add_u32 s60, s60, {self.njit * 5}')
        A('s_and_b32 s60, s60, 7')
        A(f's_cmp_lt_u32 s60, 6')
        A(f's_cbranch_scc1 {L}')
        A(f's_sleep {3 + (self.njit * 7 + k * 11) % 29}')
        A.label(L)

    def pstamp(self):
        self.jitter()
        if not self.prof:
            return
        A = self.A
        i = self.nstamp
        self.nstamp += 1
        A('s_memtime s[60:61]')
        A('s_waitcnt lgkmcnt(0)')
        A.lg_done = A.lg
        A(f'v_writelane_b32 v12, s60, {i}')

    def dbgt(self, slot, inv=False):
        if 'dbgt' not in OPT:
            return
        A = self.A
        assert A.lg == A.lg_done
        A('s_memrealtime s[60:61]')
        A('s_waitcnt lgkmcnt(0)')
        if inv:
            A('s_not_b32 s60, s60')
        A('v_mov_b32 v12, s60')
        A('s_mov_b64 exec, 1')
        A(f'buffer_atomic_umax v12, {v(VL4)}, {s(SRDD, 4)}, 0 offen offset:{slot * 4}')
        A.vm -= 1
        A('s_mov_b64 exec, -1')

    def mark(self, k, pair0=True):
        if f'mk{k}' not in OPT:
            return
        A = self.A
        L = A.newlabel('mk')
        if pair0:
            A(f's_cmp_lg_u32 {s(sPAIR)}, 0')
            A(f's_cbranch_scc1 {L}')
        A('s_memrealtime s[54:55]')
        A('s_waitcnt lgkmcnt(0)')
        A.label(L)

    def poll(self, sbase, voff, n, target=1, mode='auto', ioff=0, srd=SRD, mask=None, during=None):
        A = self.A
        L, LS, LC, D = A.newlabel('poll'), A.newlabel('polls'), A.newlabel('pollc'), A.newlabel('polld')
        o = f' offset:{ioff}' if ioff else ''
        A(f's_mov_b64 exec, {(1 << n) - 1:#x}' if n < 32 else 's_mov_b32 exec_hi, 0')
        if during and 'nodur' in OPT:
            A('s_mov_b64 exec, -1')
            during()
            A(f's_mov_b64 exec, {(1 << n) - 1:#x}')
        elif during:
            A(f'buffer_load_dword v0, {v(voff)}, {s(SRD, 4)}, {s(sbase)} offen{o} sc1')
            A('s_mov_b64 exec, -1')
            during()
            A(f's_mov_b64 exec, {(1 << n) - 1:#x}')
            A('s_waitcnt vmcnt(0)')
            A(f'v_cmp_le_u32 vcc, {target}, v0')
            A('s_cmp_eq_u64 vcc, exec')
            A(f's_cbranch_scc1 {D}')
        NP = self.NPOLL
        if mode == 'auto' and NP > 1 and not self.prof:
            LF = A.newlabel('pollf')
            regs = [12, 0]
            A(f's_cmp_eq_u32 {s(sFAST)}, 0')
            A(f's_cbranch_scc1 {L}')
            vm0 = A.vm
            for r in regs[:-1]:
                A(f'buffer_load_dword {v(r)}, {v(voff)}, {s(SRD, 4)}, {s(sbase)} offen{o} sc1')
                for _ in range(self.PGAP):
                    A('s_nop 15')
            A.label(LF)
            for i, r in enumerate(regs):
                A(f'buffer_load_dword {v(regs[i - 1])}, {v(voff)}, {s(SRD, 4)}, {s(sbase)} offen{o} sc1')
                A(f's_waitcnt vmcnt({len(regs) - 1})')
                A(f'v_cmp_le_u32 vcc, {target}, {v(r)}')
                A('s_cmp_eq_u64 vcc, exec')
                A(f's_cbranch_scc1 {D}')
            A(f's_sub_u32 {s(sTO)}, {s(sTO)}, 1')
            A(f's_cbranch_scc0 {LF}')
            A(f's_branch {self.exit}')
            A.vm = vm0
            mode = 'atomic'
        A.label(L)
        if mode == 'auto':
            A(f's_cmp_eq_u32 {s(sFAST)}, 0')
            A(f's_cbranch_scc1 {LS}')
            A(f'buffer_load_dword v3, {v(voff)}, {s(SRD, 4)}, {s(sbase)} offen{o} sc1')
            A(f's_branch {LC}')
            A.label(LS)
        if mode == 'load':
            A(f'buffer_load_dword v3, {v(voff)}, {s(srd, 4)}, {s(sbase)} offen{o} sc1')
        else:
            A('v_mov_b32 v3, 0')
            A(f'buffer_atomic_add v3, {v(voff)}, {s(SRD, 4)}, {s(sbase)} offen{o} sc0')
        A.label(LC)
        A('s_waitcnt vmcnt(0)')
        A.vm_done = A.vm
        if mask:
            A(f'v_and_b32 v22, {mask}, v3')
            A(f'v_cmp_le_u32 vcc, {target}, v22')
        else:
            A(f'v_cmp_le_u32 vcc, {target}, v3')
        A('s_cmp_eq_u64 vcc, exec')
        A(f's_cbranch_scc1 {D}')
        A(f's_sub_u32 {s(sTO)}, {s(sTO)}, 1')
        A(f's_cbranch_scc1 {self.exit}')
        if mode == 'load':
            A('s_sleep 8')
        A(f's_branch {L}')
        A.label(D)
        A('s_mov_b64 exec, -1')

    def sig(self, base, k, absv=False):
        A = self.A
        if absv:
            A(f'v_mov_b32 v3, {k}')
        else:
            A(f's_add_u32 s51, {s(sEV)}, {k}')
            A('v_mov_b32 v3, s51')
        A(f'ds_write_b32 {v(VOWN)}, v3 offset:{base - L_CF}')

    def lwait(self, base, k, tmp, sleep=0, single=False, absv=False, own=False):
        A = self.A
        L, D = A.newlabel('lw'), A.newlabel('lwd')
        A(f's_mov_b32 s51, {k}' if absv else f's_add_u32 s51, {s(sEV)}, {k}')
        A.label(L)
        if single:
            A(f'ds_read_b32 {v(tmp)}, {v(VOWN if own else VPERM)} offset:{base - L_CF}')
            A.wait_all(vm=False)
        else:
            A(f'ds_read_b128 {v(tmp, 4)}, {v(VPERM)} offset:{base - L_CF}')
            A.wait_all(vm=False)
            A(f'v_min_u32 {v(tmp)}, {v(tmp)}, {v(tmp + 1)}')
            A(f'v_min3_u32 {v(tmp)}, {v(tmp)}, {v(tmp + 2)}, {v(tmp + 3)}')
        A(f'v_cmp_le_u32 vcc, s51, {v(tmp)}')
        A(f's_cbranch_vccnz {D}')
        A(f's_sub_u32 {s(sTO)}, {s(sTO)}, 1')
        A(f's_cbranch_scc1 {self.exit}')
        if sleep:
            A(f's_sleep {sleep if sleep != 2 else self.SL}')
        A(f's_branch {L}')
        A.label(D)

    def lpeek(self, base, tmp):
        self.A(f'ds_read_b128 {v(tmp, 4)}, {v(VPERM)} offset:{base - L_CF}')
        return self.A.lmark()

    def ltest(self, mark, base, k, tmp, absv=False):
        A = self.A
        D = A.newlabel('lt')
        A(f's_mov_b32 s51, {k}' if absv else f's_add_u32 s51, {s(sEV)}, {k}')
        A.wait(lg=mark)
        A(f'v_min_u32 {v(tmp)}, {v(tmp)}, {v(tmp + 1)}')
        A(f'v_min3_u32 {v(tmp)}, {v(tmp)}, {v(tmp + 2)}, {v(tmp + 3)}')
        A(f'v_cmp_le_u32 vcc, s51, {v(tmp)}')
        A(f's_cbranch_vccnz {D}')
        lg, ld = A.lg, A.lg_done
        self.lwait(base, k, tmp, absv=absv)
        A.lg, A.lg_done = lg, ld
        A.label(D)

    def acheck(self, specs):
        marks = {}

        def pr(j):
            for n, (jj, base, k, tmp, absv, after) in enumerate(specs):
                if j == jj:
                    self.ltest(marks[n], base, k, tmp, absv)
                    if after:
                        after()
            for n, (jj, base, k, tmp, absv, after) in enumerate(specs):
                if j == jj - 1:
                    marks[n] = self.lpeek(base, tmp)
        return pr

    def flag(self, sbase, ioff, two=False, fast=sFAST, pre=None):
        self.pstamp()
        if pre:
            pre()
        self.A.wait_all(lg=False)
        self.stores([(v(VONE), sbase, ioff, VP2, 1, '0x101' if two else '1')], fast)
        self.pstamp()

    def gemm(self, KS, MT, NT, acc, xreg, ldsoff, buf, NB, xwait, hook=None, preread=None, fill=(), czero=False, fill0=1, npre=0):
        A = self.A
        vbase = {0: VL16, 1: VB64, 2: VB128}
        fill = list(fill)

        def read(j, t):
            if t == 0 and preread:
                preread(j)
            off = ldsoff(j) + t * KB
            A(f'ds_read_b128 {v(buf + ((j % NB) * NT + t) * 4, 4)}, {v(vbase[off >> 16])} offset:{off & 0xffff}')
            return A.lmark()
        marks = {}
        pre = NB
        while pre * NT > 14:
            pre -= 1
        if npre:
            pre = npre
            A.wait_all(vm=False)
        for j in range(pre):
            for t in range(NT):
                marks[(j, t)] = 0 if npre else read(j, t)
        fper = 1 if len(fill) < (KS - fill0) * (NT - 2) else 2
        nxt = [(j, t) for j in range(pre, KS) for t in range(NT)]
        for j in range(KS):
            if 'lstamp' in OPT and NT == 7 and j % 2 == 0:
                i_ = self.nstamp
                self.nstamp += 1
                A(f's_memtime {s(64 + j, 2)}')
                self.late = getattr(self, 'late', []) + [(64 + j, i_)]
                A.lg_done = max(0, A.lg_done)
            for t in range(NT):
                A.wait(vm=xwait(j) if t == 0 else None, lg=marks[(j, NT - 1 if (NB > 4 and (j, NT - 1) in marks) else min(NT - 1, t | 1) if 'w2' in OPT else t)])
                for mt in range(MT):
                    r = acc + (mt * NT + t) * 4
                    c = '0' if (czero and j == 0) else v(r, 4)
                    A(f'v_mfma_f32_16x16x32_bf16 {v(r, 4)}, {v(buf + ((j % NB) * NT + t) * 4, 4)}, {xreg(mt, j)}, {c}')
                    if mt == 0 and (MT == 2 or (t < NT - 1 if 'oldm1' in OPT else (t in (1, 3) or not nxt))):
                        n0 = len(A.lines)
                        if hook and MT == 2:
                            hook(j, t)
                        room = (2 if MT == 2 else 1) - (len(A.lines) - n0)
                        for _ in range(min(room, fper)):
                            if fill and j >= fill0:
                                A(fill.pop(0))
                if MT == 1 and 'oldm1' not in OPT:
                    for _ in range(2 if t in (0, 2) else 0):
                        if nxt and nxt[0][0] - NB < j:
                            j2, t2 = nxt.pop(0)
                            marks[(j2, t2)] = read(j2, t2)
                elif nxt:
                    j2, t2 = nxt[0]
                    if ((j2 - NB, t2) < (j, t) if 'lag' in OPT else (j2 - NB, t2) <= (j, t)):
                        marks[(j2, t2)] = read(j2, t2)
                        nxt.pop(0)
                if hook and MT == 1:
                    hook(j, t)
        assert not nxt and not fill, (len(fill))
        if 'lstamp' in OPT and NT == 7:
            A('s_waitcnt lgkmcnt(0)')
            for r_, i_ in self.late:
                A(f'v_writelane_b32 v12, {s(r_)}, {i_}')

    def wpre(self, n, NT, buf, ldsoff, j0=0):
        A = self.A
        vbase = {0: VL16, 1: VB64, 2: VB128}
        for j in range(j0, n):
            for t in range(NT):
                off = ldsoff(j) + t * KB
                A(f'ds_read_b128 {v(buf + (j * NT + t) * 4, 4)}, {v(vbase[off >> 16])} offset:{off & 0xffff}')

    def cs_read(self, NT, cs, loc):
        A = self.A
        A(f'v_and_b32 v3, 0x30, {v(VLANE)}')
        A(f'v_add_u32 v3, {loc}, v3')
        for t in range(NT):
            A(f'ds_read_b128 {v(cs + 4 * t, 4)}, v3 offset:{t * 64}')

    def gelu_consts2(self, K, rs, I, ST):
        A = self.A
        A(f'v_mul_f32 {v(K + 2)}, {v(rs)}, {v(rs)}')
        A(f'v_mul_f32 {v(K)}, {f32(G1.GC1)}, {v(rs)}')
        A(f'v_mul_f32 {v(K + 2)}, {v(K + 2)}, {v(rs)}')
        A(f'v_rcp_f32 {v(I)}, {v(rs)}')
        A(f'v_mul_f32 {v(K + 2)}, {f32(G1.GC2)}, {v(K + 2)}')
        A(f'v_mov_b32 {v(K + 1)}, {v(K)}')
        A(f'v_mov_b32 {v(K + 3)}, {v(K + 2)}')
        A(f'v_mov_b32 {v(I + 1)}, {v(I)}')
        A(f'v_mov_b32 {v(ST + 1)}, {v(ST)}')

    def gelu2(self, acc, n, K, I, tmp, out):
        A = self.A
        P = range(0, n, 2)
        for i in P:
            A(f'v_pk_mul_f32 {v(tmp + i, 2)}, {v(acc + i, 2)}, {v(acc + i, 2)}')
        for i in P:
            A(f'v_pk_fma_f32 {v(tmp + i, 2)}, {v(tmp + i, 2)}, {v(K + 2, 2)}, {v(K, 2)}')
        for i in P:
            A(f'v_pk_mul_f32 {v(tmp + i, 2)}, {v(tmp + i, 2)}, {v(acc + i, 2)}')
        for i in range(n):
            A(f'v_exp_f32 {v(tmp + i)}, {v(tmp + i)}')
        for i in P:
            A(f'v_pk_fma_f32 {v(tmp + i, 2)}, {v(tmp + i, 2)}, {v(I, 2)}, {v(I, 2)}')
        for i in range(n):
            A(f'v_rcp_f32 {v(tmp + i)}, {v(tmp + i)}')
        for i in P:
            A(f'v_pk_mul_f32 {v(tmp + i, 2)}, {v(tmp + i, 2)}, {v(acc + i, 2)}')
        if out is not None:
            self.pack(out, tmp, n // 2)

    def ln_fix(self, acc, n, cs, mean):
        for i in range(0, n, 2):
            self.A(f'v_pk_fma_f32 {v(acc + i, 2)}, {v(cs + i, 2)}, {v(mean, 2)}, {v(acc + i, 2)} neg_lo:[0,1,0] neg_hi:[0,1,0]')

    def ld_stats(self, dst, soff, ioff=0):
        self.ldx(v(dst, 2), soff, ioff, voff=VSTL, w=2)
        return self.ldx(v(dst + 2, 2), soff, ioff + 128, voff=VSTL, w=2)

    def stats_calc(self, acc, n, tmp):
        A = self.A
        S, Q = tmp, tmp + 2
        A(f'v_pk_add_f32 {v(S, 2)}, {v(acc, 2)}, {v(acc + 2, 2)}')
        A(f'v_pk_mul_f32 {v(Q, 2)}, {v(acc, 2)}, {v(acc, 2)}')
        for i in range(2, n, 2):
            if i >= 4:
                A(f'v_pk_add_f32 {v(S, 2)}, {v(S, 2)}, {v(acc + i, 2)}')
            A(f'v_pk_fma_f32 {v(Q, 2)}, {v(acc + i, 2)}, {v(acc + i, 2)}, {v(Q, 2)}')
        A(f'v_add_f32 {v(S)}, {v(S)}, {v(S + 1)}')
        A(f'v_add_f32 {v(S + 1)}, {v(Q)}, {v(Q + 1)}')
        Q = S + 1
        A(f'v_permlane32_swap_b32 {v(S)}, {v(Q)}')
        A(f'v_add_f32 {v(S)}, {v(S)}, {v(Q)}')
        A(f'v_mov_b32 {v(Q)}, {v(S)}')
        A(f'v_permlane16_swap_b32 {v(S)}, {v(Q)}')
        A(f'v_add_f32 {v(S)}, {v(S)}, {v(Q)}')
        A(f'v_mov_b32 {v(Q)}, {v(S)}')
        A(f'v_permlane32_swap_b32 {v(S)}, {v(Q)}')

    def store_tile(self, acc, tmp, DST, STD, nextpair=False, fast=sFAST):
        A = self.A
        self.pack(tmp, acc, 8)
        add = PSTRIDE if nextpair else 0
        A(f's_add_u32 s26, {s(sTILE)}, {DST + add}')
        A(f's_add_u32 s27, {s(sSTP)}, {STD + add}')
        self.stores([(v(tmp, 4), 26, 0, VL16, 4, None), (v(tmp + 4, 4), 26, KB, VL16, 4, None)], fast)
        self.stats_calc(acc, 16, tmp + 8)
        self.stores([(v(tmp + 8, 2), 27, 0, VSTL, 2, '0xffff')], fast)

    def big_pre(self, XIN, STIN):
        A = self.A
        A(f's_lshl_b32 s26, {s(sT0)}, 14')
        A(f's_add_u32 s26, s26, {s(sP)}')
        A(f's_add_u32 s26, s26, {XIN}')
        A(f's_add_u32 s27, s26, {16 * KB}')
        A(f's_lshl_b32 s28, {s(sT0)}, 10')
        A(f's_add_u32 s28, s28, {s(sP)}')
        A(f's_add_u32 s28, s28, {STIN}')
        A(f's_lshl_b32 s29, {s(sT0)}, {CSH}')
        A(f's_add_u32 s29, s29, {s(sC)}')

    def big_main(self, NT, acc, buf, XR, ST, fill, lmap, late_j, late_id, xsig, fsig):
        A = self.A
        D, RING = self.DB, 8
        sX, sX2 = 26, 27
        xm = {}

        def xload(j, mt):
            if 'noxl' in OPT and j >= D:
                xm[j] = A.vmark()
                return
            xm[j] = self.ldx(v(XR + ((j % RING) * 2 + mt) * 4, 4), sX2 if mt else sX, (j & 3) * KB)
            if (j & 3) == 3 and j < 15:
                r = sX2 if mt else sX
                A(f's_add_u32 {s(r)}, {s(r)}, {4 * KB}')
        for j in range(D):
            xload(j, 0)
            xload(j, 1)
            if j == 1:
                self.ld_stats(ST, 28)
                self.ld_stats(ST + 4, 28, KB)
        self.pstamp()

        def hook(j, t):
            if j == 0 and t == 0:
                self.sig(L_PS, 2)
            if j + D < 16:
                if t == 1:
                    xload(j + D, 0)
                if t == 4:
                    xload(j + D, 1)
                    if j + D == 15 and xsig is not None:
                        self.sig(L_CF, xsig)

        specs = [(late_j, L_CR, late_id, 252, False, None)]
        preread = self.acheck(specs)
        self.gemm(16, 2, NT, acc, lambda mt, j: v(XR + ((j % RING) * 2 + mt) * 4, 4), lmap,
                  buf, 2, lambda j: xm[j], hook, preread, fill=fill, czero=True, fill0=2, npre=2)
        if fsig is not None:
            self.sig(L_CF, fsig)
        self.pstamp()

    def small_main(self, KS, acc, buf, XR, RING, D, src, lmap, fill=(), czero=False, extra=None, hook2=None, preread=None,
                   xsig=None, fsig=None, stagger=0, NB=4):
        A = self.A
        xm = {}

        def xload(j):
            so, io, vo = src(j)
            xm[j] = self.ldx(v(XR + (j % RING) * 4, 4), so, io, voff=vo)
            if (j & 3) == 3 and j < KS - 1:
                A(f's_add_u32 {s(so)}, {s(so)}, {4 * KB}')
                if KS == 56 and 'rot4' in OPT:
                    A(f's_cmp_eq_u32 {s(so)}, s28')
                    A(f's_cselect_b32 {s(so)}, s27, {s(so)}')
        if stagger and 'stag' in OPT:
            Ls = A.newlabel('stg')
            A(f's_cmp_eq_u32 {s(SW)}, 0')
            A(f's_cbranch_scc1 {Ls}')
            self.lwait(L_ST - 4, stagger, 44, single=True, own=True)
            A.label(Ls)
        for j in range(D):
            xload(j)
            if j == 1 and extra:
                extra()
            if j == self.SG and stagger and 'stag' in OPT:
                self.sig(L_ST, stagger)
        if D == KS and xsig is not None:
            self.sig(L_CF, xsig)
        self.pstamp()

        def hook(j, t):
            if t == 1 and j + D < KS:
                xload(j + D)
                if j + D == KS - 1 and xsig is not None:
                    self.sig(L_CF, xsig)
            if hook2:
                hook2(j, t)
        self.gemm(KS, 1, 4, acc, lambda mt, j: v(XR + 4 * (j % RING), 4), lmap, buf, NB,
                  lambda j: xm[j], hook, preread, fill=fill, czero=czero, fill0=2, npre=NB)
        if fsig is not None:
            self.sig(L_CF, fsig)
        self.pstamp()

    def stage_qkv(self):
        A = self.A
        ST, CC, acc, buf = 32, 40, 64, 96
        SCR, RSZ = 96 * KB, 336

        def f():
            for mt in range(2):
                self.stats_consume(ST + 4 * mt, 3)
                self.rstd(ST + 4 * mt + 2, ST + 4 * mt + 1)
                self.A(f'v_mov_b32 {v(ST + 4 * mt + 1)}, {v(ST + 4 * mt)}')
                self.A(f'v_mul_f32 {v(CC + 2 * mt)}, {f32(LOG2E)}, {v(ST + 4 * mt + 2)}')
                self.A(f'v_mov_b32 {v(ST + 4 * mt + 3)}, {v(ST + 4 * mt + 2)}')
            self.A(f'v_permlane32_swap_b32 {v(CC)}, {v(CC + 2)}')
            self.A(f'v_mov_b32 {v(CC + 1)}, {v(CC)}')
        Lepi = A.newlabel('qepi')
        self.qkv_first(f, acc, buf, ST, SCR, RSZ)
        A(f's_branch {Lepi}')
        A.label(self.Lp)
        A.label('.Lst_q')
        self.nstamp = 0
        if self.prof:
            A('s_memrealtime s[60:61]')
            A('s_waitcnt lgkmcnt(0)')
            A('v_writelane_b32 v12, s60, 63')
        self.pstamp()
        self.big_pre(X0, ST0)
        self.qkv_addr(SCR, RSZ)
        self.lwait(L_CR, 1, 60)
        A(f's_add_u32 s29, s29, {C_X}')
        self.poll(29, VP2, 16, during=lambda: self.wpre(2, 4, buf, map_kv))
        self.pstamp()
        D = self.DQ
        xm = {}

        def xload(j, mt):
            xm[j] = self.ldx(v(xq(mt, j), 4), 26 + mt, (j & 3) * KB)
            if (j & 3) == 3 and j < 15:
                A(f's_add_u32 {s(26 + mt)}, {s(26 + mt)}, {4 * KB}')
        for j in range(D):
            xload(j, 0)
            xload(j, 1)
            if j == 1:
                self.ld_stats(ST, 28)
                self.ld_stats(ST + 4, 28, KB)
        self.pstamp()

        def hook(j, t):
            if j + D < 16 and t in (0, 2):
                xload(j + D, t >> 1)
            self.kv_cs(j, t, buf)
        self.gemm(16, 2, 4, acc, lambda mt, j: v(xq(mt, j), 4), map_kv, buf, 2, lambda j: xm[j], hook, None,
                  fill=self.rec(f), czero=True, fill0=2, npre=2)
        self.sig(L_CF, 3)
        self.pstamp()
        A.label(Lepi)
        A('s_waitcnt lgkmcnt(1)')
        A.lg_done = max(A.lg_done, A.lg - 1)
        A('s_nop 3')
        self.qkv_epi(ST, CC, acc, buf, SCR, RSZ)

    def kv_cs(self, j, t, buf):
        if j == 15:
            self.A(f'ds_read_b128 {v(buf + 4 * t, 4)}, v13 offset:{t * 64}')

    def qkv_first(self, f, acc, buf, ST, SCR, RSZ):
        A = self.A
        PB = [128, 160, 192, 224]
        self.nstamp = 0
        if self.prof:
            A('s_memrealtime s[60:61]')
            A('s_waitcnt lgkmcnt(0)')
            A('v_writelane_b32 v12, s60, 63')
        self.pstamp()
        WA, RA = 64, 68
        A(f's_mul_i32 s34, {s(SW)}, {32 * RSZ}')
        A(f's_add_u32 s34, s34, {SCR}')
        A(f'v_lshrrev_b32 v3, 4, {v(VLANE)}')
        A(f'v_and_b32 v76, 15, {v(VLANE)}')
        A(f'v_xor_b32 v77, v76, v3')
        A(f'v_lshlrev_b32 v77, 4, v77')
        A(f'v_lshl_add_u32 v77, v3, 8, v77')
        A(f'v_add_u32 v77, s34, v77')
        for n in range(4):
            A(f'v_xor_b32 {v(WA + n)}, {n * 64}, v77')
        A(f'v_lshrrev_b32 v77, 1, v3')
        A(f'v_xor_b32 v77, v77, v76')
        A(f'v_lshlrev_b32 v77, 4, v77')
        A(f'v_lshl_add_u32 v77, v76, 8, v77')
        A(f'v_and_b32 v3, 1, v3')
        A(f'v_lshl_add_u32 v77, v3, 3, v77')
        A(f'v_add_u32 v77, s34, v77')
        for m in range(8):
            A(f'v_xor_b32 {v(RA + m)}, {m * 32}, v77')
        for i in range(4):
            A(f'v_mov_b32 {v(104 + i)}, 0x3f803f80')

        def stats(p):
            b = PB[p >> 1] + 16 * (p & 1)
            S = 108 + 8 * (p & 1)
            for i in range(4):
                z = p < 2 and i == 0
                A(f'v_mfma_f32_16x16x32_bf16 {v(S, 4)}, v[104:107], {v(b + 4 * i, 4)}, {"0" if z else v(S, 4)}')
                A(f'v_mfma_f32_16x16x32_bf16 {v(S + 4, 4)}, {v(b + 4 * i, 4)}, {v(b + 4 * i, 4)}, {"0" if z else v(S + 4, 4)}')

        if 'plate' not in OPT:
            L2 = A.newlabel('np1')
            A(f's_cmp_lg_u32 {s(SW)}, 2')
            A(f's_cbranch_scc1 {L2}')
            vm0 = A.vm
            A(f's_mov_b32 s100, {100 * KB + 2 * 32 * 336}')
            A(f's_mov_b32 s101, s2')
            self.piece_decode(101)
            A.vm = vm0
            A.label(L2)
        for p in range(8):
            b = PB[p >> 1] + 16 * (p & 1)
            A.wait(vm=self.x0m[p], lg=A.lmark())
            for n in range(4):
                A(f'ds_write_b128 {v(WA + n)}, {v(b + 4 * n, 4)} offset:{n * 1024}')
            for m in range(8):
                A(f'ds_read_b64 {v(b + 2 * m, 2)}, {v(RA + m)}')
            if p:
                stats(p - 1)
            if (p & 1) and (p >> 1) + self.XPRE < 4:
                self.x0load((p >> 1) + self.XPRE)
        A.wait_all(vm=False)
        stats(7)
        A(f'v_and_b32 v3, 3, {v(VLANE)}')
        for i in range(1, 4):
            A(f'v_cmp_eq_u32 {s(26 + 2 * i, 2)}, {i}, v3')
        A(f'v_bfe_u32 v3, {v(VLANE)}, 2, 2')
        A(f'v_lshrrev_b32 v20, 4, {v(VLANE)}')
        A(f'v_cmp_eq_u32 vcc, v3, v20')
        for mt in range(2):
            Q = 112 + 8 * mt
            for i in range(1, 4):
                A(f'v_cndmask_b32 {v(Q)}, {v(Q)}, {v(Q + i)}, {s(26 + 2 * i, 2)}')
            A(f'v_cndmask_b32 {v(ST + 4 * mt)}, 0, {v(Q - 4)}, vcc')
            A(f'v_cndmask_b32 {v(ST + 4 * mt + 1)}, 0, {v(Q)}, vcc')
            A(f'v_mov_b32 {v(ST + 4 * mt + 2)}, 0')
            A(f'v_mov_b32 {v(ST + 4 * mt + 3)}, 0')
        f()
        self.pstamp()
        L2 = A.newlabel('np2')
        A(f's_cmp_lg_u32 {s(SW)}, 2')
        A(f's_cbranch_scc1 {L2}')
        vmd = A.vm_done
        if 'plate' in OPT:
            A(f's_mov_b32 s100, {96 * KB + 2 * 32 * 336}')
            A(f's_mov_b32 s101, s2')
            self.piece_decode(101)
        A('s_waitcnt vmcnt(0)')
        self.piece_finish()
        A.vm_done = vmd
        A.label(L2)
        Ln = A.newlabel('nochk')
        A(f's_cmp_lg_u32 {s(SW)}, 0')
        A(f's_cbranch_scc1 {Ln}')
        A('s_mov_b32 s31, 0')
        vmd = A.vm_done
        self.poll(31, VL4, 1, target=32, mode='load', srd=SRDD)
        A.vm_done = vmd
        A(f'ds_write_b32 {v(VPERM)}, {v(VONE)} offset:{L_INIT - L_CF}')
        A('s_getreg_b32 s30, hwreg(HW_REG_XCC_ID)')
        A('s_and_b32 s30, s30, 15')
        A('s_mul_i32 s31, s30, s30')
        A('s_lshl_b32 s31, s31, 16')
        A('s_lshl_b32 s30, s30, 7')
        A('s_add_u32 s30, s30, s31')
        A('s_add_u32 s58, s30, 1')
        A('s_and_b32 s59, s2, 7')
        A('s_lshl_b32 s59, s59, 7')
        A(f's_add_u32 s59, s59, {XW}')
        A('v_mov_b32 v3, s58')
        A('s_mov_b64 exec, 1')
        A(f'buffer_atomic_add v3, {v(VL4)}, {s(SRD, 4)}, s59 offen')
        A('s_mov_b64 exec, -1')
        A.label(Ln)
        A(f's_mov_b64 {s(SRD2, 2)}, {s(PA, 2)}')
        A(f's_mov_b32 {s(SRD2 + 2)}, {2048 * 512 * 2}')
        A(f'v_and_b32 v3, 15, {v(VLANE)}')
        A(f'v_lshlrev_b32 v62, 10, v3')
        A(f'v_lshrrev_b32 v3, 4, {v(VLANE)}')
        A(f'v_lshl_add_u32 v62, v3, 3, v62')
        A(f's_lshl_b32 s28, {s(sT)}, 14')
        A(f's_lshl_b32 s29, {s(sCG8)}, 7')
        A(f's_add_u32 s28, s28, s29')
        self.qkv_addr(SCR, RSZ)

        def cnt2():
            L2 = A.newlabel('nc2')
            A(f's_cmp_lg_u32 {s(SW)}, 2')
            A(f's_cbranch_scc1 {L2}')
            lg, ld = A.lg, A.lg_done
            self.lwait(L_INIT, 1, 20, single=True)
            A.lg, A.lg_done = lg, ld
            A('s_waitcnt vmcnt(0)')
            self.count(99)
            A.vm -= 1
            A.label(L2)
        self.lwait(L_CR, 1, 20, sleep=1)
        if 'ed1' in OPT:
            cnt2()
        if 'eq' in OPT:
            A('s_setprio 2')
        self.mark(1)
        self.pstamp()
        for t in range(4):
            A(f'buffer_load_dwordx2 {v(RES + 8 + 2 * t, 2)}, v62, {s(SRD2, 4)}, s28 offen offset:{32 * t}')
        if 'wt' in OPT or 'wtg' in OPT:
            A(f's_lshl_b32 s30, {s(sT0)}, 14')
            A(f's_lshl_b32 s31, {s(sCG16)}, 10')
            A(f's_add_u32 s30, s30, s31')
            A(f's_add_u32 s30, s30, {OB}')
            A(f's_add_u32 s31, {s(sTILE)}, {XA}')
            A(f's_add_u32 s32, {s(sSTP)}, {STA}')
            A(f'v_and_b32 v47, 7, {v(VLANE)}')
            A(f'v_lshlrev_b32 v47, 7, v47')
            A(f'v_bfe_u32 v48, {v(VLANE)}, 3, 1')
            A(f'v_lshl_add_u32 v49, v48, 14, v47')
            A(f'v_add_u32 v49, s30, v49')
            A(f'v_lshl_add_u32 v47, v48, 10, v47')
            A(f'v_add_u32 v47, s31, v47')
            A(f'v_cmp_gt_u32 vcc, 16, {v(VLANE)}')
            A(f'v_cndmask_b32 v47, v49, v47, vcc')
            A(f'v_writelane_b32 v47, s32, 32')
            A('s_mov_b32 exec_hi, 1')
            A(f'buffer_load_dword v0, v47, {s(SRD, 4)}, 0 offen')
            A('s_mov_b32 exec_hi, -1')
        if 'wtg' in OPT:
            A(f's_mul_i32 s30, {s(sT0)}, {56 * KB}')
            A(f's_add_u32 s30, s30, {G}')
            A(f's_mul_i32 s31, {s(sCG16)}, {3 * KB}')
            A(f's_lshl_b32 s32, {s(sCG16)}, 9')
            A(f's_add_u32 s32, s32, {48 * KB - 24 * 128}')
            A(f'v_and_b32 v47, 31, {v(VLANE)}')
            A(f'v_cmp_gt_u32 vcc, 24, v47')
            A(f'v_mov_b32 v48, s32')
            A(f'v_mov_b32 v49, s31')
            A(f'v_cndmask_b32 v48, v48, v49, vcc')
            A(f'v_lshl_add_u32 v47, v47, 7, v48')
            A(f'v_lshrrev_b32 v48, 5, {v(VLANE)}')
            A(f'v_mul_u32_u24 v48, {56 * KB}, v48')
            A(f'v_add_u32 v47, v47, v48')
            A('s_mov_b32 exec_lo, 0x0fffffff')
            A('s_mov_b32 exec_hi, 0x0fffffff')
            A(f'buffer_load_dword v0, v47, {s(SRD, 4)}, s30 offen')
            A('s_mov_b64 exec, -1')
        A.vm_done = A.vm
        self.gemm(16, 2, 4, acc, lambda mt, j: v(xq(mt, j), 4), map_kv, buf, 2, lambda j: None,
                  lambda j, t: self.kv_cs(j, t, buf), self.acheck([(15, L_CS, 1, 20, True, None)]), czero=True)
        if 'ed1' not in OPT:
            cnt2()
        self.sig(L_CF, 3)
        self.pstamp()

    def qkv_addr(self, SCR, RSZ):
        A = self.A
        A(f'v_and_b32 v13, 0x30, {v(VLANE)}')
        A(f'v_add_u32 v13, {L_CSQ}, v13')
        A(f'v_lshrrev_b32 v60, 4, {v(VLANE)}')
        A(f'v_and_b32 v61, 15, {v(VLANE)}')
        A(f's_mul_i32 s30, {s(SW)}, {32 * RSZ}')
        A(f's_add_u32 s30, s30, {SCR}')
        A(f'v_mul_u32_u24 v45, {RSZ}, v61')
        A(f'v_add_u32 v45, s30, v45')
        A(f'v_lshl_add_u32 v46, v60, 3, v45')
        A(f'v_lshl_add_u32 v44, v60, 4, v45')
        A(f'v_and_b32 v3, 1, v60')
        A(f'v_lshl_add_u32 v45, v3, 6, v45')
        A(f'v_lshrrev_b32 v3, 1, v60')
        A(f'v_mul_u32_u24 v3, {16 * RSZ}, v3')
        A(f'v_add_u32 v45, v45, v3')
        A(f's_lshl_b32 s42, {s(sCG16)}, 12')
        A(f's_add_u32 s42, s42, {s(sZ)}')
        A(f's_add_u32 s42, s42, {KV}')
        A(f's_lshl_b32 s43, {s(sCG16)}, 8')
        A(f's_add_u32 s43, s43, {s(sZ)}')
        A(f's_add_u32 s43, s43, {Z}')
        A(f'v_lshlrev_b32 v50, 5, v60')
        for i in range(4):
            A(f'v_mov_b32 {v(56 + i)}, {f32(1e-6)}')

    def qkv_epi(self, ST, CC, acc, buf, SCR, RSZ):
        A = self.A
        EP, EM = 96, 112

        def softmax(P0, P1, M, off):
            cc = CC
            R = lambda i: (P0 + i) if i < 8 else (P1 + i - 8)
            for op, d in (('max', M), ('min', M + 2)):
                A(f'v_{op}3_f32 {v(d)}, {v(R(0))}, {v(R(1))}, {v(R(2))}')
                for i in range(3, 15, 2):
                    A(f'v_{op}3_f32 {v(d)}, {v(d)}, {v(R(i))}, {v(R(i + 1))}')
                A(f'v_{op}_f32 {v(d)}, {v(d)}, {v(R(15))}')
            for d in (M, M + 2):
                A(f'v_mul_f32 {v(d + 1)}, {v(d)}, {v(cc)}')
                A(f'v_mul_f32 {v(d)}, {v(d)}, {v(cc)}')
            for i in range(0, 16, 2):
                A(f'v_pk_fma_f32 {v(EP + i, 2)}, {v(R(i), 2)}, {v(cc, 2)}, {v(M, 2)} neg_lo:[0,0,1] neg_hi:[0,0,1]')
                A(f'v_pk_fma_f32 {v(EM + i, 2)}, {v(R(i), 2)}, {v(cc, 2)}, {v(M + 2, 2)} neg_lo:[0,1,0] neg_hi:[0,1,0]')
            for i in range(32):
                A(f'v_exp_f32 {v(EP + i)}, {v(EP + i)}')
            for E, d in ((EP, M + 4), (EM, M + 6)):
                A(f'v_pk_add_f32 {v(d, 2)}, {v(E, 2)}, {v(E + 2, 2)}')
                for i in range(4, 16, 2):
                    A(f'v_pk_add_f32 {v(d, 2)}, {v(d, 2)}, {v(E + i, 2)}')
            A(f'v_add_f32 {v(M + 4)}, {v(M + 4)}, {v(M + 5)}')
            A(f'v_add_f32 {v(M + 6)}, {v(M + 6)}, {v(M + 7)}')
            A(f'v_rcp_f32 {v(M + 4)}, {v(M + 4)}')
            A(f'v_rcp_f32 {v(M + 6)}, {v(M + 6)}')
            A(f'v_mov_b32 {v(M + 5)}, {v(M + 4)}')
            A(f'v_mov_b32 {v(M + 7)}, {v(M + 6)}')
            for t in range(4):
                for i in (4 * t, 4 * t + 2):
                    A(f'v_pk_mul_f32 {v(EP + i, 2)}, {v(EP + i, 2)}, {v(M + 4, 2)}')
                    A(f'v_pk_mul_f32 {v(EM + i, 2)}, {v(EM + i, 2)}, {v(M + 6, 2)}')
                self.pack(R(4 * t), EP + 4 * t, 2)
                self.pack(R(4 * t) + 2, EM + 4 * t, 2)
                if 'xb' in OPT:
                    A('s_nop 7')
                A(f'ds_write_b128 v45, {v(R(4 * t), 4)} offset:{off + 16 * t}')
                if 'xc' in OPT:
                    A('s_nop 7')
        for mt in range(2):
            self.ln_fix(acc + 16 * mt, 16, buf, ST + 4 * mt)
        for i in range(8):
            A(f'v_permlane32_swap_b32 {v(acc + i)}, {v(acc + 16 + i)}')
        for mt in range(2):
            for hh in range(2):
                r = acc + 16 * mt + 8 + 4 * hh
                for i in (0, 2):
                    A(f'v_pk_mul_f32 {v(r + i, 2)}, {v(r + i, 2)}, {v(ST + 4 * mt + 2, 2)}')
                d = acc + 24 + 4 * mt + 2 * hh if mt == 0 else r
                d = r
                self.pack(d, r, 2)
                A(f'ds_write_b64 v46, {v(d, 2)} offset:{mt * 16 * RSZ + 256 + 32 * hh}')
        softmax(acc, acc + 16, acc + 8, 128)
        self.pstamp()
        self.sig(L_CB, 1)
        if 'cd1' in OPT:
            Ld = A.newlabel('cd1')
            A(f's_cmp_lg_u32 {s(sPAIR)}, 0')
            A(f's_cbranch_scc1 {Ld}')
            self.lwait(L_INIT, 1, 60, single=True)
            A(f's_lshl_b32 s30, {s(sCG8)}, 7')
            A(f's_add_u32 s30, s30, {PC}')
            A(f'v_lshlrev_b32 v47, 10, {v(VLANE)}')
            self.poll(30, 47, 2, target=16, mode='load')
            A.label(Ld)
            self.lwait(L_CF, 3, 60)
            A(f's_lshl_b32 s30, {s(sCG8)}, 16')
            A(f's_lshl_b32 s31, {s(SW)}, 12')
            A(f's_add_u32 s30, s30, s31')
            assert map_wo(4) == 0 and map_w1(0) == 48 * KB
            for c in range(4):
                A(f's_add_u32 m0, s31, {c * 16 * KB}')
                A(f's_add_u32 s32, s30, {WO + (c + 1) * 16 * KB if c < 3 else W1}')
                for t in range(4):
                    self.dma(32, t * KB)
        self.lwait(L_CR, 2, 60)
        self.lwait(L_CS, 2, 60, absv=True)
        for t in range(2):
            A(f'ds_read_b128 {v(88 + 4 * t, 4)}, v13 offset:{(4 + t) * 64}')
        self.gemm(16, 2, 2, 72, lambda mt, j: v(xq(mt, j), 4), map_q, buf, 4, lambda j: None, czero=True)
        self.pstamp()
        if 'xd' in OPT:
            A('s_nop 15')
            A('s_nop 15')
        for mt in range(2):
            self.ln_fix(72 + 8 * mt, 8, 88, ST + 4 * mt)
        for i in range(8):
            A(f'v_permlane32_swap_b32 {v(72 + i)}, {v(80 + i)}')
        softmax(72, 80, 64, 0)
        if 'dump' in OPT:
            for i in range(6):
                A(f'v_mov_b32 {v(176 + i)}, {v(64 + i)}')
            A('v_mov_b32 v182, v88')
            A('v_mov_b32 v183, v95')
        PQ = 160
        if 'xa' in OPT:
            A.wait_all(vm=False)
        for mt in range(2):
            for hh in range(2):
                A(f'ds_read_b128 {v(PQ + 8 * mt + 4 * hh, 4)}, v44 offset:{mt * 16 * RSZ + 64 * hh}')
        A(f's_lshl_b32 s30, {s(sCG16)}, {CSH + 2}')
        A(f's_add_u32 s30, s30, {s(sC)}')
        A(f's_add_u32 s30, s30, {C_KV}')
        A(f'v_lshlrev_b32 v47, {CSH}, {v(VLANE)}')
        A(f's_lshl_b32 s26, {s(sT0)}, 14')
        A(f's_lshl_b32 s27, {s(sCG16)}, 10')
        A(f's_add_u32 s26, s26, s27')
        A(f's_add_u32 s26, s26, {s(sP)}')
        A(f's_add_u32 s26, s26, {OB}')
        A(f's_add_u32 s27, s26, {16 * KB}')
        if 'd2early' in OPT:
            self.sig(L_CF, 4)
        if 'cd1' in OPT:
            A.wait_all(lg=False)
            self.sig(L_D1, 1)
        self.pstamp()
        Lw, Lg, Lx = A.newlabel('kvw'), A.newlabel('kvg'), A.newlabel('kvx')
        A(f's_cmp_lg_u32 {s(SW)}, 0')
        A(f's_cbranch_scc1 {Lw}')
        self.lwait(L_KD, 1, 252)
        self.poll(30, 47, 4, target=16, mode='atomic')
        A.label(Lg)
        self.sig(L_GO, 1)
        A(f's_branch {Lx}')
        A.label(Lw)
        self.lwait(L_GO, 1, 252, sleep=0, single=True)
        A.label(Lx)
        self.pstamp()
        Lm = A.newlabel('mode')
        A(f's_cmp_eq_u32 {s(sPAIR)}, 0')
        A(f's_cbranch_scc0 {Lm}')
        A('s_waitcnt vmcnt(0)')
        self.unpack(RES, RES + 8, 8)
        self.lwait(L_MODE, 1, 252, single=True)
        A(f'v_readfirstlane_b32 {s(sFAST)}, v252')
        A(f's_sub_u32 {s(sFAST)}, {s(sFAST)}, 1')
        A.label(Lm)
        KF, ZF = 64, 80
        for i in range(16):
            self.ldx(v(KF + i), 42, 256 * i, voff=VL4, w=1, sc=' sc1')
        for hh in range(2):
            for u in range(2):
                self.ldx(v(ZF + 8 * hh + 4 * u, 4), 43, 128 * hh + 16 * u, voff=50, sc=' sc1')
        A.wait(vm=A.vmark() - 4)
        self.pack(96, KF, 8)
        A('s_waitcnt vmcnt(0) lgkmcnt(0)')
        A.vm_done, A.lg_done = A.vm, A.lg
        self.pack(104, ZF, 8)
        ND = 112
        for mt in range(2):
            for hh in range(2):
                d = ND + 16 * mt + 8 * hh
                A(f'v_mfma_f32_16x16x32_bf16 {v(d + 4, 4)}, {v(104 + 4 * hh, 4)}, {v(PQ + 8 * mt + 4 * hh, 4)}, v[56:59]')
                A(f'v_mfma_f32_16x16x32_bf16 {v(d, 4)}, {v(96 + 4 * hh, 4)}, {v(PQ + 8 * mt + 4 * hh, 4)}, 0')
        for q in range(4):
            A(f'v_rcp_f32 {v(ND + 8 * q + 4)}, {v(ND + 8 * q + 4)}')
        for q in range(4):
            A(f'v_mov_b32 {v(ND + 8 * q + 5)}, {v(ND + 8 * q + 4)}')
        for q in range(4):
            d = ND + 8 * q
            for i in (0, 2):
                A(f'v_pk_mul_f32 {v(d + i, 2)}, {v(d + i, 2)}, {v(d + 4, 2)}')
            self.pack(64 + 2 * q, d, 2)
        self.stores([(v(64, 4), 26, 0, VL16, 4, None), (v(68, 4), 27, 0, VL16, 4, None)], sFAST if ('wt' in OPT or 'wtg' in OPT) else sFG)
        if 'dump' in OPT:
            Ld = A.newlabel('dmp')
            A(f's_cmp_lg_u32 {s(sPAIR)}, 0')
            A(f's_cbranch_scc1 {Ld}')
            A(f's_lshl_b32 s30, s2, 2')
            A(f's_add_u32 s30, s30, {s(SW)}')
            A(f's_lshl_b32 s30, s30, 14')
            A(f's_add_u32 s30, s30, {DBG2}')
            for r in (160, 164, 168, 172, 96, 100, 104, 108, 64, 68, 32, 36, 40, 176, 180):
                A(f'buffer_store_dwordx4 {v(r, 4)}, {v(VL16)}, {s(SRD, 4)}, s30 offen')
                A('s_add_u32 s30, s30, 1024')
            A.label(Ld)
        self.flag(sF16, C_O - CB, two=True)

    def small_pre(self, XIN, mul=16):
        A = self.A
        A(f's_mul_i32 s26, {s(sT)}, {mul * KB}')
        A(f's_add_u32 s26, s26, {s(sP)}')
        A(f's_add_u32 s26, s26, {XIN}')
        A(f's_lshl_b32 s29, {s(sT)}, {CSH}')
        A(f's_add_u32 s29, s29, {s(sC)}')
        A(f's_add_u32 s29, s29, {CB}')

    def stage_wo(self):
        A = self.A
        XR, buf = 64, 128
        self.small_pre(OB)
        self.lwait(L_CR, 3, 44)
        if 'cd1' in OPT:
            self.lwait(L_D1, 1, 44)
        self.wpre(self.SP - 1, 4, buf, map_wo)
        self.poll(29, VL4, 16, ioff=C_O - CB, during=lambda: self.wpre(8, 4, buf, map_wo, self.SP - 1))
        self.mark(2)
        self.pstamp()
        self.small_main(16, RES, buf, XR, 16, self.DS, lambda j: (26, (j & 3) * KB, VL16), map_wo, stagger=1, NB=8)
        self.store_tile(RES, XR, XA, STA, fast=sFAST if ('wt' in OPT or 'wtg' in OPT) else sFG)
        self.flag(sF8, C_XA - CB, pre=lambda: (self.lwait(L_CR, 4, 44), self.wpre(3, 4, buf, map_w1)))

    def stage_w1(self):
        A = self.A
        ST, K, acc, XR, buf, CS = 32, 40, 48, 64, 128, 240
        self.small_pre(XA)
        A(f's_lshl_b32 s27, {s(sT)}, 10')
        A(f's_add_u32 s27, s27, {STA}')
        self.lwait(L_CS, 4, 44, absv=True)
        self.cs_read(4, CS, L_CS1)
        self.wpre(self.SP - 1, 4, buf, map_w1, 3)
        self.poll(29, VL4, 8, ioff=C_XA - CB, during=lambda: self.wpre(7, 4, buf, map_w1, self.SP - 1))
        self.pstamp()

        def f():
            A = self.A
            self.stats_consume(ST, 3)
            self.rstd(VMR + 1, ST + 1)
            A(f'v_mul_f32 {v(VMR)}, {v(ST)}, {v(VMR + 1)}')
            A(f'v_mul_f32 v38, {v(VMR + 1)}, {v(VMR + 1)}')
            A(f'v_mul_f32 v38, v38, {v(ST + 1)}')
            self.rstd(38, 38)
            A(f'v_mul_f32 v38, v38, {v(VMR + 1)}')
            self.gelu_consts2(K, 38, ST + 2, ST)
        self.small_main(16, acc, buf, XR, 16, self.DS, lambda j: (26, (j & 3) * KB, VL16), map_w1, fill=self.rec(f), czero=True,
                        extra=lambda: self.ld_stats(ST, 27), xsig=5, NB=7)
        self.sig(L_PS, 1)
        self.ln_fix(acc, 16, CS, ST)
        self.gelu2(acc, 16, K, ST + 2, XR, XR + 16)
        A(f's_add_u32 s26, {s(sTILE)}, {H}')
        Lh, Lh2 = A.newlabel('hh'), A.newlabel('hh2')
        A(f's_cmp_eq_u32 {s(sFH)}, 0')
        A(f's_cbranch_scc1 {Lh}')
        A(f's_add_u32 s27, s26, {s(sHH)}')
        A(f'buffer_store_dwordx4 {v(XR + 16, 4)}, {v(VL16)}, {s(SRD, 4)}, s27 offen sc1')
        A(f'buffer_store_dwordx4 {v(XR + 20, 4)}, {v(VL16)}, {s(SRD, 4)}, s27 offen offset:1024 sc1')
        A.label(Lh)
        self.stores([(v(XR + 16, 4), 26, 0, VL16, 4, None), (v(XR + 20, 4), 26, KB, VL16, 4, None)])
        self.pstamp()
        self.wpre(3, 4, buf, map_w2)
        self.w2_setup()
        A.wait_all(lg=False)
        A(f's_cmp_eq_u32 {s(sFH)}, 0')
        A(f's_cbranch_scc1 {Lh2}')
        A('s_mov_b64 exec, 1')
        A(f'buffer_store_dword {v(VONE)}, {v(VL4)}, {s(SRD, 4)}, {s(sF8)} offen offset:{C_HH - CB} sc1')
        A('s_mov_b64 exec, -1')
        A.label(Lh2)
        self.stores([(v(VONE), sF8, C_H - CB, VP2, 1, '1')])
        self.pstamp()

    def w2_setup(self):
        A = self.A
        acc = 48
        A(f's_lshl_b32 s26, {s(sT)}, 4')
        A(f'v_and_b32 v13, 15, {v(VLANE)}')
        A(f'v_add_u32 v13, s26, v13')
        A(f'v_and_b32 v38, 0x300, {v(VL16)}')
        A(f'v_mov_b32 v39, {OOB}')
        A(f's_movk_i32 s27, 2048')
        A(f's_lshr_b32 s28, {s(sT)}, 4')
        for gi, d in enumerate((-1, 1, -2, 2)):
            A(f'v_add_u32 v36, {d}, v13')
            A(f'v_lshrrev_b32 v37, 8, v36')
            A(f'v_cmp_ne_u32 s[30:31], s28, v37')
            A(f'v_cmp_gt_u32 vcc, s27, v36')
            A(f'v_lshrrev_b32 v3, 4, v36')
            A(f'v_lshl_add_u32 v3, v3, 14, v38')
            A(f'v_and_b32 v36, 15, v36')
            A(f'v_lshl_add_u32 v3, v36, 4, v3')
            A(f'v_add_u32 v37, {s(sHH)}, v3')
            A(f'v_cndmask_b32 v3, v3, v37, s[30:31]')
            A(f'v_cndmask_b32 {v(FREE + gi)}, v39, v3, vcc')
        A(f's_mov_b32 s26, {H}')
        A(f's_and_b32 s30, {s(sT)}, 0x70')
        A(f's_or_b32 s31, {s(sT)}, 15')
        A(f'v_and_b32 v13, 2, {v(VLANE)}')
        A(f'v_add_u32 v13, -1, v13')
        A(f'v_bfe_u32 v38, {v(VLANE)}, 3, 1')
        A(f'v_mul_i32_i24 v13, v13, v38')
        A(f'v_add_u32 v13, {s(sT)}, v13')
        A(f'v_max_i32 v13, s30, v13')
        A(f'v_min_i32 v13, s31, v13')
        A(f'v_and_b32 v38, 0x1c, {v(VL4)}')
        A(f'v_lshl_add_u32 v13, v13, {CSH}, v38')
        A(f's_add_u32 s29, {s(sC)}, {C_H}')
        A(f'v_and_b32 v36, 1, {v(VLANE)}')
        A(f'v_bfe_u32 v37, {v(VLANE)}, 1, 1')
        A(f'v_lshlrev_b32 v36, 2, v36')
        A(f'v_lshl_add_u32 v36, v37, 4, v36')
        for i in range(4):
            A(f'v_mov_b32 {v(40 + i)}, {v(VMR + (i >> 1))}')
        for i in range(0, 16, 2):
            A(f'v_pk_fma_f32 {v(acc + i, 2)}, {v(RES + i, 2)}, v[42:43], v[40:41] neg_lo:[0,0,1] neg_hi:[0,0,1]')

    def stage_w2(self):
        A = self.A
        acc, XR, buf = 48, 64, 128
        self.wpre(self.SP - 1, 4, buf, map_w2, 3)
        self.poll(29, 13, 16, during=lambda: self.wpre(7, 4, buf, map_w2, self.SP - 1))
        pk5 = self.lpeek(L_CR, 44)
        Lr = A.newlabel('rh')
        A(f's_cmp_eq_u32 {s(sRH)}, 0')
        A(f's_cbranch_scc1 {Lr}')
        A(f's_add_u32 s29, {s(sRH)}, {s(sC)}')
        self.poll(29, 36, 4, mode='atomic')
        A.label(Lr)
        self.pstamp()
        self.small_main(16, acc, buf, XR, 16, self.DS, lambda j: (26, (j & 3) * KB, FREE + (j >> 2)), map_w2, xsig=6, fsig=7, NB=7,
                        preread=lambda j: self.ltest(pk5, L_CR, 5, 44) if j == 7 else None)
        self.store_tile(acc, XR, X1, ST1)
        for i in range(0, 16, 2):
            A(f'v_pk_add_f32 {v(RES + i, 2)}, {v(RES + i, 2)}, {v(acc + i, 2)}')
        self.flag(sF8, C_X1 - CB, pre=None if 'nopre' in OPT else self.w3_setup)

    def w3_setup(self):
        A = self.A
        self.big_pre(X1, ST1)
        A(f's_add_u32 s29, s29, {C_X1}')
        A(f's_mul_i32 s30, {s(sT0)}, {56 * KB}')
        A(f's_add_u32 s30, s30, {s(sP)}')
        A(f's_add_u32 s30, s30, {G}')
        A(f's_lshl_b32 s32, {s(sCG16)}, 9')
        A(f's_add_u32 s32, s32, s30')
        A(f's_add_u32 s32, s32, {48 * KB}')
        A(f's_mul_i32 s31, {s(sCG16)}, {3 * KB}')
        A(f's_add_u32 s30, s30, s31')
        A(f's_add_u32 s31, s30, {56 * KB}')
        A(f'v_bfe_u32 v3, {v(VLANE)}, 4, 1')
        A(f'v_mul_u32_u24 v13, {56 * KB}, v3')
        A(f'v_lshrrev_b32 v3, 5, {v(VLANE)}')
        A(f'v_lshl_add_u32 v13, v3, 8, v13')
        A(f'v_and_b32 v3, 0xf0, {v(VL16)}')
        A(f'v_add_u32 v13, v13, v3')
        self.cs_read(7, 224, L_CS3)

    def stage_w3(self):
        A = self.A
        NT = 7
        ST, K, acc, buf, XR, CS = 32, 40, 48, 104, 160, 224
        if 'nopre' in OPT:
            self.w3_setup()
        self.lwait(L_CR, 6, 252)
        self.poll(29, VP2, 16, during=lambda: self.wpre(2, NT, buf, map_w3))
        self.pstamp()

        def f():
            for mt in range(2):
                self.stats_consume(ST + 4 * mt, 3)
                self.rstd(ST + 4 * mt + 2, ST + 4 * mt + 1)
                self.gelu_consts2(K + 4 * mt, ST + 4 * mt + 2, ST + 4 * mt + 2, ST + 4 * mt)
        self.big_main(NT, acc, buf, XR, ST, self.rec(f), map_w3, 13, 7, 8, 9)
        for mt in range(2):
            P = acc + 28 * mt
            self.ln_fix(P, 28, CS, ST + 4 * mt)
            out = 160 + 12 * mt
            self.gelu2(P, 28, K + 4 * mt, ST + 4 * mt + 2, buf, None)
            self.pack(out, buf, 12)
            self.pack(184 + 2 * mt, buf + 24, 2)
            lst = [(v(out + 4 * q, 4), 30 + mt, q * KB, VL16, 4, None) for q in range(3)]
            if mt == 1:
                A('v_permlane16_swap_b32 v184, v186')
                A('v_permlane16_swap_b32 v185, v187')
                lst.append((v(184, 4), 32, 0, 13, 4, None))
            self.stores(lst, sP if 'gsc1' in OPT else sFAST if ('gt' in OPT or 'gt2' in OPT or 'wtg' in OPT) else sFG)
        self.flag(sF16, C_G - CB, two=True)

    def stage_w4(self, Lfinal):
        A = self.A
        XR, buf = 64, 144
        self.small_pre(G, 56)
        if 'rot4' in OPT:
            A(f's_mov_b32 s27, s26')
            A(f's_add_u32 s28, s26, {56 * KB}')
            A(f's_mul_i32 s30, {s(sCG8)}, 7')
            A(f's_and_b32 s30, s30, 0x3c')
            A(f's_lshl_b32 s30, s30, 10')
            A(f's_add_u32 s26, s26, s30')
        self.lwait(L_CR, 8, 252)
        self.wpre(2, 4, buf, map_w4)
        self.poll(29, VL4, 16, ioff=C_G - CB, during=lambda: self.wpre(6, 4, buf, map_w4, 2))
        self.pstamp()

        def hook2(j, t):
            if j == 16 and t == 3:
                self.sig(L_CF, 10)
            if j == self.E11 and t == 3:
                self.sig(L_CF, 11)

        preread = self.acheck([(11, L_CR, 9, 252, False, None), (39, L_CR, 10, 252, False, None)])
        self.small_main(56, RES, buf, XR, 20, self.D4, lambda j: (26, (j & 3) * KB, VL16), map_w4,
                        hook2=hook2, preread=preread, fsig=12, NB=6)
        A(f's_cmp_eq_u32 {s(sPAIR)}, 1')
        A(f's_cbranch_scc1 {Lfinal}')
        self.store_tile(RES, XR, X0, ST0, nextpair=True)
        self.flag(sF8, C_X - CB + CSTRIDE)

    def dump2(self):
        if not self.prof:
            return
        A = self.A
        A(f's_lshl_b32 s55, s2, 2')
        A(f's_add_u32 s55, s55, {s(SW)}')
        A(f's_lshl_b32 s55, s55, 1')
        A(f's_add_u32 s55, s55, {s(sPAIR)}')
        A(f's_lshl_b32 s55, s55, 8')
        A(f's_add_u32 s55, s55, {DBG + 512 * 128}')
        A(f'v_writelane_b32 v12, {s(sFAST)}, 61')
        A(f'buffer_store_dword v12, {v(VL4)}, {s(SRD, 4)}, s55 offen')

    def piece_decode(self, sp):
        A = self.A
        L3, L4, LJ = A.newlabel('pd3'), A.newlabel('pd4'), A.newlabel('pdj')
        A(f's_mov_b32 s98, 0')
        A(f's_cmp_ge_u32 {s(sp)}, 832')
        A(f's_cbranch_scc1 {L4}')
        A(f's_cmp_ge_u32 {s(sp)}, 384')
        A(f's_cbranch_scc1 {L3}')
        A(f's_lshr_b32 s28, {s(sp)}, 7')
        A(f's_and_b32 s29, {s(sp)}, 7')
        A(f's_bfe_u32 s30, {s(sp)}, 0x40003')
        A(f's_cmp_eq_u32 s28, 1')
        A(f's_cselect_b64 {s(SRD2, 2)}, {s(PA + 10, 2)}, {s(PA + 12, 2)}')
        A(f's_cmp_eq_u32 s28, 0')
        A(f's_cselect_b64 {s(SRD2, 2)}, {s(PA + 6, 2)}, {s(SRD2, 2)}')
        A(f's_mov_b32 {s(SRD2 + 2)}, {512 * KB}')
        A(f's_mov_b32 s93, 1024')
        A(f's_lshl_b32 s99, s28, 3')
        A(f's_add_u32 s99, s99, s29')
        A(f's_lshl_b32 s94, s99, 4')
        A(f's_add_u32 s94, s94, s30')
        A(f's_lshl_b32 s94, s94, 12')
        A(f's_add_u32 s94, s94, {WO}')
        for t in range(1, 4):
            A(f's_add_u32 {s(94 + t)}, s94, {t * KB}')
        A(f's_branch {LJ}')
        A.label(L3)
        A(f's_sub_u32 s28, {s(sp)}, 384')
        A(f's_and_b32 s30, s28, 15')
        A(f's_lshr_b32 s29, s28, 4')
        A(f's_mov_b64 {s(SRD2, 2)}, {s(PA + 14, 2)}')
        A(f's_mov_b32 {s(SRD2 + 2)}, {1792 * KB}')
        A(f's_mov_b32 s93, 3584')
        A(f's_add_u32 s99, s29, 24')
        A(f's_mul_i32 s31, s30, {7 * KB}')
        A(f's_add_u32 s31, s31, {W3}')
        for t in range(4):
            A(f's_lshl_b32 s28, s29, 2')
            A(f's_add_u32 s28, s28, {t}')
            A(f's_mul_i32 s32, s28, 43')
            A(f's_lshr_b32 s32, s32, 8')
            A(f's_mul_i32 s33, s32, 6')
            A(f's_sub_u32 s33, s28, s33')
            A(f's_sub_u32 s36, s28, 96')
            A(f's_cmp_ge_u32 s28, 96')
            A(f's_cselect_b32 s32, s36, s32')
            A(f's_cselect_b32 s33, 6, s33')
            A(f's_lshl_b32 s36, s32, 3')
            A(f's_add_u32 s36, s36, s33')
            A(f's_lshl_b32 s36, s36, 4')
            A(f's_add_u32 s36, s36, s30')
            A(f's_lshl_b32 s36, s36, 6')
            A(f's_add_u32 {s(72 + t)}, s36, {CS3G}')
            A(f's_mul_i32 s32, s32, 112')
            A(f's_add_u32 s32, s32, s33')
            A(f's_lshl_b32 s32, s32, 10')
            A(f's_add_u32 {s(94 + t)}, s32, s31')
        A(f's_branch {LJ}')
        A.label(L4)
        A(f's_sub_u32 s28, {s(sp)}, 832')
        A(f's_and_b32 s29, s28, 7')
        A(f's_lshr_b32 s30, s28, 3')
        A(f's_mov_b64 {s(SRD2, 2)}, {s(PA + 16, 2)}')
        A(f's_mov_b32 {s(SRD2 + 2)}, {1792 * KB}')
        A(f's_mov_b32 s93, 1024')
        A(f's_add_u32 s99, s29, 52')
        A(f's_cmp_ge_u32 s30, 48')
        A(f's_cselect_b32 s98, 1, 0')
        A(f's_mul_i32 s94, s29, 56')
        if 'rot4' in OPT:
            A(f's_mul_i32 s31, s29, 7')
            A(f's_and_b32 s31, s31, 0x3c')
            A(f's_sub_u32 s31, s30, s31')
            A(f's_cselect_b32 s32, 56, 0')
            A(f's_add_u32 s31, s31, s32')
            A(f's_add_u32 s94, s94, s31')
        else:
            A(f's_add_u32 s94, s94, s30')
        A(f's_lshl_b32 s94, s94, 12')
        A(f's_add_u32 s94, s94, {W4}')
        for t in range(1, 4):
            A(f's_add_u32 {s(94 + t)}, s94, {t * KB}')
        A.label(LJ)
        A(f's_mul_i32 s92, s30, s93')
        A(f's_lshl_b32 s92, s92, 5')
        A(f's_lshl_b32 s29, s29, 7')
        A(f's_add_u32 s92, s92, s29')
        A(f's_lshl_b32 s99, s99, 7')
        A(f's_add_u32 s99, s99, {PC}')
        A(f'v_lshrrev_b32 v80, 3, {v(VLANE)}')
        A(f'v_mul_u32_u24 v80, s93, v80')
        A(f'v_lshrrev_b32 v81, 1, {v(VLANE)}')
        A(f'v_lshrrev_b32 v82, 4, {v(VLANE)}')
        A(f'v_xor_b32 v81, v81, v82')
        A(f'v_and_b32 v81, 3, v81')
        A(f'v_lshl_add_u32 v80, v81, 5, v80')
        A(f'v_and_b32 v81, 1, {v(VLANE)}')
        A(f'v_lshl_add_u32 v80, v81, 4, v80')
        A(f's_lshl_b32 s93, s93, 3')
        for i in range(4):
            A(f's_add_u32 m0, s100, {i * KB}')
            self.dma(92, 0, voff=80, srd=SRD2)
            if i < 3:
                A(f's_add_u32 s92, s92, s93')
        return A.vmark()

    def piece_finish(self):
        A = self.A
        A(f's_cmp_eq_u32 s98, 1')
        A(f's_cselect_b32 s28, 8, 4')
        A(f's_cselect_b32 s29, 4, 16')
        A(f'v_lshrrev_b32 v81, 4, {v(VLANE)}')
        A(f'v_mul_u32_u24 v81, s28, v81')
        A(f'v_bfe_u32 v82, {v(VLANE)}, 2, 2')
        A(f'v_add_u32 v81, v81, v82')
        A(f'v_and_b32 v82, 3, {v(VLANE)}')
        A(f'v_lshlrev_b32 v82, 3, v82')
        A(f'v_add_u32 v82, s100, v82')
        for u in range(2):
            if u:
                A(f'v_add_u32 v81, s29, v81')
            A(f'v_bfe_u32 v83, v81, 1, 2')
            A(f'v_lshl_add_u32 v83, v83, 5, v82')
            A(f'v_lshl_add_u32 v83, v81, 7, v83')
            for t in range(4):
                A(f'v_xor_b32 v84, {32 * t}, v83')
                A(f'ds_read_b64_tr_b16 {v(88 + 4 * t + 2 * u, 2)}, v84')
        A.wait_all(vm=False)
        for t in range(4):
            A(f'buffer_store_dwordx4 {v(88 + 4 * t, 4)}, {v(VL16)}, {s(SRD, 4)}, {s(94 + t)} offen sc1')

    def count(self, sreg):
        A = self.A
        A('s_mov_b64 exec, 1')
        A(f'buffer_atomic_add {v(VONE)}, {v(VL4)}, {s(SRD, 4)}, {s(sreg)} offen')
        A('s_mov_b64 exec, -1')

    def cs_add(self, accs, addr):
        A = self.A
        A(f'v_and_b32 v3, 15, {v(VLANE)}')
        for i in range(1, 4):
            A(f'v_cmp_eq_u32 {s(26 + 2 * i, 2)}, {i}, v3')
        for r, a_, off in accs:
            for i in range(1, 4):
                A(f'v_cndmask_b32 {v(r)}, {v(r)}, {v(r + i)}, {s(26 + 2 * i, 2)}')
        A('s_mov_b32 exec_lo, 0x000f000f')
        A('s_mov_b32 exec_hi, 0x000f000f')
        for r, a_, off in accs:
            A(f'ds_add_f32 {v(a_)}, {v(r)} offset:{off}')
        A('s_mov_b64 exec, -1')

    def loader(self):
        A = self.A
        sLW = 26
        ONES = 16
        A(f's_sub_u32 {s(sLW)}, {s(SW)}, 4')
        if 'lp' in OPT or 'lp0' in OPT:
            A('s_setprio 3')
        self.nstamp = 0
        if self.prof:
            A('v_mov_b32 v12, 0')
            A('s_memrealtime s[60:61]')
            A('s_waitcnt lgkmcnt(0)')
            A('v_writelane_b32 v12, s60, 63')
        self.pstamp()
        if 'p67' in OPT:
            Lp7 = A.newlabel('p67')
            A(f's_lshr_b32 s28, {s(sCG16)}, 1')
            A('s_cmp_lg_u32 s28, 3')
            A(f's_cbranch_scc1 {Lp7}')
            A('s_setprio 3')
            A.label(Lp7)
        if 'nohot' not in OPT:
            A(f's_mov_b64 {s(SRD2, 2)}, {s(PA + 2, 2)}')
            A(f's_mov_b32 {s(SRD2 + 2)}, {512 * 3072}')
            A('s_lshr_b32 s28, s2, 3')
            A('s_lshl_b32 s29, s2, 2')
            A('s_add_u32 s28, s28, s29')
            A('s_and_b32 s28, s28, 31')
            A('s_lshl_b32 s28, s28, 2')
            A(f's_add_u32 s28, s28, {s(sLW)}')
            A(f's_mul_i32 s28, s28, {4 * 3072}')
            A(f'v_lshrrev_b32 v40, 1, {v(VLANE)}')
            A(f'v_mul_u32_u24 v40, 3072, v40')
            A(f'v_and_b32 v41, 1, {v(VLANE)}')
            A(f'v_lshl_add_u32 v40, v41, 10, v40')
            A('s_mov_b64 exec, 0xff')
            A(f'buffer_load_dword v11, v40, {s(SRD2, 4)}, s28 offen offset:{1024 + 384}')
            A('s_mov_b64 exec, -1')
        A(f's_mov_b64 {s(SRD2, 2)}, {s(PA + 4, 2)}')
        A(f's_mov_b32 {s(SRD2 + 2)}, {32 * 512}')
        A(f's_lshl_b32 s28, {s(sCG16)}, 10')
        A(f's_mov_b32 m0, {PHL}')
        self.dma(28, srd=SRD2)
        A(f's_mov_b64 {s(SRD2, 2)}, {s(PA + 2, 2)}')
        A(f's_mov_b32 {s(SRD2 + 2)}, {512 * 3072}')
        A(f'v_lshrrev_b32 v40, 2, {v(VLANE)}')
        A(f'v_mul_u32_u24 v40, 3072, v40')
        A(f'v_lshrrev_b32 v41, 4, {v(VLANE)}')
        A(f'v_xor_b32 v41, v41, {v(VLANE)}')
        A(f'v_and_b32 v41, 3, v41')
        A(f'v_lshl_add_u32 v40, v41, 4, v40')
        A(f's_lshl_b32 s59, {s(sCG16)}, 6')
        mw = {}
        for c in range(4):
            A(f's_add_u32 s28, {s(sT0)}, {c}')
            A(f's_and_b32 s28, s28, 3')
            A(f's_lshl_b32 s28, s28, 2')
            A(f's_add_u32 s28, s28, {s(sLW)}')
            A(f's_lshl_b32 {s(40 + c)}, s28, 12')
            A(f's_lshl_b32 {s(44 + c)}, s28, 11')
            A(f's_add_u32 {s(44 + c)}, {s(44 + c)}, {64 * KB}')

        def wdma(u):
            A(f's_mul_i32 s38, {s(40 + (u & 3))}, 24')
            A(f's_add_u32 s38, s38, s59')
            for hr in range(2):
                for p in ((1, 2) if u < 4 else (0,)):
                    A(f's_add_u32 m0, {s(40 + u)}, {max(p - 1, 0) * 2 * KB + hr * KB}')
                    A(f's_add_u32 s29, s38, {hr * 16 * 3072 + p * KB}')
                    self.dma(29, 0, voff=40, srd=SRD2)
            mw[u] = A.vmark()
        for u in range(4):
            wdma(u)
        if 'p67' in OPT:
            A('s_setprio 0')
        A.wait_all(vm=False)
        self.pstamp()
        for i in range(4):
            A(f'v_mov_b32 {v(ONES + i)}, 0x3f803f80')
        A(f'v_mov_b32 {v(VONE)}, 1')
        A(f'v_and_b32 v32, 15, {v(VLANE)}')
        A(f'v_lshrrev_b32 v33, 4, {v(VLANE)}')
        A(f'v_lshrrev_b32 v34, 2, v32')
        A(f'v_lshrrev_b32 v35, 1, v33')
        A(f'v_xor_b32 v35, v35, v34')
        A(f'v_lshlrev_b32 v35, 4, v35')
        A(f'v_lshl_add_u32 v35, v32, 6, v35')
        A(f'v_and_b32 v36, 1, v33')
        A(f'v_lshl_add_u32 v35, v36, 3, v35')
        A(f'v_xor_b32 v36, 32, v35')
        A(f'v_bfe_u32 v37, {v(VLANE)}, 1, 1')
        A(f'v_xor_b32 v37, v37, v33')
        A(f'v_lshlrev_b32 v37, 4, v37')
        A(f'v_lshrrev_b32 v38, 2, {v(VLANE)}')
        A(f'v_lshl_add_u32 v37, v38, 6, v37')
        A(f'v_and_b32 v38, 1, {v(VLANE)}')
        A(f'v_lshl_add_u32 v37, v38, 3, v37')
        A(f'v_xor_b32 v38, 32, v37')
        A(f'v_and_b32 v39, 1, v34')
        A(f'v_lshlrev_b32 v39, 10, v39')
        A(f'v_lshl_add_u32 v39, v33, 8, v39')
        A(f'v_lshrrev_b32 v34, 3, v32')
        A(f'v_lshl_add_u32 v39, v34, 7, v39')
        A(f'v_and_b32 v34, 3, v32')
        A(f'v_lshl_add_u32 v39, v34, 4, v39')
        A(f'v_lshlrev_b32 v46, 3, {v(VLANE)}')
        A(f'v_add_u32 v46, {PHL}, v46')
        A(f'v_and_b32 v30, 1, v33')
        A(f'v_lshlrev_b32 v30, 6, v30')
        A(f'v_lshrrev_b32 v34, 1, v33')
        A(f'v_lshl_add_u32 v30, v34, 5, v30')
        A(f'v_add_u32 v30, {L_CSQ}, v30')
        A(f'v_lshl_add_u32 v30, v32, 2, v30')
        A(f'v_lshlrev_b32 v31, 4, v33')
        A(f'v_add_u32 v31, {PERM}, v31')
        A(f'v_lshl_add_u32 v31, v32, 2, v31')
        F, C, CSA = 104, 104, 120

        def RB(u):
            return 160 + 16 * u if u < 4 else 224 + 8 * (u - 4)

        def reads(u):
            R = RB(u)
            for r in range(4 if u < 4 else 2):
                A(f'v_add_u32 {v(64 + r)}, {s(40 + u)}, {v(35 + r)}')
            A.wait(vm=mw[u])
            if u == 0:
                A(f'ds_read_b64_tr_b16 v[20:21], v46')
                A(f'ds_read_b64_tr_b16 v[22:23], v46 offset:512')
            for hh in range(2):
                for h2 in range(2):
                    A(f'ds_read_b64 {v(R + 4 * hh + 2 * h2, 2)}, {v(64 + hh)} offset:{h2 * KB}')
            if u < 4:
                for hh in range(2):
                    for h2 in range(2):
                        A(f'ds_read_b64_tr_b16 {v(R + 8 + 4 * hh + 2 * h2, 2)}, {v(66 + hh)} offset:{2 * KB + h2 * KB}')
            return A.lmark()
        rm = reads(0)
        for u in range(8):
            R = RB(u)
            A(f'v_add_u32 v68, {s(40 + u)}, v39')
            if u < 4:
                A(f'v_add_u32 v69, {s(40 + u)}, {v(VL16)}')
            A.wait(lg=rm)
            for hh in range(2):
                for h2 in range(2):
                    A(f'v_mfma_f32_16x16x16_bf16 {v(C + 8 * hh + 4 * h2, 4)}, {v(R + 4 * hh + 2 * h2, 2)}, {v(20 + 2 * hh, 2)}, 0')
            if u < 4:
                for hh in range(2):
                    A(f'ds_write_b128 v69, {v(R + 8 + 4 * hh, 4)} offset:{(2 + hh) * KB}')
            if u not in (3, 7):
                rm = reads(u + 1)
            for hh in range(2):
                self.pack(R + 4 * hh, C + 8 * hh, 4)
                A(f'ds_write_b128 v68, {v(R + 4 * hh, 4)} offset:{hh * 64}')
            if u in (3, 7):
                self.sig(L_CR, 1 if u == 3 else 2)
            if u == self.LPU:
                A('s_setprio 3')
            for t in range(4 if u < 4 else 2):
                a_ = CSA + 4 * t + (16 if u >= 4 else 0)
                A(f'v_mfma_f32_16x16x32_bf16 {v(a_, 4)}, {v(R + 4 * t, 4)}, {v(ONES, 4)}, {"0" if (u & 3) == 0 else v(a_, 4)}')
            if u == self.QD:
                for u2 in range(4, 8):
                    wdma(u2)
            if u == 3:
                self.pstamp()
                self.cs_add([(CSA + 4 * hh, 30, hh * 16) for hh in range(2)] + [(CSA + 8 + 4 * hh, 31, (2 + hh) * 64) for hh in range(2)], None)
                self.sig(L_CS, 1, absv=True)
                A(f's_lshl_b32 s100, {s(sLW)}, 12')
                A(f's_add_u32 s100, s100, {PST}')
                A(f's_lshl_b32 s49, s2, 2')
                A(f's_add_u32 s49, s49, {s(sLW)}')
                A(f's_add_u32 s49, s49, 256')
                m_p1 = self.piece_decode(49)
                rm = reads(4)
        self.cs_add([(CSA + 16 + 4 * hh, 30, 256 + hh * 16) for hh in range(2)], None)
        self.sig(L_CS, 2, absv=True)
        A.wait_all(vm=False)
        self.pstamp()
        def pfin():
            A.wait(vm=m_p1)
            self.piece_finish()
            for t in range(4):
                A(f'v_mfma_f32_16x16x32_bf16 {v(144 + 4 * t, 4)}, {v(88 + 4 * t, 4)}, {v(ONES, 4)}, 0')
            A(f's_sub_u32 s28, s49, 384')
            A(f's_cmp_lt_u32 s28, 448')
            for t in range(4):
                A(f's_cselect_b32 {s(72 + t)}, {s(72 + t)}, {WS_USED}')
            A('s_mov_b32 exec_lo, 0x00010001')
            A('s_mov_b32 exec_hi, 0x00010001')
            for t in range(4):
                A(f'buffer_store_dwordx4 {v(144 + 4 * t, 4)}, {v(VLANE)}, {s(SRD, 4)}, {s(72 + t)} offen sc1')
            A('s_mov_b64 exec, -1')
        if 'nokf' in OPT:
            pfin()
        bases = {}
        for r, (nm, WP, scg, sz) in enumerate((('q', WQKV, sCG16, 96), ('o', WO, sCG8, 64), ('1', W1, sCG8, 64), ('2', W2, sCG8, 64),
                                               ('3', W3, sCG16, 112), ('4', W4, sCG8, 224))):
            A(f's_mul_i32 {s(52 + r)}, {s(scg)}, {sz * KB}')
            A(f's_add_u32 {s(52 + r)}, {s(52 + r)}, {WP}')
            bases[nm] = 52 + r
        self.lwait(L_INIT, 1, 24, sleep=1, single=True)
        self.pstamp()
        A('s_lshr_b32 s34, s2, 3')
        A('s_lshl_b32 s34, s34, 2')
        A(f's_add_u32 s34, s34, {s(sLW)}')
        A(f'v_lshlrev_b32 v21, 7, {v(VLANE)}')
        A(f's_lshl_b32 s37, {s(sLW)}, 10')
        for u in range(8):
            A(f's_mov_b32 {s(64 + u)}, {s(40 + u)}')
        A('v_mov_b32 v28, v39')
        SCR, RSZ = 96 * KB, 336
        A(f'v_bfe_u32 v3, {v(VLANE)}, 2, 2')
        A(f'v_lshl_add_u32 v3, v33, 3, v3')
        A(f'v_mul_u32_u24 v47, {RSZ}, v3')
        A(f'v_and_b32 v3, 3, {v(VLANE)}')
        A(f's_lshr_b32 s30, {s(sLW)}, 1')
        A(f's_and_b32 s31, {s(sLW)}, 1')
        A(f's_lshl_b32 s32, s30, 6')
        A(f's_lshl_b32 s33, s31, 3')
        A(f's_add_u32 s32, s32, s33')
        A(f's_add_u32 s32, s32, {SCR + 128}')
        A(f'v_lshl_add_u32 v4, v3, 4, v47')
        A(f'v_add_u32 v4, s32, v4')
        A(f's_lshl_b32 s32, s30, 5')
        A(f's_add_u32 s32, s32, {SCR + 256}')
        A(f'v_lshl_add_u32 v5, v3, 3, v47')
        A(f'v_add_u32 v5, s32, v5')
        A(f's_lshl_b32 s40, {s(sCG16)}, 12')
        A(f's_add_u32 s40, s40, s37')
        A(f's_add_u32 s40, s40, {KV}')
        A(f's_lshl_b32 s41, {s(sCG16)}, 8')
        A(f's_lshl_b32 s33, s30, 7')
        A(f's_add_u32 s41, s41, s33')
        A(f's_lshl_b32 s31, s31, 4')
        A(f's_add_u32 s41, s41, s31')
        A(f's_add_u32 s41, s41, {Z}')
        A(f's_lshl_b32 s48, {s(sCG16)}, {CSH + 2}')
        A(f's_add_u32 s48, s48, s37')
        A(f's_add_u32 s48, s48, {C_KV}')
        assert CSH == 10
        A(f'v_lshlrev_b32 v50, 5, v33')
        A(f'v_lshl_add_u32 v6, v32, 2, v50')
        A(f'v_mov_b32 v3, {OOB}')
        A(f'v_cmp_gt_u32 vcc, 4, v32')
        A(f'v_cndmask_b32 v6, v3, v6, vcc')
        A(f'v_cmp_eq_u32 s[42:43], 1, v32')
        A(f'v_cmp_eq_u32 s[44:45], 2, v32')
        A(f'v_cmp_eq_u32 s[46:47], 3, v32')

        def kvjob(TA, mid=None):
            TB, KVA, ZA = TA + 16, TA + 32, TA + 36
            kp = 'kprof' in OPT
            if kp:
                self.nstamp = 0
                A('s_memrealtime s[60:61]')
                A('s_waitcnt lgkmcnt(0)')
                A('v_mov_b32 v12, 0')
                A('v_writelane_b32 v12, s60, 63')
                self.pstamp()
            self.lwait(L_CF, 3, 24, sleep=2)
            self.lwait(L_CB, 1, 24, sleep=0)
            self.jitter()
            if 'nokp' not in OPT:
                A('s_setprio 3')
            if kp:
                self.pstamp()
            for ks in range(4):
                for u2 in range(2):
                    off = (32 * ks + 4 * u2) * RSZ
                    A(f'ds_read_b64_tr_b16 {v(TA + 4 * ks + 2 * u2, 2)}, v4 offset:{off}')
                    A(f'ds_read_b64_tr_b16 {v(TB + 4 * ks + 2 * u2, 2)}, v5 offset:{off}')
                if ks == 2:
                    A.wait(lg=A.lmark() - 8)
            base = A.lmark() - 16
            for ks in range(4):
                A.wait(lg=base + 4 * ks + 4)
                A(f'v_mfma_f32_16x16x32_bf16 {v(KVA, 4)}, {v(TA + 4 * ks, 4)}, {v(TB + 4 * ks, 4)}, {"0" if ks == 0 else v(KVA, 4)}')
                A(f'v_mfma_f32_16x16x32_bf16 {v(ZA, 4)}, {v(TA + 4 * ks, 4)}, {v(ONES, 4)}, {"0" if ks == 0 else v(ZA, 4)}')
            for r in range(4):
                o = f' offset:{256 * r}' if r else ''
                A(f'buffer_atomic_add_f32 {v(KVA + r)}, {v(VL4)}, {s(SRD, 4)}, s40 offen{o}')
            for i in range(1, 4):
                A(f'v_cndmask_b32 {v(ZA)}, {v(ZA)}, {v(ZA + i)}, {s(40 + 2 * i, 2)}')
            A(f'buffer_atomic_add_f32 {v(ZA)}, v6, {s(SRD, 4)}, s41 offen')
            if kp:
                self.pstamp()
            KT = int([o[2:] for o in OPT if o.startswith('kt')][0]) if any(o.startswith('kt') for o in OPT) else 0
            if KT:
                A(f's_mul_i32 s33, s34, {14 * KB}')
                A(f's_add_u32 s33, s33, {W3}')
                A(f's_cmp_eq_u32 {s(sPAIR)}, 0')
                A(f's_cselect_b32 s33, {WS_USED}, s33')
                A(f'buffer_load_dword v20, v21, {s(SRD, 4)}, s33 offen')
                if KT > 64:
                    A(f's_add_u32 s33, s33, 8192')
                    n2 = KT - 64
                    A(f's_mov_b64 exec, {(1 << n2) - 1:#x}' if n2 < 32 else f's_mov_b32 exec_hi, {(1 << (n2 - 32)) - 1:#x}')
                    A(f'buffer_load_dword v20, v21, {s(SRD, 4)}, s33 offen')
                    A('s_mov_b64 exec, -1')
            if mid:
                m_at = A.vmark()
                A('s_setprio 0')
                mid()
                A('s_setprio 3')
                A.wait(vm=m_at)
            else:
                A(f's_waitcnt vmcnt({0 if not KT else 1 if KT <= 64 else 2})')
                A.vm_done = A.vm
            if kp:
                self.pstamp()
            self.count(48)
            self.sig(L_KD, 1)
            A('s_setprio 0')
            if kp:
                self.pstamp()
                A('s_waitcnt vmcnt(0)')
                self.pstamp()
                A(f's_lshl_b32 s33, s2, 2')
                A(f's_add_u32 s33, s33, {s(sLW)}')
                A(f's_lshl_b32 s33, s33, 8')
                A(f's_add_u32 s33, s33, {DBG + 1024 * KB}')
                A(f'buffer_store_dword v12, {v(VL4)}, {s(SRD, 4)}, s33 offen')
        L, L3 = A.newlabel('lloop'), A.newlabel('lb3')
        if 'lp0' in OPT:
            A('s_setprio 0')

        def run(nm, src0, lds0, n):
            for i in range(0, n, 4):
                if i + 4 <= n:
                    A(f's_add_u32 m0, s37, {lds0 + i * KB}')
                    A(f's_add_u32 s28, s37, {src0 + i * KB}')
                else:
                    A(f's_min_u32 s28, s37, {(n - 1 - i) * KB}')
                    A(f's_add_u32 m0, s28, {lds0 + i * KB}')
                    A(f's_add_u32 s28, s28, {src0 + i * KB}')
                A(f's_add_u32 s28, s28, {s(bases[nm])}')
                self.dma(28)

        def steps(nm, lmap, NT, j0, j1):
            j = j0
            while j < j1:
                e = j + 1
                while e < j1 and lmap(e) == lmap(e - 1) + NT * KB:
                    e += 1
                run(nm, j * NT * KB, lmap(j), (e - j) * NT)
                j = e

        def only(pair, fn):
            Lx = A.newlabel('only')
            A.wait_all(vm=False)
            A(f's_cmp_lg_u32 {s(sPAIR)}, {pair}')
            A(f's_cbranch_scc1 {Lx}')
            vmd = A.vm_done
            fn()
            A.wait_all(vm=False)
            A.vm_done = vmd
            A.label(Lx)

        def touch(base, size):
            share = size // 128
            A(f's_mul_i32 s33, s34, {share}')
            A(f's_add_u32 s33, s33, {base}')
            vm0 = A.vm
            for i in range((share + 8191) // 8192):
                A(f'buffer_load_dword v20, v21, {s(SRD, 4)}, s33 offen')
                A(f's_add_u32 s33, s33, 8192')
            A.vm = vm0

        PK_ = 28

        def pfl(base, size, trig):
            self.lwait(L_PS, trig, 24, sleep=2)
            share = size // 128
            lines = share // 128
            A(f's_mul_i32 s33, s34, {share}')
            A(f's_add_u32 s33, s33, {base}')
            A(f's_mov_b64 exec, {(1 << PK_) - 1:#x}')
            A(f's_mov_b32 s36, {(lines + PK_ - 1) // PK_}')
            Lp_ = A.newlabel('pf')
            A.label(Lp_)
            A(f'buffer_load_dword v20, v21, {s(SRD, 4)}, s33 offen')
            A(f's_add_u32 s33, s33, {PK_ * 128}')
            A('s_sub_u32 s36, s36, 1')
            A('s_cmp_lg_u32 s36, 0')
            A('s_waitcnt vmcnt(0)')
            A(f's_cbranch_scc1 {Lp_}')
            A('s_mov_b64 exec, -1')

        def need(idx0, scg, n, stride, target):
            A(f's_lshl_b32 s33, {s(scg)}, 7')
            A(f's_add_u32 s33, s33, {PC + idx0 * 128}')
            A(f'v_mul_u32_u24 v23, {stride}, v21')
            self.poll(33, 23, n, target=target, mode='load')

        def need3():
            A(f's_mul_i32 s33, {s(sCG16)}, 6')
            A(f's_lshr_b32 s33, s33, 2')
            A(f'v_add_u32 v23, s33, {v(VLANE)}')
            A(f's_lshr_b32 s33, {s(sCG16)}, 2')
            A(f's_add_u32 s33, s33, 24')
            A(f'v_writelane_b32 v23, s33, 2')
            A(f'v_lshlrev_b32 v23, 7, v23')
            A(f's_mov_b32 s33, {PC + 24 * 128}')
            self.poll(33, 23, 3, target=16, mode='load')
            A(f's_lshl_b32 s33, {s(sCG16)}, 13')
            A(f's_add_u32 s33, s33, s37')
            A(f's_add_u32 s33, s33, {CS3G}')
            A(f's_add_u32 s36, s33, 4096')
            A(f's_cmp_eq_u32 {s(sLW)}, 3')
            A(f's_cselect_b32 s36, {WS_USED}, s36')
            self.ldx(v(144, 4), 33, sc=' sc1')
            self.ldx(v(148, 4), 36, sc=' sc1')
            A(f's_lshl_b32 s33, {s(sLW)}, 6')
            A(f's_add_u32 s33, s33, {L_CS3}')
            A(f'v_and_b32 v9, 0x30, {v(VL16)}')
            A(f'v_add_u32 v9, s33, v9')
            A('s_waitcnt vmcnt(0)')
            for rot in (4, 8):
                for i in range(8):
                    A(f'v_add_f32_dpp {v(144 + i)}, {v(144 + i)}, {v(144 + i)} row_ror:{rot} row_mask:0xf bank_mask:0xf')
            for sw in (16, 32):
                for i in range(8):
                    A(f'v_mov_b32 {v(152 + i)}, {v(144 + i)}')
                for i in range(8):
                    A(f'v_permlane{sw}_swap_b32 {v(144 + i)}, {v(152 + i)}')
                for i in range(8):
                    A(f'v_add_f32 {v(144 + i)}, {v(144 + i)}, {v(152 + i)}')
            A('s_mov_b64 exec, 15')
            A('ds_write_b128 v9, v[144:147]')
            A('ds_write_b128 v9, v[148:151] offset:256')
            A('s_mov_b64 exec, -1')

        def cs_build(k, lmap, NT, loc, val, cs=(0, 1, 2, 3), first=True):
            self.lwait(L_CR, k, 24, sleep=1)
            st = NT * KB
            base = min(lmap(j) for j in range(16))
            assert sorted(lmap(j) for j in range(16)) == [base + j * st for j in range(16)]
            for c in cs:
                A(f's_mul_i32 s28, {s(sLW)}, {st}')
                A(f's_add_u32 s28, s28, {base + 4 * c * st}')
                A(f'v_add_u32 v9, s28, {v(VL16)}')
                for t in range(NT):
                    A(f'ds_read_b128 {v(92 + 4 * t, 4)}, v9 offset:{t * KB}')
                A.wait_all(vm=False)
                for t in range(NT):
                    A(f'v_mfma_f32_16x16x32_bf16 {v(CSA + 4 * t, 4)}, {v(92 + 4 * t, 4)}, {v(ONES, 4)}, {"0" if (first and c == cs[0]) else v(CSA + 4 * t, 4)}')
            if val:
                self.cs_add([(CSA + 4 * t, 31, loc - PERM + t * 64) for t in range(NT)], None)
                self.sig(L_CS, val, absv=True)

        def code_touch(lab):
            if 'ct' not in OPT:
                return
            Lpc = A.newlabel('pc')
            A('s_getpc_b64 s[30:31]')
            A.label(Lpc)
            A(f's_lshl_b32 s28, {s(sLW)}, 11')
            A(f's_add_u32 s28, s28, {lab}-{Lpc}')
            A('s_add_u32 s30, s30, s28')
            A('s_addc_u32 s31, s31, 0')
            A('s_mov_b64 exec, 0xffff')
            A('global_load_dword v20, v21, s[30:31]')
            A.vm -= 1
            A('s_mov_b64 exec, -1')

        def batch(k, parts, after=None):
            self.lwait(L_CF, k, 24, sleep=2)
            self.jitter()
            for p in parts:
                steps(*p)
            m = A.vmark()
            if after:
                after()
            A.wait(vm=m)
            self.sig(L_CR, k)
        if 'nokf' not in OPT:
            if 'ed1' in OPT:
                need(0, sCG8, 2, 8, 16)
                kvjob(104, lambda: (pfin(), steps('o', map_wo, 4, 4, 16), steps('1', map_w1, 4, 0, 4)))
            else:
                kvjob(104)
                pfin()
        self.sig(L_CS, 3, absv=True)
        A('s_waitcnt vmcnt(0)')
        A.vm_done = A.vm
        self.count(99)
        Ln = A.newlabel('nomode')
        A(f's_cmp_lg_u32 {s(sLW)}, 0')
        A(f's_cbranch_scc1 {Ln}')
        A('s_getreg_b32 s30, hwreg(HW_REG_XCC_ID)')
        A('s_and_b32 s30, s30, 15')
        A('s_mul_i32 s31, s30, s30')
        A('s_lshl_b32 s31, s31, 16')
        A('s_lshl_b32 s30, s30, 7')
        A('s_add_u32 s30, s30, s31')
        A('s_add_u32 s58, s30, 1')
        A('s_and_b32 s59, s2, 7')
        A('s_lshl_b32 s59, s59, 7')
        A(f's_add_u32 s59, s59, {XW}')
        self.poll(59, VL4, 1, target=32, mode='load', mask=0x7f)
        A('v_readfirstlane_b32 s30, v3')
        A('s_lshl_b32 s31, s58, 5')
        A('s_cmp_eq_u32 s30, s31')
        A(f's_cselect_b32 s33, {1 if "slow" in OPT else 2}, 1')
        A('v_mov_b32 v3, s33')
        A(f'ds_write_b32 {v(VPERM)}, v3 offset:{L_MODE - L_CF}')
        A.wait_all(vm=False)
        A.label(Ln)
        if 'nokf' in OPT:
            kvjob(104)
        A(f's_branch {L3}')
        A.label(L)
        A.vm_done = A.vm
        for k, us in ((1, range(4)), (2, range(4, 8))):
            self.lwait(L_CF, k, 24, sleep=2)
            for u in us:
                A(f'v_add_u32 v9, {s(64 + u)}, v28')
                for hh in range(2):
                    A(f'ds_write_b128 v9, {v(RB(u) + 4 * hh, 4)} offset:{hh * 64}')
                if u < 4:
                    A(f'v_add_u32 v10, {s(64 + u)}, {v(VL16)}')
                    for hh in range(2):
                        A(f'ds_write_b128 v10, {v(RB(u) + 8 + 4 * hh, 4)} offset:{(2 + hh) * KB}')
            self.sig(L_CR, k)
        D1 = [('o', map_wo, 4, 0, 4)] if ('cd1' in OPT or 'ed1' in OPT) else [('o', map_wo, 4, 0, 16), ('1', map_w1, 4, 0, 4)]
        if 'd1e' in OPT:
            self.lwait(L_CF, 3, 24, sleep=1)
            for p in D1:
                steps(*p)
        kvjob(160, (lambda: (steps('o', map_wo, 4, 4, 16), steps('1', map_w1, 4, 0, 4))) if 'ed1' in OPT else None)
        A.wait_all(vm=False)
        A.label(L3)

        def ldump():
            if 'ed1' not in OPT:
                need(0, sCG8, 2, 8, 16)
            self.lwait(L_CS, 3, 24, sleep=1, absv=True)
            if self.prof and 'kprof' not in OPT:
                self.pstamp()
                A(f's_lshl_b32 s33, s2, 2')
                A(f's_add_u32 s33, s33, {s(sLW)}')
                A(f's_lshl_b32 s33, s33, 8')
                A(f's_add_u32 s33, s33, {DBG + 1024 * KB}')
                A(f'buffer_store_dword v12, {v(VL4)}, {s(SRD, 4)}, s33 offen')
        only(0, ldump)
        if 'd1e' in OPT:
            def d1():
                for p in D1:
                    steps(*p)
                A('s_waitcnt vmcnt(0)')
            only(0, d1)
            self.sig(L_CR, 3)
        else:
            batch(3, D1)
        if 'pq' in OPT:
            only(1, lambda: pfl(W2, 1536 * KB, 1))
        if 'touch' in OPT:
            only(1, lambda: touch(W3, 1024 * KB))
        only(0, lambda: need(16, sCG8, 1, 0, 16))
        self.lwait(L_KD, 1, 24, sleep=1)
        batch(4, [('1', map_w1, 4, 4, 16), ('2', map_w2, 4, 0, 7)])
        RG = int([o[2:] for o in OPT if o.startswith('rg')][0]) if any(o.startswith('rg') for o in OPT) else 99

        def regload():
            A(f's_add_u32 s28, s37, {s(bases["4"])}')
            A(f's_add_u32 s28, s28, {39 * 4 * KB}')
            for i in range(17):
                self.ldx(v(92 + 4 * i, 4), 28, sc=' sc1')
                A(f's_add_u32 s28, s28, {4 * KB}')
                if i % RG == RG - 1:
                    A.wait_all(lg=False)
        only(0, lambda: (self.lwait(L_D1, 1, 24, sleep=1) if 'cd1' in OPT else None, cs_build(4, map_w1, 4, L_CS1, 4), A.wait_all(vm=False), need3()))
        if 'norl5' not in OPT:
            only(0, lambda: (need(52, sCG8, 1, 0, 56), self.lwait(L_PS, 1, 24, sleep=2, absv=True) if 'rlp' in OPT else None, regload()))
        batch(5, [('2', map_w2, 4, 7, 16), ('3', map_w3, 7, 0, 3)], lambda: only(0, lambda: code_touch('.Lst_w3')))
        A(f'v_add_u32 v9, s37, {v(VL16)}')
        A(f'v_add_u32 v9, {map_w3(3)}, v9')

        def w3out():
            self.lwait(L_PS, 1, 24, sleep=2)
            for i in range(15):
                A(f'ds_write_b128 v9, {v(32 + 4 * i, 4)} offset:{i * 4 * KB}')
        only(1, w3out)
        self.lwait(L_CF, 6, 24, sleep=2)
        run('3', 81 * KB, map_w3(3) + 60 * KB, 10)
        only(0, lambda: run('3', 21 * KB, map_w3(3), 60))
        A('s_waitcnt vmcnt(0)')
        A.vm_done = A.vm
        self.sig(L_CR, 6)

        def w3in():
            for i in range(15):
                A(f'ds_read_b128 {v(32 + 4 * i, 4)}, v9 offset:{i * 4 * KB}')
            self.sig(L_CS, 5, absv=True)
        only(0, w3in)
        batch(7, [('3', map_w3, 7, 13, 16)])
        if 'norl5' in OPT:
            only(0, lambda: need(52, sCG8, 1, 0, 56))
        if 'v2' in OPT:
            self.lwait(L_PS, 2, 24, sleep=2)
            regload()
            batch(8, [('4', map_w4, 4, 0, 11)])
        elif 'v3' in OPT:
            batch(8, [('4', map_w4, 4, 0, 11)], regload)
        else:
            def gtouch():
                Lt = A.newlabel('gt')
                A(f'ds_read_b32 v24, {v(VPERM)} offset:{L_MODE - L_CF}')
                A.wait_all(vm=False)
                A('v_readfirstlane_b32 s33, v24')
                A('s_cmp_lg_u32 s33, 2')
                A(f's_cbranch_scc1 {Lt}')
                A(f's_mul_i32 s33, s34, {7 * KB}')
                A('s_and_b32 s36, s2, 7')
                A(f's_mul_i32 s36, s36, {896 * KB}')
                A('s_add_u32 s33, s33, s36')
                A(f's_add_u32 s33, s33, {G}')
                A('s_mov_b32 exec_hi, 0xffffff')
                A(f'buffer_load_dword v20, v21, {s(SRD, 4)}, s33 offen')
                A('s_mov_b32 exec_hi, -1')
                A.label(Lt)
            self.lwait(L_PS, 2, 24, sleep=2)
            if 'gt' in OPT:
                gtouch()
            steps('4', map_w4, 4, 0, 11)
            if 'gt2' in OPT:
                gtouch()
            A.wait_all(lg=False)
            self.sig(L_CR, 8)
            self.lwait(L_CF, 8, 24, sleep=2)
            if 'nosplit' not in OPT:
                assert map_w4(23) >= map_w3(0) and map_w4(37) + 4 * KB <= map_w3(8) + 7 * KB
                self.lwait(L_CS, 5, 24, sleep=1, absv=True)
                steps('4', map_w4, 4, 23, 38)
            if 'norl5' in OPT:
                only(0, regload)
            if 'g1' in OPT:
                only(1, lambda: (self.lwait(L_CF, 8, 24, sleep=2), gtouch()))
            if 'g2' in OPT:
                only(1, gtouch)
            if 'p4' in OPT:
                only(1, lambda: touch(W4, 1792 * KB))
            only(0, lambda: (code_touch('.Lst_w4'), code_touch('.Lst_q')))
        batch(9, [('4', map_w4, 4, 11, 39)] if 'nosplit' in OPT else [('4', map_w4, 4, 11, 23), ('4', map_w4, 4, 38, 39)])
        if 'noreg' not in OPT:
            A(f'v_add_u32 v9, s37, {v(VL16)}')
            A(f'v_add_u32 v9, {map_w4(50)}, v9')
            A(f'v_add_u32 v10, {32 * KB}, v9')
            self.lwait(L_CF, 10, 24, sleep=2)
            for i in range(17):
                o_ = map_w4(39 + i) - map_w4(50)
                A(f'ds_write_b128 {v(9 + (o_ >= 32 * KB))}, {v(92 + 4 * i, 4)} offset:{o_ - 32 * KB * (o_ >= 32 * KB)}')
            self.sig(L_CR, 10)
        else:
            batch(10, [('4', map_w4, 4, 39, 56)])
        A.wait_all()
        A(f's_add_u32 {s(sEV)}, {s(sEV)}, 10')
        A(f's_add_u32 s40, s40, {ZSTRIDE}')
        A(f's_add_u32 s41, s41, {ZSTRIDE}')
        A(f's_add_u32 s48, s48, {CSTRIDE}')
        A(f's_add_u32 {s(sPAIR)}, {s(sPAIR)}, 1')
        A(f's_cmp_lt_u32 {s(sPAIR)}, 2')
        A(f's_cbranch_scc1 {L}')
        A('s_endpgm')

    def main(self):
        A = self.A
        name = NAME + '_kernel'
        A.reset_kernel()
        A.raw('.p2align 8')
        A.raw(f'.globl {name}')
        A.raw(f'.type {name},@function')
        A.label(name)
        self.exit = A.newlabel('exit')
        A('s_cmp_ge_u32 s2, 256')
        A(f's_cbranch_scc1 {self.exit}')
        A(f's_load_dwordx16 {s(PA, 16)}, s[0:1], 0')
        A(f's_load_dwordx8 {s(PA + 16, 8)}, s[0:1], 64')
        if self.prof or 'dbgt' in OPT or any(o.startswith('mk') for o in OPT):
            A('s_memrealtime s[62:63]')
        Lpc = A.newlabel('pc')
        A('s_getpc_b64 s[40:41]')
        A.label(Lpc)
        if 'cpfull' in OPT:
            A('v_lshlrev_b32 v3, 7, v0')
            A(f'v_min_u32 v3, code_end-{Lpc}-4, v3')
            A('global_load_dword v13, v3, s[40:41]')
        elif 'cpnone' not in OPT:
            A('s_lshr_b32 s42, s2, 3')
            A('s_lshl_b32 s42, s42, 11')
            A('v_lshlrev_b32 v3, 2, v0')
            A('v_add_u32 v3, s42, v3')
            A(f'v_min_u32 v3, code_end-{Lpc}-4, v3')
            A('s_mov_b32 exec_lo, 1')
            A('s_mov_b32 exec_hi, 1')
            A('global_load_dword v13, v3, s[40:41]')
            A('s_mov_b64 exec, -1')
        A(f'v_and_b32 {v(VLANE)}, 63, v0')
        A(f'v_lshrrev_b32 v3, 6, v0')
        A(f'v_lshlrev_b32 {v(VL16)}, 4, {v(VLANE)}')
        A(f'v_readfirstlane_b32 {s(SW)}, v3')
        A(f's_mov_b32 {s(SRD + 2)}, {WS_USED}')
        A(f's_mov_b32 {s(SRD + 3)}, 0x00020000')
        A(f's_mov_b32 {s(SRD2 + 3)}, 0x00020000')
        A(f's_mov_b32 {s(SRDD + 2)}, 256')
        A(f's_mov_b32 {s(SRDD + 3)}, 0x00020000')
        self.tile64(sT, sCG8)
        self.tile128(sT0, sCG16)
        A(f's_mov_b32 {s(sPAIR)}, 0')
        A(f's_mov_b32 {s(sTO)}, 0x200000')
        A(f'v_lshlrev_b32 {v(VL4)}, 2, {v(VLANE)}')
        A(f's_mov_b32 {s(sEV)}, 0')
        A(f'v_mov_b32 {v(VPERM)}, {L_CF}')
        A(f's_and_b32 s26, {s(SW)}, 3')
        A(f's_lshl_b32 s26, s26, 2')
        A(f'v_add_u32 {v(VOWN)}, s26, {v(VPERM)}')
        A(f'v_cmp_gt_u32 vcc, 4, {v(VLANE)}')
        A(f'v_cndmask_b32 v3, 0, 2, vcc')
        A(f'v_add_u32 v10, {v(VL4)}, {v(VPERM)}')
        A(f'ds_write_b32 v10, v3')
        A(f'v_lshlrev_b32 v10, 2, v0')
        A(f'v_add_u32 v10, {PERM}, v10')
        A(f'v_mov_b32 v11, 0')
        A(f'ds_write_b32 v10, v11')
        LC = A.newlabel('compute')
        A('s_waitcnt lgkmcnt(0)')
        A.lg_done = A.lg
        A(f's_mov_b64 {s(SRD, 2)}, {s(PA + 22, 2)}')
        A(f's_mov_b64 {s(SRDD, 2)}, {s(PA + 20, 2)}')
        if 'wpf' in OPT:
            A('s_lshr_b32 s26, s2, 3')
            A('s_lshl_b32 s27, s2, 2')
            A('s_add_u32 s26, s26, s27')
            A('s_and_b32 s26, s26, 31')
            A('s_lshl_b32 s26, s26, 3')
            A(f's_add_u32 s26, s26, {s(SW)}')
            A(f's_mul_i32 s26, s26, 6144')
            A(f's_mov_b64 {s(SRD2, 2)}, {s(PA + 2, 2)}')
            A(f's_mov_b32 {s(SRD2 + 2)}, {512 * 3072}')
            A(f'v_lshlrev_b32 v10, 7, {v(VLANE)}')
            A('s_mov_b32 exec_hi, 0xffff')
            A(f'buffer_load_dword v13, v10, {s(SRD2, 4)}, s26 offen')
            A('s_mov_b32 exec_hi, -1')
        A(f's_cmp_lt_u32 {s(SW)}, 4')
        A('s_barrier')
        A(f's_cbranch_scc1 {LC}')
        self.loader()
        A.label(LC)
        A.flush_hazards()
        A.vm = A.vm_done = A.lg = A.lg_done = 0
        if 'eq' not in OPT:
            A('s_setprio 2')
        A(f's_lshl_b32 {s(sT0)}, {s(sT0)}, 3')
        A(f's_lshl_b32 s26, {s(SW)}, 1')
        A(f's_add_u32 {s(sT0)}, {s(sT0)}, s26')
        Lz = A.newlabel('nz')
        A(f's_cmp_lt_u32 s2, 32')
        A(f's_cselect_b32 s58, {s(SW)}, 0')
        A(f's_cmp_lg_u32 s58, 3')
        A(f's_cbranch_scc1 {Lz}')
        for i in range(4):
            A(f'v_mov_b32 {v(28 + i)}, 0')
        A(f's_mul_i32 s28, s2, {5 * KB}')
        A(f's_add_u32 s28, s28, {ZR}')
        A(f's_add_u32 s29, s28, {4 * KB}')
        A(f's_and_b32 s30, s2, 7')
        A(f's_lshl_b32 s30, s30, 14')
        A(f's_lshr_b32 s31, s2, 3')
        A(f's_lshl_b32 s31, s31, 12')
        A(f's_add_u32 s30, s30, s31')
        A(f's_add_u32 s30, s30, {CB}')
        assert CB == ZR + 160 * KB
        for i in range(9):
            r, o = (28, i) if i < 4 else (29, 0) if i == 4 else (30, i - 5)
            A(f'buffer_store_dwordx4 v[28:31], {v(VL16)}, {s(SRD, 4)}, {s(r)} offen offset:{o * KB} sc1')
        A('v_mov_b32 v3, 1')
        A('s_waitcnt vmcnt(0)')
        A('s_mov_b64 exec, 1')
        A(f'buffer_atomic_add v3, {v(VL4)}, {s(SRDD, 4)}, 0 offen')
        A('s_mov_b64 exec, -1')
        A.label(Lz)
        A.vm_done = A.vm
        A('s_nop 0')
        A(f's_mov_b64 {s(SRD2, 2)}, {s(PA, 2)}')
        A(f's_mov_b32 {s(SRD2 + 2)}, {2048 * 512 * 2}')
        A(f'v_lshrrev_b32 v3, 4, {v(VLANE)}')
        A(f'v_and_b32 v10, 0xf0, {v(VL16)}')
        A(f'v_lshl_add_u32 v10, v3, 10, v10')
        A(f's_lshl_b32 s92, {s(sT0)}, 14')
        for i in range(1, 8):
            A(f's_add_u32 {s(92 + i)}, s92, {i * 4096}')
        PB = [128, 160, 192, 224]
        self.x0m = []

        def x0load(q4):
            for mt in range(2):
                for n in range(4):
                    self.ld(v(PB[q4] + 16 * mt + 4 * n, 4), 92 + 4 * mt + n, 256 * q4, voff=10, srd=SRD2)
                self.x0m.append(A.vmark())
        self.x0load = x0load
        for q4 in range(self.XPRE):
            x0load(q4)
        A(f's_mov_b32 {s(sP)}, 0')
        A(f's_mov_b32 {s(sZ)}, 0')
        A(f's_mov_b32 {s(sC)}, 0')
        A(f's_mov_b32 {s(sFAST)}, 0')
        A(f's_mov_b32 {s(sFG)}, 0')
        A(f's_lshl_b32 {s(sT)}, {s(sT)}, 2')
        A(f's_add_u32 {s(sT)}, {s(sT)}, {s(SW)}')
        A(f's_lshl_b32 {s(sTILE)}, {s(sT)}, 14')
        A(f's_lshl_b32 s26, {s(sCG8)}, 11')
        A(f's_add_u32 {s(sTILE)}, {s(sTILE)}, s26')
        A(f's_lshl_b32 {s(sSTP)}, {s(sT)}, 10')
        A(f's_lshl_b32 s26, {s(sCG8)}, 7')
        A(f's_add_u32 {s(sSTP)}, {s(sSTP)}, s26')
        A(f's_mov_b32 {s(sHH)}, {HH - H}')
        A(f's_and_b32 s26, {s(sT)}, 15')
        A(f's_bitcmp1_b32 {s(sCG8)}, 1')
        A(f's_cselect_b32 s27, 0, 15')
        A(f's_cmp_eq_u32 s26, s27')
        A(f's_cselect_b32 {s(sFH)}, 1, 0')
        A(f's_lshl_b32 s27, {s(sT)}, {CSH}')
        A(f's_add_u32 s28, s27, {C_HH - (1 << CSH)}')
        A(f's_add_u32 s27, s27, {C_HH + (1 << CSH) + 8}')
        A(f's_cmp_eq_u32 s26, 15')
        A(f's_cselect_b32 {s(sRH)}, s27, 0')
        A(f's_cmp_eq_u32 s26, 0')
        A(f's_cselect_b32 {s(sRH)}, s28, {s(sRH)}')
        A(f's_cmp_eq_u32 {s(sT)}, 0')
        A(f's_cselect_b32 {s(sRH)}, 0, {s(sRH)}')
        A(f's_cmp_eq_u32 {s(sT)}, 127')
        A(f's_cselect_b32 {s(sRH)}, 0, {s(sRH)}')
        for f, t, c in ((sF8, sT, sCG8), (sF16, sT0, sCG16)):
            A(f's_lshl_b32 {s(f)}, {s(t)}, {CSH}')
            A(f's_lshl_b32 s26, {s(c)}, 2')
            A(f's_add_u32 {s(f)}, {s(f)}, s26')
            A(f's_add_u32 {s(f)}, {s(f)}, {CB}')
        A(f'v_add_u32 {v(VB64)}, 0x10000, {v(VL16)}')
        A(f'v_add_u32 {v(VB128)}, 0x20000, {v(VL16)}')
        A(f'v_and_b32 {v(VSTL)}, 0x300, {v(VL16)}')
        A(f'v_and_b32 v3, 15, {v(VLANE)}')
        A(f'v_lshl_add_u32 {v(VSTL)}, v3, 3, {v(VSTL)}')
        A(f'v_mov_b32 {v(VONE)}, 1')
        A(f'v_lshrrev_b32 {v(VP2)}, 3, {v(VLANE)}')
        A(f'v_and_b32 v3, 0x1c, {v(VL4)}')
        A(f'v_lshl_add_u32 {v(VP2)}, {v(VP2)}, {CSH}, v3')
        A('v_mov_b32 v12, 0')
        if self.prof:
            A('v_writelane_b32 v12, s62, 60')
        A.wait(vm=self.x0m[0])
        self.Lp = A.newlabel('pair')
        Lfinal = A.newlabel('final')
        self.stage_qkv()
        self.stage_wo()
        self.stage_w1()
        self.stage_w2()
        A.label('.Lst_w3')
        self.stage_w3()
        A.label('.Lst_w4')
        self.stage_w4(Lfinal)
        self.dump2()
        self.mark(3)
        if 'dbgt' in OPT:
            A('s_memrealtime s[60:61]')
            A('s_waitcnt lgkmcnt(0)')
            A('s_mov_b32 s94, s60')
        A(f's_mov_b32 {s(sPAIR)}, 1')
        A(f's_mov_b32 {s(sEV)}, 10')
        A(f's_mov_b32 {s(sHH)}, {HH - H + 2048 * KB}')
        A(f's_mov_b32 {s(sFG)}, {s(sFAST)}')
        A(f's_mov_b32 {s(sZ)}, {ZSTRIDE}')
        A(f's_mov_b32 {s(sC)}, {CSTRIDE}')
        A(f's_add_u32 {s(sF8)}, {s(sF8)}, {CSTRIDE}')
        A(f's_add_u32 {s(sF16)}, {s(sF16)}, {CSTRIDE}')
        A(f's_branch {self.Lp}')
        A.label(Lfinal)
        buf = 64
        A(f's_mov_b64 {s(SRD2, 2)}, {s(PA + 18, 2)}')
        A(f'v_and_b32 v13, 15, {v(VLANE)}')
        A(f'v_lshlrev_b32 v13, 10, v13')
        A(f'v_bfe_u32 v3, {v(VLANE)}, 4, 1')
        A(f'v_lshl_add_u32 v13, v3, 5, v13')
        A(f'v_lshrrev_b32 v3, 5, {v(VLANE)}')
        A(f'v_lshl_add_u32 v13, v3, 4, v13')
        A(f's_lshl_b32 s28, {s(sT)}, 14')
        A(f's_lshl_b32 s29, {s(sCG8)}, 7')
        A(f's_add_u32 s28, s28, s29')
        self.pack(buf, RES, 8)
        for q in range(2):
            b = buf + 4 * q
            A(f'v_permlane16_swap_b32 {v(b)}, {v(b + 2)}')
            A(f'v_permlane16_swap_b32 {v(b + 1)}, {v(b + 3)}')
        for q in range(2):
            self.stsfx = ' sc1' if 'osc1' in OPT else ' nt' if 'ont' in OPT else ''
            self.st(v(buf + 4 * q, 4), 28, 64 * q, voff=13, srd=SRD2)
        if 'dbgt' in OPT:
            A('s_not_b32 s62, s62')
            A('v_mov_b32 v12, s62')
            A('s_mov_b64 exec, 1')
            A(f'buffer_atomic_umax v12, {v(VL4)}, {s(SRDD, 4)}, 0 offen offset:32')
            A('s_mov_b64 exec, -1')
        self.dbgt(9)
        for i_, r_ in enumerate((92, 93, 94)):
            if 'dbgt' in OPT:
                A(f'v_mov_b32 v12, {s(r_)}')
                A('s_mov_b64 exec, 1')
                A(f'buffer_atomic_umax v12, {v(VL4)}, {s(SRDD, 4)}, 0 offen offset:{40 + 4 * i_}')
                A('s_mov_b64 exec, -1')
        if self.prof:
            A('s_memrealtime s[60:61]')
            A('s_waitcnt lgkmcnt(0)')
            A('v_writelane_b32 v12, s60, 62')
        self.dump2()
        self.mark(4, False)
        if any(o.startswith('mk') for o in OPT):
            Ls = A.newlabel('spin')
            A('s_memrealtime s[56:57]')
            A('s_waitcnt lgkmcnt(0)')
            A('s_sub_u32 s54, s54, s62')
            A.label(Ls)
            A('s_memrealtime s[58:59]')
            A('s_waitcnt lgkmcnt(0)')
            A('s_sub_u32 s58, s58, s56')
            A('s_cmp_lt_u32 s58, s54')
            A(f's_cbranch_scc1 {Ls}')
        A.label(self.exit)
        A('s_endpgm')
        A.label('code_end')
        if 'ct' in OPT:
            A.raw('.fill 2048, 4, 0xbf810000')
        self.kernels.append((name, A.maxv + 1, (A.maxv + 4) // 4 * 4, A.maxs + 1))

    def build(self, hdr):
        self.main()
        out = [hdr]
        out.append(f'; @launch grid=(256,1,1) block=(512,1,1) lds={160 * KB}')
        out.append('.amdgcn_target "amdgcn-amd-amdhsa--gfx950"')
        out.append('.text')
        out.append(self.A.text())
        out.append('.section .rodata,"a"')
        for n, nv, accum, ns in self.kernels:
            assert nv <= 256
            out.append('.p2align 6')
            out.append(f'.amdhsa_kernel {n}')
            out.append(f'  .amdhsa_next_free_vgpr {nv}')
            out.append(f'  .amdhsa_next_free_sgpr {max(ns, 16)}')
            out.append(f'  .amdhsa_accum_offset {accum}')
            out.append('  .amdhsa_group_segment_fixed_size 0')
            out.append('  .amdhsa_kernarg_size 96')
            out.append('  .amdhsa_user_sgpr_count 2')
            out.append('  .amdhsa_user_sgpr_kernarg_segment_ptr 1')
            out.append('  .amdhsa_system_sgpr_workgroup_id_x 1')
            out.append('  .amdhsa_float_denorm_mode_32 3')
            out.append('.end_amdhsa_kernel')
        return '\n'.join(out) + '\n'


if __name__ == '__main__':
    OPT.add('d2early')
    g = Gen3()
    g.prof = 'prof' in OPT
    txt = g.build(header())
    out = sys.argv[1]
    if out == '-':
        out = f'cdna_kernels/{NAME}.s'
    open(out, 'w').write(txt)
    json.dump(LAYOUT, open('layout.json', 'w'))
    for k in g.kernels:
        print(k)
    print('nops inserted', g.A.nops, 'ws used', WS_USED, 'stamps', g.nstamp)
```

```python
import sys, json
import gen as G1
from gen import Gen, KB, NAME, f32, LOG2E, OOB, SRD, SW, SRD2, VL16, VLANE, header
from asmlib import v, a, s

OPT = set(sys.argv[2:])

_off = 0
def _alloc(n):
    global _off
    r = _off
    _off += (n + 4095) // 4096 * 4096
    return r
WQKV = _alloc(1536 * KB); WO = _alloc(512 * KB); W1 = _alloc(512 * KB); W2 = _alloc(512 * KB)
W3 = _alloc(1792 * KB); W4 = _alloc(1792 * KB)
CSQ = _alloc(16 * KB); CS1 = _alloc(8 * KB); CS3 = _alloc(16 * KB); DUMMY = _alloc(4 * KB)
ZR = _alloc(288 * KB)
ZSTRIDE = 68 * KB
KV = ZR
Z = KV + 64 * KB
PC = ZR + 136 * KB
XW = ZR + 146 * KB
CSH = 10
CB = ZR + 160 * KB
C_X, C_O, C_XA, C_H, C_X1, C_G, C_KV, C_HH = [CB + 128 * i for i in range(8)]
CSTRIDE = 64
X0 = _alloc(2048 * KB); ST0 = _alloc(128 * KB); OB = _alloc(2048 * KB); G = _alloc(7168 * KB)
HH = _alloc(4096 * KB)
CS3G = _alloc(128 * KB)
XA = X1 = X0
STA = ST1 = ST0
H = OB
PSTRIDE = 0
DBG = _alloc(16 * 512 * 128 * 2)
DBG2 = _alloc(1024 * 16 * KB if 'dump' in OPT else 4096)
WS_USED = _off
LAYOUT = {k: val for k, val in globals().items() if k.isupper() and isinstance(val, int)}
for k_, v_ in LAYOUT.items():
    setattr(G1, k_, v_)

sT, sCG8, sT0, sCG16, sP, sPAIR, sZ, sTO = 16, 17, 18, 19, 20, 21, 22, 23
sTILE, sSTP, sC, sFAST, sFH = 24, 25, 44, 45, 46
sFG = 49
sHH, sRH = 52, 53
sF8, sF16 = 47, 48
VB64, VB128, VSTL, VL4, VONE, VP2 = 4, 5, 6, 7, 8, 9
VMR = 10
RES = 16
FREE = 32
PERM = 156 * KB
L_CSQ, L_CS1, L_CS3 = PERM, PERM + 384, PERM + 640
L_CF, L_CR, L_CB, L_MODE, L_GO = PERM + 2048, PERM + 2064, PERM + 2080, PERM + 2096, PERM + 2100
L_PS = PERM + 2112
L_CS = PERM + 2128
L_INIT = PERM + 2104
L_KD = PERM + 2176
L_D1 = PERM + 2192
L_ST = PERM + 2148
PA = 64
SRDD = 88
PST = 138 * KB
PHL = 154 * KB
sEV = 50
VPERM = 15
VOWN = 14
GR = 4 * KB
def map_wo(j): return (35 + j) * GR if j < 4 else (j - 4) * GR
def map_w1(j): return (12 + j) * GR
def map_w2(j): return (28 + j) * GR if j < 11 else (j - 11) * GR
def map_w3(j): return ((j + 3) % 16) * 7 * KB
def map_w4(j):
    if j >= 39: j -= 39
    return (28 + j) * GR if j < 11 else (22 + j - 11) * GR if j < 17 else (j - 17) * GR
def map_kv(j): return j * 4 * KB
def map_q(j): return 64 * KB + j * 2 * KB
def xq(mt, j): return 128 + (j >> 2) * 32 + mt * 16 + (j & 3) * 4


class Rec:
    def __init__(self):
        self.l = []

    def __call__(self, t):
        self.l.append(t)


class Gen3(Gen):
    persist = False
    first_wait = False
    XGO = int([o[3:] for o in OPT if o.startswith('xgo')][0]) if any(o.startswith('xgo') for o in OPT) else 2
    NPRE = int([o[4:] for o in OPT if o.startswith('npre')][0]) if any(o.startswith('npre') for o in OPT) else 3
    XPRE = int([o[4:] for o in OPT if o.startswith('xpre')][0]) if any(o.startswith('xpre') for o in OPT) else 4
    DQ = int([o[2:] for o in OPT if o.startswith('dq')][0]) if any(o.startswith('dq') for o in OPT) else 6
    QD = int([o[2:] for o in OPT if o.startswith('qd')][0]) if any(o.startswith('qd') for o in OPT) else 1
    NPOLL = int([o[2:] for o in OPT if o.startswith('np')][0]) if any(o.startswith('np') for o in OPT) else 1
    PGAP = int([o[2:] for o in OPT if o.startswith('pg')][0]) if any(o.startswith('pg') for o in OPT) else 2
    SP = int([o[2:] for o in OPT if (o.startswith('sp') and len(o) == 3)][0]) if any((o.startswith('sp') and len(o) == 3) for o in OPT) else 5
    LPU = int([o[3:] for o in OPT if o.startswith('lpu')][0]) if any(o.startswith('lpu') for o in OPT) else 9
    E11 = int([o[1:] for o in OPT if o.startswith('e') and o[1:].isdigit()][0]) if any(o.startswith('e') and o[1:].isdigit() for o in OPT) else 48
    SL = int([o[2:] for o in OPT if o.startswith('sl') and o[2:].isdigit()][0]) if any(o.startswith('sl') and o[2:].isdigit() for o in OPT) else 2
    EF = int([o[2:] for o in OPT if o.startswith('ef') and o[2:].isdigit()][0]) if any(o.startswith('ef') and o[2:].isdigit() for o in OPT) else 72
    DS = int([o[2:] for o in OPT if o.startswith('ds')][0]) if any(o.startswith('ds') for o in OPT) else 16
    SG = int([o[2:] for o in OPT if o.startswith('sg')][0]) if any(o.startswith('sg') for o in OPT) else 11
    D4 = int([o[2:] for o in OPT if (o.startswith('dw') and o[2:].isdigit())][0]) if any((o.startswith('dw') and o[2:].isdigit()) for o in OPT) else 10
    DB = int([o[2:] for o in OPT if o.startswith('db')][0]) if any(o.startswith('db') for o in OPT) else 6

    def rec(self, fn):
        keep = self.A
        self.A = Rec()
        fn()
        l = self.A.l
        self.A = keep
        return l

    def ldx(self, dst, soff, ioff=0, voff=VL16, w=4, sc=None):
        o = f' offset:{ioff}' if ioff else ''
        wn = {1: 'dword', 2: 'dwordx2', 4: 'dwordx4'}[w]
        if sc is None:
            sc = '' if 'ldplain' in OPT else ' nt' if 'ldnt' in OPT else ' sc0' if 'ldsc0' in OPT else ' sc1'
        self.A(f'buffer_load_{wn} {dst}, {v(voff)}, {s(SRD, 4)}, {s(soff)} offen{o}{sc}')
        return self.A.vmark()

    dmant = False

    def dma(self, soff, ioff=0, voff=VL16, srd=SRD):
        o = f' offset:{ioff}' if ioff else ''
        nt = ' sc1' if (srd == SRD and 'dmaplain' not in OPT) else ''
        self.A(f'buffer_load_dwordx4 {v(voff)}, {s(srd, 4)}, {s(soff)} offen{o}{nt} lds')
        return self.A.vmark()

    def stores(self, lst, fast=sFAST):
        A = self.A
        Ls, Ld = A.newlabel('sts'), A.newlabel('std')

        def emit(sc):
            for src, soff, ioff, voff, w, ex in lst:
                o = f' offset:{ioff}' if ioff else ''
                wn = {1: 'dword', 2: 'dwordx2', 4: 'dwordx4'}[w]
                if ex:
                    A(f's_mov_b64 exec, {ex}')
                A(f'buffer_store_{wn} {src}, {v(voff)}, {s(SRD, 4)}, {s(soff)} offen{o}{sc}')
                if ex:
                    A('s_mov_b64 exec, -1')
        A(f's_cmp_eq_u32 {s(fast)}, 0')
        A(f's_cbranch_scc1 {Ls}')
        vm0 = A.vm
        emit(' nt' if 'stnt' in OPT else ' sc0' if 'stsc0' in OPT else ' sc1' if ('datasc1' in OPT and lst[0][4] != 1) else '')
        A(f's_branch {Ld}')
        A.label(Ls)
        A.vm = vm0
        emit(' sc1')
        A.label(Ld)

    njit = 0

    def jitter(self):
        js = [o for o in OPT if o.startswith('jit')]
        if not js:
            return
        k = int(js[0][3:])
        A = self.A
        self.njit += 1
        L = A.newlabel('jit')
        A(f's_mul_i32 s60, s2, {2 * k + 1}')
        A(f's_mul_i32 s61, {s(SW)}, {k + 2}')
        A('s_add_u32 s60, s60, s61')
        A(f's_add_u32 s60, s60, {self.njit * 5}')
        A('s_and_b32 s60, s60, 7')
        A(f's_cmp_lt_u32 s60, 6')
        A(f's_cbranch_scc1 {L}')
        A(f's_sleep {3 + (self.njit * 7 + k * 11) % 29}')
        A.label(L)

    def pstamp(self):
        self.jitter()
        if not self.prof:
            return
        A = self.A
        i = self.nstamp
        self.nstamp += 1
        A('s_memtime s[60:61]')
        A('s_waitcnt lgkmcnt(0)')
        A.lg_done = A.lg
        A(f'v_writelane_b32 v12, s60, {i}')

    def dbgt(self, slot, inv=False):
        if 'dbgt' not in OPT:
            return
        A = self.A
        assert A.lg == A.lg_done
        A('s_memrealtime s[60:61]')
        A('s_waitcnt lgkmcnt(0)')
        if inv:
            A('s_not_b32 s60, s60')
        A('v_mov_b32 v12, s60')
        A('s_mov_b64 exec, 1')
        A(f'buffer_atomic_umax v12, {v(VL4)}, {s(SRDD, 4)}, 0 offen offset:{slot * 4}')
        A.vm -= 1
        A('s_mov_b64 exec, -1')

    def mark(self, k, pair0=True):
        if f'mk{k}' not in OPT:
            return
        A = self.A
        L = A.newlabel('mk')
        if pair0:
            A(f's_cmp_lg_u32 {s(sPAIR)}, 0')
            A(f's_cbranch_scc1 {L}')
        A('s_memrealtime s[54:55]')
        A('s_waitcnt lgkmcnt(0)')
        A.label(L)

    def poll(self, sbase, voff, n, target=1, mode='auto', ioff=0, srd=SRD, mask=None, during=None):
        A = self.A
        L, LS, LC, D = A.newlabel('poll'), A.newlabel('polls'), A.newlabel('pollc'), A.newlabel('polld')
        o = f' offset:{ioff}' if ioff else ''
        A(f's_mov_b64 exec, {(1 << n) - 1:#x}' if n < 32 else 's_mov_b32 exec_hi, 0')
        if during and 'nodur' in OPT:
            A('s_mov_b64 exec, -1')
            during()
            A(f's_mov_b64 exec, {(1 << n) - 1:#x}')
        elif during:
            A(f'buffer_load_dword v0, {v(voff)}, {s(SRD, 4)}, {s(sbase)} offen{o} sc1')
            A('s_mov_b64 exec, -1')
            during()
            A(f's_mov_b64 exec, {(1 << n) - 1:#x}')
            A('s_waitcnt vmcnt(0)')
            A(f'v_cmp_le_u32 vcc, {target}, v0')
            A('s_cmp_eq_u64 vcc, exec')
            A(f's_cbranch_scc1 {D}')
        NP = self.NPOLL
        if mode == 'auto' and NP > 1 and not self.prof:
            LF = A.newlabel('pollf')
            regs = [12, 0]
            A(f's_cmp_eq_u32 {s(sFAST)}, 0')
            A(f's_cbranch_scc1 {L}')
            vm0 = A.vm
            for r in regs[:-1]:
                A(f'buffer_load_dword {v(r)}, {v(voff)}, {s(SRD, 4)}, {s(sbase)} offen{o} sc1')
                for _ in range(self.PGAP):
                    A('s_nop 15')
            A.label(LF)
            for i, r in enumerate(regs):
                A(f'buffer_load_dword {v(regs[i - 1])}, {v(voff)}, {s(SRD, 4)}, {s(sbase)} offen{o} sc1')
                A(f's_waitcnt vmcnt({len(regs) - 1})')
                A(f'v_cmp_le_u32 vcc, {target}, {v(r)}')
                A('s_cmp_eq_u64 vcc, exec')
                A(f's_cbranch_scc1 {D}')
            A(f's_sub_u32 {s(sTO)}, {s(sTO)}, 1')
            A(f's_cbranch_scc0 {LF}')
            A(f's_branch {self.exit}')
            A.vm = vm0
            mode = 'atomic'
        A.label(L)
        if mode == 'auto':
            A(f's_cmp_eq_u32 {s(sFAST)}, 0')
            A(f's_cbranch_scc1 {LS}')
            A(f'buffer_load_dword v3, {v(voff)}, {s(SRD, 4)}, {s(sbase)} offen{o} sc1')
            A(f's_branch {LC}')
            A.label(LS)
        if mode == 'load':
            A(f'buffer_load_dword v3, {v(voff)}, {s(srd, 4)}, {s(sbase)} offen{o} sc1')
        else:
            A('v_mov_b32 v3, 0')
            A(f'buffer_atomic_add v3, {v(voff)}, {s(SRD, 4)}, {s(sbase)} offen{o} sc0')
        A.label(LC)
        A('s_waitcnt vmcnt(0)')
        A.vm_done = A.vm
        if mask:
            A(f'v_and_b32 v22, {mask}, v3')
            A(f'v_cmp_le_u32 vcc, {target}, v22')
        else:
            A(f'v_cmp_le_u32 vcc, {target}, v3')
        A('s_cmp_eq_u64 vcc, exec')
        A(f's_cbranch_scc1 {D}')
        A(f's_sub_u32 {s(sTO)}, {s(sTO)}, 1')
        A(f's_cbranch_scc1 {self.exit}')
        if mode == 'load':
            A('s_sleep 8')
        A(f's_branch {L}')
        A.label(D)
        A('s_mov_b64 exec, -1')

    def sig(self, base, k, absv=False):
        A = self.A
        if absv:
            A(f'v_mov_b32 v3, {k}')
        else:
            A(f's_add_u32 s51, {s(sEV)}, {k}')
            A('v_mov_b32 v3, s51')
        A(f'ds_write_b32 {v(VOWN)}, v3 offset:{base - L_CF}')

    def lwait(self, base, k, tmp, sleep=0, single=False, absv=False, own=False):
        A = self.A
        L, D = A.newlabel('lw'), A.newlabel('lwd')
        A(f's_mov_b32 s51, {k}' if absv else f's_add_u32 s51, {s(sEV)}, {k}')
        A.label(L)
        if single:
            A(f'ds_read_b32 {v(tmp)}, {v(VOWN if own else VPERM)} offset:{base - L_CF}')
            A.wait_all(vm=False)
        else:
            A(f'ds_read_b128 {v(tmp, 4)}, {v(VPERM)} offset:{base - L_CF}')
            A.wait_all(vm=False)
            A(f'v_min_u32 {v(tmp)}, {v(tmp)}, {v(tmp + 1)}')
            A(f'v_min3_u32 {v(tmp)}, {v(tmp)}, {v(tmp + 2)}, {v(tmp + 3)}')
        A(f'v_cmp_le_u32 vcc, s51, {v(tmp)}')
        A(f's_cbranch_vccnz {D}')
        A(f's_sub_u32 {s(sTO)}, {s(sTO)}, 1')
        A(f's_cbranch_scc1 {self.exit}')
        if sleep:
            A(f's_sleep {sleep if sleep != 2 else self.SL}')
        A(f's_branch {L}')
        A.label(D)

    def lpeek(self, base, tmp):
        self.A(f'ds_read_b128 {v(tmp, 4)}, {v(VPERM)} offset:{base - L_CF}')
        return self.A.lmark()

    def ltest(self, mark, base, k, tmp, absv=False):
        A = self.A
        D = A.newlabel('lt')
        A(f's_mov_b32 s51, {k}' if absv else f's_add_u32 s51, {s(sEV)}, {k}')
        A.wait(lg=mark)
        A(f'v_min_u32 {v(tmp)}, {v(tmp)}, {v(tmp + 1)}')
        A(f'v_min3_u32 {v(tmp)}, {v(tmp)}, {v(tmp + 2)}, {v(tmp + 3)}')
        A(f'v_cmp_le_u32 vcc, s51, {v(tmp)}')
        A(f's_cbranch_vccnz {D}')
        lg, ld = A.lg, A.lg_done
        self.lwait(base, k, tmp, absv=absv)
        A.lg, A.lg_done = lg, ld
        A.label(D)

    def acheck(self, specs):
        marks = {}

        def pr(j):
            for n, (jj, base, k, tmp, absv, after) in enumerate(specs):
                if j == jj:
                    self.ltest(marks[n], base, k, tmp, absv)
                    if after:
                        after()
            for n, (jj, base, k, tmp, absv, after) in enumerate(specs):
                if j == jj - 1:
                    marks[n] = self.lpeek(base, tmp)
        return pr

    def flag(self, sbase, ioff, two=False, fast=sFAST, pre=None):
        self.pstamp()
        if pre:
            pre()
        self.A.wait_all(lg=False)
        self.stores([(v(VONE), sbase, ioff, VP2, 1, '0x101' if two else '1')], fast)
        self.pstamp()

    def gemm(self, KS, MT, NT, acc, xreg, ldsoff, buf, NB, xwait, hook=None, preread=None, fill=(), czero=False, fill0=1, npre=0):
        A = self.A
        vbase = {0: VL16, 1: VB64, 2: VB128}
        fill = list(fill)

        def read(j, t):
            if t == 0 and preread:
                preread(j)
            off = ldsoff(j) + t * KB
            A(f'ds_read_b128 {v(buf + ((j % NB) * NT + t) * 4, 4)}, {v(vbase[off >> 16])} offset:{off & 0xffff}')
            return A.lmark()
        marks = {}
        pre = NB
        while pre * NT > 14:
            pre -= 1
        if npre:
            pre = npre
            A.wait_all(vm=False)
        for j in range(pre):
            for t in range(NT):
                marks[(j, t)] = 0 if npre else read(j, t)
        fper = 1 if len(fill) < (KS - fill0) * (NT - 2) else 2
        nxt = [(j, t) for j in range(pre, KS) for t in range(NT)]
        for j in range(KS):
            if 'lstamp' in OPT and KS == 56 and j % 7 == 0:
                i_ = self.nstamp
                self.nstamp += 1
                A(f's_memtime {s(64 + 2 * (j // 7), 2)}')
                self.late = getattr(self, 'late', []) + [(64 + 2 * (j // 7), i_)]
                A.lg_done = max(0, A.lg_done)
            for t in range(NT):
                A.wait(vm=xwait(j) if t == 0 else None, lg=marks[(j, NT - 1 if (NB > 4 and (j, NT - 1) in marks) else min(NT - 1, t | 1) if 'w2' in OPT else t)])
                for mt in range(MT):
                    r = acc + (mt * NT + t) * 4
                    c = '0' if (czero and j == 0) else v(r, 4)
                    A(f'v_mfma_f32_16x16x32_bf16 {v(r, 4)}, {v(buf + ((j % NB) * NT + t) * 4, 4)}, {xreg(mt, j)}, {c}')
                    if mt == 0 and (MT == 2 or (t < NT - 1 if 'oldm1' in OPT else (t in (1, 3) or not nxt))):
                        n0 = len(A.lines)
                        if hook and MT == 2:
                            hook(j, t)
                        room = (2 if MT == 2 else 1) - (len(A.lines) - n0)
                        for _ in range(min(room, fper)):
                            if fill and j >= fill0:
                                A(fill.pop(0))
                if MT == 1 and 'oldm1' not in OPT:
                    for _ in range(2 if t in (0, 2) else 0):
                        if nxt and nxt[0][0] - NB < j:
                            j2, t2 = nxt.pop(0)
                            marks[(j2, t2)] = read(j2, t2)
                elif nxt:
                    j2, t2 = nxt[0]
                    if ((j2 - NB, t2) < (j, t) if 'lag' in OPT else (j2 - NB, t2) <= (j, t)):
                        marks[(j2, t2)] = read(j2, t2)
                        nxt.pop(0)
                if hook and MT == 1:
                    hook(j, t)
        assert not nxt and not fill, (len(fill))
        if 'lstamp' in OPT and KS == 56:
            A('s_waitcnt lgkmcnt(0)')
            for r_, i_ in self.late:
                A(f'v_writelane_b32 v12, {s(r_)}, {i_}')

    def wpre(self, n, NT, buf, ldsoff, j0=0):
        A = self.A
        vbase = {0: VL16, 1: VB64, 2: VB128}
        for j in range(j0, n):
            for t in range(NT):
                off = ldsoff(j) + t * KB
                A(f'ds_read_b128 {v(buf + (j * NT + t) * 4, 4)}, {v(vbase[off >> 16])} offset:{off & 0xffff}')

    def cs_read(self, NT, cs, loc):
        A = self.A
        A(f'v_and_b32 v3, 0x30, {v(VLANE)}')
        A(f'v_add_u32 v3, {loc}, v3')
        for t in range(NT):
            A(f'ds_read_b128 {v(cs + 4 * t, 4)}, v3 offset:{t * 64}')

    def gelu_consts2(self, K, rs, I, ST):
        A = self.A
        A(f'v_mul_f32 {v(K + 2)}, {v(rs)}, {v(rs)}')
        A(f'v_mul_f32 {v(K)}, {f32(G1.GC1)}, {v(rs)}')
        A(f'v_mul_f32 {v(K + 2)}, {v(K + 2)}, {v(rs)}')
        A(f'v_rcp_f32 {v(I)}, {v(rs)}')
        A(f'v_mul_f32 {v(K + 2)}, {f32(G1.GC2)}, {v(K + 2)}')
        A(f'v_mov_b32 {v(K + 1)}, {v(K)}')
        A(f'v_mov_b32 {v(K + 3)}, {v(K + 2)}')
        A(f'v_mov_b32 {v(I + 1)}, {v(I)}')
        A(f'v_mov_b32 {v(ST + 1)}, {v(ST)}')

    def gelu2(self, acc, n, K, I, tmp, out):
        A = self.A
        P = range(0, n, 2)
        for i in P:
            A(f'v_pk_mul_f32 {v(tmp + i, 2)}, {v(acc + i, 2)}, {v(acc + i, 2)}')
        for i in P:
            A(f'v_pk_fma_f32 {v(tmp + i, 2)}, {v(tmp + i, 2)}, {v(K + 2, 2)}, {v(K, 2)}')
        for i in P:
            A(f'v_pk_mul_f32 {v(tmp + i, 2)}, {v(tmp + i, 2)}, {v(acc + i, 2)}')
        for i in range(n):
            A(f'v_exp_f32 {v(tmp + i)}, {v(tmp + i)}')
        for i in P:
            A(f'v_pk_fma_f32 {v(tmp + i, 2)}, {v(tmp + i, 2)}, {v(I, 2)}, {v(I, 2)}')
        for i in range(n):
            A(f'v_rcp_f32 {v(tmp + i)}, {v(tmp + i)}')
        for i in P:
            A(f'v_pk_mul_f32 {v(tmp + i, 2)}, {v(tmp + i, 2)}, {v(acc + i, 2)}')
        if out is not None:
            self.pack(out, tmp, n // 2)

    def ln_fix(self, acc, n, cs, mean):
        for i in range(0, n, 2):
            self.A(f'v_pk_fma_f32 {v(acc + i, 2)}, {v(cs + i, 2)}, {v(mean, 2)}, {v(acc + i, 2)} neg_lo:[0,1,0] neg_hi:[0,1,0]')

    def ld_stats(self, dst, soff, ioff=0):
        self.ldx(v(dst, 2), soff, ioff, voff=VSTL, w=2)
        return self.ldx(v(dst + 2, 2), soff, ioff + 128, voff=VSTL, w=2)

    def stats_calc(self, acc, n, tmp):
        A = self.A
        S, Q = tmp, tmp + 2
        A(f'v_pk_add_f32 {v(S, 2)}, {v(acc, 2)}, {v(acc + 2, 2)}')
        A(f'v_pk_mul_f32 {v(Q, 2)}, {v(acc, 2)}, {v(acc, 2)}')
        for i in range(2, n, 2):
            if i >= 4:
                A(f'v_pk_add_f32 {v(S, 2)}, {v(S, 2)}, {v(acc + i, 2)}')
            A(f'v_pk_fma_f32 {v(Q, 2)}, {v(acc + i, 2)}, {v(acc + i, 2)}, {v(Q, 2)}')
        A(f'v_add_f32 {v(S)}, {v(S)}, {v(S + 1)}')
        A(f'v_add_f32 {v(S + 1)}, {v(Q)}, {v(Q + 1)}')
        Q = S + 1
        A(f'v_permlane32_swap_b32 {v(S)}, {v(Q)}')
        A(f'v_add_f32 {v(S)}, {v(S)}, {v(Q)}')
        A(f'v_mov_b32 {v(Q)}, {v(S)}')
        A(f'v_permlane16_swap_b32 {v(S)}, {v(Q)}')
        A(f'v_add_f32 {v(S)}, {v(S)}, {v(Q)}')
        A(f'v_mov_b32 {v(Q)}, {v(S)}')
        A(f'v_permlane32_swap_b32 {v(S)}, {v(Q)}')

    def store_tile(self, acc, tmp, DST, STD, nextpair=False, fast=sFAST):
        A = self.A
        self.pack(tmp, acc, 8)
        add = PSTRIDE if nextpair else 0
        A(f's_add_u32 s26, {s(sTILE)}, {DST + add}')
        A(f's_add_u32 s27, {s(sSTP)}, {STD + add}')
        self.stores([(v(tmp, 4), 26, 0, VL16, 4, None), (v(tmp + 4, 4), 26, KB, VL16, 4, None)], fast)
        self.stats_calc(acc, 16, tmp + 8)
        self.stores([(v(tmp + 8, 2), 27, 0, VSTL, 2, '0xffff')], fast)

    def big_pre(self, XIN, STIN):
        A = self.A
        A(f's_lshl_b32 s26, {s(sT0)}, 14')
        A(f's_add_u32 s26, s26, {s(sP)}')
        A(f's_add_u32 s26, s26, {XIN}')
        A(f's_add_u32 s27, s26, {16 * KB}')
        A(f's_lshl_b32 s28, {s(sT0)}, 10')
        A(f's_add_u32 s28, s28, {s(sP)}')
        A(f's_add_u32 s28, s28, {STIN}')
        A(f's_lshl_b32 s29, {s(sT0)}, {CSH}')
        A(f's_add_u32 s29, s29, {s(sC)}')

    def big_main(self, NT, acc, buf, XR, ST, fill, lmap, late_j, late_id, xsig, fsig):
        A = self.A
        D, RING = self.DB, 8
        sX, sX2 = 26, 27
        xm = {}

        def xload(j, mt):
            if 'noxl' in OPT and j >= D:
                xm[j] = A.vmark()
                return
            xm[j] = self.ldx(v(XR + ((j % RING) * 2 + mt) * 4, 4), sX2 if mt else sX, (j & 3) * KB)
            if (j & 3) == 3 and j < 15:
                r = sX2 if mt else sX
                A(f's_add_u32 {s(r)}, {s(r)}, {4 * KB}')
        for j in range(D):
            xload(j, 0)
            xload(j, 1)
            if j == 1:
                self.ld_stats(ST, 28)
                self.ld_stats(ST + 4, 28, KB)
        self.pstamp()

        def hook(j, t):
            if j == 0 and t == 0:
                self.sig(L_PS, 2)
            if j + D < 16:
                if t == 1:
                    xload(j + D, 0)
                if t == 4:
                    xload(j + D, 1)
                    if j + D == 15 and xsig is not None:
                        self.sig(L_CF, xsig)

        specs = [(late_j, L_CR, late_id, 252, False, None)]
        preread = self.acheck(specs)
        self.gemm(16, 2, NT, acc, lambda mt, j: v(XR + ((j % RING) * 2 + mt) * 4, 4), lmap,
                  buf, 2, lambda j: xm[j], hook, preread, fill=fill, czero=True, fill0=2, npre=2)
        if fsig is not None:
            self.sig(L_CF, fsig)
        self.pstamp()

    def small_main(self, KS, acc, buf, XR, RING, D, src, lmap, fill=(), czero=False, extra=None, hook2=None, preread=None,
                   xsig=None, fsig=None, stagger=0, NB=4, post=None):
        A = self.A
        xm = {}

        def xload(j):
            so, io, vo = src(j)
            xm[j] = self.ldx(v(XR + (j % RING) * 4, 4), so, io, voff=vo)
            if (j & 3) == 3 and j < KS - 1:
                A(f's_add_u32 {s(so)}, {s(so)}, {4 * KB}')
                if KS == 56 and 'rot4' in OPT:
                    A(f's_cmp_eq_u32 {s(so)}, s28')
                    A(f's_cselect_b32 {s(so)}, s27, {s(so)}')
        if stagger and 'stag' in OPT:
            Ls = A.newlabel('stg')
            A(f's_cmp_eq_u32 {s(SW)}, 0')
            A(f's_cbranch_scc1 {Ls}')
            self.lwait(L_ST - 4, stagger, 44, single=True, own=True)
            A.label(Ls)
        for j in range(D):
            xload(j)
            if j == 1 and extra:
                extra()
            if j == self.SG and stagger and 'stag' in OPT:
                self.sig(L_ST, stagger)
        if post:
            assert D == KS
            post()
        if D == KS and xsig is not None:
            self.sig(L_CF, xsig)
        self.pstamp()

        def hook(j, t):
            if t == 1 and j + D < KS:
                xload(j + D)
                if j + D == KS - 1 and xsig is not None:
                    self.sig(L_CF, xsig)
            if hook2:
                hook2(j, t)
        self.gemm(KS, 1, 4, acc, lambda mt, j: v(XR + 4 * (j % RING), 4), lmap, buf, NB,
                  lambda j: xm[j], hook, preread, fill=fill, czero=czero, fill0=2, npre=NB)
        if fsig is not None:
            self.sig(L_CF, fsig)
        self.pstamp()

    def stage_qkv(self):
        A = self.A
        ST, CC, acc, buf = 32, 40, 64, 96
        SCR, RSZ = 96 * KB, 336

        def f():
            for mt in range(2):
                self.stats_consume(ST + 4 * mt, 3)
                self.rstd(ST + 4 * mt + 2, ST + 4 * mt + 1)
                self.A(f'v_mov_b32 {v(ST + 4 * mt + 1)}, {v(ST + 4 * mt)}')
                self.A(f'v_mul_f32 {v(CC + 2 * mt)}, {f32(LOG2E)}, {v(ST + 4 * mt + 2)}')
                self.A(f'v_mov_b32 {v(ST + 4 * mt + 3)}, {v(ST + 4 * mt + 2)}')
            self.A(f'v_permlane32_swap_b32 {v(CC)}, {v(CC + 2)}')
            self.A(f'v_mov_b32 {v(CC + 1)}, {v(CC)}')
        Lepi = A.newlabel('qepi')
        self.qkv_first(f, acc, buf, ST, SCR, RSZ)
        A(f's_branch {Lepi}')
        A.label(self.Lp)
        A.label('.Lst_q')
        self.nstamp = 0
        if self.prof:
            A('s_memrealtime s[60:61]')
            A('s_waitcnt lgkmcnt(0)')
            A('v_writelane_b32 v12, s60, 63')
        self.pstamp()
        self.big_pre(X0, ST0)
        self.qkv_addr(SCR, RSZ)
        self.lwait(L_CR, 1, 60)
        A(f's_add_u32 s29, s29, {C_X}')
        self.poll(29, VP2, 16, during=lambda: self.wpre(2, 4, buf, map_kv))
        self.pstamp()
        D = self.DQ
        xm = {}

        def xload(j, mt):
            xm[j] = self.ldx(v(xq(mt, j), 4), 26 + mt, (j & 3) * KB)
            if (j & 3) == 3 and j < 15:
                A(f's_add_u32 {s(26 + mt)}, {s(26 + mt)}, {4 * KB}')
        for j in range(D):
            xload(j, 0)
            xload(j, 1)
            if j == 1:
                self.ld_stats(ST, 28)
                self.ld_stats(ST + 4, 28, KB)
        self.pstamp()

        def hook(j, t):
            if j + D < 16 and t in (0, 2):
                xload(j + D, t >> 1)
            self.kv_cs(j, t, buf)
        self.gemm(16, 2, 4, acc, lambda mt, j: v(xq(mt, j), 4), map_kv, buf, 2, lambda j: xm[j], hook, None,
                  fill=self.rec(f), czero=True, fill0=2, npre=2)
        self.sig(L_CF, 3)
        self.pstamp()
        A.label(Lepi)
        A('s_waitcnt lgkmcnt(1)')
        A.lg_done = max(A.lg_done, A.lg - 1)
        A('s_nop 3')
        self.qkv_epi(ST, CC, acc, buf, SCR, RSZ)

    def kv_cs(self, j, t, buf):
        if j == 15:
            self.A(f'ds_read_b128 {v(buf + 4 * t, 4)}, v13 offset:{t * 64}')

    def qkv_first(self, f, acc, buf, ST, SCR, RSZ):
        A = self.A
        PB = [128, 160, 192, 224]
        self.nstamp = 0
        if self.prof:
            A('s_memrealtime s[60:61]')
            A('s_waitcnt lgkmcnt(0)')
            A('v_writelane_b32 v12, s60, 63')
        self.pstamp()
        WA, RA = 64, 68
        A(f's_mul_i32 s34, {s(SW)}, {32 * RSZ}')
        A(f's_add_u32 s34, s34, {SCR}')
        A(f'v_lshrrev_b32 v3, 4, {v(VLANE)}')
        A(f'v_and_b32 v76, 15, {v(VLANE)}')
        A(f'v_xor_b32 v77, v76, v3')
        A(f'v_lshlrev_b32 v77, 4, v77')
        A(f'v_lshl_add_u32 v77, v3, 8, v77')
        A(f'v_add_u32 v77, s34, v77')
        for n in range(4):
            A(f'v_xor_b32 {v(WA + n)}, {n * 64}, v77')
        A(f'v_lshrrev_b32 v77, 1, v3')
        A(f'v_xor_b32 v77, v77, v76')
        A(f'v_lshlrev_b32 v77, 4, v77')
        A(f'v_lshl_add_u32 v77, v76, 8, v77')
        A(f'v_and_b32 v3, 1, v3')
        A(f'v_lshl_add_u32 v77, v3, 3, v77')
        A(f'v_add_u32 v77, s34, v77')
        for m in range(8):
            A(f'v_xor_b32 {v(RA + m)}, {m * 32}, v77')
        for i in range(4):
            A(f'v_mov_b32 {v(104 + i)}, 0x3f803f80')

        def stats(p):
            b = PB[p >> 1] + 16 * (p & 1)
            S = 108 + 8 * (p & 1)
            for i in range(4):
                z = p < 2 and i == 0
                A(f'v_mfma_f32_16x16x32_bf16 {v(S, 4)}, v[104:107], {v(b + 4 * i, 4)}, {"0" if z else v(S, 4)}')
                A(f'v_mfma_f32_16x16x32_bf16 {v(S + 4, 4)}, {v(b + 4 * i, 4)}, {v(b + 4 * i, 4)}, {"0" if z else v(S + 4, 4)}')

        if 'plate' not in OPT:
            L2 = A.newlabel('np1')
            A(f's_cmp_lg_u32 {s(SW)}, 2')
            A(f's_cbranch_scc1 {L2}')
            vm0 = A.vm
            A(f's_mov_b32 s100, {100 * KB + 2 * 32 * 336}')
            A(f's_mov_b32 s101, s2')
            self.piece_decode(101)
            A.vm = vm0
            A.label(L2)
        for p in range(8):
            b = PB[p >> 1] + 16 * (p & 1)
            A.wait(vm=self.x0m[p], lg=A.lmark())
            for n in range(4):
                A(f'ds_write_b128 {v(WA + n)}, {v(b + 4 * n, 4)} offset:{n * 1024}')
            for m in range(8):
                A(f'ds_read_b64 {v(b + 2 * m, 2)}, {v(RA + m)}')
            if p:
                stats(p - 1)
            if (p & 1) and (p >> 1) + self.XPRE < 4:
                self.x0load((p >> 1) + self.XPRE)
        A.wait_all(vm=False)
        stats(7)
        A(f'v_and_b32 v3, 3, {v(VLANE)}')
        for i in range(1, 4):
            A(f'v_cmp_eq_u32 {s(26 + 2 * i, 2)}, {i}, v3')
        A(f'v_bfe_u32 v3, {v(VLANE)}, 2, 2')
        A(f'v_lshrrev_b32 v20, 4, {v(VLANE)}')
        A(f'v_cmp_eq_u32 vcc, v3, v20')
        for mt in range(2):
            Q = 112 + 8 * mt
            for i in range(1, 4):
                A(f'v_cndmask_b32 {v(Q)}, {v(Q)}, {v(Q + i)}, {s(26 + 2 * i, 2)}')
            A(f'v_cndmask_b32 {v(ST + 4 * mt)}, 0, {v(Q - 4)}, vcc')
            A(f'v_cndmask_b32 {v(ST + 4 * mt + 1)}, 0, {v(Q)}, vcc')
            A(f'v_mov_b32 {v(ST + 4 * mt + 2)}, 0')
            A(f'v_mov_b32 {v(ST + 4 * mt + 3)}, 0')
        f()
        self.pstamp()
        L2 = A.newlabel('np2')
        A(f's_cmp_lg_u32 {s(SW)}, 2')
        A(f's_cbranch_scc1 {L2}')
        vmd = A.vm_done
        if 'plate' in OPT:
            A(f's_mov_b32 s100, {96 * KB + 2 * 32 * 336}')
            A(f's_mov_b32 s101, s2')
            self.piece_decode(101)
        A('s_waitcnt vmcnt(0)')
        self.piece_finish()
        A.vm_done = vmd
        A.label(L2)
        Ln = A.newlabel('nochk')
        A(f's_cmp_lg_u32 {s(SW)}, 0')
        A(f's_cbranch_scc1 {Ln}')
        A('s_mov_b32 s31, 0')
        vmd = A.vm_done
        self.poll(31, VL4, 1, target=32, mode='load', srd=SRDD)
        A.vm_done = vmd
        A(f'ds_write_b32 {v(VPERM)}, {v(VONE)} offset:{L_INIT - L_CF}')
        A('s_getreg_b32 s30, hwreg(HW_REG_XCC_ID)')
        A('s_and_b32 s30, s30, 15')
        A('s_mul_i32 s31, s30, s30')
        A('s_lshl_b32 s31, s31, 16')
        A('s_lshl_b32 s30, s30, 7')
        A('s_add_u32 s30, s30, s31')
        A('s_add_u32 s58, s30, 1')
        A('s_and_b32 s59, s2, 7')
        A('s_lshl_b32 s59, s59, 7')
        A(f's_add_u32 s59, s59, {XW}')
        A('v_mov_b32 v3, s58')
        A('s_mov_b64 exec, 1')
        A(f'buffer_atomic_add v3, {v(VL4)}, {s(SRD, 4)}, s59 offen')
        A('s_mov_b64 exec, -1')
        A.label(Ln)
        A(f's_mov_b64 {s(SRD2, 2)}, {s(PA, 2)}')
        A(f's_mov_b32 {s(SRD2 + 2)}, {2048 * 512 * 2}')
        A(f'v_and_b32 v3, 15, {v(VLANE)}')
        A(f'v_lshlrev_b32 v62, 10, v3')
        A(f'v_lshrrev_b32 v3, 4, {v(VLANE)}')
        A(f'v_lshl_add_u32 v62, v3, 3, v62')
        A(f's_lshl_b32 s28, {s(sT)}, 14')
        A(f's_lshl_b32 s29, {s(sCG8)}, 7')
        A(f's_add_u32 s28, s28, s29')
        self.qkv_addr(SCR, RSZ)

        def cnt2():
            L2 = A.newlabel('nc2')
            A(f's_cmp_lg_u32 {s(SW)}, 2')
            A(f's_cbranch_scc1 {L2}')
            lg, ld = A.lg, A.lg_done
            self.lwait(L_INIT, 1, 20, single=True)
            A.lg, A.lg_done = lg, ld
            A('s_waitcnt vmcnt(0)')
            self.count(99)
            A.vm -= 1
            A.label(L2)
        self.lwait(L_CR, 1, 20, sleep=1)
        if 'ed1' in OPT:
            cnt2()
        if 'eq' in OPT:
            A('s_setprio 2')
        self.mark(1)
        self.pstamp()
        for t in range(4):
            A(f'buffer_load_dwordx2 {v(RES + 8 + 2 * t, 2)}, v62, {s(SRD2, 4)}, s28 offen offset:{32 * t}')
        if 'wt' in OPT or 'wtg' in OPT:
            A(f's_lshl_b32 s30, {s(sT0)}, 14')
            A(f's_lshl_b32 s31, {s(sCG16)}, 10')
            A(f's_add_u32 s30, s30, s31')
            A(f's_add_u32 s30, s30, {OB}')
            A(f's_add_u32 s31, {s(sTILE)}, {XA}')
            A(f's_add_u32 s32, {s(sSTP)}, {STA}')
            A(f'v_and_b32 v47, 7, {v(VLANE)}')
            A(f'v_lshlrev_b32 v47, 7, v47')
            A(f'v_bfe_u32 v48, {v(VLANE)}, 3, 1')
            A(f'v_lshl_add_u32 v49, v48, 14, v47')
            A(f'v_add_u32 v49, s30, v49')
            A(f'v_lshl_add_u32 v47, v48, 10, v47')
            A(f'v_add_u32 v47, s31, v47')
            A(f'v_cmp_gt_u32 vcc, 16, {v(VLANE)}')
            A(f'v_cndmask_b32 v47, v49, v47, vcc')
            A(f'v_writelane_b32 v47, s32, 32')
            A('s_mov_b32 exec_hi, 1')
            A(f'buffer_load_dword v0, v47, {s(SRD, 4)}, 0 offen')
            A('s_mov_b32 exec_hi, -1')
        if 'wtg' in OPT:
            A(f's_mul_i32 s30, {s(sT0)}, {56 * KB}')
            A(f's_add_u32 s30, s30, {G}')
            A(f's_mul_i32 s31, {s(sCG16)}, {3 * KB}')
            A(f's_lshl_b32 s32, {s(sCG16)}, 9')
            A(f's_add_u32 s32, s32, {48 * KB - 24 * 128}')
            A(f'v_and_b32 v47, 31, {v(VLANE)}')
            A(f'v_cmp_gt_u32 vcc, 24, v47')
            A(f'v_mov_b32 v48, s32')
            A(f'v_mov_b32 v49, s31')
            A(f'v_cndmask_b32 v48, v48, v49, vcc')
            A(f'v_lshl_add_u32 v47, v47, 7, v48')
            A(f'v_lshrrev_b32 v48, 5, {v(VLANE)}')
            A(f'v_mul_u32_u24 v48, {56 * KB}, v48')
            A(f'v_add_u32 v47, v47, v48')
            A('s_mov_b32 exec_lo, 0x0fffffff')
            A('s_mov_b32 exec_hi, 0x0fffffff')
            A(f'buffer_load_dword v0, v47, {s(SRD, 4)}, s30 offen')
            A('s_mov_b64 exec, -1')
        A.vm_done = A.vm
        self.gemm(16, 2, 4, acc, lambda mt, j: v(xq(mt, j), 4), map_kv, buf, 2, lambda j: None,
                  lambda j, t: self.kv_cs(j, t, buf), self.acheck([(15, L_CS, 1, 20, True, None)]), czero=True)
        if 'ed1' not in OPT:
            cnt2()
        self.sig(L_CF, 3)
        self.pstamp()

    def qkv_addr(self, SCR, RSZ):
        A = self.A
        A(f'v_and_b32 v13, 0x30, {v(VLANE)}')
        A(f'v_add_u32 v13, {L_CSQ}, v13')
        A(f'v_lshrrev_b32 v60, 4, {v(VLANE)}')
        A(f'v_and_b32 v61, 15, {v(VLANE)}')
        A(f's_mul_i32 s30, {s(SW)}, {32 * RSZ}')
        A(f's_add_u32 s30, s30, {SCR}')
        A(f'v_mul_u32_u24 v45, {RSZ}, v61')
        A(f'v_add_u32 v45, s30, v45')
        A(f'v_lshl_add_u32 v46, v60, 3, v45')
        A(f'v_lshl_add_u32 v44, v60, 4, v45')
        A(f'v_and_b32 v3, 1, v60')
        A(f'v_lshl_add_u32 v45, v3, 6, v45')
        A(f'v_lshrrev_b32 v3, 1, v60')
        A(f'v_mul_u32_u24 v3, {16 * RSZ}, v3')
        A(f'v_add_u32 v45, v45, v3')
        A(f's_lshl_b32 s42, {s(sCG16)}, 12')
        A(f's_add_u32 s42, s42, {s(sZ)}')
        A(f's_add_u32 s42, s42, {KV}')
        A(f's_lshl_b32 s43, {s(sCG16)}, 8')
        A(f's_add_u32 s43, s43, {s(sZ)}')
        A(f's_add_u32 s43, s43, {Z}')
        A(f'v_lshlrev_b32 v50, 5, v60')
        for i in range(4):
            A(f'v_mov_b32 {v(56 + i)}, {f32(1e-6)}')

    def qkv_epi(self, ST, CC, acc, buf, SCR, RSZ):
        A = self.A
        EP, EM = 96, 112

        def softmax(P0, P1, M, off):
            cc = CC
            R = lambda i: (P0 + i) if i < 8 else (P1 + i - 8)
            for op, d in (('max', M), ('min', M + 2)):
                A(f'v_{op}3_f32 {v(d)}, {v(R(0))}, {v(R(1))}, {v(R(2))}')
                for i in range(3, 15, 2):
                    A(f'v_{op}3_f32 {v(d)}, {v(d)}, {v(R(i))}, {v(R(i + 1))}')
                A(f'v_{op}_f32 {v(d)}, {v(d)}, {v(R(15))}')
            for d in (M, M + 2):
                A(f'v_mul_f32 {v(d + 1)}, {v(d)}, {v(cc)}')
                A(f'v_mul_f32 {v(d)}, {v(d)}, {v(cc)}')
            for i in range(0, 16, 2):
                A(f'v_pk_fma_f32 {v(EP + i, 2)}, {v(R(i), 2)}, {v(cc, 2)}, {v(M, 2)} neg_lo:[0,0,1] neg_hi:[0,0,1]')
                A(f'v_pk_fma_f32 {v(EM + i, 2)}, {v(R(i), 2)}, {v(cc, 2)}, {v(M + 2, 2)} neg_lo:[0,1,0] neg_hi:[0,1,0]')
            for i in range(32):
                A(f'v_exp_f32 {v(EP + i)}, {v(EP + i)}')
            for E, d in ((EP, M + 4), (EM, M + 6)):
                A(f'v_pk_add_f32 {v(d, 2)}, {v(E, 2)}, {v(E + 2, 2)}')
                for i in range(4, 16, 2):
                    A(f'v_pk_add_f32 {v(d, 2)}, {v(d, 2)}, {v(E + i, 2)}')
            A(f'v_add_f32 {v(M + 4)}, {v(M + 4)}, {v(M + 5)}')
            A(f'v_add_f32 {v(M + 6)}, {v(M + 6)}, {v(M + 7)}')
            A(f'v_rcp_f32 {v(M + 4)}, {v(M + 4)}')
            A(f'v_rcp_f32 {v(M + 6)}, {v(M + 6)}')
            A(f'v_mov_b32 {v(M + 5)}, {v(M + 4)}')
            A(f'v_mov_b32 {v(M + 7)}, {v(M + 6)}')
            for t in range(4):
                for i in (4 * t, 4 * t + 2):
                    A(f'v_pk_mul_f32 {v(EP + i, 2)}, {v(EP + i, 2)}, {v(M + 4, 2)}')
                    A(f'v_pk_mul_f32 {v(EM + i, 2)}, {v(EM + i, 2)}, {v(M + 6, 2)}')
                self.pack(R(4 * t), EP + 4 * t, 2)
                self.pack(R(4 * t) + 2, EM + 4 * t, 2)
                if 'xb' in OPT:
                    A('s_nop 7')
                A(f'ds_write_b128 v45, {v(R(4 * t), 4)} offset:{off + 16 * t}')
                if 'xc' in OPT:
                    A('s_nop 7')
        for mt in range(2):
            self.ln_fix(acc + 16 * mt, 16, buf, ST + 4 * mt)
        for i in range(8):
            A(f'v_permlane32_swap_b32 {v(acc + i)}, {v(acc + 16 + i)}')
        for mt in range(2):
            for hh in range(2):
                r = acc + 16 * mt + 8 + 4 * hh
                for i in (0, 2):
                    A(f'v_pk_mul_f32 {v(r + i, 2)}, {v(r + i, 2)}, {v(ST + 4 * mt + 2, 2)}')
                d = acc + 24 + 4 * mt + 2 * hh if mt == 0 else r
                d = r
                self.pack(d, r, 2)
                A(f'ds_write_b64 v46, {v(d, 2)} offset:{mt * 16 * RSZ + 256 + 32 * hh}')
        softmax(acc, acc + 16, acc + 8, 128)
        self.pstamp()
        self.sig(L_CB, 1)
        if 'cd1' in OPT:
            Ld = A.newlabel('cd1')
            A(f's_cmp_lg_u32 {s(sPAIR)}, 0')
            A(f's_cbranch_scc1 {Ld}')
            self.lwait(L_INIT, 1, 60, single=True)
            A(f's_lshl_b32 s30, {s(sCG8)}, 7')
            A(f's_add_u32 s30, s30, {PC}')
            A(f'v_lshlrev_b32 v47, 10, {v(VLANE)}')
            self.poll(30, 47, 2, target=16, mode='load')
            A.label(Ld)
            self.lwait(L_CF, 3, 60)
            A(f's_lshl_b32 s30, {s(sCG8)}, 16')
            A(f's_lshl_b32 s31, {s(SW)}, 12')
            A(f's_add_u32 s30, s30, s31')
            assert map_wo(4) == 0 and map_w1(0) == 48 * KB
            for c in range(4):
                A(f's_add_u32 m0, s31, {c * 16 * KB}')
                A(f's_add_u32 s32, s30, {WO + (c + 1) * 16 * KB if c < 3 else W1}')
                for t in range(4):
                    self.dma(32, t * KB)
        self.lwait(L_CR, 2, 60)
        self.lwait(L_CS, 2, 60, absv=True)
        for t in range(2):
            A(f'ds_read_b128 {v(88 + 4 * t, 4)}, v13 offset:{(4 + t) * 64}')
        self.gemm(16, 2, 2, 72, lambda mt, j: v(xq(mt, j), 4), map_q, buf, 4, lambda j: None, czero=True)
        self.pstamp()
        if 'xd' in OPT:
            A('s_nop 15')
            A('s_nop 15')
        for mt in range(2):
            self.ln_fix(72 + 8 * mt, 8, 88, ST + 4 * mt)
        for i in range(8):
            A(f'v_permlane32_swap_b32 {v(72 + i)}, {v(80 + i)}')
        softmax(72, 80, 64, 0)
        if 'dump' in OPT:
            for i in range(6):
                A(f'v_mov_b32 {v(176 + i)}, {v(64 + i)}')
            A('v_mov_b32 v182, v88')
            A('v_mov_b32 v183, v95')
        PQ = 160
        if 'xa' in OPT:
            A.wait_all(vm=False)
        for mt in range(2):
            for hh in range(2):
                A(f'ds_read_b128 {v(PQ + 8 * mt + 4 * hh, 4)}, v44 offset:{mt * 16 * RSZ + 64 * hh}')
        A(f's_lshl_b32 s30, {s(sCG16)}, {CSH + 2}')
        A(f's_add_u32 s30, s30, {s(sC)}')
        A(f's_add_u32 s30, s30, {C_KV}')
        A(f'v_lshlrev_b32 v47, {CSH}, {v(VLANE)}')
        A(f's_lshl_b32 s26, {s(sT0)}, 14')
        A(f's_lshl_b32 s27, {s(sCG16)}, 10')
        A(f's_add_u32 s26, s26, s27')
        A(f's_add_u32 s26, s26, {s(sP)}')
        A(f's_add_u32 s26, s26, {OB}')
        A(f's_add_u32 s27, s26, {16 * KB}')
        if 'd2early' in OPT:
            self.sig(L_CF, 4)
        if 'cd1' in OPT:
            A.wait_all(lg=False)
            self.sig(L_D1, 1)
        self.pstamp()
        Lw, Lg, Lx = A.newlabel('kvw'), A.newlabel('kvg'), A.newlabel('kvx')
        A(f's_cmp_lg_u32 {s(SW)}, 0')
        A(f's_cbranch_scc1 {Lw}')
        self.lwait(L_KD, 1, 252)
        self.poll(30, 47, 4, target=16, mode='atomic')
        A.label(Lg)
        self.sig(L_GO, 1)
        A(f's_branch {Lx}')
        A.label(Lw)
        if 'gp' in OPT:
            A('s_setprio 0')
        self.lwait(L_GO, 1, 252, sleep=0, single=True)
        if 'gp' in OPT:
            A('s_setprio 2')
        A.label(Lx)
        self.pstamp()
        Lm = A.newlabel('mode')
        A(f's_cmp_eq_u32 {s(sPAIR)}, 0')
        A(f's_cbranch_scc0 {Lm}')
        A('s_waitcnt vmcnt(0)')
        self.unpack(RES, RES + 8, 8)
        self.lwait(L_MODE, 1, 252, single=True)
        A(f'v_readfirstlane_b32 {s(sFAST)}, v252')
        A(f's_sub_u32 {s(sFAST)}, {s(sFAST)}, 1')
        A.label(Lm)
        KF, ZF = 64, 80
        for i in range(16):
            self.ldx(v(KF + i), 42, 256 * i, voff=VL4, w=1, sc=' sc1')
        for hh in range(2):
            for u in range(2):
                self.ldx(v(ZF + 8 * hh + 4 * u, 4), 43, 128 * hh + 16 * u, voff=50, sc=' sc1')
        A.wait(vm=A.vmark() - 4)
        self.pack(96, KF, 8)
        A('s_waitcnt vmcnt(0) lgkmcnt(0)')
        A.vm_done, A.lg_done = A.vm, A.lg
        self.pack(104, ZF, 8)
        ND = 112
        for mt in range(2):
            for hh in range(2):
                d = ND + 16 * mt + 8 * hh
                A(f'v_mfma_f32_16x16x32_bf16 {v(d + 4, 4)}, {v(104 + 4 * hh, 4)}, {v(PQ + 8 * mt + 4 * hh, 4)}, v[56:59]')
                A(f'v_mfma_f32_16x16x32_bf16 {v(d, 4)}, {v(96 + 4 * hh, 4)}, {v(PQ + 8 * mt + 4 * hh, 4)}, 0')
        for q in range(4):
            A(f'v_rcp_f32 {v(ND + 8 * q + 4)}, {v(ND + 8 * q + 4)}')
        for q in range(4):
            A(f'v_mov_b32 {v(ND + 8 * q + 5)}, {v(ND + 8 * q + 4)}')
        for q in range(4):
            d = ND + 8 * q
            for i in (0, 2):
                A(f'v_pk_mul_f32 {v(d + i, 2)}, {v(d + i, 2)}, {v(d + 4, 2)}')
            self.pack(64 + 2 * q, d, 2)
        self.stores([(v(64, 4), 26, 0, VL16, 4, None), (v(68, 4), 27, 0, VL16, 4, None)], sFAST if ('wt' in OPT or 'wtg' in OPT) else sFG)
        if 'dump' in OPT:
            Ld = A.newlabel('dmp')
            A(f's_cmp_lg_u32 {s(sPAIR)}, 0')
            A(f's_cbranch_scc1 {Ld}')
            A(f's_lshl_b32 s30, s2, 2')
            A(f's_add_u32 s30, s30, {s(SW)}')
            A(f's_lshl_b32 s30, s30, 14')
            A(f's_add_u32 s30, s30, {DBG2}')
            for r in (160, 164, 168, 172, 96, 100, 104, 108, 64, 68, 32, 36, 40, 176, 180):
                A(f'buffer_store_dwordx4 {v(r, 4)}, {v(VL16)}, {s(SRD, 4)}, s30 offen')
                A('s_add_u32 s30, s30, 1024')
            A.label(Ld)
        self.flag(sF16, C_O - CB, two=True)

    def small_pre(self, XIN, mul=16):
        A = self.A
        A(f's_mul_i32 s26, {s(sT)}, {mul * KB}')
        A(f's_add_u32 s26, s26, {s(sP)}')
        A(f's_add_u32 s26, s26, {XIN}')
        A(f's_lshl_b32 s29, {s(sT)}, {CSH}')
        A(f's_add_u32 s29, s29, {s(sC)}')
        A(f's_add_u32 s29, s29, {CB}')

    def stage_wo(self):
        A = self.A
        XR, buf = 64, 128
        self.small_pre(OB)
        self.lwait(L_CR, 3, 44)
        if 'cd1' in OPT:
            self.lwait(L_D1, 1, 44)
        self.wpre(self.SP - 1, 4, buf, map_wo)
        self.poll(29, VL4, 16, ioff=C_O - CB, during=lambda: self.wpre(8, 4, buf, map_wo, self.SP - 1))
        self.mark(2)
        self.pstamp()
        self.small_main(16, RES, buf, XR, 16, self.DS, lambda j: (26, (j & 3) * KB, VL16), map_wo, stagger=1, NB=8)
        self.store_tile(RES, XR, XA, STA, fast=sFAST if ('wt' in OPT or 'wtg' in OPT) else sFG)
        self.flag(sF8, C_XA - CB, pre=lambda: (self.lwait(L_CR, 4, 44), self.wpre(3, 4, buf, map_w1)))

    def stage_w1(self):
        A = self.A
        ST, K, acc, XR, buf, CS = 32, 40, 48, 64, 128, 240
        self.small_pre(XA)
        A(f's_lshl_b32 s27, {s(sT)}, 10')
        A(f's_add_u32 s27, s27, {STA}')
        self.lwait(L_CS, 4, 44, absv=True)
        self.cs_read(4, CS, L_CS1)
        self.wpre(self.SP - 1, 4, buf, map_w1, 3)
        self.poll(29, VL4, 8, ioff=C_XA - CB, during=lambda: self.wpre(7, 4, buf, map_w1, self.SP - 1))
        self.pstamp()

        def f():
            A = self.A
            self.stats_consume(ST, 3)
            self.rstd(VMR + 1, ST + 1)
            A(f'v_mul_f32 {v(VMR)}, {v(ST)}, {v(VMR + 1)}')
            A(f'v_mul_f32 v38, {v(VMR + 1)}, {v(VMR + 1)}')
            A(f'v_mul_f32 v38, v38, {v(ST + 1)}')
            self.rstd(38, 38)
            A(f'v_mul_f32 v38, v38, {v(VMR + 1)}')
            self.gelu_consts2(K, 38, ST + 2, ST)
        self.small_main(16, acc, buf, XR, 16, self.DS, lambda j: (26, (j & 3) * KB, VL16), map_w1, fill=self.rec(f), czero=True,
                        extra=lambda: self.ld_stats(ST, 27), xsig=5, NB=7)
        self.sig(L_PS, 1)
        self.ln_fix(acc, 16, CS, ST)
        self.gelu2(acc, 16, K, ST + 2, XR, XR + 16)
        A(f's_add_u32 s26, {s(sTILE)}, {H}')
        Lh, Lh2 = A.newlabel('hh'), A.newlabel('hh2')
        A(f's_cmp_eq_u32 {s(sFH)}, 0')
        A(f's_cbranch_scc1 {Lh}')
        A(f's_add_u32 s27, s26, {s(sHH)}')
        A(f'buffer_store_dwordx4 {v(XR + 16, 4)}, {v(VL16)}, {s(SRD, 4)}, s27 offen sc1')
        A(f'buffer_store_dwordx4 {v(XR + 20, 4)}, {v(VL16)}, {s(SRD, 4)}, s27 offen offset:1024 sc1')
        A.label(Lh)
        self.stores([(v(XR + 16, 4), 26, 0, VL16, 4, None), (v(XR + 20, 4), 26, KB, VL16, 4, None)])
        self.pstamp()
        self.wpre(3, 4, buf, map_w2)
        self.w2_setup()
        A.wait_all(lg=False)
        A(f's_cmp_eq_u32 {s(sFH)}, 0')
        A(f's_cbranch_scc1 {Lh2}')
        A('s_mov_b64 exec, 1')
        A(f'buffer_store_dword {v(VONE)}, {v(VL4)}, {s(SRD, 4)}, {s(sF8)} offen offset:{C_HH - CB} sc1')
        A('s_mov_b64 exec, -1')
        A.label(Lh2)
        self.stores([(v(VONE), sF8, C_H - CB, VP2, 1, '1')])
        self.pstamp()

    def w2_setup(self):
        A = self.A
        acc = 48
        A(f's_lshl_b32 s26, {s(sT)}, 4')
        A(f'v_and_b32 v13, 15, {v(VLANE)}')
        A(f'v_add_u32 v13, s26, v13')
        A(f'v_and_b32 v38, 0x300, {v(VL16)}')
        A(f'v_mov_b32 v39, {OOB}')
        A(f's_movk_i32 s27, 2048')
        A(f's_lshr_b32 s28, {s(sT)}, 4')
        for gi, d in enumerate((-1, 1, -2, 2)):
            A(f'v_add_u32 v36, {d}, v13')
            A(f'v_lshrrev_b32 v37, 8, v36')
            A(f'v_cmp_ne_u32 s[30:31], s28, v37')
            A(f'v_cmp_gt_u32 vcc, s27, v36')
            A(f'v_lshrrev_b32 v3, 4, v36')
            A(f'v_lshl_add_u32 v3, v3, 14, v38')
            A(f'v_and_b32 v36, 15, v36')
            A(f'v_lshl_add_u32 v3, v36, 4, v3')
            if 'hp' not in OPT:
                A(f'v_add_u32 v37, {s(sHH)}, v3')
                A(f'v_cndmask_b32 v3, v3, v37, s[30:31]')
                A(f'v_cndmask_b32 {v(FREE + gi)}, v39, v3, vcc')
            else:
                A(f'v_add_u32 {v(240 + gi)}, {s(sHH)}, v3')
                A(f'v_cndmask_b32 {v(FREE + gi)}, v3, v39, s[30:31]')
                A(f's_and_b64 {s(32 + 2 * gi, 2)}, s[30:31], vcc')
        A(f's_mov_b32 s26, {H}')
        A(f's_and_b32 s30, {s(sT)}, 0x70')
        A(f's_or_b32 s31, {s(sT)}, 15')
        A(f'v_and_b32 v13, 2, {v(VLANE)}')
        A(f'v_add_u32 v13, -1, v13')
        A(f'v_bfe_u32 v38, {v(VLANE)}, 3, 1')
        A(f'v_mul_i32_i24 v13, v13, v38')
        A(f'v_add_u32 v13, {s(sT)}, v13')
        A(f'v_max_i32 v13, s30, v13')
        A(f'v_min_i32 v13, s31, v13')
        A(f'v_and_b32 v38, 0x1c, {v(VL4)}')
        A(f'v_lshl_add_u32 v13, v13, {CSH}, v38')
        A(f's_add_u32 s29, {s(sC)}, {C_H}')
        A(f'v_and_b32 v36, 1, {v(VLANE)}')
        A(f'v_bfe_u32 v37, {v(VLANE)}, 1, 1')
        A(f'v_lshlrev_b32 v36, 2, v36')
        A(f'v_lshl_add_u32 v36, v37, 4, v36')
        for i in range(4):
            A(f'v_mov_b32 {v(40 + i)}, {v(VMR + (i >> 1))}')
        for i in range(0, 16, 2):
            A(f'v_pk_fma_f32 {v(acc + i, 2)}, {v(RES + i, 2)}, v[42:43], v[40:41] neg_lo:[0,0,1] neg_hi:[0,0,1]')

    def stage_w2(self):
        A = self.A
        acc, XR, buf = 48, 64, 128
        self.wpre(self.SP - 1, 4, buf, map_w2, 3)
        if 'comb' not in OPT:
            self.poll(29, 13, 16, during=lambda: self.wpre(7, 4, buf, map_w2, self.SP - 1))
        else:
            def dur():
                self.wpre(7, 4, buf, map_w2, self.SP - 1)
                Le = A.newlabel('re')
                A(f's_cmp_eq_u32 {s(sRH)}, 0')
                A(f's_cbranch_scc1 {Le}')
                A(f's_add_u32 s28, {s(sRH)}, {s(sC)}')
                self.poll(28, 36, 4, mode='atomic')
                A.label(Le)
            self.poll(29, 13, 16, during=dur)
        pk5 = self.lpeek(L_CR, 44)

        def remote():
            Lr = A.newlabel('rh')
            A(f's_cmp_eq_u32 {s(sRH)}, 0')
            A(f's_cbranch_scc1 {Lr}')
            vm, vd = A.vm, A.vm_done
            A(f's_add_u32 s29, {s(sRH)}, {s(sC)}')
            self.poll(29, 36, 4, mode='atomic')
            if 'hp' in OPT:
                for gi in range(4):
                    Lg = A.newlabel('rg')
                    A(f's_cmp_eq_u64 {s(32 + 2 * gi, 2)}, 0')
                    A(f's_cbranch_scc1 {Lg}')
                    A(f's_mov_b64 exec, {s(32 + 2 * gi, 2)}')
                    A(f's_mov_b32 s29, {H + gi * 4 * KB}')
                    for q in range(4):
                        self.ldx(v(XR + 16 * gi + 4 * q, 4), 29, q * KB, voff=240 + gi)
                    A('s_mov_b64 exec, -1')
                    A.label(Lg)
                A('s_waitcnt vmcnt(0)')
            A.vm, A.vm_done = vm, vd
            A.label(Lr)
        if 'hp' not in OPT and 'comb' not in OPT:
            remote()
        self.pstamp()
        self.small_main(16, acc, buf, XR, 16, self.DS, lambda j: (26, (j & 3) * KB, FREE + (j >> 2)), map_w2, xsig=6, fsig=7, NB=7, post=None if 'hp' not in OPT else remote,
                        preread=lambda j: self.ltest(pk5, L_CR, 5, 44) if j == 7 else None)
        self.store_tile(acc, XR, X1, ST1)
        for i in range(0, 16, 2):
            A(f'v_pk_add_f32 {v(RES + i, 2)}, {v(RES + i, 2)}, {v(acc + i, 2)}')
        self.flag(sF8, C_X1 - CB, pre=None if 'nopre' in OPT else self.w3_setup)

    def w3_setup(self):
        A = self.A
        self.big_pre(X1, ST1)
        A(f's_add_u32 s29, s29, {C_X1}')
        A(f's_mul_i32 s30, {s(sT0)}, {56 * KB}')
        A(f's_add_u32 s30, s30, {s(sP)}')
        A(f's_add_u32 s30, s30, {G}')
        A(f's_lshl_b32 s32, {s(sCG16)}, 9')
        A(f's_add_u32 s32, s32, s30')
        A(f's_add_u32 s32, s32, {48 * KB}')
        A(f's_mul_i32 s31, {s(sCG16)}, {3 * KB}')
        A(f's_add_u32 s30, s30, s31')
        A(f's_add_u32 s31, s30, {56 * KB}')
        A(f'v_bfe_u32 v3, {v(VLANE)}, 4, 1')
        A(f'v_mul_u32_u24 v13, {56 * KB}, v3')
        A(f'v_lshrrev_b32 v3, 5, {v(VLANE)}')
        A(f'v_lshl_add_u32 v13, v3, 8, v13')
        A(f'v_and_b32 v3, 0xf0, {v(VL16)}')
        A(f'v_add_u32 v13, v13, v3')
        self.cs_read(7, 224, L_CS3)

    def stage_w3(self):
        A = self.A
        NT = 7
        ST, K, acc, buf, XR, CS = 32, 40, 48, 104, 160, 224
        if 'nopre' in OPT:
            self.w3_setup()
        self.lwait(L_CR, 6, 252)
        self.poll(29, VP2, 16, during=lambda: self.wpre(2, NT, buf, map_w3))
        self.pstamp()

        def f():
            for mt in range(2):
                self.stats_consume(ST + 4 * mt, 3)
                self.rstd(ST + 4 * mt + 2, ST + 4 * mt + 1)
                self.gelu_consts2(K + 4 * mt, ST + 4 * mt + 2, ST + 4 * mt + 2, ST + 4 * mt)
        self.big_main(NT, acc, buf, XR, ST, self.rec(f), map_w3, 13, 7, 8, 9)
        gm = sP if 'gsc1' in OPT else sFG
        if 'efon' not in OPT:
            for mt in range(2):
                P = acc + 28 * mt
                self.ln_fix(P, 28, CS, ST + 4 * mt)
                out = 160 + 12 * mt
                self.gelu2(P, 28, K + 4 * mt, ST + 4 * mt + 2, buf, None)
                self.pack(out, buf, 12)
                self.pack(184 + 2 * mt, buf + 24, 2)
                lst = [(v(out + 4 * q, 4), 30 + mt, q * KB, VL16, 4, None) for q in range(3)]
                if mt == 1:
                    A('v_permlane16_swap_b32 v184, v186')
                    A('v_permlane16_swap_b32 v185, v187')
                    lst.append((v(184, 4), 32, 0, 13, 4, None))
                self.stores(lst, gm)
            self.flag(sF16, C_G - CB, two=True)
            return
        self.ln_fix(acc, 28, CS, ST)
        self.ln_fix(acc + 52, 4, CS + 24, ST + 4)
        self.gelu2(acc + 52, 4, K + 4, ST + 6, buf + 28, 186)
        self.gelu2(acc, 28, K, ST + 2, buf, None)
        self.pack(184, buf + 24, 2)
        self.pack(160, buf, 12)
        A('v_permlane16_swap_b32 v184, v186')
        A('v_permlane16_swap_b32 v185, v187')
        self.stores([(v(160 + 4 * q, 4), 30, q * KB, VL16, 4, None) for q in range(3)] + [(v(184, 4), 32, 0, 13, 4, None)], gm)
        self.ln_fix(acc + 28, 24, CS, ST + 4)
        l2 = self.rec(lambda: self.gelu2(acc + 28, 24, K + 4, ST + 6, buf, 172))
        cutp = self.EF
        for x in l2[:cutp]:
            A(x)
        A.wait_all(lg=False)
        self.stores([(v(VONE), sF16, C_G - CB, VP2, 1, '1')])
        for x in l2[cutp:]:
            A(x)
        self.stores([(v(172 + 4 * q, 4), 31, q * KB, VL16, 4, None) for q in range(3)], gm)
        self.pstamp()
        A.wait_all(lg=False)
        self.stores([(v(VONE), sF16, C_G - CB, VP2, 1, '0x100')])
        self.pstamp()

    def stage_w4(self, Lfinal):
        A = self.A
        XR, buf, NB4 = 32, 96, 9
        self.small_pre(G, 56)
        if 'rot4' in OPT:
            A(f's_mov_b32 s27, s26')
            A(f's_add_u32 s28, s26, {56 * KB}')
            A(f's_mul_i32 s30, {s(sCG8)}, 7')
            A(f's_and_b32 s30, s30, 0x3c')
            A(f's_lshl_b32 s30, s30, 10')
            A(f's_add_u32 s26, s26, s30')
        self.lwait(L_CR, 8, 252)
        self.wpre(4, 4, buf, map_w4)
        self.poll(29, VL4, 16, ioff=C_G - CB, during=lambda: (self.wpre(NB4, 4, buf, map_w4, 4), self.sig(L_PS, 3)))
        self.pstamp()

        def hook2(j, t):
            if j == 16 - NB4 + 1 and t == 3:
                self.sig(L_CF, 10)
            if j == self.E11 and t == 3:
                self.sig(L_CF, 11)

        preread = self.acheck([(11, L_CR, 9, 252, False, None), (39, L_CR, 10, 252, False, None)])
        self.small_main(56, RES, buf, XR, 16, self.D4, lambda j: (26, (j & 3) * KB, VL16), map_w4,
                        hook2=hook2, preread=preread, fsig=12, NB=NB4)
        A(f's_cmp_eq_u32 {s(sPAIR)}, 1')
        A(f's_cbranch_scc1 {Lfinal}')
        self.store_tile(RES, XR, X0, ST0, nextpair=True)
        self.flag(sF8, C_X - CB + CSTRIDE)

    def dump2(self):
        if not self.prof:
            return
        A = self.A
        A(f's_lshl_b32 s55, s2, 2')
        A(f's_add_u32 s55, s55, {s(SW)}')
        A(f's_lshl_b32 s55, s55, 1')
        A(f's_add_u32 s55, s55, {s(sPAIR)}')
        A(f's_lshl_b32 s55, s55, 8')
        A(f's_add_u32 s55, s55, {DBG + 512 * 128}')
        A(f'v_writelane_b32 v12, {s(sFAST)}, 61')
        A(f'buffer_store_dword v12, {v(VL4)}, {s(SRD, 4)}, s55 offen')

    def piece_decode(self, sp):
        A = self.A
        L3, L4, LJ = A.newlabel('pd3'), A.newlabel('pd4'), A.newlabel('pdj')
        A(f's_mov_b32 s98, 0')
        A(f's_cmp_ge_u32 {s(sp)}, 832')
        A(f's_cbranch_scc1 {L4}')
        A(f's_cmp_ge_u32 {s(sp)}, 384')
        A(f's_cbranch_scc1 {L3}')
        A(f's_lshr_b32 s28, {s(sp)}, 7')
        A(f's_and_b32 s29, {s(sp)}, 7')
        A(f's_bfe_u32 s30, {s(sp)}, 0x40003')
        A(f's_cmp_eq_u32 s28, 1')
        A(f's_cselect_b64 {s(SRD2, 2)}, {s(PA + 10, 2)}, {s(PA + 12, 2)}')
        A(f's_cmp_eq_u32 s28, 0')
        A(f's_cselect_b64 {s(SRD2, 2)}, {s(PA + 6, 2)}, {s(SRD2, 2)}')
        A(f's_mov_b32 {s(SRD2 + 2)}, {512 * KB}')
        A(f's_mov_b32 s93, 1024')
        A(f's_lshl_b32 s99, s28, 3')
        A(f's_add_u32 s99, s99, s29')
        A(f's_lshl_b32 s94, s99, 4')
        A(f's_add_u32 s94, s94, s30')
        A(f's_lshl_b32 s94, s94, 12')
        A(f's_add_u32 s94, s94, {WO}')
        for t in range(1, 4):
            A(f's_add_u32 {s(94 + t)}, s94, {t * KB}')
        A(f's_branch {LJ}')
        A.label(L3)
        A(f's_sub_u32 s28, {s(sp)}, 384')
        A(f's_and_b32 s30, s28, 15')
        A(f's_lshr_b32 s29, s28, 4')
        A(f's_mov_b64 {s(SRD2, 2)}, {s(PA + 14, 2)}')
        A(f's_mov_b32 {s(SRD2 + 2)}, {1792 * KB}')
        A(f's_mov_b32 s93, 3584')
        A(f's_add_u32 s99, s29, 24')
        A(f's_mul_i32 s31, s30, {7 * KB}')
        A(f's_add_u32 s31, s31, {W3}')
        for t in range(4):
            A(f's_lshl_b32 s28, s29, 2')
            A(f's_add_u32 s28, s28, {t}')
            A(f's_mul_i32 s32, s28, 43')
            A(f's_lshr_b32 s32, s32, 8')
            A(f's_mul_i32 s33, s32, 6')
            A(f's_sub_u32 s33, s28, s33')
            A(f's_sub_u32 s36, s28, 96')
            A(f's_cmp_ge_u32 s28, 96')
            A(f's_cselect_b32 s32, s36, s32')
            A(f's_cselect_b32 s33, 6, s33')
            A(f's_lshl_b32 s36, s32, 3')
            A(f's_add_u32 s36, s36, s33')
            A(f's_lshl_b32 s36, s36, 4')
            A(f's_add_u32 s36, s36, s30')
            A(f's_lshl_b32 s36, s36, 6')
            A(f's_add_u32 {s(72 + t)}, s36, {CS3G}')
            A(f's_mul_i32 s32, s32, 112')
            A(f's_add_u32 s32, s32, s33')
            A(f's_lshl_b32 s32, s32, 10')
            A(f's_add_u32 {s(94 + t)}, s32, s31')
        A(f's_branch {LJ}')
        A.label(L4)
        A(f's_sub_u32 s28, {s(sp)}, 832')
        A(f's_and_b32 s29, s28, 7')
        A(f's_lshr_b32 s30, s28, 3')
        A(f's_mov_b64 {s(SRD2, 2)}, {s(PA + 16, 2)}')
        A(f's_mov_b32 {s(SRD2 + 2)}, {1792 * KB}')
        A(f's_mov_b32 s93, 1024')
        A(f's_add_u32 s99, s29, 52')
        A(f's_cmp_ge_u32 s30, 48')
        A(f's_cselect_b32 s98, 1, 0')
        A(f's_mul_i32 s94, s29, 56')
        if 'rot4' in OPT:
            A(f's_mul_i32 s31, s29, 7')
            A(f's_and_b32 s31, s31, 0x3c')
            A(f's_sub_u32 s31, s30, s31')
            A(f's_cselect_b32 s32, 56, 0')
            A(f's_add_u32 s31, s31, s32')
            A(f's_add_u32 s94, s94, s31')
        else:
            A(f's_add_u32 s94, s94, s30')
        A(f's_lshl_b32 s94, s94, 12')
        A(f's_add_u32 s94, s94, {W4}')
        for t in range(1, 4):
            A(f's_add_u32 {s(94 + t)}, s94, {t * KB}')
        A.label(LJ)
        A(f's_mul_i32 s92, s30, s93')
        A(f's_lshl_b32 s92, s92, 5')
        A(f's_lshl_b32 s29, s29, 7')
        A(f's_add_u32 s92, s92, s29')
        A(f's_lshl_b32 s99, s99, 7')
        A(f's_add_u32 s99, s99, {PC}')
        A(f'v_lshrrev_b32 v80, 3, {v(VLANE)}')
        A(f'v_mul_u32_u24 v80, s93, v80')
        A(f'v_lshrrev_b32 v81, 1, {v(VLANE)}')
        A(f'v_lshrrev_b32 v82, 4, {v(VLANE)}')
        A(f'v_xor_b32 v81, v81, v82')
        A(f'v_and_b32 v81, 3, v81')
        A(f'v_lshl_add_u32 v80, v81, 5, v80')
        A(f'v_and_b32 v81, 1, {v(VLANE)}')
        A(f'v_lshl_add_u32 v80, v81, 4, v80')
        A(f's_lshl_b32 s93, s93, 3')
        for i in range(4):
            A(f's_add_u32 m0, s100, {i * KB}')
            self.dma(92, 0, voff=80, srd=SRD2)
            if i < 3:
                A(f's_add_u32 s92, s92, s93')
        return A.vmark()

    def piece_finish(self):
        A = self.A
        A(f's_cmp_eq_u32 s98, 1')
        A(f's_cselect_b32 s28, 8, 4')
        A(f's_cselect_b32 s29, 4, 16')
        A(f'v_lshrrev_b32 v81, 4, {v(VLANE)}')
        A(f'v_mul_u32_u24 v81, s28, v81')
        A(f'v_bfe_u32 v82, {v(VLANE)}, 2, 2')
        A(f'v_add_u32 v81, v81, v82')
        A(f'v_and_b32 v82, 3, {v(VLANE)}')
        A(f'v_lshlrev_b32 v82, 3, v82')
        A(f'v_add_u32 v82, s100, v82')
        for u in range(2):
            if u:
                A(f'v_add_u32 v81, s29, v81')
            A(f'v_bfe_u32 v83, v81, 1, 2')
            A(f'v_lshl_add_u32 v83, v83, 5, v82')
            A(f'v_lshl_add_u32 v83, v81, 7, v83')
            for t in range(4):
                A(f'v_xor_b32 v84, {32 * t}, v83')
                A(f'ds_read_b64_tr_b16 {v(88 + 4 * t + 2 * u, 2)}, v84')
        A.wait_all(vm=False)
        for t in range(4):
            A(f'buffer_store_dwordx4 {v(88 + 4 * t, 4)}, {v(VL16)}, {s(SRD, 4)}, {s(94 + t)} offen sc1')

    def count(self, sreg):
        A = self.A
        A('s_mov_b64 exec, 1')
        A(f'buffer_atomic_add {v(VONE)}, {v(VL4)}, {s(SRD, 4)}, {s(sreg)} offen')
        A('s_mov_b64 exec, -1')

    def cs_add(self, accs, addr):
        A = self.A
        A(f'v_and_b32 v3, 15, {v(VLANE)}')
        for i in range(1, 4):
            A(f'v_cmp_eq_u32 {s(26 + 2 * i, 2)}, {i}, v3')
        for r, a_, off in accs:
            for i in range(1, 4):
                A(f'v_cndmask_b32 {v(r)}, {v(r)}, {v(r + i)}, {s(26 + 2 * i, 2)}')
        A('s_mov_b32 exec_lo, 0x000f000f')
        A('s_mov_b32 exec_hi, 0x000f000f')
        for r, a_, off in accs:
            A(f'ds_add_f32 {v(a_)}, {v(r)} offset:{off}')
        A('s_mov_b64 exec, -1')

    def loader(self):
        A = self.A
        sLW = 26
        ONES = 16
        A(f's_sub_u32 {s(sLW)}, {s(SW)}, 4')
        if 'lp' in OPT or 'lp0' in OPT:
            A('s_setprio 3')
        self.nstamp = 0
        if self.prof:
            A('v_mov_b32 v12, 0')
            A('s_memrealtime s[60:61]')
            A('s_waitcnt lgkmcnt(0)')
            A('v_writelane_b32 v12, s60, 63')
        self.pstamp()
        if 'p67' in OPT:
            Lp7 = A.newlabel('p67')
            A(f's_lshr_b32 s28, {s(sCG16)}, 1')
            A('s_cmp_lg_u32 s28, 3')
            A(f's_cbranch_scc1 {Lp7}')
            A('s_setprio 3')
            A.label(Lp7)
        if 'nohot' not in OPT:
            A(f's_mov_b64 {s(SRD2, 2)}, {s(PA + 2, 2)}')
            A(f's_mov_b32 {s(SRD2 + 2)}, {512 * 3072}')
            A('s_lshr_b32 s28, s2, 3')
            A('s_lshl_b32 s29, s2, 2')
            A('s_add_u32 s28, s28, s29')
            A('s_and_b32 s28, s28, 31')
            A('s_lshl_b32 s28, s28, 2')
            A(f's_add_u32 s28, s28, {s(sLW)}')
            A(f's_mul_i32 s28, s28, {4 * 3072}')
            A(f'v_lshrrev_b32 v40, 1, {v(VLANE)}')
            A(f'v_mul_u32_u24 v40, 3072, v40')
            A(f'v_and_b32 v41, 1, {v(VLANE)}')
            A(f'v_lshl_add_u32 v40, v41, 10, v40')
            A('s_mov_b64 exec, 0xff')
            A(f'buffer_load_dword v11, v40, {s(SRD2, 4)}, s28 offen offset:{1024 + 384}')
            A('s_mov_b64 exec, -1')
        A(f's_mov_b64 {s(SRD2, 2)}, {s(PA + 4, 2)}')
        A(f's_mov_b32 {s(SRD2 + 2)}, {32 * 512}')
        A(f's_lshl_b32 s28, {s(sCG16)}, 10')
        A(f's_mov_b32 m0, {PHL}')
        self.dma(28, srd=SRD2)
        A(f's_mov_b64 {s(SRD2, 2)}, {s(PA + 2, 2)}')
        A(f's_mov_b32 {s(SRD2 + 2)}, {512 * 3072}')
        A(f'v_lshrrev_b32 v40, 2, {v(VLANE)}')
        A(f'v_mul_u32_u24 v40, 3072, v40')
        A(f'v_lshrrev_b32 v41, 4, {v(VLANE)}')
        A(f'v_xor_b32 v41, v41, {v(VLANE)}')
        A(f'v_and_b32 v41, 3, v41')
        A(f'v_lshl_add_u32 v40, v41, 4, v40')
        A(f's_lshl_b32 s59, {s(sCG16)}, 6')
        mw = {}
        for c in range(4):
            A(f's_add_u32 s28, {s(sT0)}, {c}')
            A(f's_and_b32 s28, s28, 3')
            A(f's_lshl_b32 s28, s28, 2')
            A(f's_add_u32 s28, s28, {s(sLW)}')
            A(f's_lshl_b32 {s(40 + c)}, s28, 12')
            A(f's_lshl_b32 {s(44 + c)}, s28, 11')
            A(f's_add_u32 {s(44 + c)}, {s(44 + c)}, {64 * KB}')

        def wdma(u):
            A(f's_mul_i32 s38, {s(40 + (u & 3))}, 24')
            A(f's_add_u32 s38, s38, s59')
            for hr in range(2):
                for p in ((1, 2) if u < 4 else (0,)):
                    A(f's_add_u32 m0, {s(40 + u)}, {max(p - 1, 0) * 2 * KB + hr * KB}')
                    A(f's_add_u32 s29, s38, {hr * 16 * 3072 + p * KB}')
                    self.dma(29, 0, voff=40, srd=SRD2)
            mw[u] = A.vmark()
        for u in range(4):
            wdma(u)
        if 'p67' in OPT:
            A('s_setprio 0')
        A.wait_all(vm=False)
        self.pstamp()
        for i in range(4):
            A(f'v_mov_b32 {v(ONES + i)}, 0x3f803f80')
        A(f'v_mov_b32 {v(VONE)}, 1')
        A(f'v_and_b32 v32, 15, {v(VLANE)}')
        A(f'v_lshrrev_b32 v33, 4, {v(VLANE)}')
        A(f'v_lshrrev_b32 v34, 2, v32')
        A(f'v_lshrrev_b32 v35, 1, v33')
        A(f'v_xor_b32 v35, v35, v34')
        A(f'v_lshlrev_b32 v35, 4, v35')
        A(f'v_lshl_add_u32 v35, v32, 6, v35')
        A(f'v_and_b32 v36, 1, v33')
        A(f'v_lshl_add_u32 v35, v36, 3, v35')
        A(f'v_xor_b32 v36, 32, v35')
        A(f'v_bfe_u32 v37, {v(VLANE)}, 1, 1')
        A(f'v_xor_b32 v37, v37, v33')
        A(f'v_lshlrev_b32 v37, 4, v37')
        A(f'v_lshrrev_b32 v38, 2, {v(VLANE)}')
        A(f'v_lshl_add_u32 v37, v38, 6, v37')
        A(f'v_and_b32 v38, 1, {v(VLANE)}')
        A(f'v_lshl_add_u32 v37, v38, 3, v37')
        A(f'v_xor_b32 v38, 32, v37')
        A(f'v_and_b32 v39, 1, v34')
        A(f'v_lshlrev_b32 v39, 10, v39')
        A(f'v_lshl_add_u32 v39, v33, 8, v39')
        A(f'v_lshrrev_b32 v34, 3, v32')
        A(f'v_lshl_add_u32 v39, v34, 7, v39')
        A(f'v_and_b32 v34, 3, v32')
        A(f'v_lshl_add_u32 v39, v34, 4, v39')
        A(f'v_lshlrev_b32 v46, 3, {v(VLANE)}')
        A(f'v_add_u32 v46, {PHL}, v46')
        A(f'v_and_b32 v30, 1, v33')
        A(f'v_lshlrev_b32 v30, 6, v30')
        A(f'v_lshrrev_b32 v34, 1, v33')
        A(f'v_lshl_add_u32 v30, v34, 5, v30')
        A(f'v_add_u32 v30, {L_CSQ}, v30')
        A(f'v_lshl_add_u32 v30, v32, 2, v30')
        A(f'v_lshlrev_b32 v31, 4, v33')
        A(f'v_add_u32 v31, {PERM}, v31')
        A(f'v_lshl_add_u32 v31, v32, 2, v31')
        F, C, CSA = 104, 104, 120

        def RB(u):
            return 160 + 16 * u if u < 4 else 224 + 8 * (u - 4)

        def reads(u):
            R = RB(u)
            for r in range(4 if u < 4 else 2):
                A(f'v_add_u32 {v(64 + r)}, {s(40 + u)}, {v(35 + r)}')
            A.wait(vm=mw[u])
            if u == 0:
                A(f'ds_read_b64_tr_b16 v[20:21], v46')
                A(f'ds_read_b64_tr_b16 v[22:23], v46 offset:512')
            for hh in range(2):
                for h2 in range(2):
                    A(f'ds_read_b64 {v(R + 4 * hh + 2 * h2, 2)}, {v(64 + hh)} offset:{h2 * KB}')
            if u < 4:
                for hh in range(2):
                    for h2 in range(2):
                        A(f'ds_read_b64_tr_b16 {v(R + 8 + 4 * hh + 2 * h2, 2)}, {v(66 + hh)} offset:{2 * KB + h2 * KB}')
            return A.lmark()
        rm = reads(0)
        for u in range(8):
            R = RB(u)
            A(f'v_add_u32 v68, {s(40 + u)}, v39')
            if u < 4:
                A(f'v_add_u32 v69, {s(40 + u)}, {v(VL16)}')
            A.wait(lg=rm)
            for hh in range(2):
                for h2 in range(2):
                    A(f'v_mfma_f32_16x16x16_bf16 {v(C + 8 * hh + 4 * h2, 4)}, {v(R + 4 * hh + 2 * h2, 2)}, {v(20 + 2 * hh, 2)}, 0')
            if u < 4:
                for hh in range(2):
                    A(f'ds_write_b128 v69, {v(R + 8 + 4 * hh, 4)} offset:{(2 + hh) * KB}')
            if u not in (3, 7):
                rm = reads(u + 1)
            for hh in range(2):
                self.pack(R + 4 * hh, C + 8 * hh, 4)
                A(f'ds_write_b128 v68, {v(R + 4 * hh, 4)} offset:{hh * 64}')
            if u in (3, 7):
                self.sig(L_CR, 1 if u == 3 else 2)
            if u == self.LPU:
                A('s_setprio 3')
            for t in range(4 if u < 4 else 2):
                a_ = CSA + 4 * t + (16 if u >= 4 else 0)
                A(f'v_mfma_f32_16x16x32_bf16 {v(a_, 4)}, {v(R + 4 * t, 4)}, {v(ONES, 4)}, {"0" if (u & 3) == 0 else v(a_, 4)}')
            if u == self.QD:
                for u2 in range(4, 8):
                    wdma(u2)
            if u == 3:
                self.pstamp()
                self.cs_add([(CSA + 4 * hh, 30, hh * 16) for hh in range(2)] + [(CSA + 8 + 4 * hh, 31, (2 + hh) * 64) for hh in range(2)], None)
                self.sig(L_CS, 1, absv=True)
                A(f's_lshl_b32 s100, {s(sLW)}, 12')
                A(f's_add_u32 s100, s100, {PST}')
                A(f's_lshl_b32 s49, s2, 2')
                A(f's_add_u32 s49, s49, {s(sLW)}')
                A(f's_add_u32 s49, s49, 256')
                m_p1 = self.piece_decode(49)
                rm = reads(4)
        self.cs_add([(CSA + 16 + 4 * hh, 30, 256 + hh * 16) for hh in range(2)], None)
        self.sig(L_CS, 2, absv=True)
        A.wait_all(vm=False)
        self.pstamp()
        def pfin():
            A.wait(vm=m_p1)
            self.piece_finish()
            for t in range(4):
                A(f'v_mfma_f32_16x16x32_bf16 {v(144 + 4 * t, 4)}, {v(88 + 4 * t, 4)}, {v(ONES, 4)}, 0')
            A(f's_sub_u32 s28, s49, 384')
            A(f's_cmp_lt_u32 s28, 448')
            for t in range(4):
                A(f's_cselect_b32 {s(72 + t)}, {s(72 + t)}, {WS_USED}')
            A('s_mov_b32 exec_lo, 0x00010001')
            A('s_mov_b32 exec_hi, 0x00010001')
            for t in range(4):
                A(f'buffer_store_dwordx4 {v(144 + 4 * t, 4)}, {v(VLANE)}, {s(SRD, 4)}, {s(72 + t)} offen sc1')
            A('s_mov_b64 exec, -1')
        if 'nokf' in OPT:
            pfin()
        bases = {}
        for r, (nm, WP, scg, sz) in enumerate((('q', WQKV, sCG16, 96), ('o', WO, sCG8, 64), ('1', W1, sCG8, 64), ('2', W2, sCG8, 64),
                                               ('3', W3, sCG16, 112), ('4', W4, sCG8, 224))):
            A(f's_mul_i32 {s(52 + r)}, {s(scg)}, {sz * KB}')
            A(f's_add_u32 {s(52 + r)}, {s(52 + r)}, {WP}')
            bases[nm] = 52 + r
        self.lwait(L_INIT, 1, 24, sleep=1, single=True)
        self.pstamp()
        A('s_lshr_b32 s34, s2, 3')
        A('s_lshl_b32 s34, s34, 2')
        A(f's_add_u32 s34, s34, {s(sLW)}')
        A(f'v_lshlrev_b32 v21, 7, {v(VLANE)}')
        A(f's_lshl_b32 s37, {s(sLW)}, 10')
        for u in range(8):
            A(f's_mov_b32 {s(64 + u)}, {s(40 + u)}')
        A('v_mov_b32 v28, v39')
        SCR, RSZ = 96 * KB, 336
        A(f'v_bfe_u32 v3, {v(VLANE)}, 2, 2')
        A(f'v_lshl_add_u32 v3, v33, 3, v3')
        A(f'v_mul_u32_u24 v47, {RSZ}, v3')
        A(f'v_and_b32 v3, 3, {v(VLANE)}')
        A(f's_lshr_b32 s30, {s(sLW)}, 1')
        A(f's_and_b32 s31, {s(sLW)}, 1')
        A(f's_lshl_b32 s32, s30, 6')
        A(f's_lshl_b32 s33, s31, 3')
        A(f's_add_u32 s32, s32, s33')
        A(f's_add_u32 s32, s32, {SCR + 128}')
        A(f'v_lshl_add_u32 v4, v3, 4, v47')
        A(f'v_add_u32 v4, s32, v4')
        A(f's_lshl_b32 s32, s30, 5')
        A(f's_add_u32 s32, s32, {SCR + 256}')
        A(f'v_lshl_add_u32 v5, v3, 3, v47')
        A(f'v_add_u32 v5, s32, v5')
        A(f's_lshl_b32 s40, {s(sCG16)}, 12')
        A(f's_add_u32 s40, s40, s37')
        A(f's_add_u32 s40, s40, {KV}')
        A(f's_lshl_b32 s41, {s(sCG16)}, 8')
        A(f's_lshl_b32 s33, s30, 7')
        A(f's_add_u32 s41, s41, s33')
        A(f's_lshl_b32 s31, s31, 4')
        A(f's_add_u32 s41, s41, s31')
        A(f's_add_u32 s41, s41, {Z}')
        A(f's_lshl_b32 s48, {s(sCG16)}, {CSH + 2}')
        A(f's_add_u32 s48, s48, s37')
        A(f's_add_u32 s48, s48, {C_KV}')
        assert CSH == 10
        A(f'v_lshlrev_b32 v50, 5, v33')
        A(f'v_lshl_add_u32 v6, v32, 2, v50')
        A(f'v_mov_b32 v3, {OOB}')
        A(f'v_cmp_gt_u32 vcc, 4, v32')
        A(f'v_cndmask_b32 v6, v3, v6, vcc')
        A(f'v_cmp_eq_u32 s[42:43], 1, v32')
        A(f'v_cmp_eq_u32 s[44:45], 2, v32')
        A(f'v_cmp_eq_u32 s[46:47], 3, v32')

        def kvjob(TA, mid=None):
            TB, KVA, ZA = TA + 16, TA + 32, TA + 36
            kp = 'kprof' in OPT
            if kp:
                self.nstamp = 0
                A('s_memrealtime s[60:61]')
                A('s_waitcnt lgkmcnt(0)')
                A('v_mov_b32 v12, 0')
                A('v_writelane_b32 v12, s60, 63')
                self.pstamp()
            self.lwait(L_CF, 3, 24, sleep=2)
            if 'kp2' in OPT:
                A('s_setprio 3')
            self.lwait(L_CB, 1, 24, sleep=1 if 'kp2' in OPT else 0)
            self.jitter()
            if 'nokp' not in OPT:
                A('s_setprio 3')
            if kp:
                self.pstamp()
            for ks in range(4):
                for u2 in range(2):
                    off = (32 * ks + 4 * u2) * RSZ
                    A(f'ds_read_b64_tr_b16 {v(TA + 4 * ks + 2 * u2, 2)}, v4 offset:{off}')
                    A(f'ds_read_b64_tr_b16 {v(TB + 4 * ks + 2 * u2, 2)}, v5 offset:{off}')
                if ks == 2:
                    A.wait(lg=A.lmark() - 8)
            base = A.lmark() - 16
            for ks in range(4):
                A.wait(lg=base + 4 * ks + 4)
                A(f'v_mfma_f32_16x16x32_bf16 {v(KVA, 4)}, {v(TA + 4 * ks, 4)}, {v(TB + 4 * ks, 4)}, {"0" if ks == 0 else v(KVA, 4)}')
                A(f'v_mfma_f32_16x16x32_bf16 {v(ZA, 4)}, {v(TA + 4 * ks, 4)}, {v(ONES, 4)}, {"0" if ks == 0 else v(ZA, 4)}')
            for r in range(4):
                o = f' offset:{256 * r}' if r else ''
                A(f'buffer_atomic_add_f32 {v(KVA + r)}, {v(VL4)}, {s(SRD, 4)}, s40 offen{o}')
            for i in range(1, 4):
                A(f'v_cndmask_b32 {v(ZA)}, {v(ZA)}, {v(ZA + i)}, {s(40 + 2 * i, 2)}')
            A(f'buffer_atomic_add_f32 {v(ZA)}, v6, {s(SRD, 4)}, s41 offen')
            if kp:
                self.pstamp()
            KT = int([o[2:] for o in OPT if o.startswith('kt')][0]) if any(o.startswith('kt') for o in OPT) else 0
            if KT:
                A(f's_mul_i32 s33, s34, {14 * KB}')
                A(f's_add_u32 s33, s33, {W3}')
                A(f's_cmp_eq_u32 {s(sPAIR)}, 0')
                A(f's_cselect_b32 s33, {WS_USED}, s33')
                A(f'buffer_load_dword v20, v21, {s(SRD, 4)}, s33 offen')
                if KT > 64:
                    A(f's_add_u32 s33, s33, 8192')
                    n2 = KT - 64
                    A(f's_mov_b64 exec, {(1 << n2) - 1:#x}' if n2 < 32 else f's_mov_b32 exec_hi, {(1 << (n2 - 32)) - 1:#x}')
                    A(f'buffer_load_dword v20, v21, {s(SRD, 4)}, s33 offen')
                    A('s_mov_b64 exec, -1')
            if mid:
                m_at = A.vmark()
                A('s_setprio 0')
                mid()
                A('s_setprio 3')
                A.wait(vm=m_at)
            else:
                A(f's_waitcnt vmcnt({0 if not KT else 1 if KT <= 64 else 2})')
                A.vm_done = A.vm
            if kp:
                self.pstamp()
            self.count(48)
            self.sig(L_KD, 1)
            A('s_setprio 0')
            if kp:
                self.pstamp()
                A('s_waitcnt vmcnt(0)')
                self.pstamp()
                A(f's_lshl_b32 s33, s2, 2')
                A(f's_add_u32 s33, s33, {s(sLW)}')
                A(f's_lshl_b32 s33, s33, 8')
                A(f's_add_u32 s33, s33, {DBG + 1024 * KB}')
                A(f'buffer_store_dword v12, {v(VL4)}, {s(SRD, 4)}, s33 offen')
        L, L3 = A.newlabel('lloop'), A.newlabel('lb3')
        if 'lp0' in OPT:
            A('s_setprio 0')

        def run(nm, src0, lds0, n):
            for i in range(0, n, 4):
                if i + 4 <= n:
                    A(f's_add_u32 m0, s37, {lds0 + i * KB}')
                    A(f's_add_u32 s28, s37, {src0 + i * KB}')
                else:
                    A(f's_min_u32 s28, s37, {(n - 1 - i) * KB}')
                    A(f's_add_u32 m0, s28, {lds0 + i * KB}')
                    A(f's_add_u32 s28, s28, {src0 + i * KB}')
                A(f's_add_u32 s28, s28, {s(bases[nm])}')
                self.dma(28)

        def steps(nm, lmap, NT, j0, j1):
            j = j0
            while j < j1:
                e = j + 1
                while e < j1 and lmap(e) == lmap(e - 1) + NT * KB:
                    e += 1
                run(nm, j * NT * KB, lmap(j), (e - j) * NT)
                j = e

        def only(pair, fn):
            Lx = A.newlabel('only')
            A.wait_all(vm=False)
            A(f's_cmp_lg_u32 {s(sPAIR)}, {pair}')
            A(f's_cbranch_scc1 {Lx}')
            vmd = A.vm_done
            fn()
            A.wait_all(vm=False)
            A.vm_done = vmd
            A.label(Lx)

        def touch(base, size):
            share = size // 128
            A(f's_mul_i32 s33, s34, {share}')
            A(f's_add_u32 s33, s33, {base}')
            vm0 = A.vm
            for i in range((share + 8191) // 8192):
                A(f'buffer_load_dword v20, v21, {s(SRD, 4)}, s33 offen')
                A(f's_add_u32 s33, s33, 8192')
            A.vm = vm0

        PK_ = 28

        def pfl(base, size, trig):
            self.lwait(L_PS, trig, 24, sleep=2)
            share = size // 128
            lines = share // 128
            A(f's_mul_i32 s33, s34, {share}')
            A(f's_add_u32 s33, s33, {base}')
            A(f's_mov_b64 exec, {(1 << PK_) - 1:#x}')
            A(f's_mov_b32 s36, {(lines + PK_ - 1) // PK_}')
            Lp_ = A.newlabel('pf')
            A.label(Lp_)
            A(f'buffer_load_dword v20, v21, {s(SRD, 4)}, s33 offen')
            A(f's_add_u32 s33, s33, {PK_ * 128}')
            A('s_sub_u32 s36, s36, 1')
            A('s_cmp_lg_u32 s36, 0')
            A('s_waitcnt vmcnt(0)')
            A(f's_cbranch_scc1 {Lp_}')
            A('s_mov_b64 exec, -1')

        def need(idx0, scg, n, stride, target):
            A(f's_lshl_b32 s33, {s(scg)}, 7')
            A(f's_add_u32 s33, s33, {PC + idx0 * 128}')
            A(f'v_mul_u32_u24 v23, {stride}, v21')
            self.poll(33, 23, n, target=target, mode='load')

        def need3():
            A(f's_mul_i32 s33, {s(sCG16)}, 6')
            A(f's_lshr_b32 s33, s33, 2')
            A(f'v_add_u32 v23, s33, {v(VLANE)}')
            A(f's_lshr_b32 s33, {s(sCG16)}, 2')
            A(f's_add_u32 s33, s33, 24')
            A(f'v_writelane_b32 v23, s33, 2')
            A(f'v_lshlrev_b32 v23, 7, v23')
            A(f's_mov_b32 s33, {PC + 24 * 128}')
            self.poll(33, 23, 3, target=16, mode='load')
            A(f's_lshl_b32 s33, {s(sCG16)}, 13')
            A(f's_add_u32 s33, s33, s37')
            A(f's_add_u32 s33, s33, {CS3G}')
            A(f's_add_u32 s36, s33, 4096')
            A(f's_cmp_eq_u32 {s(sLW)}, 3')
            A(f's_cselect_b32 s36, {WS_USED}, s36')
            self.ldx(v(144, 4), 33, sc=' sc1')
            self.ldx(v(148, 4), 36, sc=' sc1')
            A(f's_lshl_b32 s33, {s(sLW)}, 6')
            A(f's_add_u32 s33, s33, {L_CS3}')
            A(f'v_and_b32 v9, 0x30, {v(VL16)}')
            A(f'v_add_u32 v9, s33, v9')
            A('s_waitcnt vmcnt(0)')
            for rot in (4, 8):
                for i in range(8):
                    A(f'v_add_f32_dpp {v(144 + i)}, {v(144 + i)}, {v(144 + i)} row_ror:{rot} row_mask:0xf bank_mask:0xf')
            for sw in (16, 32):
                for i in range(8):
                    A(f'v_mov_b32 {v(152 + i)}, {v(144 + i)}')
                for i in range(8):
                    A(f'v_permlane{sw}_swap_b32 {v(144 + i)}, {v(152 + i)}')
                for i in range(8):
                    A(f'v_add_f32 {v(144 + i)}, {v(144 + i)}, {v(152 + i)}')
            A('s_mov_b64 exec, 15')
            A('ds_write_b128 v9, v[144:147]')
            A('ds_write_b128 v9, v[148:151] offset:256')
            A('s_mov_b64 exec, -1')

        def cs_build(k, lmap, NT, loc, val, cs=(0, 1, 2, 3), first=True):
            self.lwait(L_CR, k, 24, sleep=1)
            st = NT * KB
            base = min(lmap(j) for j in range(16))
            assert sorted(lmap(j) for j in range(16)) == [base + j * st for j in range(16)]
            for c in cs:
                A(f's_mul_i32 s28, {s(sLW)}, {st}')
                A(f's_add_u32 s28, s28, {base + 4 * c * st}')
                A(f'v_add_u32 v9, s28, {v(VL16)}')
                for t in range(NT):
                    A(f'ds_read_b128 {v(92 + 4 * t, 4)}, v9 offset:{t * KB}')
                A.wait_all(vm=False)
                for t in range(NT):
                    A(f'v_mfma_f32_16x16x32_bf16 {v(CSA + 4 * t, 4)}, {v(92 + 4 * t, 4)}, {v(ONES, 4)}, {"0" if (first and c == cs[0]) else v(CSA + 4 * t, 4)}')
            if val:
                self.cs_add([(CSA + 4 * t, 31, loc - PERM + t * 64) for t in range(NT)], None)
                self.sig(L_CS, val, absv=True)

        def code_touch(lab):
            if 'ct' not in OPT:
                return
            Lpc = A.newlabel('pc')
            A('s_getpc_b64 s[30:31]')
            A.label(Lpc)
            A(f's_lshl_b32 s28, {s(sLW)}, 11')
            A(f's_add_u32 s28, s28, {lab}-{Lpc}')
            A('s_add_u32 s30, s30, s28')
            A('s_addc_u32 s31, s31, 0')
            A('s_mov_b64 exec, 0xffff')
            A('global_load_dword v20, v21, s[30:31]')
            A.vm -= 1
            A('s_mov_b64 exec, -1')

        def batch(k, parts, after=None):
            self.lwait(L_CF, k, 24, sleep=2)
            self.jitter()
            for p in parts:
                steps(*p)
            m = A.vmark()
            if after:
                after()
            A.wait(vm=m)
            self.sig(L_CR, k)
        if 'nokf' not in OPT:
            if 'ed1' in OPT:
                need(0, sCG8, 2, 8, 16)
                kvjob(104, lambda: (pfin(), steps('o', map_wo, 4, 4, 16), steps('1', map_w1, 4, 0, 4)))
            else:
                kvjob(104)
                pfin()
        self.sig(L_CS, 3, absv=True)
        A('s_waitcnt vmcnt(0)')
        A.vm_done = A.vm
        self.count(99)
        Ln = A.newlabel('nomode')
        A(f's_cmp_lg_u32 {s(sLW)}, 0')
        A(f's_cbranch_scc1 {Ln}')
        A('s_getreg_b32 s30, hwreg(HW_REG_XCC_ID)')
        A('s_and_b32 s30, s30, 15')
        A('s_mul_i32 s31, s30, s30')
        A('s_lshl_b32 s31, s31, 16')
        A('s_lshl_b32 s30, s30, 7')
        A('s_add_u32 s30, s30, s31')
        A('s_add_u32 s58, s30, 1')
        A('s_and_b32 s59, s2, 7')
        A('s_lshl_b32 s59, s59, 7')
        A(f's_add_u32 s59, s59, {XW}')
        self.poll(59, VL4, 1, target=32, mode='load', mask=0x7f)
        A('v_readfirstlane_b32 s30, v3')
        A('s_lshl_b32 s31, s58, 5')
        A('s_cmp_eq_u32 s30, s31')
        A(f's_cselect_b32 s33, {1 if "slow" in OPT else 2}, 1')
        A('v_mov_b32 v3, s33')
        A(f'ds_write_b32 {v(VPERM)}, v3 offset:{L_MODE - L_CF}')
        A.wait_all(vm=False)
        A.label(Ln)
        if 'nokf' in OPT:
            kvjob(104)
        A(f's_branch {L3}')
        A.label(L)
        A.vm_done = A.vm
        for k, us in ((1, range(4)), (2, range(4, 8))):
            self.lwait(L_CF, k, 24, sleep=2)
            if 'wp' in OPT:
                A('s_setprio 3')
            for u in us:
                A(f'v_add_u32 v9, {s(64 + u)}, v28')
                for hh in range(2):
                    A(f'ds_write_b128 v9, {v(RB(u) + 4 * hh, 4)} offset:{hh * 64}')
                if u < 4:
                    A(f'v_add_u32 v10, {s(64 + u)}, {v(VL16)}')
                    for hh in range(2):
                        A(f'ds_write_b128 v10, {v(RB(u) + 8 + 4 * hh, 4)} offset:{(2 + hh) * KB}')
            self.sig(L_CR, k)
            if 'wp' in OPT:
                A('s_setprio 0')
        D1 = [('o', map_wo, 4, 0, 4)] if ('cd1' in OPT or 'ed1' in OPT) else [('o', map_wo, 4, 0, 16), ('1', map_w1, 4, 0, 4)]
        if 'd1e' in OPT:
            self.lwait(L_CF, 3, 24, sleep=1)
            for p in D1:
                steps(*p)
        kvjob(160, (lambda: (steps('o', map_wo, 4, 4, 16), steps('1', map_w1, 4, 0, 4))) if 'ed1' in OPT else None)
        A.wait_all(vm=False)
        A.label(L3)

        def ldump():
            if 'ed1' not in OPT:
                need(0, sCG8, 2, 8, 16)
            self.lwait(L_CS, 3, 24, sleep=1, absv=True)
            if self.prof and 'kprof' not in OPT:
                self.pstamp()
                A(f's_lshl_b32 s33, s2, 2')
                A(f's_add_u32 s33, s33, {s(sLW)}')
                A(f's_lshl_b32 s33, s33, 8')
                A(f's_add_u32 s33, s33, {DBG + 1024 * KB}')
                A(f'buffer_store_dword v12, {v(VL4)}, {s(SRD, 4)}, s33 offen')
        only(0, ldump)
        if 'd1e' in OPT:
            def d1():
                for p in D1:
                    steps(*p)
                A('s_waitcnt vmcnt(0)')
            only(0, d1)
            self.sig(L_CR, 3)
        else:
            batch(3, D1)
        if 'pq' in OPT:
            only(1, lambda: pfl(W2, 1536 * KB, 1))
        if 'touch' in OPT:
            only(1, lambda: touch(W3, 1024 * KB))
        only(0, lambda: need(16, sCG8, 1, 0, 16))
        self.lwait(L_KD, 1, 24, sleep=1)
        batch(4, [('1', map_w1, 4, 4, 16), ('2', map_w2, 4, 0, 7)])
        RG = int([o[2:] for o in OPT if o.startswith('rg')][0]) if any(o.startswith('rg') for o in OPT) else 99

        def regload():
            A(f's_add_u32 s28, s37, {s(bases["4"])}')
            A(f's_add_u32 s28, s28, {39 * 4 * KB}')
            for i in range(17):
                self.ldx(v(92 + 4 * i, 4), 28, sc=' sc1')
                A(f's_add_u32 s28, s28, {4 * KB}')
                if i % RG == RG - 1:
                    A.wait_all(lg=False)
        only(0, lambda: (self.lwait(L_D1, 1, 24, sleep=1) if 'cd1' in OPT else None, cs_build(4, map_w1, 4, L_CS1, 4), A.wait_all(vm=False), need3()))
        if 'norl5' not in OPT:
            only(0, lambda: (need(52, sCG8, 1, 0, 56), self.lwait(L_PS, 1, 24, sleep=2, absv=True) if 'rlp' in OPT else None, regload()))
        batch(5, [('2', map_w2, 4, 7, 16), ('3', map_w3, 7, 0, 3)], lambda: only(0, lambda: code_touch('.Lst_w3')))
        A(f'v_add_u32 v9, s37, {v(VL16)}')
        A(f'v_add_u32 v9, {map_w3(3)}, v9')

        def w3out():
            self.lwait(L_PS, 1, 24, sleep=2)
            if 'wp' in OPT:
                A('s_setprio 3')
            for i in range(15):
                A(f'ds_write_b128 v9, {v(32 + 4 * i, 4)} offset:{i * 4 * KB}')
            if 'wp' in OPT:
                A('s_setprio 0')
        only(1, w3out)
        self.lwait(L_CF, 6, 24, sleep=2)
        run('3', 81 * KB, map_w3(3) + 60 * KB, 10)
        only(0, lambda: run('3', 21 * KB, map_w3(3), 60))
        A('s_waitcnt vmcnt(0)')
        A.vm_done = A.vm
        self.sig(L_CR, 6)

        def w3in():
            for i in range(15):
                A(f'ds_read_b128 {v(32 + 4 * i, 4)}, v9 offset:{i * 4 * KB}')
            self.sig(L_CS, 5, absv=True)
        only(0, w3in)
        batch(7, [('3', map_w3, 7, 13, 16)])
        if 'norl5' in OPT:
            only(0, lambda: need(52, sCG8, 1, 0, 56))
        if 'v2' in OPT:
            self.lwait(L_PS, 2, 24, sleep=2)
            regload()
            batch(8, [('4', map_w4, 4, 0, 11)])
        elif 'v3' in OPT:
            batch(8, [('4', map_w4, 4, 0, 11)], regload)
        else:
            def gtouch():
                Lt = A.newlabel('gt')
                A(f'ds_read_b32 v24, {v(VPERM)} offset:{L_MODE - L_CF}')
                A.wait_all(vm=False)
                A('v_readfirstlane_b32 s33, v24')
                A('s_cmp_lg_u32 s33, 2')
                A(f's_cbranch_scc1 {Lt}')
                A(f's_mul_i32 s33, s34, {7 * KB}')
                A('s_and_b32 s36, s2, 7')
                A(f's_mul_i32 s36, s36, {896 * KB}')
                A('s_add_u32 s33, s33, s36')
                A(f's_add_u32 s33, s33, {G}')
                A('s_mov_b32 exec_hi, 0xffffff')
                A(f'buffer_load_dword v20, v21, {s(SRD, 4)}, s33 offen')
                A('s_mov_b32 exec_hi, -1')
                A.label(Lt)
            self.lwait(L_PS, 2, 24, sleep=2)
            if 'gt' in OPT:
                gtouch()
            steps('4', map_w4, 4, 0, 11)
            if 'gt2' in OPT:
                gtouch()
            A.wait_all(lg=False)
            self.sig(L_CR, 8)
            self.lwait(L_CF, 8, 24, sleep=2)
            if 'nosplit' not in OPT:
                assert map_w4(23) >= map_w3(0) and map_w4(37) + 4 * KB <= map_w3(8) + 7 * KB
                self.lwait(L_CS, 5, 24, sleep=1, absv=True)
                steps('4', map_w4, 4, 23, 38)
            if 'norl5' in OPT:
                only(0, regload)
            if 'g1' in OPT:
                only(1, lambda: (self.lwait(L_CF, 8, 24, sleep=2), gtouch()))
            if 'g2' in OPT:
                only(1, gtouch)
            if 'p4' in OPT:
                only(1, lambda: touch(W4, 1792 * KB))
            only(0, lambda: (code_touch('.Lst_w4'), code_touch('.Lst_q')))
        batch(9, [('4', map_w4, 4, 11, 39)] if 'nosplit' in OPT else [('4', map_w4, 4, 11, 23), ('4', map_w4, 4, 38, 39)])
        if 'noreg' not in OPT:
            A(f'v_add_u32 v9, s37, {v(VL16)}')
            A(f'v_add_u32 v9, {map_w4(50)}, v9')
            A(f'v_add_u32 v10, {32 * KB}, v9')
            for i in range(17):
                if i == 0 and True:
                    self.lwait(L_PS, 3, 24, sleep=1)
                    if 'now10' not in OPT:
                        A('s_setprio 3')
                if i == (9 if True else 0):
                    A('s_setprio 0')
                    self.lwait(L_CF, 10, 24, sleep=1)
                    if 'now10' not in OPT:
                        A('s_setprio 3')
                o_ = map_w4(39 + i) - map_w4(50)
                A(f'ds_write_b128 {v(9 + (o_ >= 32 * KB))}, {v(92 + 4 * i, 4)} offset:{o_ - 32 * KB * (o_ >= 32 * KB)}')
            self.sig(L_CR, 10)
            if 'now10' not in OPT:
                A('s_setprio 0')
        else:
            batch(10, [('4', map_w4, 4, 39, 56)])
        A.wait_all()
        A(f's_add_u32 {s(sEV)}, {s(sEV)}, 10')
        A(f's_add_u32 s40, s40, {ZSTRIDE}')
        A(f's_add_u32 s41, s41, {ZSTRIDE}')
        A(f's_add_u32 s48, s48, {CSTRIDE}')
        A(f's_add_u32 {s(sPAIR)}, {s(sPAIR)}, 1')
        A(f's_cmp_lt_u32 {s(sPAIR)}, 2')
        A(f's_cbranch_scc1 {L}')
        A('s_endpgm')

    def main(self):
        A = self.A
        name = NAME + '_kernel'
        A.reset_kernel()
        A.raw('.p2align 8')
        A.raw(f'.globl {name}')
        A.raw(f'.type {name},@function')
        A.label(name)
        self.exit = A.newlabel('exit')
        A('s_cmp_ge_u32 s2, 256')
        A(f's_cbranch_scc1 {self.exit}')
        A(f's_load_dwordx16 {s(PA, 16)}, s[0:1], 0')
        A(f's_load_dwordx8 {s(PA + 16, 8)}, s[0:1], 64')
        if self.prof or 'dbgt' in OPT or any(o.startswith('mk') for o in OPT):
            A('s_memrealtime s[62:63]')
        Lpc = A.newlabel('pc')
        A('s_getpc_b64 s[40:41]')
        A.label(Lpc)
        if 'cpfull' in OPT:
            A('v_lshlrev_b32 v3, 7, v0')
            A(f'v_min_u32 v3, code_end-{Lpc}-4, v3')
            A('global_load_dword v13, v3, s[40:41]')
        elif 'cpnone' not in OPT:
            A('s_lshr_b32 s42, s2, 3')
            A('s_lshl_b32 s42, s42, 11')
            A('v_lshlrev_b32 v3, 2, v0')
            A('v_add_u32 v3, s42, v3')
            A(f'v_min_u32 v3, code_end-{Lpc}-4, v3')
            A('s_mov_b32 exec_lo, 1')
            A('s_mov_b32 exec_hi, 1')
            A('global_load_dword v13, v3, s[40:41]')
            A('s_mov_b64 exec, -1')
        A(f'v_and_b32 {v(VLANE)}, 63, v0')
        A(f'v_lshrrev_b32 v3, 6, v0')
        A(f'v_lshlrev_b32 {v(VL16)}, 4, {v(VLANE)}')
        A(f'v_readfirstlane_b32 {s(SW)}, v3')
        A(f's_mov_b32 {s(SRD + 2)}, {WS_USED}')
        A(f's_mov_b32 {s(SRD + 3)}, 0x00020000')
        A(f's_mov_b32 {s(SRD2 + 3)}, 0x00020000')
        A(f's_mov_b32 {s(SRDD + 2)}, 256')
        A(f's_mov_b32 {s(SRDD + 3)}, 0x00020000')
        self.tile64(sT, sCG8)
        self.tile128(sT0, sCG16)
        A(f's_mov_b32 {s(sPAIR)}, 0')
        A(f's_mov_b32 {s(sTO)}, 0x200000')
        A(f'v_lshlrev_b32 {v(VL4)}, 2, {v(VLANE)}')
        A(f's_mov_b32 {s(sEV)}, 0')
        A(f'v_mov_b32 {v(VPERM)}, {L_CF}')
        A(f's_and_b32 s26, {s(SW)}, 3')
        A(f's_lshl_b32 s26, s26, 2')
        A(f'v_add_u32 {v(VOWN)}, s26, {v(VPERM)}')
        A(f'v_cmp_gt_u32 vcc, 4, {v(VLANE)}')
        A(f'v_cndmask_b32 v3, 0, 2, vcc')
        A(f'v_add_u32 v10, {v(VL4)}, {v(VPERM)}')
        A(f'ds_write_b32 v10, v3')
        A(f'v_lshlrev_b32 v10, 2, v0')
        A(f'v_add_u32 v10, {PERM}, v10')
        A(f'v_mov_b32 v11, 0')
        A(f'ds_write_b32 v10, v11')
        LC = A.newlabel('compute')
        A('s_waitcnt lgkmcnt(0)')
        A.lg_done = A.lg
        A(f's_mov_b64 {s(SRD, 2)}, {s(PA + 22, 2)}')
        A(f's_mov_b64 {s(SRDD, 2)}, {s(PA + 20, 2)}')
        if 'wpf' in OPT:
            A('s_lshr_b32 s26, s2, 3')
            A('s_lshl_b32 s27, s2, 2')
            A('s_add_u32 s26, s26, s27')
            A('s_and_b32 s26, s26, 31')
            A('s_lshl_b32 s26, s26, 3')
            A(f's_add_u32 s26, s26, {s(SW)}')
            A(f's_mul_i32 s26, s26, 6144')
            A(f's_mov_b64 {s(SRD2, 2)}, {s(PA + 2, 2)}')
            A(f's_mov_b32 {s(SRD2 + 2)}, {512 * 3072}')
            A(f'v_lshlrev_b32 v10, 7, {v(VLANE)}')
            A('s_mov_b32 exec_hi, 0xffff')
            A(f'buffer_load_dword v13, v10, {s(SRD2, 4)}, s26 offen')
            A('s_mov_b32 exec_hi, -1')
        A(f's_cmp_lt_u32 {s(SW)}, 4')
        A('s_barrier')
        A(f's_cbranch_scc1 {LC}')
        self.loader()
        A.label(LC)
        A.flush_hazards()
        A.vm = A.vm_done = A.lg = A.lg_done = 0
        if 'eq' not in OPT:
            A('s_setprio 2')
        A(f's_lshl_b32 {s(sT0)}, {s(sT0)}, 3')
        A(f's_lshl_b32 s26, {s(SW)}, 1')
        A(f's_add_u32 {s(sT0)}, {s(sT0)}, s26')
        Lz = A.newlabel('nz')
        A(f's_cmp_lt_u32 s2, 32')
        A(f's_cselect_b32 s58, {s(SW)}, 0')
        A(f's_cmp_lg_u32 s58, 3')
        A(f's_cbranch_scc1 {Lz}')
        for i in range(4):
            A(f'v_mov_b32 {v(28 + i)}, 0')
        A(f's_mul_i32 s28, s2, {5 * KB}')
        A(f's_add_u32 s28, s28, {ZR}')
        A(f's_add_u32 s29, s28, {4 * KB}')
        A(f's_and_b32 s30, s2, 7')
        A(f's_lshl_b32 s30, s30, 14')
        A(f's_lshr_b32 s31, s2, 3')
        A(f's_lshl_b32 s31, s31, 12')
        A(f's_add_u32 s30, s30, s31')
        A(f's_add_u32 s30, s30, {CB}')
        assert CB == ZR + 160 * KB
        for i in range(9):
            r, o = (28, i) if i < 4 else (29, 0) if i == 4 else (30, i - 5)
            A(f'buffer_store_dwordx4 v[28:31], {v(VL16)}, {s(SRD, 4)}, {s(r)} offen offset:{o * KB} sc1')
        A('v_mov_b32 v3, 1')
        A('s_waitcnt vmcnt(0)')
        A('s_mov_b64 exec, 1')
        A(f'buffer_atomic_add v3, {v(VL4)}, {s(SRDD, 4)}, 0 offen')
        A('s_mov_b64 exec, -1')
        A.label(Lz)
        A.vm_done = A.vm
        A('s_nop 0')
        A(f's_mov_b64 {s(SRD2, 2)}, {s(PA, 2)}')
        A(f's_mov_b32 {s(SRD2 + 2)}, {2048 * 512 * 2}')
        A(f'v_lshrrev_b32 v3, 4, {v(VLANE)}')
        A(f'v_and_b32 v10, 0xf0, {v(VL16)}')
        A(f'v_lshl_add_u32 v10, v3, 10, v10')
        A(f's_lshl_b32 s92, {s(sT0)}, 14')
        for i in range(1, 8):
            A(f's_add_u32 {s(92 + i)}, s92, {i * 4096}')
        PB = [128, 160, 192, 224]
        self.x0m = []

        def x0load(q4):
            for mt in range(2):
                for n in range(4):
                    self.ld(v(PB[q4] + 16 * mt + 4 * n, 4), 92 + 4 * mt + n, 256 * q4, voff=10, srd=SRD2)
                self.x0m.append(A.vmark())
        self.x0load = x0load
        for q4 in range(self.XPRE):
            x0load(q4)
        A(f's_mov_b32 {s(sP)}, 0')
        A(f's_mov_b32 {s(sZ)}, 0')
        A(f's_mov_b32 {s(sC)}, 0')
        A(f's_mov_b32 {s(sFAST)}, 0')
        A(f's_mov_b32 {s(sFG)}, 0')
        A(f's_lshl_b32 {s(sT)}, {s(sT)}, 2')
        A(f's_add_u32 {s(sT)}, {s(sT)}, {s(SW)}')
        A(f's_lshl_b32 {s(sTILE)}, {s(sT)}, 14')
        A(f's_lshl_b32 s26, {s(sCG8)}, 11')
        A(f's_add_u32 {s(sTILE)}, {s(sTILE)}, s26')
        A(f's_lshl_b32 {s(sSTP)}, {s(sT)}, 10')
        A(f's_lshl_b32 s26, {s(sCG8)}, 7')
        A(f's_add_u32 {s(sSTP)}, {s(sSTP)}, s26')
        A(f's_mov_b32 {s(sHH)}, {HH - H}')
        A(f's_and_b32 s26, {s(sT)}, 15')
        A(f's_bitcmp1_b32 {s(sCG8)}, 1')
        A(f's_cselect_b32 s27, 0, 15')
        A(f's_cmp_eq_u32 s26, s27')
        A(f's_cselect_b32 {s(sFH)}, 1, 0')
        A(f's_lshl_b32 s27, {s(sT)}, {CSH}')
        A(f's_add_u32 s28, s27, {C_HH - (1 << CSH)}')
        A(f's_add_u32 s27, s27, {C_HH + (1 << CSH) + 8}')
        A(f's_cmp_eq_u32 s26, 15')
        A(f's_cselect_b32 {s(sRH)}, s27, 0')
        A(f's_cmp_eq_u32 s26, 0')
        A(f's_cselect_b32 {s(sRH)}, s28, {s(sRH)}')
        A(f's_cmp_eq_u32 {s(sT)}, 0')
        A(f's_cselect_b32 {s(sRH)}, 0, {s(sRH)}')
        A(f's_cmp_eq_u32 {s(sT)}, 127')
        A(f's_cselect_b32 {s(sRH)}, 0, {s(sRH)}')
        for f, t, c in ((sF8, sT, sCG8), (sF16, sT0, sCG16)):
            A(f's_lshl_b32 {s(f)}, {s(t)}, {CSH}')
            A(f's_lshl_b32 s26, {s(c)}, 2')
            A(f's_add_u32 {s(f)}, {s(f)}, s26')
            A(f's_add_u32 {s(f)}, {s(f)}, {CB}')
        A(f'v_add_u32 {v(VB64)}, 0x10000, {v(VL16)}')
        A(f'v_add_u32 {v(VB128)}, 0x20000, {v(VL16)}')
        A(f'v_and_b32 {v(VSTL)}, 0x300, {v(VL16)}')
        A(f'v_and_b32 v3, 15, {v(VLANE)}')
        A(f'v_lshl_add_u32 {v(VSTL)}, v3, 3, {v(VSTL)}')
        A(f'v_mov_b32 {v(VONE)}, 1')
        A(f'v_lshrrev_b32 {v(VP2)}, 3, {v(VLANE)}')
        A(f'v_and_b32 v3, 0x1c, {v(VL4)}')
        A(f'v_lshl_add_u32 {v(VP2)}, {v(VP2)}, {CSH}, v3')
        A('v_mov_b32 v12, 0')
        if self.prof:
            A('v_writelane_b32 v12, s62, 60')
        A.wait(vm=self.x0m[0])
        self.Lp = A.newlabel('pair')
        Lfinal = A.newlabel('final')
        self.stage_qkv()
        self.stage_wo()
        self.stage_w1()
        self.stage_w2()
        A.label('.Lst_w3')
        self.stage_w3()
        A.label('.Lst_w4')
        self.stage_w4(Lfinal)
        self.dump2()
        self.mark(3)
        if 'dbgt' in OPT:
            A('s_memrealtime s[60:61]')
            A('s_waitcnt lgkmcnt(0)')
            A('s_mov_b32 s94, s60')
        A(f's_mov_b32 {s(sPAIR)}, 1')
        A(f's_mov_b32 {s(sEV)}, 10')
        A(f's_mov_b32 {s(sHH)}, {HH - H + 2048 * KB}')
        A(f's_mov_b32 {s(sFG)}, {s(sFAST)}')
        A(f's_mov_b32 {s(sZ)}, {ZSTRIDE}')
        A(f's_mov_b32 {s(sC)}, {CSTRIDE}')
        A(f's_add_u32 {s(sF8)}, {s(sF8)}, {CSTRIDE}')
        A(f's_add_u32 {s(sF16)}, {s(sF16)}, {CSTRIDE}')
        A(f's_branch {self.Lp}')
        A.label(Lfinal)
        buf = 64
        A(f's_mov_b64 {s(SRD2, 2)}, {s(PA + 18, 2)}')
        A(f'v_and_b32 v13, 15, {v(VLANE)}')
        A(f'v_lshlrev_b32 v13, 10, v13')
        A(f'v_bfe_u32 v3, {v(VLANE)}, 4, 1')
        A(f'v_lshl_add_u32 v13, v3, 5, v13')
        A(f'v_lshrrev_b32 v3, 5, {v(VLANE)}')
        A(f'v_lshl_add_u32 v13, v3, 4, v13')
        A(f's_lshl_b32 s28, {s(sT)}, 14')
        A(f's_lshl_b32 s29, {s(sCG8)}, 7')
        A(f's_add_u32 s28, s28, s29')
        self.pack(buf, RES, 8)
        for q in range(2):
            b = buf + 4 * q
            A(f'v_permlane16_swap_b32 {v(b)}, {v(b + 2)}')
            A(f'v_permlane16_swap_b32 {v(b + 1)}, {v(b + 3)}')
        for q in range(2):
            self.stsfx = ' sc1' if 'osc1' in OPT else ' nt' if 'ont' in OPT else ''
            self.st(v(buf + 4 * q, 4), 28, 64 * q, voff=13, srd=SRD2)
        if 'dbgt' in OPT:
            A('s_not_b32 s62, s62')
            A('v_mov_b32 v12, s62')
            A('s_mov_b64 exec, 1')
            A(f'buffer_atomic_umax v12, {v(VL4)}, {s(SRDD, 4)}, 0 offen offset:32')
            A('s_mov_b64 exec, -1')
        self.dbgt(9)
        for i_, r_ in enumerate((92, 93, 94)):
            if 'dbgt' in OPT:
                A(f'v_mov_b32 v12, {s(r_)}')
                A('s_mov_b64 exec, 1')
                A(f'buffer_atomic_umax v12, {v(VL4)}, {s(SRDD, 4)}, 0 offen offset:{40 + 4 * i_}')
                A('s_mov_b64 exec, -1')
        if self.prof:
            A('s_memrealtime s[60:61]')
            A('s_waitcnt lgkmcnt(0)')
            A('v_writelane_b32 v12, s60, 62')
        self.dump2()
        self.mark(4, False)
        if any(o.startswith('mk') for o in OPT):
            Ls = A.newlabel('spin')
            A('s_memrealtime s[56:57]')
            A('s_waitcnt lgkmcnt(0)')
            A('s_sub_u32 s54, s54, s62')
            A.label(Ls)
            A('s_memrealtime s[58:59]')
            A('s_waitcnt lgkmcnt(0)')
            A('s_sub_u32 s58, s58, s56')
            A('s_cmp_lt_u32 s58, s54')
            A(f's_cbranch_scc1 {Ls}')
        A.label(self.exit)
        A('s_endpgm')
        A.label('code_end')
        if 'ct' in OPT:
            A.raw('.fill 2048, 4, 0xbf810000')
        self.kernels.append((name, A.maxv + 1, (A.maxv + 4) // 4 * 4, A.maxs + 1))

    def build(self, hdr):
        self.main()
        out = [hdr]
        out.append(f'; @launch grid=(256,1,1) block=(512,1,1) lds={160 * KB}')
        out.append('.amdgcn_target "amdgcn-amd-amdhsa--gfx950"')
        out.append('.text')
        out.append(self.A.text())
        out.append('.section .rodata,"a"')
        for n, nv, accum, ns in self.kernels:
            assert nv <= 256
            out.append('.p2align 6')
            out.append(f'.amdhsa_kernel {n}')
            out.append(f'  .amdhsa_next_free_vgpr {nv}')
            out.append(f'  .amdhsa_next_free_sgpr {max(ns, 16)}')
            out.append(f'  .amdhsa_accum_offset {accum}')
            out.append('  .amdhsa_group_segment_fixed_size 0')
            out.append('  .amdhsa_kernarg_size 96')
            out.append('  .amdhsa_user_sgpr_count 2')
            out.append('  .amdhsa_user_sgpr_kernarg_segment_ptr 1')
            out.append('  .amdhsa_system_sgpr_workgroup_id_x 1')
            out.append('  .amdhsa_float_denorm_mode_32 3')
            out.append('.end_amdhsa_kernel')
        return '\n'.join(out) + '\n'


if __name__ == '__main__':
    OPT.add('d2early')
    g = Gen3()
    g.prof = 'prof' in OPT
    txt = g.build(header())
    out = sys.argv[1]
    if out == '-':
        out = f'cdna_kernels/{NAME}.s'
    open(out, 'w').write(txt)
    json.dump(LAYOUT, open('layout.json', 'w'))
    for k in g.kernels:
        print(k)
    print('nops inserted', g.A.nops, 'ws used', WS_USED, 'stamps', g.nstamp)
```

```python
import sys, json
import gen as G1
from gen import Gen, KB, NAME, f32, LOG2E, OOB, SRD, SW, SRD2, VL16, VLANE, header
from asmlib import v, a, s

OPT = set(sys.argv[2:])

_off = 0
def _alloc(n):
    global _off
    r = _off
    _off += (n + 4095) // 4096 * 4096
    return r
WQKV = _alloc(1536 * KB); WO = _alloc(512 * KB); W1 = _alloc(512 * KB); W2 = _alloc(512 * KB)
W3 = _alloc(1792 * KB); W4 = _alloc(1792 * KB)
CSQ = _alloc(16 * KB); CS1 = _alloc(8 * KB); CS3 = _alloc(16 * KB); DUMMY = _alloc(4 * KB)
ZR = _alloc(288 * KB)
ZSTRIDE = 68 * KB
KV = ZR
Z = KV + 64 * KB
PC = ZR + 136 * KB
XW = ZR + 146 * KB
CSH = 10
CB = ZR + 160 * KB
C_X, C_O, C_XA, C_H, C_X1, C_G, C_KV, C_HH = [CB + 128 * i for i in range(8)]
CSTRIDE = 64
X0 = _alloc(2048 * KB); ST0 = _alloc(128 * KB); OB = _alloc(2048 * KB); G = _alloc(7168 * KB)
HH = _alloc(4096 * KB)
CS3G = _alloc(128 * KB)
XA = X1 = X0
STA = ST1 = ST0
H = OB
PSTRIDE = 0
DBG = _alloc(16 * 512 * 128 * 2)
DBG2 = _alloc(1024 * 16 * KB if 'dump' in OPT else 4096)
WS_USED = _off
LAYOUT = {k: val for k, val in globals().items() if k.isupper() and isinstance(val, int)}
for k_, v_ in LAYOUT.items():
    setattr(G1, k_, v_)

sT, sCG8, sT0, sCG16, sP, sPAIR, sZ, sTO = 16, 17, 18, 19, 20, 21, 22, 23
sTILE, sSTP, sC, sFAST, sFH = 24, 25, 44, 45, 46
sFG = 49
sHH, sRH = 52, 53
sF8, sF16 = 47, 48
VB64, VB128, VSTL, VL4, VONE, VP2 = 4, 5, 6, 7, 8, 9
VMR = 10
RES = 16
FREE = 32
PERM = 156 * KB
L_CSQ, L_CS1, L_CS3 = PERM, PERM + 384, PERM + 640
L_CF, L_CR, L_CB, L_MODE, L_GO = PERM + 2048, PERM + 2064, PERM + 2080, PERM + 2096, PERM + 2100
L_PS = PERM + 2112
L_CS = PERM + 2128
L_INIT = PERM + 2104
L_KD = PERM + 2176
L_D1 = PERM + 2192
L_ST = PERM + 2148
PA = 64
SRDD = 88
PST = 138 * KB
PHL = 154 * KB
sEV = 50
VPERM = 15
VOWN = 14
GR = 4 * KB
def map_wo(j): return (35 + j) * GR if j < 4 else (j - 4) * GR
def map_w1(j): return (12 + j) * GR
def map_w2(j): return (28 + j) * GR if j < 11 else (j - 11) * GR
def map_w3(j): return ((j + 3) % 16) * 7 * KB
def map_w4(j):
    if j >= 39: j -= 39
    return (28 + j) * GR if j < 11 else (22 + j - 11) * GR if j < 17 else (j - 17) * GR
def map_kv(j): return j * 4 * KB
def map_q(j): return 64 * KB + j * 2 * KB
def xq(mt, j): return 128 + (j >> 2) * 32 + mt * 16 + (j & 3) * 4


DOC = """; Persistent kernel, one workgroup per CU (generated by a hand-written Python emitter).
;  waves 0-3: compute (MFMA 16x16x32 bf16, outputs transposed: lane = token), waves 4-7: loaders (weights -> LDS).
;  LayerNorm is applied as rstd*(x@W - mean*colsum(W)) with row statistics handed on by the producing stage;
;  w_phi is folded into Wq/Wk at start; softmax subtracts the true row max / min.
;  Stages hand activations over through d_ws in MFMA-fragment order with per-tile flag words (zeroed at start,
;  ordered by a counter in d_debug).  When the 32 workgroups with equal id%8 report the same XCC id the hand-offs use
;  s_sleep appears only inside spin-waits; every spin is bounded."""


class Rec:
    def __init__(self):
        self.l = []

    def __call__(self, t):
        self.l.append(t)


class Gen3(Gen):
    persist = False
    first_wait = False
    XGO = int([o[3:] for o in OPT if o.startswith('xgo')][0]) if any(o.startswith('xgo') for o in OPT) else 2
    NPRE = int([o[4:] for o in OPT if o.startswith('npre')][0]) if any(o.startswith('npre') for o in OPT) else 3
    XPRE = int([o[4:] for o in OPT if o.startswith('xpre')][0]) if any(o.startswith('xpre') for o in OPT) else 4
    DQ = int([o[2:] for o in OPT if o.startswith('dq')][0]) if any(o.startswith('dq') for o in OPT) else 6
    QD = int([o[2:] for o in OPT if o.startswith('qd')][0]) if any(o.startswith('qd') for o in OPT) else 1
    NPOLL = int([o[2:] for o in OPT if o.startswith('np')][0]) if any(o.startswith('np') for o in OPT) else 1
    PGAP = int([o[2:] for o in OPT if o.startswith('pg')][0]) if any(o.startswith('pg') for o in OPT) else 2
    SP = int([o[2:] for o in OPT if (o.startswith('sp') and len(o) == 3)][0]) if any((o.startswith('sp') and len(o) == 3) for o in OPT) else 5
    LPU = int([o[3:] for o in OPT if o.startswith('lpu')][0]) if any(o.startswith('lpu') for o in OPT) else 9
    E11 = int([o[1:] for o in OPT if o.startswith('e') and o[1:].isdigit()][0]) if any(o.startswith('e') and o[1:].isdigit() for o in OPT) else 48
    SL = int([o[2:] for o in OPT if o.startswith('sl') and o[2:].isdigit()][0]) if any(o.startswith('sl') and o[2:].isdigit() for o in OPT) else 2
    EF = int([o[2:] for o in OPT if o.startswith('ef') and o[2:].isdigit()][0]) if any(o.startswith('ef') and o[2:].isdigit() for o in OPT) else 72
    DS = int([o[2:] for o in OPT if o.startswith('ds')][0]) if any(o.startswith('ds') for o in OPT) else 16
    SG = int([o[2:] for o in OPT if o.startswith('sg')][0]) if any(o.startswith('sg') for o in OPT) else 11
    D4 = int([o[2:] for o in OPT if (o.startswith('dw') and o[2:].isdigit())][0]) if any((o.startswith('dw') and o[2:].isdigit()) for o in OPT) else 10
    DB = int([o[2:] for o in OPT if o.startswith('db')][0]) if any(o.startswith('db') for o in OPT) else 6

    def rec(self, fn):
        keep = self.A
        self.A = Rec()
        fn()
        l = self.A.l
        self.A = keep
        return l

    def ldx(self, dst, soff, ioff=0, voff=VL16, w=4, sc=None):
        o = f' offset:{ioff}' if ioff else ''
        wn = {1: 'dword', 2: 'dwordx2', 4: 'dwordx4'}[w]
        if sc is None:
            sc = '' if 'ldplain' in OPT else ' nt' if 'ldnt' in OPT else ' sc0' if 'ldsc0' in OPT else ' sc1'
        self.A(f'buffer_load_{wn} {dst}, {v(voff)}, {s(SRD, 4)}, {s(soff)} offen{o}{sc}')
        return self.A.vmark()

    dmant = False

    def dma(self, soff, ioff=0, voff=VL16, srd=SRD):
        o = f' offset:{ioff}' if ioff else ''
        nt = ' sc1' if (srd == SRD and 'dmaplain' not in OPT) else ''
        self.A(f'buffer_load_dwordx4 {v(voff)}, {s(srd, 4)}, {s(soff)} offen{o}{nt} lds')
        return self.A.vmark()

    def stores(self, lst, fast=sFAST):
        A = self.A
        Ls, Ld = A.newlabel('sts'), A.newlabel('std')

        def emit(sc):
            for src, soff, ioff, voff, w, ex in lst:
                o = f' offset:{ioff}' if ioff else ''
                wn = {1: 'dword', 2: 'dwordx2', 4: 'dwordx4'}[w]
                if ex:
                    A(f's_mov_b64 exec, {ex}')
                A(f'buffer_store_{wn} {src}, {v(voff)}, {s(SRD, 4)}, {s(soff)} offen{o}{sc}')
                if ex:
                    A('s_mov_b64 exec, -1')
        A(f's_cmp_eq_u32 {s(fast)}, 0')
        A(f's_cbranch_scc1 {Ls}')
        vm0 = A.vm
        emit(' nt' if 'stnt' in OPT else ' sc0' if 'stsc0' in OPT else ' sc1' if ('datasc1' in OPT and lst[0][4] != 1) else '')
        A(f's_branch {Ld}')
        A.label(Ls)
        A.vm = vm0
        emit(' sc1')
        A.label(Ld)

    njit = 0

    def jitter(self):
        js = [o for o in OPT if o.startswith('jit')]
        if not js:
            return
        k = int(js[0][3:])
        A = self.A
        self.njit += 1
        L = A.newlabel('jit')
        A(f's_mul_i32 s60, s2, {2 * k + 1}')
        A(f's_mul_i32 s61, {s(SW)}, {k + 2}')
        A('s_add_u32 s60, s60, s61')
        A(f's_add_u32 s60, s60, {self.njit * 5}')
        A('s_and_b32 s60, s60, 7')
        A(f's_cmp_lt_u32 s60, 6')
        A(f's_cbranch_scc1 {L}')
        A(f's_sleep {3 + (self.njit * 7 + k * 11) % 29}')
        A.label(L)

    def pstamp(self):
        self.jitter()
        if not self.prof:
            return
        A = self.A
        i = self.nstamp
        self.nstamp += 1
        A('s_memtime s[60:61]')
        A('s_waitcnt lgkmcnt(0)')
        A.lg_done = A.lg
        A(f'v_writelane_b32 v12, s60, {i}')

    def dbgt(self, slot, inv=False):
        if 'dbgt' not in OPT:
            return
        A = self.A
        assert A.lg == A.lg_done
        A('s_memrealtime s[60:61]')
        A('s_waitcnt lgkmcnt(0)')
        if inv:
            A('s_not_b32 s60, s60')
        A('v_mov_b32 v12, s60')
        A('s_mov_b64 exec, 1')
        A(f'buffer_atomic_umax v12, {v(VL4)}, {s(SRDD, 4)}, 0 offen offset:{slot * 4}')
        A.vm -= 1
        A('s_mov_b64 exec, -1')

    def mark(self, k, pair0=True):
        if f'mk{k}' not in OPT:
            return
        A = self.A
        L = A.newlabel('mk')
        if pair0:
            A(f's_cmp_lg_u32 {s(sPAIR)}, 0')
            A(f's_cbranch_scc1 {L}')
        A('s_memrealtime s[54:55]')
        A('s_waitcnt lgkmcnt(0)')
        A.label(L)

    def poll(self, sbase, voff, n, target=1, mode='auto', ioff=0, srd=SRD, mask=None, during=None):
        A = self.A
        L, LS, LC, D = A.newlabel('poll'), A.newlabel('polls'), A.newlabel('pollc'), A.newlabel('polld')
        o = f' offset:{ioff}' if ioff else ''
        A(f's_mov_b64 exec, {(1 << n) - 1:#x}' if n < 32 else 's_mov_b32 exec_hi, 0')
        if during and 'nodur' in OPT:
            A('s_mov_b64 exec, -1')
            during()
            A(f's_mov_b64 exec, {(1 << n) - 1:#x}')
        elif during:
            A(f'buffer_load_dword v0, {v(voff)}, {s(SRD, 4)}, {s(sbase)} offen{o} sc1')
            A('s_mov_b64 exec, -1')
            during()
            A(f's_mov_b64 exec, {(1 << n) - 1:#x}')
            A('s_waitcnt vmcnt(0)')
            A(f'v_cmp_le_u32 vcc, {target}, v0')
            A('s_cmp_eq_u64 vcc, exec')
            A(f's_cbranch_scc1 {D}')
        NP = self.NPOLL
        if mode == 'auto' and NP > 1 and not self.prof:
            LF = A.newlabel('pollf')
            regs = [12, 0]
            A(f's_cmp_eq_u32 {s(sFAST)}, 0')
            A(f's_cbranch_scc1 {L}')
            vm0 = A.vm
            for r in regs[:-1]:
                A(f'buffer_load_dword {v(r)}, {v(voff)}, {s(SRD, 4)}, {s(sbase)} offen{o} sc1')
                for _ in range(self.PGAP):
                    A('s_nop 15')
            A.label(LF)
            for i, r in enumerate(regs):
                A(f'buffer_load_dword {v(regs[i - 1])}, {v(voff)}, {s(SRD, 4)}, {s(sbase)} offen{o} sc1')
                A(f's_waitcnt vmcnt({len(regs) - 1})')
                A(f'v_cmp_le_u32 vcc, {target}, {v(r)}')
                A('s_cmp_eq_u64 vcc, exec')
                A(f's_cbranch_scc1 {D}')
            A(f's_sub_u32 {s(sTO)}, {s(sTO)}, 1')
            A(f's_cbranch_scc0 {LF}')
            A(f's_branch {self.exit}')
            A.vm = vm0
            mode = 'atomic'
        A.label(L)
        if mode == 'auto':
            A(f's_cmp_eq_u32 {s(sFAST)}, 0')
            A(f's_cbranch_scc1 {LS}')
            A(f'buffer_load_dword v3, {v(voff)}, {s(SRD, 4)}, {s(sbase)} offen{o} sc1')
            A(f's_branch {LC}')
            A.label(LS)
        if mode == 'load':
            A(f'buffer_load_dword v3, {v(voff)}, {s(srd, 4)}, {s(sbase)} offen{o} sc1')
        else:
            A('v_mov_b32 v3, 0')
            A(f'buffer_atomic_add v3, {v(voff)}, {s(SRD, 4)}, {s(sbase)} offen{o} sc0')
        A.label(LC)
        A('s_waitcnt vmcnt(0)')
        A.vm_done = A.vm
        if mask:
            A(f'v_and_b32 v22, {mask}, v3')
            A(f'v_cmp_le_u32 vcc, {target}, v22')
        else:
            A(f'v_cmp_le_u32 vcc, {target}, v3')
        A('s_cmp_eq_u64 vcc, exec')
        A(f's_cbranch_scc1 {D}')
        A(f's_sub_u32 {s(sTO)}, {s(sTO)}, 1')
        A(f's_cbranch_scc1 {self.exit}')
        if mode == 'load':
            A('s_sleep 8')
        A(f's_branch {L}')
        A.label(D)
        A('s_mov_b64 exec, -1')

    def sig(self, base, k, absv=False):
        A = self.A
        if absv:
            A(f'v_mov_b32 v3, {k}')
        else:
            A(f's_add_u32 s51, {s(sEV)}, {k}')
            A('v_mov_b32 v3, s51')
        A(f'ds_write_b32 {v(VOWN)}, v3 offset:{base - L_CF}')

    def lwait(self, base, k, tmp, sleep=0, single=False, absv=False, own=False):
        A = self.A
        L, D = A.newlabel('lw'), A.newlabel('lwd')
        A(f's_mov_b32 s51, {k}' if absv else f's_add_u32 s51, {s(sEV)}, {k}')
        A.label(L)
        if single:
            A(f'ds_read_b32 {v(tmp)}, {v(VOWN if own else VPERM)} offset:{base - L_CF}')
            A.wait_all(vm=False)
        else:
            A(f'ds_read_b128 {v(tmp, 4)}, {v(VPERM)} offset:{base - L_CF}')
            A.wait_all(vm=False)
            A(f'v_min_u32 {v(tmp)}, {v(tmp)}, {v(tmp + 1)}')
            A(f'v_min3_u32 {v(tmp)}, {v(tmp)}, {v(tmp + 2)}, {v(tmp + 3)}')
        A(f'v_cmp_le_u32 vcc, s51, {v(tmp)}')
        A(f's_cbranch_vccnz {D}')
        A(f's_sub_u32 {s(sTO)}, {s(sTO)}, 1')
        A(f's_cbranch_scc1 {self.exit}')
        if sleep:
            A(f's_sleep {sleep if sleep != 2 else self.SL}')
        A(f's_branch {L}')
        A.label(D)

    def lpeek(self, base, tmp):
        self.A(f'ds_read_b128 {v(tmp, 4)}, {v(VPERM)} offset:{base - L_CF}')
        return self.A.lmark()

    def ltest(self, mark, base, k, tmp, absv=False):
        A = self.A
        D = A.newlabel('lt')
        A(f's_mov_b32 s51, {k}' if absv else f's_add_u32 s51, {s(sEV)}, {k}')
        A.wait(lg=mark)
        A(f'v_min_u32 {v(tmp)}, {v(tmp)}, {v(tmp + 1)}')
        A(f'v_min3_u32 {v(tmp)}, {v(tmp)}, {v(tmp + 2)}, {v(tmp + 3)}')
        A(f'v_cmp_le_u32 vcc, s51, {v(tmp)}')
        A(f's_cbranch_vccnz {D}')
        lg, ld = A.lg, A.lg_done
        self.lwait(base, k, tmp, absv=absv)
        A.lg, A.lg_done = lg, ld
        A.label(D)

    def acheck(self, specs):
        marks = {}

        def pr(j):
            for n, (jj, base, k, tmp, absv, after) in enumerate(specs):
                if j == jj:
                    self.ltest(marks[n], base, k, tmp, absv)
                    if after:
                        after()
            for n, (jj, base, k, tmp, absv, after) in enumerate(specs):
                if j == jj - 1:
                    marks[n] = self.lpeek(base, tmp)
        return pr

    def flag(self, sbase, ioff, two=False, fast=sFAST, pre=None):
        self.pstamp()
        if pre:
            pre()
        self.A.wait_all(lg=False)
        self.stores([(v(VONE), sbase, ioff, VP2, 1, '0x101' if two else '1')], fast)
        self.pstamp()

    def gemm(self, KS, MT, NT, acc, xreg, ldsoff, buf, NB, xwait, hook=None, preread=None, fill=(), czero=False, fill0=1, npre=0):
        A = self.A
        vbase = {0: VL16, 1: VB64, 2: VB128}
        fill = list(fill)

        def read(j, t):
            if t == 0 and preread:
                preread(j)
            off = ldsoff(j) + t * KB
            A(f'ds_read_b128 {v(buf + ((j % NB) * NT + t) * 4, 4)}, {v(vbase[off >> 16])} offset:{off & 0xffff}')
            return A.lmark()
        marks = {}
        pre = NB
        while pre * NT > 14:
            pre -= 1
        if npre:
            pre = npre
            A.wait_all(vm=False)
        for j in range(pre):
            for t in range(NT):
                marks[(j, t)] = 0 if npre else read(j, t)
        fper = 1 if len(fill) < (KS - fill0) * (NT - 2) else 2
        nxt = [(j, t) for j in range(pre, KS) for t in range(NT)]
        for j in range(KS):
            if 'lstamp' in OPT and KS == 56 and j % 7 == 0:
                i_ = self.nstamp
                self.nstamp += 1
                A(f's_memtime {s(64 + 2 * (j // 7), 2)}')
                self.late = getattr(self, 'late', []) + [(64 + 2 * (j // 7), i_)]
                A.lg_done = max(0, A.lg_done)
            for t in range(NT):
                A.wait(vm=xwait(j) if t == 0 else None, lg=marks[(j, NT - 1 if (NB > 4 and (j, NT - 1) in marks) else min(NT - 1, t | 1) if 'w2' in OPT else t)])
                for mt in range(MT):
                    r = acc + (mt * NT + t) * 4
                    c = '0' if (czero and j == 0) else v(r, 4)
                    A(f'v_mfma_f32_16x16x32_bf16 {v(r, 4)}, {v(buf + ((j % NB) * NT + t) * 4, 4)}, {xreg(mt, j)}, {c}')
                    if mt == 0 and (MT == 2 or (t < NT - 1 if 'oldm1' in OPT else (t in (1, 3) or not nxt))):
                        n0 = len(A.lines)
                        if hook and MT == 2:
                            hook(j, t)
                        room = (2 if MT == 2 else 1) - (len(A.lines) - n0)
                        for _ in range(min(room, fper)):
                            if fill and j >= fill0:
                                A(fill.pop(0))
                if MT == 1 and 'oldm1' not in OPT:
                    for _ in range(2 if t in (0, 2) else 0):
                        if nxt and nxt[0][0] - NB < j:
                            j2, t2 = nxt.pop(0)
                            marks[(j2, t2)] = read(j2, t2)
                elif nxt:
                    j2, t2 = nxt[0]
                    if ((j2 - NB, t2) < (j, t) if 'lag' in OPT else (j2 - NB, t2) <= (j, t)):
                        marks[(j2, t2)] = read(j2, t2)
                        nxt.pop(0)
                if hook and MT == 1:
                    hook(j, t)
        assert not nxt and not fill, (len(fill))
        if 'lstamp' in OPT and KS == 56:
            A('s_waitcnt lgkmcnt(0)')
            for r_, i_ in self.late:
                A(f'v_writelane_b32 v12, {s(r_)}, {i_}')

    def wpre(self, n, NT, buf, ldsoff, j0=0):
        A = self.A
        vbase = {0: VL16, 1: VB64, 2: VB128}
        for j in range(j0, n):
            for t in range(NT):
                off = ldsoff(j) + t * KB
                A(f'ds_read_b128 {v(buf + (j * NT + t) * 4, 4)}, {v(vbase[off >> 16])} offset:{off & 0xffff}')

    def cs_read(self, NT, cs, loc):
        A = self.A
        A(f'v_and_b32 v3, 0x30, {v(VLANE)}')
        A(f'v_add_u32 v3, {loc}, v3')
        for t in range(NT):
            A(f'ds_read_b128 {v(cs + 4 * t, 4)}, v3 offset:{t * 64}')

    def gelu_consts2(self, K, rs, I, ST):
        A = self.A
        A(f'v_mul_f32 {v(K + 2)}, {v(rs)}, {v(rs)}')
        A(f'v_mul_f32 {v(K)}, {f32(G1.GC1)}, {v(rs)}')
        A(f'v_mul_f32 {v(K + 2)}, {v(K + 2)}, {v(rs)}')
        A(f'v_rcp_f32 {v(I)}, {v(rs)}')
        A(f'v_mul_f32 {v(K + 2)}, {f32(G1.GC2)}, {v(K + 2)}')
        A(f'v_mov_b32 {v(K + 1)}, {v(K)}')
        A(f'v_mov_b32 {v(K + 3)}, {v(K + 2)}')
        A(f'v_mov_b32 {v(I + 1)}, {v(I)}')
        A(f'v_mov_b32 {v(ST + 1)}, {v(ST)}')

    def gelu2(self, acc, n, K, I, tmp, out):
        A = self.A
        P = range(0, n, 2)
        for i in P:
            A(f'v_pk_mul_f32 {v(tmp + i, 2)}, {v(acc + i, 2)}, {v(acc + i, 2)}')
        for i in P:
            A(f'v_pk_fma_f32 {v(tmp + i, 2)}, {v(tmp + i, 2)}, {v(K + 2, 2)}, {v(K, 2)}')
        for i in P:
            A(f'v_pk_mul_f32 {v(tmp + i, 2)}, {v(tmp + i, 2)}, {v(acc + i, 2)}')
        for i in range(n):
            A(f'v_exp_f32 {v(tmp + i)}, {v(tmp + i)}')
        for i in P:
            A(f'v_pk_fma_f32 {v(tmp + i, 2)}, {v(tmp + i, 2)}, {v(I, 2)}, {v(I, 2)}')
        for i in range(n):
            A(f'v_rcp_f32 {v(tmp + i)}, {v(tmp + i)}')
        for i in P:
            A(f'v_pk_mul_f32 {v(tmp + i, 2)}, {v(tmp + i, 2)}, {v(acc + i, 2)}')
        if out is not None:
            self.pack(out, tmp, n // 2)

    def ln_fix(self, acc, n, cs, mean):
        for i in range(0, n, 2):
            self.A(f'v_pk_fma_f32 {v(acc + i, 2)}, {v(cs + i, 2)}, {v(mean, 2)}, {v(acc + i, 2)} neg_lo:[0,1,0] neg_hi:[0,1,0]')

    def ld_stats(self, dst, soff, ioff=0):
        self.ldx(v(dst, 2), soff, ioff, voff=VSTL, w=2)
        return self.ldx(v(dst + 2, 2), soff, ioff + 128, voff=VSTL, w=2)

    def stats_calc(self, acc, n, tmp):
        A = self.A
        S, Q = tmp, tmp + 2
        A(f'v_pk_add_f32 {v(S, 2)}, {v(acc, 2)}, {v(acc + 2, 2)}')
        A(f'v_pk_mul_f32 {v(Q, 2)}, {v(acc, 2)}, {v(acc, 2)}')
        for i in range(2, n, 2):
            if i >= 4:
                A(f'v_pk_add_f32 {v(S, 2)}, {v(S, 2)}, {v(acc + i, 2)}')
            A(f'v_pk_fma_f32 {v(Q, 2)}, {v(acc + i, 2)}, {v(acc + i, 2)}, {v(Q, 2)}')
        A(f'v_add_f32 {v(S)}, {v(S)}, {v(S + 1)}')
        A(f'v_add_f32 {v(S + 1)}, {v(Q)}, {v(Q + 1)}')
        Q = S + 1
        A(f'v_permlane32_swap_b32 {v(S)}, {v(Q)}')
        A(f'v_add_f32 {v(S)}, {v(S)}, {v(Q)}')
        A(f'v_mov_b32 {v(Q)}, {v(S)}')
        A(f'v_permlane16_swap_b32 {v(S)}, {v(Q)}')
        A(f'v_add_f32 {v(S)}, {v(S)}, {v(Q)}')
        A(f'v_mov_b32 {v(Q)}, {v(S)}')
        A(f'v_permlane32_swap_b32 {v(S)}, {v(Q)}')

    def store_tile(self, acc, tmp, DST, STD, nextpair=False, fast=sFAST):
        A = self.A
        self.pack(tmp, acc, 8)
        add = PSTRIDE if nextpair else 0
        A(f's_add_u32 s26, {s(sTILE)}, {DST + add}')
        A(f's_add_u32 s27, {s(sSTP)}, {STD + add}')
        self.stores([(v(tmp, 4), 26, 0, VL16, 4, None), (v(tmp + 4, 4), 26, KB, VL16, 4, None)], fast)
        self.stats_calc(acc, 16, tmp + 8)
        self.stores([(v(tmp + 8, 2), 27, 0, VSTL, 2, '0xffff')], fast)

    def big_pre(self, XIN, STIN):
        A = self.A
        A(f's_lshl_b32 s26, {s(sT0)}, 14')
        A(f's_add_u32 s26, s26, {s(sP)}')
        A(f's_add_u32 s26, s26, {XIN}')
        A(f's_add_u32 s27, s26, {16 * KB}')
        A(f's_lshl_b32 s28, {s(sT0)}, 10')
        A(f's_add_u32 s28, s28, {s(sP)}')
        A(f's_add_u32 s28, s28, {STIN}')
        A(f's_lshl_b32 s29, {s(sT0)}, {CSH}')
        A(f's_add_u32 s29, s29, {s(sC)}')

    def big_main(self, NT, acc, buf, XR, ST, fill, lmap, late_j, late_id, xsig, fsig):
        A = self.A
        D, RING = self.DB, 8
        sX, sX2 = 26, 27
        xm = {}

        def xload(j, mt):
            if 'noxl' in OPT and j >= D:
                xm[j] = A.vmark()
                return
            xm[j] = self.ldx(v(XR + ((j % RING) * 2 + mt) * 4, 4), sX2 if mt else sX, (j & 3) * KB)
            if (j & 3) == 3 and j < 15:
                r = sX2 if mt else sX
                A(f's_add_u32 {s(r)}, {s(r)}, {4 * KB}')
        for j in range(D):
            xload(j, 0)
            xload(j, 1)
            if j == 1:
                self.ld_stats(ST, 28)
                self.ld_stats(ST + 4, 28, KB)
        self.pstamp()

        def hook(j, t):
            if j == 0 and t == 0:
                self.sig(L_PS, 2)
            if j + D < 16:
                if t == 1:
                    xload(j + D, 0)
                if t == 4:
                    xload(j + D, 1)
                    if j + D == 15 and xsig is not None:
                        self.sig(L_CF, xsig)

        specs = [(late_j, L_CR, late_id, 252, False, None)]
        preread = self.acheck(specs)
        self.gemm(16, 2, NT, acc, lambda mt, j: v(XR + ((j % RING) * 2 + mt) * 4, 4), lmap,
                  buf, 2, lambda j: xm[j], hook, preread, fill=fill, czero=True, fill0=2, npre=2)
        if fsig is not None:
            self.sig(L_CF, fsig)
        self.pstamp()

    def small_main(self, KS, acc, buf, XR, RING, D, src, lmap, fill=(), czero=False, extra=None, hook2=None, preread=None,
                   xsig=None, fsig=None, stagger=0, NB=4, post=None):
        A = self.A
        xm = {}

        def xload(j):
            so, io, vo = src(j)
            xm[j] = self.ldx(v(XR + (j % RING) * 4, 4), so, io, voff=vo)
            if (j & 3) == 3 and j < KS - 1:
                A(f's_add_u32 {s(so)}, {s(so)}, {4 * KB}')
                if KS == 56 and 'rot4' in OPT:
                    A(f's_cmp_eq_u32 {s(so)}, s28')
                    A(f's_cselect_b32 {s(so)}, s27, {s(so)}')
        if stagger and 'stag' in OPT:
            Ls = A.newlabel('stg')
            A(f's_cmp_eq_u32 {s(SW)}, 0')
            A(f's_cbranch_scc1 {Ls}')
            self.lwait(L_ST - 4, stagger, 44, single=True, own=True)
            A.label(Ls)
        for j in range(D):
            xload(j)
            if j == 1 and extra:
                extra()
            if j == self.SG and stagger and 'stag' in OPT:
                self.sig(L_ST, stagger)
        if post:
            assert D == KS
            post()
        if D == KS and xsig is not None:
            self.sig(L_CF, xsig)
        self.pstamp()

        def hook(j, t):
            if t == 1 and j + D < KS:
                xload(j + D)
                if j + D == KS - 1 and xsig is not None:
                    self.sig(L_CF, xsig)
            if hook2:
                hook2(j, t)
        self.gemm(KS, 1, 4, acc, lambda mt, j: v(XR + 4 * (j % RING), 4), lmap, buf, NB,
                  lambda j: xm[j], hook, preread, fill=fill, czero=czero, fill0=2, npre=NB)
        if fsig is not None:
            self.sig(L_CF, fsig)
        self.pstamp()

    def stage_qkv(self):
        A = self.A
        ST, CC, acc, buf = 32, 40, 64, 96
        SCR, RSZ = 96 * KB, 336

        def f():
            for mt in range(2):
                self.stats_consume(ST + 4 * mt, 3)
                self.rstd(ST + 4 * mt + 2, ST + 4 * mt + 1)
                self.A(f'v_mov_b32 {v(ST + 4 * mt + 1)}, {v(ST + 4 * mt)}')
                self.A(f'v_mul_f32 {v(CC + 2 * mt)}, {f32(LOG2E)}, {v(ST + 4 * mt + 2)}')
                self.A(f'v_mov_b32 {v(ST + 4 * mt + 3)}, {v(ST + 4 * mt + 2)}')
            self.A(f'v_permlane32_swap_b32 {v(CC)}, {v(CC + 2)}')
            self.A(f'v_mov_b32 {v(CC + 1)}, {v(CC)}')
        Lepi = A.newlabel('qepi')
        self.qkv_first(f, acc, buf, ST, SCR, RSZ)
        A(f's_branch {Lepi}')
        A.label(self.Lp)
        A.label('.Lst_q')
        self.nstamp = 0
        if self.prof:
            A('s_memrealtime s[60:61]')
            A('s_waitcnt lgkmcnt(0)')
            A('v_writelane_b32 v12, s60, 63')
        self.pstamp()
        self.big_pre(X0, ST0)
        self.qkv_addr(SCR, RSZ)
        self.lwait(L_CR, 1, 60)
        A(f's_add_u32 s29, s29, {C_X}')
        self.poll(29, VP2, 16, during=lambda: self.wpre(2, 4, buf, map_kv))
        self.pstamp()
        D = self.DQ
        xm = {}

        def xload(j, mt):
            xm[j] = self.ldx(v(xq(mt, j), 4), 26 + mt, (j & 3) * KB)
            if (j & 3) == 3 and j < 15:
                A(f's_add_u32 {s(26 + mt)}, {s(26 + mt)}, {4 * KB}')
        for j in range(D):
            xload(j, 0)
            xload(j, 1)
            if j == 1:
                self.ld_stats(ST, 28)
                self.ld_stats(ST + 4, 28, KB)
        self.pstamp()

        def hook(j, t):
            if j + D < 16 and t in (0, 2):
                xload(j + D, t >> 1)
            self.kv_cs(j, t, buf)
        self.gemm(16, 2, 4, acc, lambda mt, j: v(xq(mt, j), 4), map_kv, buf, 2, lambda j: xm[j], hook, None,
                  fill=self.rec(f), czero=True, fill0=2, npre=2)
        self.sig(L_CF, 3)
        self.pstamp()
        A.label(Lepi)
        A('s_waitcnt lgkmcnt(1)')
        A.lg_done = max(A.lg_done, A.lg - 1)
        A('s_nop 3')
        self.qkv_epi(ST, CC, acc, buf, SCR, RSZ)

    def kv_cs(self, j, t, buf):
        if j == 15:
            self.A(f'ds_read_b128 {v(buf + 4 * t, 4)}, v13 offset:{t * 64}')

    def qkv_first(self, f, acc, buf, ST, SCR, RSZ):
        A = self.A
        PB = [128, 160, 192, 224]
        self.nstamp = 0
        if self.prof:
            A('s_memrealtime s[60:61]')
            A('s_waitcnt lgkmcnt(0)')
            A('v_writelane_b32 v12, s60, 63')
        self.pstamp()
        WA, RA = 64, 68
        A(f's_mul_i32 s34, {s(SW)}, {32 * RSZ}')
        A(f's_add_u32 s34, s34, {SCR}')
        A(f'v_lshrrev_b32 v3, 4, {v(VLANE)}')
        A(f'v_and_b32 v76, 15, {v(VLANE)}')
        A(f'v_xor_b32 v77, v76, v3')
        A(f'v_lshlrev_b32 v77, 4, v77')
        A(f'v_lshl_add_u32 v77, v3, 8, v77')
        A(f'v_add_u32 v77, s34, v77')
        for n in range(4):
            A(f'v_xor_b32 {v(WA + n)}, {n * 64}, v77')
        A(f'v_lshrrev_b32 v77, 1, v3')
        A(f'v_xor_b32 v77, v77, v76')
        A(f'v_lshlrev_b32 v77, 4, v77')
        A(f'v_lshl_add_u32 v77, v76, 8, v77')
        A(f'v_and_b32 v3, 1, v3')
        A(f'v_lshl_add_u32 v77, v3, 3, v77')
        A(f'v_add_u32 v77, s34, v77')
        for m in range(8):
            A(f'v_xor_b32 {v(RA + m)}, {m * 32}, v77')
        for i in range(4):
            A(f'v_mov_b32 {v(104 + i)}, 0x3f803f80')

        def stats(p):
            b = PB[p >> 1] + 16 * (p & 1)
            S = 108 + 8 * (p & 1)
            for i in range(4):
                z = p < 2 and i == 0
                A(f'v_mfma_f32_16x16x32_bf16 {v(S, 4)}, v[104:107], {v(b + 4 * i, 4)}, {"0" if z else v(S, 4)}')
                A(f'v_mfma_f32_16x16x32_bf16 {v(S + 4, 4)}, {v(b + 4 * i, 4)}, {v(b + 4 * i, 4)}, {"0" if z else v(S + 4, 4)}')

        if 'plate' not in OPT:
            L2 = A.newlabel('np1')
            A(f's_cmp_lg_u32 {s(SW)}, {9 if "noprep" in OPT else 2}')
            A(f's_cbranch_scc1 {L2}')
            vm0 = A.vm
            A(f's_mov_b32 s100, {100 * KB + 2 * 32 * 336}')
            A(f's_mov_b32 s101, s2')
            self.piece_decode(101)
            A.vm = vm0
            A.label(L2)
        for p in range(8):
            b = PB[p >> 1] + 16 * (p & 1)
            A.wait(vm=self.x0m[p], lg=A.lmark())
            for n in range(4):
                A(f'ds_write_b128 {v(WA + n)}, {v(b + 4 * n, 4)} offset:{n * 1024}')
            for m in range(8):
                A(f'ds_read_b64 {v(b + 2 * m, 2)}, {v(RA + m)}')
            if p:
                stats(p - 1)
            if (p & 1) and (p >> 1) + self.XPRE < 4:
                self.x0load((p >> 1) + self.XPRE)
        A.wait_all(vm=False)
        stats(7)
        A(f'v_and_b32 v3, 3, {v(VLANE)}')
        for i in range(1, 4):
            A(f'v_cmp_eq_u32 {s(26 + 2 * i, 2)}, {i}, v3')
        A(f'v_bfe_u32 v3, {v(VLANE)}, 2, 2')
        A(f'v_lshrrev_b32 v20, 4, {v(VLANE)}')
        A(f'v_cmp_eq_u32 vcc, v3, v20')
        for mt in range(2):
            Q = 112 + 8 * mt
            for i in range(1, 4):
                A(f'v_cndmask_b32 {v(Q)}, {v(Q)}, {v(Q + i)}, {s(26 + 2 * i, 2)}')
            A(f'v_cndmask_b32 {v(ST + 4 * mt)}, 0, {v(Q - 4)}, vcc')
            A(f'v_cndmask_b32 {v(ST + 4 * mt + 1)}, 0, {v(Q)}, vcc')
            A(f'v_mov_b32 {v(ST + 4 * mt + 2)}, 0')
            A(f'v_mov_b32 {v(ST + 4 * mt + 3)}, 0')
        f()
        self.pstamp()
        L2 = A.newlabel('np2')
        A(f's_cmp_lg_u32 {s(SW)}, {9 if "noprep" in OPT else 2}')
        A(f's_cbranch_scc1 {L2}')
        vmd = A.vm_done
        if 'plate' in OPT:
            A(f's_mov_b32 s100, {96 * KB + 2 * 32 * 336}')
            A(f's_mov_b32 s101, s2')
            self.piece_decode(101)
        A('s_waitcnt vmcnt(0)')
        self.piece_finish()
        A.vm_done = vmd
        A.label(L2)
        Ln = A.newlabel('nochk')
        A(f's_cmp_lg_u32 {s(SW)}, 0')
        A(f's_cbranch_scc1 {Ln}')
        A('s_mov_b32 s31, 0')
        vmd = A.vm_done
        self.poll(31, VL4, 1, target=32, mode='load', srd=SRDD)
        A.vm_done = vmd
        A(f'ds_write_b32 {v(VPERM)}, {v(VONE)} offset:{L_INIT - L_CF}')
        A('s_getreg_b32 s30, hwreg(HW_REG_XCC_ID)')
        A('s_and_b32 s30, s30, 15')
        A('s_mul_i32 s31, s30, s30')
        A('s_lshl_b32 s31, s31, 16')
        A('s_lshl_b32 s30, s30, 7')
        A('s_add_u32 s30, s30, s31')
        A('s_add_u32 s58, s30, 1')
        A('s_and_b32 s59, s2, 7')
        A('s_lshl_b32 s59, s59, 7')
        A(f's_add_u32 s59, s59, {XW}')
        A('v_mov_b32 v3, s58')
        A('s_mov_b64 exec, 1')
        A(f'buffer_atomic_add v3, {v(VL4)}, {s(SRD, 4)}, s59 offen')
        A('s_mov_b64 exec, -1')
        A.label(Ln)
        A(f's_mov_b64 {s(SRD2, 2)}, {s(PA, 2)}')
        A(f's_mov_b32 {s(SRD2 + 2)}, {2048 * 512 * 2}')
        A(f'v_and_b32 v3, 15, {v(VLANE)}')
        A(f'v_lshlrev_b32 v62, 10, v3')
        A(f'v_lshrrev_b32 v3, 4, {v(VLANE)}')
        A(f'v_lshl_add_u32 v62, v3, 3, v62')
        A(f's_lshl_b32 s28, {s(sT)}, 14')
        A(f's_lshl_b32 s29, {s(sCG8)}, 7')
        A(f's_add_u32 s28, s28, s29')
        self.qkv_addr(SCR, RSZ)

        def cnt2():
            L2 = A.newlabel('nc2')
            A(f's_cmp_lg_u32 {s(SW)}, {9 if "noprep" in OPT else 2}')
            A(f's_cbranch_scc1 {L2}')
            lg, ld = A.lg, A.lg_done
            self.lwait(L_INIT, 1, 20, single=True)
            A.lg, A.lg_done = lg, ld
            A('s_waitcnt vmcnt(0)')
            self.count(99)
            A.vm -= 1
            A.label(L2)
        self.lwait(L_CR, 1, 20, sleep=1)
        if 'ed1' in OPT:
            cnt2()
        if 'eq' in OPT:
            A('s_setprio 2')
        self.mark(1)
        self.pstamp()
        for t in range(4):
            A(f'buffer_load_dwordx2 {v(RES + 8 + 2 * t, 2)}, v62, {s(SRD2, 4)}, s28 offen offset:{32 * t}')
        if 'wt' in OPT or 'wtg' in OPT:
            A(f's_lshl_b32 s30, {s(sT0)}, 14')
            A(f's_lshl_b32 s31, {s(sCG16)}, 10')
            A(f's_add_u32 s30, s30, s31')
            A(f's_add_u32 s30, s30, {OB}')
            A(f's_add_u32 s31, {s(sTILE)}, {XA}')
            A(f's_add_u32 s32, {s(sSTP)}, {STA}')
            A(f'v_and_b32 v47, 7, {v(VLANE)}')
            A(f'v_lshlrev_b32 v47, 7, v47')
            A(f'v_bfe_u32 v48, {v(VLANE)}, 3, 1')
            A(f'v_lshl_add_u32 v49, v48, 14, v47')
            A(f'v_add_u32 v49, s30, v49')
            A(f'v_lshl_add_u32 v47, v48, 10, v47')
            A(f'v_add_u32 v47, s31, v47')
            A(f'v_cmp_gt_u32 vcc, 16, {v(VLANE)}')
            A(f'v_cndmask_b32 v47, v49, v47, vcc')
            A(f'v_writelane_b32 v47, s32, 32')
            A('s_mov_b32 exec_hi, 1')
            A(f'buffer_load_dword v0, v47, {s(SRD, 4)}, 0 offen')
            A('s_mov_b32 exec_hi, -1')
        if 'wtg' in OPT:
            A(f's_mul_i32 s30, {s(sT0)}, {56 * KB}')
            A(f's_add_u32 s30, s30, {G}')
            A(f's_mul_i32 s31, {s(sCG16)}, {3 * KB}')
            A(f's_lshl_b32 s32, {s(sCG16)}, 9')
            A(f's_add_u32 s32, s32, {48 * KB - 24 * 128}')
            A(f'v_and_b32 v47, 31, {v(VLANE)}')
            A(f'v_cmp_gt_u32 vcc, 24, v47')
            A(f'v_mov_b32 v48, s32')
            A(f'v_mov_b32 v49, s31')
            A(f'v_cndmask_b32 v48, v48, v49, vcc')
            A(f'v_lshl_add_u32 v47, v47, 7, v48')
            A(f'v_lshrrev_b32 v48, 5, {v(VLANE)}')
            A(f'v_mul_u32_u24 v48, {56 * KB}, v48')
            A(f'v_add_u32 v47, v47, v48')
            A('s_mov_b32 exec_lo, 0x0fffffff')
            A('s_mov_b32 exec_hi, 0x0fffffff')
            A(f'buffer_load_dword v0, v47, {s(SRD, 4)}, s30 offen')
            A('s_mov_b64 exec, -1')
        A.vm_done = A.vm
        self.gemm(16, 2, 4, acc, lambda mt, j: v(xq(mt, j), 4), map_kv, buf, 2, lambda j: None,
                  lambda j, t: self.kv_cs(j, t, buf), self.acheck([(15, L_CS, 1, 20, True, None)]), czero=True)
        if 'ed1' not in OPT:
            cnt2()
        self.sig(L_CF, 3)
        self.pstamp()

    def qkv_addr(self, SCR, RSZ):
        A = self.A
        A(f'v_and_b32 v13, 0x30, {v(VLANE)}')
        A(f'v_add_u32 v13, {L_CSQ}, v13')
        A(f'v_lshrrev_b32 v60, 4, {v(VLANE)}')
        A(f'v_and_b32 v61, 15, {v(VLANE)}')
        A(f's_mul_i32 s30, {s(SW)}, {32 * RSZ}')
        A(f's_add_u32 s30, s30, {SCR}')
        A(f'v_mul_u32_u24 v45, {RSZ}, v61')
        A(f'v_add_u32 v45, s30, v45')
        A(f'v_lshl_add_u32 v46, v60, 3, v45')
        A(f'v_lshl_add_u32 v44, v60, 4, v45')
        A(f'v_and_b32 v3, 1, v60')
        A(f'v_lshl_add_u32 v45, v3, 6, v45')
        A(f'v_lshrrev_b32 v3, 1, v60')
        A(f'v_mul_u32_u24 v3, {16 * RSZ}, v3')
        A(f'v_add_u32 v45, v45, v3')
        A(f's_lshl_b32 s42, {s(sCG16)}, 12')
        A(f's_add_u32 s42, s42, {s(sZ)}')
        A(f's_add_u32 s42, s42, {KV}')
        A(f's_lshl_b32 s43, {s(sCG16)}, 8')
        A(f's_add_u32 s43, s43, {s(sZ)}')
        A(f's_add_u32 s43, s43, {Z}')
        A(f'v_lshlrev_b32 v50, 5, v60')
        for i in range(4):
            A(f'v_mov_b32 {v(56 + i)}, {f32(1e-6)}')

    def qkv_epi(self, ST, CC, acc, buf, SCR, RSZ):
        A = self.A
        EP, EM = 96, 112

        def softmax(P0, P1, M, off):
            cc = CC
            R = lambda i: (P0 + i) if i < 8 else (P1 + i - 8)
            for op, d in (('max', M), ('min', M + 2)):
                A(f'v_{op}3_f32 {v(d)}, {v(R(0))}, {v(R(1))}, {v(R(2))}')
                for i in range(3, 15, 2):
                    A(f'v_{op}3_f32 {v(d)}, {v(d)}, {v(R(i))}, {v(R(i + 1))}')
                A(f'v_{op}_f32 {v(d)}, {v(d)}, {v(R(15))}')
            for d in (M, M + 2):
                A(f'v_mul_f32 {v(d + 1)}, {v(d)}, {v(cc)}')
                A(f'v_mul_f32 {v(d)}, {v(d)}, {v(cc)}')
            for i in range(0, 16, 2):
                A(f'v_pk_fma_f32 {v(EP + i, 2)}, {v(R(i), 2)}, {v(cc, 2)}, {v(M, 2)} neg_lo:[0,0,1] neg_hi:[0,0,1]')
                A(f'v_pk_fma_f32 {v(EM + i, 2)}, {v(R(i), 2)}, {v(cc, 2)}, {v(M + 2, 2)} neg_lo:[0,1,0] neg_hi:[0,1,0]')
            for i in range(32):
                A(f'v_exp_f32 {v(EP + i)}, {v(EP + i)}')
            for E, d in ((EP, M + 4), (EM, M + 6)):
                A(f'v_pk_add_f32 {v(d, 2)}, {v(E, 2)}, {v(E + 2, 2)}')
                for i in range(4, 16, 2):
                    A(f'v_pk_add_f32 {v(d, 2)}, {v(d, 2)}, {v(E + i, 2)}')
            A(f'v_add_f32 {v(M + 4)}, {v(M + 4)}, {v(M + 5)}')
            A(f'v_add_f32 {v(M + 6)}, {v(M + 6)}, {v(M + 7)}')
            A(f'v_rcp_f32 {v(M + 4)}, {v(M + 4)}')
            A(f'v_rcp_f32 {v(M + 6)}, {v(M + 6)}')
            A(f'v_mov_b32 {v(M + 5)}, {v(M + 4)}')
            A(f'v_mov_b32 {v(M + 7)}, {v(M + 6)}')
            for t in range(4):
                for i in (4 * t, 4 * t + 2):
                    A(f'v_pk_mul_f32 {v(EP + i, 2)}, {v(EP + i, 2)}, {v(M + 4, 2)}')
                    A(f'v_pk_mul_f32 {v(EM + i, 2)}, {v(EM + i, 2)}, {v(M + 6, 2)}')
                self.pack(R(4 * t), EP + 4 * t, 2)
                self.pack(R(4 * t) + 2, EM + 4 * t, 2)
                if 'xb' in OPT:
                    A('s_nop 7')
                A(f'ds_write_b128 v45, {v(R(4 * t), 4)} offset:{off + 16 * t}')
                if 'xc' in OPT:
                    A('s_nop 7')
        for mt in range(2):
            self.ln_fix(acc + 16 * mt, 16, buf, ST + 4 * mt)
        for i in range(8):
            A(f'v_permlane32_swap_b32 {v(acc + i)}, {v(acc + 16 + i)}')
        for mt in range(2):
            for hh in range(2):
                r = acc + 16 * mt + 8 + 4 * hh
                for i in (0, 2):
                    A(f'v_pk_mul_f32 {v(r + i, 2)}, {v(r + i, 2)}, {v(ST + 4 * mt + 2, 2)}')
                d = acc + 24 + 4 * mt + 2 * hh if mt == 0 else r
                d = r
                self.pack(d, r, 2)
                A(f'ds_write_b64 v46, {v(d, 2)} offset:{mt * 16 * RSZ + 256 + 32 * hh}')
        softmax(acc, acc + 16, acc + 8, 128)
        self.pstamp()
        self.sig(L_CB, 1)
        if 'cd1' in OPT:
            Ld = A.newlabel('cd1')
            A(f's_cmp_lg_u32 {s(sPAIR)}, 0')
            A(f's_cbranch_scc1 {Ld}')
            self.lwait(L_INIT, 1, 60, single=True)
            A(f's_lshl_b32 s30, {s(sCG8)}, 7')
            A(f's_add_u32 s30, s30, {PC}')
            A(f'v_lshlrev_b32 v47, 10, {v(VLANE)}')
            self.poll(30, 47, 2, target=16, mode='load')
            A.label(Ld)
            self.lwait(L_CF, 3, 60)
            A(f's_lshl_b32 s30, {s(sCG8)}, 16')
            A(f's_lshl_b32 s31, {s(SW)}, 12')
            A(f's_add_u32 s30, s30, s31')
            assert map_wo(4) == 0 and map_w1(0) == 48 * KB
            for c in range(4):
                A(f's_add_u32 m0, s31, {c * 16 * KB}')
                A(f's_add_u32 s32, s30, {WO + (c + 1) * 16 * KB if c < 3 else W1}')
                for t in range(4):
                    self.dma(32, t * KB)
        self.lwait(L_CR, 2, 60)
        self.lwait(L_CS, 2, 60, absv=True)
        for t in range(2):
            A(f'ds_read_b128 {v(88 + 4 * t, 4)}, v13 offset:{(4 + t) * 64}')
        self.gemm(16, 2, 2, 72, lambda mt, j: v(xq(mt, j), 4), map_q, buf, 4, lambda j: None, czero=True)
        self.pstamp()
        if 'xd' in OPT:
            A('s_nop 15')
            A('s_nop 15')
        for mt in range(2):
            self.ln_fix(72 + 8 * mt, 8, 88, ST + 4 * mt)
        for i in range(8):
            A(f'v_permlane32_swap_b32 {v(72 + i)}, {v(80 + i)}')
        softmax(72, 80, 64, 0)
        if 'dump' in OPT:
            for i in range(6):
                A(f'v_mov_b32 {v(176 + i)}, {v(64 + i)}')
            A('v_mov_b32 v182, v88')
            A('v_mov_b32 v183, v95')
        PQ = 160
        if 'xa' in OPT:
            A.wait_all(vm=False)
        for mt in range(2):
            for hh in range(2):
                A(f'ds_read_b128 {v(PQ + 8 * mt + 4 * hh, 4)}, v44 offset:{mt * 16 * RSZ + 64 * hh}')
        A(f's_lshl_b32 s30, {s(sCG16)}, {CSH + 2}')
        A(f's_add_u32 s30, s30, {s(sC)}')
        A(f's_add_u32 s30, s30, {C_KV}')
        A(f'v_lshlrev_b32 v47, {CSH}, {v(VLANE)}')
        A(f's_lshl_b32 s26, {s(sT0)}, 14')
        A(f's_lshl_b32 s27, {s(sCG16)}, 10')
        A(f's_add_u32 s26, s26, s27')
        A(f's_add_u32 s26, s26, {s(sP)}')
        A(f's_add_u32 s26, s26, {OB}')
        A(f's_add_u32 s27, s26, {16 * KB}')
        if 'd2early' in OPT:
            self.sig(L_CF, 4)
        if 'cd1' in OPT:
            A.wait_all(lg=False)
            self.sig(L_D1, 1)
        self.pstamp()
        Lw, Lg, Lx = A.newlabel('kvw'), A.newlabel('kvg'), A.newlabel('kvx')
        A(f's_cmp_lg_u32 {s(SW)}, 0')
        A(f's_cbranch_scc1 {Lw}')
        self.lwait(L_KD, 1, 252)
        self.poll(30, 47, 4, target=16, mode='atomic')
        A.label(Lg)
        self.sig(L_GO, 1)
        A(f's_branch {Lx}')
        A.label(Lw)
        if 'gp' in OPT:
            A('s_setprio 0')
        self.lwait(L_GO, 1, 252, sleep=0, single=True)
        if 'gp' in OPT:
            A('s_setprio 2')
        A.label(Lx)
        self.pstamp()
        Lm = A.newlabel('mode')
        A(f's_cmp_eq_u32 {s(sPAIR)}, 0')
        A(f's_cbranch_scc0 {Lm}')
        A('s_waitcnt vmcnt(0)')
        self.unpack(RES, RES + 8, 8)
        self.lwait(L_MODE, 1, 252, single=True)
        A(f'v_readfirstlane_b32 {s(sFAST)}, v252')
        A(f's_sub_u32 {s(sFAST)}, {s(sFAST)}, 1')
        A.label(Lm)
        KF, ZF = 64, 80
        for i in range(16):
            self.ldx(v(KF + i), 42, 256 * i, voff=VL4, w=1, sc=' sc1')
        for hh in range(2):
            for u in range(2):
                self.ldx(v(ZF + 8 * hh + 4 * u, 4), 43, 128 * hh + 16 * u, voff=50, sc=' sc1')
        A.wait(vm=A.vmark() - 4)
        self.pack(96, KF, 8)
        A('s_waitcnt vmcnt(0) lgkmcnt(0)')
        A.vm_done, A.lg_done = A.vm, A.lg
        self.pack(104, ZF, 8)
        ND = 112
        for mt in range(2):
            for hh in range(2):
                d = ND + 16 * mt + 8 * hh
                A(f'v_mfma_f32_16x16x32_bf16 {v(d + 4, 4)}, {v(104 + 4 * hh, 4)}, {v(PQ + 8 * mt + 4 * hh, 4)}, v[56:59]')
                A(f'v_mfma_f32_16x16x32_bf16 {v(d, 4)}, {v(96 + 4 * hh, 4)}, {v(PQ + 8 * mt + 4 * hh, 4)}, 0')
        for q in range(4):
            A(f'v_rcp_f32 {v(ND + 8 * q + 4)}, {v(ND + 8 * q + 4)}')
        for q in range(4):
            A(f'v_mov_b32 {v(ND + 8 * q + 5)}, {v(ND + 8 * q + 4)}')
        for q in range(4):
            d = ND + 8 * q
            for i in (0, 2):
                A(f'v_pk_mul_f32 {v(d + i, 2)}, {v(d + i, 2)}, {v(d + 4, 2)}')
            self.pack(64 + 2 * q, d, 2)
        self.stores([(v(64, 4), 26, 0, VL16, 4, None), (v(68, 4), 27, 0, VL16, 4, None)], sFAST if ('wt' in OPT or 'wtg' in OPT) else sFG)
        if 'dump' in OPT:
            Ld = A.newlabel('dmp')
            A(f's_cmp_lg_u32 {s(sPAIR)}, 0')
            A(f's_cbranch_scc1 {Ld}')
            A(f's_lshl_b32 s30, s2, 2')
            A(f's_add_u32 s30, s30, {s(SW)}')
            A(f's_lshl_b32 s30, s30, 14')
            A(f's_add_u32 s30, s30, {DBG2}')
            for r in (160, 164, 168, 172, 96, 100, 104, 108, 64, 68, 32, 36, 40, 176, 180):
                A(f'buffer_store_dwordx4 {v(r, 4)}, {v(VL16)}, {s(SRD, 4)}, s30 offen')
                A('s_add_u32 s30, s30, 1024')
            A.label(Ld)
        self.flag(sF16, C_O - CB, two=True)

    def small_pre(self, XIN, mul=16):
        A = self.A
        A(f's_mul_i32 s26, {s(sT)}, {mul * KB}')
        A(f's_add_u32 s26, s26, {s(sP)}')
        A(f's_add_u32 s26, s26, {XIN}')
        A(f's_lshl_b32 s29, {s(sT)}, {CSH}')
        A(f's_add_u32 s29, s29, {s(sC)}')
        A(f's_add_u32 s29, s29, {CB}')

    def stage_wo(self):
        A = self.A
        XR, buf = 64, 128
        self.small_pre(OB)
        self.lwait(L_CR, 3, 44)
        if 'cd1' in OPT:
            self.lwait(L_D1, 1, 44)
        self.wpre(self.SP - 1, 4, buf, map_wo)
        self.poll(29, VL4, 16, ioff=C_O - CB, during=lambda: self.wpre(8, 4, buf, map_wo, self.SP - 1))
        self.mark(2)
        self.pstamp()
        self.small_main(16, RES, buf, XR, 16, self.DS, lambda j: (26, (j & 3) * KB, VL16), map_wo, stagger=1, NB=8)
        self.store_tile(RES, XR, XA, STA, fast=sFAST if ('wt' in OPT or 'wtg' in OPT) else sFG)
        self.flag(sF8, C_XA - CB, pre=lambda: (self.lwait(L_CR, 4, 44), self.wpre(3, 4, buf, map_w1)))

    def stage_w1(self):
        A = self.A
        ST, K, acc, XR, buf, CS = 32, 40, 48, 64, 128, 240
        self.small_pre(XA)
        A(f's_lshl_b32 s27, {s(sT)}, 10')
        A(f's_add_u32 s27, s27, {STA}')
        self.lwait(L_CS, 4, 44, absv=True)
        self.cs_read(4, CS, L_CS1)
        self.wpre(self.SP - 1, 4, buf, map_w1, 3)
        self.poll(29, VL4, 8, ioff=C_XA - CB, during=lambda: self.wpre(7, 4, buf, map_w1, self.SP - 1))
        self.pstamp()

        def f():
            A = self.A
            self.stats_consume(ST, 3)
            self.rstd(VMR + 1, ST + 1)
            A(f'v_mul_f32 {v(VMR)}, {v(ST)}, {v(VMR + 1)}')
            A(f'v_mul_f32 v38, {v(VMR + 1)}, {v(VMR + 1)}')
            A(f'v_mul_f32 v38, v38, {v(ST + 1)}')
            self.rstd(38, 38)
            A(f'v_mul_f32 v38, v38, {v(VMR + 1)}')
            self.gelu_consts2(K, 38, ST + 2, ST)
        self.small_main(16, acc, buf, XR, 16, self.DS, lambda j: (26, (j & 3) * KB, VL16), map_w1, fill=self.rec(f), czero=True,
                        extra=lambda: self.ld_stats(ST, 27), xsig=5, NB=7)
        self.sig(L_PS, 1)
        self.ln_fix(acc, 16, CS, ST)
        self.gelu2(acc, 16, K, ST + 2, XR, XR + 16)
        A(f's_add_u32 s26, {s(sTILE)}, {H}')
        Lh, Lh2 = A.newlabel('hh'), A.newlabel('hh2')
        A(f's_cmp_eq_u32 {s(sFH)}, 0')
        A(f's_cbranch_scc1 {Lh}')
        A(f's_add_u32 s27, s26, {s(sHH)}')
        A(f'buffer_store_dwordx4 {v(XR + 16, 4)}, {v(VL16)}, {s(SRD, 4)}, s27 offen sc1')
        A(f'buffer_store_dwordx4 {v(XR + 20, 4)}, {v(VL16)}, {s(SRD, 4)}, s27 offen offset:1024 sc1')
        A.label(Lh)
        self.stores([(v(XR + 16, 4), 26, 0, VL16, 4, None), (v(XR + 20, 4), 26, KB, VL16, 4, None)])
        self.pstamp()
        self.wpre(3, 4, buf, map_w2)
        self.w2_setup()
        A.wait_all(lg=False)
        A(f's_cmp_eq_u32 {s(sFH)}, 0')
        A(f's_cbranch_scc1 {Lh2}')
        A('s_mov_b64 exec, 1')
        A(f'buffer_store_dword {v(VONE)}, {v(VL4)}, {s(SRD, 4)}, {s(sF8)} offen offset:{C_HH - CB} sc1')
        A('s_mov_b64 exec, -1')
        A.label(Lh2)
        self.stores([(v(VONE), sF8, C_H - CB, VP2, 1, '1')])
        self.pstamp()

    def w2_setup(self):
        A = self.A
        acc = 48
        A(f's_lshl_b32 s26, {s(sT)}, 4')
        A(f'v_and_b32 v13, 15, {v(VLANE)}')
        A(f'v_add_u32 v13, s26, v13')
        A(f'v_and_b32 v38, 0x300, {v(VL16)}')
        A(f'v_mov_b32 v39, {OOB}')
        A(f's_movk_i32 s27, 2048')
        A(f's_lshr_b32 s28, {s(sT)}, 4')
        for gi, d in enumerate((-1, 1, -2, 2)):
            A(f'v_add_u32 v36, {d}, v13')
            A(f'v_lshrrev_b32 v37, 8, v36')
            A(f'v_cmp_ne_u32 s[30:31], s28, v37')
            A(f'v_cmp_gt_u32 vcc, s27, v36')
            A(f'v_lshrrev_b32 v3, 4, v36')
            A(f'v_lshl_add_u32 v3, v3, 14, v38')
            A(f'v_and_b32 v36, 15, v36')
            A(f'v_lshl_add_u32 v3, v36, 4, v3')
            if 'hp' not in OPT:
                A(f'v_add_u32 v37, {s(sHH)}, v3')
                A(f'v_cndmask_b32 v3, v3, v37, s[30:31]')
                A(f'v_cndmask_b32 {v(FREE + gi)}, v39, v3, vcc')
            else:
                A(f'v_add_u32 {v(240 + gi)}, {s(sHH)}, v3')
                A(f'v_cndmask_b32 {v(FREE + gi)}, v3, v39, s[30:31]')
                A(f's_and_b64 {s(32 + 2 * gi, 2)}, s[30:31], vcc')
        A(f's_mov_b32 s26, {H}')
        A(f's_and_b32 s30, {s(sT)}, 0x70')
        A(f's_or_b32 s31, {s(sT)}, 15')
        A(f'v_and_b32 v13, 2, {v(VLANE)}')
        A(f'v_add_u32 v13, -1, v13')
        A(f'v_bfe_u32 v38, {v(VLANE)}, 3, 1')
        A(f'v_mul_i32_i24 v13, v13, v38')
        A(f'v_add_u32 v13, {s(sT)}, v13')
        A(f'v_max_i32 v13, s30, v13')
        A(f'v_min_i32 v13, s31, v13')
        A(f'v_and_b32 v38, 0x1c, {v(VL4)}')
        A(f'v_lshl_add_u32 v13, v13, {CSH}, v38')
        A(f's_add_u32 s29, {s(sC)}, {C_H}')
        A(f'v_and_b32 v36, 1, {v(VLANE)}')
        A(f'v_bfe_u32 v37, {v(VLANE)}, 1, 1')
        A(f'v_lshlrev_b32 v36, 2, v36')
        A(f'v_lshl_add_u32 v36, v37, 4, v36')
        for i in range(4):
            A(f'v_mov_b32 {v(40 + i)}, {v(VMR + (i >> 1))}')
        for i in range(0, 16, 2):
            A(f'v_pk_fma_f32 {v(acc + i, 2)}, {v(RES + i, 2)}, v[42:43], v[40:41] neg_lo:[0,0,1] neg_hi:[0,0,1]')

    def stage_w2(self):
        A = self.A
        acc, XR, buf = 48, 64, 128
        self.wpre(self.SP - 1, 4, buf, map_w2, 3)
        if 'comb' not in OPT:
            self.poll(29, 13, 16, during=lambda: self.wpre(7, 4, buf, map_w2, self.SP - 1))
        else:
            def dur():
                self.wpre(7, 4, buf, map_w2, self.SP - 1)
                Le = A.newlabel('re')
                A(f's_cmp_eq_u32 {s(sRH)}, 0')
                A(f's_cbranch_scc1 {Le}')
                A(f's_add_u32 s28, {s(sRH)}, {s(sC)}')
                self.poll(28, 36, 4, mode='atomic')
                A.label(Le)
            self.poll(29, 13, 16, during=dur)
        pk5 = self.lpeek(L_CR, 44)

        def remote():
            Lr = A.newlabel('rh')
            A(f's_cmp_eq_u32 {s(sRH)}, 0')
            A(f's_cbranch_scc1 {Lr}')
            vm, vd = A.vm, A.vm_done
            A(f's_add_u32 s29, {s(sRH)}, {s(sC)}')
            self.poll(29, 36, 4, mode='atomic')
            if 'hp' in OPT:
                for gi in range(4):
                    Lg = A.newlabel('rg')
                    A(f's_cmp_eq_u64 {s(32 + 2 * gi, 2)}, 0')
                    A(f's_cbranch_scc1 {Lg}')
                    A(f's_mov_b64 exec, {s(32 + 2 * gi, 2)}')
                    A(f's_mov_b32 s29, {H + gi * 4 * KB}')
                    for q in range(4):
                        self.ldx(v(XR + 16 * gi + 4 * q, 4), 29, q * KB, voff=240 + gi)
                    A('s_mov_b64 exec, -1')
                    A.label(Lg)
                A('s_waitcnt vmcnt(0)')
            A.vm, A.vm_done = vm, vd
            A.label(Lr)
        if 'hp' not in OPT and 'comb' not in OPT:
            remote()
        self.pstamp()
        self.small_main(16, acc, buf, XR, 16, self.DS, lambda j: (26, (j & 3) * KB, FREE + (j >> 2)), map_w2, xsig=6, fsig=7, NB=7, post=None if 'hp' not in OPT else remote,
                        preread=lambda j: self.ltest(pk5, L_CR, 5, 44) if j == 7 else None)
        self.store_tile(acc, XR, X1, ST1)
        for i in range(0, 16, 2):
            A(f'v_pk_add_f32 {v(RES + i, 2)}, {v(RES + i, 2)}, {v(acc + i, 2)}')
        self.flag(sF8, C_X1 - CB, pre=None if 'nopre' in OPT else self.w3_setup)

    def w3_setup(self):
        A = self.A
        self.big_pre(X1, ST1)
        A(f's_add_u32 s29, s29, {C_X1}')
        A(f's_mul_i32 s30, {s(sT0)}, {56 * KB}')
        A(f's_add_u32 s30, s30, {s(sP)}')
        A(f's_add_u32 s30, s30, {G}')
        A(f's_lshl_b32 s32, {s(sCG16)}, 9')
        A(f's_add_u32 s32, s32, s30')
        A(f's_add_u32 s32, s32, {48 * KB}')
        A(f's_mul_i32 s31, {s(sCG16)}, {3 * KB}')
        A(f's_add_u32 s30, s30, s31')
        A(f's_add_u32 s31, s30, {56 * KB}')
        A(f'v_bfe_u32 v3, {v(VLANE)}, 4, 1')
        A(f'v_mul_u32_u24 v13, {56 * KB}, v3')
        A(f'v_lshrrev_b32 v3, 5, {v(VLANE)}')
        A(f'v_lshl_add_u32 v13, v3, 8, v13')
        A(f'v_and_b32 v3, 0xf0, {v(VL16)}')
        A(f'v_add_u32 v13, v13, v3')
        self.cs_read(7, 224, L_CS3)

    def stage_w3(self):
        A = self.A
        NT = 7
        ST, K, acc, buf, XR, CS = 32, 40, 48, 104, 160, 224
        if 'nopre' in OPT:
            self.w3_setup()
        self.lwait(L_CR, 6, 252)
        self.poll(29, VP2, 16, during=lambda: self.wpre(2, NT, buf, map_w3))
        self.pstamp()

        def f():
            for mt in range(2):
                self.stats_consume(ST + 4 * mt, 3)
                self.rstd(ST + 4 * mt + 2, ST + 4 * mt + 1)
                self.gelu_consts2(K + 4 * mt, ST + 4 * mt + 2, ST + 4 * mt + 2, ST + 4 * mt)
        self.big_main(NT, acc, buf, XR, ST, self.rec(f), map_w3, 13, 7, 8, 9)
        gm = sP if 'gsc1' in OPT else sFG
        if 'efon' not in OPT:
            for mt in range(2):
                P = acc + 28 * mt
                self.ln_fix(P, 28, CS, ST + 4 * mt)
                out = 160 + 12 * mt
                self.gelu2(P, 28, K + 4 * mt, ST + 4 * mt + 2, buf, None)
                self.pack(out, buf, 12)
                self.pack(184 + 2 * mt, buf + 24, 2)
                lst = [(v(out + 4 * q, 4), 30 + mt, q * KB, VL16, 4, None) for q in range(3)]
                if mt == 1:
                    A('v_permlane16_swap_b32 v184, v186')
                    A('v_permlane16_swap_b32 v185, v187')
                    lst.append((v(184, 4), 32, 0, 13, 4, None))
                self.stores(lst, gm)
            self.flag(sF16, C_G - CB, two=True)
            return
        self.ln_fix(acc, 28, CS, ST)
        self.ln_fix(acc + 52, 4, CS + 24, ST + 4)
        self.gelu2(acc + 52, 4, K + 4, ST + 6, buf + 28, 186)
        self.gelu2(acc, 28, K, ST + 2, buf, None)
        self.pack(184, buf + 24, 2)
        self.pack(160, buf, 12)
        A('v_permlane16_swap_b32 v184, v186')
        A('v_permlane16_swap_b32 v185, v187')
        self.stores([(v(160 + 4 * q, 4), 30, q * KB, VL16, 4, None) for q in range(3)] + [(v(184, 4), 32, 0, 13, 4, None)], gm)
        self.ln_fix(acc + 28, 24, CS, ST + 4)
        l2 = self.rec(lambda: self.gelu2(acc + 28, 24, K + 4, ST + 6, buf, 172))
        cutp = self.EF
        for x in l2[:cutp]:
            A(x)
        A.wait_all(lg=False)
        self.stores([(v(VONE), sF16, C_G - CB, VP2, 1, '1')])
        for x in l2[cutp:]:
            A(x)
        self.stores([(v(172 + 4 * q, 4), 31, q * KB, VL16, 4, None) for q in range(3)], gm)
        self.pstamp()
        A.wait_all(lg=False)
        self.stores([(v(VONE), sF16, C_G - CB, VP2, 1, '0x100')])
        self.pstamp()

    def stage_w4(self, Lfinal):
        A = self.A
        XR, buf, NB4 = 32, 96, 9
        self.small_pre(G, 56)
        if 'rot4' in OPT:
            A(f's_mov_b32 s27, s26')
            A(f's_add_u32 s28, s26, {56 * KB}')
            A(f's_mul_i32 s30, {s(sCG8)}, 7')
            A(f's_and_b32 s30, s30, 0x3c')
            A(f's_lshl_b32 s30, s30, 10')
            A(f's_add_u32 s26, s26, s30')
        self.lwait(L_CR, 8, 252)
        self.wpre(4, 4, buf, map_w4)
        self.poll(29, VL4, 16, ioff=C_G - CB, during=lambda: (self.wpre(NB4, 4, buf, map_w4, 4), self.sig(L_PS, 3)))
        self.pstamp()

        def hook2(j, t):
            if j == 16 - NB4 + 1 and t == 3:
                self.sig(L_CF, 10)
            if j == self.E11 and t == 3:
                self.sig(L_CF, 11)

        preread = self.acheck([(11, L_CR, 9, 252, False, None), (39, L_CR, 10, 252, False, None)])
        self.small_main(56, RES, buf, XR, 16, self.D4, lambda j: (26, (j & 3) * KB, VL16), map_w4,
                        hook2=hook2, preread=preread, fsig=12, NB=NB4)
        A(f's_cmp_eq_u32 {s(sPAIR)}, 1')
        A(f's_cbranch_scc1 {Lfinal}')
        self.store_tile(RES, XR, X0, ST0, nextpair=True)
        self.flag(sF8, C_X - CB + CSTRIDE)

    def dump2(self):
        if not self.prof:
            return
        A = self.A
        A(f's_lshl_b32 s55, s2, 2')
        A(f's_add_u32 s55, s55, {s(SW)}')
        A(f's_lshl_b32 s55, s55, 1')
        A(f's_add_u32 s55, s55, {s(sPAIR)}')
        A(f's_lshl_b32 s55, s55, 8')
        A(f's_add_u32 s55, s55, {DBG + 512 * 128}')
        A(f'v_writelane_b32 v12, {s(sFAST)}, 61')
        A(f'buffer_store_dword v12, {v(VL4)}, {s(SRD, 4)}, s55 offen')

    def piece_decode(self, sp):
        A = self.A
        L3, L4, LJ = A.newlabel('pd3'), A.newlabel('pd4'), A.newlabel('pdj')
        A(f's_mov_b32 s98, 0')
        A(f's_cmp_ge_u32 {s(sp)}, 832')
        A(f's_cbranch_scc1 {L4}')
        A(f's_cmp_ge_u32 {s(sp)}, 384')
        A(f's_cbranch_scc1 {L3}')
        A(f's_lshr_b32 s28, {s(sp)}, 7')
        A(f's_and_b32 s29, {s(sp)}, 7')
        A(f's_bfe_u32 s30, {s(sp)}, 0x40003')
        A(f's_cmp_eq_u32 s28, 1')
        A(f's_cselect_b64 {s(SRD2, 2)}, {s(PA + 10, 2)}, {s(PA + 12, 2)}')
        A(f's_cmp_eq_u32 s28, 0')
        A(f's_cselect_b64 {s(SRD2, 2)}, {s(PA + 6, 2)}, {s(SRD2, 2)}')
        A(f's_mov_b32 {s(SRD2 + 2)}, {512 * KB}')
        A(f's_mov_b32 s93, 1024')
        A(f's_lshl_b32 s99, s28, 3')
        A(f's_add_u32 s99, s99, s29')
        A(f's_lshl_b32 s94, s99, 4')
        A(f's_add_u32 s94, s94, s30')
        A(f's_lshl_b32 s94, s94, 12')
        A(f's_add_u32 s94, s94, {WO}')
        for t in range(1, 4):
            A(f's_add_u32 {s(94 + t)}, s94, {t * KB}')
        A(f's_branch {LJ}')
        A.label(L3)
        A(f's_sub_u32 s28, {s(sp)}, 384')
        A(f's_and_b32 s30, s28, 15')
        A(f's_lshr_b32 s29, s28, 4')
        A(f's_mov_b64 {s(SRD2, 2)}, {s(PA + 14, 2)}')
        A(f's_mov_b32 {s(SRD2 + 2)}, {1792 * KB}')
        A(f's_mov_b32 s93, 3584')
        A(f's_add_u32 s99, s29, 24')
        A(f's_mul_i32 s31, s30, {7 * KB}')
        A(f's_add_u32 s31, s31, {W3}')
        for t in range(4):
            A(f's_lshl_b32 s28, s29, 2')
            A(f's_add_u32 s28, s28, {t}')
            A(f's_mul_i32 s32, s28, 43')
            A(f's_lshr_b32 s32, s32, 8')
            A(f's_mul_i32 s33, s32, 6')
            A(f's_sub_u32 s33, s28, s33')
            A(f's_sub_u32 s36, s28, 96')
            A(f's_cmp_ge_u32 s28, 96')
            A(f's_cselect_b32 s32, s36, s32')
            A(f's_cselect_b32 s33, 6, s33')
            A(f's_lshl_b32 s36, s32, 3')
            A(f's_add_u32 s36, s36, s33')
            A(f's_lshl_b32 s36, s36, 4')
            A(f's_add_u32 s36, s36, s30')
            A(f's_lshl_b32 s36, s36, 6')
            A(f's_add_u32 {s(72 + t)}, s36, {CS3G}')
            A(f's_mul_i32 s32, s32, 112')
            A(f's_add_u32 s32, s32, s33')
            A(f's_lshl_b32 s32, s32, 10')
            A(f's_add_u32 {s(94 + t)}, s32, s31')
        A(f's_branch {LJ}')
        A.label(L4)
        A(f's_sub_u32 s28, {s(sp)}, 832')
        A(f's_and_b32 s29, s28, 7')
        A(f's_lshr_b32 s30, s28, 3')
        A(f's_mov_b64 {s(SRD2, 2)}, {s(PA + 16, 2)}')
        A(f's_mov_b32 {s(SRD2 + 2)}, {1792 * KB}')
        A(f's_mov_b32 s93, 1024')
        A(f's_add_u32 s99, s29, 52')
        A(f's_cmp_ge_u32 s30, 48')
        A(f's_cselect_b32 s98, 1, 0')
        A(f's_mul_i32 s94, s29, 56')
        if 'rot4' in OPT:
            A(f's_mul_i32 s31, s29, 7')
            A(f's_and_b32 s31, s31, 0x3c')
            A(f's_sub_u32 s31, s30, s31')
            A(f's_cselect_b32 s32, 56, 0')
            A(f's_add_u32 s31, s31, s32')
            A(f's_add_u32 s94, s94, s31')
        else:
            A(f's_add_u32 s94, s94, s30')
        A(f's_lshl_b32 s94, s94, 12')
        A(f's_add_u32 s94, s94, {W4}')
        for t in range(1, 4):
            A(f's_add_u32 {s(94 + t)}, s94, {t * KB}')
        A.label(LJ)
        A(f's_mul_i32 s92, s30, s93')
        A(f's_lshl_b32 s92, s92, 5')
        A(f's_lshl_b32 s29, s29, 7')
        A(f's_add_u32 s92, s92, s29')
        A(f's_lshl_b32 s99, s99, 7')
        A(f's_add_u32 s99, s99, {PC}')
        A(f'v_lshrrev_b32 v80, 3, {v(VLANE)}')
        A(f'v_mul_u32_u24 v80, s93, v80')
        A(f'v_lshrrev_b32 v81, 1, {v(VLANE)}')
        A(f'v_lshrrev_b32 v82, 4, {v(VLANE)}')
        A(f'v_xor_b32 v81, v81, v82')
        A(f'v_and_b32 v81, 3, v81')
        A(f'v_lshl_add_u32 v80, v81, 5, v80')
        A(f'v_and_b32 v81, 1, {v(VLANE)}')
        A(f'v_lshl_add_u32 v80, v81, 4, v80')
        if 'noprep' in OPT:
            A(f's_sub_u32 s28, {s(sp)}, 384')
            A(f's_cmp_lt_u32 s28, 448')
            A(f's_cselect_b32 s92, s92, 0x4000000')
            for t in range(4):
                A(f's_cselect_b32 {s(94 + t)}, {s(94 + t)}, {WS_USED}')
        A(f's_lshl_b32 s93, s93, 3')
        for i in range(4):
            A(f's_add_u32 m0, s100, {i * KB}')
            self.dma(92, 0, voff=80, srd=SRD2)
            if i < 3:
                A(f's_add_u32 s92, s92, s93')
        return A.vmark()

    def piece_finish(self):
        A = self.A
        A(f's_cmp_eq_u32 s98, 1')
        A(f's_cselect_b32 s28, 8, 4')
        A(f's_cselect_b32 s29, 4, 16')
        A(f'v_lshrrev_b32 v81, 4, {v(VLANE)}')
        A(f'v_mul_u32_u24 v81, s28, v81')
        A(f'v_bfe_u32 v82, {v(VLANE)}, 2, 2')
        A(f'v_add_u32 v81, v81, v82')
        A(f'v_and_b32 v82, 3, {v(VLANE)}')
        A(f'v_lshlrev_b32 v82, 3, v82')
        A(f'v_add_u32 v82, s100, v82')
        for u in range(2):
            if u:
                A(f'v_add_u32 v81, s29, v81')
            A(f'v_bfe_u32 v83, v81, 1, 2')
            A(f'v_lshl_add_u32 v83, v83, 5, v82')
            A(f'v_lshl_add_u32 v83, v81, 7, v83')
            for t in range(4):
                A(f'v_xor_b32 v84, {32 * t}, v83')
                A(f'ds_read_b64_tr_b16 {v(88 + 4 * t + 2 * u, 2)}, v84')
        A.wait_all(vm=False)
        for t in range(4):
            A(f'buffer_store_dwordx4 {v(88 + 4 * t, 4)}, {v(VL16)}, {s(SRD, 4)}, {s(94 + t)} offen sc1')

    def count(self, sreg):
        A = self.A
        A('s_mov_b64 exec, 1')
        A(f'buffer_atomic_add {v(VONE)}, {v(VL4)}, {s(SRD, 4)}, {s(sreg)} offen')
        A('s_mov_b64 exec, -1')

    def cs_add(self, accs, addr):
        A = self.A
        A(f'v_and_b32 v3, 15, {v(VLANE)}')
        for i in range(1, 4):
            A(f'v_cmp_eq_u32 {s(26 + 2 * i, 2)}, {i}, v3')
        for r, a_, off in accs:
            for i in range(1, 4):
                A(f'v_cndmask_b32 {v(r)}, {v(r)}, {v(r + i)}, {s(26 + 2 * i, 2)}')
        A('s_mov_b32 exec_lo, 0x000f000f')
        A('s_mov_b32 exec_hi, 0x000f000f')
        for r, a_, off in accs:
            A(f'ds_add_f32 {v(a_)}, {v(r)} offset:{off}')
        A('s_mov_b64 exec, -1')

    def loader(self):
        A = self.A
        sLW = 26
        ONES = 16
        A(f's_sub_u32 {s(sLW)}, {s(SW)}, 4')
        if 'lp' in OPT or 'lp0' in OPT:
            A('s_setprio 3')
        self.nstamp = 0
        if self.prof:
            A('v_mov_b32 v12, 0')
            A('s_memrealtime s[60:61]')
            A('s_waitcnt lgkmcnt(0)')
            A('v_writelane_b32 v12, s60, 63')
        self.pstamp()
        if 'p67' in OPT:
            Lp7 = A.newlabel('p67')
            A(f's_lshr_b32 s28, {s(sCG16)}, 1')
            A('s_cmp_lg_u32 s28, 3')
            A(f's_cbranch_scc1 {Lp7}')
            A('s_setprio 3')
            A.label(Lp7)
        if 'nohot' not in OPT:
            A(f's_mov_b64 {s(SRD2, 2)}, {s(PA + 2, 2)}')
            A(f's_mov_b32 {s(SRD2 + 2)}, {512 * 3072}')
            A('s_lshr_b32 s28, s2, 3')
            A('s_lshl_b32 s29, s2, 2')
            A('s_add_u32 s28, s28, s29')
            A('s_and_b32 s28, s28, 31')
            A('s_lshl_b32 s28, s28, 2')
            A(f's_add_u32 s28, s28, {s(sLW)}')
            A(f's_mul_i32 s28, s28, {4 * 3072}')
            A(f'v_lshrrev_b32 v40, 1, {v(VLANE)}')
            A(f'v_mul_u32_u24 v40, 3072, v40')
            A(f'v_and_b32 v41, 1, {v(VLANE)}')
            A(f'v_lshl_add_u32 v40, v41, 10, v40')
            A('s_mov_b64 exec, 0xff')
            A(f'buffer_load_dword v11, v40, {s(SRD2, 4)}, s28 offen offset:{1024 + 384}')
            A('s_mov_b64 exec, -1')
        A(f's_mov_b64 {s(SRD2, 2)}, {s(PA + 4, 2)}')
        A(f's_mov_b32 {s(SRD2 + 2)}, {32 * 512}')
        A(f's_lshl_b32 s28, {s(sCG16)}, 10')
        A(f's_mov_b32 m0, {PHL}')
        self.dma(28, srd=SRD2)
        A(f's_mov_b64 {s(SRD2, 2)}, {s(PA + 2, 2)}')
        A(f's_mov_b32 {s(SRD2 + 2)}, {512 * 3072}')
        A(f'v_lshrrev_b32 v40, 2, {v(VLANE)}')
        A(f'v_mul_u32_u24 v40, 3072, v40')
        A(f'v_lshrrev_b32 v41, 4, {v(VLANE)}')
        A(f'v_xor_b32 v41, v41, {v(VLANE)}')
        A(f'v_and_b32 v41, 3, v41')
        A(f'v_lshl_add_u32 v40, v41, 4, v40')
        A(f's_lshl_b32 s59, {s(sCG16)}, 6')
        mw = {}
        for c in range(4):
            A(f's_add_u32 s28, {s(sT0)}, {c}')
            A(f's_and_b32 s28, s28, 3')
            A(f's_lshl_b32 s28, s28, 2')
            A(f's_add_u32 s28, s28, {s(sLW)}')
            A(f's_lshl_b32 {s(40 + c)}, s28, 12')
            A(f's_lshl_b32 {s(44 + c)}, s28, 11')
            A(f's_add_u32 {s(44 + c)}, {s(44 + c)}, {64 * KB}')

        def wdma(u):
            A(f's_mul_i32 s38, {s(40 + (u & 3))}, 24')
            A(f's_add_u32 s38, s38, s59')
            for hr in range(2):
                for p in ((1, 2) if u < 4 else (0,)):
                    A(f's_add_u32 m0, {s(40 + u)}, {max(p - 1, 0) * 2 * KB + hr * KB}')
                    A(f's_add_u32 s29, s38, {hr * 16 * 3072 + p * KB}')
                    self.dma(29, 0, voff=40, srd=SRD2)
            mw[u] = A.vmark()
        for u in range(4):
            wdma(u)
        if 'p67' in OPT:
            A('s_setprio 0')
        A.wait_all(vm=False)
        self.pstamp()
        for i in range(4):
            A(f'v_mov_b32 {v(ONES + i)}, 0x3f803f80')
        A(f'v_mov_b32 {v(VONE)}, 1')
        A(f'v_and_b32 v32, 15, {v(VLANE)}')
        A(f'v_lshrrev_b32 v33, 4, {v(VLANE)}')
        A(f'v_lshrrev_b32 v34, 2, v32')
        A(f'v_lshrrev_b32 v35, 1, v33')
        A(f'v_xor_b32 v35, v35, v34')
        A(f'v_lshlrev_b32 v35, 4, v35')
        A(f'v_lshl_add_u32 v35, v32, 6, v35')
        A(f'v_and_b32 v36, 1, v33')
        A(f'v_lshl_add_u32 v35, v36, 3, v35')
        A(f'v_xor_b32 v36, 32, v35')
        A(f'v_bfe_u32 v37, {v(VLANE)}, 1, 1')
        A(f'v_xor_b32 v37, v37, v33')
        A(f'v_lshlrev_b32 v37, 4, v37')
        A(f'v_lshrrev_b32 v38, 2, {v(VLANE)}')
        A(f'v_lshl_add_u32 v37, v38, 6, v37')
        A(f'v_and_b32 v38, 1, {v(VLANE)}')
        A(f'v_lshl_add_u32 v37, v38, 3, v37')
        A(f'v_xor_b32 v38, 32, v37')
        A(f'v_and_b32 v39, 1, v34')
        A(f'v_lshlrev_b32 v39, 10, v39')
        A(f'v_lshl_add_u32 v39, v33, 8, v39')
        A(f'v_lshrrev_b32 v34, 3, v32')
        A(f'v_lshl_add_u32 v39, v34, 7, v39')
        A(f'v_and_b32 v34, 3, v32')
        A(f'v_lshl_add_u32 v39, v34, 4, v39')
        A(f'v_lshlrev_b32 v46, 3, {v(VLANE)}')
        A(f'v_add_u32 v46, {PHL}, v46')
        A(f'v_and_b32 v30, 1, v33')
        A(f'v_lshlrev_b32 v30, 6, v30')
        A(f'v_lshrrev_b32 v34, 1, v33')
        A(f'v_lshl_add_u32 v30, v34, 5, v30')
        A(f'v_add_u32 v30, {L_CSQ}, v30')
        A(f'v_lshl_add_u32 v30, v32, 2, v30')
        A(f'v_lshlrev_b32 v31, 4, v33')
        A(f'v_add_u32 v31, {PERM}, v31')
        A(f'v_lshl_add_u32 v31, v32, 2, v31')
        F, C, CSA = 104, 104, 120

        def RB(u):
            return 160 + 16 * u if u < 4 else 224 + 8 * (u - 4)

        def reads(u):
            R = RB(u)
            for r in range(4 if u < 4 else 2):
                A(f'v_add_u32 {v(64 + r)}, {s(40 + u)}, {v(35 + r)}')
            A.wait(vm=mw[u])
            if u == 0:
                A(f'ds_read_b64_tr_b16 v[20:21], v46')
                A(f'ds_read_b64_tr_b16 v[22:23], v46 offset:512')
            for hh in range(2):
                for h2 in range(2):
                    A(f'ds_read_b64 {v(R + 4 * hh + 2 * h2, 2)}, {v(64 + hh)} offset:{h2 * KB}')
            if u < 4:
                for hh in range(2):
                    for h2 in range(2):
                        A(f'ds_read_b64_tr_b16 {v(R + 8 + 4 * hh + 2 * h2, 2)}, {v(66 + hh)} offset:{2 * KB + h2 * KB}')
            return A.lmark()
        rm = reads(0)
        for u in range(8):
            R = RB(u)
            A(f'v_add_u32 v68, {s(40 + u)}, v39')
            if u < 4:
                A(f'v_add_u32 v69, {s(40 + u)}, {v(VL16)}')
            A.wait(lg=rm)
            for hh in range(2):
                for h2 in range(2):
                    A(f'v_mfma_f32_16x16x16_bf16 {v(C + 8 * hh + 4 * h2, 4)}, {v(R + 4 * hh + 2 * h2, 2)}, {v(20 + 2 * hh, 2)}, 0')
            if u < 4:
                for hh in range(2):
                    A(f'ds_write_b128 v69, {v(R + 8 + 4 * hh, 4)} offset:{(2 + hh) * KB}')
            if u not in (3, 7):
                rm = reads(u + 1)
            for hh in range(2):
                self.pack(R + 4 * hh, C + 8 * hh, 4)
                A(f'ds_write_b128 v68, {v(R + 4 * hh, 4)} offset:{hh * 64}')
            if u in (3, 7):
                self.sig(L_CR, 1 if u == 3 else 2)
            if u == self.LPU:
                A('s_setprio 3')
            for t in range(4 if u < 4 else 2):
                a_ = CSA + 4 * t + (16 if u >= 4 else 0)
                A(f'v_mfma_f32_16x16x32_bf16 {v(a_, 4)}, {v(R + 4 * t, 4)}, {v(ONES, 4)}, {"0" if (u & 3) == 0 else v(a_, 4)}')
            if u == self.QD:
                for u2 in range(4, 8):
                    wdma(u2)
            if u == 3:
                self.pstamp()
                self.cs_add([(CSA + 4 * hh, 30, hh * 16) for hh in range(2)] + [(CSA + 8 + 4 * hh, 31, (2 + hh) * 64) for hh in range(2)], None)
                self.sig(L_CS, 1, absv=True)
                A(f's_lshl_b32 s100, {s(sLW)}, 12')
                A(f's_add_u32 s100, s100, {PST}')
                A(f's_lshl_b32 s49, s2, 2')
                A(f's_add_u32 s49, s49, {s(sLW)}')
                A(f's_add_u32 s49, s49, 256')
                m_p1 = self.piece_decode(49)
                rm = reads(4)
        self.cs_add([(CSA + 16 + 4 * hh, 30, 256 + hh * 16) for hh in range(2)], None)
        self.sig(L_CS, 2, absv=True)
        A.wait_all(vm=False)
        self.pstamp()
        def pfin():
            A.wait(vm=m_p1)
            self.piece_finish()
            for t in range(4):
                A(f'v_mfma_f32_16x16x32_bf16 {v(144 + 4 * t, 4)}, {v(88 + 4 * t, 4)}, {v(ONES, 4)}, 0')
            A(f's_sub_u32 s28, s49, 384')
            A(f's_cmp_lt_u32 s28, 448')
            for t in range(4):
                A(f's_cselect_b32 {s(72 + t)}, {s(72 + t)}, {WS_USED}')
            A('s_mov_b32 exec_lo, 0x00010001')
            A('s_mov_b32 exec_hi, 0x00010001')
            for t in range(4):
                A(f'buffer_store_dwordx4 {v(144 + 4 * t, 4)}, {v(VLANE)}, {s(SRD, 4)}, {s(72 + t)} offen sc1')
            A('s_mov_b64 exec, -1')
        if 'nokf' in OPT:
            pfin()
        bases = {}
        for r, (nm, WP, scg, sz) in enumerate((('q', WQKV, sCG16, 96), ('o', WO, sCG8, 64), ('1', W1, sCG8, 64), ('2', W2, sCG8, 64),
                                               ('3', W3, sCG16, 112), ('4', W4, sCG8, 224))):
            A(f's_mul_i32 {s(52 + r)}, {s(scg)}, {sz * KB}')
            A(f's_add_u32 {s(52 + r)}, {s(52 + r)}, {WP}')
            bases[nm] = 52 + r
        self.lwait(L_INIT, 1, 24, sleep=1, single=True)
        self.pstamp()
        A('s_lshr_b32 s34, s2, 3')
        A('s_lshl_b32 s34, s34, 2')
        A(f's_add_u32 s34, s34, {s(sLW)}')
        A(f'v_lshlrev_b32 v21, 7, {v(VLANE)}')
        A(f's_lshl_b32 s37, {s(sLW)}, 10')
        for u in range(8):
            A(f's_mov_b32 {s(64 + u)}, {s(40 + u)}')
        A('v_mov_b32 v28, v39')
        SCR, RSZ = 96 * KB, 336
        A(f'v_bfe_u32 v3, {v(VLANE)}, 2, 2')
        A(f'v_lshl_add_u32 v3, v33, 3, v3')
        A(f'v_mul_u32_u24 v47, {RSZ}, v3')
        A(f'v_and_b32 v3, 3, {v(VLANE)}')
        A(f's_lshr_b32 s30, {s(sLW)}, 1')
        A(f's_and_b32 s31, {s(sLW)}, 1')
        A(f's_lshl_b32 s32, s30, 6')
        A(f's_lshl_b32 s33, s31, 3')
        A(f's_add_u32 s32, s32, s33')
        A(f's_add_u32 s32, s32, {SCR + 128}')
        A(f'v_lshl_add_u32 v4, v3, 4, v47')
        A(f'v_add_u32 v4, s32, v4')
        A(f's_lshl_b32 s32, s30, 5')
        A(f's_add_u32 s32, s32, {SCR + 256}')
        A(f'v_lshl_add_u32 v5, v3, 3, v47')
        A(f'v_add_u32 v5, s32, v5')
        A(f's_lshl_b32 s40, {s(sCG16)}, 12')
        A(f's_add_u32 s40, s40, s37')
        A(f's_add_u32 s40, s40, {KV}')
        A(f's_lshl_b32 s41, {s(sCG16)}, 8')
        A(f's_lshl_b32 s33, s30, 7')
        A(f's_add_u32 s41, s41, s33')
        A(f's_lshl_b32 s31, s31, 4')
        A(f's_add_u32 s41, s41, s31')
        A(f's_add_u32 s41, s41, {Z}')
        A(f's_lshl_b32 s48, {s(sCG16)}, {CSH + 2}')
        A(f's_add_u32 s48, s48, s37')
        A(f's_add_u32 s48, s48, {C_KV}')
        assert CSH == 10
        A(f'v_lshlrev_b32 v50, 5, v33')
        A(f'v_lshl_add_u32 v6, v32, 2, v50')
        A(f'v_mov_b32 v3, {OOB}')
        A(f'v_cmp_gt_u32 vcc, 4, v32')
        A(f'v_cndmask_b32 v6, v3, v6, vcc')
        A(f'v_cmp_eq_u32 s[42:43], 1, v32')
        A(f'v_cmp_eq_u32 s[44:45], 2, v32')
        A(f'v_cmp_eq_u32 s[46:47], 3, v32')

        def kvjob(TA, mid=None):
            TB, KVA, ZA = TA + 16, TA + 32, TA + 36
            kp = 'kprof' in OPT
            if kp:
                self.nstamp = 0
                A('s_memrealtime s[60:61]')
                A('s_waitcnt lgkmcnt(0)')
                A('v_mov_b32 v12, 0')
                A('v_writelane_b32 v12, s60, 63')
                self.pstamp()
            self.lwait(L_CF, 3, 24, sleep=2)
            if 'kp2' in OPT:
                A('s_setprio 3')
            self.lwait(L_CB, 1, 24, sleep=1 if 'kp2' in OPT else 0)
            self.jitter()
            if 'nokp' not in OPT:
                A('s_setprio 3')
            if kp:
                self.pstamp()
            for ks in range(4):
                for u2 in range(2):
                    off = (32 * ks + 4 * u2) * RSZ
                    A(f'ds_read_b64_tr_b16 {v(TA + 4 * ks + 2 * u2, 2)}, v4 offset:{off}')
                    A(f'ds_read_b64_tr_b16 {v(TB + 4 * ks + 2 * u2, 2)}, v5 offset:{off}')
                if ks == 2:
                    A.wait(lg=A.lmark() - 8)
            base = A.lmark() - 16
            for ks in range(4):
                A.wait(lg=base + 4 * ks + 4)
                A(f'v_mfma_f32_16x16x32_bf16 {v(KVA, 4)}, {v(TA + 4 * ks, 4)}, {v(TB + 4 * ks, 4)}, {"0" if ks == 0 else v(KVA, 4)}')
                A(f'v_mfma_f32_16x16x32_bf16 {v(ZA, 4)}, {v(TA + 4 * ks, 4)}, {v(ONES, 4)}, {"0" if ks == 0 else v(ZA, 4)}')
            for r in range(4):
                o = f' offset:{256 * r}' if r else ''
                A(f'buffer_atomic_add_f32 {v(KVA + r)}, {v(VL4)}, {s(SRD, 4)}, s40 offen{o}')
            for i in range(1, 4):
                A(f'v_cndmask_b32 {v(ZA)}, {v(ZA)}, {v(ZA + i)}, {s(40 + 2 * i, 2)}')
            A(f'buffer_atomic_add_f32 {v(ZA)}, v6, {s(SRD, 4)}, s41 offen')
            if kp:
                self.pstamp()
            KT = int([o[2:] for o in OPT if o.startswith('kt')][0]) if any(o.startswith('kt') for o in OPT) else 0
            if KT:
                A(f's_mul_i32 s33, s34, {14 * KB}')
                A(f's_add_u32 s33, s33, {W3}')
                A(f's_cmp_eq_u32 {s(sPAIR)}, 0')
                A(f's_cselect_b32 s33, {WS_USED}, s33')
                A(f'buffer_load_dword v20, v21, {s(SRD, 4)}, s33 offen')
                if KT > 64:
                    A(f's_add_u32 s33, s33, 8192')
                    n2 = KT - 64
                    A(f's_mov_b64 exec, {(1 << n2) - 1:#x}' if n2 < 32 else f's_mov_b32 exec_hi, {(1 << (n2 - 32)) - 1:#x}')
                    A(f'buffer_load_dword v20, v21, {s(SRD, 4)}, s33 offen')
                    A('s_mov_b64 exec, -1')
            if mid:
                m_at = A.vmark()
                A('s_setprio 0')
                mid()
                A('s_setprio 3')
                A.wait(vm=m_at)
            else:
                A(f's_waitcnt vmcnt({0 if not KT else 1 if KT <= 64 else 2})')
                A.vm_done = A.vm
            if kp:
                self.pstamp()
            self.count(48)
            self.sig(L_KD, 1)
            A('s_setprio 0')
            if kp:
                self.pstamp()
                A('s_waitcnt vmcnt(0)')
                self.pstamp()
                A(f's_lshl_b32 s33, s2, 2')
                A(f's_add_u32 s33, s33, {s(sLW)}')
                A(f's_lshl_b32 s33, s33, 8')
                A(f's_add_u32 s33, s33, {DBG + 1024 * KB}')
                A(f'buffer_store_dword v12, {v(VL4)}, {s(SRD, 4)}, s33 offen')
        L, L3 = A.newlabel('lloop'), A.newlabel('lb3')
        if 'lp0' in OPT:
            A('s_setprio 0')

        def run(nm, src0, lds0, n):
            for i in range(0, n, 4):
                if i + 4 <= n:
                    A(f's_add_u32 m0, s37, {lds0 + i * KB}')
                    A(f's_add_u32 s28, s37, {src0 + i * KB}')
                else:
                    A(f's_min_u32 s28, s37, {(n - 1 - i) * KB}')
                    A(f's_add_u32 m0, s28, {lds0 + i * KB}')
                    A(f's_add_u32 s28, s28, {src0 + i * KB}')
                A(f's_add_u32 s28, s28, {s(bases[nm])}')
                self.dma(28)

        def steps(nm, lmap, NT, j0, j1):
            j = j0
            while j < j1:
                e = j + 1
                while e < j1 and lmap(e) == lmap(e - 1) + NT * KB:
                    e += 1
                run(nm, j * NT * KB, lmap(j), (e - j) * NT)
                j = e

        def only(pair, fn):
            Lx = A.newlabel('only')
            A.wait_all(vm=False)
            A(f's_cmp_lg_u32 {s(sPAIR)}, {pair}')
            A(f's_cbranch_scc1 {Lx}')
            vmd = A.vm_done
            fn()
            A.wait_all(vm=False)
            A.vm_done = vmd
            A.label(Lx)

        def touch(base, size):
            share = size // 128
            A(f's_mul_i32 s33, s34, {share}')
            A(f's_add_u32 s33, s33, {base}')
            vm0 = A.vm
            for i in range((share + 8191) // 8192):
                A(f'buffer_load_dword v20, v21, {s(SRD, 4)}, s33 offen')
                A(f's_add_u32 s33, s33, 8192')
            A.vm = vm0

        PK_ = 28

        def pfl(base, size, trig):
            self.lwait(L_PS, trig, 24, sleep=2)
            share = size // 128
            lines = share // 128
            A(f's_mul_i32 s33, s34, {share}')
            A(f's_add_u32 s33, s33, {base}')
            A(f's_mov_b64 exec, {(1 << PK_) - 1:#x}')
            A(f's_mov_b32 s36, {(lines + PK_ - 1) // PK_}')
            Lp_ = A.newlabel('pf')
            A.label(Lp_)
            A(f'buffer_load_dword v20, v21, {s(SRD, 4)}, s33 offen')
            A(f's_add_u32 s33, s33, {PK_ * 128}')
            A('s_sub_u32 s36, s36, 1')
            A('s_cmp_lg_u32 s36, 0')
            A('s_waitcnt vmcnt(0)')
            A(f's_cbranch_scc1 {Lp_}')
            A('s_mov_b64 exec, -1')

        def need(idx0, scg, n, stride, target):
            if 'noprep' in OPT:
                return
            A(f's_lshl_b32 s33, {s(scg)}, 7')
            A(f's_add_u32 s33, s33, {PC + idx0 * 128}')
            A(f'v_mul_u32_u24 v23, {stride}, v21')
            self.poll(33, 23, n, target=target, mode='load')

        def need3():
            A(f's_mul_i32 s33, {s(sCG16)}, 6')
            A(f's_lshr_b32 s33, s33, 2')
            A(f'v_add_u32 v23, s33, {v(VLANE)}')
            A(f's_lshr_b32 s33, {s(sCG16)}, 2')
            A(f's_add_u32 s33, s33, 24')
            A(f'v_writelane_b32 v23, s33, 2')
            A(f'v_lshlrev_b32 v23, 7, v23')
            A(f's_mov_b32 s33, {PC + 24 * 128}')
            self.poll(33, 23, 3, target=16, mode='load')
            A(f's_lshl_b32 s33, {s(sCG16)}, 13')
            A(f's_add_u32 s33, s33, s37')
            A(f's_add_u32 s33, s33, {CS3G}')
            A(f's_add_u32 s36, s33, 4096')
            A(f's_cmp_eq_u32 {s(sLW)}, 3')
            A(f's_cselect_b32 s36, {WS_USED}, s36')
            self.ldx(v(144, 4), 33, sc=' sc1')
            self.ldx(v(148, 4), 36, sc=' sc1')
            A(f's_lshl_b32 s33, {s(sLW)}, 6')
            A(f's_add_u32 s33, s33, {L_CS3}')
            A(f'v_and_b32 v9, 0x30, {v(VL16)}')
            A(f'v_add_u32 v9, s33, v9')
            A('s_waitcnt vmcnt(0)')
            for rot in (4, 8):
                for i in range(8):
                    A(f'v_add_f32_dpp {v(144 + i)}, {v(144 + i)}, {v(144 + i)} row_ror:{rot} row_mask:0xf bank_mask:0xf')
            for sw in (16, 32):
                for i in range(8):
                    A(f'v_mov_b32 {v(152 + i)}, {v(144 + i)}')
                for i in range(8):
                    A(f'v_permlane{sw}_swap_b32 {v(144 + i)}, {v(152 + i)}')
                for i in range(8):
                    A(f'v_add_f32 {v(144 + i)}, {v(144 + i)}, {v(152 + i)}')
            A('s_mov_b64 exec, 15')
            A('ds_write_b128 v9, v[144:147]')
            A('ds_write_b128 v9, v[148:151] offset:256')
            A('s_mov_b64 exec, -1')

        def cs_build(k, lmap, NT, loc, val, cs=(0, 1, 2, 3), first=True):
            self.lwait(L_CR, k, 24, sleep=1)
            st = NT * KB
            base = min(lmap(j) for j in range(16))
            assert sorted(lmap(j) for j in range(16)) == [base + j * st for j in range(16)]
            for c in cs:
                A(f's_mul_i32 s28, {s(sLW)}, {st}')
                A(f's_add_u32 s28, s28, {base + 4 * c * st}')
                A(f'v_add_u32 v9, s28, {v(VL16)}')
                for t in range(NT):
                    A(f'ds_read_b128 {v(92 + 4 * t, 4)}, v9 offset:{t * KB}')
                A.wait_all(vm=False)
                for t in range(NT):
                    A(f'v_mfma_f32_16x16x32_bf16 {v(CSA + 4 * t, 4)}, {v(92 + 4 * t, 4)}, {v(ONES, 4)}, {"0" if (first and c == cs[0]) else v(CSA + 4 * t, 4)}')
            if val:
                self.cs_add([(CSA + 4 * t, 31, loc - PERM + t * 64) for t in range(NT)], None)
                self.sig(L_CS, val, absv=True)

        def code_touch(lab):
            if 'ct' not in OPT:
                return
            Lpc = A.newlabel('pc')
            A('s_getpc_b64 s[30:31]')
            A.label(Lpc)
            A(f's_lshl_b32 s28, {s(sLW)}, 11')
            A(f's_add_u32 s28, s28, {lab}-{Lpc}')
            A('s_add_u32 s30, s30, s28')
            A('s_addc_u32 s31, s31, 0')
            A('s_mov_b64 exec, 0xffff')
            A('global_load_dword v20, v21, s[30:31]')
            A.vm -= 1
            A('s_mov_b64 exec, -1')

        def batch(k, parts, after=None):
            self.lwait(L_CF, k, 24, sleep=2)
            self.jitter()
            for p in parts:
                steps(*p)
            m = A.vmark()
            if after:
                after()
            A.wait(vm=m)
            self.sig(L_CR, k)
        if 'nokf' not in OPT:
            if 'ed1' in OPT:
                need(0, sCG8, 2, 8, 16)
                kvjob(104, lambda: (pfin(), steps('o', map_wo, 4, 4, 16), steps('1', map_w1, 4, 0, 4)))
            else:
                kvjob(104)
                pfin()
        self.sig(L_CS, 3, absv=True)
        A('s_waitcnt vmcnt(0)')
        A.vm_done = A.vm
        self.count(99)
        Ln = A.newlabel('nomode')
        A(f's_cmp_lg_u32 {s(sLW)}, 0')
        A(f's_cbranch_scc1 {Ln}')
        A('s_getreg_b32 s30, hwreg(HW_REG_XCC_ID)')
        A('s_and_b32 s30, s30, 15')
        A('s_mul_i32 s31, s30, s30')
        A('s_lshl_b32 s31, s31, 16')
        A('s_lshl_b32 s30, s30, 7')
        A('s_add_u32 s30, s30, s31')
        A('s_add_u32 s58, s30, 1')
        A('s_and_b32 s59, s2, 7')
        A('s_lshl_b32 s59, s59, 7')
        A(f's_add_u32 s59, s59, {XW}')
        self.poll(59, VL4, 1, target=32, mode='load', mask=0x7f)
        A('v_readfirstlane_b32 s30, v3')
        A('s_lshl_b32 s31, s58, 5')
        A('s_cmp_eq_u32 s30, s31')
        A(f's_cselect_b32 s33, {1 if "slow" in OPT else 2}, 1')
        A('v_mov_b32 v3, s33')
        A(f'ds_write_b32 {v(VPERM)}, v3 offset:{L_MODE - L_CF}')
        A.wait_all(vm=False)
        A.label(Ln)
        if 'nokf' in OPT:
            kvjob(104)
        A(f's_branch {L3}')
        A.label(L)
        A.vm_done = A.vm
        for k, us in ((1, range(4)), (2, range(4, 8))):
            self.lwait(L_CF, k, 24, sleep=2)
            if 'wp' in OPT:
                A('s_setprio 3')
            for u in us:
                A(f'v_add_u32 v9, {s(64 + u)}, v28')
                for hh in range(2):
                    A(f'ds_write_b128 v9, {v(RB(u) + 4 * hh, 4)} offset:{hh * 64}')
                if u < 4:
                    A(f'v_add_u32 v10, {s(64 + u)}, {v(VL16)}')
                    for hh in range(2):
                        A(f'ds_write_b128 v10, {v(RB(u) + 8 + 4 * hh, 4)} offset:{(2 + hh) * KB}')
            self.sig(L_CR, k)
            if 'wp' in OPT:
                A('s_setprio 0')
        D1 = [('o', map_wo, 4, 0, 4)] if ('cd1' in OPT or 'ed1' in OPT) else [('o', map_wo, 4, 0, 16), ('1', map_w1, 4, 0, 4)]
        if 'd1e' in OPT:
            self.lwait(L_CF, 3, 24, sleep=1)
            for p in D1:
                steps(*p)
        kvjob(160, (lambda: (steps('o', map_wo, 4, 4, 16), steps('1', map_w1, 4, 0, 4))) if 'ed1' in OPT else None)
        A.wait_all(vm=False)
        A.label(L3)

        def ldump():
            if 'ed1' not in OPT:
                need(0, sCG8, 2, 8, 16)
            self.lwait(L_CS, 3, 24, sleep=1, absv=True)
            if self.prof and 'kprof' not in OPT:
                self.pstamp()
                A(f's_lshl_b32 s33, s2, 2')
                A(f's_add_u32 s33, s33, {s(sLW)}')
                A(f's_lshl_b32 s33, s33, 8')
                A(f's_add_u32 s33, s33, {DBG + 1024 * KB}')
                A(f'buffer_store_dword v12, {v(VL4)}, {s(SRD, 4)}, s33 offen')
        only(0, ldump)
        if 'd1e' in OPT:
            def d1():
                for p in D1:
                    steps(*p)
                A('s_waitcnt vmcnt(0)')
            only(0, d1)
            self.sig(L_CR, 3)
        else:
            batch(3, D1)
        if 'pq' in OPT:
            only(1, lambda: pfl(W2, 1536 * KB, 1))
        if 'touch' in OPT:
            only(1, lambda: touch(W3, 1024 * KB))
        only(0, lambda: need(16, sCG8, 1, 0, 16))
        self.lwait(L_KD, 1, 24, sleep=1)
        batch(4, [('1', map_w1, 4, 4, 16), ('2', map_w2, 4, 0, 7)])
        RG = int([o[2:] for o in OPT if o.startswith('rg')][0]) if any(o.startswith('rg') for o in OPT) else 99

        def regload():
            A(f's_add_u32 s28, s37, {s(bases["4"])}')
            A(f's_add_u32 s28, s28, {39 * 4 * KB}')
            for i in range(17):
                self.ldx(v(92 + 4 * i, 4), 28, sc=' sc1')
                A(f's_add_u32 s28, s28, {4 * KB}')
                if i % RG == RG - 1:
                    A.wait_all(lg=False)
        only(0, lambda: (self.lwait(L_D1, 1, 24, sleep=1) if 'cd1' in OPT else None, cs_build(4, map_w1, 4, L_CS1, 4), A.wait_all(vm=False), need3()))
        if 'norl5' not in OPT:
            only(0, lambda: (need(52, sCG8, 1, 0, 56), self.lwait(L_PS, 1, 24, sleep=2, absv=True) if 'rlp' in OPT else None, regload()))
        batch(5, [('2', map_w2, 4, 7, 16), ('3', map_w3, 7, 0, 3)], lambda: only(0, lambda: code_touch('.Lst_w3')))
        A(f'v_add_u32 v9, s37, {v(VL16)}')
        A(f'v_add_u32 v9, {map_w3(3)}, v9')

        def w3out():
            self.lwait(L_PS, 1, 24, sleep=2)
            if 'wp' in OPT:
                A('s_setprio 3')
            for i in range(15):
                A(f'ds_write_b128 v9, {v(32 + 4 * i, 4)} offset:{i * 4 * KB}')
            if 'wp' in OPT:
                A('s_setprio 0')
        only(1, w3out)
        self.lwait(L_CF, 6, 24, sleep=2)
        run('3', 81 * KB, map_w3(3) + 60 * KB, 10)
        only(0, lambda: run('3', 21 * KB, map_w3(3), 60))
        A('s_waitcnt vmcnt(0)')
        A.vm_done = A.vm
        self.sig(L_CR, 6)

        def w3in():
            for i in range(15):
                A(f'ds_read_b128 {v(32 + 4 * i, 4)}, v9 offset:{i * 4 * KB}')
            self.sig(L_CS, 5, absv=True)
        only(0, w3in)
        batch(7, [('3', map_w3, 7, 13, 16)])
        if 'norl5' in OPT:
            only(0, lambda: need(52, sCG8, 1, 0, 56))
        if 'v2' in OPT:
            self.lwait(L_PS, 2, 24, sleep=2)
            regload()
            batch(8, [('4', map_w4, 4, 0, 11)])
        elif 'v3' in OPT:
            batch(8, [('4', map_w4, 4, 0, 11)], regload)
        else:
            def gtouch():
                Lt = A.newlabel('gt')
                A(f'ds_read_b32 v24, {v(VPERM)} offset:{L_MODE - L_CF}')
                A.wait_all(vm=False)
                A('v_readfirstlane_b32 s33, v24')
                A('s_cmp_lg_u32 s33, 2')
                A(f's_cbranch_scc1 {Lt}')
                A(f's_mul_i32 s33, s34, {7 * KB}')
                A('s_and_b32 s36, s2, 7')
                A(f's_mul_i32 s36, s36, {896 * KB}')
                A('s_add_u32 s33, s33, s36')
                A(f's_add_u32 s33, s33, {G}')
                A('s_mov_b32 exec_hi, 0xffffff')
                A(f'buffer_load_dword v20, v21, {s(SRD, 4)}, s33 offen')
                A('s_mov_b32 exec_hi, -1')
                A.label(Lt)
            self.lwait(L_PS, 2, 24, sleep=2)
            if 'gt' in OPT:
                gtouch()
            steps('4', map_w4, 4, 0, 11)
            if 'gt2' in OPT:
                gtouch()
            if 'rl2' in OPT:
                only(0, regload)
            A.wait_all(lg=False)
            self.sig(L_CR, 8)
            self.lwait(L_CF, 8, 24, sleep=2)
            if 'nosplit' not in OPT:
                assert map_w4(23) >= map_w3(0) and map_w4(37) + 4 * KB <= map_w3(8) + 7 * KB
                self.lwait(L_CS, 5, 24, sleep=1, absv=True)
                steps('4', map_w4, 4, 23, 38)
            if 'norl5' in OPT and 'rl2' not in OPT and 'rl9' not in OPT:
                only(0, regload)
            if 'g1' in OPT:
                only(1, lambda: (self.lwait(L_CF, 8, 24, sleep=2), gtouch()))
            if 'g2' in OPT:
                only(1, gtouch)
            if 'p4' in OPT:
                only(1, lambda: touch(W4, 1792 * KB))
            only(0, lambda: (code_touch('.Lst_w4'), code_touch('.Lst_q')))
        batch(9, [('4', map_w4, 4, 11, 39)] if 'nosplit' in OPT else [('4', map_w4, 4, 11, 23), ('4', map_w4, 4, 38, 39)])
        if 'rl9' in OPT:
            only(0, lambda: (regload(), A('s_waitcnt vmcnt(0)')))
        if 'noreg' not in OPT:
            A(f'v_add_u32 v9, s37, {v(VL16)}')
            A(f'v_add_u32 v9, {map_w4(50)}, v9')
            A(f'v_add_u32 v10, {32 * KB}, v9')
            for i in range(17):
                if i == 0 and True:
                    self.lwait(L_PS, 3, 24, sleep=1)
                    if 'now10' not in OPT:
                        A('s_setprio 3')
                if i == (9 if True else 0):
                    A('s_setprio 0')
                    self.lwait(L_CF, 10, 24, sleep=1)
                    if 'now10' not in OPT:
                        A('s_setprio 3')
                o_ = map_w4(39 + i) - map_w4(50)
                A(f'ds_write_b128 {v(9 + (o_ >= 32 * KB))}, {v(92 + 4 * i, 4)} offset:{o_ - 32 * KB * (o_ >= 32 * KB)}')
            self.sig(L_CR, 10)
            if 'now10' not in OPT:
                A('s_setprio 0')
        else:
            batch(10, [('4', map_w4, 4, 39, 56)])
        A.wait_all()
        A(f's_add_u32 {s(sEV)}, {s(sEV)}, 10')
        A(f's_add_u32 s40, s40, {ZSTRIDE}')
        A(f's_add_u32 s41, s41, {ZSTRIDE}')
        A(f's_add_u32 s48, s48, {CSTRIDE}')
        A(f's_add_u32 {s(sPAIR)}, {s(sPAIR)}, 1')
        A(f's_cmp_lt_u32 {s(sPAIR)}, 2')
        A(f's_cbranch_scc1 {L}')
        A('s_endpgm')

    def main(self):
        A = self.A
        name = NAME + '_kernel'
        A.reset_kernel()
        A.raw('.p2align 8')
        A.raw(f'.globl {name}')
        A.raw(f'.type {name},@function')
        A.label(name)
        self.exit = A.newlabel('exit')
        A('s_cmp_ge_u32 s2, 256')
        A(f's_cbranch_scc1 {self.exit}')
        A(f's_load_dwordx16 {s(PA, 16)}, s[0:1], 0')
        A(f's_load_dwordx8 {s(PA + 16, 8)}, s[0:1], 64')
        if self.prof or 'dbgt' in OPT or any(o.startswith('mk') for o in OPT):
            A('s_memrealtime s[62:63]')
        Lpc = A.newlabel('pc')
        A('s_getpc_b64 s[40:41]')
        A.label(Lpc)
        if 'cpfull' in OPT:
            A('v_lshlrev_b32 v3, 7, v0')
            A(f'v_min_u32 v3, code_end-{Lpc}-4, v3')
            A('global_load_dword v13, v3, s[40:41]')
        elif 'cpnone' not in OPT:
            A('s_lshr_b32 s42, s2, 3')
            A('s_lshl_b32 s42, s42, 11')
            A('v_lshlrev_b32 v3, 2, v0')
            A('v_add_u32 v3, s42, v3')
            A(f'v_min_u32 v3, code_end-{Lpc}-4, v3')
            A('s_mov_b32 exec_lo, 1')
            A('s_mov_b32 exec_hi, 1')
            A('global_load_dword v13, v3, s[40:41]')
            A('s_mov_b64 exec, -1')
        A(f'v_and_b32 {v(VLANE)}, 63, v0')
        A(f'v_lshrrev_b32 v3, 6, v0')
        A(f'v_lshlrev_b32 {v(VL16)}, 4, {v(VLANE)}')
        A(f'v_readfirstlane_b32 {s(SW)}, v3')
        A(f's_mov_b32 {s(SRD + 2)}, {WS_USED}')
        A(f's_mov_b32 {s(SRD + 3)}, 0x00020000')
        A(f's_mov_b32 {s(SRD2 + 3)}, 0x00020000')
        A(f's_mov_b32 {s(SRDD + 2)}, 256')
        A(f's_mov_b32 {s(SRDD + 3)}, 0x00020000')
        self.tile64(sT, sCG8)
        self.tile128(sT0, sCG16)
        A(f's_mov_b32 {s(sPAIR)}, 0')
        A(f's_mov_b32 {s(sTO)}, 0x200000')
        A(f'v_lshlrev_b32 {v(VL4)}, 2, {v(VLANE)}')
        A(f's_mov_b32 {s(sEV)}, 0')
        A(f'v_mov_b32 {v(VPERM)}, {L_CF}')
        A(f's_and_b32 s26, {s(SW)}, 3')
        A(f's_lshl_b32 s26, s26, 2')
        A(f'v_add_u32 {v(VOWN)}, s26, {v(VPERM)}')
        A(f'v_cmp_gt_u32 vcc, 4, {v(VLANE)}')
        A(f'v_cndmask_b32 v3, 0, 2, vcc')
        A(f'v_add_u32 v10, {v(VL4)}, {v(VPERM)}')
        A(f'ds_write_b32 v10, v3')
        A(f'v_lshlrev_b32 v10, 2, v0')
        A(f'v_add_u32 v10, {PERM}, v10')
        A(f'v_mov_b32 v11, 0')
        A(f'ds_write_b32 v10, v11')
        LC = A.newlabel('compute')
        A('s_waitcnt lgkmcnt(0)')
        A.lg_done = A.lg
        A(f's_mov_b64 {s(SRD, 2)}, {s(PA + 22, 2)}')
        A(f's_mov_b64 {s(SRDD, 2)}, {s(PA + 20, 2)}')
        if 'wpf' in OPT:
            A('s_lshr_b32 s26, s2, 3')
            A('s_lshl_b32 s27, s2, 2')
            A('s_add_u32 s26, s26, s27')
            A('s_and_b32 s26, s26, 31')
            A('s_lshl_b32 s26, s26, 3')
            A(f's_add_u32 s26, s26, {s(SW)}')
            A(f's_mul_i32 s26, s26, 6144')
            A(f's_mov_b64 {s(SRD2, 2)}, {s(PA + 2, 2)}')
            A(f's_mov_b32 {s(SRD2 + 2)}, {512 * 3072}')
            A(f'v_lshlrev_b32 v10, 7, {v(VLANE)}')
            A('s_mov_b32 exec_hi, 0xffff')
            A(f'buffer_load_dword v13, v10, {s(SRD2, 4)}, s26 offen')
            A('s_mov_b32 exec_hi, -1')
        A(f's_cmp_lt_u32 {s(SW)}, 4')
        A('s_barrier')
        A(f's_cbranch_scc1 {LC}')
        self.loader()
        A.label(LC)
        A.flush_hazards()
        A.vm = A.vm_done = A.lg = A.lg_done = 0
        if 'eq' not in OPT:
            A('s_setprio 2')
        A(f's_lshl_b32 {s(sT0)}, {s(sT0)}, 3')
        A(f's_lshl_b32 s26, {s(SW)}, 1')
        A(f's_add_u32 {s(sT0)}, {s(sT0)}, s26')
        Lz = A.newlabel('nz')
        A(f's_cmp_lt_u32 s2, 32')
        A(f's_cselect_b32 s58, {s(SW)}, 0')
        A(f's_cmp_lg_u32 s58, 3')
        A(f's_cbranch_scc1 {Lz}')
        for i in range(4):
            A(f'v_mov_b32 {v(28 + i)}, 0')
        A(f's_mul_i32 s28, s2, {5 * KB}')
        A(f's_add_u32 s28, s28, {ZR}')
        A(f's_add_u32 s29, s28, {4 * KB}')
        A(f's_and_b32 s30, s2, 7')
        A(f's_lshl_b32 s30, s30, 14')
        A(f's_lshr_b32 s31, s2, 3')
        A(f's_lshl_b32 s31, s31, 12')
        A(f's_add_u32 s30, s30, s31')
        A(f's_add_u32 s30, s30, {CB}')
        assert CB == ZR + 160 * KB
        for i in range(9):
            r, o = (28, i) if i < 4 else (29, 0) if i == 4 else (30, i - 5)
            A(f'buffer_store_dwordx4 v[28:31], {v(VL16)}, {s(SRD, 4)}, {s(r)} offen offset:{o * KB} sc1')
        A('v_mov_b32 v3, 1')
        A('s_waitcnt vmcnt(0)')
        A('s_mov_b64 exec, 1')
        A(f'buffer_atomic_add v3, {v(VL4)}, {s(SRDD, 4)}, 0 offen')
        A('s_mov_b64 exec, -1')
        A.label(Lz)
        A.vm_done = A.vm
        A('s_nop 0')
        A(f's_mov_b64 {s(SRD2, 2)}, {s(PA, 2)}')
        A(f's_mov_b32 {s(SRD2 + 2)}, {2048 * 512 * 2}')
        A(f'v_lshrrev_b32 v3, 4, {v(VLANE)}')
        A(f'v_and_b32 v10, 0xf0, {v(VL16)}')
        A(f'v_lshl_add_u32 v10, v3, 10, v10')
        A(f's_lshl_b32 s92, {s(sT0)}, 14')
        for i in range(1, 8):
            A(f's_add_u32 {s(92 + i)}, s92, {i * 4096}')
        PB = [128, 160, 192, 224]
        self.x0m = []

        def x0load(q4):
            for mt in range(2):
                for n in range(4):
                    self.ld(v(PB[q4] + 16 * mt + 4 * n, 4), 92 + 4 * mt + n, 256 * q4, voff=10, srd=SRD2)
                self.x0m.append(A.vmark())
        self.x0load = x0load
        for q4 in range(self.XPRE):
            x0load(q4)
        A(f's_mov_b32 {s(sP)}, 0')
        A(f's_mov_b32 {s(sZ)}, 0')
        A(f's_mov_b32 {s(sC)}, 0')
        A(f's_mov_b32 {s(sFAST)}, 0')
        A(f's_mov_b32 {s(sFG)}, 0')
        A(f's_lshl_b32 {s(sT)}, {s(sT)}, 2')
        A(f's_add_u32 {s(sT)}, {s(sT)}, {s(SW)}')
        A(f's_lshl_b32 {s(sTILE)}, {s(sT)}, 14')
        A(f's_lshl_b32 s26, {s(sCG8)}, 11')
        A(f's_add_u32 {s(sTILE)}, {s(sTILE)}, s26')
        A(f's_lshl_b32 {s(sSTP)}, {s(sT)}, 10')
        A(f's_lshl_b32 s26, {s(sCG8)}, 7')
        A(f's_add_u32 {s(sSTP)}, {s(sSTP)}, s26')
        A(f's_mov_b32 {s(sHH)}, {HH - H}')
        A(f's_and_b32 s26, {s(sT)}, 15')
        A(f's_bitcmp1_b32 {s(sCG8)}, 1')
        A(f's_cselect_b32 s27, 0, 15')
        A(f's_cmp_eq_u32 s26, s27')
        A(f's_cselect_b32 {s(sFH)}, 1, 0')
        A(f's_lshl_b32 s27, {s(sT)}, {CSH}')
        A(f's_add_u32 s28, s27, {C_HH - (1 << CSH)}')
        A(f's_add_u32 s27, s27, {C_HH + (1 << CSH) + 8}')
        A(f's_cmp_eq_u32 s26, 15')
        A(f's_cselect_b32 {s(sRH)}, s27, 0')
        A(f's_cmp_eq_u32 s26, 0')
        A(f's_cselect_b32 {s(sRH)}, s28, {s(sRH)}')
        A(f's_cmp_eq_u32 {s(sT)}, 0')
        A(f's_cselect_b32 {s(sRH)}, 0, {s(sRH)}')
        A(f's_cmp_eq_u32 {s(sT)}, 127')
        A(f's_cselect_b32 {s(sRH)}, 0, {s(sRH)}')
        for f, t, c in ((sF8, sT, sCG8), (sF16, sT0, sCG16)):
            A(f's_lshl_b32 {s(f)}, {s(t)}, {CSH}')
            A(f's_lshl_b32 s26, {s(c)}, 2')
            A(f's_add_u32 {s(f)}, {s(f)}, s26')
            A(f's_add_u32 {s(f)}, {s(f)}, {CB}')
        A(f'v_add_u32 {v(VB64)}, 0x10000, {v(VL16)}')
        A(f'v_add_u32 {v(VB128)}, 0x20000, {v(VL16)}')
        A(f'v_and_b32 {v(VSTL)}, 0x300, {v(VL16)}')
        A(f'v_and_b32 v3, 15, {v(VLANE)}')
        A(f'v_lshl_add_u32 {v(VSTL)}, v3, 3, {v(VSTL)}')
        A(f'v_mov_b32 {v(VONE)}, 1')
        A(f'v_lshrrev_b32 {v(VP2)}, 3, {v(VLANE)}')
        A(f'v_and_b32 v3, 0x1c, {v(VL4)}')
        A(f'v_lshl_add_u32 {v(VP2)}, {v(VP2)}, {CSH}, v3')
        A('v_mov_b32 v12, 0')
        if self.prof:
            A('v_writelane_b32 v12, s62, 60')
        A.wait(vm=self.x0m[0])
        self.Lp = A.newlabel('pair')
        Lfinal = A.newlabel('final')
        self.stage_qkv()
        self.stage_wo()
        self.stage_w1()
        self.stage_w2()
        A.label('.Lst_w3')
        self.stage_w3()
        A.label('.Lst_w4')
        self.stage_w4(Lfinal)
        self.dump2()
        self.mark(3)
        if 'dbgt' in OPT:
            A('s_memrealtime s[60:61]')
            A('s_waitcnt lgkmcnt(0)')
            A('s_mov_b32 s94, s60')
        A(f's_mov_b32 {s(sPAIR)}, 1')
        A(f's_mov_b32 {s(sEV)}, 10')
        A(f's_mov_b32 {s(sHH)}, {HH - H + 2048 * KB}')
        A(f's_mov_b32 {s(sFG)}, {s(sFAST)}')
        A(f's_mov_b32 {s(sZ)}, {ZSTRIDE}')
        A(f's_mov_b32 {s(sC)}, {CSTRIDE}')
        A(f's_add_u32 {s(sF8)}, {s(sF8)}, {CSTRIDE}')
        A(f's_add_u32 {s(sF16)}, {s(sF16)}, {CSTRIDE}')
        A(f's_branch {self.Lp}')
        A.label(Lfinal)
        buf = 64
        A(f's_mov_b64 {s(SRD2, 2)}, {s(PA + 18, 2)}')
        A(f'v_and_b32 v13, 15, {v(VLANE)}')
        A(f'v_lshlrev_b32 v13, 10, v13')
        A(f'v_bfe_u32 v3, {v(VLANE)}, 4, 1')
        A(f'v_lshl_add_u32 v13, v3, 5, v13')
        A(f'v_lshrrev_b32 v3, 5, {v(VLANE)}')
        A(f'v_lshl_add_u32 v13, v3, 4, v13')
        A(f's_lshl_b32 s28, {s(sT)}, 14')
        A(f's_lshl_b32 s29, {s(sCG8)}, 7')
        A(f's_add_u32 s28, s28, s29')
        self.pack(buf, RES, 8)
        for q in range(2):
            b = buf + 4 * q
            A(f'v_permlane16_swap_b32 {v(b)}, {v(b + 2)}')
            A(f'v_permlane16_swap_b32 {v(b + 1)}, {v(b + 3)}')
        for q in range(2):
            self.stsfx = ' sc1' if 'osc1' in OPT else ' nt' if 'ont' in OPT else ''
            self.st(v(buf + 4 * q, 4), 28, 64 * q, voff=13, srd=SRD2)
        if 'dbgt' in OPT:
            A('s_not_b32 s62, s62')
            A('v_mov_b32 v12, s62')
            A('s_mov_b64 exec, 1')
            A(f'buffer_atomic_umax v12, {v(VL4)}, {s(SRDD, 4)}, 0 offen offset:32')
            A('s_mov_b64 exec, -1')
        self.dbgt(9)
        for i_, r_ in enumerate((92, 93, 94)):
            if 'dbgt' in OPT:
                A(f'v_mov_b32 v12, {s(r_)}')
                A('s_mov_b64 exec, 1')
                A(f'buffer_atomic_umax v12, {v(VL4)}, {s(SRDD, 4)}, 0 offen offset:{40 + 4 * i_}')
                A('s_mov_b64 exec, -1')
        if self.prof:
            A('s_memrealtime s[60:61]')
            A('s_waitcnt lgkmcnt(0)')
            A('v_writelane_b32 v12, s60, 62')
        self.dump2()
        self.mark(4, False)
        if any(o.startswith('mk') for o in OPT):
            Ls = A.newlabel('spin')
            A('s_memrealtime s[56:57]')
            A('s_waitcnt lgkmcnt(0)')
            A('s_sub_u32 s54, s54, s62')
            A.label(Ls)
            A('s_memrealtime s[58:59]')
            A('s_waitcnt lgkmcnt(0)')
            A('s_sub_u32 s58, s58, s56')
            A('s_cmp_lt_u32 s58, s54')
            A(f's_cbranch_scc1 {Ls}')
        A.label(self.exit)
        A('s_endpgm')
        A.label('code_end')
        if 'ct' in OPT:
            A.raw('.fill 2048, 4, 0xbf810000')
        self.kernels.append((name, A.maxv + 1, (A.maxv + 4) // 4 * 4, A.maxs + 1))

    def build(self, hdr):
        self.main()
        out = [hdr]
        out.append(f'; @launch grid=(256,1,1) block=(512,1,1) lds={160 * KB}')
        out.append('.amdgcn_target "amdgcn-amd-amdhsa--gfx950"')
        out.append(DOC)
        out.append('.text')
        out.append(self.A.text())
        out.append('.section .rodata,"a"')
        for n, nv, accum, ns in self.kernels:
            assert nv <= 256
            out.append('.p2align 6')
            out.append(f'.amdhsa_kernel {n}')
            out.append(f'  .amdhsa_next_free_vgpr {nv}')
            out.append(f'  .amdhsa_next_free_sgpr {max(ns, 16)}')
            out.append(f'  .amdhsa_accum_offset {accum}')
            out.append('  .amdhsa_group_segment_fixed_size 0')
            out.append('  .amdhsa_kernarg_size 96')
            out.append('  .amdhsa_user_sgpr_count 2')
            out.append('  .amdhsa_user_sgpr_kernarg_segment_ptr 1')
            out.append('  .amdhsa_system_sgpr_workgroup_id_x 1')
            out.append('  .amdhsa_float_denorm_mode_32 3')
            out.append('.end_amdhsa_kernel')
        return '\n'.join(out) + '\n'


if __name__ == '__main__':
    OPT.add('d2early')
    g = Gen3()
    g.prof = 'prof' in OPT
    txt = g.build(header())
    out = sys.argv[1]
    if out == '-':
        out = f'cdna_kernels/{NAME}.s'
    open(out, 'w').write(txt)
    json.dump(LAYOUT, open('layout.json', 'w'))
    for k in g.kernels:
        print(k)
    print('nops inserted', g.A.nops, 'ws used', WS_USED, 'stamps', g.nstamp)
```

```python
import sys, json
import gen as G1
from gen import Gen, KB, NAME, f32, LOG2E, OOB, SRD, SW, SRD2, VL16, VLANE, header
from asmlib import v, a, s

OPT = set(sys.argv[2:])

_off = 0
def _alloc(n):
    global _off
    r = _off
    _off += (n + 4095) // 4096 * 4096
    return r
WQKV = _alloc(1536 * KB); WO = _alloc(512 * KB); W1 = _alloc(512 * KB); W2 = _alloc(512 * KB)
W3 = _alloc(1792 * KB); W4 = _alloc(1792 * KB)
CSQ = _alloc(16 * KB); CS1 = _alloc(8 * KB); CS3 = _alloc(16 * KB); DUMMY = _alloc(4 * KB)
ZR = _alloc(288 * KB)
ZSTRIDE = 68 * KB
KV = ZR
Z = KV + 64 * KB
PC = ZR + 136 * KB
XW = ZR + 146 * KB
CSH = 10
CB = ZR + 160 * KB
C_X, C_O, C_XA, C_H, C_X1, C_G, C_KV, C_HH = [CB + 128 * i for i in range(8)]
CSTRIDE = 64
X0 = _alloc(2048 * KB); ST0 = _alloc(128 * KB); OB = _alloc(2048 * KB); G = _alloc(7168 * KB)
HH = _alloc(4096 * KB)
CS3G = _alloc(128 * KB)
XA = X1 = X0
STA = ST1 = ST0
H = OB
PSTRIDE = 0
DBG = _alloc(16 * 512 * 128 * 2)
DBG2 = _alloc(1024 * 16 * KB if 'dump' in OPT else 4096)
WS_USED = _off
LAYOUT = {k: val for k, val in globals().items() if k.isupper() and isinstance(val, int)}
for k_, v_ in LAYOUT.items():
    setattr(G1, k_, v_)

sT, sCG8, sT0, sCG16, sP, sPAIR, sZ, sTO = 16, 17, 18, 19, 20, 21, 22, 23
sTILE, sSTP, sC, sFAST, sFH = 24, 25, 44, 45, 46
sFG = 49
sHH, sRH = 52, 53
sF8, sF16 = 47, 48
VB64, VB128, VSTL, VL4, VONE, VP2 = 4, 5, 6, 7, 8, 9
VMR = 10
RES = 16
FREE = 32
PERM = 156 * KB
L_CSQ, L_CS1, L_CS3 = PERM, PERM + 384, PERM + 640
L_CF, L_CR, L_CB, L_MODE, L_GO = PERM + 2048, PERM + 2064, PERM + 2080, PERM + 2096, PERM + 2100
L_PS = PERM + 2112
L_CS = PERM + 2128
L_INIT = PERM + 2104
L_KD = PERM + 2176
L_D1 = PERM + 2192
L_ST = PERM + 2148
PA = 64
SRDD = 88
PST = 138 * KB
PHL = 154 * KB
sEV = 50
VPERM = 15
VOWN = 14
GR = 4 * KB
def map_wo(j): return (35 + j) * GR if j < 4 else (j - 4) * GR
def map_w1(j): return (12 + j) * GR
def map_w2(j): return (28 + j) * GR if j < 11 else (j - 11) * GR
def map_w3(j): return ((j + 3) % 16) * 7 * KB
def map_w4(j):
    if j >= 39: j -= 39
    return (28 + j) * GR if j < 11 else (22 + j - 11) * GR if j < 17 else (j - 17) * GR
def map_kv(j): return j * 4 * KB
def map_q(j): return 64 * KB + j * 2 * KB
def xq(mt, j): return 128 + (j >> 2) * 32 + mt * 16 + (j & 3) * 4


DOC = """; Persistent kernel, one workgroup per CU (generated by a hand-written Python emitter).
;  waves 0-3: compute (MFMA 16x16x32 bf16, outputs transposed: lane = token), waves 4-7: loaders (weights -> LDS).
;  LayerNorm is applied as rstd*(x@W - mean*colsum(W)) with row statistics handed on by the producing stage;
;  w_phi is folded into Wq/Wk at start; softmax subtracts the true row max / min.
;  Stages hand activations over through d_ws in MFMA-fragment order with per-tile flag words (zeroed at start,
;  ordered by a counter in d_debug).  When the 32 workgroups with equal id%8 report the same XCC id the hand-offs use
;  s_sleep appears only inside spin-waits; every spin is bounded."""


class Rec:
    def __init__(self):
        self.l = []

    def __call__(self, t):
        self.l.append(t)


class Gen3(Gen):
    persist = False
    first_wait = False
    XGO = int([o[3:] for o in OPT if o.startswith('xgo')][0]) if any(o.startswith('xgo') for o in OPT) else 2
    NPRE = int([o[4:] for o in OPT if o.startswith('npre')][0]) if any(o.startswith('npre') for o in OPT) else 3
    XPRE = int([o[4:] for o in OPT if o.startswith('xpre')][0]) if any(o.startswith('xpre') for o in OPT) else 4
    DQ = int([o[2:] for o in OPT if o.startswith('dq')][0]) if any(o.startswith('dq') for o in OPT) else 6
    QD = int([o[2:] for o in OPT if o.startswith('qd')][0]) if any(o.startswith('qd') for o in OPT) else 1
    NPOLL = int([o[2:] for o in OPT if o.startswith('np')][0]) if any(o.startswith('np') for o in OPT) else 1
    PGAP = int([o[2:] for o in OPT if o.startswith('pg')][0]) if any(o.startswith('pg') for o in OPT) else 2
    SP = int([o[2:] for o in OPT if (o.startswith('sp') and len(o) == 3)][0]) if any((o.startswith('sp') and len(o) == 3) for o in OPT) else 5
    LPU = int([o[3:] for o in OPT if o.startswith('lpu')][0]) if any(o.startswith('lpu') for o in OPT) else 9
    E11 = int([o[1:] for o in OPT if o.startswith('e') and o[1:].isdigit()][0]) if any(o.startswith('e') and o[1:].isdigit() for o in OPT) else 48
    SL = int([o[2:] for o in OPT if o.startswith('sl') and o[2:].isdigit()][0]) if any(o.startswith('sl') and o[2:].isdigit() for o in OPT) else 2
    EF = int([o[2:] for o in OPT if o.startswith('ef') and o[2:].isdigit()][0]) if any(o.startswith('ef') and o[2:].isdigit() for o in OPT) else 72
    DS = int([o[2:] for o in OPT if o.startswith('ds')][0]) if any(o.startswith('ds') for o in OPT) else 16
    SG = int([o[2:] for o in OPT if o.startswith('sg')][0]) if any(o.startswith('sg') for o in OPT) else 11
    D4 = int([o[2:] for o in OPT if (o.startswith('dw') and o[2:].isdigit())][0]) if any((o.startswith('dw') and o[2:].isdigit()) for o in OPT) else 10
    DB = int([o[2:] for o in OPT if o.startswith('db')][0]) if any(o.startswith('db') for o in OPT) else 6

    def rec(self, fn):
        keep = self.A
        self.A = Rec()
        fn()
        l = self.A.l
        self.A = keep
        return l

    def ldx(self, dst, soff, ioff=0, voff=VL16, w=4, sc=None):
        o = f' offset:{ioff}' if ioff else ''
        wn = {1: 'dword', 2: 'dwordx2', 4: 'dwordx4'}[w]
        if sc is None:
            sc = '' if 'ldplain' in OPT else ' nt' if 'ldnt' in OPT else ' sc0' if 'ldsc0' in OPT else ' sc1'
        self.A(f'buffer_load_{wn} {dst}, {v(voff)}, {s(SRD, 4)}, {s(soff)} offen{o}{sc}')
        return self.A.vmark()

    dmant = False

    def dma(self, soff, ioff=0, voff=VL16, srd=SRD):
        o = f' offset:{ioff}' if ioff else ''
        nt = ' sc1' if (srd == SRD and 'dmaplain' not in OPT) else ''
        self.A(f'buffer_load_dwordx4 {v(voff)}, {s(srd, 4)}, {s(soff)} offen{o}{nt} lds')
        return self.A.vmark()

    def stores(self, lst, fast=sFAST):
        A = self.A
        Ls, Ld = A.newlabel('sts'), A.newlabel('std')

        def emit(sc):
            for src, soff, ioff, voff, w, ex in lst:
                o = f' offset:{ioff}' if ioff else ''
                wn = {1: 'dword', 2: 'dwordx2', 4: 'dwordx4'}[w]
                if ex:
                    A(f's_mov_b64 exec, {ex}')
                A(f'buffer_store_{wn} {src}, {v(voff)}, {s(SRD, 4)}, {s(soff)} offen{o}{sc}')
                if ex:
                    A('s_mov_b64 exec, -1')
        A(f's_cmp_eq_u32 {s(fast)}, 0')
        A(f's_cbranch_scc1 {Ls}')
        vm0 = A.vm
        emit(' nt' if 'stnt' in OPT else ' sc0' if 'stsc0' in OPT else ' sc1' if ('datasc1' in OPT and lst[0][4] != 1) else '')
        A(f's_branch {Ld}')
        A.label(Ls)
        A.vm = vm0
        emit(' sc1')
        A.label(Ld)

    njit = 0

    def jitter(self):
        js = [o for o in OPT if o.startswith('jit')]
        if not js:
            return
        k = int(js[0][3:])
        A = self.A
        self.njit += 1
        L = A.newlabel('jit')
        A(f's_mul_i32 s60, s2, {2 * k + 1}')
        A(f's_mul_i32 s61, {s(SW)}, {k + 2}')
        A('s_add_u32 s60, s60, s61')
        A(f's_add_u32 s60, s60, {self.njit * 5}')
        A('s_and_b32 s60, s60, 7')
        A(f's_cmp_lt_u32 s60, 6')
        A(f's_cbranch_scc1 {L}')
        A(f's_sleep {3 + (self.njit * 7 + k * 11) % 29}')
        A.label(L)

    def pstamp(self):
        self.jitter()
        if not self.prof:
            return
        A = self.A
        i = self.nstamp
        self.nstamp += 1
        A('s_memtime s[60:61]')
        A('s_waitcnt lgkmcnt(0)')
        A.lg_done = A.lg
        A(f'v_writelane_b32 v12, s60, {i}')

    def dbgt(self, slot, inv=False):
        if 'dbgt' not in OPT:
            return
        A = self.A
        assert A.lg == A.lg_done
        A('s_memrealtime s[60:61]')
        A('s_waitcnt lgkmcnt(0)')
        if inv:
            A('s_not_b32 s60, s60')
        A('v_mov_b32 v12, s60')
        A('s_mov_b64 exec, 1')
        A(f'buffer_atomic_umax v12, {v(VL4)}, {s(SRDD, 4)}, 0 offen offset:{slot * 4}')
        A.vm -= 1
        A('s_mov_b64 exec, -1')

    def mark(self, k, pair0=True):
        if f'mk{k}' not in OPT:
            return
        A = self.A
        L = A.newlabel('mk')
        if pair0:
            A(f's_cmp_lg_u32 {s(sPAIR)}, 0')
            A(f's_cbranch_scc1 {L}')
        A('s_memrealtime s[54:55]')
        A('s_waitcnt lgkmcnt(0)')
        A.label(L)

    def poll(self, sbase, voff, n, target=1, mode='auto', ioff=0, srd=SRD, mask=None, during=None):
        A = self.A
        L, LS, LC, D = A.newlabel('poll'), A.newlabel('polls'), A.newlabel('pollc'), A.newlabel('polld')
        o = f' offset:{ioff}' if ioff else ''
        A(f's_mov_b64 exec, {(1 << n) - 1:#x}' if n < 32 else 's_mov_b32 exec_hi, 0')
        if during and 'nodur' in OPT:
            A('s_mov_b64 exec, -1')
            during()
            A(f's_mov_b64 exec, {(1 << n) - 1:#x}')
        elif during:
            A(f'buffer_load_dword v0, {v(voff)}, {s(SRD, 4)}, {s(sbase)} offen{o} sc1')
            A('s_mov_b64 exec, -1')
            during()
            A(f's_mov_b64 exec, {(1 << n) - 1:#x}')
            A('s_waitcnt vmcnt(0)')
            A(f'v_cmp_le_u32 vcc, {target}, v0')
            A('s_cmp_eq_u64 vcc, exec')
            A(f's_cbranch_scc1 {D}')
        NP = self.NPOLL
        if mode == 'auto' and NP > 1 and not self.prof:
            LF = A.newlabel('pollf')
            regs = [12, 0]
            A(f's_cmp_eq_u32 {s(sFAST)}, 0')
            A(f's_cbranch_scc1 {L}')
            vm0 = A.vm
            for r in regs[:-1]:
                A(f'buffer_load_dword {v(r)}, {v(voff)}, {s(SRD, 4)}, {s(sbase)} offen{o} sc1')
                for _ in range(self.PGAP):
                    A('s_nop 15')
            A.label(LF)
            for i, r in enumerate(regs):
                A(f'buffer_load_dword {v(regs[i - 1])}, {v(voff)}, {s(SRD, 4)}, {s(sbase)} offen{o} sc1')
                A(f's_waitcnt vmcnt({len(regs) - 1})')
                A(f'v_cmp_le_u32 vcc, {target}, {v(r)}')
                A('s_cmp_eq_u64 vcc, exec')
                A(f's_cbranch_scc1 {D}')
            A(f's_sub_u32 {s(sTO)}, {s(sTO)}, 1')
            A(f's_cbranch_scc0 {LF}')
            A(f's_branch {self.exit}')
            A.vm = vm0
            mode = 'atomic'
        A.label(L)
        if mode == 'auto':
            A(f's_cmp_eq_u32 {s(sFAST)}, 0')
            A(f's_cbranch_scc1 {LS}')
            A(f'buffer_load_dword v3, {v(voff)}, {s(SRD, 4)}, {s(sbase)} offen{o} sc1')
            A(f's_branch {LC}')
            A.label(LS)
        if mode == 'load':
            A(f'buffer_load_dword v3, {v(voff)}, {s(srd, 4)}, {s(sbase)} offen{o} sc1')
        else:
            A('v_mov_b32 v3, 0')
            A(f'buffer_atomic_add v3, {v(voff)}, {s(SRD, 4)}, {s(sbase)} offen{o} sc0')
        A.label(LC)
        A('s_waitcnt vmcnt(0)')
        A.vm_done = A.vm
        if mask:
            A(f'v_and_b32 v22, {mask}, v3')
            A(f'v_cmp_le_u32 vcc, {target}, v22')
        else:
            A(f'v_cmp_le_u32 vcc, {target}, v3')
        A('s_cmp_eq_u64 vcc, exec')
        A(f's_cbranch_scc1 {D}')
        A(f's_sub_u32 {s(sTO)}, {s(sTO)}, 1')
        A(f's_cbranch_scc1 {self.exit}')
        if mode == 'load':
            A('s_sleep 8')
        A(f's_branch {L}')
        A.label(D)
        A('s_mov_b64 exec, -1')

    def sig(self, base, k, absv=False):
        A = self.A
        if absv:
            A(f'v_mov_b32 v3, {k}')
        else:
            A(f's_add_u32 s51, {s(sEV)}, {k}')
            A('v_mov_b32 v3, s51')
        A(f'ds_write_b32 {v(VOWN)}, v3 offset:{base - L_CF}')

    def lwait(self, base, k, tmp, sleep=0, single=False, absv=False, own=False):
        A = self.A
        L, D = A.newlabel('lw'), A.newlabel('lwd')
        A(f's_mov_b32 s51, {k}' if absv else f's_add_u32 s51, {s(sEV)}, {k}')
        A.label(L)
        if single:
            A(f'ds_read_b32 {v(tmp)}, {v(VOWN if own else VPERM)} offset:{base - L_CF}')
            A.wait_all(vm=False)
        else:
            A(f'ds_read_b128 {v(tmp, 4)}, {v(VPERM)} offset:{base - L_CF}')
            A.wait_all(vm=False)
            A(f'v_min_u32 {v(tmp)}, {v(tmp)}, {v(tmp + 1)}')
            A(f'v_min3_u32 {v(tmp)}, {v(tmp)}, {v(tmp + 2)}, {v(tmp + 3)}')
        A(f'v_cmp_le_u32 vcc, s51, {v(tmp)}')
        A(f's_cbranch_vccnz {D}')
        A(f's_sub_u32 {s(sTO)}, {s(sTO)}, 1')
        A(f's_cbranch_scc1 {self.exit}')
        if sleep:
            A(f's_sleep {sleep if sleep != 2 else self.SL}')
        A(f's_branch {L}')
        A.label(D)

    def lpeek(self, base, tmp):
        self.A(f'ds_read_b128 {v(tmp, 4)}, {v(VPERM)} offset:{base - L_CF}')
        return self.A.lmark()

    def ltest(self, mark, base, k, tmp, absv=False):
        A = self.A
        D = A.newlabel('lt')
        A(f's_mov_b32 s51, {k}' if absv else f's_add_u32 s51, {s(sEV)}, {k}')
        A.wait(lg=mark)
        A(f'v_min_u32 {v(tmp)}, {v(tmp)}, {v(tmp + 1)}')
        A(f'v_min3_u32 {v(tmp)}, {v(tmp)}, {v(tmp + 2)}, {v(tmp + 3)}')
        A(f'v_cmp_le_u32 vcc, s51, {v(tmp)}')
        A(f's_cbranch_vccnz {D}')
        lg, ld = A.lg, A.lg_done
        self.lwait(base, k, tmp, absv=absv)
        A.lg, A.lg_done = lg, ld
        A.label(D)

    def acheck(self, specs):
        marks = {}

        def pr(j):
            for n, (jj, base, k, tmp, absv, after) in enumerate(specs):
                if j == jj:
                    self.ltest(marks[n], base, k, tmp, absv)
                    if after:
                        after()
            for n, (jj, base, k, tmp, absv, after) in enumerate(specs):
                if j == jj - 1:
                    marks[n] = self.lpeek(base, tmp)
        return pr

    def flag(self, sbase, ioff, two=False, fast=sFAST, pre=None):
        self.pstamp()
        if pre:
            pre()
        self.A.wait_all(lg=False)
        self.stores([(v(VONE), sbase, ioff, VP2, 1, '0x101' if two else '1')], fast)
        self.pstamp()

    def gemm(self, KS, MT, NT, acc, xreg, ldsoff, buf, NB, xwait, hook=None, preread=None, fill=(), czero=False, fill0=1, npre=0):
        A = self.A
        vbase = {0: VL16, 1: VB64, 2: VB128}
        fill = list(fill)

        def read(j, t):
            if t == 0 and preread:
                preread(j)
            off = ldsoff(j) + t * KB
            A(f'ds_read_b128 {v(buf + ((j % NB) * NT + t) * 4, 4)}, {v(vbase[off >> 16])} offset:{off & 0xffff}')
            return A.lmark()
        marks = {}
        pre = NB
        while pre * NT > 14:
            pre -= 1
        if npre:
            pre = npre
            A.wait_all(vm=False)
        for j in range(pre):
            for t in range(NT):
                marks[(j, t)] = 0 if npre else read(j, t)
        fper = 1 if len(fill) < (KS - fill0) * (NT - 2) and not ('inj' in OPT and NT == 7) else 2
        nxt = [(j, t) for j in range(pre, KS) for t in range(NT)]
        for j in range(KS):
            if 'inj' in OPT and NT == 7 and j == 11:
                assert not fill
            if 'lstamp' in OPT and KS == 56 and j % 7 == 0:
                i_ = self.nstamp
                self.nstamp += 1
                A(f's_memtime {s(64 + 2 * (j // 7), 2)}')
                self.late = getattr(self, 'late', []) + [(64 + 2 * (j // 7), i_)]
                A.lg_done = max(0, A.lg_done)
            for t in range(NT):
                A.wait(vm=xwait(j) if t == 0 else None, lg=marks[(j, NT - 1 if (NB > 4 and (j, NT - 1) in marks) else min(NT - 1, t | 1) if 'w2' in OPT else t)])
                for mt in range(MT):
                    r = acc + (mt * NT + t) * 4
                    c = '0' if (czero and j == 0) else v(r, 4)
                    A(f'v_mfma_f32_16x16x32_bf16 {v(r, 4)}, {v(buf + ((j % NB) * NT + t) * 4, 4)}, {xreg(mt, j)}, {c}')
                    if mt == 0 and (MT == 2 or (t < NT - 1 if 'oldm1' in OPT else (t in (1, 3) or not nxt))):
                        n0 = len(A.lines)
                        if hook and MT == 2:
                            hook(j, t)
                        room = (2 if MT == 2 else 1) - (len(A.lines) - n0)
                        for _ in range(min(room, fper)):
                            if fill and j >= fill0:
                                A(fill.pop(0))
                if MT == 1 and 'oldm1' not in OPT:
                    for _ in range(2 if t in (0, 2) else 0):
                        if nxt and nxt[0][0] - NB < j:
                            j2, t2 = nxt.pop(0)
                            marks[(j2, t2)] = read(j2, t2)
                elif nxt:
                    j2, t2 = nxt[0]
                    if ((j2 - NB, t2) < (j, t) if 'lag' in OPT else (j2 - NB, t2) <= (j, t)):
                        marks[(j2, t2)] = read(j2, t2)
                        nxt.pop(0)
                if hook and MT == 1:
                    hook(j, t)
        assert not nxt and not fill, (len(fill))
        if 'lstamp' in OPT and KS == 56:
            A('s_waitcnt lgkmcnt(0)')
            for r_, i_ in self.late:
                A(f'v_writelane_b32 v12, {s(r_)}, {i_}')

    def wpre(self, n, NT, buf, ldsoff, j0=0):
        A = self.A
        vbase = {0: VL16, 1: VB64, 2: VB128}
        for j in range(j0, n):
            for t in range(NT):
                off = ldsoff(j) + t * KB
                A(f'ds_read_b128 {v(buf + (j * NT + t) * 4, 4)}, {v(vbase[off >> 16])} offset:{off & 0xffff}')

    def cs_read(self, NT, cs, loc):
        A = self.A
        A(f'v_and_b32 v3, 0x30, {v(VLANE)}')
        A(f'v_add_u32 v3, {loc}, v3')
        for t in range(NT):
            A(f'ds_read_b128 {v(cs + 4 * t, 4)}, v3 offset:{t * 64}')

    def gelu_consts2(self, K, rs, I, ST):
        A = self.A
        A(f'v_mul_f32 {v(K + 2)}, {v(rs)}, {v(rs)}')
        A(f'v_mul_f32 {v(K)}, {f32(G1.GC1)}, {v(rs)}')
        A(f'v_mul_f32 {v(K + 2)}, {v(K + 2)}, {v(rs)}')
        A(f'v_rcp_f32 {v(I)}, {v(rs)}')
        A(f'v_mul_f32 {v(K + 2)}, {f32(G1.GC2)}, {v(K + 2)}')
        A(f'v_mov_b32 {v(K + 1)}, {v(K)}')
        A(f'v_mov_b32 {v(K + 3)}, {v(K + 2)}')
        A(f'v_mov_b32 {v(I + 1)}, {v(I)}')
        A(f'v_mov_b32 {v(ST + 1)}, {v(ST)}')

    def gelu2(self, acc, n, K, I, tmp, out):
        A = self.A
        P = range(0, n, 2)
        for i in P:
            A(f'v_pk_mul_f32 {v(tmp + i, 2)}, {v(acc + i, 2)}, {v(acc + i, 2)}')
        for i in P:
            A(f'v_pk_fma_f32 {v(tmp + i, 2)}, {v(tmp + i, 2)}, {v(K + 2, 2)}, {v(K, 2)}')
        for i in P:
            A(f'v_pk_mul_f32 {v(tmp + i, 2)}, {v(tmp + i, 2)}, {v(acc + i, 2)}')
        for i in range(n):
            A(f'v_exp_f32 {v(tmp + i)}, {v(tmp + i)}')
        for i in P:
            A(f'v_pk_fma_f32 {v(tmp + i, 2)}, {v(tmp + i, 2)}, {v(I, 2)}, {v(I, 2)}')
        for i in range(n):
            A(f'v_rcp_f32 {v(tmp + i)}, {v(tmp + i)}')
        for i in P:
            A(f'v_pk_mul_f32 {v(tmp + i, 2)}, {v(tmp + i, 2)}, {v(acc + i, 2)}')
        if out is not None:
            self.pack(out, tmp, n // 2)

    def ln_fix(self, acc, n, cs, mean):
        for i in range(0, n, 2):
            self.A(f'v_pk_fma_f32 {v(acc + i, 2)}, {v(cs + i, 2)}, {v(mean, 2)}, {v(acc + i, 2)} neg_lo:[0,1,0] neg_hi:[0,1,0]')

    def ld_stats(self, dst, soff, ioff=0):
        self.ldx(v(dst, 2), soff, ioff, voff=VSTL, w=2)
        return self.ldx(v(dst + 2, 2), soff, ioff + 128, voff=VSTL, w=2)

    def stats_calc(self, acc, n, tmp):
        A = self.A
        S, Q = tmp, tmp + 2
        A(f'v_pk_add_f32 {v(S, 2)}, {v(acc, 2)}, {v(acc + 2, 2)}')
        A(f'v_pk_mul_f32 {v(Q, 2)}, {v(acc, 2)}, {v(acc, 2)}')
        for i in range(2, n, 2):
            if i >= 4:
                A(f'v_pk_add_f32 {v(S, 2)}, {v(S, 2)}, {v(acc + i, 2)}')
            A(f'v_pk_fma_f32 {v(Q, 2)}, {v(acc + i, 2)}, {v(acc + i, 2)}, {v(Q, 2)}')
        A(f'v_add_f32 {v(S)}, {v(S)}, {v(S + 1)}')
        A(f'v_add_f32 {v(S + 1)}, {v(Q)}, {v(Q + 1)}')
        Q = S + 1
        A(f'v_permlane32_swap_b32 {v(S)}, {v(Q)}')
        A(f'v_add_f32 {v(S)}, {v(S)}, {v(Q)}')
        A(f'v_mov_b32 {v(Q)}, {v(S)}')
        A(f'v_permlane16_swap_b32 {v(S)}, {v(Q)}')
        A(f'v_add_f32 {v(S)}, {v(S)}, {v(Q)}')
        A(f'v_mov_b32 {v(Q)}, {v(S)}')
        A(f'v_permlane32_swap_b32 {v(S)}, {v(Q)}')

    def store_tile(self, acc, tmp, DST, STD, nextpair=False, fast=sFAST):
        A = self.A
        self.pack(tmp, acc, 8)
        add = PSTRIDE if nextpair else 0
        A(f's_add_u32 s26, {s(sTILE)}, {DST + add}')
        A(f's_add_u32 s27, {s(sSTP)}, {STD + add}')
        self.stores([(v(tmp, 4), 26, 0, VL16, 4, None), (v(tmp + 4, 4), 26, KB, VL16, 4, None)], fast)
        self.stats_calc(acc, 16, tmp + 8)
        self.stores([(v(tmp + 8, 2), 27, 0, VSTL, 2, '0xffff')], fast)

    def big_pre(self, XIN, STIN):
        A = self.A
        A(f's_lshl_b32 s26, {s(sT0)}, 14')
        A(f's_add_u32 s26, s26, {s(sP)}')
        A(f's_add_u32 s26, s26, {XIN}')
        A(f's_add_u32 s27, s26, {16 * KB}')
        A(f's_lshl_b32 s28, {s(sT0)}, 10')
        A(f's_add_u32 s28, s28, {s(sP)}')
        A(f's_add_u32 s28, s28, {STIN}')
        A(f's_lshl_b32 s29, {s(sT0)}, {CSH}')
        A(f's_add_u32 s29, s29, {s(sC)}')

    def big_main(self, NT, acc, buf, XR, ST, fill, lmap, late_j, late_id, xsig, fsig):
        A = self.A
        D, RING = self.DB, 8
        sX, sX2 = 26, 27
        xm = {}

        def xload(j, mt):
            if 'noxl' in OPT and j >= D:
                xm[j] = A.vmark()
                return
            xm[j] = self.ldx(v(XR + ((j % RING) * 2 + mt) * 4, 4), sX2 if mt else sX, (j & 3) * KB)
            if (j & 3) == 3 and j < 15:
                r = sX2 if mt else sX
                A(f's_add_u32 {s(r)}, {s(r)}, {4 * KB}')
        for j in range(D):
            xload(j, 0)
            xload(j, 1)
            if j == 1:
                self.ld_stats(ST, 28)
                self.ld_stats(ST + 4, 28, KB)
        self.pstamp()

        def hook(j, t):
            if j == 0 and t == 0:
                self.sig(L_PS, 2)
            if j + D < 16:
                if t == 1:
                    xload(j + D, 0)
                if t == 4:
                    xload(j + D, 1)
                    if j + D == 15 and xsig is not None:
                        self.sig(L_CF, xsig)
            if 'inj' in OPT and 11 <= j <= 14:
                t2, mt, h = (t + 4) % NT, (j - 11) >> 1, (j - 11) & 1
                for r in (2 * h, 2 * h + 1):
                    d = acc + (mt * NT + t2) * 4 + r
                    A(f'v_fma_f32 {v(d)}, -{v(ST + 4 * mt)}, {v(224 + 4 * t2 + r)}, {v(d)}')

        specs = [(late_j, L_CR, late_id, 252, False, None)]
        preread = self.acheck(specs)
        self.gemm(16, 2, NT, acc, lambda mt, j: v(XR + ((j % RING) * 2 + mt) * 4, 4), lmap,
                  buf, 2, lambda j: xm[j], hook, preread, fill=fill, czero=True, fill0=2, npre=2)
        if fsig is not None:
            self.sig(L_CF, fsig)
        self.pstamp()

    def small_main(self, KS, acc, buf, XR, RING, D, src, lmap, fill=(), czero=False, extra=None, hook2=None, preread=None,
                   xsig=None, fsig=None, stagger=0, NB=4, post=None):
        A = self.A
        xm = {}

        def xload(j):
            so, io, vo = src(j)
            xm[j] = self.ldx(v(XR + (j % RING) * 4, 4), so, io, voff=vo)
            if (j & 3) == 3 and j < KS - 1:
                A(f's_add_u32 {s(so)}, {s(so)}, {4 * KB}')
                if KS == 56 and 'rot4' in OPT:
                    A(f's_cmp_eq_u32 {s(so)}, s28')
                    A(f's_cselect_b32 {s(so)}, s27, {s(so)}')
        if stagger and 'stag' in OPT:
            Ls = A.newlabel('stg')
            A(f's_cmp_eq_u32 {s(SW)}, 0')
            A(f's_cbranch_scc1 {Ls}')
            self.lwait(L_ST - 4, stagger, 44, single=True, own=True)
            A.label(Ls)
        for j in range(D):
            xload(j)
            if j == 1 and extra:
                extra()
            if j == self.SG and stagger and 'stag' in OPT:
                self.sig(L_ST, stagger)
        if post:
            assert D == KS
            post()
        if D == KS and xsig is not None:
            self.sig(L_CF, xsig)
        self.pstamp()

        def hook(j, t):
            if t == 1 and j + D < KS:
                xload(j + D)
                if j + D == KS - 1 and xsig is not None:
                    self.sig(L_CF, xsig)
            if hook2:
                hook2(j, t)
        self.gemm(KS, 1, 4, acc, lambda mt, j: v(XR + 4 * (j % RING), 4), lmap, buf, NB,
                  lambda j: xm[j], hook, preread, fill=fill, czero=czero, fill0=2, npre=NB)
        if fsig is not None:
            self.sig(L_CF, fsig)
        self.pstamp()

    def stage_qkv(self):
        A = self.A
        ST, CC, acc, buf = 32, 40, 64, 96
        SCR, RSZ = 96 * KB, 336

        def f():
            for mt in range(2):
                self.stats_consume(ST + 4 * mt, 3)
                self.rstd(ST + 4 * mt + 2, ST + 4 * mt + 1)
                self.A(f'v_mov_b32 {v(ST + 4 * mt + 1)}, {v(ST + 4 * mt)}')
                self.A(f'v_mul_f32 {v(CC + 2 * mt)}, {f32(LOG2E)}, {v(ST + 4 * mt + 2)}')
                self.A(f'v_mov_b32 {v(ST + 4 * mt + 3)}, {v(ST + 4 * mt + 2)}')
            self.A(f'v_permlane32_swap_b32 {v(CC)}, {v(CC + 2)}')
            self.A(f'v_mov_b32 {v(CC + 1)}, {v(CC)}')
        Lepi = A.newlabel('qepi')
        self.qkv_first(f, acc, buf, ST, SCR, RSZ)
        A(f's_branch {Lepi}')
        A.label(self.Lp)
        A.label('.Lst_q')
        self.nstamp = 0
        if self.prof:
            A('s_memrealtime s[60:61]')
            A('s_waitcnt lgkmcnt(0)')
            A('v_writelane_b32 v12, s60, 63')
        self.pstamp()
        self.big_pre(X0, ST0)
        self.qkv_addr(SCR, RSZ)
        self.lwait(L_CR, 1, 60)
        A(f's_add_u32 s29, s29, {C_X}')
        self.poll(29, VP2, 16, during=lambda: self.wpre(2, 4, buf, map_kv))
        self.pstamp()
        D = self.DQ
        xm = {}

        def xload(j, mt):
            xm[j] = self.ldx(v(xq(mt, j), 4), 26 + mt, (j & 3) * KB)
            if (j & 3) == 3 and j < 15:
                A(f's_add_u32 {s(26 + mt)}, {s(26 + mt)}, {4 * KB}')
        for j in range(D):
            xload(j, 0)
            xload(j, 1)
            if j == 1:
                self.ld_stats(ST, 28)
                self.ld_stats(ST + 4, 28, KB)
        self.pstamp()

        def hook(j, t):
            if j + D < 16 and t in (0, 2):
                xload(j + D, t >> 1)
            self.kv_cs(j, t, buf)
        self.gemm(16, 2, 4, acc, lambda mt, j: v(xq(mt, j), 4), map_kv, buf, 2, lambda j: xm[j], hook, None,
                  fill=self.rec(f), czero=True, fill0=2, npre=2)
        self.sig(L_CF, 3)
        self.pstamp()
        A.label(Lepi)
        A('s_waitcnt lgkmcnt(1)')
        A.lg_done = max(A.lg_done, A.lg - 1)
        A('s_nop 3')
        self.qkv_epi(ST, CC, acc, buf, SCR, RSZ)

    def kv_cs(self, j, t, buf):
        if j == 15:
            self.A(f'ds_read_b128 {v(buf + 4 * t, 4)}, v13 offset:{t * 64}')

    def qkv_first(self, f, acc, buf, ST, SCR, RSZ):
        A = self.A
        PB = [128, 160, 192, 224]
        self.nstamp = 0
        if self.prof:
            A('s_memrealtime s[60:61]')
            A('s_waitcnt lgkmcnt(0)')
            A('v_writelane_b32 v12, s60, 63')
        self.pstamp()
        WA, RA = 64, 68
        A(f's_mul_i32 s34, {s(SW)}, {32 * RSZ}')
        A(f's_add_u32 s34, s34, {SCR}')
        A(f'v_lshrrev_b32 v3, 4, {v(VLANE)}')
        A(f'v_and_b32 v76, 15, {v(VLANE)}')
        A(f'v_xor_b32 v77, v76, v3')
        A(f'v_lshlrev_b32 v77, 4, v77')
        A(f'v_lshl_add_u32 v77, v3, 8, v77')
        A(f'v_add_u32 v77, s34, v77')
        for n in range(4):
            A(f'v_xor_b32 {v(WA + n)}, {n * 64}, v77')
        A(f'v_lshrrev_b32 v77, 1, v3')
        A(f'v_xor_b32 v77, v77, v76')
        A(f'v_lshlrev_b32 v77, 4, v77')
        A(f'v_lshl_add_u32 v77, v76, 8, v77')
        A(f'v_and_b32 v3, 1, v3')
        A(f'v_lshl_add_u32 v77, v3, 3, v77')
        A(f'v_add_u32 v77, s34, v77')
        for m in range(8):
            A(f'v_xor_b32 {v(RA + m)}, {m * 32}, v77')
        for i in range(4):
            A(f'v_mov_b32 {v(104 + i)}, 0x3f803f80')

        def stats(p):
            b = PB[p >> 1] + 16 * (p & 1)
            S = 108 + 8 * (p & 1)
            for i in range(4):
                z = p < 2 and i == 0
                A(f'v_mfma_f32_16x16x32_bf16 {v(S, 4)}, v[104:107], {v(b + 4 * i, 4)}, {"0" if z else v(S, 4)}')
                A(f'v_mfma_f32_16x16x32_bf16 {v(S + 4, 4)}, {v(b + 4 * i, 4)}, {v(b + 4 * i, 4)}, {"0" if z else v(S + 4, 4)}')

        if 'plate' not in OPT:
            L2 = A.newlabel('np1')
            A(f's_cmp_lg_u32 {s(SW)}, 2')
            A(f's_cbranch_scc1 {L2}')
            vm0 = A.vm
            A(f's_mov_b32 s100, {100 * KB + 2 * 32 * 336}')
            A(f's_mov_b32 s101, s2')
            self.piece_decode(101)
            A.vm = vm0
            A.label(L2)
        for p in range(8):
            b = PB[p >> 1] + 16 * (p & 1)
            A.wait(vm=self.x0m[p], lg=A.lmark())
            for n in range(4):
                A(f'ds_write_b128 {v(WA + n)}, {v(b + 4 * n, 4)} offset:{n * 1024}')
            for m in range(8):
                A(f'ds_read_b64 {v(b + 2 * m, 2)}, {v(RA + m)}')
            if p:
                stats(p - 1)
            if (p & 1) and (p >> 1) + self.XPRE < 4:
                self.x0load((p >> 1) + self.XPRE)
        A.wait_all(vm=False)
        stats(7)
        A(f'v_and_b32 v3, 3, {v(VLANE)}')
        for i in range(1, 4):
            A(f'v_cmp_eq_u32 {s(26 + 2 * i, 2)}, {i}, v3')
        A(f'v_bfe_u32 v3, {v(VLANE)}, 2, 2')
        A(f'v_lshrrev_b32 v20, 4, {v(VLANE)}')
        A(f'v_cmp_eq_u32 vcc, v3, v20')
        for mt in range(2):
            Q = 112 + 8 * mt
            for i in range(1, 4):
                A(f'v_cndmask_b32 {v(Q)}, {v(Q)}, {v(Q + i)}, {s(26 + 2 * i, 2)}')
            A(f'v_cndmask_b32 {v(ST + 4 * mt)}, 0, {v(Q - 4)}, vcc')
            A(f'v_cndmask_b32 {v(ST + 4 * mt + 1)}, 0, {v(Q)}, vcc')
            A(f'v_mov_b32 {v(ST + 4 * mt + 2)}, 0')
            A(f'v_mov_b32 {v(ST + 4 * mt + 3)}, 0')
        f()
        self.pstamp()
        L2 = A.newlabel('np2')
        A(f's_cmp_lg_u32 {s(SW)}, 2')
        A(f's_cbranch_scc1 {L2}')
        vmd = A.vm_done
        if 'plate' in OPT:
            A(f's_mov_b32 s100, {96 * KB + 2 * 32 * 336}')
            A(f's_mov_b32 s101, s2')
            self.piece_decode(101)
        A('s_waitcnt vmcnt(0)')
        self.piece_finish()
        A.vm_done = vmd
        A.label(L2)
        Ln = A.newlabel('nochk')
        A(f's_cmp_lg_u32 {s(SW)}, 0')
        A(f's_cbranch_scc1 {Ln}')
        A('s_mov_b32 s31, 0')
        vmd = A.vm_done
        self.poll(31, VL4, 1, target=32, mode='load', srd=SRDD)
        A.vm_done = vmd
        A(f'ds_write_b32 {v(VPERM)}, {v(VONE)} offset:{L_INIT - L_CF}')
        A('s_getreg_b32 s30, hwreg(HW_REG_XCC_ID)')
        A('s_and_b32 s30, s30, 15')
        A('s_mul_i32 s31, s30, s30')
        A('s_lshl_b32 s31, s31, 16')
        A('s_lshl_b32 s30, s30, 7')
        A('s_add_u32 s30, s30, s31')
        A('s_add_u32 s58, s30, 1')
        A('s_and_b32 s59, s2, 7')
        A('s_lshl_b32 s59, s59, 7')
        A(f's_add_u32 s59, s59, {XW}')
        A('v_mov_b32 v3, s58')
        A('s_mov_b64 exec, 1')
        A(f'buffer_atomic_add v3, {v(VL4)}, {s(SRD, 4)}, s59 offen')
        A('s_mov_b64 exec, -1')
        A.label(Ln)
        A(f's_mov_b64 {s(SRD2, 2)}, {s(PA, 2)}')
        A(f's_mov_b32 {s(SRD2 + 2)}, {2048 * 512 * 2}')
        A(f'v_and_b32 v3, 15, {v(VLANE)}')
        A(f'v_lshlrev_b32 v62, 10, v3')
        A(f'v_lshrrev_b32 v3, 4, {v(VLANE)}')
        A(f'v_lshl_add_u32 v62, v3, 3, v62')
        A(f's_lshl_b32 s28, {s(sT)}, 14')
        A(f's_lshl_b32 s29, {s(sCG8)}, 7')
        A(f's_add_u32 s28, s28, s29')
        self.qkv_addr(SCR, RSZ)

        def cnt2():
            L2 = A.newlabel('nc2')
            A(f's_cmp_lg_u32 {s(SW)}, 2')
            A(f's_cbranch_scc1 {L2}')
            lg, ld = A.lg, A.lg_done
            self.lwait(L_INIT, 1, 20, single=True)
            A.lg, A.lg_done = lg, ld
            A('s_waitcnt vmcnt(0)')
            self.count(99)
            A.vm -= 1
            A.label(L2)
        self.lwait(L_CR, 1, 20, sleep=1)
        if 'ed1' in OPT:
            cnt2()
        if 'eq' in OPT:
            A('s_setprio 2')
        self.mark(1)
        self.pstamp()
        for t in range(4):
            A(f'buffer_load_dwordx2 {v(RES + 8 + 2 * t, 2)}, v62, {s(SRD2, 4)}, s28 offen offset:{32 * t}')
        if 'wt' in OPT or 'wtg' in OPT:
            A(f's_lshl_b32 s30, {s(sT0)}, 14')
            A(f's_lshl_b32 s31, {s(sCG16)}, 10')
            A(f's_add_u32 s30, s30, s31')
            A(f's_add_u32 s30, s30, {OB}')
            A(f's_add_u32 s31, {s(sTILE)}, {XA}')
            A(f's_add_u32 s32, {s(sSTP)}, {STA}')
            A(f'v_and_b32 v47, 7, {v(VLANE)}')
            A(f'v_lshlrev_b32 v47, 7, v47')
            A(f'v_bfe_u32 v48, {v(VLANE)}, 3, 1')
            A(f'v_lshl_add_u32 v49, v48, 14, v47')
            A(f'v_add_u32 v49, s30, v49')
            A(f'v_lshl_add_u32 v47, v48, 10, v47')
            A(f'v_add_u32 v47, s31, v47')
            A(f'v_cmp_gt_u32 vcc, 16, {v(VLANE)}')
            A(f'v_cndmask_b32 v47, v49, v47, vcc')
            A(f'v_writelane_b32 v47, s32, 32')
            A('s_mov_b32 exec_hi, 1')
            A(f'buffer_load_dword v0, v47, {s(SRD, 4)}, 0 offen')
            A('s_mov_b32 exec_hi, -1')
        if 'wtg' in OPT:
            A(f's_mul_i32 s30, {s(sT0)}, {56 * KB}')
            A(f's_add_u32 s30, s30, {G}')
            A(f's_mul_i32 s31, {s(sCG16)}, {3 * KB}')
            A(f's_lshl_b32 s32, {s(sCG16)}, 9')
            A(f's_add_u32 s32, s32, {48 * KB - 24 * 128}')
            A(f'v_and_b32 v47, 31, {v(VLANE)}')
            A(f'v_cmp_gt_u32 vcc, 24, v47')
            A(f'v_mov_b32 v48, s32')
            A(f'v_mov_b32 v49, s31')
            A(f'v_cndmask_b32 v48, v48, v49, vcc')
            A(f'v_lshl_add_u32 v47, v47, 7, v48')
            A(f'v_lshrrev_b32 v48, 5, {v(VLANE)}')
            A(f'v_mul_u32_u24 v48, {56 * KB}, v48')
            A(f'v_add_u32 v47, v47, v48')
            A('s_mov_b32 exec_lo, 0x0fffffff')
            A('s_mov_b32 exec_hi, 0x0fffffff')
            A(f'buffer_load_dword v0, v47, {s(SRD, 4)}, s30 offen')
            A('s_mov_b64 exec, -1')
        A.vm_done = A.vm
        self.gemm(16, 2, 4, acc, lambda mt, j: v(xq(mt, j), 4), map_kv, buf, 2, lambda j: None,
                  lambda j, t: self.kv_cs(j, t, buf), self.acheck([(15, L_CS, 1, 20, True, None)]), czero=True)
        if 'ed1' not in OPT:
            cnt2()
        self.sig(L_CF, 3)
        self.pstamp()

    def qkv_addr(self, SCR, RSZ):
        A = self.A
        A(f'v_and_b32 v13, 0x30, {v(VLANE)}')
        A(f'v_add_u32 v13, {L_CSQ}, v13')
        A(f'v_lshrrev_b32 v60, 4, {v(VLANE)}')
        A(f'v_and_b32 v61, 15, {v(VLANE)}')
        A(f's_mul_i32 s30, {s(SW)}, {32 * RSZ}')
        A(f's_add_u32 s30, s30, {SCR}')
        A(f'v_mul_u32_u24 v45, {RSZ}, v61')
        A(f'v_add_u32 v45, s30, v45')
        A(f'v_lshl_add_u32 v46, v60, 3, v45')
        A(f'v_lshl_add_u32 v44, v60, 4, v45')
        A(f'v_and_b32 v3, 1, v60')
        A(f'v_lshl_add_u32 v45, v3, 6, v45')
        A(f'v_lshrrev_b32 v3, 1, v60')
        A(f'v_mul_u32_u24 v3, {16 * RSZ}, v3')
        A(f'v_add_u32 v45, v45, v3')
        A(f's_lshl_b32 s42, {s(sCG16)}, 12')
        A(f's_add_u32 s42, s42, {s(sZ)}')
        A(f's_add_u32 s42, s42, {KV}')
        A(f's_lshl_b32 s43, {s(sCG16)}, 8')
        A(f's_add_u32 s43, s43, {s(sZ)}')
        A(f's_add_u32 s43, s43, {Z}')
        A(f'v_lshlrev_b32 v50, 5, v60')
        for i in range(4):
            A(f'v_mov_b32 {v(56 + i)}, {f32(1e-6)}')

    def qkv_epi(self, ST, CC, acc, buf, SCR, RSZ):
        A = self.A
        EP, EM = 96, 112

        def softmax(P0, P1, M, off):
            cc = CC
            R = lambda i: (P0 + i) if i < 8 else (P1 + i - 8)
            for op, d in (('max', M), ('min', M + 2)):
                A(f'v_{op}3_f32 {v(d)}, {v(R(0))}, {v(R(1))}, {v(R(2))}')
                for i in range(3, 15, 2):
                    A(f'v_{op}3_f32 {v(d)}, {v(d)}, {v(R(i))}, {v(R(i + 1))}')
                A(f'v_{op}_f32 {v(d)}, {v(d)}, {v(R(15))}')
            for d in (M, M + 2):
                A(f'v_mul_f32 {v(d + 1)}, {v(d)}, {v(cc)}')
                A(f'v_mul_f32 {v(d)}, {v(d)}, {v(cc)}')
            for i in range(0, 16, 2):
                A(f'v_pk_fma_f32 {v(EP + i, 2)}, {v(R(i), 2)}, {v(cc, 2)}, {v(M, 2)} neg_lo:[0,0,1] neg_hi:[0,0,1]')
                A(f'v_pk_fma_f32 {v(EM + i, 2)}, {v(R(i), 2)}, {v(cc, 2)}, {v(M + 2, 2)} neg_lo:[0,1,0] neg_hi:[0,1,0]')
            for i in range(32):
                A(f'v_exp_f32 {v(EP + i)}, {v(EP + i)}')
            for E, d in ((EP, M + 4), (EM, M + 6)):
                A(f'v_pk_add_f32 {v(d, 2)}, {v(E, 2)}, {v(E + 2, 2)}')
                for i in range(4, 16, 2):
                    A(f'v_pk_add_f32 {v(d, 2)}, {v(d, 2)}, {v(E + i, 2)}')
            A(f'v_add_f32 {v(M + 4)}, {v(M + 4)}, {v(M + 5)}')
            A(f'v_add_f32 {v(M + 6)}, {v(M + 6)}, {v(M + 7)}')
            A(f'v_rcp_f32 {v(M + 4)}, {v(M + 4)}')
            A(f'v_rcp_f32 {v(M + 6)}, {v(M + 6)}')
            A(f'v_mov_b32 {v(M + 5)}, {v(M + 4)}')
            A(f'v_mov_b32 {v(M + 7)}, {v(M + 6)}')
            for t in range(4):
                for i in (4 * t, 4 * t + 2):
                    A(f'v_pk_mul_f32 {v(EP + i, 2)}, {v(EP + i, 2)}, {v(M + 4, 2)}')
                    A(f'v_pk_mul_f32 {v(EM + i, 2)}, {v(EM + i, 2)}, {v(M + 6, 2)}')
                self.pack(R(4 * t), EP + 4 * t, 2)
                self.pack(R(4 * t) + 2, EM + 4 * t, 2)
                if 'xb' in OPT:
                    A('s_nop 7')
                A(f'ds_write_b128 v45, {v(R(4 * t), 4)} offset:{off + 16 * t}')
                if 'xc' in OPT:
                    A('s_nop 7')
        for mt in range(2):
            self.ln_fix(acc + 16 * mt, 16, buf, ST + 4 * mt)
        for i in range(8):
            A(f'v_permlane32_swap_b32 {v(acc + i)}, {v(acc + 16 + i)}')
        for mt in range(2):
            for hh in range(2):
                r = acc + 16 * mt + 8 + 4 * hh
                for i in (0, 2):
                    A(f'v_pk_mul_f32 {v(r + i, 2)}, {v(r + i, 2)}, {v(ST + 4 * mt + 2, 2)}')
                d = acc + 24 + 4 * mt + 2 * hh if mt == 0 else r
                d = r
                self.pack(d, r, 2)
                A(f'ds_write_b64 v46, {v(d, 2)} offset:{mt * 16 * RSZ + 256 + 32 * hh}')
        softmax(acc, acc + 16, acc + 8, 128)
        self.pstamp()
        self.sig(L_CB, 1)
        if 'cd1' in OPT:
            Ld = A.newlabel('cd1')
            A(f's_cmp_lg_u32 {s(sPAIR)}, 0')
            A(f's_cbranch_scc1 {Ld}')
            self.lwait(L_INIT, 1, 60, single=True)
            A(f's_lshl_b32 s30, {s(sCG8)}, 7')
            A(f's_add_u32 s30, s30, {PC}')
            A(f'v_lshlrev_b32 v47, 10, {v(VLANE)}')
            self.poll(30, 47, 2, target=16, mode='load')
            A.label(Ld)
            self.lwait(L_CF, 3, 60)
            A(f's_lshl_b32 s30, {s(sCG8)}, 16')
            A(f's_lshl_b32 s31, {s(SW)}, 12')
            A(f's_add_u32 s30, s30, s31')
            assert map_wo(4) == 0 and map_w1(0) == 48 * KB
            for c in range(4):
                A(f's_add_u32 m0, s31, {c * 16 * KB}')
                A(f's_add_u32 s32, s30, {WO + (c + 1) * 16 * KB if c < 3 else W1}')
                for t in range(4):
                    self.dma(32, t * KB)
        self.lwait(L_CR, 2, 60)
        self.lwait(L_CS, 2, 60, absv=True)
        for t in range(2):
            A(f'ds_read_b128 {v(88 + 4 * t, 4)}, v13 offset:{(4 + t) * 64}')
        self.gemm(16, 2, 2, 72, lambda mt, j: v(xq(mt, j), 4), map_q, buf, 4, lambda j: None, czero=True)
        self.pstamp()
        if 'xd' in OPT:
            A('s_nop 15')
            A('s_nop 15')
        for mt in range(2):
            self.ln_fix(72 + 8 * mt, 8, 88, ST + 4 * mt)
        for i in range(8):
            A(f'v_permlane32_swap_b32 {v(72 + i)}, {v(80 + i)}')
        softmax(72, 80, 64, 0)
        if 'dump' in OPT:
            for i in range(6):
                A(f'v_mov_b32 {v(176 + i)}, {v(64 + i)}')
            A('v_mov_b32 v182, v88')
            A('v_mov_b32 v183, v95')
        PQ = 160
        if 'xa' in OPT:
            A.wait_all(vm=False)
        for mt in range(2):
            for hh in range(2):
                A(f'ds_read_b128 {v(PQ + 8 * mt + 4 * hh, 4)}, v44 offset:{mt * 16 * RSZ + 64 * hh}')
        A(f's_lshl_b32 s30, {s(sCG16)}, {CSH + 2}')
        A(f's_add_u32 s30, s30, {s(sC)}')
        A(f's_add_u32 s30, s30, {C_KV}')
        A(f'v_lshlrev_b32 v47, {CSH}, {v(VLANE)}')
        A(f's_lshl_b32 s26, {s(sT0)}, 14')
        A(f's_lshl_b32 s27, {s(sCG16)}, 10')
        A(f's_add_u32 s26, s26, s27')
        A(f's_add_u32 s26, s26, {s(sP)}')
        A(f's_add_u32 s26, s26, {OB}')
        A(f's_add_u32 s27, s26, {16 * KB}')
        if 'd2early' in OPT:
            self.sig(L_CF, 4)
        if 'cd1' in OPT:
            A.wait_all(lg=False)
            self.sig(L_D1, 1)
        self.pstamp()
        Lw, Lg, Lx = A.newlabel('kvw'), A.newlabel('kvg'), A.newlabel('kvx')
        A(f's_cmp_lg_u32 {s(SW)}, 0')
        A(f's_cbranch_scc1 {Lw}')
        self.lwait(L_KD, 1, 252)
        self.poll(30, 47, 4, target=16, mode='atomic')
        A.label(Lg)
        self.sig(L_GO, 1)
        A(f's_branch {Lx}')
        A.label(Lw)
        if 'gp' in OPT:
            A('s_setprio 0')
        self.lwait(L_GO, 1, 252, sleep=0, single=True)
        if 'gp' in OPT:
            A('s_setprio 2')
        A.label(Lx)
        self.pstamp()
        Lm = A.newlabel('mode')
        A(f's_cmp_eq_u32 {s(sPAIR)}, 0')
        A(f's_cbranch_scc0 {Lm}')
        A('s_waitcnt vmcnt(0)')
        self.unpack(RES, RES + 8, 8)
        self.lwait(L_MODE, 1, 252, single=True)
        A(f'v_readfirstlane_b32 {s(sFAST)}, v252')
        A(f's_sub_u32 {s(sFAST)}, {s(sFAST)}, 1')
        A.label(Lm)
        KF, ZF = 64, 80
        for i in range(16):
            self.ldx(v(KF + i), 42, 256 * i, voff=VL4, w=1, sc=' sc1')
        for hh in range(2):
            for u in range(2):
                self.ldx(v(ZF + 8 * hh + 4 * u, 4), 43, 128 * hh + 16 * u, voff=50, sc=' sc1')
        A.wait(vm=A.vmark() - 4)
        self.pack(96, KF, 8)
        A('s_waitcnt vmcnt(0) lgkmcnt(0)')
        A.vm_done, A.lg_done = A.vm, A.lg
        self.pack(104, ZF, 8)
        ND = 112
        for mt in range(2):
            for hh in range(2):
                d = ND + 16 * mt + 8 * hh
                A(f'v_mfma_f32_16x16x32_bf16 {v(d + 4, 4)}, {v(104 + 4 * hh, 4)}, {v(PQ + 8 * mt + 4 * hh, 4)}, v[56:59]')
                A(f'v_mfma_f32_16x16x32_bf16 {v(d, 4)}, {v(96 + 4 * hh, 4)}, {v(PQ + 8 * mt + 4 * hh, 4)}, 0')
        for q in range(4):
            A(f'v_rcp_f32 {v(ND + 8 * q + 4)}, {v(ND + 8 * q + 4)}')
        for q in range(4):
            A(f'v_mov_b32 {v(ND + 8 * q + 5)}, {v(ND + 8 * q + 4)}')
        for q in range(4):
            d = ND + 8 * q
            for i in (0, 2):
                A(f'v_pk_mul_f32 {v(d + i, 2)}, {v(d + i, 2)}, {v(d + 4, 2)}')
            self.pack(64 + 2 * q, d, 2)
        self.stores([(v(64, 4), 26, 0, VL16, 4, None), (v(68, 4), 27, 0, VL16, 4, None)], sFAST if ('wt' in OPT or 'wtg' in OPT) else sFG)
        if 'dump' in OPT:
            Ld = A.newlabel('dmp')
            A(f's_cmp_lg_u32 {s(sPAIR)}, 0')
            A(f's_cbranch_scc1 {Ld}')
            A(f's_lshl_b32 s30, s2, 2')
            A(f's_add_u32 s30, s30, {s(SW)}')
            A(f's_lshl_b32 s30, s30, 14')
            A(f's_add_u32 s30, s30, {DBG2}')
            for r in (160, 164, 168, 172, 96, 100, 104, 108, 64, 68, 32, 36, 40, 176, 180):
                A(f'buffer_store_dwordx4 {v(r, 4)}, {v(VL16)}, {s(SRD, 4)}, s30 offen')
                A('s_add_u32 s30, s30, 1024')
            A.label(Ld)
        self.flag(sF16, C_O - CB, two=True)

    def small_pre(self, XIN, mul=16):
        A = self.A
        A(f's_mul_i32 s26, {s(sT)}, {mul * KB}')
        A(f's_add_u32 s26, s26, {s(sP)}')
        A(f's_add_u32 s26, s26, {XIN}')
        A(f's_lshl_b32 s29, {s(sT)}, {CSH}')
        A(f's_add_u32 s29, s29, {s(sC)}')
        A(f's_add_u32 s29, s29, {CB}')

    def stage_wo(self):
        A = self.A
        XR, buf = 64, 128
        self.small_pre(OB)
        self.lwait(L_CR, 3, 44)
        if 'cd1' in OPT:
            self.lwait(L_D1, 1, 44)
        self.wpre(self.SP - 1, 4, buf, map_wo)
        self.poll(29, VL4, 16, ioff=C_O - CB, during=lambda: self.wpre(8, 4, buf, map_wo, self.SP - 1))
        self.mark(2)
        self.pstamp()
        self.small_main(16, RES, buf, XR, 16, self.DS, lambda j: (26, (j & 3) * KB, VL16), map_wo, stagger=1, NB=8)
        self.store_tile(RES, XR, XA, STA, fast=sFAST if ('wt' in OPT or 'wtg' in OPT) else sFG)
        self.flag(sF8, C_XA - CB, pre=lambda: (self.lwait(L_CR, 4, 44), self.wpre(3, 4, buf, map_w1)))

    def stage_w1(self):
        A = self.A
        ST, K, acc, XR, buf, CS = 32, 40, 48, 64, 128, 240
        self.small_pre(XA)
        A(f's_lshl_b32 s27, {s(sT)}, 10')
        A(f's_add_u32 s27, s27, {STA}')
        self.lwait(L_CS, 4, 44, absv=True)
        self.cs_read(4, CS, L_CS1)
        self.wpre(self.SP - 1, 4, buf, map_w1, 3)
        self.poll(29, VL4, 8, ioff=C_XA - CB, during=lambda: self.wpre(7, 4, buf, map_w1, self.SP - 1))
        self.pstamp()

        def f():
            A = self.A
            self.stats_consume(ST, 3)
            self.rstd(VMR + 1, ST + 1)
            A(f'v_mul_f32 {v(VMR)}, {v(ST)}, {v(VMR + 1)}')
            A(f'v_mul_f32 v38, {v(VMR + 1)}, {v(VMR + 1)}')
            A(f'v_mul_f32 v38, v38, {v(ST + 1)}')
            self.rstd(38, 38)
            A(f'v_mul_f32 v38, v38, {v(VMR + 1)}')
            self.gelu_consts2(K, 38, ST + 2, ST)
        self.small_main(16, acc, buf, XR, 16, self.DS, lambda j: (26, (j & 3) * KB, VL16), map_w1, fill=self.rec(f), czero=True,
                        extra=lambda: self.ld_stats(ST, 27), xsig=5, NB=7)
        self.sig(L_PS, 1)
        self.ln_fix(acc, 16, CS, ST)
        self.gelu2(acc, 16, K, ST + 2, XR, XR + 16)
        A(f's_add_u32 s26, {s(sTILE)}, {H}')
        Lh, Lh2 = A.newlabel('hh'), A.newlabel('hh2')
        A(f's_cmp_eq_u32 {s(sFH)}, 0')
        A(f's_cbranch_scc1 {Lh}')
        A(f's_add_u32 s27, s26, {s(sHH)}')
        A(f'buffer_store_dwordx4 {v(XR + 16, 4)}, {v(VL16)}, {s(SRD, 4)}, s27 offen sc1')
        A(f'buffer_store_dwordx4 {v(XR + 20, 4)}, {v(VL16)}, {s(SRD, 4)}, s27 offen offset:1024 sc1')
        A.label(Lh)
        self.stores([(v(XR + 16, 4), 26, 0, VL16, 4, None), (v(XR + 20, 4), 26, KB, VL16, 4, None)])
        self.pstamp()
        self.wpre(3, 4, buf, map_w2)
        self.w2_setup()
        A.wait_all(lg=False)
        A(f's_cmp_eq_u32 {s(sFH)}, 0')
        A(f's_cbranch_scc1 {Lh2}')
        A('s_mov_b64 exec, 1')
        A(f'buffer_store_dword {v(VONE)}, {v(VL4)}, {s(SRD, 4)}, {s(sF8)} offen offset:{C_HH - CB} sc1')
        A('s_mov_b64 exec, -1')
        A.label(Lh2)
        self.stores([(v(VONE), sF8, C_H - CB, VP2, 1, '1')])
        self.pstamp()

    def w2_setup(self):
        A = self.A
        acc = 48
        A(f's_lshl_b32 s26, {s(sT)}, 4')
        A(f'v_and_b32 v13, 15, {v(VLANE)}')
        A(f'v_add_u32 v13, s26, v13')
        A(f'v_and_b32 v38, 0x300, {v(VL16)}')
        A(f'v_mov_b32 v39, {OOB}')
        A(f's_movk_i32 s27, 2048')
        A(f's_lshr_b32 s28, {s(sT)}, 4')
        for gi, d in enumerate((-1, 1, -2, 2)):
            A(f'v_add_u32 v36, {d}, v13')
            A(f'v_lshrrev_b32 v37, 8, v36')
            A(f'v_cmp_ne_u32 s[30:31], s28, v37')
            A(f'v_cmp_gt_u32 vcc, s27, v36')
            A(f'v_lshrrev_b32 v3, 4, v36')
            A(f'v_lshl_add_u32 v3, v3, 14, v38')
            A(f'v_and_b32 v36, 15, v36')
            A(f'v_lshl_add_u32 v3, v36, 4, v3')
            if 'hp' not in OPT:
                A(f'v_add_u32 v37, {s(sHH)}, v3')
                A(f'v_cndmask_b32 v3, v3, v37, s[30:31]')
                A(f'v_cndmask_b32 {v(FREE + gi)}, v39, v3, vcc')
            else:
                A(f'v_add_u32 {v(240 + gi)}, {s(sHH)}, v3')
                A(f'v_cndmask_b32 {v(FREE + gi)}, v3, v39, s[30:31]')
                A(f's_and_b64 {s(32 + 2 * gi, 2)}, s[30:31], vcc')
        A(f's_mov_b32 s26, {H}')
        A(f's_and_b32 s30, {s(sT)}, 0x70')
        A(f's_or_b32 s31, {s(sT)}, 15')
        A(f'v_and_b32 v13, 2, {v(VLANE)}')
        A(f'v_add_u32 v13, -1, v13')
        A(f'v_bfe_u32 v38, {v(VLANE)}, 3, 1')
        A(f'v_mul_i32_i24 v13, v13, v38')
        A(f'v_add_u32 v13, {s(sT)}, v13')
        A(f'v_max_i32 v13, s30, v13')
        A(f'v_min_i32 v13, s31, v13')
        A(f'v_and_b32 v38, 0x1c, {v(VL4)}')
        A(f'v_lshl_add_u32 v13, v13, {CSH}, v38')
        A(f's_add_u32 s29, {s(sC)}, {C_H}')
        A(f'v_and_b32 v36, 1, {v(VLANE)}')
        A(f'v_bfe_u32 v37, {v(VLANE)}, 1, 1')
        A(f'v_lshlrev_b32 v36, 2, v36')
        A(f'v_lshl_add_u32 v36, v37, 4, v36')
        for i in range(4):
            A(f'v_mov_b32 {v(40 + i)}, {v(VMR + (i >> 1))}')
        for i in range(0, 16, 2):
            A(f'v_pk_fma_f32 {v(acc + i, 2)}, {v(RES + i, 2)}, v[42:43], v[40:41] neg_lo:[0,0,1] neg_hi:[0,0,1]')

    def stage_w2(self):
        A = self.A
        acc, XR, buf = 48, 64, 128
        self.wpre(self.SP - 1, 4, buf, map_w2, 3)
        if 'comb' not in OPT:
            self.poll(29, 13, 16, during=lambda: self.wpre(7, 4, buf, map_w2, self.SP - 1))
        else:
            def dur():
                self.wpre(7, 4, buf, map_w2, self.SP - 1)
                Le = A.newlabel('re')
                A(f's_cmp_eq_u32 {s(sRH)}, 0')
                A(f's_cbranch_scc1 {Le}')
                A(f's_add_u32 s28, {s(sRH)}, {s(sC)}')
                self.poll(28, 36, 4, mode='atomic')
                A.label(Le)
            self.poll(29, 13, 16, during=dur)
        pk5 = self.lpeek(L_CR, 44)

        def remote():
            Lr = A.newlabel('rh')
            A(f's_cmp_eq_u32 {s(sRH)}, 0')
            A(f's_cbranch_scc1 {Lr}')
            vm, vd = A.vm, A.vm_done
            A(f's_add_u32 s29, {s(sRH)}, {s(sC)}')
            self.poll(29, 36, 4, mode='atomic')
            if 'hp' in OPT:
                for gi in range(4):
                    Lg = A.newlabel('rg')
                    A(f's_cmp_eq_u64 {s(32 + 2 * gi, 2)}, 0')
                    A(f's_cbranch_scc1 {Lg}')
                    A(f's_mov_b64 exec, {s(32 + 2 * gi, 2)}')
                    A(f's_mov_b32 s29, {H + gi * 4 * KB}')
                    for q in range(4):
                        self.ldx(v(XR + 16 * gi + 4 * q, 4), 29, q * KB, voff=240 + gi)
                    A('s_mov_b64 exec, -1')
                    A.label(Lg)
                A('s_waitcnt vmcnt(0)')
            A.vm, A.vm_done = vm, vd
            A.label(Lr)
        if 'hp' not in OPT and 'comb' not in OPT:
            remote()
        self.pstamp()
        self.small_main(16, acc, buf, XR, 16, self.DS, lambda j: (26, (j & 3) * KB, FREE + (j >> 2)), map_w2, xsig=6, fsig=7, NB=7, post=None if 'hp' not in OPT else remote,
                        preread=lambda j: self.ltest(pk5, L_CR, 5, 44) if j == 7 else None)
        self.store_tile(acc, XR, X1, ST1)
        for i in range(0, 16, 2):
            A(f'v_pk_add_f32 {v(RES + i, 2)}, {v(RES + i, 2)}, {v(acc + i, 2)}')
        self.flag(sF8, C_X1 - CB, pre=None if 'nopre' in OPT else self.w3_setup)

    def w3_setup(self):
        A = self.A
        self.big_pre(X1, ST1)
        A(f's_add_u32 s29, s29, {C_X1}')
        A(f's_mul_i32 s30, {s(sT0)}, {56 * KB}')
        A(f's_add_u32 s30, s30, {s(sP)}')
        A(f's_add_u32 s30, s30, {G}')
        A(f's_lshl_b32 s32, {s(sCG16)}, 9')
        A(f's_add_u32 s32, s32, s30')
        A(f's_add_u32 s32, s32, {48 * KB}')
        A(f's_mul_i32 s31, {s(sCG16)}, {3 * KB}')
        A(f's_add_u32 s30, s30, s31')
        A(f's_add_u32 s31, s30, {56 * KB}')
        A(f'v_bfe_u32 v3, {v(VLANE)}, 4, 1')
        A(f'v_mul_u32_u24 v13, {56 * KB}, v3')
        A(f'v_lshrrev_b32 v3, 5, {v(VLANE)}')
        A(f'v_lshl_add_u32 v13, v3, 8, v13')
        A(f'v_and_b32 v3, 0xf0, {v(VL16)}')
        A(f'v_add_u32 v13, v13, v3')
        self.cs_read(7, 224, L_CS3)

    def stage_w3(self):
        A = self.A
        NT = 7
        ST, K, acc, buf, XR, CS = 32, 40, 48, 104, 160, 224
        if 'nopre' in OPT:
            self.w3_setup()
        self.lwait(L_CR, 6, 252)
        self.poll(29, VP2, 16, during=lambda: self.wpre(2, NT, buf, map_w3))
        self.pstamp()

        def f():
            for mt in range(2):
                self.stats_consume(ST + 4 * mt, 3)
                self.rstd(ST + 4 * mt + 2, ST + 4 * mt + 1)
                self.gelu_consts2(K + 4 * mt, ST + 4 * mt + 2, ST + 4 * mt + 2, ST + 4 * mt)
        self.big_main(NT, acc, buf, XR, ST, self.rec(f), map_w3, 13, 7, 8, 9)
        gm = sP if 'gsc1' in OPT else sFG
        if 'efon' not in OPT:
            for mt in range(2):
                P = acc + 28 * mt
                if 'inj' not in OPT:
                    self.ln_fix(P, 28, CS, ST + 4 * mt)
                out = 160 + 12 * mt
                self.gelu2(P, 28, K + 4 * mt, ST + 4 * mt + 2, buf, None)
                self.pack(out, buf, 12)
                self.pack(184 + 2 * mt, buf + 24, 2)
                lst = [(v(out + 4 * q, 4), 30 + mt, q * KB, VL16, 4, None) for q in range(3)]
                if mt == 1:
                    A('v_permlane16_swap_b32 v184, v186')
                    A('v_permlane16_swap_b32 v185, v187')
                    lst.append((v(184, 4), 32, 0, 13, 4, None))
                self.stores(lst, gm)
            self.flag(sF16, C_G - CB, two=True)
            return
        self.ln_fix(acc, 28, CS, ST)
        self.ln_fix(acc + 52, 4, CS + 24, ST + 4)
        self.gelu2(acc + 52, 4, K + 4, ST + 6, buf + 28, 186)
        self.gelu2(acc, 28, K, ST + 2, buf, None)
        self.pack(184, buf + 24, 2)
        self.pack(160, buf, 12)
        A('v_permlane16_swap_b32 v184, v186')
        A('v_permlane16_swap_b32 v185, v187')
        self.stores([(v(160 + 4 * q, 4), 30, q * KB, VL16, 4, None) for q in range(3)] + [(v(184, 4), 32, 0, 13, 4, None)], gm)
        self.ln_fix(acc + 28, 24, CS, ST + 4)
        l2 = self.rec(lambda: self.gelu2(acc + 28, 24, K + 4, ST + 6, buf, 172))
        cutp = self.EF
        for x in l2[:cutp]:
            A(x)
        A.wait_all(lg=False)
        self.stores([(v(VONE), sF16, C_G - CB, VP2, 1, '1')])
        for x in l2[cutp:]:
            A(x)
        self.stores([(v(172 + 4 * q, 4), 31, q * KB, VL16, 4, None) for q in range(3)], gm)
        self.pstamp()
        A.wait_all(lg=False)
        self.stores([(v(VONE), sF16, C_G - CB, VP2, 1, '0x100')])
        self.pstamp()

    def stage_w4(self, Lfinal):
        A = self.A
        XR, buf, NB4 = 32, 96, 9
        self.small_pre(G, 56)
        if 'rot4' in OPT:
            A(f's_mov_b32 s27, s26')
            A(f's_add_u32 s28, s26, {56 * KB}')
            A(f's_mul_i32 s30, {s(sCG8)}, 7')
            A(f's_and_b32 s30, s30, 0x3c')
            A(f's_lshl_b32 s30, s30, 10')
            A(f's_add_u32 s26, s26, s30')
        self.lwait(L_CR, 8, 252)
        self.wpre(4, 4, buf, map_w4)
        self.poll(29, VL4, 16, ioff=C_G - CB, during=lambda: (self.wpre(NB4, 4, buf, map_w4, 4), self.sig(L_PS, 3)))
        self.pstamp()

        def hook2(j, t):
            if j == 16 - NB4 + 1 and t == 3:
                self.sig(L_CF, 10)
            if j == self.E11 and t == 3:
                self.sig(L_CF, 11)

        preread = self.acheck([(11, L_CR, 9, 252, False, None), (39, L_CR, 10, 252, False, None)])
        self.small_main(56, RES, buf, XR, 16, self.D4, lambda j: (26, (j & 3) * KB, VL16), map_w4,
                        hook2=hook2, preread=preread, fsig=12, NB=NB4)
        A(f's_cmp_eq_u32 {s(sPAIR)}, 1')
        A(f's_cbranch_scc1 {Lfinal}')
        self.store_tile(RES, XR, X0, ST0, nextpair=True)
        self.flag(sF8, C_X - CB + CSTRIDE)

    def dump2(self):
        if not self.prof:
            return
        A = self.A
        A(f's_lshl_b32 s55, s2, 2')
        A(f's_add_u32 s55, s55, {s(SW)}')
        A(f's_lshl_b32 s55, s55, 1')
        A(f's_add_u32 s55, s55, {s(sPAIR)}')
        A(f's_lshl_b32 s55, s55, 8')
        A(f's_add_u32 s55, s55, {DBG + 512 * 128}')
        A(f'v_writelane_b32 v12, {s(sFAST)}, 61')
        A(f'buffer_store_dword v12, {v(VL4)}, {s(SRD, 4)}, s55 offen')

    def piece_decode(self, sp):
        A = self.A
        L3, L4, LJ = A.newlabel('pd3'), A.newlabel('pd4'), A.newlabel('pdj')
        A(f's_mov_b32 s98, 0')
        A(f's_cmp_ge_u32 {s(sp)}, 832')
        A(f's_cbranch_scc1 {L4}')
        A(f's_cmp_ge_u32 {s(sp)}, 384')
        A(f's_cbranch_scc1 {L3}')
        A(f's_lshr_b32 s28, {s(sp)}, 7')
        A(f's_and_b32 s29, {s(sp)}, 7')
        A(f's_bfe_u32 s30, {s(sp)}, 0x40003')
        A(f's_cmp_eq_u32 s28, 1')
        A(f's_cselect_b64 {s(SRD2, 2)}, {s(PA + 10, 2)}, {s(PA + 12, 2)}')
        A(f's_cmp_eq_u32 s28, 0')
        A(f's_cselect_b64 {s(SRD2, 2)}, {s(PA + 6, 2)}, {s(SRD2, 2)}')
        A(f's_mov_b32 {s(SRD2 + 2)}, {512 * KB}')
        A(f's_mov_b32 s93, 1024')
        A(f's_lshl_b32 s99, s28, 3')
        A(f's_add_u32 s99, s99, s29')
        A(f's_lshl_b32 s94, s99, 4')
        A(f's_add_u32 s94, s94, s30')
        A(f's_lshl_b32 s94, s94, 12')
        A(f's_add_u32 s94, s94, {WO}')
        for t in range(1, 4):
            A(f's_add_u32 {s(94 + t)}, s94, {t * KB}')
        A(f's_branch {LJ}')
        A.label(L3)
        A(f's_sub_u32 s28, {s(sp)}, 384')
        A(f's_and_b32 s30, s28, 15')
        A(f's_lshr_b32 s29, s28, 4')
        A(f's_mov_b64 {s(SRD2, 2)}, {s(PA + 14, 2)}')
        A(f's_mov_b32 {s(SRD2 + 2)}, {1792 * KB}')
        A(f's_mov_b32 s93, 3584')
        A(f's_add_u32 s99, s29, 24')
        A(f's_mul_i32 s31, s30, {7 * KB}')
        A(f's_add_u32 s31, s31, {W3}')
        for t in range(4):
            A(f's_lshl_b32 s28, s29, 2')
            A(f's_add_u32 s28, s28, {t}')
            A(f's_mul_i32 s32, s28, 43')
            A(f's_lshr_b32 s32, s32, 8')
            A(f's_mul_i32 s33, s32, 6')
            A(f's_sub_u32 s33, s28, s33')
            A(f's_sub_u32 s36, s28, 96')
            A(f's_cmp_ge_u32 s28, 96')
            A(f's_cselect_b32 s32, s36, s32')
            A(f's_cselect_b32 s33, 6, s33')
            A(f's_lshl_b32 s36, s32, 3')
            A(f's_add_u32 s36, s36, s33')
            A(f's_lshl_b32 s36, s36, 4')
            A(f's_add_u32 s36, s36, s30')
            A(f's_lshl_b32 s36, s36, 6')
            A(f's_add_u32 {s(72 + t)}, s36, {CS3G}')
            A(f's_mul_i32 s32, s32, 112')
            A(f's_add_u32 s32, s32, s33')
            A(f's_lshl_b32 s32, s32, 10')
            A(f's_add_u32 {s(94 + t)}, s32, s31')
        A(f's_branch {LJ}')
        A.label(L4)
        A(f's_sub_u32 s28, {s(sp)}, 832')
        A(f's_and_b32 s29, s28, 7')
        A(f's_lshr_b32 s30, s28, 3')
        A(f's_mov_b64 {s(SRD2, 2)}, {s(PA + 16, 2)}')
        A(f's_mov_b32 {s(SRD2 + 2)}, {1792 * KB}')
        A(f's_mov_b32 s93, 1024')
        A(f's_add_u32 s99, s29, 52')
        A(f's_cmp_ge_u32 s30, 48')
        A(f's_cselect_b32 s98, 1, 0')
        A(f's_mul_i32 s94, s29, 56')
        if 'rot4' in OPT:
            A(f's_mul_i32 s31, s29, 7')
            A(f's_and_b32 s31, s31, 0x3c')
            A(f's_sub_u32 s31, s30, s31')
            A(f's_cselect_b32 s32, 56, 0')
            A(f's_add_u32 s31, s31, s32')
            A(f's_add_u32 s94, s94, s31')
        else:
            A(f's_add_u32 s94, s94, s30')
        A(f's_lshl_b32 s94, s94, 12')
        A(f's_add_u32 s94, s94, {W4}')
        for t in range(1, 4):
            A(f's_add_u32 {s(94 + t)}, s94, {t * KB}')
        A.label(LJ)
        A(f's_mul_i32 s92, s30, s93')
        A(f's_lshl_b32 s92, s92, 5')
        A(f's_lshl_b32 s29, s29, 7')
        A(f's_add_u32 s92, s92, s29')
        A(f's_lshl_b32 s99, s99, 7')
        A(f's_add_u32 s99, s99, {PC}')
        A(f'v_lshrrev_b32 v80, 3, {v(VLANE)}')
        A(f'v_mul_u32_u24 v80, s93, v80')
        A(f'v_lshrrev_b32 v81, 1, {v(VLANE)}')
        A(f'v_lshrrev_b32 v82, 4, {v(VLANE)}')
        A(f'v_xor_b32 v81, v81, v82')
        A(f'v_and_b32 v81, 3, v81')
        A(f'v_lshl_add_u32 v80, v81, 5, v80')
        A(f'v_and_b32 v81, 1, {v(VLANE)}')
        A(f'v_lshl_add_u32 v80, v81, 4, v80')
        A(f's_lshl_b32 s93, s93, 3')
        for i in range(4):
            A(f's_add_u32 m0, s100, {i * KB}')
            self.dma(92, 0, voff=80, srd=SRD2)
            if i < 3:
                A(f's_add_u32 s92, s92, s93')
        return A.vmark()

    def piece_finish(self):
        A = self.A
        A(f's_cmp_eq_u32 s98, 1')
        A(f's_cselect_b32 s28, 8, 4')
        A(f's_cselect_b32 s29, 4, 16')
        A(f'v_lshrrev_b32 v81, 4, {v(VLANE)}')
        A(f'v_mul_u32_u24 v81, s28, v81')
        A(f'v_bfe_u32 v82, {v(VLANE)}, 2, 2')
        A(f'v_add_u32 v81, v81, v82')
        A(f'v_and_b32 v82, 3, {v(VLANE)}')
        A(f'v_lshlrev_b32 v82, 3, v82')
        A(f'v_add_u32 v82, s100, v82')
        for u in range(2):
            if u:
                A(f'v_add_u32 v81, s29, v81')
            A(f'v_bfe_u32 v83, v81, 1, 2')
            A(f'v_lshl_add_u32 v83, v83, 5, v82')
            A(f'v_lshl_add_u32 v83, v81, 7, v83')
            for t in range(4):
                A(f'v_xor_b32 v84, {32 * t}, v83')
                A(f'ds_read_b64_tr_b16 {v(88 + 4 * t + 2 * u, 2)}, v84')
        A.wait_all(vm=False)
        for t in range(4):
            A(f'buffer_store_dwordx4 {v(88 + 4 * t, 4)}, {v(VL16)}, {s(SRD, 4)}, {s(94 + t)} offen sc1')

    def count(self, sreg):
        A = self.A
        A('s_mov_b64 exec, 1')
        A(f'buffer_atomic_add {v(VONE)}, {v(VL4)}, {s(SRD, 4)}, {s(sreg)} offen')
        A('s_mov_b64 exec, -1')

    def cs_add(self, accs, addr):
        A = self.A
        A(f'v_and_b32 v3, 15, {v(VLANE)}')
        for i in range(1, 4):
            A(f'v_cmp_eq_u32 {s(26 + 2 * i, 2)}, {i}, v3')
        for r, a_, off in accs:
            for i in range(1, 4):
                A(f'v_cndmask_b32 {v(r)}, {v(r)}, {v(r + i)}, {s(26 + 2 * i, 2)}')
        A('s_mov_b32 exec_lo, 0x000f000f')
        A('s_mov_b32 exec_hi, 0x000f000f')
        for r, a_, off in accs:
            A(f'ds_add_f32 {v(a_)}, {v(r)} offset:{off}')
        A('s_mov_b64 exec, -1')

    def loader(self):
        A = self.A
        sLW = 26
        ONES = 16
        A(f's_sub_u32 {s(sLW)}, {s(SW)}, 4')
        if 'lp' in OPT or 'lp0' in OPT:
            A('s_setprio 3')
        self.nstamp = 0
        if self.prof:
            A('v_mov_b32 v12, 0')
            A('s_memrealtime s[60:61]')
            A('s_waitcnt lgkmcnt(0)')
            A('v_writelane_b32 v12, s60, 63')
        self.pstamp()
        if 'p67' in OPT:
            Lp7 = A.newlabel('p67')
            A(f's_lshr_b32 s28, {s(sCG16)}, 1')
            A('s_cmp_lg_u32 s28, 3')
            A(f's_cbranch_scc1 {Lp7}')
            A('s_setprio 3')
            A.label(Lp7)
        if 'nohot' not in OPT:
            A(f's_mov_b64 {s(SRD2, 2)}, {s(PA + 2, 2)}')
            A(f's_mov_b32 {s(SRD2 + 2)}, {512 * 3072}')
            A('s_lshr_b32 s28, s2, 3')
            A('s_lshl_b32 s29, s2, 2')
            A('s_add_u32 s28, s28, s29')
            A('s_and_b32 s28, s28, 31')
            A('s_lshl_b32 s28, s28, 2')
            A(f's_add_u32 s28, s28, {s(sLW)}')
            A(f's_mul_i32 s28, s28, {4 * 3072}')
            A(f'v_lshrrev_b32 v40, 1, {v(VLANE)}')
            A(f'v_mul_u32_u24 v40, 3072, v40')
            A(f'v_and_b32 v41, 1, {v(VLANE)}')
            A(f'v_lshl_add_u32 v40, v41, 10, v40')
            A('s_mov_b64 exec, 0xff')
            A(f'buffer_load_dword v11, v40, {s(SRD2, 4)}, s28 offen offset:{1024 + 384}')
            A('s_mov_b64 exec, -1')
        A(f's_mov_b64 {s(SRD2, 2)}, {s(PA + 4, 2)}')
        A(f's_mov_b32 {s(SRD2 + 2)}, {32 * 512}')
        A(f's_lshl_b32 s28, {s(sCG16)}, 10')
        A(f's_mov_b32 m0, {PHL}')
        self.dma(28, srd=SRD2)
        A(f's_mov_b64 {s(SRD2, 2)}, {s(PA + 2, 2)}')
        A(f's_mov_b32 {s(SRD2 + 2)}, {512 * 3072}')
        A(f'v_lshrrev_b32 v40, 2, {v(VLANE)}')
        A(f'v_mul_u32_u24 v40, 3072, v40')
        A(f'v_lshrrev_b32 v41, 4, {v(VLANE)}')
        A(f'v_xor_b32 v41, v41, {v(VLANE)}')
        A(f'v_and_b32 v41, 3, v41')
        A(f'v_lshl_add_u32 v40, v41, 4, v40')
        A(f's_lshl_b32 s59, {s(sCG16)}, 6')
        mw = {}
        for c in range(4):
            A(f's_add_u32 s28, {s(sT0)}, {c}')
            A(f's_and_b32 s28, s28, 3')
            A(f's_lshl_b32 s28, s28, 2')
            A(f's_add_u32 s28, s28, {s(sLW)}')
            A(f's_lshl_b32 {s(40 + c)}, s28, 12')
            A(f's_lshl_b32 {s(44 + c)}, s28, 11')
            A(f's_add_u32 {s(44 + c)}, {s(44 + c)}, {64 * KB}')

        def wdma(u):
            A(f's_mul_i32 s38, {s(40 + (u & 3))}, 24')
            A(f's_add_u32 s38, s38, s59')
            for hr in range(2):
                for p in ((1, 2) if u < 4 else (0,)):
                    A(f's_add_u32 m0, {s(40 + u)}, {max(p - 1, 0) * 2 * KB + hr * KB}')
                    A(f's_add_u32 s29, s38, {hr * 16 * 3072 + p * KB}')
                    self.dma(29, 0, voff=40, srd=SRD2)
            mw[u] = A.vmark()
        for u in range(4):
            wdma(u)
        if 'p67' in OPT:
            A('s_setprio 0')
        A.wait_all(vm=False)
        self.pstamp()
        for i in range(4):
            A(f'v_mov_b32 {v(ONES + i)}, 0x3f803f80')
        A(f'v_mov_b32 {v(VONE)}, 1')
        A(f'v_and_b32 v32, 15, {v(VLANE)}')
        A(f'v_lshrrev_b32 v33, 4, {v(VLANE)}')
        A(f'v_lshrrev_b32 v34, 2, v32')
        A(f'v_lshrrev_b32 v35, 1, v33')
        A(f'v_xor_b32 v35, v35, v34')
        A(f'v_lshlrev_b32 v35, 4, v35')
        A(f'v_lshl_add_u32 v35, v32, 6, v35')
        A(f'v_and_b32 v36, 1, v33')
        A(f'v_lshl_add_u32 v35, v36, 3, v35')
        A(f'v_xor_b32 v36, 32, v35')
        A(f'v_bfe_u32 v37, {v(VLANE)}, 1, 1')
        A(f'v_xor_b32 v37, v37, v33')
        A(f'v_lshlrev_b32 v37, 4, v37')
        A(f'v_lshrrev_b32 v38, 2, {v(VLANE)}')
        A(f'v_lshl_add_u32 v37, v38, 6, v37')
        A(f'v_and_b32 v38, 1, {v(VLANE)}')
        A(f'v_lshl_add_u32 v37, v38, 3, v37')
        A(f'v_xor_b32 v38, 32, v37')
        A(f'v_and_b32 v39, 1, v34')
        A(f'v_lshlrev_b32 v39, 10, v39')
        A(f'v_lshl_add_u32 v39, v33, 8, v39')
        A(f'v_lshrrev_b32 v34, 3, v32')
        A(f'v_lshl_add_u32 v39, v34, 7, v39')
        A(f'v_and_b32 v34, 3, v32')
        A(f'v_lshl_add_u32 v39, v34, 4, v39')
        A(f'v_lshlrev_b32 v46, 3, {v(VLANE)}')
        A(f'v_add_u32 v46, {PHL}, v46')
        A(f'v_and_b32 v30, 1, v33')
        A(f'v_lshlrev_b32 v30, 6, v30')
        A(f'v_lshrrev_b32 v34, 1, v33')
        A(f'v_lshl_add_u32 v30, v34, 5, v30')
        A(f'v_add_u32 v30, {L_CSQ}, v30')
        A(f'v_lshl_add_u32 v30, v32, 2, v30')
        A(f'v_lshlrev_b32 v31, 4, v33')
        A(f'v_add_u32 v31, {PERM}, v31')
        A(f'v_lshl_add_u32 v31, v32, 2, v31')
        F, C, CSA = 104, 104, 120

        def RB(u):
            return 160 + 16 * u if u < 4 else 224 + 8 * (u - 4)

        def reads(u):
            R = RB(u)
            for r in range(4 if u < 4 else 2):
                A(f'v_add_u32 {v(64 + r)}, {s(40 + u)}, {v(35 + r)}')
            A.wait(vm=mw[u])
            if u == 0:
                A(f'ds_read_b64_tr_b16 v[20:21], v46')
                A(f'ds_read_b64_tr_b16 v[22:23], v46 offset:512')
            for hh in range(2):
                for h2 in range(2):
                    A(f'ds_read_b64 {v(R + 4 * hh + 2 * h2, 2)}, {v(64 + hh)} offset:{h2 * KB}')
            if u < 4:
                for hh in range(2):
                    for h2 in range(2):
                        A(f'ds_read_b64_tr_b16 {v(R + 8 + 4 * hh + 2 * h2, 2)}, {v(66 + hh)} offset:{2 * KB + h2 * KB}')
            return A.lmark()
        rm = reads(0)
        for u in range(8):
            R = RB(u)
            A(f'v_add_u32 v68, {s(40 + u)}, v39')
            if u < 4:
                A(f'v_add_u32 v69, {s(40 + u)}, {v(VL16)}')
            A.wait(lg=rm)
            for hh in range(2):
                for h2 in range(2):
                    A(f'v_mfma_f32_16x16x16_bf16 {v(C + 8 * hh + 4 * h2, 4)}, {v(R + 4 * hh + 2 * h2, 2)}, {v(20 + 2 * hh, 2)}, 0')
            if u < 4:
                for hh in range(2):
                    A(f'ds_write_b128 v69, {v(R + 8 + 4 * hh, 4)} offset:{(2 + hh) * KB}')
            if u not in (3, 7):
                rm = reads(u + 1)
            for hh in range(2):
                self.pack(R + 4 * hh, C + 8 * hh, 4)
                A(f'ds_write_b128 v68, {v(R + 4 * hh, 4)} offset:{hh * 64}')
            if u in (3, 7):
                self.sig(L_CR, 1 if u == 3 else 2)
            if u == self.LPU:
                A('s_setprio 3')
            for t in range(4 if u < 4 else 2):
                a_ = CSA + 4 * t + (16 if u >= 4 else 0)
                A(f'v_mfma_f32_16x16x32_bf16 {v(a_, 4)}, {v(R + 4 * t, 4)}, {v(ONES, 4)}, {"0" if (u & 3) == 0 else v(a_, 4)}')
            if u == self.QD:
                for u2 in range(4, 8):
                    wdma(u2)
            if u == 3:
                self.pstamp()
                self.cs_add([(CSA + 4 * hh, 30, hh * 16) for hh in range(2)] + [(CSA + 8 + 4 * hh, 31, (2 + hh) * 64) for hh in range(2)], None)
                self.sig(L_CS, 1, absv=True)
                A(f's_lshl_b32 s100, {s(sLW)}, 12')
                A(f's_add_u32 s100, s100, {PST}')
                A(f's_lshl_b32 s49, s2, 2')
                A(f's_add_u32 s49, s49, {s(sLW)}')
                A(f's_add_u32 s49, s49, 256')
                m_p1 = self.piece_decode(49)
                rm = reads(4)
        self.cs_add([(CSA + 16 + 4 * hh, 30, 256 + hh * 16) for hh in range(2)], None)
        self.sig(L_CS, 2, absv=True)
        A.wait_all(vm=False)
        self.pstamp()
        def pfin():
            A.wait(vm=m_p1)
            self.piece_finish()
            for t in range(4):
                A(f'v_mfma_f32_16x16x32_bf16 {v(144 + 4 * t, 4)}, {v(88 + 4 * t, 4)}, {v(ONES, 4)}, 0')
            A(f's_sub_u32 s28, s49, 384')
            A(f's_cmp_lt_u32 s28, 448')
            for t in range(4):
                A(f's_cselect_b32 {s(72 + t)}, {s(72 + t)}, {WS_USED}')
            A('s_mov_b32 exec_lo, 0x00010001')
            A('s_mov_b32 exec_hi, 0x00010001')
            for t in range(4):
                A(f'buffer_store_dwordx4 {v(144 + 4 * t, 4)}, {v(VLANE)}, {s(SRD, 4)}, {s(72 + t)} offen sc1')
            A('s_mov_b64 exec, -1')
        if 'nokf' in OPT:
            pfin()
        bases = {}
        for r, (nm, WP, scg, sz) in enumerate((('q', WQKV, sCG16, 96), ('o', WO, sCG8, 64), ('1', W1, sCG8, 64), ('2', W2, sCG8, 64),
                                               ('3', W3, sCG16, 112), ('4', W4, sCG8, 224))):
            A(f's_mul_i32 {s(52 + r)}, {s(scg)}, {sz * KB}')
            A(f's_add_u32 {s(52 + r)}, {s(52 + r)}, {WP}')
            bases[nm] = 52 + r
        self.lwait(L_INIT, 1, 24, sleep=1, single=True)
        self.pstamp()
        A('s_lshr_b32 s34, s2, 3')
        A('s_lshl_b32 s34, s34, 2')
        A(f's_add_u32 s34, s34, {s(sLW)}')
        A(f'v_lshlrev_b32 v21, 7, {v(VLANE)}')
        A(f's_lshl_b32 s37, {s(sLW)}, 10')
        for u in range(8):
            A(f's_mov_b32 {s(64 + u)}, {s(40 + u)}')
        A('v_mov_b32 v28, v39')
        SCR, RSZ = 96 * KB, 336
        A(f'v_bfe_u32 v3, {v(VLANE)}, 2, 2')
        A(f'v_lshl_add_u32 v3, v33, 3, v3')
        A(f'v_mul_u32_u24 v47, {RSZ}, v3')
        A(f'v_and_b32 v3, 3, {v(VLANE)}')
        A(f's_lshr_b32 s30, {s(sLW)}, 1')
        A(f's_and_b32 s31, {s(sLW)}, 1')
        A(f's_lshl_b32 s32, s30, 6')
        A(f's_lshl_b32 s33, s31, 3')
        A(f's_add_u32 s32, s32, s33')
        A(f's_add_u32 s32, s32, {SCR + 128}')
        A(f'v_lshl_add_u32 v4, v3, 4, v47')
        A(f'v_add_u32 v4, s32, v4')
        A(f's_lshl_b32 s32, s30, 5')
        A(f's_add_u32 s32, s32, {SCR + 256}')
        A(f'v_lshl_add_u32 v5, v3, 3, v47')
        A(f'v_add_u32 v5, s32, v5')
        A(f's_lshl_b32 s40, {s(sCG16)}, 12')
        A(f's_add_u32 s40, s40, s37')
        A(f's_add_u32 s40, s40, {KV}')
        A(f's_lshl_b32 s41, {s(sCG16)}, 8')
        A(f's_lshl_b32 s33, s30, 7')
        A(f's_add_u32 s41, s41, s33')
        A(f's_lshl_b32 s31, s31, 4')
        A(f's_add_u32 s41, s41, s31')
        A(f's_add_u32 s41, s41, {Z}')
        A(f's_lshl_b32 s48, {s(sCG16)}, {CSH + 2}')
        A(f's_add_u32 s48, s48, s37')
        A(f's_add_u32 s48, s48, {C_KV}')
        assert CSH == 10
        A(f'v_lshlrev_b32 v50, 5, v33')
        A(f'v_lshl_add_u32 v6, v32, 2, v50')
        A(f'v_mov_b32 v3, {OOB}')
        A(f'v_cmp_gt_u32 vcc, 4, v32')
        A(f'v_cndmask_b32 v6, v3, v6, vcc')
        A(f'v_cmp_eq_u32 s[42:43], 1, v32')
        A(f'v_cmp_eq_u32 s[44:45], 2, v32')
        A(f'v_cmp_eq_u32 s[46:47], 3, v32')

        def kvjob(TA, mid=None):
            TB, KVA, ZA = TA + 16, TA + 32, TA + 36
            kp = 'kprof' in OPT
            if kp:
                self.nstamp = 0
                A('s_memrealtime s[60:61]')
                A('s_waitcnt lgkmcnt(0)')
                A('v_mov_b32 v12, 0')
                A('v_writelane_b32 v12, s60, 63')
                self.pstamp()
            self.lwait(L_CF, 3, 24, sleep=2)
            if 'kp2' in OPT:
                A('s_setprio 3')
            self.lwait(L_CB, 1, 24, sleep=1 if 'kp2' in OPT else 0)
            self.jitter()
            if 'nokp' not in OPT:
                A('s_setprio 3')
            if kp:
                self.pstamp()
            for ks in range(4):
                for u2 in range(2):
                    off = (32 * ks + 4 * u2) * RSZ
                    A(f'ds_read_b64_tr_b16 {v(TA + 4 * ks + 2 * u2, 2)}, v4 offset:{off}')
                    A(f'ds_read_b64_tr_b16 {v(TB + 4 * ks + 2 * u2, 2)}, v5 offset:{off}')
                if ks == 2:
                    A.wait(lg=A.lmark() - 8)
            base = A.lmark() - 16
            for ks in range(4):
                A.wait(lg=base + 4 * ks + 4)
                A(f'v_mfma_f32_16x16x32_bf16 {v(KVA, 4)}, {v(TA + 4 * ks, 4)}, {v(TB + 4 * ks, 4)}, {"0" if ks == 0 else v(KVA, 4)}')
                A(f'v_mfma_f32_16x16x32_bf16 {v(ZA, 4)}, {v(TA + 4 * ks, 4)}, {v(ONES, 4)}, {"0" if ks == 0 else v(ZA, 4)}')
            for r in range(4):
                o = f' offset:{256 * r}' if r else ''
                A(f'buffer_atomic_add_f32 {v(KVA + r)}, {v(VL4)}, {s(SRD, 4)}, s40 offen{o}')
            for i in range(1, 4):
                A(f'v_cndmask_b32 {v(ZA)}, {v(ZA)}, {v(ZA + i)}, {s(40 + 2 * i, 2)}')
            A(f'buffer_atomic_add_f32 {v(ZA)}, v6, {s(SRD, 4)}, s41 offen')
            if kp:
                self.pstamp()
            KT = int([o[2:] for o in OPT if o.startswith('kt')][0]) if any(o.startswith('kt') for o in OPT) else 0
            if KT:
                A(f's_mul_i32 s33, s34, {14 * KB}')
                A(f's_add_u32 s33, s33, {W3}')
                A(f's_cmp_eq_u32 {s(sPAIR)}, 0')
                A(f's_cselect_b32 s33, {WS_USED}, s33')
                A(f'buffer_load_dword v20, v21, {s(SRD, 4)}, s33 offen')
                if KT > 64:
                    A(f's_add_u32 s33, s33, 8192')
                    n2 = KT - 64
                    A(f's_mov_b64 exec, {(1 << n2) - 1:#x}' if n2 < 32 else f's_mov_b32 exec_hi, {(1 << (n2 - 32)) - 1:#x}')
                    A(f'buffer_load_dword v20, v21, {s(SRD, 4)}, s33 offen')
                    A('s_mov_b64 exec, -1')
            if mid:
                m_at = A.vmark()
                A('s_setprio 0')
                mid()
                A('s_setprio 3')
                A.wait(vm=m_at)
            else:
                A(f's_waitcnt vmcnt({0 if not KT else 1 if KT <= 64 else 2})')
                A.vm_done = A.vm
            if kp:
                self.pstamp()
            self.count(48)
            self.sig(L_KD, 1)
            A('s_setprio 0')
            if kp:
                self.pstamp()
                A('s_waitcnt vmcnt(0)')
                self.pstamp()
                A(f's_lshl_b32 s33, s2, 2')
                A(f's_add_u32 s33, s33, {s(sLW)}')
                A(f's_lshl_b32 s33, s33, 8')
                A(f's_add_u32 s33, s33, {DBG + 1024 * KB}')
                A(f'buffer_store_dword v12, {v(VL4)}, {s(SRD, 4)}, s33 offen')
        L, L3 = A.newlabel('lloop'), A.newlabel('lb3')
        if 'lp0' in OPT:
            A('s_setprio 0')

        def run(nm, src0, lds0, n):
            for i in range(0, n, 4):
                if i + 4 <= n:
                    A(f's_add_u32 m0, s37, {lds0 + i * KB}')
                    A(f's_add_u32 s28, s37, {src0 + i * KB}')
                else:
                    A(f's_min_u32 s28, s37, {(n - 1 - i) * KB}')
                    A(f's_add_u32 m0, s28, {lds0 + i * KB}')
                    A(f's_add_u32 s28, s28, {src0 + i * KB}')
                A(f's_add_u32 s28, s28, {s(bases[nm])}')
                self.dma(28)

        def steps(nm, lmap, NT, j0, j1):
            j = j0
            while j < j1:
                e = j + 1
                while e < j1 and lmap(e) == lmap(e - 1) + NT * KB:
                    e += 1
                run(nm, j * NT * KB, lmap(j), (e - j) * NT)
                j = e

        def only(pair, fn):
            Lx = A.newlabel('only')
            A.wait_all(vm=False)
            A(f's_cmp_lg_u32 {s(sPAIR)}, {pair}')
            A(f's_cbranch_scc1 {Lx}')
            vmd = A.vm_done
            fn()
            A.wait_all(vm=False)
            A.vm_done = vmd
            A.label(Lx)

        def touch(base, size):
            share = size // 128
            A(f's_mul_i32 s33, s34, {share}')
            A(f's_add_u32 s33, s33, {base}')
            vm0 = A.vm
            for i in range((share + 8191) // 8192):
                A(f'buffer_load_dword v20, v21, {s(SRD, 4)}, s33 offen')
                A(f's_add_u32 s33, s33, 8192')
            A.vm = vm0

        PK_ = 28

        def pfl(base, size, trig):
            self.lwait(L_PS, trig, 24, sleep=2)
            share = size // 128
            lines = share // 128
            A(f's_mul_i32 s33, s34, {share}')
            A(f's_add_u32 s33, s33, {base}')
            A(f's_mov_b64 exec, {(1 << PK_) - 1:#x}')
            A(f's_mov_b32 s36, {(lines + PK_ - 1) // PK_}')
            Lp_ = A.newlabel('pf')
            A.label(Lp_)
            A(f'buffer_load_dword v20, v21, {s(SRD, 4)}, s33 offen')
            A(f's_add_u32 s33, s33, {PK_ * 128}')
            A('s_sub_u32 s36, s36, 1')
            A('s_cmp_lg_u32 s36, 0')
            A('s_waitcnt vmcnt(0)')
            A(f's_cbranch_scc1 {Lp_}')
            A('s_mov_b64 exec, -1')

        def need(idx0, scg, n, stride, target):
            A(f's_lshl_b32 s33, {s(scg)}, 7')
            A(f's_add_u32 s33, s33, {PC + idx0 * 128}')
            A(f'v_mul_u32_u24 v23, {stride}, v21')
            self.poll(33, 23, n, target=target, mode='load')

        def need3():
            A(f's_mul_i32 s33, {s(sCG16)}, 6')
            A(f's_lshr_b32 s33, s33, 2')
            A(f'v_add_u32 v23, s33, {v(VLANE)}')
            A(f's_lshr_b32 s33, {s(sCG16)}, 2')
            A(f's_add_u32 s33, s33, 24')
            A(f'v_writelane_b32 v23, s33, 2')
            A(f'v_lshlrev_b32 v23, 7, v23')
            A(f's_mov_b32 s33, {PC + 24 * 128}')
            self.poll(33, 23, 3, target=16, mode='load')
            A(f's_lshl_b32 s33, {s(sCG16)}, 13')
            A(f's_add_u32 s33, s33, s37')
            A(f's_add_u32 s33, s33, {CS3G}')
            A(f's_add_u32 s36, s33, 4096')
            A(f's_cmp_eq_u32 {s(sLW)}, 3')
            A(f's_cselect_b32 s36, {WS_USED}, s36')
            self.ldx(v(144, 4), 33, sc=' sc1')
            self.ldx(v(148, 4), 36, sc=' sc1')
            A(f's_lshl_b32 s33, {s(sLW)}, 6')
            A(f's_add_u32 s33, s33, {L_CS3}')
            A(f'v_and_b32 v9, 0x30, {v(VL16)}')
            A(f'v_add_u32 v9, s33, v9')
            A('s_waitcnt vmcnt(0)')
            for rot in (4, 8):
                for i in range(8):
                    A(f'v_add_f32_dpp {v(144 + i)}, {v(144 + i)}, {v(144 + i)} row_ror:{rot} row_mask:0xf bank_mask:0xf')
            for sw in (16, 32):
                for i in range(8):
                    A(f'v_mov_b32 {v(152 + i)}, {v(144 + i)}')
                for i in range(8):
                    A(f'v_permlane{sw}_swap_b32 {v(144 + i)}, {v(152 + i)}')
                for i in range(8):
                    A(f'v_add_f32 {v(144 + i)}, {v(144 + i)}, {v(152 + i)}')
            A('s_mov_b64 exec, 15')
            A('ds_write_b128 v9, v[144:147]')
            A('ds_write_b128 v9, v[148:151] offset:256')
            A('s_mov_b64 exec, -1')

        def cs_build(k, lmap, NT, loc, val, cs=(0, 1, 2, 3), first=True):
            self.lwait(L_CR, k, 24, sleep=1)
            st = NT * KB
            base = min(lmap(j) for j in range(16))
            assert sorted(lmap(j) for j in range(16)) == [base + j * st for j in range(16)]
            for c in cs:
                A(f's_mul_i32 s28, {s(sLW)}, {st}')
                A(f's_add_u32 s28, s28, {base + 4 * c * st}')
                A(f'v_add_u32 v9, s28, {v(VL16)}')
                for t in range(NT):
                    A(f'ds_read_b128 {v(92 + 4 * t, 4)}, v9 offset:{t * KB}')
                A.wait_all(vm=False)
                for t in range(NT):
                    A(f'v_mfma_f32_16x16x32_bf16 {v(CSA + 4 * t, 4)}, {v(92 + 4 * t, 4)}, {v(ONES, 4)}, {"0" if (first and c == cs[0]) else v(CSA + 4 * t, 4)}')
            if val:
                self.cs_add([(CSA + 4 * t, 31, loc - PERM + t * 64) for t in range(NT)], None)
                self.sig(L_CS, val, absv=True)

        def code_touch(lab):
            if 'ct' not in OPT:
                return
            Lpc = A.newlabel('pc')
            A('s_getpc_b64 s[30:31]')
            A.label(Lpc)
            A(f's_lshl_b32 s28, {s(sLW)}, 11')
            A(f's_add_u32 s28, s28, {lab}-{Lpc}')
            A('s_add_u32 s30, s30, s28')
            A('s_addc_u32 s31, s31, 0')
            A('s_mov_b64 exec, 0xffff')
            A('global_load_dword v20, v21, s[30:31]')
            A.vm -= 1
            A('s_mov_b64 exec, -1')

        def batch(k, parts, after=None):
            self.lwait(L_CF, k, 24, sleep=2)
            self.jitter()
            for p in parts:
                steps(*p)
            m = A.vmark()
            if after:
                after()
            A.wait(vm=m)
            self.sig(L_CR, k)
        if 'nokf' not in OPT:
            if 'ed1' in OPT:
                need(0, sCG8, 2, 8, 16)
                kvjob(104, lambda: (pfin(), steps('o', map_wo, 4, 4, 16), steps('1', map_w1, 4, 0, 4)))
            else:
                kvjob(104)
                pfin()
        self.sig(L_CS, 3, absv=True)
        A('s_waitcnt vmcnt(0)')
        A.vm_done = A.vm
        self.count(99)
        Ln = A.newlabel('nomode')
        A(f's_cmp_lg_u32 {s(sLW)}, 0')
        A(f's_cbranch_scc1 {Ln}')
        A('s_getreg_b32 s30, hwreg(HW_REG_XCC_ID)')
        A('s_and_b32 s30, s30, 15')
        A('s_mul_i32 s31, s30, s30')
        A('s_lshl_b32 s31, s31, 16')
        A('s_lshl_b32 s30, s30, 7')
        A('s_add_u32 s30, s30, s31')
        A('s_add_u32 s58, s30, 1')
        A('s_and_b32 s59, s2, 7')
        A('s_lshl_b32 s59, s59, 7')
        A(f's_add_u32 s59, s59, {XW}')
        self.poll(59, VL4, 1, target=32, mode='load', mask=0x7f)
        A('v_readfirstlane_b32 s30, v3')
        A('s_lshl_b32 s31, s58, 5')
        A('s_cmp_eq_u32 s30, s31')
        A(f's_cselect_b32 s33, {1 if "slow" in OPT else 2}, 1')
        A('v_mov_b32 v3, s33')
        A(f'ds_write_b32 {v(VPERM)}, v3 offset:{L_MODE - L_CF}')
        A.wait_all(vm=False)
        A.label(Ln)
        if 'nokf' in OPT:
            kvjob(104)
        A(f's_branch {L3}')
        A.label(L)
        A.vm_done = A.vm
        for k, us in ((1, range(4)), (2, range(4, 8))):
            self.lwait(L_CF, k, 24, sleep=2)
            if 'wp' in OPT:
                A('s_setprio 3')
            for u in us:
                A(f'v_add_u32 v9, {s(64 + u)}, v28')
                for hh in range(2):
                    A(f'ds_write_b128 v9, {v(RB(u) + 4 * hh, 4)} offset:{hh * 64}')
                if u < 4:
                    A(f'v_add_u32 v10, {s(64 + u)}, {v(VL16)}')
                    for hh in range(2):
                        A(f'ds_write_b128 v10, {v(RB(u) + 8 + 4 * hh, 4)} offset:{(2 + hh) * KB}')
            self.sig(L_CR, k)
            if 'wp' in OPT:
                A('s_setprio 0')
        D1 = [('o', map_wo, 4, 0, 4)] if ('cd1' in OPT or 'ed1' in OPT) else [('o', map_wo, 4, 0, 16), ('1', map_w1, 4, 0, 4)]
        if 'd1e' in OPT:
            self.lwait(L_CF, 3, 24, sleep=1)
            for p in D1:
                steps(*p)
        kvjob(160, (lambda: (steps('o', map_wo, 4, 4, 16), steps('1', map_w1, 4, 0, 4))) if 'ed1' in OPT else None)
        A.wait_all(vm=False)
        A.label(L3)

        def ldump():
            if 'ed1' not in OPT:
                need(0, sCG8, 2, 8, 16)
            self.lwait(L_CS, 3, 24, sleep=1, absv=True)
            if self.prof and 'kprof' not in OPT:
                self.pstamp()
                A(f's_lshl_b32 s33, s2, 2')
                A(f's_add_u32 s33, s33, {s(sLW)}')
                A(f's_lshl_b32 s33, s33, 8')
                A(f's_add_u32 s33, s33, {DBG + 1024 * KB}')
                A(f'buffer_store_dword v12, {v(VL4)}, {s(SRD, 4)}, s33 offen')
        only(0, ldump)
        if 'd1e' in OPT:
            def d1():
                for p in D1:
                    steps(*p)
                A('s_waitcnt vmcnt(0)')
            only(0, d1)
            self.sig(L_CR, 3)
        else:
            batch(3, D1)
        if 'pq' in OPT:
            only(1, lambda: pfl(W2, 1536 * KB, 1))
        if 'touch' in OPT:
            only(1, lambda: touch(W3, 1024 * KB))
        only(0, lambda: need(16, sCG8, 1, 0, 16))
        self.lwait(L_KD, 1, 24, sleep=1)
        batch(4, [('1', map_w1, 4, 4, 16), ('2', map_w2, 4, 0, 7)])
        RG = int([o[2:] for o in OPT if o.startswith('rg')][0]) if any(o.startswith('rg') for o in OPT) else 99

        def regload():
            A(f's_add_u32 s28, s37, {s(bases["4"])}')
            A(f's_add_u32 s28, s28, {39 * 4 * KB}')
            for i in range(17):
                self.ldx(v(92 + 4 * i, 4), 28, sc=' sc1')
                A(f's_add_u32 s28, s28, {4 * KB}')
                if i % RG == RG - 1:
                    A.wait_all(lg=False)
        only(0, lambda: (self.lwait(L_D1, 1, 24, sleep=1) if 'cd1' in OPT else None, cs_build(4, map_w1, 4, L_CS1, 4), A.wait_all(vm=False), need3()))
        if 'norl5' not in OPT:
            only(0, lambda: (need(52, sCG8, 1, 0, 56), self.lwait(L_PS, 1, 24, sleep=2, absv=True) if 'rlp' in OPT else None, regload()))
        batch(5, [('2', map_w2, 4, 7, 16), ('3', map_w3, 7, 0, 3)], lambda: only(0, lambda: code_touch('.Lst_w3')))
        A(f'v_add_u32 v9, s37, {v(VL16)}')
        A(f'v_add_u32 v9, {map_w3(3)}, v9')

        def w3out():
            self.lwait(L_PS, 1, 24, sleep=2)
            if 'wp' in OPT:
                A('s_setprio 3')
            for i in range(15):
                A(f'ds_write_b128 v9, {v(32 + 4 * i, 4)} offset:{i * 4 * KB}')
            if 'wp' in OPT:
                A('s_setprio 0')
        only(1, w3out)
        self.lwait(L_CF, 6, 24, sleep=2)
        run('3', 81 * KB, map_w3(3) + 60 * KB, 10)
        only(0, lambda: run('3', 21 * KB, map_w3(3), 60))
        A('s_waitcnt vmcnt(0)')
        A.vm_done = A.vm
        self.sig(L_CR, 6)

        def w3in():
            for i in range(15):
                A(f'ds_read_b128 {v(32 + 4 * i, 4)}, v9 offset:{i * 4 * KB}')
            self.sig(L_CS, 5, absv=True)
        only(0, w3in)
        batch(7, [('3', map_w3, 7, 13, 16)])
        if 'norl5' in OPT:
            only(0, lambda: need(52, sCG8, 1, 0, 56))
        if 'v2' in OPT:
            self.lwait(L_PS, 2, 24, sleep=2)
            regload()
            batch(8, [('4', map_w4, 4, 0, 11)])
        elif 'v3' in OPT:
            batch(8, [('4', map_w4, 4, 0, 11)], regload)
        else:
            def gtouch():
                Lt = A.newlabel('gt')
                A(f'ds_read_b32 v24, {v(VPERM)} offset:{L_MODE - L_CF}')
                A.wait_all(vm=False)
                A('v_readfirstlane_b32 s33, v24')
                A('s_cmp_lg_u32 s33, 2')
                A(f's_cbranch_scc1 {Lt}')
                A(f's_mul_i32 s33, s34, {7 * KB}')
                A('s_and_b32 s36, s2, 7')
                A(f's_mul_i32 s36, s36, {896 * KB}')
                A('s_add_u32 s33, s33, s36')
                A(f's_add_u32 s33, s33, {G}')
                A('s_mov_b32 exec_hi, 0xffffff')
                A(f'buffer_load_dword v20, v21, {s(SRD, 4)}, s33 offen')
                A('s_mov_b32 exec_hi, -1')
                A.label(Lt)
            self.lwait(L_PS, 2, 24, sleep=2)
            if 'gt' in OPT:
                gtouch()
            steps('4', map_w4, 4, 0, 11)
            if 'gt2' in OPT:
                gtouch()
            if 'rl2' in OPT:
                only(0, regload)
            A.wait_all(lg=False)
            self.sig(L_CR, 8)
            self.lwait(L_CF, 8, 24, sleep=2)
            if 'nosplit' not in OPT:
                assert map_w4(23) >= map_w3(0) and map_w4(37) + 4 * KB <= map_w3(8) + 7 * KB
                self.lwait(L_CS, 5, 24, sleep=1, absv=True)
                steps('4', map_w4, 4, 23, 38)
            if 'norl5' in OPT and 'rl2' not in OPT and 'rl9' not in OPT:
                only(0, regload)
            if 'g1' in OPT:
                only(1, lambda: (self.lwait(L_CF, 8, 24, sleep=2), gtouch()))
            if 'g2' in OPT:
                only(1, gtouch)
            if 'p4' in OPT:
                only(1, lambda: touch(W4, 1792 * KB))
            only(0, lambda: (code_touch('.Lst_w4'), code_touch('.Lst_q')))
        batch(9, [('4', map_w4, 4, 11, 39)] if 'nosplit' in OPT else [('4', map_w4, 4, 11, 23), ('4', map_w4, 4, 38, 39)])
        if 'rl9' in OPT:
            only(0, lambda: (regload(), A('s_waitcnt vmcnt(0)')))
        if 'noreg' not in OPT:
            A(f'v_add_u32 v9, s37, {v(VL16)}')
            A(f'v_add_u32 v9, {map_w4(50)}, v9')
            A(f'v_add_u32 v10, {32 * KB}, v9')
            for i in range(17):
                if i == 0 and True:
                    self.lwait(L_PS, 3, 24, sleep=1)
                    if 'now10' not in OPT:
                        A('s_setprio 3')
                if i == (9 if True else 0):
                    A('s_setprio 0')
                    self.lwait(L_CF, 10, 24, sleep=1)
                    if 'now10' not in OPT:
                        A('s_setprio 3')
                o_ = map_w4(39 + i) - map_w4(50)
                A(f'ds_write_b128 {v(9 + (o_ >= 32 * KB))}, {v(92 + 4 * i, 4)} offset:{o_ - 32 * KB * (o_ >= 32 * KB)}')
            self.sig(L_CR, 10)
            if 'now10' not in OPT:
                A('s_setprio 0')
        else:
            batch(10, [('4', map_w4, 4, 39, 56)])
        A.wait_all()
        A(f's_add_u32 {s(sEV)}, {s(sEV)}, 10')
        A(f's_add_u32 s40, s40, {ZSTRIDE}')
        A(f's_add_u32 s41, s41, {ZSTRIDE}')
        A(f's_add_u32 s48, s48, {CSTRIDE}')
        A(f's_add_u32 {s(sPAIR)}, {s(sPAIR)}, 1')
        A(f's_cmp_lt_u32 {s(sPAIR)}, 2')
        A(f's_cbranch_scc1 {L}')
        A('s_endpgm')

    def main(self):
        A = self.A
        name = NAME + '_kernel'
        A.reset_kernel()
        A.raw('.p2align 8')
        A.raw(f'.globl {name}')
        A.raw(f'.type {name},@function')
        A.label(name)
        self.exit = A.newlabel('exit')
        A('s_cmp_ge_u32 s2, 256')
        A(f's_cbranch_scc1 {self.exit}')
        A(f's_load_dwordx16 {s(PA, 16)}, s[0:1], 0')
        A(f's_load_dwordx8 {s(PA + 16, 8)}, s[0:1], 64')
        if self.prof or 'dbgt' in OPT or any(o.startswith('mk') for o in OPT):
            A('s_memrealtime s[62:63]')
        Lpc = A.newlabel('pc')
        A('s_getpc_b64 s[40:41]')
        A.label(Lpc)
        if 'cpfull' in OPT:
            A('v_lshlrev_b32 v3, 7, v0')
            A(f'v_min_u32 v3, code_end-{Lpc}-4, v3')
            A('global_load_dword v13, v3, s[40:41]')
        elif 'cpnone' not in OPT:
            A('s_lshr_b32 s42, s2, 3')
            A('s_lshl_b32 s42, s42, 11')
            A('v_lshlrev_b32 v3, 2, v0')
            A('v_add_u32 v3, s42, v3')
            A(f'v_min_u32 v3, code_end-{Lpc}-4, v3')
            A('s_mov_b32 exec_lo, 1')
            A('s_mov_b32 exec_hi, 1')
            A('global_load_dword v13, v3, s[40:41]')
            A('s_mov_b64 exec, -1')
        A(f'v_and_b32 {v(VLANE)}, 63, v0')
        A(f'v_lshrrev_b32 v3, 6, v0')
        A(f'v_lshlrev_b32 {v(VL16)}, 4, {v(VLANE)}')
        A(f'v_readfirstlane_b32 {s(SW)}, v3')
        A(f's_mov_b32 {s(SRD + 2)}, {WS_USED}')
        A(f's_mov_b32 {s(SRD + 3)}, 0x00020000')
        A(f's_mov_b32 {s(SRD2 + 3)}, 0x00020000')
        A(f's_mov_b32 {s(SRDD + 2)}, 256')
        A(f's_mov_b32 {s(SRDD + 3)}, 0x00020000')
        self.tile64(sT, sCG8)
        self.tile128(sT0, sCG16)
        A(f's_mov_b32 {s(sPAIR)}, 0')
        A(f's_mov_b32 {s(sTO)}, 0x200000')
        A(f'v_lshlrev_b32 {v(VL4)}, 2, {v(VLANE)}')
        A(f's_mov_b32 {s(sEV)}, 0')
        A(f'v_mov_b32 {v(VPERM)}, {L_CF}')
        A(f's_and_b32 s26, {s(SW)}, 3')
        A(f's_lshl_b32 s26, s26, 2')
        A(f'v_add_u32 {v(VOWN)}, s26, {v(VPERM)}')
        A(f'v_cmp_gt_u32 vcc, 4, {v(VLANE)}')
        A(f'v_cndmask_b32 v3, 0, 2, vcc')
        A(f'v_add_u32 v10, {v(VL4)}, {v(VPERM)}')
        A(f'ds_write_b32 v10, v3')
        A(f'v_lshlrev_b32 v10, 2, v0')
        A(f'v_add_u32 v10, {PERM}, v10')
        A(f'v_mov_b32 v11, 0')
        A(f'ds_write_b32 v10, v11')
        LC = A.newlabel('compute')
        A('s_waitcnt lgkmcnt(0)')
        A.lg_done = A.lg
        A(f's_mov_b64 {s(SRD, 2)}, {s(PA + 22, 2)}')
        A(f's_mov_b64 {s(SRDD, 2)}, {s(PA + 20, 2)}')
        if 'wpf' in OPT:
            A('s_lshr_b32 s26, s2, 3')
            A('s_lshl_b32 s27, s2, 2')
            A('s_add_u32 s26, s26, s27')
            A('s_and_b32 s26, s26, 31')
            A('s_lshl_b32 s26, s26, 3')
            A(f's_add_u32 s26, s26, {s(SW)}')
            A(f's_mul_i32 s26, s26, 6144')
            A(f's_mov_b64 {s(SRD2, 2)}, {s(PA + 2, 2)}')
            A(f's_mov_b32 {s(SRD2 + 2)}, {512 * 3072}')
            A(f'v_lshlrev_b32 v10, 7, {v(VLANE)}')
            A('s_mov_b32 exec_hi, 0xffff')
            A(f'buffer_load_dword v13, v10, {s(SRD2, 4)}, s26 offen')
            A('s_mov_b32 exec_hi, -1')
        A(f's_cmp_lt_u32 {s(SW)}, 4')
        A('s_barrier')
        A(f's_cbranch_scc1 {LC}')
        self.loader()
        A.label(LC)
        A.flush_hazards()
        A.vm = A.vm_done = A.lg = A.lg_done = 0
        if 'eq' not in OPT:
            A('s_setprio 2')
        A(f's_lshl_b32 {s(sT0)}, {s(sT0)}, 3')
        A(f's_lshl_b32 s26, {s(SW)}, 1')
        A(f's_add_u32 {s(sT0)}, {s(sT0)}, s26')
        Lz = A.newlabel('nz')
        A(f's_cmp_lt_u32 s2, 32')
        A(f's_cselect_b32 s58, {s(SW)}, 0')
        A(f's_cmp_lg_u32 s58, 3')
        A(f's_cbranch_scc1 {Lz}')
        for i in range(4):
            A(f'v_mov_b32 {v(28 + i)}, 0')
        A(f's_mul_i32 s28, s2, {5 * KB}')
        A(f's_add_u32 s28, s28, {ZR}')
        A(f's_add_u32 s29, s28, {4 * KB}')
        A(f's_and_b32 s30, s2, 7')
        A(f's_lshl_b32 s30, s30, 14')
        A(f's_lshr_b32 s31, s2, 3')
        A(f's_lshl_b32 s31, s31, 12')
        A(f's_add_u32 s30, s30, s31')
        A(f's_add_u32 s30, s30, {CB}')
        assert CB == ZR + 160 * KB
        for i in range(9):
            r, o = (28, i) if i < 4 else (29, 0) if i == 4 else (30, i - 5)
            A(f'buffer_store_dwordx4 v[28:31], {v(VL16)}, {s(SRD, 4)}, {s(r)} offen offset:{o * KB} sc1')
        A('v_mov_b32 v3, 1')
        A('s_waitcnt vmcnt(0)')
        A('s_mov_b64 exec, 1')
        A(f'buffer_atomic_add v3, {v(VL4)}, {s(SRDD, 4)}, 0 offen')
        A('s_mov_b64 exec, -1')
        A.label(Lz)
        A.vm_done = A.vm
        A('s_nop 0')
        A(f's_mov_b64 {s(SRD2, 2)}, {s(PA, 2)}')
        A(f's_mov_b32 {s(SRD2 + 2)}, {2048 * 512 * 2}')
        A(f'v_lshrrev_b32 v3, 4, {v(VLANE)}')
        A(f'v_and_b32 v10, 0xf0, {v(VL16)}')
        A(f'v_lshl_add_u32 v10, v3, 10, v10')
        A(f's_lshl_b32 s92, {s(sT0)}, 14')
        for i in range(1, 8):
            A(f's_add_u32 {s(92 + i)}, s92, {i * 4096}')
        PB = [128, 160, 192, 224]
        self.x0m = []

        def x0load(q4):
            for mt in range(2):
                for n in range(4):
                    self.ld(v(PB[q4] + 16 * mt + 4 * n, 4), 92 + 4 * mt + n, 256 * q4, voff=10, srd=SRD2)
                self.x0m.append(A.vmark())
        self.x0load = x0load
        for q4 in range(self.XPRE):
            x0load(q4)
        A(f's_mov_b32 {s(sP)}, 0')
        A(f's_mov_b32 {s(sZ)}, 0')
        A(f's_mov_b32 {s(sC)}, 0')
        A(f's_mov_b32 {s(sFAST)}, 0')
        A(f's_mov_b32 {s(sFG)}, 0')
        A(f's_lshl_b32 {s(sT)}, {s(sT)}, 2')
        A(f's_add_u32 {s(sT)}, {s(sT)}, {s(SW)}')
        A(f's_lshl_b32 {s(sTILE)}, {s(sT)}, 14')
        A(f's_lshl_b32 s26, {s(sCG8)}, 11')
        A(f's_add_u32 {s(sTILE)}, {s(sTILE)}, s26')
        A(f's_lshl_b32 {s(sSTP)}, {s(sT)}, 10')
        A(f's_lshl_b32 s26, {s(sCG8)}, 7')
        A(f's_add_u32 {s(sSTP)}, {s(sSTP)}, s26')
        A(f's_mov_b32 {s(sHH)}, {HH - H}')
        A(f's_and_b32 s26, {s(sT)}, 15')
        A(f's_bitcmp1_b32 {s(sCG8)}, 1')
        A(f's_cselect_b32 s27, 0, 15')
        A(f's_cmp_eq_u32 s26, s27')
        A(f's_cselect_b32 {s(sFH)}, 1, 0')
        A(f's_lshl_b32 s27, {s(sT)}, {CSH}')
        A(f's_add_u32 s28, s27, {C_HH - (1 << CSH)}')
        A(f's_add_u32 s27, s27, {C_HH + (1 << CSH) + 8}')
        A(f's_cmp_eq_u32 s26, 15')
        A(f's_cselect_b32 {s(sRH)}, s27, 0')
        A(f's_cmp_eq_u32 s26, 0')
        A(f's_cselect_b32 {s(sRH)}, s28, {s(sRH)}')
        A(f's_cmp_eq_u32 {s(sT)}, 0')
        A(f's_cselect_b32 {s(sRH)}, 0, {s(sRH)}')
        A(f's_cmp_eq_u32 {s(sT)}, 127')
        A(f's_cselect_b32 {s(sRH)}, 0, {s(sRH)}')
        for f, t, c in ((sF8, sT, sCG8), (sF16, sT0, sCG16)):
            A(f's_lshl_b32 {s(f)}, {s(t)}, {CSH}')
            A(f's_lshl_b32 s26, {s(c)}, 2')
            A(f's_add_u32 {s(f)}, {s(f)}, s26')
            A(f's_add_u32 {s(f)}, {s(f)}, {CB}')
        A(f'v_add_u32 {v(VB64)}, 0x10000, {v(VL16)}')
        A(f'v_add_u32 {v(VB128)}, 0x20000, {v(VL16)}')
        A(f'v_and_b32 {v(VSTL)}, 0x300, {v(VL16)}')
        A(f'v_and_b32 v3, 15, {v(VLANE)}')
        A(f'v_lshl_add_u32 {v(VSTL)}, v3, 3, {v(VSTL)}')
        A(f'v_mov_b32 {v(VONE)}, 1')
        A(f'v_lshrrev_b32 {v(VP2)}, 3, {v(VLANE)}')
        A(f'v_and_b32 v3, 0x1c, {v(VL4)}')
        A(f'v_lshl_add_u32 {v(VP2)}, {v(VP2)}, {CSH}, v3')
        A('v_mov_b32 v12, 0')
        if self.prof:
            A('v_writelane_b32 v12, s62, 60')
        A.wait(vm=self.x0m[0])
        self.Lp = A.newlabel('pair')
        Lfinal = A.newlabel('final')
        self.stage_qkv()
        self.stage_wo()
        self.stage_w1()
        self.stage_w2()
        A.label('.Lst_w3')
        self.stage_w3()
        A.label('.Lst_w4')
        self.stage_w4(Lfinal)
        self.dump2()
        self.mark(3)
        if 'dbgt' in OPT:
            A('s_memrealtime s[60:61]')
            A('s_waitcnt lgkmcnt(0)')
            A('s_mov_b32 s94, s60')
        A(f's_mov_b32 {s(sPAIR)}, 1')
        A(f's_mov_b32 {s(sEV)}, 10')
        A(f's_mov_b32 {s(sHH)}, {HH - H + 2048 * KB}')
        A(f's_mov_b32 {s(sFG)}, {s(sFAST)}')
        A(f's_mov_b32 {s(sZ)}, {ZSTRIDE}')
        A(f's_mov_b32 {s(sC)}, {CSTRIDE}')
        A(f's_add_u32 {s(sF8)}, {s(sF8)}, {CSTRIDE}')
        A(f's_add_u32 {s(sF16)}, {s(sF16)}, {CSTRIDE}')
        A(f's_branch {self.Lp}')
        A.label(Lfinal)
        buf = 64
        A(f's_mov_b64 {s(SRD2, 2)}, {s(PA + 18, 2)}')
        A(f'v_and_b32 v13, 15, {v(VLANE)}')
        A(f'v_lshlrev_b32 v13, 10, v13')
        A(f'v_bfe_u32 v3, {v(VLANE)}, 4, 1')
        A(f'v_lshl_add_u32 v13, v3, 5, v13')
        A(f'v_lshrrev_b32 v3, 5, {v(VLANE)}')
        A(f'v_lshl_add_u32 v13, v3, 4, v13')
        A(f's_lshl_b32 s28, {s(sT)}, 14')
        A(f's_lshl_b32 s29, {s(sCG8)}, 7')
        A(f's_add_u32 s28, s28, s29')
        self.pack(buf, RES, 8)
        for q in range(2):
            b = buf + 4 * q
            A(f'v_permlane16_swap_b32 {v(b)}, {v(b + 2)}')
            A(f'v_permlane16_swap_b32 {v(b + 1)}, {v(b + 3)}')
        for q in range(2):
            self.stsfx = ' sc1' if 'osc1' in OPT else ' nt' if 'ont' in OPT else ''
            self.st(v(buf + 4 * q, 4), 28, 64 * q, voff=13, srd=SRD2)
        if 'dbgt' in OPT:
            A('s_not_b32 s62, s62')
            A('v_mov_b32 v12, s62')
            A('s_mov_b64 exec, 1')
            A(f'buffer_atomic_umax v12, {v(VL4)}, {s(SRDD, 4)}, 0 offen offset:32')
            A('s_mov_b64 exec, -1')
        self.dbgt(9)
        for i_, r_ in enumerate((92, 93, 94)):
            if 'dbgt' in OPT:
                A(f'v_mov_b32 v12, {s(r_)}')
                A('s_mov_b64 exec, 1')
                A(f'buffer_atomic_umax v12, {v(VL4)}, {s(SRDD, 4)}, 0 offen offset:{40 + 4 * i_}')
                A('s_mov_b64 exec, -1')
        if self.prof:
            A('s_memrealtime s[60:61]')
            A('s_waitcnt lgkmcnt(0)')
            A('v_writelane_b32 v12, s60, 62')
        self.dump2()
        self.mark(4, False)
        if any(o.startswith('mk') for o in OPT):
            Ls = A.newlabel('spin')
            A('s_memrealtime s[56:57]')
            A('s_waitcnt lgkmcnt(0)')
            A('s_sub_u32 s54, s54, s62')
            A.label(Ls)
            A('s_memrealtime s[58:59]')
            A('s_waitcnt lgkmcnt(0)')
            A('s_sub_u32 s58, s58, s56')
            A('s_cmp_lt_u32 s58, s54')
            A(f's_cbranch_scc1 {Ls}')
        A.label(self.exit)
        A('s_endpgm')
        A.label('code_end')
        if 'ct' in OPT:
            A.raw('.fill 2048, 4, 0xbf810000')
        self.kernels.append((name, A.maxv + 1, (A.maxv + 4) // 4 * 4, A.maxs + 1))

    def build(self, hdr):
        self.main()
        out = [hdr]
        out.append(f'; @launch grid=(256,1,1) block=(512,1,1) lds={160 * KB}')
        out.append('.amdgcn_target "amdgcn-amd-amdhsa--gfx950"')
        out.append(DOC)
        out.append('.text')
        out.append(self.A.text())
        out.append('.section .rodata,"a"')
        for n, nv, accum, ns in self.kernels:
            assert nv <= 256
            out.append('.p2align 6')
            out.append(f'.amdhsa_kernel {n}')
            out.append(f'  .amdhsa_next_free_vgpr {nv}')
            out.append(f'  .amdhsa_next_free_sgpr {max(ns, 16)}')
            out.append(f'  .amdhsa_accum_offset {accum}')
            out.append('  .amdhsa_group_segment_fixed_size 0')
            out.append('  .amdhsa_kernarg_size 96')
            out.append('  .amdhsa_user_sgpr_count 2')
            out.append('  .amdhsa_user_sgpr_kernarg_segment_ptr 1')
            out.append('  .amdhsa_system_sgpr_workgroup_id_x 1')
            out.append('  .amdhsa_float_denorm_mode_32 3')
            out.append('.end_amdhsa_kernel')
        return '\n'.join(out) + '\n'


if __name__ == '__main__':
    OPT.add('d2early')
    g = Gen3()
    g.prof = 'prof' in OPT
    txt = g.build(header())
    out = sys.argv[1]
    if out == '-':
        out = f'cdna_kernels/{NAME}.s'
    open(out, 'w').write(txt)
    json.dump(LAYOUT, open('layout.json', 'w'))
    for k in g.kernels:
        print(k)
    print('nops inserted', g.A.nops, 'ws used', WS_USED, 'stamps', g.nstamp)
```
